```python
import torch

def _softmax(x, axis=-1):
    return torch.softmax(x, dim=axis)

def _gelu(x):
    return torch.nn.functional.gelu(x, approximate='tanh')

def _silu(x):
    return torch.nn.functional.silu(x)

def _sigmoid(x):
    return torch.sigmoid(x)

def _layernorm(x, axis=-1, eps=1e-05):
    m = x.mean(dim=axis, keepdim=True)
    v = x.var(dim=axis, keepdim=True, unbiased=False)
    return (x - m) / torch.sqrt(v + eps)

def _scatter_add(tgt, idx, src, axis=0):
    return tgt.clone().index_add_(axis, idx, src)

def _segment_sum(src, seg, n):
    out = torch.zeros((n,) + src.shape[1:], dtype=src.dtype)
    return out.index_add_(0, seg, src)

def _pad(x, pw):
    flat = tuple((v for pair in reversed(pw) for v in pair))
    return torch.nn.functional.pad(x, flat)
kernel_name = 'standalone__conformer_family_branchformer__speech'

def setup_inputs():

    _w = lambda a: (lambda t: t.to(torch.bfloat16) if t.is_floating_point() else t)(torch.as_tensor(a))
    B, T, D, K = (2, 4000, 512, 31)
    s = float(D) ** (-0.5)
    return {'x': _w((lambda *s: torch.randn(*s, dtype=torch.bfloat16) * 0.05)(B, T, D)), 'w_q': _w((lambda *s: torch.randn(*s, dtype=torch.bfloat16) * 1.6)(D, D) * s), 'w_k': _w((lambda *s: torch.randn(*s, dtype=torch.bfloat16) * 1.6)(D, D) * s), 'w_v': _w((lambda *s: torch.randn(*s, dtype=torch.bfloat16) * 0.8)(D, D) * s), 'w_ao': _w((lambda *s: torch.randn(*s, dtype=torch.bfloat16) * 0.8)(D, D) * s), 'w_up': _w((lambda *s: torch.randn(*s, dtype=torch.bfloat16) * 1.6)(D, 2 * D) * s), 'dw': _w((lambda *s: torch.randn(*s, dtype=torch.bfloat16) * 1.6)(K, D) * (1.0 / K)), 'w_dn': _w((lambda *s: torch.randn(*s, dtype=torch.bfloat16) * 0.8)(D, D) * s), 'w_merge': _w((lambda *s: torch.randn(*s, dtype=torch.bfloat16) * 0.8)(2 * D, D) * s)}

def reference(x, w_q, w_k, w_v, w_ao, w_up, dw, w_dn, w_merge):
    B, T, D = x.shape
    K = dw.shape[0]
    xa = _layernorm(x, axis=-1)
    q = torch.einsum('btd,de->bte', xa, w_q)
    k = torch.einsum('btd,de->bte', xa, w_k)
    v = torch.einsum('btd,de->bte', xa, w_v)
    logits = torch.einsum('btd,bsd->bts', q, k) * float(D) ** (-0.5)
    attn = _softmax(logits, axis=-1)
    ya = torch.einsum('bts,bsd->btd', attn, v)
    ya = torch.einsum('btd,de->bte', ya, w_ao)
    xc = _layernorm(x, axis=-1)
    h = _gelu(torch.einsum('btd,de->bte', xc, w_up))
    u = h[..., :D].clone()
    g = _layernorm(h[..., D:], axis=-1)
    pad = K // 2
    gp = _pad(g, ((0, 0), (pad, pad), (0, 0)))
    conv = torch.zeros_like(g)
    for i in range(K):
        conv = conv + gp[:, i:i + T, :] * dw[i][None, None, :]
    yc = torch.einsum('btd,de->bte', u * conv, w_dn)
    merged = torch.concatenate([ya, yc], axis=-1)
    out = torch.einsum('btf,fd->btd', merged, w_merge)
    return x + out
```

```python
class Asm:
    def __init__(self):
        self.lines = []
        self.lbl = 0
    def __call__(self, s):
        for ln in s.split('\n'):
            ln = ln.strip()
            if ln:
                if ln.endswith(':'):
                    self.lines.append(ln)
                else:
                    self.lines.append('    ' + ln)
    def raw(self, s):
        self.lines.append(s)
    def label(self, prefix='L'):
        self.lbl += 1
        return f'{prefix}_{self.lbl}'
    def text(self):
        return '\n'.join(self.lines) + '\n'

def vr(base, n=1):
    return f'v{base}' if n == 1 else f'v[{base}:{base+n-1}]'
def ar(base, n=1):
    return f'a{base}' if n == 1 else f'a[{base}:{base+n-1}]'
def sr(base, n=1):
    return f's{base}' if n == 1 else f's[{base}:{base+n-1}]'

def kernel_begin(a, name):
    a.raw('.text')
    a.raw(f'.globl {name}')
    a.raw('.p2align 8')
    a.raw(f'.type {name},@function')
    a.raw(f'{name}:')

def kernel_desc(a, name, vgpr, sgpr, accum):
    a.raw('.section .rodata,"a"')
    a.raw('.p2align 6')
    a.raw(f'.amdhsa_kernel {name}')
    a.raw(f'  .amdhsa_next_free_vgpr {vgpr}')
    a.raw(f'  .amdhsa_next_free_sgpr {sgpr}')
    a.raw(f'  .amdhsa_accum_offset {accum}')
    a.raw('  .amdhsa_group_segment_fixed_size 0')
    a.raw('  .amdhsa_kernarg_size 96')
    a.raw('  .amdhsa_user_sgpr_count 2')
    a.raw('  .amdhsa_user_sgpr_kernarg_segment_ptr 1')
    a.raw('  .amdhsa_system_sgpr_workgroup_id_x 1')
    a.raw('.end_amdhsa_kernel')

def make_srd(a, d, base, off, nbytes, tmp=None):
    if off == 0:
        a(f's_mov_b32 s{d}, s{base}')
        a(f's_mov_b32 s{d+1}, s{base+1}')
    else:
        a(f's_add_u32 s{d}, s{base}, {off}')
        a(f's_addc_u32 s{d+1}, s{base+1}, 0')
    a(f's_mov_b32 s{d+2}, {nbytes}')
    a(f's_mov_b32 s{d+3}, 0x00020000')
```

```python
from asmlib import *
from layout import *

class LdsQ:
    def __init__(self): self.issued = 0; self.last = {}
    def issue(self, tag, n=1):
        self.issued += n; self.last[tag] = self.issued
    def need(self, tag): return self.issued - self.last[tag]

V_DK0, V_DK1, V_DV0, V_DV1, V_KA, V_VA, V_L16, V_L0, V_L1, V_MX, V_F0, V_F1, V_T0, V_T1, V_T2 = range(1, 16)
V_S, V_E, V_P, V_NEGM, V_RING = 16, 32, 48, 56, 64
V_PF, V_PFD = 116, 117
S_WS, S_SRD = 4, 8
S_KOFF, S_VOFF, S_KDMA, S_VDMA, S_VRD, S_CNT, S_W, S_QB, S_SPLIT, S_T0, S_T1, S_VALID, S_GRP, S_W8K, S_PFOFF = range(24, 39)

def Oreg(beta, qh):
    return vr(128 + 8 * beta + 4 * qh, 4) if beta < 16 else ar(128 + 8 * (beta - 16) + 4 * qh, 4)

def gen_attn(a, name, mapping='tile', dma_flags='', dma_start=0, dma_gap=3, dma_cost=2, CAP=2, no_dma=False, bar_pos=50, NR=13, LA=11, wait_every=4, THR=0x41800000,
             stamp=False, snake=False, prefetch=0, simple_out=True, adds_in=1, iters=None):
    kernel_begin(a, name)
    a(f's_cmp_ge_u32 s2, 256\n s_cbranch_scc1 {name}_end')
    a(f's_load_dwordx2 s[{S_WS}:{S_WS+1}], s[0:1], 88')
    if stamp:
        a('s_memrealtime s[44:45]')
    a(f'v_lshrrev_b32 v{V_T0}, 6, v0')
    a(f'v_and_b32 v0, 63, v0')
    a(f'v_readfirstlane_b32 s{S_W}, v{V_T0}')
    a(f'v_lshlrev_b32 v{V_L16}, 4, v0')
    a(f's_and_b32 s{S_T0}, s2, 7')
    a(f's_lshr_b32 s{S_T1}, s2, 3')
    if mapping == 'tile':
        a(f's_and_b32 s{S_SPLIT}, s{S_T1}, 3')
        a(f's_lshr_b32 s{S_T1}, s{S_T1}, 2')
        a(f's_lshl_b32 s{S_PFOFF}, s{S_T1}, 2')
        a(f's_and_b32 s{S_QB}, s{S_T0}, 3')
        a(f's_lshl_b32 s{S_QB}, s{S_QB}, 3')
        a(f's_add_u32 s{S_QB}, s{S_QB}, s{S_T1}')
    else:
        a(f's_and_b32 s{S_SPLIT}, s{S_T0}, 3')
        a(f's_mov_b32 s{S_QB}, s{S_T1}')
        a(f's_and_b32 s{S_PFOFF}, s{S_T1}, 7')
        a(f's_lshl_b32 s{S_PFOFF}, s{S_PFOFF}, 2')
    a(f's_lshr_b32 s{S_T0}, s{S_T0}, 2')
    a(f's_lshl_b32 s{S_GRP}, s{S_T0}, 5')
    a(f's_add_u32 s{S_GRP}, s{S_GRP}, s{S_QB}')
    a(f's_mul_i32 s{S_T0}, s{S_T0}, 125')
    a(f's_lshl_b32 s{S_QB}, s{S_QB}, 2')
    a(f's_add_u32 s{S_QB}, s{S_QB}, s{S_W}')
    a(f's_cmp_lt_u32 s{S_QB}, 125')
    a(f's_cselect_b32 s{S_VALID}, 1, 0')
    a(f's_min_u32 s{S_QB}, s{S_QB}, 124')
    a(f's_add_u32 s{S_QB}, s{S_QB}, s{S_T0}')
    a(f's_mul_i32 s{S_T1}, s{S_SPLIT}, 31')
    a(f's_cmp_lg_u32 s{S_SPLIT}, 0')
    a(f's_addc_u32 s{S_T1}, s{S_T1}, s{S_T0}')
    a(f's_cmp_lg_u32 s{S_SPLIT}, 0')
    a(f's_cselect_b32 s{S_CNT}, 30, 31')
    if iters: a(f's_mov_b32 s{S_CNT}, {iters}')
    a(f's_lshl_b32 s{S_KOFF}, s{S_T1}, 15')
    a(f's_add_u32 s{S_VOFF}, s{S_KOFF}, {WS_VT}')
    if WS_XA: a(f's_add_u32 s{S_KOFF}, s{S_KOFF}, {WS_XA}')
    a(f's_lshl_b32 s{S_W8K}, s{S_W}, 13')
    a(f'v_add_u32 v{V_DK0}, s{S_W8K}, v{V_L16}')
    a(f'v_add_u32 v{V_DK1}, 4096, v{V_DK0}')
    a(f's_add_u32 s{S_T1}, s{S_W}, s{S_SPLIT}')
    a(f's_and_b32 s{S_T1}, s{S_T1}, 3')
    a(f's_lshl_b32 s{S_T1}, s{S_T1}, 13')
    a(f'v_add_u32 v{V_DV0}, s{S_T1}, v{V_L16}')
    a(f'v_add_u32 v{V_DV1}, 4096, v{V_DV0}')
    if prefetch:
        a(f's_add_u32 s{S_PFOFF}, s{S_PFOFF}, s{S_W}')
        a(f's_and_b32 s{S_T1}, s{S_PFOFF}, 15')
        a(f's_lshl_b32 s{S_T1}, s{S_T1}, 11')
        a(f's_cmp_ge_u32 s{S_PFOFF}, 16')
        a(f's_cselect_b32 s{S_PFOFF}, {WS_VT - WS_XA - TILE}, 0')
        a(f's_add_u32 s{S_T1}, s{S_T1}, s{S_PFOFF}')
        a(f's_add_u32 s{S_T1}, s{S_T1}, {prefetch * TILE}')
        a(f'v_lshlrev_b32 v{V_PF}, 5, v0')
        a(f'v_add_u32 v{V_PF}, s{S_T1}, v{V_PF}')
    a('s_waitcnt lgkmcnt(0)')
    make_srd(a, S_SRD, S_WS, 0, WS_SIZE)
    SRD = f's[{S_SRD}:{S_SRD+3}]'

    def dma_ops(v0, v1, soff, sbase):
        ops = []
        for g in range(2):
            for i in range(4):
                pre = None
                if i == 0:
                    pre = f's_mov_b32 m0, s{sbase}' if g == 0 else f's_add_u32 m0, s{sbase}, 4096'
                ops.append((pre, f'buffer_load_dwordx4 v{v0 if g == 0 else v1}, {SRD}, s{soff} offen offset:{i*1024} {dma_flags} lds'))
        return ops
    def emit_dma_now(*args):
        for pre, op in dma_ops(*args):
            if pre: a(pre); a('s_nop 0')
            a(op)

    a(f's_mov_b32 s{S_KDMA}, s{S_W8K}')
    emit_dma_now(V_DK0, V_DK1, S_KOFF, S_KDMA)
    a(f's_lshl_b32 s{S_T1}, s{S_QB}, 15')
    a(f's_add_u32 s{S_T1}, s{S_T1}, {WS_Q}')
    for f in range(32):
        if f % 4 == 0 and f: a(f's_add_u32 s{S_T1}, s{S_T1}, 4096')
        a(f'buffer_load_dwordx4 {ar(4*f,4)}, v{V_L16}, {SRD}, s{S_T1} offen offset:{(f%4)*1024}')
    a(f's_add_u32 s{S_KOFF}, s{S_KOFF}, {TILE}')
    a(f's_add_u32 s{S_KDMA}, s{S_KDMA}, {TILE}')
    emit_dma_now(V_DK0, V_DK1, S_KOFF, S_KDMA)
    a(f's_add_u32 s{S_KOFF}, s{S_KOFF}, {TILE}')
    a(f's_add_u32 s{S_VDMA}, s{S_W8K}, {2*TILE}')
    emit_dma_now(V_DV0, V_DV1, S_VOFF, S_VDMA)
    a(f's_add_u32 s{S_VOFF}, s{S_VOFF}, {TILE}')
    a(f's_add_u32 s{S_VDMA}, s{S_VDMA}, {TILE}')
    a(f's_mov_b32 s{S_KDMA}, s{S_W8K}')
    a(f's_mov_b32 s{S_VRD}, {2*TILE}')
    a(f'v_mov_b32 v{V_KA}, v{V_L16}')
    a(f'v_add_u32 v{V_VA}, s{S_VRD}, v{V_L16}')
    for i in range(128):
        a(f'v_accvgpr_write_b32 a{128+i}, 0')
        a(f'v_mov_b32 v{128+i}, 0')
    a(f'v_mov_b32 v{V_L0}, 0')
    a(f'v_mov_b32 v{V_L1}, 0')

    nround = -(-64 // NR)
    sizes = [64 // nround + (1 if i < 64 % nround else 0) for i in range(nround)]
    slotmap = [i for sz in sizes for i in range(sz)]
    assert LA + 1 <= min(sizes) and max(sizes) <= NR and V_RING + 4 * NR <= V_PF
    def slot(f): return V_RING + 4 * slotmap[f]
    def rd(f, fs=None):
        fs = f if fs is None else fs
        if f < 32: return f'ds_read_b128 {vr(slot(fs),4)}, v{V_KA} offset:{f*1024}'
        return f'ds_read_b128 {vr(slot(fs),4)}, v{V_VA} offset:{(f-32)*1024}'
    def Sreg(kh, qh): return V_S + (kh * 2 + qh) * 4
    def mfmas(f, fs=None, zero_c=False):
        fs = f if fs is None else fs
        order = (1, 0) if (snake and (f & 1)) else (0, 1)
        out = []
        for qh in order:
            if f < 32:
                s, kh = f >> 1, f & 1
                c = vr(Sreg(kh, qh), 4) if s else ('0' if zero_c else vr(V_NEGM + 4 * qh, 4))
                out.append(f'v_mfma_f32_16x16x32_bf16 {vr(Sreg(kh,qh),4)}, {vr(slot(fs),4)}, {ar((s*2+qh)*4,4)}, {c}')
            else:
                b = f - 32
                out.append(f'v_mfma_f32_16x16x32_bf16 {Oreg(b,qh)}, {vr(slot(fs),4)}, {vr(V_P+4*qh,4)}, {Oreg(b,qh)}')
        return out

    a('s_waitcnt vmcnt(48)')
    a('s_barrier')
    q = LdsQ()
    for f in range(LA):
        a(rd(f)); q.issue(f)
    for f in range(32):
        a(f's_waitcnt vmcnt({16 + 31 - (f | 1)}) lgkmcnt({q.need(f)})')
        for m in mfmas(f, zero_c=True): a(m)
        if f + LA < 32:
            a(rd(f + LA)); q.issue(f + LA)
    a('s_nop 7')
    def max_all():
        ops = [f'v_max3_f32 v{V_MX}, v{V_S}, v{V_S+1}, v{V_S+2}']
        for i in range(6): ops.append(f'v_max3_f32 v{V_MX}, v{V_MX}, v{V_S+3+2*i}, v{V_S+4+2*i}')
        ops.append(f'v_max_f32 v{V_MX}, v{V_MX}, v{V_S+15}')
        return ops
    def rowmax(qh, dst):
        r0, r1 = Sreg(0, qh), Sreg(1, qh)
        a(f'v_max3_f32 v{dst}, v{r0}, v{r0+1}, v{r0+2}')
        a(f'v_max3_f32 v{dst}, v{dst}, v{r0+3}, v{r1}')
        a(f'v_max3_f32 v{dst}, v{dst}, v{r1+1}, v{r1+2}')
        a(f'v_max_f32 v{dst}, v{dst}, v{r1+3}')
        for sw in ('v_permlane16_swap_b32', 'v_permlane32_swap_b32'):
            a(f'v_mov_b32 v{V_T0}, v{dst}')
            a('s_nop 1')
            a(f'{sw} v{V_T0}, v{dst}')
            a('s_nop 1')
            a(f'v_max_f32 v{dst}, v{dst}, v{V_T0}')
    exp_ops = [f'v_exp_f32 v{V_E+i}, v{V_S+i}' for i in range(16)]
    sum_ops = [f'v_add_f32 v{V_L1 if (i >> 2) & 1 else V_L0}, v{V_L1 if (i >> 2) & 1 else V_L0}, v{V_E+i}' for i in range(16)]
    cvt_ops = []
    for qh in range(2):
        for kh in range(2):
            e = V_E + (kh * 2 + qh) * 4
            for i in range(2):
                cvt_ops.append(f'v_cvt_pk_bf16_f32 v{V_P+4*qh+2*kh+i}, v{e+2*i}, v{e+2*i+1}')
    for qh, dst in ((0, V_F0), (1, V_F1)):
        rowmax(qh, dst)
        for kh in range(2):
            for i in range(4): a(f'v_sub_f32 v{Sreg(kh,qh)+i}, v{Sreg(kh,qh)+i}, v{dst}')
        for i in range(4): a(f'v_sub_f32 v{V_NEGM+4*qh+i}, 0, v{dst}')
    for o in exp_ops: a(o)
    if adds_in == 2:
        a('s_nop 0')
        for o in sum_ops: a(o)
    a(f'v_xor_b32 v{V_KA}, 0x8000, v{V_KA}')
    a('s_waitcnt vmcnt(0)')
    a('s_barrier')
    if stamp:
        a('s_memrealtime s[46:47]')
        a('s_memtime s[52:53]')
        a('s_waitcnt lgkmcnt(0)')
    def fsl(f):
        return f
    q = LdsQ()
    for f in range(LA):
        a(rd(f)); q.issue(f)

    fill = [[] for _ in range(128)]
    cap = [CAP - 1 if p % 2 == 0 else CAP for p in range(128)]
    for p in range(128):
        if p % 2 == 1 and ((p + 1) // 2) % wait_every == 0: cap[p] -= 1
    cap[127] -= 3
    def put(pos, ops, cost):
        if isinstance(ops, str): ops = [ops]
        while cap[pos] < cost: pos += 1
        cap[pos] -= cost
        fill[pos] += ops
        return pos
    L_loop, L_r1, L_r1b, L_r2, L_r2b = [f'{name}_{x}' for x in ('loop', 'r1', 'r1b', 'r2', 'r2b')]
    pb = put(2 * bar_pos + 1, [f's_waitcnt vmcnt({1 if prefetch else 0})', 's_barrier'], 2)
    assert pb < 2 * (64 - LA)
    dm = dma_ops(V_DK0, V_DK1, S_KOFF, S_KDMA) + dma_ops(V_DV0, V_DV1, S_VOFF, S_VDMA)
    if no_dma: dm = []
    p = dma_start
    for pre, op in dm:
        if pre: p = put(p, pre, 1) + 1
        p = put(p, op, dma_cost) + dma_gap
    if prefetch:
        p = put(p, f'buffer_load_dword v{V_PFD}, v{V_PF}, {SRD}, s{S_KOFF} offen', dma_cost) + 1
    pdma = p
    assert pdma <= pb
    p = 68
    for o in max_all(): p = put(p, o, 1)
    p = put(p, f'v_cmp_lt_f32 vcc, {hex(THR)}, v{V_MX}', 1) + 1
    p = put(p, [f's_cbranch_vccnz {L_r1}', f'{L_r1b}:'], 1) + 1
    for i, o in enumerate(exp_ops):
        p = put(p, o, 2)
        if adds_in == 2: put(p + 1, sum_ops[i], 1)
    p = 0
    for o in cvt_ops: p = put(p, o, 1)
    if adds_in == 1:
        for o in sum_ops: p = put(p, o, 1)
    assert p < 60
    upd = [[f's_add_u32 s{S_KOFF}, s{S_KOFF}, {TILE}'],
           [f's_add_u32 s{S_VOFF}, s{S_VOFF}, {TILE}'],
           [f's_xor_b32 s{S_KDMA}, s{S_KDMA}, {TILE}'],
           [f's_add_u32 s{S_VDMA}, s{S_VDMA}, {TILE}'],
           [f's_cmp_ge_u32 s{S_VDMA}, {5*TILE}'], [f's_cselect_b32 s{S_T1}, {3*TILE}, 0'],
           [f's_sub_u32 s{S_VDMA}, s{S_VDMA}, s{S_T1}'],
           [f's_add_u32 s{S_VRD}, s{S_VRD}, {TILE}'],
           [f's_cmp_ge_u32 s{S_VRD}, {5*TILE}'], [f's_cselect_b32 s{S_VRD}, {2*TILE}, s{S_VRD}'],
           [f's_sub_u32 s{S_CNT}, s{S_CNT}, 1']]
    p = pdma
    for grp in upd: p = put(p, grp, len(grp))
    put(2 * (32 - LA) + 1, f'v_xor_b32 v{V_KA}, 0x8000, v{V_KA}', 1)
    put(max(p + 1, 2 * (64 - LA) + 1), f'v_add_u32 v{V_VA}, s{S_VRD}, v{V_L16}', 1)
    a('.p2align 6')
    a(f'{L_loop}:')
    for f in range(64):
        if f % wait_every == 0:
            a(f's_waitcnt lgkmcnt({q.need(min(f + wait_every - 1, 63))})')
        mm = mfmas(f)
        a(mm[0])
        nf = (f + LA) % 64
        a(rd(nf)); q.issue(nf)
        for o in fill[2 * f]: a(o)
        a(mm[1])
        for o in fill[2 * f + 1]: a(o)
    a(f's_cbranch_vccnz {L_r2}')
    a(f'{L_r2b}:')
    a(f's_cmp_lg_u32 s{S_CNT}, 0')
    a(f's_cbranch_scc1 {L_loop}')
    if stamp:
        a('s_memrealtime s[48:49]')
        a('s_memtime s[54:55]')
    a('s_waitcnt lgkmcnt(0)')
    q = LdsQ()
    for f in range(32, 32 + LA):
        a(rd(f)); q.issue(f)
    for o in cvt_ops: a(o)
    if adds_in == 1:
        for o in sum_ops: a(o)
    for f in range(32, 64):
        a(f's_waitcnt lgkmcnt({q.need(f)})')
        for m in mfmas(f): a(m)
        if f + LA < 64:
            a(rd(f + LA)); q.issue(f + LA)
    if simple_out:
        a(f's_cmp_eq_u32 s{S_VALID}, 0')
        a(f's_cbranch_scc1 {name}_end')
        for l in (V_L0, V_L1):
            for sw in ('v_permlane16_swap_b32', 'v_permlane32_swap_b32'):
                a(f'v_mov_b32 v{V_T0}, v{l}')
                a('s_nop 1')
                a(f'{sw} v{V_T0}, v{l}')
                a('s_nop 1')
                a(f'v_add_f32 v{l}, v{l}, v{V_T0}')
        a(f'v_mov_b32 v{V_S}, v{V_L0}')
        a(f'v_sub_f32 v{V_S+1}, 0, v{V_NEGM}')
        a(f'v_mov_b32 v{V_S+2}, v{V_L1}')
        a(f'v_sub_f32 v{V_S+3}, 0, v{V_NEGM+4}')
        a(f's_mul_i32 s{S_T0}, s{S_SPLIT}, 250')
        a(f's_add_u32 s{S_T0}, s{S_T0}, s{S_QB}')
        a(f's_lshl_b32 s{S_T1}, s{S_T0}, 10')
        a(f's_add_u32 s{S_T1}, s{S_T1}, {WS_ML}')
        a(f'buffer_store_dwordx4 {vr(V_S,4)}, v{V_L16}, {SRD}, s{S_T1} offen')
        a(f's_lshl_b32 s{S_T1}, s{S_T0}, 15')
        a(f's_add_u32 s{S_T1}, s{S_T1}, {WS_UC}')
        a('s_nop 7')
        for gm in range(16):
            for qh in range(2):
                tb = V_RING + ((gm * 2 + qh) % 4) * 12
                srcs = []
                for b in range(2):
                    beta = 2 * gm + b
                    for r in range(4):
                        if beta < 16: srcs.append(128 + 8 * beta + 4 * qh + r)
                        else:
                            a(f'v_accvgpr_read_b32 v{tb+4*b+r}, a{128+8*(beta-16)+4*qh+r}'); srcs.append(tb + 4 * b + r)
                for r in range(4): a(f'v_cvt_pk_bf16_f32 v{tb+8+r}, v{srcs[2*r]}, v{srcs[2*r+1]}')
                i = gm * 2 + qh
                if i % 4 == 0 and i: a(f's_add_u32 s{S_T1}, s{S_T1}, 4096')
                a(f'buffer_store_dwordx4 {vr(tb+8,4)}, v{V_L16}, {SRD}, s{S_T1} offen offset:{(i%4)*1024}')
    if stamp:
        a('s_waitcnt vmcnt(0)')
        a('s_memrealtime s[50:51]')
        a('s_waitcnt lgkmcnt(0)')
        a(f's_cmp_lg_u32 s{S_W}, 0')
        a(f's_cbranch_scc1 {name}_end')
        a(f's_lshl_b32 s{S_T1}, s2, 6')
        a(f's_add_u32 s{S_T1}, s{S_T1}, {WS_STAMP}')
        for i, sreg in enumerate((44, 46, 48, 50, 52, 54)):
            a(f'v_mov_b32 v{V_S+2*i}, s{sreg}')
            a(f'v_mov_b32 v{V_S+2*i+1}, s{sreg+1}')
        a(f'v_mov_b32 v{V_T0}, 0')
        a('s_mov_b64 exec, 1')
        for i in range(3):
            a(f'buffer_store_dwordx4 {vr(V_S+4*i,4)}, v{V_T0}, {SRD}, s{S_T1} offen offset:{16*i}')
    a(f'{name}_end:')
    a('s_endpgm')
    a(f'{L_r1}:')
    for qh, dst in ((0, V_T1), (1, V_T2)):
        rowmax(qh, dst)
        a(f'v_max_f32 v{dst}, 0, v{dst}')
        fr = V_F1 if qh else V_F0
        a(f'v_sub_f32 v{fr}, 0, v{dst}')
        a(f'v_exp_f32 v{fr}, v{fr}')
        for kh in range(2):
            for i in range(4): a(f'v_sub_f32 v{Sreg(kh,qh)+i}, v{Sreg(kh,qh)+i}, v{dst}')
        for i in range(4): a(f'v_sub_f32 v{V_NEGM+4*qh+i}, v{V_NEGM+4*qh+i}, v{dst}')
        l = V_L1 if qh else V_L0
        a(f'v_mul_f32 v{l}, v{l}, v{fr}')
    a(f's_branch {L_r1b}')
    a(f'{L_r2}:')
    a('s_nop 7')
    for beta in range(32):
        for qh in range(2):
            fr = V_F1 if qh else V_F0
            if beta < 16:
                for r in range(4): a(f'v_mul_f32 v{128+8*beta+4*qh+r}, v{128+8*beta+4*qh+r}, v{fr}')
            else:
                b = 128 + 8 * (beta - 16) + 4 * qh
                for r in range(4): a(f'v_accvgpr_read_b32 v{120+r}, a{b+r}')
                for r in range(4): a(f'v_mul_f32 v{120+r}, v{120+r}, v{fr}')
                for r in range(4): a(f'v_accvgpr_write_b32 a{b+r}, v{120+r}')
    a(f's_branch {L_r2b}')
    kernel_desc(a, name, 512, 64, 256)

if __name__ == '__main__':
    import sys, json
    opts = json.loads(sys.argv[2]) if len(sys.argv) > 2 else {}
    a = Asm()
    a.raw('; @launch kernel=attn_kernel grid=(256,1,1) block=(256,1,1) lds=163840')
    a.raw('.amdgcn_target "amdgcn-amd-amdhsa--gfx950"')
    gen_attn(a, 'attn_kernel', **opts)
    open(sys.argv[1], 'w').write(a.text())
```

```python
from asmlib import *
from layout import *
from attn2 import LdsQ
from k2 import f2h

N_PREP_WG = 224 + 128
PREP_LDS = 51712

def gen_prep(a, name, stamp=False):
    V_L16, V_A, V_TR, V_DT, V_T0, V_T1, V_T2, V_T3, V_AC, V_AC1, V_AW, V_AR, V_BR = range(1, 14)
    V_ACC, V_PK, V_RING, V_AF = 16, 32, 64, 128
    P_X, P_WQ, P_WK, P_WV, P_AO, P_UP, P_DW, P_DN, P_MG, P_OUT, P_DBG, P_WS = [4 + 2 * i for i in range(12)]
    S_SW, S_SA, S_SB, S_SD = 28, 32, 36, 40
    S_W, S_T, S_RQ, S_T0, S_T1, S_T2, S_AO, S_OO, S_ROLE = range(44, 53)
    SW, SA, SB, SD = [f's[{b}:{b+3}]' for b in (S_SW, S_SA, S_SB, S_SD)]
    kernel_begin(a, name)
    a(f's_cmp_ge_u32 s2, {N_PREP_WG}\n s_cbranch_scc1 {name}_end')
    a('s_load_dwordx16 s[4:19], s[0:1], 0')
    a('s_load_dwordx8 s[20:27], s[0:1], 64')
    def st(i, cyc=False):
        if stamp: a(f'{"s_memtime" if cyc else "s_memrealtime"} s[{60+2*i}:{61+2*i}]')
    if stamp:
        for i in range(60, 76): a(f's_mov_b32 s{i}, 0')
    st(0); st(6, True)
    a(f'v_lshrrev_b32 v{V_T0}, 6, v0')
    a(f'v_and_b32 v0, 63, v0')
    a(f'v_readfirstlane_b32 s{S_W}, v{V_T0}')
    a(f'v_lshlrev_b32 v{V_L16}, 4, v0')
    a(f'v_bfe_u32 v{V_T0}, v0, 2, 2')
    a(f'v_and_b32 v{V_T1}, 3, v0')
    a(f'v_lshl_add_u32 v{V_T2}, v{V_T0}, 3, v{V_T1}')
    a(f'v_lshrrev_b32 v{V_T3}, 4, v0')
    a(f'v_lshlrev_b32 v{V_A}, 4, v{V_T3}')
    a(f'v_lshl_add_u32 v{V_A}, v{V_T2}, 10, v{V_A}')
    a(f'v_lshlrev_b32 v{V_TR}, 9, v{V_T3}')
    a(f'v_lshl_add_u32 v{V_TR}, v{V_T0}, 6, v{V_TR}')
    a(f'v_lshl_add_u32 v{V_TR}, v{V_T1}, 4, v{V_TR}')
    a(f's_mul_i32 s{S_T0}, s{S_W}, 4608')
    a(f's_add_u32 s{S_T0}, s{S_T0}, 33280')
    a(f'v_lshlrev_b32 v{V_AR}, 4, v{V_T3}')
    a(f'v_mov_b32 v{V_AC}, 1040')
    a(f'v_mad_u32_u24 v{V_BR}, v{V_T2}, v{V_AC}, v{V_AR}')
    a(f'v_mov_b32 v{V_AC}, 144')
    a(f'v_mad_u32_u24 v{V_AR}, v{V_T2}, v{V_AC}, v{V_AR}')
    a(f'v_add_u32 v{V_AR}, s{S_T0}, v{V_AR}')
    a(f'v_lshrrev_b32 v{V_T0}, 3, v0')
    a(f'v_and_b32 v{V_T1}, 7, v0')
    a(f'v_lshlrev_b32 v{V_T1}, 4, v{V_T1}')
    a(f'v_mad_u32_u24 v{V_AW}, v{V_T0}, v{V_AC}, v{V_T1}')
    a(f'v_add_u32 v{V_AW}, s{S_T0}, v{V_AW}')
    a(f'v_lshl_add_u32 v{V_AC}, v{V_T0}, 10, v{V_T1}')
    a(f'v_add_u32 v{V_AC1}, 8192, v{V_AC}')
    a('s_waitcnt lgkmcnt(0)')
    make_srd(a, S_SW, P_WS, 0, WS_SIZE)
    a(f's_cmp_ge_u32 s2, 224\n s_cbranch_scc1 {name}_ln')
    a(f's_cmp_ge_u32 s2, 192\n s_cbranch_scc1 {name}_tr')
    a(f's_lshr_b32 s{S_ROLE}, s2, 6')
    a(f's_and_b32 s{S_RQ}, s2, 3')
    a(f's_bfe_u32 s{S_T}, s2, 0x40002')
    a(f's_lshl_b32 s{S_AO}, s{S_RQ}, 2')
    a(f's_add_u32 s{S_AO}, s{S_AO}, s{S_W}')
    a(f's_lshl_b32 s{S_OO}, s{S_AO}, 11')
    a(f's_lshl_b32 s{S_T0}, s{S_T}, 15')
    a(f's_add_u32 s{S_OO}, s{S_OO}, s{S_T0}')
    a(f's_lshl_b32 s{S_AO}, s{S_AO}, 15')
    AST = 33280
    def load_A():
        a(f's_add_u32 s{S_T1}, s{S_AO}, 16384')
        for m in range(8):
            for i in range(4):
                a(f'buffer_load_dwordx4 {vr(V_AF+(4*m+i)*4,4)}, v{V_AC1 if i & 1 else V_AC}, {SA}, s{S_T1 if i >= 2 else S_AO} offen offset:{m*128}')
    def fix_A(m, progressive):
        if progressive: a(f's_waitcnt vmcnt({31 - (4*m+3)})')
        for i in range(4):
            a(f'ds_write_b128 v{V_AW}, {vr(V_AF+(4*m+i)*4,4)} offset:{i*8*144}')
        for sl in range(2):
            for b in range(2):
                a(f'ds_read_b128 {vr(V_AF+(4*m+2*sl+b)*4,4)}, v{V_AR} offset:{b*4*144 + sl*64}')
    def stage_tr(stride_log2, colbyte_sreg):
        a(f'v_lshrrev_b32 v{V_T0}, 2, v0')
        a(f'v_and_b32 v{V_T1}, 3, v0')
        a(f'v_lshlrev_b32 v{V_T1}, 4, v{V_T1}')
        a(f'v_lshl_add_u32 v{V_DT}, v{V_T0}, {stride_log2}, v{V_T1}')
        a(f's_lshl_b32 s{S_T1}, s{S_W}, {stride_log2 + 7}')
        a(f's_add_u32 s{S_T1}, s{S_T1}, s{colbyte_sreg}')
        a(f's_lshl_b32 s{S_T2}, s{S_W}, 13')
        for i in range(8):
            a(f's_add_u32 m0, s{S_T2}, {i*1024}')
            if i: a(f's_add_u32 s{S_T1}, s{S_T1}, {16 << stride_log2}')
            else: a('s_nop 0')
            a(f'buffer_load_dwordx4 v{V_DT}, {SB}, s{S_T1} offen lds')
    def rd_tr(f, dst):
        s, ch = f >> 1, f & 1
        return [f'ds_read_b64_tr_b16 {vr(dst+2*jj,2)}, v{V_TR} offset:{s*2048 + jj*256 + ch*8}' for jj in range(2)]
    def rd_lin(f, dst):
        return [f'ds_read_b128 {vr(dst,4)}, v{V_L16} offset:{f*1024}']
    def rd_row(f, dst):
        s, ch = f >> 1, f & 1
        return [f'ds_read_b128 {vr(dst,4)}, v{V_BR} offset:{ch*4*1040 + s*64}']
    def gemm(rd, progressive, fixed=False):
        def bgrp(m):
            for f in range(4 * m, 4 * m + 4):
                for o in rd(f, V_RING + 4 * (f % 8)): a(o)
        if not fixed: fix_A(0, progressive)
        bgrp(0)
        for m in range(8):
            nl = 0
            if m < 7:
                if not fixed: fix_A(m + 1, progressive); nl += 8
                bgrp(m + 1); nl += 4 * len(rd(0, 0))
            a(f's_waitcnt lgkmcnt({min(nl, 15)})')
            for f in range(4 * m, 4 * m + 4):
                s, ch = f >> 1, f & 1
                for b in range(2):
                    d = vr(V_ACC + ch * 8 + b * 4, 4)
                    a(f'v_mfma_f32_16x16x32_bf16 {d}, {vr(V_AF+(2*s+b)*4,4)}, {vr(V_RING+4*(f%8),4)}, {d if s else 0}')
        a('s_nop 7')
    def store_out(base, scale=None, flags=''):
        if scale is not None:
            a(f's_mov_b32 s{S_T1}, {f2h(scale)}')
            for i in range(16): a(f'v_mul_f32 v{V_ACC+i}, s{S_T1}, v{V_ACC+i}')
        for i in range(8): a(f'v_cvt_pk_bf16_f32 v{V_PK+i}, v{V_ACC+2*i}, v{V_ACC+2*i+1}')
        if isinstance(base, int): a(f's_add_u32 s{S_T1}, s{S_OO}, {base}')
        else: a(f's_add_u32 s{S_T1}, s{S_OO}, {base}')
        for ch in range(2):
            a(f'buffer_store_dwordx4 {vr(V_PK+4*ch,4)}, v{V_L16}, {SW}, s{S_T1} offen offset:{ch*1024} {flags}')
    a(f's_cmp_eq_u32 s{S_ROLE}, 1\n s_cbranch_scc1 {name}_m')
    a(f's_cmp_eq_u32 s{S_ROLE}, 0')
    a(f's_cselect_b32 s{S_SA}, s{P_AO}, s{P_DN}')
    a(f's_cselect_b32 s{S_SA+1}, s{P_AO+1}, s{P_DN+1}')
    a(f's_cselect_b32 s{S_T0}, 0, {512*1024}')
    a(f's_mov_b32 s{S_SA+2}, {512*1024}\n s_mov_b32 s{S_SA+3}, 0x20000')
    make_srd(a, S_SB, P_MG, 0, 1024 * 1024)
    a(f's_lshl_b32 s{S_T1}, s{S_T}, 6')
    a(f's_add_u32 s{S_T0}, s{S_T0}, s{S_T1}')
    stage_tr(10, S_T0)
    load_A()
    st(2)
    a('s_waitcnt vmcnt(32)')
    a('s_barrier')
    st(3)
    if stamp: a('s_waitcnt lgkmcnt(0)')
    gemm(rd_tr, True)
    st(4)
    a(f's_cmp_eq_u32 s{S_ROLE}, 0\n s_cbranch_scc1 {name}_t1')
    store_out(WS_WC)
    a(f's_branch {name}_fin')
    a(f'{name}_t1:')
    store_out(WS_T1, flags='sc1')
    make_srd(a, S_SA, P_WV, 0, 512 * 1024)
    make_srd(a, S_SD, P_DBG, 0, 256)
    load_A()
    a('s_waitcnt vmcnt(32)')
    a('s_barrier')
    a(f's_cmp_lg_u32 s{S_W}, 0\n s_cbranch_scc1 {name}_t1f')
    a(f's_lshl_b32 s{S_T1}, s2, 2')
    a(f'v_mov_b32 v{V_T0}, 0\n v_mov_b32 v{V_T1}, 1')
    a('s_mov_b64 exec, 1')
    a(f'buffer_store_dword v{V_T1}, v{V_T0}, {SD}, s{S_T1} offen sc1')
    a('s_mov_b64 exec, -1')
    a(f'{name}_t1f:')
    a('s_waitcnt vmcnt(0)')
    for m in range(8): fix_A(m, False)
    a(f's_cmp_lg_u32 s{S_W}, 0\n s_cbranch_scc1 {name}_t1w')
    a(f'v_lshlrev_b32 v{V_T0}, 2, v0')
    a('s_mov_b64 exec, 15')
    a(f's_lshl_b32 s{S_T1}, s{S_T}, 4')
    a(f'{name}_poll:')
    a(f'buffer_load_dword v{V_T1}, v{V_T0}, {SD}, s{S_T1} offen sc1')
    a('s_waitcnt vmcnt(0)')
    a(f'v_cmp_ne_u32 vcc, 1, v{V_T1}')
    a(f's_cbranch_vccz {name}_polled')
    a('s_sleep 1')
    a(f's_branch {name}_poll')
    a(f'{name}_polled:')
    a('s_mov_b64 exec, -1')
    a(f'{name}_t1w:')
    a('s_barrier')
    st(5)
    a(f's_lshl_b32 s{S_T0}, s{S_T}, 15')
    a(f's_lshl_b32 s{S_T2}, s{S_W}, 13')
    a(f's_add_u32 s{S_T0}, s{S_T0}, s{S_T2}')
    a(f's_add_u32 s{S_T0}, s{S_T0}, {WS_T1}')
    a(f's_add_u32 s{S_T1}, s{S_T0}, 4096')
    for i in range(8):
        a(f'buffer_load_dwordx4 {vr(V_RING+4*i,4)}, v{V_L16}, {SW}, s{S_T1 if i >= 4 else S_T0} offen offset:{(i%4)*1024} sc1')
    a(f'v_add_u32 v{V_T0}, s{S_T2}, v{V_L16}')
    for i in range(8):
        a(f's_waitcnt vmcnt({7-i})')
        a(f'ds_write_b128 v{V_T0}, {vr(V_RING+4*i,4)} offset:{i*1024}')
    a('s_waitcnt lgkmcnt(0)')
    a('s_barrier')
    gemm(rd_lin, False, fixed=True)
    store_out(WS_W + 16 * TILE)
    a(f's_branch {name}_fin')
    a(f'{name}_m:')
    make_srd(a, S_SA, P_WQ, 0, 512 * 1024)
    make_srd(a, S_SB, P_WK, 0, 512 * 1024)
    a(f's_lshl_b32 s{S_T0}, s{S_T}, 15')
    a(f's_lshl_b32 s{S_T1}, s{S_W}, 13')
    a(f's_add_u32 s{S_T0}, s{S_T0}, s{S_T1}')
    a(f's_mul_i32 s{S_T2}, s{S_W}, {8*1040}')
    for i in range(8):
        a(f's_add_u32 m0, s{S_T2}, {i*1040}')
        a(f's_add_u32 s{S_T1}, s{S_T0}, {i*1024}')
        a(f'buffer_load_dwordx4 v{V_L16}, {SB}, s{S_T1} offen lds')
    load_A()
    a('s_waitcnt vmcnt(32)')
    a('s_barrier')
    gemm(rd_row, True)
    store_out(WS_W, scale=512 ** -0.5 * 1.4426950408889634)
    a(f's_branch {name}_fin')
    a(f'{name}_tr:')
    a(f's_sub_u32 s{S_T}, s2, 192')
    make_srd(a, S_SB, P_UP, 0, 1024 * 1024)
    a(f's_lshl_b32 s{S_T0}, s{S_T}, 6')
    stage_tr(11, S_T0)
    for i in range(4): a(f'v_mov_b32 v{V_PK+i}, 0')
    a(f's_lshl_b32 s{S_T1}, s{S_T}, 12')
    a(f's_lshl_b32 s{S_T0}, s{S_W}, 10')
    a(f's_add_u32 s{S_T1}, s{S_T1}, s{S_T0}')
    a(f's_add_u32 s{S_T1}, s{S_T1}, {WS_FLAG}')
    a(f'buffer_store_dwordx4 {vr(V_PK,4)}, v{V_L16}, {SW}, s{S_T1} offen')
    make_srd(a, S_SA, P_DW, 0, 31 * 1024)
    a(f's_and_b32 s{S_T0}, s{S_T}, 3')
    a(f's_lshl_b32 s{S_T0}, s{S_T0}, 1')
    a(f's_and_b32 s{S_T1}, s{S_W}, 1')
    a(f's_add_u32 s{S_T0}, s{S_T0}, s{S_T1}')
    a(f's_lshr_b32 s{S_T1}, s{S_T}, 2')
    a(f's_lshl_b32 s{S_AO}, s{S_T1}, 12')
    a(f's_lshl_b32 s{S_OO}, s{S_T0}, 7')
    a(f's_add_u32 s{S_AO}, s{S_AO}, s{S_OO}')
    a(f'v_lshlrev_b32 v{V_T0}, 1, v0')
    a(f'v_add_u32 v{V_T0}, s{S_AO}, v{V_T0}')
    for i in range(4):
        a(f'buffer_load_ushort v{V_ACC+i}, v{V_T0}, {SA}, 0 offen offset:{i*1024}')
    a(f's_lshl_b32 s{S_AO}, s{S_T1}, 13')
    a(f's_lshl_b32 s{S_OO}, s{S_T0}, 10')
    a(f's_add_u32 s{S_AO}, s{S_AO}, s{S_OO}')
    a(f's_add_u32 s{S_AO}, s{S_AO}, {WS_DWT}')
    a('s_waitcnt vmcnt(0)')
    for i in range(4): a(f'v_lshlrev_b32 v{V_ACC+i}, 16, v{V_ACC+i}')
    a(f'buffer_store_dwordx4 {vr(V_ACC,4)}, v{V_L16}, {SW}, s{S_AO} offen')
    a('s_barrier')
    a(f's_lshl_b32 s{S_T2}, s{S_W}, 13')
    a(f'v_add_u32 v{V_TR}, s{S_T2}, v{V_TR}')
    for i in range(8):
        for o in rd_tr(i, V_RING + 4 * i): a(o)
    a(f's_lshl_b32 s{S_T0}, s{S_T}, 15')
    a(f's_add_u32 s{S_T0}, s{S_T0}, s{S_T2}')
    a(f's_add_u32 s{S_T0}, s{S_T0}, {WS_W + 32 * TILE}')
    a(f's_add_u32 s{S_T1}, s{S_T0}, 4096')
    for i in range(8):
        a(f's_waitcnt lgkmcnt({14 - 2*i})')
        a(f'buffer_store_dwordx4 {vr(V_RING+4*i,4)}, v{V_L16}, {SW}, s{S_T1 if i >= 4 else S_T0} offen offset:{(i%4)*1024}')
    a(f's_branch {name}_fin')
    a(f'{name}_ln:')
    RAW, F = 192, 64
    a(f's_sub_u32 s{S_T}, s2, 224')
    a(f's_and_b32 s{S_T0}, s{S_T}, 7')
    a(f's_lshr_b32 s{S_T1}, s{S_T}, 3')
    a(f's_lshl_b32 s{S_T1}, s{S_T1}, 2')
    a(f's_add_u32 s{S_T1}, s{S_T1}, s{S_W}')
    a(f's_and_b32 s{S_T2}, s{S_T0}, 3')
    a(f's_lshl_b32 s{S_T2}, s{S_T2}, 6')
    a(f's_add_u32 s{S_T1}, s{S_T1}, s{S_T2}')
    a(f's_cmp_ge_u32 s{S_T1}, 250\n s_cbranch_scc1 {name}_fin')
    a(f's_lshr_b32 s{S_T0}, s{S_T0}, 2')
    a(f's_mul_i32 s{S_T0}, s{S_T0}, 250')
    a(f's_add_u32 s{S_T1}, s{S_T1}, s{S_T0}')
    make_srd(a, S_SA, P_X, 0, 8192000)
    a(f'v_and_b32 v{V_T0}, 15, v0')
    a(f'v_lshlrev_b32 v{V_T1}, 4, v{V_T3}')
    a(f'v_lshl_add_u32 v{V_T0}, v{V_T0}, 10, v{V_T1}')
    a(f's_lshl_b32 s{S_T0}, s{S_T1}, 14')
    for s in range(16):
        a(f'buffer_load_dwordx4 {vr(RAW+4*s,4)}, v{V_T0}, {SA}, s{S_T0} offen offset:{s*64}')
    a(f's_lshr_b32 s{S_T0}, s{S_T1}, 1')
    a(f's_lshl_b32 s{S_T0}, s{S_T0}, 15')
    a(f's_and_b32 s{S_T1}, s{S_T1}, 1')
    a(f's_lshl_b32 s{S_T1}, s{S_T1}, 10')
    a(f's_add_u32 s{S_T0}, s{S_T0}, s{S_T1}')
    if WS_XA: a(f's_add_u32 s{S_T0}, s{S_T0}, {WS_XA}')
    st(2)
    SUM = 16
    for i in range(4): a(f'v_mov_b32 v{SUM+i}, 0')
    for s in range(16):
        a(f's_waitcnt vmcnt({15-s})')
        for i in range(4):
            r = RAW + 4 * s + i; f = F + 8 * s + 2 * i
            a(f'v_lshlrev_b32 v{f}, 16, v{r}')
            a(f'v_and_b32 v{f+1}, 0xffff0000, v{r}')
        for i in range(4):
            f = F + 8 * s + 2 * i; acc = SUM + 2 * (i & 1)
            a(f'v_pk_add_f32 {vr(acc,2)}, {vr(acc,2)}, {vr(f,2)}')
    def reduce4(dst):
        a(f'v_pk_add_f32 {vr(SUM,2)}, {vr(SUM,2)}, {vr(SUM+2,2)}')
        a(f'v_add_f32 v{dst}, v{SUM}, v{SUM+1}')
        for sw in ('v_permlane16_swap_b32', 'v_permlane32_swap_b32'):
            a(f'v_mov_b32 v{V_T1}, v{dst}')
            a('s_nop 1')
            a(f'{sw} v{V_T1}, v{dst}')
            a('s_nop 1')
            a(f'v_add_f32 v{dst}, v{dst}, v{V_T1}')
    st(3)
    MEAN, RSTD = 20, 22
    reduce4(MEAN)
    a(f'v_mul_f32 v{MEAN}, {f2h(-1.0/512)}, v{MEAN}')
    for i in range(4): a(f'v_mov_b32 v{SUM+i}, 0')
    for k in range(64):
        f = F + 2 * k
        a(f'v_pk_add_f32 {vr(f,2)}, {vr(f,2)}, {vr(MEAN,2)} op_sel_hi:[1,0]')
        if k:
            g = f - 2; acc = SUM + 2 * (k & 1)
            a(f'v_pk_fma_f32 {vr(acc,2)}, {vr(g,2)}, {vr(g,2)}, {vr(acc,2)}')
    g = F + 126
    a(f'v_pk_fma_f32 {vr(SUM,2)}, {vr(g,2)}, {vr(g,2)}, {vr(SUM,2)}')
    reduce4(RSTD)
    a(f'v_mov_b32 v{V_T1}, {f2h(1e-5)}')
    a(f'v_fmac_f32 v{V_T1}, {f2h(1.0/512)}, v{RSTD}')
    a(f'v_rsq_f32 v{RSTD}, v{V_T1}')
    a('s_nop 0')
    for s in range(16):
        for i in range(4):
            f = F + 8 * s + 2 * i
            a(f'v_pk_mul_f32 {vr(f,2)}, {vr(f,2)}, {vr(RSTD,2)} op_sel_hi:[1,0]')
        for i in range(4):
            f = F + 8 * s + 2 * i
            a(f'v_cvt_pk_bf16_f32 v{RAW+4*s+i}, v{f}, v{f+1}')
        if s % 2 == 0 and s: a(f's_add_u32 s{S_T0}, s{S_T0}, 4096')
        a(f'buffer_store_dwordx4 {vr(RAW+4*s,4)}, v{V_L16}, {SW}, s{S_T0} offen offset:{(s%2)*2048}')
    st(4)
    a(f'{name}_fin:')
    if stamp:
        a('s_waitcnt vmcnt(0)')
        st(1); st(7, True)
        a('s_waitcnt lgkmcnt(0)')
        a(f's_cmp_lg_u32 s{S_W}, 0')
        a(f's_cbranch_scc1 {name}_end')
        a(f's_lshl_b32 s{S_T1}, s2, 6')
        a(f's_add_u32 s{S_T1}, s{S_T1}, {WS_STAMP + 131072}')
        for i, sreg in enumerate(range(60, 76, 2)):
            a(f'v_mov_b32 v{16+2*i}, s{sreg}')
            a(f'v_mov_b32 v{16+2*i+1}, s{sreg+1}')
        a(f'v_mov_b32 v{V_T0}, 0')
        a('s_mov_b64 exec, 1')
        for i in range(4): a(f'buffer_store_dwordx4 {vr(16+4*i,4)}, v{V_T0}, {SW}, s{S_T1} offen offset:{16*i}')
    a(f'{name}_end:')
    a('s_endpgm')
    kernel_desc(a, name, 256, 80, 256)
```

```python
from asmlib import *
from layout import *
from attn2 import LdsQ
import struct
def f2h(x): return hex(struct.unpack('<I', struct.pack('<f', x))[0])

class VmQ:
    def __init__(self): self.n = 0; self.last = {}
    def issue(self, tag=None):
        self.n += 1
        if tag is not None: self.last[tag] = self.n
    def need(self, tag): return self.n - self.last[tag]

def gen_rg(a, name, stamp=False, LA=7, wait_every=2, bar_pos=20, per_gap=2, XPRE=16, W1POS=24, AHEAD=3):
    V_L16, V_RA, V_ST, V_DMA, V_C0, V_C1, V_S0, V_S1, V_Q0, V_Q1, V_T0, V_T1 = range(1, 13)
    ACC = {'u': 16, 'g': 32, 'q': 48, 'v': 48}
    V_RING, V_Z, V_PK = 64, 96, 104
    S_WS, S_SRD = 4, 8
    S_W, S_BLK, S_CG, S_T0, S_T1, S_WOFF, S_DB, S_OUT, S_XO = range(24, 33)
    NR = 8
    kernel_begin(a, name)
    a(f's_cmp_ge_u32 s2, 256\n s_cbranch_scc1 {name}_end')
    a(f's_load_dwordx2 s[{S_WS}:{S_WS+1}], s[0:1], 88')
    if stamp: a('s_memrealtime s[44:45]')
    a(f'v_lshrrev_b32 v{V_T0}, 6, v0')
    a(f'v_and_b32 v0, 63, v0')
    a(f'v_readfirstlane_b32 s{S_W}, v{V_T0}')
    a(f'v_lshlrev_b32 v{V_L16}, 4, v0')
    a(f's_and_b32 s{S_T0}, s2, 7')
    a(f's_lshr_b32 s{S_T1}, s2, 3')
    a(f's_and_b32 s{S_CG}, s{S_T1}, 7')
    a(f's_lshr_b32 s{S_T1}, s{S_T1}, 3')
    a(f's_and_b32 s{S_BLK}, s{S_T0}, 3')
    a(f's_lshl_b32 s{S_BLK}, s{S_BLK}, 2')
    a(f's_add_u32 s{S_BLK}, s{S_BLK}, s{S_T1}')
    a(f's_lshl_b32 s{S_BLK}, s{S_BLK}, 3')
    a(f's_add_u32 s{S_BLK}, s{S_BLK}, s{S_W}')
    a(f's_cmp_lt_u32 s{S_BLK}, 125')
    a(f's_cselect_b32 s{S_T1}, 0, 0x80000000')
    a(f'v_or_b32 v{V_ST}, s{S_T1}, v{V_L16}')
    a(f's_min_u32 s{S_BLK}, s{S_BLK}, 124')
    a(f's_lshr_b32 s{S_T0}, s{S_T0}, 2')
    a(f's_mul_i32 s{S_T0}, s{S_T0}, 125')
    a(f's_add_u32 s{S_BLK}, s{S_BLK}, s{S_T0}')
    a(f's_lshl_b32 s{S_DB}, s{S_W}, 12')
    a(f'v_add_u32 v{V_DMA}, s{S_DB}, v{V_L16}')
    a(f's_lshl_b32 s{S_WOFF}, s{S_CG}, 16')
    a(f's_add_u32 s{S_WOFF}, s{S_WOFF}, {WS_W}')
    a(f's_lshl_b32 s{S_OUT}, s{S_BLK}, 15')
    a(f's_lshl_b32 s{S_T0}, s{S_CG}, 12')
    a(f's_add_u32 s{S_OUT}, s{S_OUT}, s{S_T0}')
    a('s_waitcnt lgkmcnt(0)')
    make_srd(a, S_SRD, S_WS, 0, WS_SIZE)
    SRD = f's[{S_SRD}:{S_SRD+3}]'
    seq = ['u', 'q', 'g', 'v', 'u', 'q', 'g', 'v']
    wbase = {'q': 0, 'v': 16, 'u': 32, 'g': 48}
    obase = {'q': WS_Q, 'v': WS_VT, 'u': WS_U, 'g': WS_G}
    vm = VmQ()
    def dma(n):
        ty, half = seq[n], n // 4
        ops = [f's_add_u32 s{S_T1}, s{S_WOFF}, {(wbase[ty] + half) * TILE}', f's_add_u32 m0, s{S_DB}, {(n % 5) * TILE}', 's_nop 0']
        for i in range(4):
            ops.append(f'buffer_load_dwordx4 v{V_DMA}, {SRD}, s{S_T1} offen offset:{i*1024} lds')
        return ops
    def emit(o, tag=None):
        a(o)
        if o.startswith('buffer_'): vm.issue(tag)
    for o in dma(0): emit(o, ('W', 0))
    a(f's_lshl_b32 s{S_T0}, s{S_BLK}, 15')
    if WS_XA: a(f's_add_u32 s{S_T0}, s{S_T0}, {WS_XA}')
    a(f's_mov_b32 s{S_XO}, s{S_T0}')
    def xload(f):
        ops = []
        if f % 4 == 0 and f: ops.append((f's_add_u32 s{S_XO}, s{S_XO}, 4096', None))
        ops.append((f'buffer_load_dwordx4 {ar(4*f,4)}, v{V_L16}, {SRD}, s{S_XO} offen offset:{(f%4)*1024}', ('X', f)))
        return ops
    for f in range(XPRE):
        for o, t in xload(f): emit(o, t)
    extra0 = []
    for f in range(XPRE, 32):
        extra0 += xload(f)
        if f == W1POS: extra0 += [(o, ('W', 1)) for o in dma(1)]
    extra0 += [(o, ('W', 2)) for o in dma(2)]
    c0 = -2.0 * 0.7978845608028654 * 1.4426950408889634
    a(f'v_mov_b32 v{V_C0}, {f2h(c0)}')
    a(f'v_mov_b32 v{V_C1}, {f2h(c0 * 0.044715)}')
    for r in (V_S0, V_S1, V_Q0, V_Q1): a(f'v_mov_b32 v{r}, 0')
    a(f'v_add_u32 v{V_RA}, {2*TILE}, v{V_L16}')
    a(f'v_add_u32 v{V_T1}, {4*TILE}, v{V_L16}')
    def rd(G):
        n, f = G // 32, G % 32
        b = n % 5
        reg = (V_L16, V_L16, V_RA, V_RA, V_T1)[b]
        off = (b & 1) * TILE + f * 1024 if b < 4 else f * 1024
        return f'ds_read_b128 {vr(V_RING + 4*(G % NR), 4)}, v{reg} offset:{off}'
    def mfmas(G):
        n, f = G // 32, G % 32
        ty = seq[n]; s, ch = f >> 1, f & 1
        w = vr(V_RING + 4 * (G % NR), 4)
        out = []
        for rh in range(2):
            x = ar((s * 2 + rh) * 4, 4)
            if ty == 'v':
                d = vr(ACC[ty] + ch * 8 + rh * 4, 4); A, B = x, w
            else:
                d = vr(ACC[ty] + rh * 8 + ch * 4, 4); A, B = w, x
            out.append(f'v_mfma_f32_16x16x32_bf16 {d}, {A}, {B}, {d if s else 0}')
        return out
    pkrot = [0]
    def epilogue(n):
        ty, half = seq[n], n // 4
        acc = ACC[ty]; ops = []
        for o in range(2):
            base = acc + 8 * o
            if ty in 'ug':
                E = range(8)
                for e in E: ops.append((f'v_mul_f32 v{V_Z+e}, v{base+e}, v{base+e}', 1))
                for e in E: ops.append((f'v_fma_f32 v{V_Z+e}, v{V_Z+e}, v{V_C1}, v{V_C0}', 1))
                for e in E: ops.append((f'v_mul_f32 v{V_Z+e}, v{V_Z+e}, v{base+e}', 1))
                for e in E: ops.append((f'v_exp_f32 v{V_Z+e}, v{V_Z+e}', 2))
                for e in E: ops.append((f'v_add_f32 v{V_Z+e}, 1.0, v{V_Z+e}', 1))
                for e in E: ops.append((f'v_rcp_f32 v{V_Z+e}, v{V_Z+e}', 2))
                for e in E: ops.append((f'v_mul_f32 v{base+e}, v{base+e}, v{V_Z+e}', 1))
                if ty == 'g':
                    sreg, qreg = (V_S0, V_Q0) if o == 0 else (V_S1, V_Q1)
                    for e in E:
                        ops.append((f'v_add_f32 v{sreg}, v{sreg}, v{base+e}', 1))
                        ops.append((f'v_fmac_f32 v{qreg}, v{base+e}, v{base+e}', 1))
            pk = V_PK + 4 * (pkrot[0] % 6); pkrot[0] += 1
            for i in range(4): ops.append((f'v_cvt_pk_bf16_f32 v{pk+i}, v{base+2*i}, v{base+2*i+1}', 1))
            if o == 0: ops.append((f's_add_u32 s{S_T0}, s{S_OUT}, {obase[ty]}', 0))
            ops.append((f'buffer_store_dwordx4 {vr(pk,4)}, v{V_ST}, {SRD}, s{S_T0} offen offset:{half*2048 + o*1024}', 1))
        return ops
    a(f's_waitcnt vmcnt({vm.need(("W", 0))})')
    a('s_barrier')
    if stamp:
        a('s_memrealtime s[46:47]')
        a('s_memtime s[52:53]')
        a('s_waitcnt lgkmcnt(0)')
    q = LdsQ()
    for G in range(LA):
        a(rd(G)); q.issue(G)
    pend = []
    deadline = {}
    extra = extra0
    for G in range(256):
        n, f = G // 32, G % 32
        if f == 0:
            while any(ACC[seq[t]] == ACC[seq[n]] for (_, _, _, t) in pend):
                _, op, _, _ = pend.pop(0); emit(op)
        w = []
        if n == 0 and f % 2 == 0: w.append(f'vmcnt({vm.need(("X", f | 1))})')
        if G % wait_every == 0: w.append(f'lgkmcnt({q.need(min(G + wait_every - 1, 255))})')
        if w: a('s_waitcnt ' + ' '.join(w))
        mm = mfmas(G)
        for h in range(2):
            a(mm[h])
            if h == 0 and G + LA < 256:
                a(rd(G + LA)); q.issue(G + LA)
            budget = per_gap
            while pend and pend[0][0] <= 2 * G + h and budget >= max(pend[0][2], 1) - (1 if budget == per_gap else 0) and budget > 0:
                _, op, c, _ = pend.pop(0); emit(op); budget -= c
            if extra and (h == 1 or n == 0):
                o = extra.pop(0); emit(o[0], o[1])
                while extra and not o[0].startswith('buffer_'):
                    o = extra.pop(0); emit(o[0], o[1])
        if f == bar_pos and n < 7:
            a(f's_waitcnt vmcnt({vm.need(("W", n + 1))})')
            a('s_barrier')
            if n + AHEAD < 8:
                assert AHEAD <= 4
                extra = extra + [(o, ('W', n + AHEAD)) for o in dma(n + AHEAD)]
        if f == 31:
            ep = [(2 * (G + 1) + 6, op, c, n) for op, c in epilogue(n)]
            pend += ep
    if stamp:
        a('s_memrealtime s[48:49]')
        a('s_memtime s[54:55]')
    nrem = sum(1 for p in pend if p[3] != 7)
    if nrem < 8: a('s_nop 7')
    for _, op, _, _ in pend: emit(op)
    for r in (V_S0, V_Q0, V_S1, V_Q1):
        for sw in ('v_permlane16_swap_b32', 'v_permlane32_swap_b32'):
            a(f'v_mov_b32 v{V_T0}, v{r}')
            a('s_nop 1')
            a(f'{sw} v{V_T0}, v{r}')
            a('s_nop 1')
            a(f'v_add_f32 v{r}, v{r}, v{V_T0}')
    a('v_cmp_gt_u32 vcc, 16, v0')
    a(f'v_and_b32 v{V_T0}, 0x80000000, v{V_ST}')
    a(f'v_lshl_or_b32 v{V_T0}, v0, 6, v{V_T0}')
    a(f'v_cndmask_b32 v{V_Z}, v{V_S1}, v{V_S0}, vcc')
    a(f'v_cndmask_b32 v{V_Z+1}, v{V_Q1}, v{V_Q0}, vcc')
    a(f's_lshl_b32 s{S_T0}, s{S_BLK}, 11')
    a(f's_lshl_b32 s{S_T1}, s{S_CG}, 3')
    a(f's_add_u32 s{S_T0}, s{S_T0}, s{S_T1}')
    a(f's_add_u32 s{S_T0}, s{S_T0}, {WS_ST}')
    a('s_mov_b64 exec, 0xffffffff')
    a(f'buffer_store_dwordx2 {vr(V_Z,2)}, v{V_T0}, {SRD}, s{S_T0} offen')
    if stamp:
        a('s_waitcnt vmcnt(0)')
        a('s_memrealtime s[50:51]')
        a('s_waitcnt lgkmcnt(0)')
        a(f's_cmp_lg_u32 s{S_W}, 0')
        a(f's_cbranch_scc1 {name}_end')
        a(f's_lshl_b32 s{S_T1}, s2, 6')
        a(f's_add_u32 s{S_T1}, s{S_T1}, {WS_STAMP + 65536}')
        for i, sreg in enumerate((44, 46, 48, 50, 52, 54)):
            a(f'v_mov_b32 v{16+2*i}, s{sreg}')
            a(f'v_mov_b32 v{16+2*i+1}, s{sreg+1}')
        a(f'v_mov_b32 v{V_T0}, 0')
        a('s_mov_b64 exec, 1')
        for i in range(3):
            a(f'buffer_store_dwordx4 {vr(16+4*i,4)}, v{V_T0}, {SRD}, s{S_T1} offen offset:{16*i}')
    a(f'{name}_end:')
    a('s_endpgm')
    kernel_desc(a, name, 256, 64, 128)

if __name__ == '__main__':
    import sys, json
    opts = json.loads(sys.argv[2]) if len(sys.argv) > 2 else {}
    a = Asm()
    a.raw('; @launch kernel=rg_kernel grid=(256,1,1) block=(512,1,1) lds=163840')
    a.raw('.amdgcn_target "amdgcn-amd-amdhsa--gfx950"')
    gen_rg(a, 'rg_kernel', **opts)
    open(sys.argv[1], 'w').write(a.text())
```

```python
from asmlib import *
from layout import *
from attn2 import LdsQ
from k2 import f2h, VmQ

V_DK0, V_DK1, V_DV0, V_DV1, V_KA, V_VA, V_L16, V_L0, V_L1, V_MX, V_F0, V_F1, V_T0, V_T1, V_T2 = range(1, 16)
V_S, V_E, V_P, V_NEGM, V_RING = 16, 32, 48, 56, 64
V_PF, V_PFD, V_XO, V_FL = 116, 117, 118, 119
S_X, S_OUTP, S_WS, S_SRD, S_SRX, S_SRO = 4, 6, 40, 8, 12, 16
(S_KOFF, S_VOFF, S_KDMA, S_VDMA, S_VRD, S_CNT, S_W, S_QB, S_SPLIT, S_T0, S_T1, S_VALID, S_GRP, S_W8K, S_PFOFF, S_T2) = range(20, 36)
S_TILE, S_B125, S_T3, S_T4 = 36, 37, 38, 39
S_WB0, S_WB1, S_WB2, S_WB3, S_UCO, S_WCO, S_FLO, S_PO = range(56, 64)

def Obase(beta, qh): return 128 + 8 * (beta % 16) + 4 * qh
def Oreg(beta, qh): return vr(Obase(beta, qh), 4) if beta < 16 else ar(Obase(beta, qh), 4)

def gen_attn(a, name, dma_gap=3, dma_cost=2, CAP=2, bar_pos=50, NR=13, LA=11, wait_every=4, THR=0x41800000,
             stamp=False, snake=True, prefetch=2, flag_pos=150):
    SRD, SRX, SRO = [f's[{b}:{b+3}]' for b in (S_SRD, S_SRX, S_SRO)]
    def st(i, cyc=False):
        if stamp: a(f'{"s_memtime" if cyc else "s_memrealtime"} s[{64+2*i}:{65+2*i}]')
    kernel_begin(a, name)
    a(f's_cmp_ge_u32 s2, 256\n s_cbranch_scc1 {name}_end')
    a(f's_load_dwordx2 s[{S_WS}:{S_WS+1}], s[0:1], 88')
    a(f's_load_dwordx2 s[{S_X}:{S_X+1}], s[0:1], 0')
    a(f's_load_dwordx2 s[{S_OUTP}:{S_OUTP+1}], s[0:1], 72')
    st(0)
    a(f'v_lshrrev_b32 v{V_T0}, 6, v0')
    a(f'v_and_b32 v0, 63, v0')
    a(f'v_readfirstlane_b32 s{S_W}, v{V_T0}')
    a(f'v_lshlrev_b32 v{V_L16}, 4, v0')
    a(f's_and_b32 s{S_T0}, s2, 7')
    a(f's_lshr_b32 s{S_T1}, s2, 3')
    a(f's_and_b32 s{S_SPLIT}, s{S_T1}, 3')
    a(f's_lshr_b32 s{S_T1}, s{S_T1}, 2')
    a(f's_lshl_b32 s{S_PFOFF}, s{S_T1}, 2')
    a(f's_and_b32 s{S_TILE}, s{S_T0}, 3')
    a(f's_lshl_b32 s{S_TILE}, s{S_TILE}, 3')
    a(f's_add_u32 s{S_TILE}, s{S_TILE}, s{S_T1}')
    a(f's_lshr_b32 s{S_T0}, s{S_T0}, 2')
    a(f's_lshl_b32 s{S_GRP}, s{S_T0}, 5')
    a(f's_add_u32 s{S_GRP}, s{S_GRP}, s{S_TILE}')
    a(f's_mul_i32 s{S_B125}, s{S_T0}, 125')
    a(f's_lshl_b32 s{S_QB}, s{S_TILE}, 2')
    a(f's_add_u32 s{S_QB}, s{S_QB}, s{S_W}')
    a(f's_cmp_lt_u32 s{S_QB}, 125')
    a(f's_cselect_b32 s{S_VALID}, 0, 0x80000000')
    a(f's_min_u32 s{S_QB}, s{S_QB}, 124')
    a(f's_add_u32 s{S_QB}, s{S_QB}, s{S_B125}')
    a(f's_mul_i32 s{S_T1}, s{S_SPLIT}, 31')
    a(f's_cmp_lg_u32 s{S_SPLIT}, 0')
    a(f's_addc_u32 s{S_T1}, s{S_T1}, s{S_B125}')
    a(f's_cmp_lg_u32 s{S_SPLIT}, 0')
    a(f's_cselect_b32 s{S_CNT}, 29, 30')
    a(f's_lshl_b32 s{S_KOFF}, s{S_T1}, 15')
    a(f's_add_u32 s{S_VOFF}, s{S_KOFF}, {WS_VT}')
    if WS_XA: a(f's_add_u32 s{S_KOFF}, s{S_KOFF}, {WS_XA}')
    a(f's_lshl_b32 s{S_W8K}, s{S_W}, 13')
    a(f'v_add_u32 v{V_DK0}, s{S_W8K}, v{V_L16}')
    a(f'v_add_u32 v{V_DK1}, 4096, v{V_DK0}')
    a(f's_add_u32 s{S_T1}, s{S_W}, s{S_SPLIT}')
    a(f's_and_b32 s{S_T1}, s{S_T1}, 3')
    a(f's_lshl_b32 s{S_T1}, s{S_T1}, 13')
    a(f'v_add_u32 v{V_DV0}, s{S_T1}, v{V_L16}')
    a(f'v_add_u32 v{V_DV1}, 4096, v{V_DV0}')
    a('s_waitcnt lgkmcnt(0)')
    make_srd(a, S_SRD, S_WS, 0, WS_SIZE)
    make_srd(a, S_SRX, S_X, 0, 8192000)
    make_srd(a, S_SRO, S_OUTP, 0, 8192000)
    vm = VmQ()
    def emit(o, tag=None):
        a(o)
        if o.startswith('buffer_'): vm.issue(tag)
    def dma_ops(v0, v1, soff, sbase):
        ops = []
        for g in range(2):
            for i in range(4):
                pre = None
                if i == 0:
                    pre = f's_mov_b32 m0, s{sbase}' if g == 0 else f's_add_u32 m0, s{sbase}, 4096'
                ops.append((pre, f'buffer_load_dwordx4 v{v0 if g == 0 else v1}, {SRD}, s{soff} offen offset:{i*1024} lds'))
        return ops
    def emit_dma_now(tag, *args):
        for pre, op in dma_ops(*args):
            if pre: a(pre); a('s_nop 0')
            emit(op, tag)
    def xreduce(regs, op, tmp):
        for sw in ('v_permlane16_swap_b32', 'v_permlane32_swap_b32'):
            for i, r in enumerate(regs): a(f'v_mov_b32 v{tmp+i}, v{r}')
            if len(regs) < 3: a('s_nop 1')
            else: a('s_nop 0')
            for i, r in enumerate(regs): a(f'{sw} v{tmp+i}, v{r}')
            a('s_nop 1')
            for i, r in enumerate(regs): a(f'{op} v{r}, v{r}, v{tmp+i}')

    GN = 3 * TILE; CV = GN + 40960
    CW, CG, CA = 16, 48, 172
    RG, RS, TMP = 48, 96, 112
    SC = 236
    S_VF = [S_WB0, S_WB1, S_WB2]; S_HB = [S_WB3, S_UCO, S_WCO]
    a(f's_lshl_b32 s{S_T3}, s{S_SPLIT}, 13')
    for rnd in range(3):
        if rnd < 2: a(f's_add_u32 s{S_HB[rnd]}, s{S_W}, {4*rnd}')
        else:
            a(f's_cmp_lt_u32 s{S_W}, 2')
            a(f's_cselect_b32 s{S_T0}, 8, 4')
            a(f's_add_u32 s{S_HB[rnd]}, s{S_W}, s{S_T0}')
        a(f's_lshl_b32 s{S_T0}, s{S_TILE}, 3')
        a(f's_add_u32 s{S_T0}, s{S_T0}, s{S_HB[rnd]}')
        a(f's_sub_u32 s{S_T0}, s{S_T0}, 1')
        a(f's_cmp_lt_u32 s{S_T0}, 250')
        a(f's_cselect_b32 s{S_VF[rnd]}, 1.0, 0')
        a(f's_cselect_b32 s{S_T0}, s{S_T0}, 0')
        a(f's_lshl1_add_u32 s{S_T0}, s{S_B125}, s{S_T0}')
        a(f's_lshl_b32 s{S_T1}, s{S_T0}, 10')
        a(f's_add_u32 s{S_T1}, s{S_T1}, {WS_ST}')
        if rnd == 0:
            a(f'v_and_b32 v{V_T0}, 15, v0')
            a(f'v_lshrrev_b32 v{V_T1}, 4, v0')
            a(f'v_lshlrev_b32 v{V_T2}, 4, v{V_T1}')
            a(f'v_lshl_add_u32 v{V_MX}, v{V_T0}, 6, v{V_T2}')
            a(f'v_lshl_add_u32 v{V_XO}, v{V_T0}, 10, v{V_T2}')
        emit(f'buffer_load_dwordx4 {vr(RS+4*rnd,4)}, v{V_MX}, {SRD}, s{S_T1} offen', ('st', rnd))
        a(f's_lshr_b32 s{S_T1}, s{S_T0}, 1')
        a(f's_lshl_b32 s{S_T1}, s{S_T1}, 15')
        a(f's_and_b32 s{S_T0}, s{S_T0}, 1')
        a(f's_lshl_b32 s{S_T0}, s{S_T0}, 10')
        a(f's_add_u32 s{S_T1}, s{S_T1}, s{S_T0}')
        a(f's_add_u32 s{S_T1}, s{S_T1}, s{S_T3}')
        a(f's_add_u32 s{S_T1}, s{S_T1}, {WS_G}')
        a(f's_add_u32 s{S_T0}, s{S_T1}, 4096')
        for kk in range(4):
            emit(f'buffer_load_dwordx4 {vr(RG+16*rnd+4*kk,4)}, v{V_L16}, {SRD}, s{S_T0 if kk >= 2 else S_T1} offen offset:{(kk&1)*2048}', ('g', rnd))
    a(f's_and_b32 s{S_T4}, s{S_W}, 1')
    a(f's_lshl_b32 s{S_T0}, s{S_SPLIT}, 11')
    a(f's_lshl_b32 s{S_T1}, s{S_T4}, 10')
    a(f's_add_u32 s{S_T0}, s{S_T0}, s{S_T1}')
    a(f's_add_u32 s{S_T0}, s{S_T0}, {WS_DWT}')
    for i in range(8):
        if i: a(f's_add_u32 s{S_T0}, s{S_T0}, 8192')
        emit(f'buffer_load_dwordx4 {vr(CW+4*i,4)}, v{V_L16}, {SRD}, s{S_T0} offen', 'dw')
    a(f's_lshl_b32 s{S_T1}, s{S_T4}, 12')
    a(f's_add_u32 s{S_T3}, s{S_T3}, s{S_T1}')
    a(f's_and_b32 s{S_T2}, s{S_W}, 2')
    for hf in range(2):
        a(f's_lshl_b32 s{S_T0}, s{S_TILE}, 2')
        a(f's_add_u32 s{S_T0}, s{S_T0}, s{S_T2}')
        if hf: a(f's_add_u32 s{S_T0}, s{S_T0}, 1')
        a(f's_min_u32 s{S_T0}, s{S_T0}, 124')
        a(f's_add_u32 s{S_T0}, s{S_T0}, s{S_B125}')
        a(f's_lshl_b32 s{S_T0}, s{S_T0}, 15')
        a(f's_add_u32 s{S_T0}, s{S_T0}, s{S_T3}')
        a(f's_add_u32 s{S_T0}, s{S_T0}, {WS_U}')
        for i in range(4):
            emit(f'buffer_load_dwordx4 {ar(128+16*hf+4*i,4)}, v{V_L16}, {SRD}, s{S_T0} offen offset:{i*1024}', 'u')
    a(f's_lshl_b32 s{S_PO}, s{S_GRP}, 2')
    a(f's_add_u32 s{S_PO}, s{S_PO}, s{S_T2}')
    a(f's_lshl_b32 s{S_PO}, s{S_PO}, 15')
    a(f's_add_u32 s{S_PO}, s{S_PO}, s{S_T3}')
    a(f's_add_u32 s{S_PO}, s{S_PO}, {WS_UC}')
    a(f's_mov_b32 s{S_KDMA}, s{S_W8K}')
    emit_dma_now('K0', V_DK0, V_DK1, S_KOFF, S_KDMA)
    a(f's_waitcnt vmcnt({vm.need(("st", 2))})')
    for r in range(3):
        a(f'v_add_f32 v{RS+4*r}, v{RS+4*r}, v{RS+4*r+2}')
        a(f'v_add_f32 v{RS+4*r+1}, v{RS+4*r+1}, v{RS+4*r+3}')
    xreduce([RS + 4 * r + i for r in range(3) for i in range(2)], 'v_add_f32', TMP)
    for r in range(3):
        a(f'v_mul_f32 v{RS+4*r}, {f2h(1/512)}, v{RS+4*r}')
        a(f'v_mul_f32 v{RS+4*r+2}, v{RS+4*r}, v{RS+4*r}')
        a(f'v_mul_f32 v{RS+4*r+1}, {f2h(1/512)}, v{RS+4*r+1}')
        a(f'v_sub_f32 v{RS+4*r+1}, v{RS+4*r+1}, v{RS+4*r+2}')
        a(f'v_max_f32 v{RS+4*r+1}, 0, v{RS+4*r+1}')
        a(f'v_add_f32 v{RS+4*r+1}, {f2h(1e-5)}, v{RS+4*r+1}')
        a(f'v_rsq_f32 v{RS+4*r+1}, v{RS+4*r+1}')
    a('s_nop 0')
    for r in range(3):
        a(f'v_mul_f32 v{SC+2*r}, s{S_VF[r]}, v{RS+4*r+1}')
        a(f'v_mul_f32 v{SC+2*r+1}, v{SC+2*r}, v{RS+4*r}')
        a(f'v_sub_f32 v{SC+2*r+1}, 0, v{SC+2*r+1}')
    for r in range(3):
        a(f's_lshl_b32 s{S_T0}, s{S_HB[r]}, 12')
        a(f's_add_u32 s{S_T0}, s{S_T0}, {GN}')
        a(f'v_add_u32 v{V_T0}, s{S_T0}, v{V_L16}')
        if r == 2: a(f's_waitcnt vmcnt({vm.need(("g", 2))})')
        for kk in range(4):
            b = RG + 16 * r + 4 * kk
            for i in range(4):
                a(f'v_lshlrev_b32 v{TMP+2*i}, 16, v{b+i}')
                a(f'v_and_b32 v{TMP+2*i+1}, 0xffff0000, v{b+i}')
            for i in range(4):
                a(f'v_pk_fma_f32 {vr(TMP+2*i,2)}, {vr(TMP+2*i,2)}, {vr(SC+2*r,2)}, {vr(SC+2*r,2)} op_sel:[0,0,1] op_sel_hi:[1,0,1]')
            for i in range(4):
                a(f'v_cvt_pk_bf16_f32 v{b+i}, v{TMP+2*i}, v{TMP+2*i+1}')
            a(f'ds_write_b128 v{V_T0}, {vr(b,4)} offset:{kk*1024}')
    a(f's_lshl_b32 s{S_T1}, s{S_QB}, 15')
    a(f's_add_u32 s{S_T1}, s{S_T1}, {WS_Q}')
    for f in range(32):
        if f % 4 == 0 and f: a(f's_add_u32 s{S_T1}, s{S_T1}, 4096')
        emit(f'buffer_load_dwordx4 {ar(4*f,4)}, v{V_L16}, {SRD}, s{S_T1} offen offset:{(f%4)*1024}', ('Q', f))
    a(f's_lshl_b32 s{S_T0}, s{S_T2}, 13')
    a(f's_lshl_b32 s{S_T1}, s{S_T4}, 11')
    a(f's_add_u32 s{S_T0}, s{S_T0}, s{S_T1}')
    a(f's_add_u32 s{S_T0}, s{S_T0}, {GN}')
    a(f'v_lshrrev_b32 v{V_T0}, 4, v0')
    a(f'v_lshlrev_b32 v{V_T0}, 9, v{V_T0}')
    a(f'v_bfe_u32 v{V_T1}, v0, 1, 1')
    a(f'v_lshl_add_u32 v{V_T0}, v{V_T1}, 8, v{V_T0}')
    a(f'v_bfe_u32 v{V_T1}, v0, 2, 2')
    a(f'v_lshl_add_u32 v{V_T0}, v{V_T1}, 4, v{V_T0}')
    a(f'v_and_b32 v{V_T2}, 1, v0')
    a(f'v_lshl_add_u32 v{V_T0}, v{V_T2}, 3, v{V_T0}')
    a(f'v_add_u32 v{V_T0}, s{S_T0}, v{V_T0}')
    a('s_waitcnt lgkmcnt(0)')
    a('s_barrier')
    for n in range(24):
        a(f'ds_read_b64_tr_b16 {vr(CA+2*n,2)}, v{V_T0} offset:{(n>>2)*4096 + (n&3)*64}')
    a(f's_add_u32 s{S_KOFF}, s{S_KOFF}, {TILE}')
    a(f's_add_u32 s{S_KDMA}, s{S_KDMA}, {TILE}')
    a(f's_mul_i32 s{S_T0}, s{S_W}, 5120')
    a(f's_add_u32 s{S_T0}, s{S_T0}, {CV}')
    a(f'v_mul_u32_u24 v{V_F0}, 80, v0')
    a(f'v_add_u32 v{V_F0}, s{S_T0}, v{V_F0}')
    a(f'v_lshrrev_b32 v{V_T2}, 4, v0')
    a(f'v_lshl_add_u32 v{V_T2}, v{V_T2}, 3, v{V_T1}')
    a(f'v_mul_u32_u24 v{V_T2}, 80, v{V_T2}')
    a(f'v_and_b32 v{V_T1}, 3, v0')
    a(f'v_lshl_add_u32 v{V_F1}, v{V_T1}, 3, v{V_T2}')
    a(f'v_add_u32 v{V_F1}, s{S_T0}, v{V_F1}')
    def Gp(tau): return CG + 2 * (tau - 1)
    for n in range(24):
        if n % 4 == 0: a(f's_waitcnt lgkmcnt({min(15, 20 - n)})')
        for e in range(4):
            tau = 4 * n + e
            src = CA + 2 * n + (e >> 1)
            ins = (lambda d: f'v_and_b32 v{d}, 0xffff0000, v{src}') if e & 1 else (lambda d: f'v_lshlrev_b32 v{d}, 16, v{src}')
            if 1 <= tau <= 62: a(ins(Gp(tau)))
            if 33 <= tau <= 94: a(ins(Gp(tau - 32) + 1))
    a(f's_waitcnt vmcnt({vm.need("dw")})')
    later = []
    for pre, op in dma_ops(V_DK0, V_DK1, S_KOFF, S_KDMA): later += ([(pre, None)] if pre else []) + [(op, 'K1')]
    later += [(f's_add_u32 s{S_KOFF}, s{S_KOFF}, {TILE}', None), (f's_add_u32 s{S_VDMA}, s{S_W8K}, {2*TILE}', None)]
    for pre, op in dma_ops(V_DV0, V_DV1, S_VOFF, S_VDMA): later += ([(pre, None)] if pre else []) + [(op, 'V0')]
    cnt = 0
    for i in range(31):
        wsel = i & 1; wp = vr(CW + (i & ~1), 2)
        for t in range(32):
            if i == 0:
                a(f'v_pk_mul_f32 {vr(CA+2*t,2)}, {vr(Gp(t+1),2)}, {wp} op_sel:[0,{wsel}] op_sel_hi:[1,{wsel}]')
            else:
                a(f'v_pk_fma_f32 {vr(CA+2*t,2)}, {vr(Gp(t+i+1),2)}, {wp}, {vr(CA+2*t,2)} op_sel:[0,{wsel},0] op_sel_hi:[1,{wsel},1]')
            cnt += 1
            if i >= 8 and cnt % 8 == 0 and later:
                o, tg = later.pop(0); emit(o, tg)
    assert not later
    a(f's_add_u32 s{S_VOFF}, s{S_VOFF}, {TILE}')
    a(f's_add_u32 s{S_VDMA}, s{S_VDMA}, {TILE}')
    a(f's_mov_b32 s{S_KDMA}, s{S_W8K}')
    a(f's_mov_b32 s{S_VRD}, {2*TILE}')
    PK, TRD = 48, 80
    for hf in range(2):
        for t in range(0, 32, 2):
            a(f'v_cvt_pk_bf16_f32 v{PK+16*hf+t//2}, v{CA+2*t+hf}, v{CA+2*t+2+hf}')
        for i in range(4):
            a(f'ds_write_b128 v{V_F0}, {vr(PK+16*hf+4*i,4)} offset:{16*i}')
        for kk in range(2):
            for th in range(2):
                for jj in range(2):
                    a(f'ds_read_b64_tr_b16 {vr(TRD+16*hf+(kk*2+th)*4+2*jj,2)}, v{V_F1} offset:{kk*2560 + jj*320 + th*32}')
    a(f's_waitcnt vmcnt({vm.need("u")})')
    UT = 128
    for hf in range(2):
        a(f's_waitcnt lgkmcnt({12 if hf == 0 else 0})')
        if hf: a(f's_add_u32 s{S_PO}, s{S_PO}, {TILE}')
        for fr in range(4):
            c = TRD + 16 * hf + 4 * fr
            ub = UT + 20 * (fr & 1)
            for i in range(4): a(f'v_accvgpr_read_b32 v{ub+16+i}, a{128+16*hf+4*fr+i}')
            for i in range(4):
                a(f'v_lshlrev_b32 v{ub+2*i}, 16, v{c+i}')
                a(f'v_and_b32 v{ub+2*i+1}, 0xffff0000, v{c+i}')
            for i in range(4):
                a(f'v_lshlrev_b32 v{ub+8+2*i}, 16, v{ub+16+i}')
                a(f'v_and_b32 v{ub+8+2*i+1}, 0xffff0000, v{ub+16+i}')
            for i in range(4): a(f'v_pk_mul_f32 {vr(ub+2*i,2)}, {vr(ub+2*i,2)}, {vr(ub+8+2*i,2)}')
            for i in range(4): a(f'v_cvt_pk_bf16_f32 v{c+i}, v{ub+2*i}, v{ub+2*i+1}')
            emit(f'buffer_store_dwordx4 {vr(c,4)}, v{V_L16}, {SRD}, s{S_PO} offen offset:{fr*1024} sc1', 'uc')
    st(1)
    if prefetch:
        a(f's_add_u32 s{S_PFOFF}, s{S_PFOFF}, s{S_W}')
        a(f's_and_b32 s{S_T1}, s{S_PFOFF}, 15')
        a(f's_lshl_b32 s{S_T1}, s{S_T1}, 11')
        a(f's_cmp_ge_u32 s{S_PFOFF}, 16')
        a(f's_cselect_b32 s{S_PFOFF}, {WS_VT - WS_XA - TILE}, 0')
        a(f's_add_u32 s{S_T1}, s{S_T1}, s{S_PFOFF}')
        a(f's_add_u32 s{S_T1}, s{S_T1}, {prefetch * TILE}')
        a(f'v_lshlrev_b32 v{V_PF}, 5, v0')
        a(f'v_add_u32 v{V_PF}, s{S_T1}, v{V_PF}')
    a(f'v_and_b32 v{V_T0}, 15, v0')
    a(f'v_lshrrev_b32 v{V_T1}, 4, v0')
    a(f'v_lshlrev_b32 v{V_T2}, 4, v{V_T1}')
    a(f'v_lshl_add_u32 v{V_XO}, v{V_T0}, 10, v{V_T2}')
    a(f'v_mov_b32 v{V_KA}, v{V_L16}')
    a(f'v_add_u32 v{V_VA}, s{S_VRD}, v{V_L16}')
    a(f'v_mov_b32 v{V_L0}, 0')
    a(f'v_mov_b32 v{V_L1}, 0')
    nround = -(-64 // NR)
    sizes = [64 // nround + (1 if i < 64 % nround else 0) for i in range(nround)]
    slotmap = [i for sz in sizes for i in range(sz)]
    assert LA + 1 <= min(sizes) and max(sizes) <= NR and V_RING + 4 * NR <= V_PF
    def slot(f): return V_RING + 4 * slotmap[f % 64]
    def rd(f):
        if f < 32: return f'ds_read_b128 {vr(slot(f),4)}, v{V_KA} offset:{f*1024}'
        return f'ds_read_b128 {vr(slot(f),4)}, v{V_VA} offset:{(f-32)*1024}'
    def Sreg(kh, qh): return V_S + (kh * 2 + qh) * 4
    def mfmas(f, zero_c=False):
        order = (1, 0) if (snake and (f & 1)) else (0, 1)
        out = []
        for qh in order:
            if f < 32:
                s, kh = f >> 1, f & 1
                c = vr(Sreg(kh, qh), 4) if s else ('0' if zero_c else vr(V_NEGM + 4 * qh, 4))
                out.append(f'v_mfma_f32_16x16x32_bf16 {vr(Sreg(kh,qh),4)}, {vr(slot(f),4)}, {ar((s*2+qh)*4,4)}, {c}')
            else:
                b = f - 32
                out.append(f'v_mfma_f32_16x16x32_bf16 {Oreg(b,qh)}, {vr(slot(f),4)}, {vr(V_P+4*qh,4)}, {Oreg(b,qh)}')
        return out
    a(f's_waitcnt vmcnt({vm.need(("Q", 31))})')
    a('s_barrier')
    q = LdsQ()
    zero = [f'v_mov_b32 v{128+i}, 0' for i in range(128)] + [f'v_accvgpr_write_b32 a{128+i}, 0' for i in range(128)]
    for f in range(LA):
        a(rd(f)); q.issue(f)
    for f in range(32):
        a(f's_waitcnt lgkmcnt({q.need(f)})')
        for m in mfmas(f, zero_c=True):
            a(m)
            for _ in range(2): a(zero.pop(0))
        if f + LA < 32:
            a(rd(f + LA)); q.issue(f + LA)
    for _ in range(10): a(zero.pop(0))
    def max_all():
        ops = [f'v_max3_f32 v{V_MX}, v{V_S}, v{V_S+1}, v{V_S+2}']
        for i in range(6): ops.append(f'v_max3_f32 v{V_MX}, v{V_MX}, v{V_S+3+2*i}, v{V_S+4+2*i}')
        ops.append(f'v_max_f32 v{V_MX}, v{V_MX}, v{V_S+15}')
        return ops
    def rowmax2(d0, d1, tmp):
        for qh, dst in ((0, d0), (1, d1)):
            r0, r1 = Sreg(0, qh), Sreg(1, qh)
            a(f'v_max3_f32 v{dst}, v{r0}, v{r0+1}, v{r0+2}')
            a(f'v_max3_f32 v{dst}, v{dst}, v{r0+3}, v{r1}')
            a(f'v_max3_f32 v{dst}, v{dst}, v{r1+1}, v{r1+2}')
            a(f'v_max_f32 v{dst}, v{dst}, v{r1+3}')
        xreduce([d0, d1], 'v_max_f32', tmp)
    exp_ops = [f'v_exp_f32 v{V_E+i}, v{V_S+i}' for i in range(16)]
    sum_ops = [f'v_add_f32 v{V_L1 if (i >> 2) & 1 else V_L0}, v{V_L1 if (i >> 2) & 1 else V_L0}, v{V_E+i}' for i in range(16)]
    cvt_ops = []
    for qh in range(2):
        for kh in range(2):
            e = V_E + (kh * 2 + qh) * 4
            for i in range(2):
                cvt_ops.append(f'v_cvt_pk_bf16_f32 v{V_P+4*qh+2*kh+i}, v{e+2*i}, v{e+2*i+1}')
    rowmax2(V_F0, V_F1, 120)
    for qh, dst in ((0, V_F0), (1, V_F1)):
        for kh in range(2):
            for i in range(4): a(f'v_sub_f32 v{Sreg(kh,qh)+i}, v{Sreg(kh,qh)+i}, v{dst}')
        for i in range(4): a(f'v_sub_f32 v{V_NEGM+4*qh+i}, 0, v{dst}')
    for o in exp_ops: a(o)
    for o in zero: a(o)
    a(f'v_xor_b32 v{V_KA}, 0x8000, v{V_KA}')
    a(f's_lshl_b32 s{S_FLO}, s{S_GRP}, 9')
    a(f's_add_u32 s{S_FLO}, s{S_FLO}, {WS_FLAG}')
    a(f'v_and_b32 v{V_FL}, 3, v0')
    a(f'v_lshlrev_b32 v{V_FL}, 7, v{V_FL}')
    a('s_waitcnt vmcnt(0)')
    a('s_barrier')
    def flag_store(off):
        lab = a.label(name + '_fs')
        a(f's_cmp_lg_u32 s{S_W}, 0')
        a(f's_cbranch_scc1 {lab}')
        a(f's_lshl_b32 s{S_T3}, s{S_SPLIT}, 7')
        a(f's_add_u32 s{S_T3}, s{S_T3}, s{S_FLO}')
        a(f'v_mov_b32 v{V_T0}, 0\n v_mov_b32 v{V_T1}, 1')
        a('s_mov_b64 exec, 1')
        a(f'buffer_store_dword v{V_T1}, v{V_T0}, {SRD}, s{S_T3} offen offset:{off} sc1')
        a('s_mov_b64 exec, -1')
        a(f'{lab}:')
    flag_store(0)
    st(2); st(8, True)
    if stamp: a('s_waitcnt lgkmcnt(0)')
    q = LdsQ()
    for f in range(LA):
        a(rd(f)); q.issue(f)

    L_loop = f'{name}_loop'
    rare = []
    def body(last):
        tag = 'L' if last else 'M'
        L_r1, L_r1b, L_r2, L_r2b = [f'{name}_{x}{tag}' for x in ('r1', 'r1b', 'r2', 'r2b')]
        rare.append((L_r1, L_r1b, L_r2, L_r2b))
        fill = [[] for _ in range(128)]
        cap = [CAP - 1 if p % 2 == 0 else CAP for p in range(128)]
        for p in range(128):
            if p % 2 == 1 and ((p + 1) // 2) % wait_every == 0: cap[p] -= 1
        cap[127] -= 3
        def put(pos, ops, cost):
            if isinstance(ops, str): ops = [ops]
            while cap[pos] < cost: pos += 1
            cap[pos] -= cost
            fill[pos] += ops
            return pos
        if not last:
            pb = put(2 * bar_pos + 1, [f's_waitcnt vmcnt({1 if prefetch else 0})', 's_barrier'], 2)
            assert pb < 2 * (64 - LA)
        dm = dma_ops(V_DK0, V_DK1, S_WCO if last else S_KOFF, S_KDMA) + dma_ops(V_DV0, V_DV1, S_VOFF, S_VDMA)
        p = 0
        if last:
            p = put(p, f'buffer_load_dword v{V_PFD}, v{V_FL}, {SRD}, s{S_FLO} offen sc1', dma_cost) + 1
        for pre, op in dm:
            if pre: p = put(p, pre, 1) + 1
            p = put(p, op, dma_cost) + dma_gap
        if prefetch and not last:
            p = put(p, f'buffer_load_dword v{V_PFD}, v{V_PF}, {SRD}, s{S_KOFF} offen', dma_cost) + 1
        pdma = p
        if last:
            lab = f'{name}_cfok'
            p = put(max(64, pdma - dma_gap + 1), ['s_waitcnt vmcnt(16)', f'v_cmp_ne_u32 s[{S_T3}:{S_T3+1}], 1, v{V_PFD}'], 2) + 2
            p = put(p, [f's_cmp_eq_u64 s[{S_T3}:{S_T3+1}], 0', f's_cbranch_scc0 {name}_cfslow', f'{lab}:'], 2) + 1
            pu = p
        else:
            assert pdma <= pb
        p = 68
        for o in max_all(): p = put(p, o, 1)
        p = put(p, f'v_cmp_lt_f32 vcc, {hex(THR)}, v{V_MX}', 1) + 1
        p = put(p, [f's_cbranch_vccnz {L_r1}', f'{L_r1b}:'], 1) + 1
        for i, o in enumerate(exp_ops): p = put(p, o, 2)
        p = 0
        for o in cvt_ops: p = put(p, o, 1)
        for o in sum_ops: p = put(p, o, 1)
        assert p < 60
        upd = [f's_add_u32 s{S_KOFF}, s{S_KOFF}, {TILE}',
               f's_add_u32 s{S_VOFF}, s{S_VOFF}, {TILE}',
               f's_xor_b32 s{S_KDMA}, s{S_KDMA}, {TILE}',
               f's_add_u32 s{S_VDMA}, s{S_VDMA}, {TILE}',
               f's_cmp_ge_u32 s{S_VDMA}, {5*TILE}', f's_cselect_b32 s{S_T1}, {3*TILE}, 0',
               f's_sub_u32 s{S_VDMA}, s{S_VDMA}, s{S_T1}',
               f's_add_u32 s{S_VRD}, s{S_VRD}, {TILE}',
               f's_cmp_ge_u32 s{S_VRD}, {5*TILE}', f's_cselect_b32 s{S_VRD}, {2*TILE}, s{S_VRD}',
               f's_sub_u32 s{S_CNT}, s{S_CNT}, 1']
        if not last:
            p = pdma
            for o in upd: p = put(p, o, 1)
            put(2 * (32 - LA) + 1, f'v_xor_b32 v{V_KA}, 0x8000, v{V_KA}', 1)
            put(max(p + 1, 2 * (64 - LA) + 1), f'v_add_u32 v{V_VA}, s{S_VRD}, v{V_L16}', 1)
        else:
            p = pu
            for f in range(32):
                if f % 4 == 0 and f: fill[p].append(f's_add_u32 s{S_UCO}, s{S_UCO}, 4096')
                fill[p].append(f'buffer_load_dwordx4 {ar(4*f,4)}, v{V_L16}, {SRD}, s{S_UCO} offen offset:{(f%4)*1024} sc1')
                p += 1 if p % 2 else 2
                if p > 126: p = 126
        for f in range(64):
            if f % wait_every == 0:
                a(f's_waitcnt lgkmcnt({q.need(min(f + wait_every - 1, 63))})')
            mm = mfmas(f)
            a(mm[0])
            nf = f + LA
            if nf < 64 or not last:
                a(rd(nf % 64)); q.issue(nf % 64)
            for o in fill[2 * f]: a(o)
            a(mm[1])
            for o in fill[2 * f + 1]: a(o)
        a(f's_cbranch_vccnz {L_r2}')
        a(f'{L_r2b}:')
    a(f's_lshl_b32 s{S_WCO}, s{S_SPLIT}, 17')
    a(f's_add_u32 s{S_WCO}, s{S_WCO}, {WS_WC}')
    a(f's_lshl_b32 s{S_UCO}, s{S_GRP}, 2')
    a(f's_add_u32 s{S_UCO}, s{S_UCO}, s{S_W}')
    a(f's_lshl_b32 s{S_UCO}, s{S_UCO}, 15')
    a(f's_add_u32 s{S_UCO}, s{S_UCO}, {WS_UC}')
    a('.p2align 6')
    a(f'{L_loop}:')
    body(False)
    a(f's_cmp_lg_u32 s{S_CNT}, 0')
    a(f's_cbranch_scc1 {L_loop}')
    st(3); st(9, True)
    if stamp: a('s_waitcnt lgkmcnt(0)')
    body(True)
    vm = VmQ()
    for f in range(32): vm.issue(('uc', f))
    a(f's_sub_u32 s{S_WB0}, s{S_KDMA}, s{S_W8K}')
    a(f's_xor_b32 s{S_WB1}, s{S_WB0}, {TILE}')
    a(f's_mov_b32 s{S_WB2}, s{S_VRD}')
    a(f's_sub_u32 s{S_T0}, s{S_VDMA}, s{S_W8K}')
    a(f's_add_u32 s{S_WB3}, s{S_WB2}, s{S_T0}')
    a(f's_sub_u32 s{S_WB3}, {9*TILE}, s{S_WB3}')
    a(f'v_add_u32 v{V_VA}, s{S_T0}, v{V_L16}')
    a('s_waitcnt vmcnt(32) lgkmcnt(0)')
    a('s_barrier')
    border = list(range(8, 32)) + list(range(8))
    YB = 192
    stream = [('pv', b) for b in border] + [('yc', T, f) for T in range(4) for f in range(32)]
    NS = len(stream)
    WA = [V_KA, V_DV0, V_DV1, V_PF]
    def sslot(i): return V_RING + 4 * (i % NR)
    def srd_(i):
        it = stream[i]
        if it[0] == 'pv': return f'ds_read_b128 {vr(sslot(i),4)}, v{V_VA} offset:{it[1]*1024}'
        return f'ds_read_b128 {vr(sslot(i),4)}, v{WA[it[1]]} offset:{it[2]*1024}'
    def smf(i):
        it = stream[i]; out = []
        for qh in range(2):
            if it[0] == 'pv':
                out.append(f'v_mfma_f32_16x16x32_bf16 {Oreg(it[1],qh)}, {vr(sslot(i),4)}, {vr(V_P+4*qh,4)}, {Oreg(it[1],qh)}')
            else:
                T, f = it[1], it[2]; s, ch = f >> 1, f & 1
                d = vr(YB + 8 * (2 * T + ch) + 4 * qh, 4)
                out.append(f'v_mfma_f32_16x16x32_bf16 {d}, {vr(sslot(i),4)}, {ar((s*2+qh)*4,4)}, {d if s else 0}')
        return out
    q = LdsQ()
    for i in range(LA):
        a(srd_(i)); q.issue(i)
    for o in cvt_ops: a(o)
    for o in sum_ops: a(o)
    for i, sb in enumerate((S_WB0, S_WB1, S_WB2, S_WB3)):
        a(f'v_add_u32 v{WA[i]}, s{sb}, v{V_L16}')
    xreduce([V_L0, V_L1], 'v_add_f32', 124)
    a(f'v_mov_b32 v120, v{V_L0}')
    a(f'v_sub_f32 v121, 0, v{V_NEGM}')
    a(f'v_mov_b32 v122, v{V_L1}')
    a(f'v_sub_f32 v123, 0, v{V_NEGM+4}')
    a(f's_lshl_b32 s{S_T0}, s{S_GRP}, 2')
    a(f's_add_u32 s{S_T1}, s{S_T0}, s{S_SPLIT}')
    a(f's_lshl_b32 s{S_T1}, s{S_T1}, 2')
    a(f's_add_u32 s{S_T1}, s{S_T1}, s{S_W}')
    a(f's_lshl_b32 s{S_T1}, s{S_T1}, 10')
    a(f's_add_u32 s{S_T1}, s{S_T1}, {WS_ML}')
    emit(f'buffer_store_dwordx4 v[120:123], v{V_L16}, {SRD}, s{S_T1} offen sc1', 'ml')
    pend = []
    dq = []
    for T in range(1, 4):
        dq.append((f's_add_u32 s{S_WCO}, s{S_WCO}, {TILE}', None))
        dq.append((f's_add_u32 s{S_T2}, s{(S_WB0, S_WB1, S_WB2, S_WB3)[T]}, s{S_W8K}', None))
        for pre, op in dma_ops(V_DK0, V_DK1, S_WCO, S_T2):
            if pre: dq.append((pre, None)); dq.append(('s_nop 0', None))
            dq.append((op, ('wc', T)))
    rot = 0
    for qd in range(1, 4):
        hdr = [f's_add_u32 s{S_PO}, s{S_SPLIT}, {qd}', f's_and_b32 s{S_PO}, s{S_PO}, 3', f's_add_u32 s{S_PO}, s{S_PO}, s{S_T0}',
               f's_mul_i32 s{S_PO}, s{S_PO}, {3*32768}', f's_add_u32 s{S_PO}, s{S_PO}, s{S_W8K}', f's_add_u32 s{S_PO}, s{S_PO}, {WS_PART + (qd-1)*32768}']
        for gm in range(4):
            for qh in range(2):
                b0 = 8 * qd + 2 * gm
                ready = 2 * (border.index(b0 + 1) + 1) + 6
                idx = gm * 2 + qh
                if idx == 0:
                    for h in hdr: pend.append((ready, h, 1, None))
                if idx == 4: pend.append((ready, f's_add_u32 s{S_PO}, s{S_PO}, 4096', 1, None))
                tb = V_S + 12 * (rot % 2); pk = 40 + 4 * (rot % 2); rot += 1
                srcs = []
                for b in range(2):
                    for r in range(4):
                        o = Obase(b0 + b, qh) + r
                        if qd == 1: srcs.append(o)
                        else:
                            pend.append((ready, f'v_accvgpr_read_b32 v{tb+4*b+r}, a{o}', 1, None)); srcs.append(tb + 4 * b + r)
                for r in range(4): pend.append((ready, f'v_cvt_pk_bf16_f32 v{pk+r}, v{srcs[2*r]}, v{srcs[2*r+1]}', 1, None))
                pend.append((ready, f'buffer_store_dwordx4 {vr(pk,4)}, v{V_L16}, {SRD}, s{S_PO} offen offset:{(idx%4)*1024} sc1', 2, 'part'))
    n_q1 = max(i for i, p in enumerate(pend) if 'v_cvt_pk' in p[1] and int(p[1].split('v')[-1]) >= 192) + 1
    xl = [(0, f's_lshl_b32 s{S_T4}, s{S_QB}, 15', 1, None), (0, f's_lshl_b32 s{S_T1}, s{S_SPLIT}, 8', 1, None),
          (0, f's_add_u32 s{S_T4}, s{S_T4}, s{S_T1}', 1, None), (0, f's_add_u32 s{S_T1}, s{S_T4}, 16384', 1, None), (0, 's_nop 1', 1, None)]
    for gm in range(4):
        for qh in range(2):
            xl.append((0, f'buffer_load_dwordx4 {vr(V_S+(gm*2+qh)*4,4)}, v{V_XO}, {SRX}, s{S_T1 if qh else S_T4} offen offset:{gm*64}', 2, 'x'))
    pend += xl
    done_ct = 0
    flagged = False
    for i in range(NS):
        it = stream[i]
        w = []
        if it[0] == 'yc' and it[1] == 0 and it[2] == 0:
            while done_ct < n_q1:
                _, op, _, tg = pend.pop(0); emit(op, tg); done_ct += 1
        if it[0] == 'yc' and it[1] == 0 and it[2] % 2 == 0: w.append(f'vmcnt({min(63, vm.need(("uc", it[2] | 1)))})')
        if i % 2 == 0: w.append(f'lgkmcnt({q.need(min(i + 1, NS - 1))})')
        if w: a('s_waitcnt ' + ' '.join(w))
        mm = smf(i)
        for h in range(2):
            a(mm[h])
            budget = 2
            if h == 0 and i + LA < NS:
                nx = stream[i + LA]
                if nx[0] == 'yc' and nx[2] == 0 and nx[1] == 1:
                    assert not dq
                    a(f's_waitcnt vmcnt({min(63, vm.need(("wc", 3)))})')
                    a('s_barrier')
                a(srd_(i + LA)); q.issue(i + LA); budget = 1
            if dq and h == 1:
                o = dq.pop(0); emit(*o)
                while dq and not o[0].startswith('buffer_'):
                    o = dq.pop(0); emit(*o)
                budget = 0
            while pend and pend[0][0] <= 2 * i + h and budget > 0:
                _, op, c, tg = pend.pop(0); emit(op, tg); budget -= c; done_ct += 1
            if 2 * i + h >= flag_pos and not flagged and not any(p[3] == 'part' for p in pend) and h == 1:
                if not hasattr(vm, 'lastpart'): vm.lastpart = 2 * i + h
                if 2 * i + h >= vm.lastpart + 60:
                    a(f's_waitcnt vmcnt({vm.need("part")})')
                    a('s_barrier')
                    flag_store(4)
                    flagged = True
                    st(4)
    assert flagged and not pend
    st(5)
    a('s_waitcnt vmcnt(0)')
    a('s_nop 7')
    for gm in range(4):
        for qh in range(2):
            xb = V_S + (gm * 2 + qh) * 4
            for i in range(4):
                a(f'v_lshlrev_b32 v{64+2*i}, 16, v{xb+i}')
                a(f'v_and_b32 v{64+2*i+1}, 0xffff0000, v{xb+i}')
            for i in range(4):
                y = YB + 8 * (2 * gm + (i >> 1)) + 4 * qh + 2 * (i & 1)
                a(f'v_pk_add_f32 {vr(y,2)}, {vr(y,2)}, {vr(64+2*i,2)}')
    a(f'{name}_poll:')
    a(f'buffer_load_dword v{V_PFD}, v{V_FL}, {SRD}, s{S_FLO} offen offset:4 sc1')
    a('s_waitcnt vmcnt(0)')
    a(f'v_cmp_ne_u32 vcc, 1, v{V_PFD}')
    a(f's_cbranch_vccz {name}_polled')
    a('s_sleep 2')
    a(f's_branch {name}_poll')
    a(f'{name}_polled:')
    st(6)
    vm = VmQ()
    ST = 112
    STR = [112, 124, 8]
    for k in range(3):
        a(f's_sub_u32 s{S_T1}, s{S_SPLIT}, {k+1}')
        a(f's_and_b32 s{S_T1}, s{S_T1}, 3')
        a(f's_add_u32 s{S_T1}, s{S_T1}, s{S_T0}')
        a(f's_lshl_b32 s{S_T1}, s{S_T1}, 2')
        a(f's_add_u32 s{S_T1}, s{S_T1}, s{S_W}')
        a(f's_lshl_b32 s{S_T1}, s{S_T1}, 10')
        a(f's_add_u32 s{S_T1}, s{S_T1}, {WS_ML}')
        emit(f'buffer_load_dwordx4 {vr(STR[k],4)}, v{V_L16}, {SRD}, s{S_T1} offen sc1', 'pst')
    a(f's_add_u32 s{S_PO}, s{S_T0}, s{S_SPLIT}')
    a(f's_mul_i32 s{S_PO}, s{S_PO}, {3*32768}')
    a(f's_add_u32 s{S_PO}, s{S_PO}, s{S_W8K}')
    a(f's_add_u32 s{S_PO}, s{S_PO}, {WS_PART}')
    for h4 in range(2):
        for k in range(3):
            a(f's_add_u32 s{S_T1}, s{S_PO}, {k*32768 + h4*4096}')
            for i in range(4):
                idx = h4 * 4 + i
                emit(f'buffer_load_dwordx4 {vr(16+(idx*3+k)*4,4)}, v{V_L16}, {SRD}, s{S_T1} offen offset:{i*1024} sc1', ('p', idx, k))
    a(f's_waitcnt vmcnt({vm.need("pst")})')
    allst = [120] + STR
    for qh in range(2):
        t = V_T0 + qh
        a(f'v_max3_f32 v{t}, v{allst[0]+2*qh+1}, v{allst[1]+2*qh+1}, v{allst[2]+2*qh+1}')
        a(f'v_max_f32 v{t}, v{t}, v{allst[3]+2*qh+1}')
    for qh in range(2):
        for b in allst: a(f'v_sub_f32 v{b+2*qh+1}, v{b+2*qh+1}, v{V_T0+qh}')
    for qh in range(2):
        for b in allst: a(f'v_exp_f32 v{b+2*qh+1}, v{b+2*qh+1}')
    for qh in range(2):
        a(f'v_mul_f32 v{V_T0+qh}, v{allst[0]+2*qh}, v{allst[0]+2*qh+1}')
    for b in allst[1:]:
        for qh in range(2): a(f'v_fmac_f32 v{V_T0+qh}, v{b+2*qh}, v{b+2*qh+1}')
    for qh in range(2): a(f'v_rcp_f32 v{V_T0+qh}, v{V_T0+qh}')
    a('s_nop 0')
    for qh in range(2):
        for b in allst: a(f'v_mul_f32 v{b+2*qh+1}, v{b+2*qh+1}, v{V_T0+qh}')
    for beta in range(8):
        for qh in range(2):
            for i in range(2):
                y = YB + 8 * beta + 4 * qh + 2 * i; o = 128 + 8 * beta + 4 * qh + 2 * i
                a(f'v_pk_fma_f32 {vr(y,2)}, {vr(o,2)}, {vr(120+2*qh,2)}, {vr(y,2)} op_sel:[0,1,0] op_sel_hi:[1,1,1]')
    a(f'v_or_b32 v{V_XO}, s{S_VALID}, v{V_XO}')
    a(f's_add_u32 s{S_T1}, s{S_T4}, 16384')
    for idx in range(8):
        gm, qh = idx >> 1, idx & 1
        if idx % 4 in (0, 1, 2, 3): a(f's_waitcnt vmcnt({vm.need(("p", idx, 2))})')
        for k in range(3):
            pb = 16 + (idx * 3 + k) * 4
            ub = 128 + 8 * k
            for i in range(4):
                a(f'v_lshlrev_b32 v{ub+2*i}, 16, v{pb+i}')
                a(f'v_and_b32 v{ub+2*i+1}, 0xffff0000, v{pb+i}')
            for i in range(4):
                y = YB + 8 * (2 * gm + (i >> 1)) + 4 * qh + 2 * (i & 1)
                a(f'v_pk_fma_f32 {vr(y,2)}, {vr(ub+2*i,2)}, {vr(STR[k]+2*qh,2)}, {vr(y,2)} op_sel:[0,1,0] op_sel_hi:[1,1,1]')
        ob = 160 + 4 * idx
        for i in range(4):
            y = YB + 8 * (2 * gm + (i >> 1)) + 4 * qh + 2 * (i & 1)
            a(f'v_cvt_pk_bf16_f32 v{ob+i}, v{y}, v{y+1}')
        emit(f'buffer_store_dwordx4 {vr(ob,4)}, v{V_XO}, {SRO}, s{S_T1 if qh else S_T4} offen offset:{gm*64}')
    if stamp:
        a('s_waitcnt vmcnt(0)')
        st(7)
        a('s_waitcnt lgkmcnt(0)')
        a(f's_cmp_lg_u32 s{S_W}, 0')
        a(f's_cbranch_scc1 {name}_end')
        a(f's_lshl_b32 s{S_T1}, s2, 7')
        a(f's_add_u32 s{S_T1}, s{S_T1}, {WS_STAMP}')
        for i in range(20): a(f'v_mov_b32 v{16+i}, s{64+i}')
        a(f'v_mov_b32 v{V_T0}, 0')
        a('s_mov_b64 exec, 1')
        for i in range(5):
            a(f'buffer_store_dwordx4 {vr(16+4*i,4)}, v{V_T0}, {SRD}, s{S_T1} offen offset:{16*i}')
    a(f'{name}_end:')
    a('s_endpgm')
    a(f'{name}_cfslow:')
    a('s_sleep 2')
    a(f'buffer_load_dword v{V_PFD}, v{V_FL}, {SRD}, s{S_FLO} offen sc1')
    a('s_waitcnt vmcnt(0)')
    a(f'v_cmp_ne_u32 s[{S_T3}:{S_T3+1}], 1, v{V_PFD}')
    a('s_nop 3')
    a(f's_cmp_eq_u64 s[{S_T3}:{S_T3+1}], 0')
    a(f's_cbranch_scc0 {name}_cfslow')
    a(f's_branch {name}_cfok')
    for (L_r1, L_r1b, L_r2, L_r2b) in rare:
        a(f'{L_r1}:')
        rowmax2(V_T1, V_T2, 120)
        for qh, dst in ((0, V_T1), (1, V_T2)):
            a(f'v_max_f32 v{dst}, 0, v{dst}')
            fr = V_F1 if qh else V_F0
            a(f'v_sub_f32 v{fr}, 0, v{dst}')
            a(f'v_exp_f32 v{fr}, v{fr}')
            for kh in range(2):
                for i in range(4): a(f'v_sub_f32 v{Sreg(kh,qh)+i}, v{Sreg(kh,qh)+i}, v{dst}')
            for i in range(4): a(f'v_sub_f32 v{V_NEGM+4*qh+i}, v{V_NEGM+4*qh+i}, v{dst}')
            l = V_L1 if qh else V_L0
            a(f'v_mul_f32 v{l}, v{l}, v{fr}')
        a(f's_branch {L_r1b}')
        a(f'{L_r2}:')
        a('s_nop 7')
        for beta in range(32):
            for qh in range(2):
                fr = V_F1 if qh else V_F0
                b = Obase(beta, qh)
                if beta < 16:
                    for r in range(4): a(f'v_mul_f32 v{b+r}, v{b+r}, v{fr}')
                else:
                    for r in range(4): a(f'v_accvgpr_read_b32 v{120+r}, a{b+r}')
                    for r in range(4): a(f'v_mul_f32 v{120+r}, v{120+r}, v{fr}')
                    for r in range(4): a(f'v_accvgpr_write_b32 a{b+r}, v{120+r}')
        a(f's_branch {L_r2b}')
    kernel_desc(a, name, 512, 96, 256)
```

```python
MB = 1 << 20
WS_XA   = 0
WS_VT   = 8 * MB
WS_Q    = 16 * MB
WS_U    = 24 * MB
WS_G    = 32 * MB
WS_ST   = 40 * MB
WS_W    = 41 * MB
WS_WC   = 43 * MB
WS_T1   = 43 * MB + 512 * 1024
WS_UC   = 44 * MB
WS_PART = 80 * MB
WS_ML   = 76 * MB
WS_FLAG = 77 * MB
WS_STAMP = 78 * MB
WS_SIZE = 112 * MB
TILE = 32768
WS_DWT = 77 * MB + 512 * 1024
WS_RL  = 40 * MB + 512 * 1024
WS_FLAG2 = WS_FLAG + 65536
ZF_PART = 76 * MB
ZF = 77 * MB
ZK = 32768
```

```python
import sys, json
from asmlib import *
import k1, k2, k3
def build(path, stamp=False, o1={}, o2={}, o3={}):
    a = Asm()
    hdr = open('standalone__conformer_family_branchformer__speech.s.ref').read().split('\n')
    for ln in hdr:
        if ln.startswith(';') and '@launch' not in ln and 'Override launch' not in ln and 'grid=ceil' not in ln: a.raw(ln)
    a.raw(f'; @launch kernel=prep_kernel grid=({k1.N_PREP_WG},1,1) block=(512,1,1) lds={k1.PREP_LDS}')
    a.raw('; @launch kernel=rg_kernel grid=(256,1,1) block=(512,1,1) lds=163840')
    a.raw('; @launch kernel=attn_kernel grid=(256,1,1) block=(256,1,1) lds=163840')
    a.raw('.amdgcn_target "amdgcn-amd-amdhsa--gfx950"')
    k1.gen_prep(a, 'prep_kernel', stamp=stamp, **o1)
    k2.gen_rg(a, 'rg_kernel', stamp=stamp, **o2)
    k3.gen_attn(a, 'attn_kernel', stamp=stamp, **o3)
    open(path, 'w').write(a.text())
if __name__ == '__main__':
    o = json.loads(sys.argv[2]) if len(sys.argv) > 2 else {}
    build(sys.argv[1], **o)
```

```python
from asmlib import *
from layout import *
from attn2 import LdsQ
from k2 import f2h

N_PREP_WG = 256
PREP_LDS = 163840

def gen_prep(a, name, stamp=False, code_bytes=131072, st_flags=''):
    V_L16, V_T0, V_T1, V_T2, V_T3, V_TR, V_DT, V_LR, V_LS = range(1, 10)
    V_SW, V_AR, V_BR = 10, 20, 24
    V_ACC, V_PK, V_RA, V_RB = 32, 48, 64, 96
    RAW, F, SUM, MEAN, RSTD = 64, 96, 28, 18, 56
    P_X, P_WQ, P_WK, P_WV, P_AO, P_UP, P_DW, P_DN, P_MG, P_OUT, P_DBG, P_WS = [4 + 2 * i for i in range(12)]
    S_SW, S_SA, S_SB, S_SX = 28, 32, 36, 40
    S_W, S_TI, S_TJ, S_T0, S_T1, S_T2, S_OO, S_ROLE, S_BLK, S_RB, S_CB = range(44, 55)
    SW, SA, SB, SX = [f's[{b}:{b+3}]' for b in (S_SW, S_SA, S_SB, S_SX)]
    LA_, LB_ = 32768, 98304
    def st(i, cyc=False):
        if stamp: a(f'{"s_memtime" if cyc else "s_memrealtime"} s[{60+2*i}:{61+2*i}]')
    kernel_begin(a, name)
    a(f's_cmp_ge_u32 s2, {N_PREP_WG}\n s_cbranch_scc1 {name}_end')
    a('s_load_dwordx16 s[4:19], s[0:1], 0')
    a('s_load_dwordx8 s[20:27], s[0:1], 64')
    if stamp:
        for i in range(60, 76): a(f's_mov_b32 s{i}, 0')
    st(0); st(6, True)
    if code_bytes:
        lab = f'{name}_nopf'
        a(f's_cmp_lt_u32 s2, 240\n s_cbranch_scc1 {lab}')
        a(f's_getpc_b64 s[56:57]')
        a(f'{name}_pc:')
        a(f's_sub_u32 s56, s56, {name}_pc-{name}')
        a(f's_subb_u32 s57, s57, 0')
        a(f'v_lshlrev_b32 v{V_T0}, 7, v0')
        a(f's_bitcmp1_b32 s2, 3')
        a(f's_cselect_b32 s58, 32768, 0')
        a(f'v_add_u32 v{V_T0}, s58, v{V_T0}')
        for i in range(-(-code_bytes // 65536)):
            a(f'v_min_u32 v{V_T1}, code_end-{name}-4, v{V_T0}')
            a(f'global_load_dword v{120+i}, v{V_T1}, s[56:57]')
            a(f'v_add_u32 v{V_T0}, 65536, v{V_T0}')
        a(f'{lab}:')
    a(f'v_lshrrev_b32 v{V_T0}, 6, v0')
    a(f'v_and_b32 v0, 63, v0')
    a(f'v_readfirstlane_b32 s{S_W}, v{V_T0}')
    a(f'v_lshlrev_b32 v{V_L16}, 4, v0')
    a(f's_and_b32 s{S_T0}, s2, 7')
    a(f's_lshr_b32 s{S_T1}, s2, 3')
    a(f's_and_b32 s{S_BLK}, s{S_T0}, 3')
    a(f's_lshl_b32 s{S_BLK}, s{S_BLK}, 5')
    a(f's_add_u32 s{S_BLK}, s{S_BLK}, s{S_T1}')
    a(f's_cmp_lt_u32 s{S_BLK}, 125')
    a(f's_cselect_b32 s{S_T2}, 0, 0x80000000')
    a(f's_min_u32 s{S_BLK}, s{S_BLK}, 124')
    a(f's_lshr_b32 s{S_T0}, s{S_T0}, 2')
    a(f's_mul_i32 s{S_T0}, s{S_T0}, 125')
    a(f's_add_u32 s{S_BLK}, s{S_BLK}, s{S_T0}')
    a(f's_lshl_b32 s{S_BLK}, s{S_BLK}, 15')
    a(f's_lshl_b32 s{S_T0}, s{S_W}, 13')
    a(f's_add_u32 s{S_T1}, s{S_BLK}, s{S_T0}')
    a('s_waitcnt lgkmcnt(0)')
    make_srd(a, S_SX, P_X, 0, 8192000)
    for g in range(2):
        a(f's_add_u32 m0, s{S_T0}, {g*4096}')
        if g: a(f's_add_u32 s{S_T1}, s{S_T1}, 4096')
        else: a('s_nop 0')
        for i in range(4): a(f'buffer_load_dwordx4 v{V_L16}, {SX}, s{S_T1} offen offset:{i*1024} lds')
    make_srd(a, S_SW, P_WS, 0, WS_SIZE)
    a(f'v_and_b32 v{V_T0}, 7, v0')
    a(f'v_lshrrev_b32 v{V_T1}, 3, v0')
    a(f'v_lshlrev_b32 v{V_LR}, 4, v{V_T1}')
    a(f'v_lshl_add_u32 v{V_LR}, v{V_T0}, 10, v{V_LR}')
    a(f'v_add_u32 v{V_LR}, s{S_T0}, v{V_LR}')
    a(f'v_lshrrev_b32 v{V_T2}, 5, v0')
    a(f'v_lshlrev_b32 v{V_LS}, 11, v{V_T2}')
    a(f'v_and_b32 v{V_T2}, 3, v{V_T1}')
    a(f'v_lshl_add_u32 v{V_LS}, v{V_T2}, 8, v{V_LS}')
    a(f'v_lshl_add_u32 v{V_LS}, v{V_T0}, 4, v{V_LS}')
    a(f'v_or_b32 v{V_LS}, s{S_T2}, v{V_LS}')
    a(f's_and_b32 s{S_RB}, s{S_W}, 1')
    a(f's_lshr_b32 s{S_CB}, s{S_W}, 1')
    a(f's_lshl_b32 s{S_T1}, s{S_RB}, 7')
    a(f'v_xor_b32 v{V_SW}, s{S_T1}, v{V_L16}')
    for i in range(1, 8): a(f'v_xor_b32 v{V_SW+i}, {i*16}, v{V_SW}')
    a(f'v_bfe_u32 v{V_T2}, v0, 4, 1')
    a(f'v_lshlrev_b32 v{V_T2}, 2, v{V_T2}')
    a(f'v_xor_b32 v{V_T2}, v{V_T2}, v{V_T0}')
    a(f'v_lshlrev_b32 v{V_DT}, 4, v{V_T2}')
    def rows_dma(srd, sbase, ldsbase):
        a(f's_lshl_b32 s{S_T2}, s{S_W}, 14')
        a(f's_add_u32 s{S_T1}, s{sbase}, s{S_T2}')
        for g in range(4):
            a(f's_add_u32 m0, s{S_T2}, {ldsbase + g*4096}')
            if g: a(f's_add_u32 s{S_T1}, s{S_T1}, 4096')
            else: a('s_nop 0')
            for i in range(4):
                a(f'buffer_load_dwordx4 v{V_SW + 4*(g>>1) + i}, {srd}, s{S_T1} offen offset:{i*1024} lds')
    def tr_dma(npiece, stride_log2, sbase):
        a(f'v_lshl_add_u32 v{V_T3}, v{V_T1}, {stride_log2}, v{V_DT}')
        a(f's_mul_i32 s{S_T1}, s{S_W}, {npiece * 8 << stride_log2}')
        a(f's_add_u32 s{S_T1}, s{S_T1}, s{sbase}')
        a(f's_mul_i32 s{S_T2}, s{S_W}, {npiece * 1024}')
        for i in range(npiece):
            a(f's_add_u32 m0, s{S_T2}, {LB_ + i*1024}')
            if i: a(f's_add_u32 s{S_T1}, s{S_T1}, {8 << stride_log2}')
            else: a('s_nop 0')
            a(f'buffer_load_dwordx4 v{V_T3}, {SB}, s{S_T1} offen lds')
    a(f's_and_b32 s3, s2, 7')
    a(f's_lshl_b32 s3, s3, 5')
    a(f's_lshr_b32 s{S_T1}, s2, 3')
    a(f's_add_u32 s3, s3, s{S_T1}')
    a(f's_and_b32 s{S_T2}, s2, 1')
    a(f's_lshl1_add_u32 s{S_T1}, s{S_T1}, s{S_T2}')
    a(f's_add_u32 s{S_T1}, s{S_T1}, 192')
    a(f's_cmp_ge_u32 s3, 192')
    a(f's_cselect_b32 s3, s{S_T1}, s3')
    a(f's_lshr_b32 s{S_ROLE}, s3, 6')
    a(f's_and_b32 s{S_TI}, s3, 7')
    a(f's_bfe_u32 s{S_TJ}, s3, 0x30003')
    a(f's_cmp_eq_u32 s{S_ROLE}, 3\n s_cbranch_scc1 {name}_i3')
    a(f's_cmp_eq_u32 s{S_ROLE}, 1\n s_cbranch_scc1 {name}_i1')
    a(f's_cmp_eq_u32 s{S_ROLE}, 0')
    a(f's_cselect_b32 s{S_SA}, s{P_AO}, s{P_DN}')
    a(f's_cselect_b32 s{S_SA+1}, s{P_AO+1}, s{P_DN+1}')
    a(f's_cselect_b32 s{S_T0}, 0, {512*1024}')
    a(f's_mov_b32 s{S_SA+2}, {512*1024}\n s_mov_b32 s{S_SA+3}, 0x20000')
    make_srd(a, S_SB, P_MG, 0, 1024 * 1024)
    a(f's_lshl_b32 s{S_T1}, s{S_TJ}, 7')
    a(f's_add_u32 s{S_T0}, s{S_T0}, s{S_T1}')
    tr_dma(16, 10, S_T0)
    a(f's_lshl_b32 s{S_T0}, s{S_TI}, 16')
    rows_dma(SA, S_T0, LA_)
    a('s_waitcnt vmcnt(32)')
    a(f's_branch {name}_ln')
    a(f'{name}_i1:')
    make_srd(a, S_SA, P_WQ, 0, 512 * 1024)
    make_srd(a, S_SB, P_WK, 0, 512 * 1024)
    a(f's_lshl_b32 s{S_T0}, s{S_TJ}, 16')
    rows_dma(SB, S_T0, LB_)
    a(f's_lshl_b32 s{S_T0}, s{S_TI}, 16')
    rows_dma(SA, S_T0, LA_)
    a('s_waitcnt vmcnt(32)')
    a(f's_branch {name}_ln')
    a(f'{name}_i3:')
    make_srd(a, S_SA, P_WV, 0, 512 * 1024)
    make_srd(a, S_SB, P_UP, 0, 1024 * 1024)
    a(f's_cmp_ge_u32 s3, 224\n s_cbranch_scc1 {name}_i4')
    a(f's_bfe_u32 s{S_TJ}, s3, 0x40001')
    a(f's_and_b32 s{S_TI}, s3, 1')
    a(f's_lshl_b32 s{S_T0}, s{S_TJ}, 7')
    a(f's_lshl_b32 s{S_T1}, s{S_TI}, 19')
    a(f's_add_u32 s{S_T0}, s{S_T0}, s{S_T1}')
    tr_dma(8, 11, S_T0)
    a('s_waitcnt vmcnt(8)')
    a(f's_branch {name}_ln')
    a(f'{name}_i4:')
    a(f's_cmp_ge_u32 s3, 232\n s_cbranch_scc1 {name}_i5')
    a(f's_lshl_b32 s{S_T0}, s{S_TI}, 16')
    rows_dma(SA, S_T0, LA_)
    a('s_waitcnt vmcnt(16)')
    a(f's_branch {name}_ln')
    a(f'{name}_i5:')
    make_srd(a, S_SA, P_DW, 0, 31 * 1024)
    a(f's_lshl_b32 s{S_T0}, s{S_TI}, 12')
    a(f's_lshl_b32 s{S_T1}, s{S_W}, 8')
    a(f's_add_u32 s{S_T0}, s{S_T0}, s{S_T1}')
    a(f'v_lshlrev_b32 v{V_T3}, 1, v0')
    a(f'v_add_u32 v{V_T3}, s{S_T0}, v{V_T3}')
    for h in range(2):
        for i in range(4):
            a(f'buffer_load_ushort v{V_ACC+4*h+i}, v{V_T3}, {SA}, 0 offen offset:{i*1024 + h*128}')
    a('s_waitcnt vmcnt(8)')
    a(f'{name}_ln:')
    st(2)
    for i in range(8): a(f'ds_read_b128 {vr(RAW+4*i,4)}, v{V_LR} offset:{i*128}')
    for i in range(4): a(f'v_mov_b32 v{SUM+i}, 0')
    if stamp: a('s_waitcnt lgkmcnt(0)')
    for s in range(8):
        a(f's_waitcnt lgkmcnt({7-s})')
        for i in range(4):
            r = RAW + 4 * s + i; f = F + 8 * s + 2 * i
            a(f'v_lshlrev_b32 v{f}, 16, v{r}')
            a(f'v_and_b32 v{f+1}, 0xffff0000, v{r}')
        for i in range(4):
            f = F + 8 * s + 2 * i; acc = SUM + 2 * (i & 1)
            a(f'v_pk_add_f32 {vr(acc,2)}, {vr(acc,2)}, {vr(f,2)}')
    def reduce8(dst):
        a(f'v_pk_add_f32 {vr(SUM,2)}, {vr(SUM,2)}, {vr(SUM+2,2)}')
        a(f'v_add_f32 v{dst}, v{SUM}, v{SUM+1}')
        a('s_nop 1')
        a(f'v_add_f32_dpp v{dst}, v{dst}, v{dst} row_ror:8 row_mask:0xf bank_mask:0xf')
        for sw in ('v_permlane16_swap_b32', 'v_permlane32_swap_b32'):
            a(f'v_mov_b32 v{V_T2}, v{dst}')
            a('s_nop 1')
            a(f'{sw} v{V_T2}, v{dst}')
            a('s_nop 1')
            a(f'v_add_f32 v{dst}, v{dst}, v{V_T2}')
    reduce8(MEAN)
    a(f'v_mul_f32 v{MEAN}, {f2h(-1.0/512)}, v{MEAN}')
    for i in range(4): a(f'v_mov_b32 v{SUM+i}, 0')
    for k in range(32):
        f = F + 2 * k
        a(f'v_pk_add_f32 {vr(f,2)}, {vr(f,2)}, {vr(MEAN,2)} op_sel_hi:[1,0]')
        if k:
            g = f - 2; acc = SUM + 2 * (k & 1)
            a(f'v_pk_fma_f32 {vr(acc,2)}, {vr(g,2)}, {vr(g,2)}, {vr(acc,2)}')
    g = F + 62
    a(f'v_pk_fma_f32 {vr(SUM,2)}, {vr(g,2)}, {vr(g,2)}, {vr(SUM,2)}')
    reduce8(RSTD)
    a(f'v_mov_b32 v{V_T2}, {f2h(1e-5)}')
    a(f'v_fmac_f32 v{V_T2}, {f2h(1.0/512)}, v{RSTD}')
    a(f'v_rsq_f32 v{RSTD}, v{V_T2}')
    a(f's_lshl_b32 s{S_T0}, s{S_CB}, 10')
    a(f's_lshl_b32 s{S_T1}, s{S_RB}, 7')
    a(f's_add_u32 s{S_T0}, s{S_T0}, s{S_T1}')
    a(f's_add_u32 s{S_T0}, s{S_T0}, s{S_BLK}')
    if WS_XA: a(f's_add_u32 s{S_T0}, s{S_T0}, {WS_XA}')
    for s in range(8):
        for i in range(4):
            f = F + 8 * s + 2 * i
            a(f'v_pk_mul_f32 {vr(f,2)}, {vr(f,2)}, {vr(RSTD,2)} op_sel_hi:[1,0]')
        for i in range(4):
            f = F + 8 * s + 2 * i
            a(f'v_cvt_pk_bf16_f32 v{RAW+4*s+i}, v{f}, v{f+1}')
        if s: a(f's_add_u32 s{S_T0}, s{S_T0}, 4096')
        a(f'buffer_store_dwordx4 {vr(RAW+4*s,4)}, v{V_LS}, {SW}, s{S_T0} offen {st_flags}')
    st(3)
    a(f'v_and_b32 v{V_T0}, 15, v0')
    a(f'v_lshrrev_b32 v{V_T1}, 4, v0')
    a(f'v_bfe_u32 v{V_T2}, v0, 2, 2')
    a(f'v_and_b32 v{V_T3}, 3, v0')
    a(f'v_lshl_add_u32 v{V_TR}, v{V_T2}, 3, v{V_T3}')
    a(f'v_lshlrev_b32 v{V_TR}, 10, v{V_TR}')
    a(f'v_xor_b32 v{V_T0}, v{V_T0}, v{V_T1}')
    a(f'v_lshl_add_u32 v{V_TR}, v{V_T0}, 4, v{V_TR}')
    a(f's_lshl_b32 s{S_T0}, s{S_RB}, 15')
    a(f's_add_u32 s{S_T0}, s{S_T0}, {LA_}')
    a(f's_lshl_b32 s{S_T1}, s{S_CB}, 15')
    a(f's_add_u32 s{S_T1}, s{S_T1}, {LB_}')
    for i in range(4):
        a(f'v_xor_b32 v{V_T0}, {i*64}, v{V_TR}')
        a(f'v_add_u32 v{V_AR+i}, s{S_T0}, v{V_T0}')
        a(f'v_add_u32 v{V_BR+i}, s{S_T1}, v{V_T0}')
    a(f'v_bfe_u32 v{V_T0}, v0, 3, 1')
    a(f'v_xor_b32 v{V_T0}, s{S_CB}, v{V_T0}')
    a(f'v_lshl_add_u32 v{V_T0}, v{V_T0}, 2, v{V_T3}')
    a(f'v_lshlrev_b32 v{V_TR}, 4, v{V_T0}')
    a(f'v_lshl_add_u32 v{V_TR}, v{V_T2}, 7, v{V_TR}')
    a(f'v_lshl_add_u32 v{V_TR}, v{V_T1}, 10, v{V_TR}')
    a(f'v_add_u32 v{V_TR}, {LB_}, v{V_TR}')
    a('s_waitcnt vmcnt(8)')
    a('s_barrier')
    st(4)
    if stamp: a('s_waitcnt lgkmcnt(0)')
    def rd_rows(base):
        return lambda s, h, dst: [f'ds_read_b128 {vr(dst,4)}, v{base + (s & 3)} offset:{h*4096 + (s >> 2)*256}']
    def rd_tr(s, h, dst):
        return [f'ds_read_b64_tr_b16 {vr(dst+2*jj,2)}, v{V_TR} offset:{s*4096 + jj*512 + h*8}' for jj in range(2)]
    def gemm(rdB):
        rdA = rd_rows(V_AR)
        q = LdsQ()
        def issue(s):
            for h in range(2):
                for o in rdA(s, h, V_RA + 8 * (s % 4) + 4 * h): a(o); q.issue(s)
            for h in range(2):
                for o in rdB(s, h, V_RB + 8 * (s % 4) + 4 * h): a(o); q.issue(s)
        issue(0); issue(1)
        for s in range(16):
            if s + 2 < 16: issue(s + 2)
            a(f's_waitcnt lgkmcnt({min(15, q.need(s))})')
            for ch in range(2):
                for b in range(2):
                    d = vr(V_ACC + ch * 8 + b * 4, 4)
                    a(f'v_mfma_f32_16x16x32_bf16 {d}, {vr(V_RA+8*(s%4)+4*b,4)}, {vr(V_RB+8*(s%4)+4*ch,4)}, {d if s else 0}')
        a('s_nop 7')
    a(f's_cmp_eq_u32 s{S_ROLE}, 3\n s_cbranch_scc1 {name}_c3')
    a(f's_lshl1_add_u32 s{S_OO}, s{S_TJ}, s{S_CB}')
    a(f's_lshl_b32 s{S_OO}, s{S_OO}, 15')
    a(f's_lshl1_add_u32 s{S_T0}, s{S_TI}, s{S_RB}')
    a(f's_lshl_b32 s{S_T0}, s{S_T0}, 11')
    a(f's_add_u32 s{S_OO}, s{S_OO}, s{S_T0}')
    a(f's_cmp_eq_u32 s{S_ROLE}, 1\n s_cbranch_scc1 {name}_c1')
    a(f's_cmp_eq_u32 s{S_ROLE}, 0')
    a(f's_cselect_b32 s{S_T0}, {WS_T1}, {WS_WC}' if False else f's_cselect_b32 s{S_T0}, {WS_T1 - WS_WC}, 0')
    a(f's_add_u32 s{S_OO}, s{S_OO}, s{S_T0}')
    a(f's_add_u32 s{S_OO}, s{S_OO}, {WS_WC}')
    gemm(rd_tr)
    a(f's_branch {name}_out')
    a(f'{name}_c1:')
    a(f's_add_u32 s{S_OO}, s{S_OO}, {WS_W}')
    gemm(rd_rows(V_BR))
    a(f's_mov_b32 s{S_T1}, {f2h(512 ** -0.5 * 1.4426950408889634)}')
    for i in range(16): a(f'v_mul_f32 v{V_ACC+i}, s{S_T1}, v{V_ACC+i}')
    a(f'{name}_out:')
    for i in range(8): a(f'v_cvt_pk_bf16_f32 v{V_PK+i}, v{V_ACC+2*i}, v{V_ACC+2*i+1}')
    for ch in range(2):
        a(f'buffer_store_dwordx4 {vr(V_PK+4*ch,4)}, v{V_L16}, {SW}, s{S_OO} offen offset:{ch*1024} {st_flags}')
    a(f's_branch {name}_fin')
    a(f'{name}_c3:')
    a(f's_cmp_ge_u32 s3, 224\n s_cbranch_scc1 {name}_c4')
    a(f's_lshl_b32 s{S_T0}, s{S_RB}, 14')
    a(f'v_add_u32 v{V_TR}, s{S_T0}, v{V_TR}')
    for i in range(8):
        for o in rd_tr(i >> 1, i & 1, V_RA + 4 * i): a(o)
    a(f's_lshl1_add_u32 s{S_OO}, s{S_TJ}, s{S_CB}')
    a(f's_lshl_b32 s{S_OO}, s{S_OO}, 15')
    a(f's_lshl1_add_u32 s{S_T0}, s{S_TI}, s{S_RB}')
    a(f's_lshl_b32 s{S_T0}, s{S_T0}, 13')
    a(f's_add_u32 s{S_OO}, s{S_OO}, s{S_T0}')
    a(f's_add_u32 s{S_OO}, s{S_OO}, {WS_W + 32 * TILE}')
    a(f's_add_u32 s{S_T1}, s{S_OO}, 4096')
    for i in range(8):
        a(f's_waitcnt lgkmcnt({14 - 2*i})')
        a(f'buffer_store_dwordx4 {vr(V_RA+4*i,4)}, v{V_L16}, {SW}, s{S_T1 if i >= 4 else S_OO} offen offset:{(i%4)*1024} {st_flags}')
    a(f's_branch {name}_fin')
    a(f'{name}_c4:')
    a(f's_cmp_ge_u32 s3, 232\n s_cbranch_scc1 {name}_c5')
    a(f's_lshl_b32 s{S_T0}, s{S_CB}, 9')
    for i in range(4): a(f'v_add_u32 v{V_AR+i}, s{S_T0}, v{V_AR+i}')
    for i in range(16):
        for o in rd_rows(V_AR)(i >> 1, i & 1, V_RA + 4 * i): a(o)
    a(f's_lshl1_add_u32 s{S_OO}, s{S_TI}, s{S_RB}')
    a(f's_lshl_b32 s{S_OO}, s{S_OO}, 15')
    a(f's_lshl_b32 s{S_T0}, s{S_CB}, 14')
    a(f's_add_u32 s{S_OO}, s{S_OO}, s{S_T0}')
    a(f's_add_u32 s{S_OO}, s{S_OO}, {WS_RL}')
    for i in range(16):
        if i % 4 == 0 and i: a(f's_add_u32 s{S_OO}, s{S_OO}, 4096')
        a(f's_waitcnt lgkmcnt({15 - i})')
        a(f'buffer_store_dwordx4 {vr(V_RA+4*i,4)}, v{V_L16}, {SW}, s{S_OO} offen offset:{(i%4)*1024} {st_flags}')
    a(f's_branch {name}_fin')
    a(f'{name}_c5:')
    for i in range(4): a(f'v_mov_b32 v{V_PK+i}, 0')
    a(f's_sub_u32 s{S_T0}, s3, 232')
    a(f's_lshl_b32 s{S_T0}, s{S_T0}, 12')
    a(f's_lshl_b32 s{S_T1}, s{S_W}, 10')
    a(f's_add_u32 s{S_T0}, s{S_T0}, s{S_T1}')
    a(f's_add_u32 s{S_T0}, s{S_T0}, {WS_FLAG}')
    a(f'buffer_store_dwordx4 {vr(V_PK,4)}, v{V_L16}, {SW}, s{S_T0} offen')
    a(f's_cmp_ge_u32 s3, 240\n s_cbranch_scc1 {name}_fin')
    for i in range(8): a(f'v_lshlrev_b32 v{V_ACC+i}, 16, v{V_ACC+i}')
    a(f's_lshl_b32 s{S_T0}, s{S_TI}, 13')
    a(f's_lshl_b32 s{S_T1}, s{S_W}, 11')
    a(f's_add_u32 s{S_T0}, s{S_T0}, s{S_T1}')
    a(f's_add_u32 s{S_T0}, s{S_T0}, {WS_DWT}')
    for h in range(2):
        a(f'buffer_store_dwordx4 {vr(V_ACC+4*h,4)}, v{V_L16}, {SW}, s{S_T0} offen offset:{h*1024}')
    a(f'{name}_fin:')
    if stamp:
        st(5)
        a('s_waitcnt vmcnt(0)')
        st(1); st(7, True)
        a('s_waitcnt lgkmcnt(0)')
        a(f's_cmp_lg_u32 s{S_W}, 0')
        a(f's_cbranch_scc1 {name}_end')
        a(f's_lshl_b32 s{S_T1}, s2, 6')
        a(f's_add_u32 s{S_T1}, s{S_T1}, {WS_STAMP + 131072}')
        for i in range(16): a(f'v_mov_b32 v{32+i}, s{60+i}')
        a(f'v_mov_b32 v{V_T0}, 0')
        a('s_mov_b64 exec, 1')
        for i in range(4): a(f'buffer_store_dwordx4 {vr(32+4*i,4)}, v{V_T0}, {SW}, s{S_T1} offen offset:{16*i}')
    a(f'{name}_end:')
    a('s_endpgm')
    kernel_desc(a, name, 160, 80, 160)
```

```python
from asmlib import *
from layout import *
from attn2 import LdsQ
import struct
def f2h(x): return hex(struct.unpack('<I', struct.pack('<f', x))[0])

class VmQ:
    def __init__(self): self.n = 0; self.last = {}
    def issue(self, tag=None):
        self.n += 1
        if tag is not None: self.last[tag] = self.n
    def need(self, tag): return self.n - self.last[tag]

def code_prefetch(a, name, end_label, vt, vd, sp, nthreads, first_wg, nbytes_max):
    lab = f'{name}_nopf'
    a(f's_sub_u32 s{sp}, s2, {first_wg}')
    a(f's_cmp_ge_u32 s{sp}, 8\n s_cbranch_scc1 {lab}')
    a(f's_getpc_b64 s[{sp}:{sp+1}]')
    a(f'{name}_pc:')
    a(f's_sub_u32 s{sp}, s{sp}, {name}_pc-{name}')
    a(f's_subb_u32 s{sp+1}, s{sp+1}, 0')
    a(f'v_lshlrev_b32 v{vt}, 7, v0')
    for i in range(-(-nbytes_max // (nthreads * 128))):
        a(f'v_min_u32 v{vt+1}, {end_label}-{name}-4, v{vt}')
        a(f'global_load_dword v{vd}, v{vt+1}, s[{sp}:{sp+1}]')
        a(f'v_add_u32 v{vt}, {nthreads*128}, v{vt}')
    a(f'{lab}:')

def gen_rg(a, name, stamp=False, LA=7, wait_every=2, bar_pos=20, per_gap=2, XPRE=12, st_flags='', fuse=True, pf=True):
    V_L16, V_RA, V_ST, V_DMA, V_C0, V_C1, V_S0, V_S1, V_Q0, V_Q1, V_T0, V_T1, V_W0, V_FL, V_T2 = range(1, 16)
    ACC = {'u': 16, 'g': 32, 'q': 48, 'v': 48}
    V_RING, V_Z, V_PK, V_STG = 64, 96, 104, 112
    S_WS, S_SRD = 4, 8
    S_W, S_BLK, S_CG, S_T0, S_T1, S_WOFF, S_DB, S_OUT, S_XO, S_T2, S_M0, S_M1 = range(24, 36)
    NR = 8
    def st(i, cyc=False):
        if stamp: a(f'{"s_memtime" if cyc else "s_memrealtime"} s[{44+2*i}:{45+2*i}]')
    kernel_begin(a, name)
    a(f's_cmp_ge_u32 s2, 256\n s_cbranch_scc1 {name}_end')
    a(f's_load_dwordx2 s[{S_WS}:{S_WS+1}], s[0:1], 88')
    st(0)
    if pf: code_prefetch(a, name, f'{name}_end', 14, 127, 36, 512, 0, 32768)
    a(f'v_lshrrev_b32 v{V_T0}, 6, v0')
    a(f'v_cmp_eq_u32 vcc, 0, v0')
    a(f'v_and_b32 v0, 63, v0')
    a(f'v_readfirstlane_b32 s{S_W}, v{V_T0}')
    a(f'v_lshlrev_b32 v{V_L16}, 4, v0')
    a(f'v_bfrev_b32 v{V_T1}, 1')
    a(f'v_cndmask_b32 v{V_T2}, v{V_T1}, 0, vcc')
    a(f's_and_b32 s{S_T0}, s2, 7')
    a(f's_lshr_b32 s{S_T1}, s2, 3')
    a(f's_and_b32 s{S_CG}, s{S_T1}, 7')
    a(f's_lshr_b32 s{S_T1}, s{S_T1}, 3')
    a(f's_and_b32 s{S_BLK}, s{S_T0}, 3')
    a(f's_lshl_b32 s{S_BLK}, s{S_BLK}, 2')
    a(f's_add_u32 s{S_BLK}, s{S_BLK}, s{S_T1}')
    a(f's_lshl_b32 s{S_BLK}, s{S_BLK}, 3')
    a(f's_add_u32 s{S_BLK}, s{S_BLK}, s{S_W}')
    a(f's_cmp_lt_u32 s{S_BLK}, 125')
    a(f's_cselect_b32 s{S_T1}, 0, 0x80000000')
    a(f'v_or_b32 v{V_ST}, s{S_T1}, v{V_L16}')
    a(f's_cmp_eq_u32 s{S_W}, 0')
    a(f's_cselect_b32 s{S_T1}, 0, 0x80000000')
    a(f'v_or_b32 v{V_W0}, s{S_T1}, v{V_L16}')
    a(f's_min_u32 s{S_BLK}, s{S_BLK}, 124')
    a(f's_lshr_b32 s{S_T0}, s{S_T0}, 2')
    a(f's_mul_i32 s{S_T0}, s{S_T0}, 125')
    a(f's_add_u32 s{S_BLK}, s{S_BLK}, s{S_T0}')
    a(f's_lshl_b32 s{S_DB}, s{S_W}, 12')
    a(f'v_add_u32 v{V_DMA}, s{S_DB}, v{V_L16}')
    a(f's_lshl_b32 s{S_WOFF}, s{S_CG}, 16')
    a(f's_add_u32 s{S_WOFF}, s{S_WOFF}, {WS_W}')
    a(f's_lshl_b32 s{S_OUT}, s{S_BLK}, 15')
    a(f's_lshl_b32 s{S_T0}, s{S_CG}, 12')
    a(f's_add_u32 s{S_OUT}, s{S_OUT}, s{S_T0}')
    a(f's_and_b32 s{S_M0}, s2, 15')
    a(f's_lshl_b32 s{S_M0}, s{S_M0}, 15')
    a(f's_add_u32 s{S_M0}, s{S_M0}, {WS_RL}')
    a(f's_lshr_b32 s{S_M1}, s2, 4')
    a(f's_lshl_b32 s{S_M1}, s{S_M1}, 15')
    a(f's_add_u32 s{S_M1}, s{S_M1}, {WS_T1}')
    a('s_waitcnt lgkmcnt(0)')
    make_srd(a, S_SRD, S_WS, 0, WS_SIZE)
    SRD = f's[{S_SRD}:{S_SRD+3}]'
    seq = ['u', 'q', 'g', 'q', 'u', 'v', 'g', 'v']
    half = [0, 0, 0, 1, 1, 0, 1, 1]
    wbase = {'q': 0, 'v': 16, 'u': 32, 'g': 48}
    obase = {'q': WS_Q, 'v': WS_VT, 'u': WS_U, 'g': WS_G}
    vm = VmQ(); q = LdsQ()
    def emit(o, tag=None):
        a(o)
        if o.startswith('buffer_'): vm.issue(tag)
        if o.startswith('ds_'): q.issue(tag)
    def dma(n):
        ops = [f's_add_u32 s{S_T1}, s{S_WOFF}, {(wbase[seq[n]] + half[n]) * TILE}', f's_add_u32 m0, s{S_DB}, {(n % 5) * TILE}', 's_nop 0']
        for i in range(4):
            ops.append(f'buffer_load_dwordx4 v{V_DMA}, {SRD}, s{S_T1} offen offset:{i*1024} lds')
        return [(o, ('W', n)) for o in ops]
    for i in range(4): emit(f'buffer_load_dwordx4 {vr(V_RING+4*i,4)}, v{V_DMA}, {SRD}, s{S_M0} offen offset:{i*1024}', 'p3')
    for i in range(4): emit(f'buffer_load_dwordx4 {vr(V_RING+16+4*i,4)}, v{V_DMA}, {SRD}, s{S_M1} offen offset:{i*1024}', 'p3')
    for o, t in dma(0): emit(o, t)
    if fuse:
        for o, t in dma(1): emit(o, t)
    a(f's_lshl_b32 s{S_XO}, s{S_BLK}, 15')
    if WS_XA: a(f's_add_u32 s{S_XO}, s{S_XO}, {WS_XA}')
    def xload(f):
        ops = []
        if f % 4 == 0 and f: ops.append((f's_add_u32 s{S_XO}, s{S_XO}, 4096', None))
        ops.append((f'buffer_load_dwordx4 {ar(4*f,4)}, v{V_L16}, {SRD}, s{S_XO} offen offset:{(f%4)*1024}', ('X', f)))
        return ops
    for f in range(XPRE):
        for o, t in xload(f): emit(o, t)
    extra = []
    for f in range(XPRE, 32):
        extra += xload(f)
        if f == 24 and not fuse: extra += dma(1)
    extra += dma(2) + dma(3)
    c0 = -2.0 * 0.7978845608028654 * 1.4426950408889634
    a(f'v_mov_b32 v{V_C0}, {f2h(c0)}')
    a(f'v_mov_b32 v{V_C1}, {f2h(c0 * 0.044715)}')
    for r in (V_S0, V_S1, V_Q0, V_Q1): a(f'v_mov_b32 v{r}, 0')
    a(f'v_add_u32 v{V_RA}, {2*TILE}, v{V_L16}')
    a(f'v_add_u32 v{V_T1}, {4*TILE}, v{V_L16}')
    a(f'v_and_b32 v{V_FL}, 31, v0')
    a(f'v_lshlrev_b32 v{V_FL}, 2, v{V_FL}')
    PA = ACC['g']
    a(f's_waitcnt vmcnt({vm.need("p3")})')
    for sl in range(2):
        for ch in range(2):
            for b in range(2):
                d = vr(PA + ch * 8 + b * 4, 4)
                a(f'v_mfma_f32_16x16x32_bf16 {d}, {vr(V_RING+(2*sl+b)*4,4)}, {vr(V_RING+16+(2*sl+ch)*4,4)}, {d if sl else 0}')
    a(f'v_add_u32 v{V_T0}, {4*TILE}, v{V_DMA}')
    a('s_nop 6')
    for i in range(4): a(f'ds_write_b128 v{V_T0}, {vr(PA+4*i,4)} offset:{i*1024}')
    a(f's_waitcnt vmcnt({vm.need(("W", 1 if fuse else 0))}) lgkmcnt(0)')
    a('s_barrier')
    st(1); st(4, True)
    a(f's_cmp_lg_u32 s{S_W}, 0\n s_cbranch_scc1 {name}_p3s')
    for w in range(1, 8):
        tb = V_RING + 16 * (w % 4)
        if w <= 4:
            for i in range(4): a(f'ds_read_b128 {vr(V_RING+16*(w%4)+4*i,4)}, v{V_T1} offset:{w*4096 + i*1024}')
    for w in range(1, 8):
        tb = V_RING + 16 * (w % 4)
        later = 4 * (min(7, w + 3) - w)
        a(f's_waitcnt lgkmcnt({later})' if not stamp else 's_waitcnt lgkmcnt(0)')
        for i in range(8): a(f'v_pk_add_f32 {vr(PA+2*i,2)}, {vr(PA+2*i,2)}, {vr(tb+2*i,2)}')
        if w + 4 < 8:
            for i in range(4): a(f'ds_read_b128 {vr(tb+4*i,4)}, v{V_T1} offset:{(w+4)*4096 + i*1024}')
    for i in range(8): a(f'v_cvt_pk_bf16_f32 v{V_STG+i}, v{PA+2*i}, v{PA+2*i+1}')
    a(f'{name}_p3s:')
    a(f's_lshl_b32 s{S_T0}, s2, 11')
    a(f's_add_u32 s{S_T0}, s{S_T0}, {WS_W + 16 * TILE}')
    for ch in range(2):
        emit(f'buffer_store_dwordx4 {vr(V_STG+4*ch,4)}, v{V_W0}, {SRD}, s{S_T0} offen offset:{ch*1024} sc1', 'p3s')
    if stamp: a('s_waitcnt lgkmcnt(0)')

    stream = []
    if fuse:
        for s in range(16):
            for n in range(2):
                for ch in range(2): stream.append((n, 2 * s + ch))
    for n in range(2 if fuse else 0, 8):
        for f in range(32): stream.append((n, f))
    NS = len(stream)
    def rd(G):
        n, f = stream[G]
        b = n % 5
        reg = (V_L16, V_L16, V_RA, V_RA, V_T1)[b]
        off = (b & 1) * TILE + f * 1024 if b < 4 else f * 1024
        return f'ds_read_b128 {vr(V_RING + 4*(G % NR), 4)}, v{reg} offset:{off}'
    def mfmas(G):
        n, f = stream[G]
        ty = seq[n]; s, ch = f >> 1, f & 1
        w = vr(V_RING + 4 * (G % NR), 4)
        out = []
        for rh in range(2):
            x = ar((s * 2 + rh) * 4, 4)
            if ty == 'v':
                d = vr(ACC[ty] + ch * 8 + rh * 4, 4); A, B = x, w
            else:
                d = vr(ACC[ty] + rh * 8 + ch * 4, 4); A, B = w, x
            out.append(f'v_mfma_f32_16x16x32_bf16 {d}, {A}, {B}, {d if s else 0}')
        return out
    pkrot = [0]
    def epilogue(n):
        ty = seq[n]
        acc = ACC[ty]; ops = []
        for o in range(2):
            base = acc + 8 * o
            if ty in 'ug':
                E = range(8)
                for e in E: ops.append((f'v_mul_f32 v{V_Z+e}, v{base+e}, v{base+e}', 1))
                for e in E: ops.append((f'v_fma_f32 v{V_Z+e}, v{V_Z+e}, v{V_C1}, v{V_C0}', 1))
                for e in E: ops.append((f'v_mul_f32 v{V_Z+e}, v{V_Z+e}, v{base+e}', 1))
                for e in E: ops.append((f'v_exp_f32 v{V_Z+e}, v{V_Z+e}', 2))
                for e in E: ops.append((f'v_add_f32 v{V_Z+e}, 1.0, v{V_Z+e}', 1))
                for e in E: ops.append((f'v_rcp_f32 v{V_Z+e}, v{V_Z+e}', 2))
                for e in E: ops.append((f'v_mul_f32 v{base+e}, v{base+e}, v{V_Z+e}', 1))
                if ty == 'g':
                    sreg, qreg = (V_S0, V_Q0) if o == 0 else (V_S1, V_Q1)
                    for e in E:
                        ops.append((f'v_add_f32 v{sreg}, v{sreg}, v{base+e}', 1))
                        ops.append((f'v_fmac_f32 v{qreg}, v{base+e}, v{base+e}', 1))
            pk = V_PK + 4 * (pkrot[0] % 2); pkrot[0] += 1
            for i in range(4): ops.append((f'v_cvt_pk_bf16_f32 v{pk+i}, v{base+2*i}, v{base+2*i+1}', 1))
            ops.append((f's_add_u32 s{S_T0}, s{S_OUT}, {obase[ty]}', 0))
            ops.append((f'buffer_store_dwordx4 {vr(pk,4)}, v{V_ST}, {SRD}, s{S_T0} offen offset:{half[n]*2048 + o*1024} {st_flags}', 1))
        return ops
    def vload(n):
        ops = [(f's_add_u32 s{S_T1}, s{S_WOFF}, {(wbase["v"] + half[n]) * TILE}', None)]
        for i in range(4): ops.append((f'buffer_load_dwordx4 {vr(V_STG+4*i,4)}, v{V_DMA}, {SRD}, s{S_T1} offen offset:{i*1024} sc1', ('VL', n)))
        return ops
    def vwrite(n):
        a(f's_waitcnt vmcnt({vm.need(("VL", n))})')
        b = n % 5
        if b >= 2: a(f'v_add_u32 v{V_T0}, {b*TILE}, v{V_DMA}')
        for i in range(4): emit(f'ds_write_b128 v{V_T0 if b >= 2 else V_DMA}, {vr(V_STG+4*i,4)} offset:{(b*TILE if b < 2 else 0) + i*1024}', ('VW', n))
    for G in range(LA): emit(rd(G), G)
    pend = []
    started = set()
    last_of = {n: max(i for i, (m, f) in enumerate(stream) if m == n) for n in range(8)}
    first_of = {n: min(i for i, (m, f) in enumerate(stream) if m == n) for n in range(8)}
    for G in range(NS):
        n, f = stream[G]
        if G == first_of[n]:
            while any(ACC[seq[t]] == ACC[seq[n]] for (_, _, _, t) in pend):
                _, op, _, _ = pend.pop(0); emit(op)
        w = []
        if n == 0 and f % 2 == 0: w.append(f'vmcnt({vm.need(("X", f | 1))})')
        if G % wait_every == 0: w.append(f'lgkmcnt({min(15, q.need(min(G + wait_every - 1, NS - 1)))})')
        if w: a('s_waitcnt ' + ' '.join(w))
        mm = mfmas(G)
        for h in range(2):
            a(mm[h])
            if h == 0 and G + LA < NS: emit(rd(G + LA), G + LA)
            budget = per_gap
            while pend and pend[0][0] <= 2 * G + h and budget > 0 and (budget >= pend[0][2] or budget == per_gap):
                _, op, c, _ = pend.pop(0); emit(op); budget -= c
            if extra and (h == 1 or (G < 32 and not fuse)):
                o = extra.pop(0); emit(*o)
                while extra and not o[0].startswith('buffer_'):
                    o = extra.pop(0); emit(*o)
        nxt = n + 1 if not (fuse and n < 2) else 2
        if nxt < 8 and G == first_of[nxt] - (32 - bar_pos):
            if seq[nxt] == 'v': a(f's_waitcnt lgkmcnt({min(15, q.need(("VW", nxt)))})')
            else: a(f's_waitcnt vmcnt({vm.need(("W", nxt))})')
            a('s_barrier')
            if nxt == 2:
                assert vm.last['p3s'] < vm.last[('W', 2)]
                a(f's_lshl_b32 s{S_T2}, s2, 2')
                a(f's_add_u32 s{S_T2}, s{S_T2}, {WS_FLAG2}')
                a(f'v_mov_b32 v{V_T0}, 1')
                emit(f'buffer_store_dword v{V_T0}, v{V_T2}, {SRD}, s{S_T2} offen sc1')
                extra = extra + dma(4)
            if nxt == 3:
                a(f's_lshl_b32 s{S_T2}, s{S_CG}, 7')
                a(f's_add_u32 s{S_T2}, s{S_T2}, {WS_FLAG2}')
                emit(f'buffer_load_dword v{V_T2}, v{V_FL}, {SRD}, s{S_T2} offen sc1', 'poll')
                extra = extra + dma(6)
            if nxt == 4:
                a(f's_waitcnt vmcnt({vm.need("poll")})')
                a(f'v_cmp_ne_u32 vcc, 1, v{V_T2}')
                a(f's_cbranch_vccnz {name}_slow')
                a(f'{name}_ok:')
                extra = extra + vload(5)
            if nxt == 5: extra = extra + vload(7)
        if G == first_of[4] + 8: vwrite(5)
        if G == first_of[5] + 8: vwrite(7)
        for m in range(8):
            if G == last_of[m]:
                ep = [(2 * (G + 1) + 6, op, c, m) for op, c in epilogue(m)]
                if seq[m] in 'qv' and fuse and m == 1: pend = ep + pend
                else: pend += ep
    st(2); st(5, True)
    nrem = sum(1 for p in pend if p[3] != 7)
    if nrem < 8: a('s_nop 7')
    for _, op, _, _ in pend: emit(op)
    regs = (V_S0, V_Q0, V_S1, V_Q1)
    for sw in ('v_permlane16_swap_b32', 'v_permlane32_swap_b32'):
        for i, r in enumerate(regs): a(f'v_mov_b32 v{V_Z+i}, v{r}')
        a('s_nop 0')
        for i, r in enumerate(regs): a(f'{sw} v{V_Z+i}, v{r}')
        a('s_nop 0')
        for i, r in enumerate(regs): a(f'v_add_f32 v{r}, v{r}, v{V_Z+i}')
    a('v_cmp_gt_u32 vcc, 16, v0')
    a(f'v_and_b32 v{V_T0}, 0x80000000, v{V_ST}')
    a(f'v_lshl_or_b32 v{V_T0}, v0, 6, v{V_T0}')
    a(f'v_cndmask_b32 v{V_Z}, v{V_S1}, v{V_S0}, vcc')
    a(f'v_cndmask_b32 v{V_Z+1}, v{V_Q1}, v{V_Q0}, vcc')
    a(f's_lshl_b32 s{S_T0}, s{S_BLK}, 11')
    a(f's_lshl_b32 s{S_T1}, s{S_CG}, 3')
    a(f's_add_u32 s{S_T0}, s{S_T0}, s{S_T1}')
    a(f's_add_u32 s{S_T0}, s{S_T0}, {WS_ST}')
    a('s_mov_b64 exec, 0xffffffff')
    a(f'buffer_store_dwordx2 {vr(V_Z,2)}, v{V_T0}, {SRD}, s{S_T0} offen')
    if stamp:
        a('s_waitcnt vmcnt(0)')
        st(3)
        a('s_waitcnt lgkmcnt(0)')
        a(f's_cmp_lg_u32 s{S_W}, 0')
        a(f's_cbranch_scc1 {name}_end')
        a(f's_lshl_b32 s{S_T1}, s2, 6')
        a(f's_add_u32 s{S_T1}, s{S_T1}, {WS_STAMP + 65536}')
        for i in range(12): a(f'v_mov_b32 v{16+i}, s{44+i}')
        a(f'v_mov_b32 v{V_T0}, 0')
        a('s_mov_b64 exec, 1')
        for i in range(3):
            a(f'buffer_store_dwordx4 {vr(16+4*i,4)}, v{V_T0}, {SRD}, s{S_T1} offen offset:{16*i}')
    a('s_endpgm')
    a(f'{name}_slow:')
    a('s_sleep 2')
    a(f'buffer_load_dword v{V_T2}, v{V_FL}, {SRD}, s{S_T2} offen sc1')
    a('s_waitcnt vmcnt(0)')
    a(f'v_cmp_ne_u32 vcc, 1, v{V_T2}')
    a(f's_cbranch_vccnz {name}_slow')
    a(f's_branch {name}_ok')
    a(f'{name}_end:')
    a('s_endpgm')
    kernel_desc(a, name, 256, 64, 128)
```

```python
from asmlib import *
from layout import *
from attn2 import LdsQ
from k2 import f2h, VmQ, code_prefetch

V_DK0, V_DK1, V_DV0, V_DV1, V_KA, V_VA, V_L16, V_L0, V_L1, V_MX, V_F0, V_F1, V_T0, V_T1, V_T2 = range(1, 16)
V_S, V_E, V_P, V_NEGM, V_RING = 16, 32, 48, 56, 64
V_PF, V_PFD, V_XO, V_FL = 116, 117, 118, 119
S_X, S_OUTP, S_WS, S_SRD, S_SRX, S_SRO = 4, 6, 40, 8, 12, 16
(S_KOFF, S_VOFF, S_KDMA, S_VDMA, S_VRD, S_CNT, S_W, S_QB, S_SPLIT, S_T0, S_T1, S_VALID, S_GRP, S_W8K, S_PFOFF, S_T2) = range(20, 36)
S_TILE, S_B125, S_T3, S_T4 = 36, 37, 38, 39
S_WB0, S_WB1, S_WB2, S_WB3, S_UCO, S_WCO, S_FLO, S_PO = range(56, 64)

def Obase(beta, qh): return 128 + 8 * (beta % 16) + 4 * qh
def Oreg(beta, qh): return vr(Obase(beta, qh), 4) if beta < 16 else ar(Obase(beta, qh), 4)

def gen_attn(a, name, dma_gap=3, dma_cost=2, CAP=2, bar_pos=50, NR=13, LA=11, wait_every=4, THR=0x41800000,
             stamp=False, snake=True, prefetch=2, flag_pos=150, pf=True):
    SRD, SRX, SRO = [f's[{b}:{b+3}]' for b in (S_SRD, S_SRX, S_SRO)]
    def st(i, cyc=False):
        if stamp: a(f'{"s_memtime" if cyc else "s_memrealtime"} s[{64+2*i}:{65+2*i}]')
    kernel_begin(a, name)
    a(f's_cmp_ge_u32 s2, 256\n s_cbranch_scc1 {name}_end')
    a(f's_load_dwordx2 s[{S_WS}:{S_WS+1}], s[0:1], 88')
    a(f's_load_dwordx2 s[{S_X}:{S_X+1}], s[0:1], 0')
    a(f's_load_dwordx2 s[{S_OUTP}:{S_OUTP+1}], s[0:1], 72')
    st(0)
    if pf: code_prefetch(a, name, f'{name}_end', 13, 255, 42, 256, 0, 65536)
    a(f'v_lshrrev_b32 v{V_T0}, 6, v0')
    a(f'v_and_b32 v0, 63, v0')
    a(f'v_readfirstlane_b32 s{S_W}, v{V_T0}')
    a(f'v_lshlrev_b32 v{V_L16}, 4, v0')
    a(f's_and_b32 s{S_T0}, s2, 7')
    a(f's_lshr_b32 s{S_T1}, s2, 3')
    a(f's_and_b32 s{S_SPLIT}, s{S_T1}, 3')
    a(f's_lshr_b32 s{S_T1}, s{S_T1}, 2')
    a(f's_lshl_b32 s{S_PFOFF}, s{S_T1}, 2')
    a(f's_and_b32 s{S_TILE}, s{S_T0}, 3')
    a(f's_lshl_b32 s{S_TILE}, s{S_TILE}, 3')
    a(f's_add_u32 s{S_TILE}, s{S_TILE}, s{S_T1}')
    a(f's_lshr_b32 s{S_T0}, s{S_T0}, 2')
    a(f's_lshl_b32 s{S_GRP}, s{S_T0}, 5')
    a(f's_add_u32 s{S_GRP}, s{S_GRP}, s{S_TILE}')
    a(f's_mul_i32 s{S_B125}, s{S_T0}, 125')
    a(f's_lshl_b32 s{S_QB}, s{S_TILE}, 2')
    a(f's_add_u32 s{S_QB}, s{S_QB}, s{S_W}')
    a(f's_cmp_lt_u32 s{S_QB}, 125')
    a(f's_cselect_b32 s{S_VALID}, 0, 0x80000000')
    a(f's_min_u32 s{S_QB}, s{S_QB}, 124')
    a(f's_add_u32 s{S_QB}, s{S_QB}, s{S_B125}')
    a(f's_mul_i32 s{S_T1}, s{S_SPLIT}, 31')
    a(f's_cmp_lg_u32 s{S_SPLIT}, 0')
    a(f's_addc_u32 s{S_T1}, s{S_T1}, s{S_B125}')
    a(f's_cmp_lg_u32 s{S_SPLIT}, 0')
    a(f's_cselect_b32 s{S_CNT}, 29, 30')
    a(f's_lshl_b32 s{S_KOFF}, s{S_T1}, 15')
    a(f's_add_u32 s{S_VOFF}, s{S_KOFF}, {WS_VT}')
    if WS_XA: a(f's_add_u32 s{S_KOFF}, s{S_KOFF}, {WS_XA}')
    a(f's_lshl_b32 s{S_W8K}, s{S_W}, 13')
    a(f'v_add_u32 v{V_DK0}, s{S_W8K}, v{V_L16}')
    a(f'v_add_u32 v{V_DK1}, 4096, v{V_DK0}')
    a(f's_add_u32 s{S_T1}, s{S_W}, s{S_SPLIT}')
    a(f's_and_b32 s{S_T1}, s{S_T1}, 3')
    a(f's_lshl_b32 s{S_T1}, s{S_T1}, 13')
    a(f'v_add_u32 v{V_DV0}, s{S_T1}, v{V_L16}')
    a(f'v_add_u32 v{V_DV1}, 4096, v{V_DV0}')
    a('s_waitcnt lgkmcnt(0)')
    make_srd(a, S_SRD, S_WS, 0, WS_SIZE)
    make_srd(a, S_SRX, S_X, 0, 8192000)
    make_srd(a, S_SRO, S_OUTP, 0, 8192000)
    vm = VmQ()
    def emit(o, tag=None):
        a(o)
        if o.startswith('buffer_'): vm.issue(tag)
    def dma_ops(v0, v1, soff, sbase):
        ops = []
        for g in range(2):
            for i in range(4):
                pre = None
                if i == 0:
                    pre = f's_mov_b32 m0, s{sbase}' if g == 0 else f's_add_u32 m0, s{sbase}, 4096'
                ops.append((pre, f'buffer_load_dwordx4 v{v0 if g == 0 else v1}, {SRD}, s{soff} offen offset:{i*1024} lds'))
        return ops
    def emit_dma_now(tag, *args):
        for pre, op in dma_ops(*args):
            if pre: a(pre); a('s_nop 0')
            emit(op, tag)
    def xreduce(regs, op, tmp):
        for sw in ('v_permlane16_swap_b32', 'v_permlane32_swap_b32'):
            for i, r in enumerate(regs): a(f'v_mov_b32 v{tmp+i}, v{r}')
            if len(regs) < 3: a('s_nop 1')
            else: a('s_nop 0')
            for i, r in enumerate(regs): a(f'{sw} v{tmp+i}, v{r}')
            a('s_nop 1')
            for i, r in enumerate(regs): a(f'{op} v{r}, v{r}, v{tmp+i}')

    GN = 3 * TILE; CV = GN + 40960
    CW, CG, CA = 16, 48, 172
    RG, RS, TMP = 48, 96, 112
    SC = 236
    S_VF = [S_WB0, S_WB1, S_WB2]; S_HB = [S_WB3, S_UCO, S_WCO]
    a(f's_lshl_b32 s{S_T3}, s{S_SPLIT}, 13')
    for rnd in range(3):
        if rnd < 2: a(f's_add_u32 s{S_HB[rnd]}, s{S_W}, {4*rnd}')
        else:
            a(f's_cmp_lt_u32 s{S_W}, 2')
            a(f's_cselect_b32 s{S_T0}, 8, 4')
            a(f's_add_u32 s{S_HB[rnd]}, s{S_W}, s{S_T0}')
        a(f's_lshl_b32 s{S_T0}, s{S_TILE}, 3')
        a(f's_add_u32 s{S_T0}, s{S_T0}, s{S_HB[rnd]}')
        a(f's_sub_u32 s{S_T0}, s{S_T0}, 1')
        a(f's_cmp_lt_u32 s{S_T0}, 250')
        a(f's_cselect_b32 s{S_VF[rnd]}, 1.0, 0')
        a(f's_cselect_b32 s{S_T0}, s{S_T0}, 0')
        a(f's_lshl1_add_u32 s{S_T0}, s{S_B125}, s{S_T0}')
        a(f's_lshl_b32 s{S_T1}, s{S_T0}, 10')
        a(f's_add_u32 s{S_T1}, s{S_T1}, {WS_ST}')
        if rnd == 0:
            a(f'v_and_b32 v{V_T0}, 15, v0')
            a(f'v_lshrrev_b32 v{V_T1}, 4, v0')
            a(f'v_lshlrev_b32 v{V_T2}, 4, v{V_T1}')
            a(f'v_lshl_add_u32 v{V_MX}, v{V_T0}, 6, v{V_T2}')
            a(f'v_lshl_add_u32 v{V_XO}, v{V_T0}, 10, v{V_T2}')
        emit(f'buffer_load_dwordx4 {vr(RS+4*rnd,4)}, v{V_MX}, {SRD}, s{S_T1} offen', ('st', rnd))
        a(f's_lshr_b32 s{S_T1}, s{S_T0}, 1')
        a(f's_lshl_b32 s{S_T1}, s{S_T1}, 15')
        a(f's_and_b32 s{S_T0}, s{S_T0}, 1')
        a(f's_lshl_b32 s{S_T0}, s{S_T0}, 10')
        a(f's_add_u32 s{S_T1}, s{S_T1}, s{S_T0}')
        a(f's_add_u32 s{S_T1}, s{S_T1}, s{S_T3}')
        a(f's_add_u32 s{S_T1}, s{S_T1}, {WS_G}')
        a(f's_add_u32 s{S_T0}, s{S_T1}, 4096')
        for kk in range(4):
            emit(f'buffer_load_dwordx4 {vr(RG+16*rnd+4*kk,4)}, v{V_L16}, {SRD}, s{S_T0 if kk >= 2 else S_T1} offen offset:{(kk&1)*2048}', ('g', rnd))
    a(f's_and_b32 s{S_T4}, s{S_W}, 1')
    a(f's_lshl_b32 s{S_T0}, s{S_SPLIT}, 11')
    a(f's_lshl_b32 s{S_T1}, s{S_T4}, 10')
    a(f's_add_u32 s{S_T0}, s{S_T0}, s{S_T1}')
    a(f's_add_u32 s{S_T0}, s{S_T0}, {WS_DWT}')
    for i in range(8):
        if i: a(f's_add_u32 s{S_T0}, s{S_T0}, 8192')
        emit(f'buffer_load_dwordx4 {vr(CW+4*i,4)}, v{V_L16}, {SRD}, s{S_T0} offen', 'dw')
    a(f's_lshl_b32 s{S_T1}, s{S_T4}, 12')
    a(f's_add_u32 s{S_T3}, s{S_T3}, s{S_T1}')
    a(f's_and_b32 s{S_T2}, s{S_W}, 2')
    for hf in range(2):
        a(f's_lshl_b32 s{S_T0}, s{S_TILE}, 2')
        a(f's_add_u32 s{S_T0}, s{S_T0}, s{S_T2}')
        if hf: a(f's_add_u32 s{S_T0}, s{S_T0}, 1')
        a(f's_min_u32 s{S_T0}, s{S_T0}, 124')
        a(f's_add_u32 s{S_T0}, s{S_T0}, s{S_B125}')
        a(f's_lshl_b32 s{S_T0}, s{S_T0}, 15')
        a(f's_add_u32 s{S_T0}, s{S_T0}, s{S_T3}')
        a(f's_add_u32 s{S_T0}, s{S_T0}, {WS_U}')
        for i in range(4):
            emit(f'buffer_load_dwordx4 {ar(128+16*hf+4*i,4)}, v{V_L16}, {SRD}, s{S_T0} offen offset:{i*1024}', 'u')
    a(f's_lshl_b32 s{S_PO}, s{S_GRP}, 2')
    a(f's_add_u32 s{S_PO}, s{S_PO}, s{S_T2}')
    a(f's_lshl_b32 s{S_PO}, s{S_PO}, 15')
    a(f's_add_u32 s{S_PO}, s{S_PO}, s{S_T3}')
    a(f's_add_u32 s{S_PO}, s{S_PO}, {WS_UC}')
    a(f's_mov_b32 s{S_KDMA}, s{S_W8K}')
    emit_dma_now('K0', V_DK0, V_DK1, S_KOFF, S_KDMA)
    st(10)
    a(f's_waitcnt vmcnt({vm.need(("st", 2))})')
    st(11)
    for r in range(3):
        a(f'v_add_f32 v{RS+4*r}, v{RS+4*r}, v{RS+4*r+2}')
        a(f'v_add_f32 v{RS+4*r+1}, v{RS+4*r+1}, v{RS+4*r+3}')
    xreduce([RS + 4 * r + i for r in range(3) for i in range(2)], 'v_add_f32', TMP)
    for r in range(3):
        a(f'v_mul_f32 v{RS+4*r}, {f2h(1/512)}, v{RS+4*r}')
        a(f'v_mul_f32 v{RS+4*r+2}, v{RS+4*r}, v{RS+4*r}')
        a(f'v_mul_f32 v{RS+4*r+1}, {f2h(1/512)}, v{RS+4*r+1}')
        a(f'v_sub_f32 v{RS+4*r+1}, v{RS+4*r+1}, v{RS+4*r+2}')
        a(f'v_max_f32 v{RS+4*r+1}, 0, v{RS+4*r+1}')
        a(f'v_add_f32 v{RS+4*r+1}, {f2h(1e-5)}, v{RS+4*r+1}')
        a(f'v_rsq_f32 v{RS+4*r+1}, v{RS+4*r+1}')
    a('s_nop 0')
    for r in range(3):
        a(f'v_mul_f32 v{SC+2*r}, s{S_VF[r]}, v{RS+4*r+1}')
        a(f'v_mul_f32 v{SC+2*r+1}, v{SC+2*r}, v{RS+4*r}')
        a(f'v_sub_f32 v{SC+2*r+1}, 0, v{SC+2*r+1}')
    for r in range(3):
        a(f's_lshl_b32 s{S_T0}, s{S_HB[r]}, 12')
        a(f's_add_u32 s{S_T0}, s{S_T0}, {GN}')
        a(f'v_add_u32 v{V_T0}, s{S_T0}, v{V_L16}')
        if r == 2: a(f's_waitcnt vmcnt({vm.need(("g", 2))})')
        for kk in range(4):
            b = RG + 16 * r + 4 * kk
            for i in range(4):
                a(f'v_lshlrev_b32 v{TMP+2*i}, 16, v{b+i}')
                a(f'v_and_b32 v{TMP+2*i+1}, 0xffff0000, v{b+i}')
            for i in range(4):
                a(f'v_pk_fma_f32 {vr(TMP+2*i,2)}, {vr(TMP+2*i,2)}, {vr(SC+2*r,2)}, {vr(SC+2*r,2)} op_sel:[0,0,1] op_sel_hi:[1,0,1]')
            for i in range(4):
                a(f'v_cvt_pk_bf16_f32 v{b+i}, v{TMP+2*i}, v{TMP+2*i+1}')
            a(f'ds_write_b128 v{V_T0}, {vr(b,4)} offset:{kk*1024}')
    a(f's_lshl_b32 s{S_T1}, s{S_QB}, 15')
    a(f's_add_u32 s{S_T1}, s{S_T1}, {WS_Q}')
    for f in range(32):
        if f % 4 == 0 and f: a(f's_add_u32 s{S_T1}, s{S_T1}, 4096')
        emit(f'buffer_load_dwordx4 {ar(4*f,4)}, v{V_L16}, {SRD}, s{S_T1} offen offset:{(f%4)*1024}', ('Q', f))
    a(f's_lshl_b32 s{S_T0}, s{S_T2}, 13')
    a(f's_lshl_b32 s{S_T1}, s{S_T4}, 11')
    a(f's_add_u32 s{S_T0}, s{S_T0}, s{S_T1}')
    a(f's_add_u32 s{S_T0}, s{S_T0}, {GN}')
    a(f'v_lshrrev_b32 v{V_T0}, 4, v0')
    a(f'v_lshlrev_b32 v{V_T0}, 9, v{V_T0}')
    a(f'v_bfe_u32 v{V_T1}, v0, 1, 1')
    a(f'v_lshl_add_u32 v{V_T0}, v{V_T1}, 8, v{V_T0}')
    a(f'v_bfe_u32 v{V_T1}, v0, 2, 2')
    a(f'v_lshl_add_u32 v{V_T0}, v{V_T1}, 4, v{V_T0}')
    a(f'v_and_b32 v{V_T2}, 1, v0')
    a(f'v_lshl_add_u32 v{V_T0}, v{V_T2}, 3, v{V_T0}')
    a(f'v_add_u32 v{V_T0}, s{S_T0}, v{V_T0}')
    a('s_waitcnt lgkmcnt(0)')
    a('s_barrier')
    st(12)
    if stamp: a('s_waitcnt lgkmcnt(0)')
    for n in range(24):
        a(f'ds_read_b64_tr_b16 {vr(CA+2*n,2)}, v{V_T0} offset:{(n>>2)*4096 + (n&3)*64}')
    a(f's_add_u32 s{S_KOFF}, s{S_KOFF}, {TILE}')
    a(f's_add_u32 s{S_KDMA}, s{S_KDMA}, {TILE}')
    a(f's_mul_i32 s{S_T0}, s{S_W}, 5120')
    a(f's_add_u32 s{S_T0}, s{S_T0}, {CV}')
    a(f'v_mul_u32_u24 v{V_F0}, 80, v0')
    a(f'v_add_u32 v{V_F0}, s{S_T0}, v{V_F0}')
    a(f'v_lshrrev_b32 v{V_T2}, 4, v0')
    a(f'v_lshl_add_u32 v{V_T2}, v{V_T2}, 3, v{V_T1}')
    a(f'v_mul_u32_u24 v{V_T2}, 80, v{V_T2}')
    a(f'v_and_b32 v{V_T1}, 3, v0')
    a(f'v_lshl_add_u32 v{V_F1}, v{V_T1}, 3, v{V_T2}')
    a(f'v_add_u32 v{V_F1}, s{S_T0}, v{V_F1}')
    def Gp(tau): return CG + 2 * (tau - 1)
    for n in range(24):
        if n % 4 == 0: a(f's_waitcnt lgkmcnt({min(15, 20 - n)})')
        for e in range(4):
            tau = 4 * n + e
            src = CA + 2 * n + (e >> 1)
            ins = (lambda d: f'v_and_b32 v{d}, 0xffff0000, v{src}') if e & 1 else (lambda d: f'v_lshlrev_b32 v{d}, 16, v{src}')
            if 1 <= tau <= 62: a(ins(Gp(tau)))
            if 33 <= tau <= 94: a(ins(Gp(tau - 32) + 1))
    a(f's_waitcnt vmcnt({vm.need("dw")})')
    st(13)
    later = []
    for pre, op in dma_ops(V_DK0, V_DK1, S_KOFF, S_KDMA): later += ([(pre, None)] if pre else []) + [(op, 'K1')]
    later += [(f's_add_u32 s{S_KOFF}, s{S_KOFF}, {TILE}', None), (f's_add_u32 s{S_VDMA}, s{S_W8K}, {2*TILE}', None)]
    for pre, op in dma_ops(V_DV0, V_DV1, S_VOFF, S_VDMA): later += ([(pre, None)] if pre else []) + [(op, 'V0')]
    cnt = 0
    for i in range(31):
        wsel = i & 1; wp = vr(CW + (i & ~1), 2)
        for t in range(32):
            if i == 0:
                a(f'v_pk_mul_f32 {vr(CA+2*t,2)}, {vr(Gp(t+1),2)}, {wp} op_sel:[0,{wsel}] op_sel_hi:[1,{wsel}]')
            else:
                a(f'v_pk_fma_f32 {vr(CA+2*t,2)}, {vr(Gp(t+i+1),2)}, {wp}, {vr(CA+2*t,2)} op_sel:[0,{wsel},0] op_sel_hi:[1,{wsel},1]')
            cnt += 1
            if i >= 8 and cnt % 8 == 0 and later:
                o, tg = later.pop(0); emit(o, tg)
    assert not later
    a(f's_add_u32 s{S_VOFF}, s{S_VOFF}, {TILE}')
    a(f's_add_u32 s{S_VDMA}, s{S_VDMA}, {TILE}')
    a(f's_mov_b32 s{S_KDMA}, s{S_W8K}')
    a(f's_mov_b32 s{S_VRD}, {2*TILE}')
    st(14)
    if stamp: a('s_waitcnt lgkmcnt(0)')
    PK, TRD = 48, 80
    for hf in range(2):
        for t in range(0, 32, 2):
            a(f'v_cvt_pk_bf16_f32 v{PK+16*hf+t//2}, v{CA+2*t+hf}, v{CA+2*t+2+hf}')
        for i in range(4):
            a(f'ds_write_b128 v{V_F0}, {vr(PK+16*hf+4*i,4)} offset:{16*i}')
        for kk in range(2):
            for th in range(2):
                for jj in range(2):
                    a(f'ds_read_b64_tr_b16 {vr(TRD+16*hf+(kk*2+th)*4+2*jj,2)}, v{V_F1} offset:{kk*2560 + jj*320 + th*32}')
    a(f's_waitcnt vmcnt({vm.need("u")})')
    UT = 128
    for hf in range(2):
        a(f's_waitcnt lgkmcnt({12 if hf == 0 else 0})')
        if hf: a(f's_add_u32 s{S_PO}, s{S_PO}, {TILE}')
        for fr in range(4):
            c = TRD + 16 * hf + 4 * fr
            ub = UT + 20 * (fr & 1)
            for i in range(4): a(f'v_accvgpr_read_b32 v{ub+16+i}, a{128+16*hf+4*fr+i}')
            for i in range(4):
                a(f'v_lshlrev_b32 v{ub+2*i}, 16, v{c+i}')
                a(f'v_and_b32 v{ub+2*i+1}, 0xffff0000, v{c+i}')
            for i in range(4):
                a(f'v_lshlrev_b32 v{ub+8+2*i}, 16, v{ub+16+i}')
                a(f'v_and_b32 v{ub+8+2*i+1}, 0xffff0000, v{ub+16+i}')
            for i in range(4): a(f'v_pk_mul_f32 {vr(ub+2*i,2)}, {vr(ub+2*i,2)}, {vr(ub+8+2*i,2)}')
            for i in range(4): a(f'v_cvt_pk_bf16_f32 v{c+i}, v{ub+2*i}, v{ub+2*i+1}')
            emit(f'buffer_store_dwordx4 {vr(c,4)}, v{V_L16}, {SRD}, s{S_PO} offen offset:{fr*1024} sc1', 'uc')
    st(1)
    if prefetch:
        a(f's_add_u32 s{S_PFOFF}, s{S_PFOFF}, s{S_W}')
        a(f's_and_b32 s{S_T1}, s{S_PFOFF}, 15')
        a(f's_lshl_b32 s{S_T1}, s{S_T1}, 11')
        a(f's_cmp_ge_u32 s{S_PFOFF}, 16')
        a(f's_cselect_b32 s{S_PFOFF}, {WS_VT - WS_XA - TILE}, 0')
        a(f's_add_u32 s{S_T1}, s{S_T1}, s{S_PFOFF}')
        a(f's_add_u32 s{S_T1}, s{S_T1}, {prefetch * TILE}')
        a(f'v_lshlrev_b32 v{V_PF}, 5, v0')
        a(f'v_add_u32 v{V_PF}, s{S_T1}, v{V_PF}')
    a(f'v_and_b32 v{V_T0}, 15, v0')
    a(f'v_lshrrev_b32 v{V_T1}, 4, v0')
    a(f'v_lshlrev_b32 v{V_T2}, 4, v{V_T1}')
    a(f'v_lshl_add_u32 v{V_XO}, v{V_T0}, 10, v{V_T2}')
    a(f'v_mov_b32 v{V_KA}, v{V_L16}')
    a(f'v_add_u32 v{V_VA}, s{S_VRD}, v{V_L16}')
    a(f'v_mov_b32 v{V_L0}, 0')
    a(f'v_mov_b32 v{V_L1}, 0')
    nround = -(-64 // NR)
    sizes = [64 // nround + (1 if i < 64 % nround else 0) for i in range(nround)]
    slotmap = [i for sz in sizes for i in range(sz)]
    assert LA + 1 <= min(sizes) and max(sizes) <= NR and V_RING + 4 * NR <= V_PF
    def slot(f): return V_RING + 4 * slotmap[f % 64]
    def rd(f):
        if f < 32: return f'ds_read_b128 {vr(slot(f),4)}, v{V_KA} offset:{f*1024}'
        return f'ds_read_b128 {vr(slot(f),4)}, v{V_VA} offset:{(f-32)*1024}'
    def Sreg(kh, qh): return V_S + (kh * 2 + qh) * 4
    def mfmas(f, zero_c=False):
        order = (1, 0) if (snake and (f & 1)) else (0, 1)
        out = []
        for qh in order:
            if f < 32:
                s, kh = f >> 1, f & 1
                c = vr(Sreg(kh, qh), 4) if s else ('0' if zero_c else vr(V_NEGM + 4 * qh, 4))
                out.append(f'v_mfma_f32_16x16x32_bf16 {vr(Sreg(kh,qh),4)}, {vr(slot(f),4)}, {ar((s*2+qh)*4,4)}, {c}')
            else:
                b = f - 32
                out.append(f'v_mfma_f32_16x16x32_bf16 {Oreg(b,qh)}, {vr(slot(f),4)}, {vr(V_P+4*qh,4)}, {Oreg(b,qh)}')
        return out
    a(f's_waitcnt vmcnt({vm.need(("Q", 31))})')
    a('s_barrier')
    q = LdsQ()
    zero = [f'v_mov_b32 v{128+i}, 0' for i in range(128)] + [f'v_accvgpr_write_b32 a{128+i}, 0' for i in range(128)]
    for f in range(LA):
        a(rd(f)); q.issue(f)
    for f in range(32):
        a(f's_waitcnt lgkmcnt({q.need(f)})')
        for m in mfmas(f, zero_c=True):
            a(m)
            for _ in range(2): a(zero.pop(0))
        if f + LA < 32:
            a(rd(f + LA)); q.issue(f + LA)
    for _ in range(10): a(zero.pop(0))
    def max_all():
        ops = [f'v_max3_f32 v{V_MX}, v{V_S}, v{V_S+1}, v{V_S+2}']
        for i in range(6): ops.append(f'v_max3_f32 v{V_MX}, v{V_MX}, v{V_S+3+2*i}, v{V_S+4+2*i}')
        ops.append(f'v_max_f32 v{V_MX}, v{V_MX}, v{V_S+15}')
        return ops
    def rowmax2(d0, d1, tmp):
        for qh, dst in ((0, d0), (1, d1)):
            r0, r1 = Sreg(0, qh), Sreg(1, qh)
            a(f'v_max3_f32 v{dst}, v{r0}, v{r0+1}, v{r0+2}')
            a(f'v_max3_f32 v{dst}, v{dst}, v{r0+3}, v{r1}')
            a(f'v_max3_f32 v{dst}, v{dst}, v{r1+1}, v{r1+2}')
            a(f'v_max_f32 v{dst}, v{dst}, v{r1+3}')
        xreduce([d0, d1], 'v_max_f32', tmp)
    exp_ops = [f'v_exp_f32 v{V_E+i}, v{V_S+i}' for i in range(16)]
    sum_ops = [f'v_add_f32 v{V_L1 if (i >> 2) & 1 else V_L0}, v{V_L1 if (i >> 2) & 1 else V_L0}, v{V_E+i}' for i in range(16)]
    cvt_ops = []
    for qh in range(2):
        for kh in range(2):
            e = V_E + (kh * 2 + qh) * 4
            for i in range(2):
                cvt_ops.append(f'v_cvt_pk_bf16_f32 v{V_P+4*qh+2*kh+i}, v{e+2*i}, v{e+2*i+1}')
    rowmax2(V_F0, V_F1, 120)
    for qh, dst in ((0, V_F0), (1, V_F1)):
        for kh in range(2):
            for i in range(4): a(f'v_sub_f32 v{Sreg(kh,qh)+i}, v{Sreg(kh,qh)+i}, v{dst}')
        for i in range(4): a(f'v_sub_f32 v{V_NEGM+4*qh+i}, 0, v{dst}')
    for o in exp_ops: a(o)
    for o in zero: a(o)
    a(f'v_xor_b32 v{V_KA}, 0x8000, v{V_KA}')
    a(f's_lshl_b32 s{S_FLO}, s{S_GRP}, 9')
    a(f's_add_u32 s{S_FLO}, s{S_FLO}, {WS_FLAG}')
    a(f'v_and_b32 v{V_FL}, 3, v0')
    a(f'v_lshlrev_b32 v{V_FL}, 7, v{V_FL}')
    a('s_waitcnt vmcnt(0)')
    a('s_barrier')
    def flag_store(off):
        lab = a.label(name + '_fs')
        a(f's_cmp_lg_u32 s{S_W}, 0')
        a(f's_cbranch_scc1 {lab}')
        a(f's_lshl_b32 s{S_T3}, s{S_SPLIT}, 7')
        a(f's_add_u32 s{S_T3}, s{S_T3}, s{S_FLO}')
        a(f'v_mov_b32 v{V_T0}, 0\n v_mov_b32 v{V_T1}, 1')
        a('s_mov_b64 exec, 1')
        a(f'buffer_store_dword v{V_T1}, v{V_T0}, {SRD}, s{S_T3} offen offset:{off} sc1')
        a('s_mov_b64 exec, -1')
        a(f'{lab}:')
    flag_store(0)
    st(2); st(8, True)
    if stamp: a('s_waitcnt lgkmcnt(0)')
    q = LdsQ()
    for f in range(LA):
        a(rd(f)); q.issue(f)

    L_loop = f'{name}_loop'
    rare = []
    def body(last):
        tag = 'L' if last else 'M'
        L_r1, L_r1b, L_r2, L_r2b = [f'{name}_{x}{tag}' for x in ('r1', 'r1b', 'r2', 'r2b')]
        rare.append((L_r1, L_r1b, L_r2, L_r2b))
        fill = [[] for _ in range(128)]
        cap = [CAP - 1 if p % 2 == 0 else CAP for p in range(128)]
        for p in range(128):
            if p % 2 == 1 and ((p + 1) // 2) % wait_every == 0: cap[p] -= 1
        cap[127] -= 3
        def put(pos, ops, cost):
            if isinstance(ops, str): ops = [ops]
            while cap[pos] < cost: pos += 1
            cap[pos] -= cost
            fill[pos] += ops
            return pos
        if not last:
            pb = put(2 * bar_pos + 1, [f's_waitcnt vmcnt({1 if prefetch else 0})', 's_barrier'], 2)
            assert pb < 2 * (64 - LA)
        dm = dma_ops(V_DK0, V_DK1, S_WCO if last else S_KOFF, S_KDMA) + dma_ops(V_DV0, V_DV1, S_VOFF, S_VDMA)
        p = 0
        if last:
            p = put(p, f'buffer_load_dword v{V_PFD}, v{V_FL}, {SRD}, s{S_FLO} offen sc1', dma_cost) + 1
        for pre, op in dm:
            if pre: p = put(p, pre, 1) + 1
            p = put(p, op, dma_cost) + dma_gap
        if prefetch and not last:
            p = put(p, f'buffer_load_dword v{V_PFD}, v{V_PF}, {SRD}, s{S_KOFF} offen', dma_cost) + 1
        pdma = p
        if last:
            lab = f'{name}_cfok'
            p = put(max(64, pdma - dma_gap + 1), ['s_waitcnt vmcnt(16)', f'v_cmp_ne_u32 s[{S_T3}:{S_T3+1}], 1, v{V_PFD}'], 2) + 2
            p = put(p, [f's_cmp_eq_u64 s[{S_T3}:{S_T3+1}], 0', f's_cbranch_scc0 {name}_cfslow', f'{lab}:'], 2) + 1
            pu = p
        else:
            assert pdma <= pb
        p = 68
        for o in max_all(): p = put(p, o, 1)
        p = put(p, f'v_cmp_lt_f32 vcc, {hex(THR)}, v{V_MX}', 1) + 1
        p = put(p, [f's_cbranch_vccnz {L_r1}', f'{L_r1b}:'], 1) + 1
        for i, o in enumerate(exp_ops): p = put(p, o, 2)
        p = 0
        for o in cvt_ops: p = put(p, o, 1)
        for o in sum_ops: p = put(p, o, 1)
        assert p < 60
        upd = [f's_add_u32 s{S_KOFF}, s{S_KOFF}, {TILE}',
               f's_add_u32 s{S_VOFF}, s{S_VOFF}, {TILE}',
               f's_xor_b32 s{S_KDMA}, s{S_KDMA}, {TILE}',
               f's_add_u32 s{S_VDMA}, s{S_VDMA}, {TILE}',
               f's_cmp_ge_u32 s{S_VDMA}, {5*TILE}', f's_cselect_b32 s{S_T1}, {3*TILE}, 0',
               f's_sub_u32 s{S_VDMA}, s{S_VDMA}, s{S_T1}',
               f's_add_u32 s{S_VRD}, s{S_VRD}, {TILE}',
               f's_cmp_ge_u32 s{S_VRD}, {5*TILE}', f's_cselect_b32 s{S_VRD}, {2*TILE}, s{S_VRD}',
               f's_sub_u32 s{S_CNT}, s{S_CNT}, 1']
        if not last:
            p = pdma
            for o in upd: p = put(p, o, 1)
            put(2 * (32 - LA) + 1, f'v_xor_b32 v{V_KA}, 0x8000, v{V_KA}', 1)
            put(max(p + 1, 2 * (64 - LA) + 1), f'v_add_u32 v{V_VA}, s{S_VRD}, v{V_L16}', 1)
        else:
            p = pu
            for f in range(32):
                if f % 4 == 0 and f: fill[p].append(f's_add_u32 s{S_UCO}, s{S_UCO}, 4096')
                fill[p].append(f'buffer_load_dwordx4 {ar(4*f,4)}, v{V_L16}, {SRD}, s{S_UCO} offen offset:{(f%4)*1024} sc1')
                p += 1 if p % 2 else 2
                if p > 126: p = 126
        for f in range(64):
            if f % wait_every == 0:
                a(f's_waitcnt lgkmcnt({q.need(min(f + wait_every - 1, 63))})')
            mm = mfmas(f)
            a(mm[0])
            nf = f + LA
            if nf < 64 or not last:
                a(rd(nf % 64)); q.issue(nf % 64)
            for o in fill[2 * f]: a(o)
            a(mm[1])
            for o in fill[2 * f + 1]: a(o)
        a(f's_cbranch_vccnz {L_r2}')
        a(f'{L_r2b}:')
    a(f's_lshl_b32 s{S_WCO}, s{S_SPLIT}, 17')
    a(f's_add_u32 s{S_WCO}, s{S_WCO}, {WS_WC}')
    a(f's_lshl_b32 s{S_UCO}, s{S_GRP}, 2')
    a(f's_add_u32 s{S_UCO}, s{S_UCO}, s{S_W}')
    a(f's_lshl_b32 s{S_UCO}, s{S_UCO}, 15')
    a(f's_add_u32 s{S_UCO}, s{S_UCO}, {WS_UC}')
    a('.p2align 6')
    a(f'{L_loop}:')
    body(False)
    a(f's_cmp_lg_u32 s{S_CNT}, 0')
    a(f's_cbranch_scc1 {L_loop}')
    st(3); st(9, True)
    if stamp: a('s_waitcnt lgkmcnt(0)')
    body(True)
    vm = VmQ()
    for f in range(32): vm.issue(('uc', f))
    a(f's_sub_u32 s{S_WB0}, s{S_KDMA}, s{S_W8K}')
    a(f's_xor_b32 s{S_WB1}, s{S_WB0}, {TILE}')
    a(f's_mov_b32 s{S_WB2}, s{S_VRD}')
    a(f's_sub_u32 s{S_T0}, s{S_VDMA}, s{S_W8K}')
    a(f's_add_u32 s{S_WB3}, s{S_WB2}, s{S_T0}')
    a(f's_sub_u32 s{S_WB3}, {9*TILE}, s{S_WB3}')
    a(f'v_add_u32 v{V_VA}, s{S_T0}, v{V_L16}')
    st(15)
    a('s_waitcnt vmcnt(32) lgkmcnt(0)')
    a('s_barrier')
    border = list(range(8, 32)) + list(range(8))
    YB = 192
    stream = [('pv', b) for b in border] + [('yc', T, f) for T in range(4) for f in range(32)]
    NS = len(stream)
    WA = [V_KA, V_DV0, V_DV1, V_PF]
    def sslot(i): return V_RING + 4 * (i % NR)
    def srd_(i):
        it = stream[i]
        if it[0] == 'pv': return f'ds_read_b128 {vr(sslot(i),4)}, v{V_VA} offset:{it[1]*1024}'
        return f'ds_read_b128 {vr(sslot(i),4)}, v{WA[it[1]]} offset:{it[2]*1024}'
    def smf(i):
        it = stream[i]; out = []
        for qh in range(2):
            if it[0] == 'pv':
                out.append(f'v_mfma_f32_16x16x32_bf16 {Oreg(it[1],qh)}, {vr(sslot(i),4)}, {vr(V_P+4*qh,4)}, {Oreg(it[1],qh)}')
            else:
                T, f = it[1], it[2]; s, ch = f >> 1, f & 1
                d = vr(YB + 8 * (2 * T + ch) + 4 * qh, 4)
                out.append(f'v_mfma_f32_16x16x32_bf16 {d}, {vr(sslot(i),4)}, {ar((s*2+qh)*4,4)}, {d if s else 0}')
        return out
    q = LdsQ()
    for i in range(LA):
        a(srd_(i)); q.issue(i)
    for o in cvt_ops: a(o)
    for o in sum_ops: a(o)
    for i, sb in enumerate((S_WB0, S_WB1, S_WB2, S_WB3)):
        a(f'v_add_u32 v{WA[i]}, s{sb}, v{V_L16}')
    xreduce([V_L0, V_L1], 'v_add_f32', 124)
    a(f'v_mov_b32 v120, v{V_L0}')
    a(f'v_sub_f32 v121, 0, v{V_NEGM}')
    a(f'v_mov_b32 v122, v{V_L1}')
    a(f'v_sub_f32 v123, 0, v{V_NEGM+4}')
    a(f's_lshl_b32 s{S_T0}, s{S_GRP}, 2')
    a(f's_add_u32 s{S_T1}, s{S_T0}, s{S_SPLIT}')
    a(f's_lshl_b32 s{S_T1}, s{S_T1}, 2')
    a(f's_add_u32 s{S_T1}, s{S_T1}, s{S_W}')
    a(f's_lshl_b32 s{S_T1}, s{S_T1}, 10')
    a(f's_add_u32 s{S_T1}, s{S_T1}, {WS_ML}')
    emit(f'buffer_store_dwordx4 v[120:123], v{V_L16}, {SRD}, s{S_T1} offen sc1', 'ml')
    pend = []
    dq = []
    for T in range(1, 4):
        dq.append((f's_add_u32 s{S_WCO}, s{S_WCO}, {TILE}', None))
        dq.append((f's_add_u32 s{S_T2}, s{(S_WB0, S_WB1, S_WB2, S_WB3)[T]}, s{S_W8K}', None))
        for pre, op in dma_ops(V_DK0, V_DK1, S_WCO, S_T2):
            if pre: dq.append((pre, None)); dq.append(('s_nop 0', None))
            dq.append((op, ('wc', T)))
    rot = 0
    for qd in range(1, 4):
        hdr = [f's_add_u32 s{S_PO}, s{S_SPLIT}, {qd}', f's_and_b32 s{S_PO}, s{S_PO}, 3', f's_add_u32 s{S_PO}, s{S_PO}, s{S_T0}',
               f's_mul_i32 s{S_PO}, s{S_PO}, {3*32768}', f's_add_u32 s{S_PO}, s{S_PO}, s{S_W8K}', f's_add_u32 s{S_PO}, s{S_PO}, {WS_PART + (qd-1)*32768}']
        for gm in range(4):
            for qh in range(2):
                b0 = 8 * qd + 2 * gm
                ready = 2 * (border.index(b0 + 1) + 1) + 6
                idx = gm * 2 + qh
                if idx == 0:
                    for h in hdr: pend.append((ready, h, 1, None))
                if idx == 4: pend.append((ready, f's_add_u32 s{S_PO}, s{S_PO}, 4096', 1, None))
                tb = V_S + 12 * (rot % 2); pk = 40 + 4 * (rot % 2); rot += 1
                srcs = []
                for b in range(2):
                    for r in range(4):
                        o = Obase(b0 + b, qh) + r
                        if qd == 1: srcs.append(o)
                        else:
                            pend.append((ready, f'v_accvgpr_read_b32 v{tb+4*b+r}, a{o}', 1, None)); srcs.append(tb + 4 * b + r)
                for r in range(4): pend.append((ready, f'v_cvt_pk_bf16_f32 v{pk+r}, v{srcs[2*r]}, v{srcs[2*r+1]}', 1, None))
                pend.append((ready, f'buffer_store_dwordx4 {vr(pk,4)}, v{V_L16}, {SRD}, s{S_PO} offen offset:{(idx%4)*1024} sc1', 2, 'part'))
    n_q1 = max(i for i, p in enumerate(pend) if 'v_cvt_pk' in p[1] and int(p[1].split('v')[-1]) >= 192) + 1
    xl = [(0, f's_lshl_b32 s{S_T4}, s{S_QB}, 15', 1, None), (0, f's_lshl_b32 s{S_T1}, s{S_SPLIT}, 8', 1, None),
          (0, f's_add_u32 s{S_T4}, s{S_T4}, s{S_T1}', 1, None), (0, f's_add_u32 s{S_T1}, s{S_T4}, 16384', 1, None), (0, 's_nop 1', 1, None)]
    for gm in range(4):
        for qh in range(2):
            xl.append((0, f'buffer_load_dwordx4 {vr(V_S+(gm*2+qh)*4,4)}, v{V_XO}, {SRX}, s{S_T1 if qh else S_T4} offen offset:{gm*64}', 2, 'x'))
    pend += xl
    done_ct = 0
    flagged = False
    for i in range(NS):
        it = stream[i]
        w = []
        if it[0] == 'yc' and it[1] == 0 and it[2] == 0:
            while done_ct < n_q1:
                _, op, _, tg = pend.pop(0); emit(op, tg); done_ct += 1
        if it[0] == 'yc' and it[1] == 0 and it[2] % 2 == 0: w.append(f'vmcnt({min(63, vm.need(("uc", it[2] | 1)))})')
        if i % 2 == 0: w.append(f'lgkmcnt({q.need(min(i + 1, NS - 1))})')
        if w: a('s_waitcnt ' + ' '.join(w))
        mm = smf(i)
        for h in range(2):
            a(mm[h])
            budget = 2
            if h == 0 and i + LA < NS:
                nx = stream[i + LA]
                if nx[0] == 'yc' and nx[2] == 0 and nx[1] == 1:
                    assert not dq
                    a(f's_waitcnt vmcnt({min(63, vm.need(("wc", 3)))})')
                    a('s_barrier')
                a(srd_(i + LA)); q.issue(i + LA); budget = 1
            if dq and h == 1:
                o = dq.pop(0); emit(*o)
                while dq and not o[0].startswith('buffer_'):
                    o = dq.pop(0); emit(*o)
                budget = 0
            while pend and pend[0][0] <= 2 * i + h and budget > 0:
                _, op, c, tg = pend.pop(0); emit(op, tg); budget -= c; done_ct += 1
            if 2 * i + h >= flag_pos and not flagged and not any(p[3] == 'part' for p in pend) and h == 1:
                if not hasattr(vm, 'lastpart'): vm.lastpart = 2 * i + h
                if 2 * i + h >= vm.lastpart + 60:
                    a(f's_waitcnt vmcnt({vm.need("part")})')
                    a('s_barrier')
                    flag_store(4)
                    flagged = True
                    st(4)
    assert flagged and not pend
    st(5)
    a('s_waitcnt vmcnt(0)')
    a('s_nop 7')
    for gm in range(4):
        for qh in range(2):
            xb = V_S + (gm * 2 + qh) * 4
            for i in range(4):
                a(f'v_lshlrev_b32 v{64+2*i}, 16, v{xb+i}')
                a(f'v_and_b32 v{64+2*i+1}, 0xffff0000, v{xb+i}')
            for i in range(4):
                y = YB + 8 * (2 * gm + (i >> 1)) + 4 * qh + 2 * (i & 1)
                a(f'v_pk_add_f32 {vr(y,2)}, {vr(y,2)}, {vr(64+2*i,2)}')
    a(f'{name}_poll:')
    a(f'buffer_load_dword v{V_PFD}, v{V_FL}, {SRD}, s{S_FLO} offen offset:4 sc1')
    a('s_waitcnt vmcnt(0)')
    a(f'v_cmp_ne_u32 vcc, 1, v{V_PFD}')
    a(f's_cbranch_vccz {name}_polled')
    a('s_sleep 2')
    a(f's_branch {name}_poll')
    a(f'{name}_polled:')
    st(6)
    vm = VmQ()
    ST = 112
    STR = [112, 124, 8]
    for k in range(3):
        a(f's_sub_u32 s{S_T1}, s{S_SPLIT}, {k+1}')
        a(f's_and_b32 s{S_T1}, s{S_T1}, 3')
        a(f's_add_u32 s{S_T1}, s{S_T1}, s{S_T0}')
        a(f's_lshl_b32 s{S_T1}, s{S_T1}, 2')
        a(f's_add_u32 s{S_T1}, s{S_T1}, s{S_W}')
        a(f's_lshl_b32 s{S_T1}, s{S_T1}, 10')
        a(f's_add_u32 s{S_T1}, s{S_T1}, {WS_ML}')
        emit(f'buffer_load_dwordx4 {vr(STR[k],4)}, v{V_L16}, {SRD}, s{S_T1} offen sc1', 'pst')
    a(f's_add_u32 s{S_PO}, s{S_T0}, s{S_SPLIT}')
    a(f's_mul_i32 s{S_PO}, s{S_PO}, {3*32768}')
    a(f's_add_u32 s{S_PO}, s{S_PO}, s{S_W8K}')
    a(f's_add_u32 s{S_PO}, s{S_PO}, {WS_PART}')
    for h4 in range(2):
        for k in range(3):
            a(f's_add_u32 s{S_T1}, s{S_PO}, {k*32768 + h4*4096}')
            for i in range(4):
                idx = h4 * 4 + i
                emit(f'buffer_load_dwordx4 {vr(16+(idx*3+k)*4,4)}, v{V_L16}, {SRD}, s{S_T1} offen offset:{i*1024} sc1', ('p', idx, k))
    a(f's_waitcnt vmcnt({vm.need("pst")})')
    allst = [120] + STR
    for qh in range(2):
        t = V_T0 + qh
        a(f'v_max3_f32 v{t}, v{allst[0]+2*qh+1}, v{allst[1]+2*qh+1}, v{allst[2]+2*qh+1}')
        a(f'v_max_f32 v{t}, v{t}, v{allst[3]+2*qh+1}')
    for qh in range(2):
        for b in allst: a(f'v_sub_f32 v{b+2*qh+1}, v{b+2*qh+1}, v{V_T0+qh}')
    for qh in range(2):
        for b in allst: a(f'v_exp_f32 v{b+2*qh+1}, v{b+2*qh+1}')
    for qh in range(2):
        a(f'v_mul_f32 v{V_T0+qh}, v{allst[0]+2*qh}, v{allst[0]+2*qh+1}')
    for b in allst[1:]:
        for qh in range(2): a(f'v_fmac_f32 v{V_T0+qh}, v{b+2*qh}, v{b+2*qh+1}')
    for qh in range(2): a(f'v_rcp_f32 v{V_T0+qh}, v{V_T0+qh}')
    a('s_nop 0')
    for qh in range(2):
        for b in allst: a(f'v_mul_f32 v{b+2*qh+1}, v{b+2*qh+1}, v{V_T0+qh}')
    for beta in range(8):
        for qh in range(2):
            for i in range(2):
                y = YB + 8 * beta + 4 * qh + 2 * i; o = 128 + 8 * beta + 4 * qh + 2 * i
                a(f'v_pk_fma_f32 {vr(y,2)}, {vr(o,2)}, {vr(120+2*qh,2)}, {vr(y,2)} op_sel:[0,1,0] op_sel_hi:[1,1,1]')
    a(f'v_or_b32 v{V_XO}, s{S_VALID}, v{V_XO}')
    a(f's_add_u32 s{S_T1}, s{S_T4}, 16384')
    for idx in range(8):
        gm, qh = idx >> 1, idx & 1
        if idx % 4 in (0, 1, 2, 3): a(f's_waitcnt vmcnt({vm.need(("p", idx, 2))})')
        for k in range(3):
            pb = 16 + (idx * 3 + k) * 4
            ub = 128 + 8 * k
            for i in range(4):
                a(f'v_lshlrev_b32 v{ub+2*i}, 16, v{pb+i}')
                a(f'v_and_b32 v{ub+2*i+1}, 0xffff0000, v{pb+i}')
            for i in range(4):
                y = YB + 8 * (2 * gm + (i >> 1)) + 4 * qh + 2 * (i & 1)
                a(f'v_pk_fma_f32 {vr(y,2)}, {vr(ub+2*i,2)}, {vr(STR[k]+2*qh,2)}, {vr(y,2)} op_sel:[0,1,0] op_sel_hi:[1,1,1]')
        ob = 160 + 4 * idx
        for i in range(4):
            y = YB + 8 * (2 * gm + (i >> 1)) + 4 * qh + 2 * (i & 1)
            a(f'v_cvt_pk_bf16_f32 v{ob+i}, v{y}, v{y+1}')
        emit(f'buffer_store_dwordx4 {vr(ob,4)}, v{V_XO}, {SRO}, s{S_T1 if qh else S_T4} offen offset:{gm*64}')
    if stamp:
        a('s_waitcnt vmcnt(0)')
        st(7)
        a('s_waitcnt lgkmcnt(0)')
        a(f's_cmp_lg_u32 s{S_W}, 0')
        a(f's_cbranch_scc1 {name}_end')
        a(f's_lshl_b32 s{S_T1}, s2, 7')
        a(f's_add_u32 s{S_T1}, s{S_T1}, {WS_STAMP}')
        for i in range(32): a(f'v_mov_b32 v{16+i}, s{64+i}')
        a(f'v_mov_b32 v{V_T0}, 0')
        a('s_mov_b64 exec, 1')
        for i in range(8):
            a(f'buffer_store_dwordx4 {vr(16+4*i,4)}, v{V_T0}, {SRD}, s{S_T1} offen offset:{16*i}')
    a(f'{name}_end:')
    a('s_endpgm')
    a(f'{name}_cfslow:')
    a('s_sleep 2')
    a(f'buffer_load_dword v{V_PFD}, v{V_FL}, {SRD}, s{S_FLO} offen sc1')
    a('s_waitcnt vmcnt(0)')
    a(f'v_cmp_ne_u32 s[{S_T3}:{S_T3+1}], 1, v{V_PFD}')
    a('s_nop 3')
    a(f's_cmp_eq_u64 s[{S_T3}:{S_T3+1}], 0')
    a(f's_cbranch_scc0 {name}_cfslow')
    a(f's_branch {name}_cfok')
    for (L_r1, L_r1b, L_r2, L_r2b) in rare:
        a(f'{L_r1}:')
        rowmax2(V_T1, V_T2, 120)
        for qh, dst in ((0, V_T1), (1, V_T2)):
            a(f'v_max_f32 v{dst}, 0, v{dst}')
            fr = V_F1 if qh else V_F0
            a(f'v_sub_f32 v{fr}, 0, v{dst}')
            a(f'v_exp_f32 v{fr}, v{fr}')
            for kh in range(2):
                for i in range(4): a(f'v_sub_f32 v{Sreg(kh,qh)+i}, v{Sreg(kh,qh)+i}, v{dst}')
            for i in range(4): a(f'v_sub_f32 v{V_NEGM+4*qh+i}, v{V_NEGM+4*qh+i}, v{dst}')
            l = V_L1 if qh else V_L0
            a(f'v_mul_f32 v{l}, v{l}, v{fr}')
        a(f's_branch {L_r1b}')
        a(f'{L_r2}:')
        a('s_nop 7')
        for beta in range(32):
            for qh in range(2):
                fr = V_F1 if qh else V_F0
                b = Obase(beta, qh)
                if beta < 16:
                    for r in range(4): a(f'v_mul_f32 v{b+r}, v{b+r}, v{fr}')
                else:
                    for r in range(4): a(f'v_accvgpr_read_b32 v{120+r}, a{b+r}')
                    for r in range(4): a(f'v_mul_f32 v{120+r}, v{120+r}, v{fr}')
                    for r in range(4): a(f'v_accvgpr_write_b32 a{b+r}, v{120+r}')
        a(f's_branch {L_r2b}')
    a('code_end:')
    a('s_endpgm')
    kernel_desc(a, name, 512, 100, 256)
```

```python
from asmlib import *
from layout import *
from attn2 import LdsQ
from k2 import f2h

N_PREP_WG = 256
PREP_LDS = 163840

def gen_prep(a, name, stamp=False, code_bytes=131072, st_flags='', lnw=0, stw=4, gl=3):
    V_L16, V_T0, V_T1, V_T2, V_T3, V_TR, V_DT, V_LR, V_LS = range(1, 10)
    V_SW, V_AR, V_BR = 10, 20, 24
    V_ACC, V_PK, V_RA, V_RB = 32, 48, 64, 96
    RAW, F, SUM, MEAN, RSTD = 64, 96, 28, 18, 56
    P_X, P_WQ, P_WK, P_WV, P_AO, P_UP, P_DW, P_DN, P_MG, P_OUT, P_DBG, P_WS = [4 + 2 * i for i in range(12)]
    S_SW, S_SA, S_SB, S_SX = 28, 32, 36, 40
    S_W, S_TI, S_TJ, S_T0, S_T1, S_T2, S_OO, S_ROLE, S_BLK, S_RB, S_CB, S_LN = range(44, 56)
    SW, SA, SB, SX = [f's[{b}:{b+3}]' for b in (S_SW, S_SA, S_SB, S_SX)]
    LA_, LB_ = 32768, 98304
    def st(i, cyc=False):
        if stamp: a(f'{"s_memtime" if cyc else "s_memrealtime"} s[{60+2*i}:{61+2*i}]')
    kernel_begin(a, name)
    a(f's_cmp_ge_u32 s2, {N_PREP_WG}\n s_cbranch_scc1 {name}_end')
    a('s_load_dwordx16 s[4:19], s[0:1], 0')
    a('s_load_dwordx8 s[20:27], s[0:1], 64')
    if stamp:
        for i in range(60, 76): a(f's_mov_b32 s{i}, 0')
    st(0); st(6, True)
    if code_bytes:
        lab = f'{name}_nopf'
        a(f's_cmp_lt_u32 s2, 248\n s_cbranch_scc1 {lab}')
        a(f's_getpc_b64 s[56:57]')
        a(f'{name}_pc:')
        a(f's_sub_u32 s56, s56, {name}_pc-{name}')
        a(f's_subb_u32 s57, s57, 0')
        a(f'v_lshlrev_b32 v{V_T0}, 7, v0')
        for i in range(-(-code_bytes // 65536)):
            a(f'v_min_u32 v{V_T1}, code_end-{name}-4, v{V_T0}')
            a(f'global_load_dword v{120+i}, v{V_T1}, s[56:57]')
            a(f'v_add_u32 v{V_T0}, 65536, v{V_T0}')
        a(f'{lab}:')
    a(f'v_lshrrev_b32 v{V_T0}, 6, v0')
    a(f'v_and_b32 v0, 63, v0')
    a(f'v_readfirstlane_b32 s{S_W}, v{V_T0}')
    a(f'v_lshlrev_b32 v{V_L16}, 4, v0')
    a(f's_lshr_b32 s{S_LN}, s{S_W}, 2')
    a(f's_and_b32 s{S_W}, s{S_W}, 3')
    a(f's_and_b32 s{S_RB}, s{S_W}, 1')
    a(f's_lshr_b32 s{S_CB}, s{S_W}, 1')
    a(f'v_and_b32 v{V_T0}, 7, v0')
    a(f'v_lshrrev_b32 v{V_T1}, 3, v0')
    a(f's_cmp_eq_u32 s{S_LN}, {1 - lnw}\n s_cbranch_scc1 {name}_role')
    a(f's_and_b32 s{S_T0}, s2, 7')
    a(f's_lshr_b32 s{S_T1}, s2, 3')
    a(f's_and_b32 s{S_BLK}, s{S_T0}, 3')
    a(f's_lshl_b32 s{S_BLK}, s{S_BLK}, 5')
    a(f's_add_u32 s{S_BLK}, s{S_BLK}, s{S_T1}')
    a(f's_cmp_lt_u32 s{S_BLK}, 125')
    a(f's_cselect_b32 s{S_T2}, 0, 0x80000000')
    a(f's_min_u32 s{S_BLK}, s{S_BLK}, 124')
    a(f's_lshr_b32 s{S_T0}, s{S_T0}, 2')
    a(f's_mul_i32 s{S_T0}, s{S_T0}, 125')
    a(f's_add_u32 s{S_BLK}, s{S_BLK}, s{S_T0}')
    a(f's_lshl_b32 s{S_BLK}, s{S_BLK}, 15')
    a(f's_lshl_b32 s{S_T0}, s{S_W}, 13')
    a(f's_add_u32 s{S_T1}, s{S_BLK}, s{S_T0}')
    a('s_waitcnt lgkmcnt(0)')
    make_srd(a, S_SX, P_X, 0, 8192000)
    for g in range(2):
        a(f's_add_u32 m0, s{S_T0}, {g*4096}')
        if g: a(f's_add_u32 s{S_T1}, s{S_T1}, 4096')
        else: a('s_nop 0')
        for i in range(4): a(f'buffer_load_dwordx4 v{V_L16}, {SX}, s{S_T1} offen offset:{i*1024} lds')
    make_srd(a, S_SW, P_WS, 0, WS_SIZE)
    a(f'v_lshlrev_b32 v{V_LR}, 4, v{V_T1}')
    a(f'v_lshl_add_u32 v{V_LR}, v{V_T0}, 10, v{V_LR}')
    a(f'v_add_u32 v{V_LR}, s{S_T0}, v{V_LR}')
    a(f'v_lshrrev_b32 v{V_T2}, 5, v0')
    a(f'v_lshlrev_b32 v{V_LS}, 11, v{V_T2}')
    a(f'v_and_b32 v{V_T2}, 3, v{V_T1}')
    a(f'v_lshl_add_u32 v{V_LS}, v{V_T2}, 8, v{V_LS}')
    a(f'v_lshl_add_u32 v{V_LS}, v{V_T0}, 4, v{V_LS}')
    a(f'v_or_b32 v{V_LS}, s{S_T2}, v{V_LS}')
    a('s_waitcnt vmcnt(0)')
    st(2)
    for i in range(8): a(f'ds_read_b128 {vr(RAW+4*i,4)}, v{V_LR} offset:{i*128}')
    for i in range(4): a(f'v_mov_b32 v{SUM+i}, 0')
    if stamp: a('s_waitcnt lgkmcnt(0)')
    for s in range(8):
        a(f's_waitcnt lgkmcnt({7-s})')
        for i in range(4):
            r = RAW + 4 * s + i; f = F + 8 * s + 2 * i
            a(f'v_lshlrev_b32 v{f}, 16, v{r}')
            a(f'v_and_b32 v{f+1}, 0xffff0000, v{r}')
        for i in range(4):
            f = F + 8 * s + 2 * i; acc = SUM + 2 * (i & 1)
            a(f'v_pk_add_f32 {vr(acc,2)}, {vr(acc,2)}, {vr(f,2)}')
    def reduce8(dst):
        a(f'v_pk_add_f32 {vr(SUM,2)}, {vr(SUM,2)}, {vr(SUM+2,2)}')
        a(f'v_add_f32 v{dst}, v{SUM}, v{SUM+1}')
        a('s_nop 1')
        a(f'v_add_f32_dpp v{dst}, v{dst}, v{dst} row_ror:8 row_mask:0xf bank_mask:0xf')
        for sw in ('v_permlane16_swap_b32', 'v_permlane32_swap_b32'):
            a(f'v_mov_b32 v{V_T2}, v{dst}')
            a('s_nop 1')
            a(f'{sw} v{V_T2}, v{dst}')
            a('s_nop 1')
            a(f'v_add_f32 v{dst}, v{dst}, v{V_T2}')
    reduce8(MEAN)
    a(f'v_mul_f32 v{MEAN}, {f2h(-1.0/512)}, v{MEAN}')
    for i in range(4): a(f'v_mov_b32 v{SUM+i}, 0')
    for k in range(32):
        f = F + 2 * k
        a(f'v_pk_add_f32 {vr(f,2)}, {vr(f,2)}, {vr(MEAN,2)} op_sel_hi:[1,0]')
        if k:
            g = f - 2; acc = SUM + 2 * (k & 1)
            a(f'v_pk_fma_f32 {vr(acc,2)}, {vr(g,2)}, {vr(g,2)}, {vr(acc,2)}')
    g = F + 62
    a(f'v_pk_fma_f32 {vr(SUM,2)}, {vr(g,2)}, {vr(g,2)}, {vr(SUM,2)}')
    reduce8(RSTD)
    a(f'v_mov_b32 v{V_T2}, {f2h(1e-5)}')
    a(f'v_fmac_f32 v{V_T2}, {f2h(1.0/512)}, v{RSTD}')
    a(f'v_rsq_f32 v{RSTD}, v{V_T2}')
    a(f's_lshl_b32 s{S_T0}, s{S_CB}, 10')
    a(f's_lshl_b32 s{S_T1}, s{S_RB}, 7')
    a(f's_add_u32 s{S_T0}, s{S_T0}, s{S_T1}')
    a(f's_add_u32 s{S_T0}, s{S_T0}, s{S_BLK}')
    if WS_XA: a(f's_add_u32 s{S_T0}, s{S_T0}, {WS_XA}')
    for s in range(8):
        for i in range(4):
            f = F + 8 * s + 2 * i
            a(f'v_pk_mul_f32 {vr(f,2)}, {vr(f,2)}, {vr(RSTD,2)} op_sel_hi:[1,0]')
        for i in range(4):
            f = F + 8 * s + 2 * i
            a(f'v_cvt_pk_bf16_f32 v{RAW+4*s+i}, v{f}, v{f+1}')
        if s: a(f's_add_u32 s{S_T0}, s{S_T0}, 4096')
        a(f'buffer_store_dwordx4 {vr(RAW+4*s,4)}, v{V_LS}, {SW}, s{S_T0} offen {st_flags}')
    st(3)
    a('s_barrier')
    a(f's_branch {name}_fin')
    a(f'{name}_role:')
    a('s_waitcnt lgkmcnt(0)')
    make_srd(a, S_SW, P_WS, 0, WS_SIZE)
    a(f's_lshl_b32 s{S_T1}, s{S_RB}, 7')
    a(f'v_xor_b32 v{V_SW}, s{S_T1}, v{V_L16}')
    for i in range(1, 8): a(f'v_xor_b32 v{V_SW+i}, {i*16}, v{V_SW}')
    a(f'v_bfe_u32 v{V_T2}, v0, 4, 1')
    a(f'v_lshlrev_b32 v{V_T2}, 2, v{V_T2}')
    a(f'v_xor_b32 v{V_T2}, v{V_T2}, v{V_T0}')
    a(f'v_lshlrev_b32 v{V_DT}, 4, v{V_T2}')
    def rows_dma(srd, sbase, ldsbase):
        a(f's_lshl_b32 s{S_T2}, s{S_W}, 14')
        a(f's_add_u32 s{S_T1}, s{sbase}, s{S_T2}')
        for g in range(4):
            a(f's_add_u32 m0, s{S_T2}, {ldsbase + g*4096}')
            if g: a(f's_add_u32 s{S_T1}, s{S_T1}, 4096')
            else: a('s_nop 0')
            for i in range(4):
                a(f'buffer_load_dwordx4 v{V_SW + 4*(g>>1) + i}, {srd}, s{S_T1} offen offset:{i*1024} lds')
    def tr_dma(npiece, stride_log2, sbase):
        a(f'v_lshl_add_u32 v{V_T3}, v{V_T1}, {stride_log2}, v{V_DT}')
        a(f's_mul_i32 s{S_T1}, s{S_W}, {npiece * 8 << stride_log2}')
        a(f's_add_u32 s{S_T1}, s{S_T1}, s{sbase}')
        a(f's_mul_i32 s{S_T2}, s{S_W}, {npiece * 1024}')
        for i in range(npiece):
            a(f's_add_u32 m0, s{S_T2}, {LB_ + i*1024}')
            if i: a(f's_add_u32 s{S_T1}, s{S_T1}, {8 << stride_log2}')
            else: a('s_nop 0')
            a(f'buffer_load_dwordx4 v{V_T3}, {SB}, s{S_T1} offen lds')
    a(f's_and_b32 s3, s2, 7')
    a(f's_lshl_b32 s3, s3, 5')
    a(f's_lshr_b32 s{S_T1}, s2, 3')
    a(f's_add_u32 s3, s3, s{S_T1}')
    a(f's_and_b32 s{S_T2}, s2, 1')
    a(f's_lshl1_add_u32 s{S_T1}, s{S_T1}, s{S_T2}')
    a(f's_add_u32 s{S_T1}, s{S_T1}, 192')
    a(f's_cmp_ge_u32 s3, 192')
    a(f's_cselect_b32 s3, s{S_T1}, s3')
    a(f's_lshr_b32 s{S_ROLE}, s3, 6')
    a(f's_and_b32 s{S_TI}, s3, 7')
    a(f's_bfe_u32 s{S_TJ}, s3, 0x30003')
    a(f's_cmp_eq_u32 s{S_ROLE}, 3\n s_cbranch_scc1 {name}_i3')
    a(f's_cmp_eq_u32 s{S_ROLE}, 1\n s_cbranch_scc1 {name}_i1')
    a(f's_cmp_eq_u32 s{S_ROLE}, 0')
    a(f's_cselect_b32 s{S_SA}, s{P_AO}, s{P_DN}')
    a(f's_cselect_b32 s{S_SA+1}, s{P_AO+1}, s{P_DN+1}')
    a(f's_cselect_b32 s{S_T0}, 0, {512*1024}')
    a(f's_mov_b32 s{S_SA+2}, {512*1024}\n s_mov_b32 s{S_SA+3}, 0x20000')
    make_srd(a, S_SB, P_MG, 0, 1024 * 1024)
    a(f's_lshl_b32 s{S_T1}, s{S_TJ}, 7')
    a(f's_add_u32 s{S_T0}, s{S_T0}, s{S_T1}')
    tr_dma(16, 10, S_T0)
    a(f's_lshl_b32 s{S_T0}, s{S_TI}, 16')
    rows_dma(SA, S_T0, LA_)
    a(f's_branch {name}_ln')
    a(f'{name}_i1:')
    make_srd(a, S_SA, P_WQ, 0, 512 * 1024)
    make_srd(a, S_SB, P_WK, 0, 512 * 1024)
    a(f's_lshl_b32 s{S_T0}, s{S_TJ}, 16')
    rows_dma(SB, S_T0, LB_)
    a(f's_lshl_b32 s{S_T0}, s{S_TI}, 16')
    rows_dma(SA, S_T0, LA_)
    a(f's_branch {name}_ln')
    a(f'{name}_i3:')
    make_srd(a, S_SA, P_WV, 0, 512 * 1024)
    make_srd(a, S_SB, P_UP, 0, 1024 * 1024)
    a(f's_cmp_ge_u32 s3, 224\n s_cbranch_scc1 {name}_i4')
    a(f's_bfe_u32 s{S_TJ}, s3, 0x40001')
    a(f's_and_b32 s{S_TI}, s3, 1')
    a(f's_lshl_b32 s{S_T0}, s{S_TJ}, 7')
    a(f's_lshl_b32 s{S_T1}, s{S_TI}, 19')
    a(f's_add_u32 s{S_T0}, s{S_T0}, s{S_T1}')
    tr_dma(8, 11, S_T0)
    a(f's_branch {name}_ln')
    a(f'{name}_i4:')
    a(f's_cmp_ge_u32 s3, 232\n s_cbranch_scc1 {name}_i5')
    a(f's_lshl_b32 s{S_T0}, s{S_TI}, 16')
    rows_dma(SA, S_T0, LA_)
    a(f's_branch {name}_ln')
    a(f'{name}_i5:')
    make_srd(a, S_SA, P_DW, 0, 31 * 1024)
    a(f's_sub_u32 s{S_OO}, s3, 232')
    a(f's_lshl_b32 s{S_OO}, s{S_OO}, 2')
    a(f's_add_u32 s{S_OO}, s{S_OO}, s{S_W}')
    a(f's_lshl_b32 s{S_OO}, s{S_OO}, 1')
    a(f's_min_u32 s{S_OO}, s{S_OO}, 158')
    a(f'v_bfe_u32 v{V_T2}, v0, 4, 2')
    a(f'v_bfe_u32 v{V_T3}, v0, 2, 2')
    a(f'v_lshl_add_u32 v{V_T2}, v{V_T2}, 3, v{V_T3}')
    a(f'v_lshlrev_b32 v{V_T2}, 1, v{V_T2}')
    a(f'v_and_b32 v{V_T3}, 3, v0')
    a(f'v_add_u32 v{V_T3}, 1, v{V_T3}')
    a(f'v_lshlrev_b32 v{V_T3}, 10, v{V_T3}')
    a(f'v_sub_u32 v{V_T2}, v{V_T2}, v{V_T3}')
    for rnd in range(2):
        a(f's_add_u32 s{S_T0}, s{S_OO}, {rnd}')
        a(f's_mul_i32 s{S_T1}, s{S_T0}, 52429')
        a(f's_lshr_b32 s{S_T1}, s{S_T1}, 18')
        a(f's_mul_i32 s{S_T2}, s{S_T1}, 5')
        a(f's_sub_u32 s{S_T0}, s{S_T0}, s{S_T2}')
        a(f's_lshl_b32 s{S_T0}, s{S_T0}, 13')
        a(f's_lshr_b32 s{S_T2}, s{S_T1}, 1')
        a(f's_lshl_b32 s{S_T2}, s{S_T2}, 6')
        a(f's_add_u32 s{S_T0}, s{S_T0}, s{S_T2}')
        a(f's_and_b32 s{S_T1}, s{S_T1}, 1')
        a(f's_lshl_b32 s{S_T1}, s{S_T1}, 3')
        a(f's_add_u32 s{S_T0}, s{S_T0}, s{S_T1}')
        a(f'v_add_u32 v{V_T3}, s{S_T0}, v{V_T2}')
        for e in range(8):
            a(f'buffer_load_ushort v{V_ACC+8*rnd+e}, v{V_T3}, {SA}, 0 offen')
            if e < 7: a(f'v_add_u32 v{V_T3}, 1024, v{V_T3}')
    a(f'{name}_ln:')
    st(2)
    a(f'v_and_b32 v{V_T0}, 15, v0')
    a(f'v_lshrrev_b32 v{V_T1}, 4, v0')
    a(f'v_bfe_u32 v{V_T2}, v0, 2, 2')
    a(f'v_and_b32 v{V_T3}, 3, v0')
    a(f'v_lshl_add_u32 v{V_TR}, v{V_T2}, 3, v{V_T3}')
    a(f'v_lshlrev_b32 v{V_TR}, 10, v{V_TR}')
    a(f'v_xor_b32 v{V_T0}, v{V_T0}, v{V_T1}')
    a(f'v_lshl_add_u32 v{V_TR}, v{V_T0}, 4, v{V_TR}')
    a(f's_lshl_b32 s{S_T0}, s{S_RB}, 15')
    a(f's_add_u32 s{S_T0}, s{S_T0}, {LA_}')
    a(f's_lshl_b32 s{S_T1}, s{S_CB}, 15')
    a(f's_add_u32 s{S_T1}, s{S_T1}, {LB_}')
    for i in range(4):
        a(f'v_xor_b32 v{V_T0}, {i*64}, v{V_TR}')
        a(f'v_add_u32 v{V_AR+i}, s{S_T0}, v{V_T0}')
        a(f'v_add_u32 v{V_BR+i}, s{S_T1}, v{V_T0}')
    a(f'v_bfe_u32 v{V_T0}, v0, 3, 1')
    a(f'v_xor_b32 v{V_T0}, s{S_CB}, v{V_T0}')
    a(f'v_lshl_add_u32 v{V_T0}, v{V_T0}, 2, v{V_T3}')
    a(f'v_lshlrev_b32 v{V_TR}, 4, v{V_T0}')
    a(f'v_lshl_add_u32 v{V_TR}, v{V_T2}, 7, v{V_TR}')
    a(f'v_lshl_add_u32 v{V_TR}, v{V_T1}, 10, v{V_TR}')
    a(f'v_add_u32 v{V_TR}, {LB_}, v{V_TR}')
    a('s_waitcnt vmcnt(0)')
    st(3)
    a('s_barrier')
    st(4)
    if stamp: a('s_waitcnt lgkmcnt(0)')
    def rd_rows(base):
        return lambda s, h, dst: [f'ds_read_b128 {vr(dst,4)}, v{base + (s & 3)} offset:{h*4096 + (s >> 2)*256}']
    def rd_tr(s, h, dst):
        return [f'ds_read_b64_tr_b16 {vr(dst+2*jj,2)}, v{V_TR} offset:{s*4096 + jj*512 + h*8}' for jj in range(2)]
    def gemm(rdB):
        rdA = rd_rows(V_AR)
        q = LdsQ()
        def issue(s):
            for h in range(2):
                for o in rdA(s, h, V_RA + 8 * (s % 4) + 4 * h): a(o); q.issue(s)
            for h in range(2):
                for o in rdB(s, h, V_RB + 8 * (s % 4) + 4 * h): a(o); q.issue(s)
        for s in range(gl): issue(s)
        for s in range(16):
            a(f's_waitcnt lgkmcnt({min(15, q.need(s))})')
            for ch in range(2):
                for b in range(2):
                    d = vr(V_ACC + ch * 8 + b * 4, 4)
                    a(f'v_mfma_f32_16x16x32_bf16 {d}, {vr(V_RA+8*(s%4)+4*b,4)}, {vr(V_RB+8*(s%4)+4*ch,4)}, {d if s else 0}')
                if ch == 0 and s + gl < 16: issue(s + gl)
        a('s_nop 7')
    a(f's_cmp_eq_u32 s{S_ROLE}, 3\n s_cbranch_scc1 {name}_c3')
    a(f's_lshl1_add_u32 s{S_OO}, s{S_TJ}, s{S_CB}')
    a(f's_lshl_b32 s{S_OO}, s{S_OO}, 15')
    a(f's_lshl1_add_u32 s{S_T0}, s{S_TI}, s{S_RB}')
    a(f's_lshl_b32 s{S_T0}, s{S_T0}, 11')
    a(f's_add_u32 s{S_OO}, s{S_OO}, s{S_T0}')
    a(f's_cmp_eq_u32 s{S_ROLE}, 1\n s_cbranch_scc1 {name}_c1')
    a(f's_cmp_eq_u32 s{S_ROLE}, 0')
    a(f's_cselect_b32 s{S_T0}, {WS_T1}, {WS_WC}' if False else f's_cselect_b32 s{S_T0}, {WS_T1 - WS_WC}, 0')
    a(f's_add_u32 s{S_OO}, s{S_OO}, s{S_T0}')
    a(f's_add_u32 s{S_OO}, s{S_OO}, {WS_WC}')
    gemm(rd_tr)
    a(f's_branch {name}_out')
    a(f'{name}_c1:')
    a(f's_add_u32 s{S_OO}, s{S_OO}, {WS_W}')
    gemm(rd_rows(V_BR))
    a(f's_mov_b32 s{S_T1}, {f2h(512 ** -0.5 * 1.4426950408889634)}')
    for i in range(16): a(f'v_mul_f32 v{V_ACC+i}, s{S_T1}, v{V_ACC+i}')
    a(f'{name}_out:')
    for i in range(8): a(f'v_cvt_pk_bf16_f32 v{V_PK+i}, v{V_ACC+2*i}, v{V_ACC+2*i+1}')
    for ch in range(2):
        a(f'buffer_store_dwordx4 {vr(V_PK+4*ch,4)}, v{V_L16}, {SW}, s{S_OO} offen offset:{ch*1024} {st_flags}')
    a(f's_branch {name}_fin')
    a(f'{name}_c3:')
    a(f's_cmp_ge_u32 s3, 224\n s_cbranch_scc1 {name}_c4')
    a(f's_lshl_b32 s{S_T0}, s{S_RB}, 14')
    a(f'v_add_u32 v{V_TR}, s{S_T0}, v{V_TR}')
    for i in range(8):
        for o in rd_tr(i >> 1, i & 1, V_RA + 4 * i): a(o)
    a(f's_lshl1_add_u32 s{S_OO}, s{S_TJ}, s{S_CB}')
    a(f's_lshl_b32 s{S_OO}, s{S_OO}, 15')
    a(f's_lshl1_add_u32 s{S_T0}, s{S_TI}, s{S_RB}')
    a(f's_lshl_b32 s{S_T0}, s{S_T0}, 13')
    a(f's_add_u32 s{S_OO}, s{S_OO}, s{S_T0}')
    a(f's_add_u32 s{S_OO}, s{S_OO}, {WS_W + 32 * TILE}')
    a(f's_add_u32 s{S_T1}, s{S_OO}, 4096')
    for i in range(8):
        a(f's_waitcnt lgkmcnt({14 - 2*i})')
        a(f'buffer_store_dwordx4 {vr(V_RA+4*i,4)}, v{V_L16}, {SW}, s{S_T1 if i >= 4 else S_OO} offen offset:{(i%4)*1024} {st_flags}')
    a(f's_branch {name}_fin')
    a(f'{name}_c4:')
    a(f's_cmp_ge_u32 s3, 232\n s_cbranch_scc1 {name}_c5')
    a(f's_lshl_b32 s{S_T0}, s{S_CB}, 9')
    for i in range(4): a(f'v_add_u32 v{V_AR+i}, s{S_T0}, v{V_AR+i}')
    for i in range(16):
        for o in rd_rows(V_AR)(i >> 1, i & 1, V_RA + 4 * i): a(o)
    a(f's_lshl1_add_u32 s{S_OO}, s{S_TI}, s{S_RB}')
    a(f's_lshl_b32 s{S_OO}, s{S_OO}, 15')
    a(f's_lshl_b32 s{S_T0}, s{S_CB}, 14')
    a(f's_add_u32 s{S_OO}, s{S_OO}, s{S_T0}')
    a(f's_add_u32 s{S_OO}, s{S_OO}, {WS_RL}')
    for i in range(16):
        if i % 4 == 0 and i: a(f's_add_u32 s{S_OO}, s{S_OO}, 4096')
        a(f's_waitcnt lgkmcnt({15 - i})')
        a(f'buffer_store_dwordx4 {vr(V_RA+4*i,4)}, v{V_L16}, {SW}, s{S_OO} offen offset:{(i%4)*1024} {st_flags}')
    a(f's_branch {name}_fin')
    a(f'{name}_c5:')
    for i in range(4): a(f'v_mov_b32 v{V_PK+i}, 0')
    a(f's_sub_u32 s{S_T0}, s3, 232')
    a(f's_lshl_b32 s{S_T0}, s{S_T0}, 12')
    a(f's_lshl_b32 s{S_T1}, s{S_W}, 10')
    a(f's_add_u32 s{S_T0}, s{S_T0}, s{S_T1}')
    a(f's_add_u32 s{S_T0}, s{S_T0}, {WS_FLAG}')
    a(f'buffer_store_dwordx4 {vr(V_PK,4)}, v{V_L16}, {SW}, s{S_T0} offen')
    for i in range(8): a(f'v_lshl_or_b32 v{V_RA+i}, v{V_ACC+2*i+1}, 16, v{V_ACC+2*i}')
    a(f's_lshl_b32 s{S_T0}, s{S_OO}, 10')
    a(f's_add_u32 s{S_T0}, s{S_T0}, {WS_DWT}')
    for h in range(2):
        a(f'buffer_store_dwordx4 {vr(V_RA+4*h,4)}, v{V_L16}, {SW}, s{S_T0} offen offset:{h*1024}')
    a(f'{name}_fin:')
    if stamp:
        st(5)
        a('s_waitcnt vmcnt(0)')
        st(1); st(7, True)
        a('s_waitcnt lgkmcnt(0)')
        a(f's_lshl2_add_u32 s{S_T1}, s{S_LN}, s{S_W}')
        a(f's_cmp_lg_u32 s{S_T1}, {stw}')
        a(f's_cbranch_scc1 {name}_end')
        a(f's_lshl_b32 s{S_T1}, s2, 6')
        a(f's_add_u32 s{S_T1}, s{S_T1}, {WS_STAMP + 131072}')
        for i in range(16): a(f'v_mov_b32 v{32+i}, s{60+i}')
        a(f'v_mov_b32 v{V_T0}, 0')
        a('s_mov_b64 exec, 1')
        for i in range(4): a(f'buffer_store_dwordx4 {vr(32+4*i,4)}, v{V_T0}, {SW}, s{S_T1} offen offset:{16*i}')
    a(f'{name}_end:')
    a('s_endpgm')
    kernel_desc(a, name, 160, 80, 160)
```

```python
from asmlib import *
from layout import *
from attn2 import LdsQ
import struct
def f2h(x): return hex(struct.unpack('<I', struct.pack('<f', x))[0])

class VmQ:
    def __init__(self): self.n = 0; self.last = {}
    def issue(self, tag=None):
        self.n += 1
        if tag is not None: self.last[tag] = self.n
    def need(self, tag): return self.n - self.last[tag]

def code_prefetch(a, name, end_label, vt, vd, sp, nthreads, first_wg, nbytes_max):
    lab = f'{name}_nopf'
    a(f's_sub_u32 s{sp}, s2, {first_wg}')
    a(f's_cmp_ge_u32 s{sp}, 8\n s_cbranch_scc1 {lab}')
    a(f's_getpc_b64 s[{sp}:{sp+1}]')
    a(f'{name}_pc:')
    a(f's_sub_u32 s{sp}, s{sp}, {name}_pc-{name}')
    a(f's_subb_u32 s{sp+1}, s{sp+1}, 0')
    a(f'v_lshlrev_b32 v{vt}, 7, v0')
    for i in range(-(-nbytes_max // (nthreads * 128))):
        a(f'v_min_u32 v{vt+1}, {end_label}-{name}-4, v{vt}')
        a(f'global_load_dword v{vd}, v{vt+1}, s[{sp}:{sp+1}]')
        a(f'v_add_u32 v{vt}, {nthreads*128}, v{vt}')
    a(f'{lab}:')

def gen_rg(a, name, stamp=False, NR=8, LA=7, chain=False, wait_every=2, bar_pos=20, per_gap=2, XPRE=12, st_flags='sc1', fuse=True, pf=True, nogelu=False, prio=0, stepst=False, sched=0, burst=40, nost=False, stw=0, vs=(10, 21, 53, 83, 99, 115)):
    V_L16, V_RA, V_ST, V_DMA, V_C0, V_C1, V_T0, V_T1, V_W0, V_FL, V_T2 = range(1, 12)
    ACC = {'u': 16, 'g': 32, 'q': 48, 'v': 48}
    V_RING, V_Z, V_PK, V_STG, V_SS = 64, 88, 96, 104, 112
    S_WS, S_SRD = 4, 8
    S_W, S_BLK, S_CG, S_T0, S_T1, S_WOFF, S_DB, S_OUT, S_XO, S_T2, S_M0, S_M1 = range(24, 36)
    RS = [64, 68, 72, 76, 80, 84, 12, 92][:NR]
    def st(i, cyc=False):
        if stamp: a(f'{"s_memtime" if cyc else "s_memrealtime"} s[{44+2*i}:{45+2*i}]')
    kernel_begin(a, name)
    a(f's_cmp_ge_u32 s2, 256\n s_cbranch_scc1 {name}_end')
    a(f's_load_dwordx2 s[{S_WS}:{S_WS+1}], s[0:1], 88')
    st(0)
    if pf: code_prefetch(a, name, f'{name}_end', 14, 13, 36, 512, 0, 32768)
    a(f'v_lshrrev_b32 v{V_T0}, 6, v0')
    a(f'v_cmp_eq_u32 vcc, 0, v0')
    a(f'v_and_b32 v0, 63, v0')
    a(f'v_readfirstlane_b32 s{S_W}, v{V_T0}')
    a(f'v_lshlrev_b32 v{V_L16}, 4, v0')
    a(f'v_bfrev_b32 v{V_T1}, 1')
    a(f'v_cndmask_b32 v{V_T2}, v{V_T1}, 0, vcc')
    a(f's_and_b32 s{S_T0}, s2, 7')
    a(f's_lshr_b32 s{S_T1}, s2, 3')
    a(f's_and_b32 s{S_CG}, s{S_T1}, 7')
    a(f's_lshr_b32 s{S_T1}, s{S_T1}, 3')
    a(f's_and_b32 s{S_BLK}, s{S_T0}, 3')
    a(f's_lshl_b32 s{S_BLK}, s{S_BLK}, 2')
    a(f's_add_u32 s{S_BLK}, s{S_BLK}, s{S_T1}')
    a(f's_lshl_b32 s{S_BLK}, s{S_BLK}, 3')
    a(f's_add_u32 s{S_BLK}, s{S_BLK}, s{S_W}')
    a(f's_cmp_lt_u32 s{S_BLK}, 125')
    a(f's_cselect_b32 s{S_T1}, 0, 0x80000000')
    a(f'v_or_b32 v{V_ST}, s{S_T1}, v{V_L16}')
    a(f's_cmp_eq_u32 s{S_W}, 0')
    a(f's_cselect_b32 s{S_T1}, 0, 0x80000000')
    a(f'v_or_b32 v{V_W0}, s{S_T1}, v{V_L16}')
    a(f's_min_u32 s{S_BLK}, s{S_BLK}, 124')
    a(f's_lshr_b32 s{S_T0}, s{S_T0}, 2')
    a(f's_mul_i32 s{S_T0}, s{S_T0}, 125')
    a(f's_add_u32 s{S_BLK}, s{S_BLK}, s{S_T0}')
    a(f's_lshl_b32 s{S_DB}, s{S_W}, 12')
    a(f'v_add_u32 v{V_DMA}, s{S_DB}, v{V_L16}')
    a(f's_lshl_b32 s{S_WOFF}, s{S_CG}, 16')
    a(f's_add_u32 s{S_WOFF}, s{S_WOFF}, {WS_W}')
    a(f's_lshl_b32 s{S_OUT}, s{S_BLK}, 15')
    a(f's_lshl_b32 s{S_T0}, s{S_CG}, 12')
    a(f's_add_u32 s{S_OUT}, s{S_OUT}, s{S_T0}')
    a(f's_and_b32 s{S_M0}, s2, 15')
    a(f's_lshl_b32 s{S_M0}, s{S_M0}, 15')
    a(f's_add_u32 s{S_M0}, s{S_M0}, {WS_RL}')
    a(f's_lshr_b32 s{S_M1}, s2, 4')
    a(f's_lshl_b32 s{S_M1}, s{S_M1}, 15')
    a(f's_add_u32 s{S_M1}, s{S_M1}, {WS_T1}')
    a('s_waitcnt lgkmcnt(0)')
    make_srd(a, S_SRD, S_WS, 0, WS_SIZE)
    SRD = f's[{S_SRD}:{S_SRD+3}]'
    seq = ['u', 'q', 'g', 'q', 'u', 'g', 'v', 'v']
    half = [0, 0, 0, 1, 1, 1, 0, 1]
    ACN = [16, 48, 32, 48, 16, 32, 48, 16]
    wbase = {'q': 0, 'v': 16, 'u': 32, 'g': 48}
    obase = {'q': WS_Q, 'v': WS_VT, 'u': WS_U, 'g': WS_G}
    vm = VmQ(); q = LdsQ()
    def emit(o, tag=None):
        a(o)
        if o.startswith('buffer_'): vm.issue(tag)
        if o.startswith('ds_'): q.issue(tag)
    def dma(n):
        ops = [f's_add_u32 s{S_T1}, s{S_WOFF}, {(wbase[seq[n]] + half[n]) * TILE}', f's_add_u32 m0, s{S_DB}, {(n % 5) * TILE}', 's_nop 0']
        for i in range(4):
            ops.append(f'buffer_load_dwordx4 v{V_DMA}, {SRD}, s{S_T1} offen offset:{i*1024} lds')
        return [(o, ('W', n)) for o in ops]
    for i in range(4): emit(f'buffer_load_dwordx4 {vr(V_RING+4*i,4)}, v{V_DMA}, {SRD}, s{S_M0} offen offset:{i*1024}', 'p3')
    for i in range(4): emit(f'buffer_load_dwordx4 {vr(V_RING+16+4*i,4)}, v{V_DMA}, {SRD}, s{S_M1} offen offset:{i*1024}', 'p3')
    for o, t in dma(0): emit(o, t)
    if fuse:
        for o, t in dma(1): emit(o, t)
    a(f's_lshl_b32 s{S_XO}, s{S_BLK}, 15')
    if WS_XA: a(f's_add_u32 s{S_XO}, s{S_XO}, {WS_XA}')
    def xload(f):
        ops = []
        if f % 4 == 0 and f: ops.append((f's_add_u32 s{S_XO}, s{S_XO}, 4096', None))
        ops.append((f'buffer_load_dwordx4 {ar(4*f,4)}, v{V_L16}, {SRD}, s{S_XO} offen offset:{(f%4)*1024}', ('X', f)))
        return ops
    for f in range(XPRE):
        for o, t in xload(f): emit(o, t)
    extra = []
    for f in range(XPRE, 32):
        extra += xload(f)
        if f == 24 and not fuse: extra += dma(1)
    extra += dma(2) + dma(3)
    c0 = -2.0 * 0.7978845608028654 * 1.4426950408889634
    a(f'v_mov_b32 v{V_C0}, {f2h(c0)}')
    a(f'v_mov_b32 v{V_C1}, {f2h(c0 * 0.044715)}')
    a(f'v_add_u32 v{V_RA}, {2*TILE}, v{V_L16}')
    a(f'v_add_u32 v{V_T1}, {4*TILE}, v{V_L16}')
    a(f'v_and_b32 v{V_FL}, 31, v0')
    a(f'v_lshlrev_b32 v{V_FL}, 2, v{V_FL}')
    PA = ACC['g']
    a(f's_waitcnt vmcnt({vm.need("p3")})')
    for sl in range(2):
        for ch in range(2):
            for b in range(2):
                d = vr(PA + ch * 8 + b * 4, 4)
                a(f'v_mfma_f32_16x16x32_bf16 {d}, {vr(V_RING+(2*sl+b)*4,4)}, {vr(V_RING+16+(2*sl+ch)*4,4)}, {d if sl else 0}')
    a(f'v_add_u32 v{V_T0}, {4*TILE}, v{V_DMA}')
    a('s_nop 6')
    for i in range(4): a(f'ds_write_b128 v{V_T0}, {vr(PA+4*i,4)} offset:{i*1024}')
    a(f's_waitcnt vmcnt({vm.need(("W", 1 if fuse else 0))}) lgkmcnt(0)')
    a('s_barrier')
    st(1); st(4, True)
    a(f's_lshr_b32 s{S_T0}, s{S_W}, 1')
    a(f's_lshl_b32 s{S_T0}, s{S_T0}, 10')
    a(f's_and_b32 s{S_T2}, s{S_W}, 1')
    a(f's_lshl_b32 s{S_T2}, s{S_T2}, 3')
    a(f's_add_u32 s{S_T0}, s{S_T0}, s{S_T2}')
    a(f'v_add_u32 v{V_T0}, s{S_T0}, v{V_T1}')
    for w in range(8): a(f'ds_read_b64 {vr(PA+2*w,2)}, v{V_T0} offset:{w*4096}')
    a(f's_lshl_b32 s{S_T0}, s2, 11')
    a(f's_lshr_b32 s{S_T2}, s{S_W}, 2')
    a(f's_lshl_b32 s{S_T2}, s{S_T2}, 10')
    a(f's_add_u32 s{S_T0}, s{S_T0}, s{S_T2}')
    a(f's_and_b32 s{S_T2}, s{S_W}, 3')
    a(f's_lshl_b32 s{S_T2}, s{S_T2}, 2')
    a(f's_add_u32 s{S_T0}, s{S_T0}, s{S_T2}')
    a(f's_add_u32 s{S_M0}, s{S_T0}, {WS_W + 16 * TILE}')
    a('s_waitcnt lgkmcnt(0)')
    for st_ in (4, 2, 1):
        for i in range(st_): a(f'v_pk_add_f32 {vr(PA+2*i,2)}, {vr(PA+2*i,2)}, {vr(PA+2*(i+st_),2)}')
    a(f'v_cvt_pk_bf16_f32 v{V_STG}, v{PA}, v{PA+1}')
    k = max(i for i, (o, t) in enumerate(extra) if t == ('W', 2)) + 1
    extra.insert(k, (f'buffer_store_dword v{V_STG}, v{V_L16}, {SRD}, s{S_M0} offen sc1', 'p3s'))
    if stamp: a('s_waitcnt lgkmcnt(0)')
    for i in range(16): a(f'v_mov_b32 v{V_SS+i}, 0')

    stream = []
    if fuse:
        for s in range(16):
            for n in range(2):
                for ch in range(2): stream.append((n, 2 * s + ch))
    for n in range(2 if fuse else 0, 8):
        for f in range(32): stream.append((n, f))
    NS = len(stream)
    def rd(G):
        n, f = stream[G]
        if chain and n >= 2: f = (f & 15) * 2 + (f >> 4)
        b = n % 5
        reg = (V_L16, V_L16, V_RA, V_RA, V_T1)[b]
        off = (b & 1) * TILE + f * 1024 if b < 4 else f * 1024
        return f'ds_read_b128 {vr(RS[G % NR], 4)}, v{reg} offset:{off}'
    def mfmas(G):
        n, f = stream[G]
        ty = seq[n]; s, ch = f >> 1, f & 1
        w = vr(RS[G % NR], 4)
        out = []
        if chain and n >= 2:
            ch = f >> 4; rh = (f & 1) ^ ((f >> 1) & 1)
            for k in range(2):
                s = (f & 14) + k
                x = ar((s * 2 + rh) * 4, 4); w = vr(RS[((G & ~1) + k) % NR], 4)
                if ty in 'vg': d = vr(ACN[n] + ch * 8 + rh * 4, 4); A, B = x, w
                else: d = vr(ACN[n] + rh * 8 + ch * 4, 4); A, B = w, x
                out.append(f'v_mfma_f32_16x16x32_bf16 {d}, {A}, {B}, {d if s else 0}')
            return out
        for rh in range(2):
            x = ar((s * 2 + rh) * 4, 4)
            if ty in 'vg':
                d = vr(ACN[n] + ch * 8 + rh * 4, 4); A, B = x, w
            else:
                d = vr(ACN[n] + rh * 8 + ch * 4, 4); A, B = w, x
            out.append(f'v_mfma_f32_16x16x32_bf16 {d}, {A}, {B}, {d if s else 0}')
        return out
    pkrot = [0]
    def epilogue(n):
        ty = seq[n]
        acc = ACN[n]; ops = []
        for o in range(2):
            base = acc + 8 * o
            if ty in 'ug' and not nogelu:
                def chain(e):
                    z = V_Z + e % 4; x = base + e
                    return [(f'v_mul_f32 v{z}, v{x}, v{x}', 1), (f'v_fma_f32 v{z}, v{z}, v{V_C1}, v{V_C0}', 1), (f'v_mul_f32 v{z}, v{z}, v{x}', 1),
                            (f'v_exp_f32 v{z}, v{z}', 2), (f'v_add_f32 v{z}, 1.0, v{z}', 1), (f'v_rcp_f32 v{z}, v{z}', 2), (f'v_mul_f32 v{x}, v{x}, v{z}', 1)]
                if sched == 0:
                    for E in (range(4), range(4, 8)):
                        for k in range(7):
                            for e in E: ops.append(chain(e)[k])
                else:
                    items = sorted((2 * e + k, e, k) for e in range(8) for k in range(7))
                    for _, e, k in items: ops.append(chain(e)[k])
                E = range(8)
                if ty == 'g':
                    for e in E:
                        ops.append((f'v_add_f32 v{V_SS+e}, v{V_SS+e}, v{base+e}', 1))
                        ops.append((f'v_fmac_f32 v{V_SS+8+e}, v{base+e}, v{base+e}', 1))
            pk = V_PK + 4 * (pkrot[0] % 2); pkrot[0] += 1
            for i in range(4): ops.append((f'v_cvt_pk_bf16_f32 v{pk+i}, v{base+2*i}, v{base+2*i+1}', 1))
            ops.append((f's_add_u32 s{S_T0}, s{S_OUT}, {obase[ty]}', 0))
            if not nost: ops.append((f'buffer_store_dwordx4 {vr(pk,4)}, v{V_ST}, {SRD}, s{S_T0} offen offset:{half[n]*2048 + o*1024} {st_flags}', 1))
        return ops
    def vload(n, h):
        ops = [(f's_add_u32 s{S_T1}, s{S_WOFF}, {(wbase["v"] + half[n]) * TILE}', None)]
        for i in range(2): ops.append((f'buffer_load_dwordx4 {vr(V_STG+4*i,4)}, v{V_DMA}, {SRD}, s{S_T1} offen offset:{(2*h+i)*1024} sc1', ('VL', n, h)))
        return ops
    def vwrite(n, h):
        a(f's_waitcnt vmcnt({vm.need(("VL", n, h))})')
        b = n % 5
        if b >= 2: a(f'v_add_u32 v{V_T0}, {b*TILE}, v{V_DMA}')
        for i in range(2): emit(f'ds_write_b128 v{V_T0 if b >= 2 else V_DMA}, {vr(V_STG+4*i,4)} offset:{(b*TILE if b < 2 else 0) + (2*h+i)*1024}', ('VW', n))
    curprio = [0]
    if prio == 1:
        a(f's_cmp_lt_u32 s{S_W}, 4\n s_cbranch_scc1 {name}_np\n s_setprio 1\n {name}_np:')
    for G in range(LA): emit(rd(G), G)
    pend = []
    import re
    def regs_of(tok):
        m = re.match(r'-?v\[(\d+):(\d+)\]', tok)
        if m: return set(range(int(m.group(1)), int(m.group(2)) + 1))
        m = re.match(r'-?v(\d+)$', tok)
        if m: return {int(m.group(1))}
        m = re.match(r's(\d+)$', tok)
        if m: return {1000 + int(m.group(1))}
        return set()
    def rw(op):
        name_, rest = op.split(' ', 1)
        toks = [t.strip() for t in rest.replace(' offen', ',').split(',')]
        if name_.startswith('buffer_store'): return set().union(*[regs_of(t) for t in toks]), set()
        w = regs_of(toks[0]); r = set().union(*[regs_of(t) for t in toks[1:]])
        if name_.startswith('v_fmac'): r |= w
        return r, w
    lastw = {}; lasts = {}; forced = [0]
    def flush_one(op):
        prev = a.lines[-1].strip()
        if prev.startswith(('v_exp', 'v_rcp')) and (rw(prev)[1] & rw(op)[0]): a('s_nop 0')
        for pv in a.lines[-2:]:
            if pv.strip().startswith('buffer_store') and (rw(pv.strip())[0] & rw(op)[1]): a('s_nop 1')
        emit(op)
    def issue_ready(pos, budget, window=24):
        i = 0
        while budget > 0 and i < min(window, len(pend)):
            rdy, op, c, t = pend[i]
            r, w = rw(op)
            ok = rdy <= pos and c <= budget and all(lastw.get(x, -9) < pos for x in r) and all(lasts.get(x, -9) + 2 <= pos for x in w)
            if ok:
                for j in range(i):
                    r2, w2 = rw(pend[j][1])
                    if (r & w2) or (w & r2) or (w & w2): ok = False; break
            if ok:
                pend.pop(i); emit(op); budget -= max(c, 0)
                for x in w: lastw[x] = pos
                if op.startswith('buffer_store'):
                    for x in r: lasts[x] = pos
            else: i += 1
    started = set()
    last_of = {n: max(i for i, (m, f) in enumerate(stream) if m == n) for n in range(8)}
    first_of = {n: min(i for i, (m, f) in enumerate(stream) if m == n) for n in range(8)}
    for G in range(NS):
        n, f = stream[G]
        if G == first_of[n] and n >= 2 and stamp and stepst:
            a(f's_memtime s[{56+2*(n-2)}:{57+2*(n-2)}]')
            a('s_waitcnt lgkmcnt(0)')
        if G == first_of[n]:
            while any(ACN[t] == ACN[n] for (_, _, _, t) in pend):
                _, op, _, _ = pend.pop(0); flush_one(op); forced[0] += 1
        if prio == 2:
            bars = [0] + [first_of[x] - (32 - bar_pos) + 1 for x in range(2 if fuse else 1, 8)] + [NS]
            k = max(i for i, b in enumerate(bars) if b <= G)
            lv = 3 - (G - bars[k]) * 4 // (bars[k + 1] - bars[k])
            if lv != curprio[0]: a(f's_setprio {lv}'); curprio[0] = lv
        w = []
        if n == 0 and f % 2 == 0: w.append(f'vmcnt({vm.need(("X", f | 1))})')
        if G % wait_every == 0: w.append(f'lgkmcnt({min(15, q.need(min(G + wait_every - 1, NS - 1)))})')
        if w: a('s_waitcnt ' + ' '.join(w))
        mm = mfmas(G)
        for h in range(2):
            a(mm[h])
            if h == 0 and G + LA < NS: emit(rd(G + LA), G + LA)
            if sched == 0:
                budget = per_gap
                while pend and pend[0][0] <= 2 * G + h and budget > 0 and (budget >= pend[0][2] or budget == per_gap):
                    _, op, c, _ = pend.pop(0); emit(op); budget -= c
            else:
                budget = 1 if h == 0 else (1 if (G + 1) % wait_every == 0 else 2)
                if extra and h == 1: budget = 0
                issue_ready(2 * G + h, budget)
            if extra and (h == 1 or (G < 32 and not fuse)):
                o = extra.pop(0); emit(*o)
                while extra and not o[0].startswith('buffer_'):
                    o = extra.pop(0); emit(*o)
        nxt = n + 1 if not (fuse and n < 2) else 2
        if nxt < 8 and G == first_of[nxt] - (32 - bar_pos):
            if sched:
                nb = burst
                while pend and nb > 0 and pend[0][0] <= 2 * G:
                    _, op, c, _ = pend.pop(0); flush_one(op); nb -= c
            if seq[nxt] == 'v': a(f's_waitcnt lgkmcnt({min(15, q.need(("VW", nxt)))})')
            else: a(f's_waitcnt vmcnt({vm.need(("W", nxt))})')
            a('s_barrier')
            if nxt == 2: extra = extra + dma(4)
            if nxt == 3:
                assert vm.last['p3s'] < vm.last[('W', 3)]
                a(f's_lshl_b32 s{S_T2}, s2, 2')
                a(f's_add_u32 s{S_T2}, s{S_T2}, {WS_FLAG2}')
                a(f'v_mov_b32 v{V_T0}, 1')
                emit(f'buffer_store_dword v{V_T0}, v{V_T2}, {SRD}, s{S_T2} offen sc1')
            if nxt == 3: extra = extra + dma(5)
        if G == first_of[3] + vs[0]:
            a(f's_lshl_b32 s{S_T2}, s{S_CG}, 7')
            a(f's_add_u32 s{S_T2}, s{S_T2}, {WS_FLAG2}')
            emit(f'buffer_load_dword v{V_T2}, v{V_FL}, {SRD}, s{S_T2} offen sc1', 'poll')
        if G == first_of[3] + vs[1]:
            a(f's_waitcnt vmcnt({vm.need("poll")})')
            a(f'v_cmp_ne_u32 vcc, 1, v{V_T2}')
            a(f's_cbranch_vccnz {name}_slow')
            a(f'{name}_ok:')
            extra = extra + vload(6, 0)
        if G == first_of[3] + vs[2]: vwrite(6, 0); extra = extra + vload(6, 1)
        if G == first_of[3] + vs[3]: vwrite(6, 1); extra = extra + vload(7, 0)
        if G == first_of[3] + vs[4]: vwrite(7, 0); extra = extra + vload(7, 1)
        if G == first_of[3] + vs[5]: vwrite(7, 1)
        for m in range(8):
            if G == last_of[m]:
                ep = [(2 * (G + 1) + 6, op, c, m) for op, c in epilogue(m)]
                if seq[m] in 'qv' and fuse and m == 1: pend = ep + pend
                else: pend += ep
    st(2); st(5, True)
    nrem = sum(1 for p in pend if p[3] != 7)
    if nrem < 8: a('s_nop 7')
    print('k2: forced', forced[0], 'tail', len(pend))
    for _, op, _, _ in pend: flush_one(op)
    a('s_nop 0')
    for sh in (8, 4, 2, 1):
        for i in range(16): a(f'v_add_f32_dpp v{V_SS+i}, v{V_SS+i}, v{V_SS+i} row_ror:{sh} row_mask:0xf bank_mask:0xf')
    a(f'v_and_b32 v{V_T0}, 0x80000000, v{V_ST}')
    a(f'v_or_b32 v{V_T0}, v0, v{V_T0}')
    a(f's_lshl_b32 s{S_T0}, s{S_BLK}, 11')
    a(f's_lshl_b32 s{S_T1}, s{S_CG}, 8')
    a(f's_add_u32 s{S_T0}, s{S_T0}, s{S_T1}')
    a(f's_add_u32 s{S_T0}, s{S_T0}, {WS_ST}')
    a('s_mov_b32 exec_lo, 0x00010001')
    a('s_mov_b32 exec_hi, 0x00010001')
    for i in range(4):
        a(f'buffer_store_dwordx4 {vr(V_SS+4*i,4)}, v{V_T0}, {SRD}, s{S_T0} offen offset:{i*64} {st_flags}')
    if stamp:
        a('s_waitcnt vmcnt(0)')
        st(3)
        a('s_waitcnt lgkmcnt(0)')
        a(f's_cmp_lg_u32 s{S_W}, {stw}')
        a(f's_cbranch_scc1 {name}_end')
        a(f's_lshl_b32 s{S_T1}, s2, 7')
        a(f's_add_u32 s{S_T1}, s{S_T1}, {WS_STAMP + 65536}')
        for i in range(24): a(f'v_mov_b32 v{16+i}, s{44+i}')
        a(f'v_mov_b32 v{V_T0}, 0')
        a('s_mov_b64 exec, 1')
        for i in range(6):
            a(f'buffer_store_dwordx4 {vr(16+4*i,4)}, v{V_T0}, {SRD}, s{S_T1} offen offset:{16*i}')
    a('s_endpgm')
    a(f'{name}_slow:')
    a('s_sleep 2')
    a(f'buffer_load_dword v{V_T2}, v{V_FL}, {SRD}, s{S_T2} offen sc1')
    a('s_waitcnt vmcnt(0)')
    a(f'v_cmp_ne_u32 vcc, 1, v{V_T2}')
    a(f's_cbranch_vccnz {name}_slow')
    a(f's_branch {name}_ok')
    a(f'{name}_end:')
    a('s_endpgm')
    kernel_desc(a, name, 256, 72, 128)
```

```python
from asmlib import *
from layout import *
from attn2 import LdsQ
from k2 import f2h, VmQ, code_prefetch

V_DK0, V_DK1, V_DV0, V_DV1, V_KA, V_VA, V_L16, V_L0, V_L1, V_MX, V_F0, V_F1, V_T0, V_T1, V_T2 = range(1, 16)
V_S, V_E, V_P, V_NEGM, V_RING = 16, 32, 48, 56, 64
V_PF, V_PFD, V_XO, V_FL = 116, 117, 118, 119
S_X, S_OUTP, S_WS, S_SRD, S_SRX, S_SRO = 4, 6, 40, 8, 12, 16
(S_KOFF, S_VOFF, S_KDMA, S_VDMA, S_VRD, S_CNT, S_W, S_QB, S_SPLIT, S_T0, S_T1, S_VALID, S_GRP, S_W8K, S_PFOFF, S_T2) = range(20, 36)
S_TILE, S_B125, S_T3, S_T4 = 36, 37, 38, 39
S_WB0, S_WB1, S_WB2, S_WB3, S_UCO, S_WCO, S_FLO, S_PO = range(56, 64)
S_PFS, S_PFST, S_PH, S_XCC, S_SLOW, S_PB = 44, 45, 46, 47, 48, 54

def Obase(beta, qh): return 128 + 8 * (beta % 16) + 4 * qh
def Oreg(beta, qh): return vr(Obase(beta, qh), 4) if beta < 16 else ar(Obase(beta, qh), 4)

def gen_attn(a, name, dma_gap=3, dma_cost=2, CAP=2, bar_pos=50, NR=13, LA=10, wait_every=4, THR=0x41800000,
             stamp=False, snake=True, prefetch=2, pf=True, pv_pace=4, pv_budget=6, out_flags='', npf=0, fast_st='nt', flag_at=140, force_slow=True, tailst=False, pfill=False, st_pace=9, ld_pace=2, yc_budget=2, bg_pace=10, tailpf=True, pf_flags='sc1', uc_pace=4, chk_at=60, dbg=(), brgap=3, chain=True, poll_after=8, r_pace=5, chk2_at=0, noyc=False, ld_per_st=0, flag_after=0, rounds=((56, 3), (112, 3))):
    SRD, SRX, SRO = [f's[{b}:{b+3}]' for b in (S_SRD, S_SRX, S_SRO)]
    def st(i, cyc=False):
        if tailst and 10 <= i <= 14: return
        if i >= 20:
            if not tailst: return
            i -= 10
        if stamp: a(f'{"s_memtime" if cyc else "s_memrealtime"} s[{64+2*i}:{65+2*i}]')
    kernel_begin(a, name)
    a(f's_cmp_ge_u32 s2, 256\n s_cbranch_scc1 {name}_end')
    a(f's_load_dwordx2 s[{S_WS}:{S_WS+1}], s[0:1], 88')
    a(f's_load_dwordx2 s[{S_X}:{S_X+1}], s[0:1], 0')
    a(f's_load_dwordx2 s[{S_OUTP}:{S_OUTP+1}], s[0:1], 72')
    st(0)
    if pf: code_prefetch(a, name, f'{name}_end', 13, 255, 42, 256, 0, 65536)
    a(f'v_lshrrev_b32 v{V_T0}, 6, v0')
    a(f'v_and_b32 v0, 63, v0')
    a(f'v_readfirstlane_b32 s{S_W}, v{V_T0}')
    a(f'v_lshlrev_b32 v{V_L16}, 4, v0')
    a(f's_and_b32 s{S_T0}, s2, 7')
    a(f's_lshr_b32 s{S_T1}, s2, 3')
    a(f's_and_b32 s{S_SPLIT}, s{S_T1}, 3')
    a(f's_lshr_b32 s{S_T1}, s{S_T1}, 2')
    a(f's_lshl_b32 s{S_PFOFF}, s{S_T1}, 2')
    a(f's_and_b32 s{S_TILE}, s{S_T0}, 3')
    a(f's_lshl_b32 s{S_TILE}, s{S_TILE}, 3')
    a(f's_add_u32 s{S_TILE}, s{S_TILE}, s{S_T1}')
    a(f's_lshr_b32 s{S_T0}, s{S_T0}, 2')
    a(f's_lshl_b32 s{S_GRP}, s{S_T0}, 5')
    a(f's_add_u32 s{S_GRP}, s{S_GRP}, s{S_TILE}')
    a(f's_mul_i32 s{S_B125}, s{S_T0}, 125')
    ucst = []
    def late_setup():
        a(f's_lshl_b32 s{S_QB}, s{S_TILE}, 2')
        a(f's_add_u32 s{S_QB}, s{S_QB}, s{S_W}')
        a(f's_cmp_lt_u32 s{S_QB}, 125')
        a(f's_cselect_b32 s{S_VALID}, 0, 0x80000000')
        a(f's_min_u32 s{S_QB}, s{S_QB}, 124')
        a(f's_add_u32 s{S_QB}, s{S_QB}, s{S_B125}')
        a(f's_mul_i32 s{S_T1}, s{S_SPLIT}, 31')
        a(f's_cmp_lg_u32 s{S_SPLIT}, 0')
        a(f's_addc_u32 s{S_T1}, s{S_T1}, s{S_B125}')
        a(f's_cmp_lg_u32 s{S_SPLIT}, 0')
        a(f's_cselect_b32 s{S_CNT}, 29, 30')
        a(f's_lshl_b32 s{S_KOFF}, s{S_T1}, 15')
        a(f's_add_u32 s{S_VOFF}, s{S_KOFF}, {WS_VT}')
        if WS_XA: a(f's_add_u32 s{S_KOFF}, s{S_KOFF}, {WS_XA}')
        a(f's_lshl_b32 s{S_W8K}, s{S_W}, 13')
        a(f'v_add_u32 v{V_DK0}, s{S_W8K}, v{V_L16}')
        a(f'v_add_u32 v{V_DK1}, 4096, v{V_DK0}')
        a(f's_add_u32 s{S_T1}, s{S_W}, s{S_SPLIT}')
        a(f's_and_b32 s{S_T1}, s{S_T1}, 3')
        a(f's_lshl_b32 s{S_T1}, s{S_T1}, 13')
        a(f'v_add_u32 v{V_DV0}, s{S_T1}, v{V_L16}')
        a(f'v_add_u32 v{V_DV1}, 4096, v{V_DV0}')
        make_srd(a, S_SRX, S_X, 0, 8192000)
        make_srd(a, S_SRO, S_OUTP, 0, 8192000)
        a(f's_mov_b32 s{S_PFS}, {f2h(1/512)}')
    a('s_waitcnt lgkmcnt(0)')
    make_srd(a, S_SRD, S_WS, 0, WS_SIZE)
    vm = VmQ()
    def emit(o, tag=None):
        a(o)
        if o.startswith('buffer_'): vm.issue(tag)
    def dma_ops(v0, v1, soff, sbase):
        ops = []
        for g in range(2):
            for i in range(4):
                pre = None
                if i == 0:
                    pre = f's_mov_b32 m0, s{sbase}' if g == 0 else f's_add_u32 m0, s{sbase}, 4096'
                ops.append((pre, f'buffer_load_dwordx4 v{v0 if g == 0 else v1}, {SRD}, s{soff} offen offset:{i*1024} lds'))
        return ops
    def emit_dma_now(tag, *args):
        for pre, op in dma_ops(*args):
            if pre: a(pre); a('s_nop 0')
            emit(op, tag)
    def xreduce(regs, op, tmp):
        for sw in ('v_permlane16_swap_b32', 'v_permlane32_swap_b32'):
            for i, r in enumerate(regs): a(f'v_mov_b32 v{tmp+i}, v{r}')
            if len(regs) < 3: a('s_nop 1')
            else: a('s_nop 0')
            for i, r in enumerate(regs): a(f'{sw} v{tmp+i}, v{r}')
            a('s_nop 1')
            for i, r in enumerate(regs): a(f'{op} v{r}, v{r}, v{tmp+i}')

    TB = 3 * TILE; GNB = TB + 2048; GS = 328; CS = 272
    RG, CA_, ST_, SC, UB, B1 = 16, 64, 104, 120, 224, 192
    S_VF = [S_WB0, S_WB1]; S_B6 = [S_WB2, S_WB3]
    a(f's_lshl_b32 s{S_T3}, s{S_SPLIT}, 2')
    a(f's_add_u32 s{S_T3}, s{S_T3}, s{S_W}')
    a(f's_lshl_b32 s{S_T4}, s{S_TILE}, 2')
    a(f's_sub_u32 s{S_T4}, s{S_T4}, 1')
    for rnd in range(2):
        if rnd == 0: a(f's_mov_b32 s{S_B6[0]}, s{S_W}')
        else:
            a(f's_cmp_lt_u32 s{S_W}, 2')
            a(f's_cselect_b32 s{S_T0}, 4, 0')
            a(f's_add_u32 s{S_B6[1]}, s{S_W}, s{S_T0}')
        a(f's_add_u32 s{S_T0}, s{S_T4}, s{S_B6[rnd]}')
        a(f's_cmp_lt_u32 s{S_T0}, 125')
        a(f's_cselect_b32 s{S_VF[rnd]}, 1.0, 0')
        a(f's_cselect_b32 s{S_T0}, s{S_T0}, 0')
        a(f's_add_u32 s{S_T0}, s{S_T0}, s{S_B125}')
        a(f's_lshl_b32 s{S_T0}, s{S_T0}, 11')
        a(f's_add_u32 s{S_T0}, s{S_T0}, {WS_ST}')
        for h in range(2):
            emit(f'buffer_load_dwordx4 {vr(ST_+8*rnd+4*h,4)}, v{V_L16}, {SRD}, s{S_T0} offen offset:{h*1024}', 'st')
    a(f's_lshl_b32 s{S_T2}, s{S_T3}, 11')
    def blk_off(b6, base, dst):
        a(f's_add_u32 s{dst}, s{S_T4}, {b6}')
        a(f's_cmp_lt_u32 s{dst}, 125')
        a(f's_cselect_b32 s{dst}, s{dst}, 0')
        a(f's_add_u32 s{dst}, s{dst}, s{S_B125}')
        a(f's_lshl_b32 s{dst}, s{dst}, 15')
        a(f's_add_u32 s{dst}, s{dst}, s{S_T2}')
    S_BO = [50, 51, 52, 53]
    for b6 in range(6):
        dst = S_BO[b6 - 1] if 1 <= b6 <= 4 else S_T0
        blk_off(b6, WS_G, dst)
        a(f's_add_u32 s{S_T1}, s{dst}, {WS_G}')
        for ch in range(2):
            emit(f'buffer_load_dwordx4 {vr(RG+8*b6+4*ch,4)}, v{V_L16}, {SRD}, s{S_T1} offen offset:{ch*1024}', ('g', b6))
    a(f's_mul_i32 s{S_T0}, s{S_T3}, 10240')
    a(f's_add_u32 s{S_T0}, s{S_T0}, {WS_DWT}')
    for i in range(10):
        if i % 4 == 0 and i: a(f's_add_u32 s{S_T0}, s{S_T0}, 4096')
        emit(f'buffer_load_dwordx4 {vr(CA_+4*i,4)}, v{V_L16}, {SRD}, s{S_T0} offen offset:{(i%4)*1024}', 'dw')
    late_setup()
    bg = []
    for b in range(4):
        bg.append(f's_add_u32 s{S_T1}, s{S_BO[b]}, {WS_U}')
        for th in range(2): bg.append((f'buffer_load_dwordx4 {vr(UB+8*b+4*th,4)}, v{V_L16}, {SRD}, s{S_T1} offen offset:{th*1024}', 'u'))
    def bg_dma(tag, *args):
        for pre, op in dma_ops(*args):
            if pre: bg.append(pre); bg.append('s_nop 0')
            bg.append((op, tag))
    bg.append(f's_mov_b32 s{S_KDMA}, s{S_W8K}')
    bg_dma('K0', V_DK0, V_DK1, S_KOFF, S_KDMA)
    bg.append(f's_lshl_b32 s{S_T1}, s{S_QB}, 15')
    bg.append(f's_add_u32 s{S_T1}, s{S_T1}, {WS_Q}')
    for f in range(32):
        if f % 4 == 0 and f: bg.append(f's_add_u32 s{S_T1}, s{S_T1}, 4096')
        bg.append((f'buffer_load_dwordx4 {ar(4*f,4)}, v{V_L16}, {SRD}, s{S_T1} offen offset:{(f%4)*1024}', ('Q', f)))
    bg += [f's_add_u32 s{S_KOFF}, s{S_KOFF}, {TILE}', f's_add_u32 s{S_KDMA}, s{S_KDMA}, {TILE}']
    bg_dma('K1', V_DK0, V_DK1, S_KOFF, S_KDMA)
    bg += [f's_add_u32 s{S_KOFF}, s{S_KOFF}, {TILE}', f's_add_u32 s{S_VDMA}, s{S_W8K}, {2*TILE}']
    bg_dma('V0', V_DV0, V_DV1, S_VOFF, S_VDMA)
    bgc = [0]
    def bgone():
        while bg:
            o = bg.pop(0)
            if isinstance(o, tuple):
                emit(*o); return
            a(o)
    def c(o, every=bg_pace):
        a(o); bgc[0] += 1
        if bgc[0] % every == 0: bgone()
    for i in range(128): c(f'v_accvgpr_write_b32 a{128+i}, 0', 16)
    for i in range(64): c(f'v_mov_b32 v{128+i}, 0', 16)
    a(f's_mul_i32 s{S_T0}, s{S_W}, {32*GS}')
    a(f's_add_u32 s{S_T0}, s{S_T0}, {GNB}')
    a(f'v_and_b32 v{V_T0}, 15, v0')
    a(f'v_lshrrev_b32 v{V_T1}, 4, v0')
    a(f'v_mul_u32_u24 v{V_F0}, {GS}, v{V_T0}')
    a(f'v_lshl_add_u32 v{V_F0}, v{V_T1}, 3, v{V_F0}')
    a(f'v_add_u32 v{V_F0}, s{S_T0}, v{V_F0}')
    a(f'v_lshlrev_b32 v{V_MX}, 4, v{V_T1}')
    a(f'v_add_u32 v{V_MX}, {TB}, v{V_MX}')
    a(f'v_lshrrev_b32 v{V_T2}, 2, v0')
    a(f'v_and_b32 v{V_T0}, 3, v0')
    a(f'v_mul_u32_u24 v{V_F1}, {GS}, v{V_T2}')
    a(f'v_lshl_add_u32 v{V_F1}, v{V_T0}, 6, v{V_F1}')
    a(f'v_add_u32 v{V_F1}, s{S_T0}, v{V_F1}')
    a(f'v_and_b32 v{V_T2}, 3, v{V_T2}')
    a(f'v_lshl_add_u32 v{V_T2}, v{V_T1}, 3, v{V_T2}')
    a(f'v_mul_u32_u24 v{V_T2}, {CS}, v{V_T2}')
    a(f'v_add_u32 v{V_T2}, s{S_T0}, v{V_T2}')
    a(f'v_lshl_add_u32 v{V_L0}, v{V_T0}, 6, v{V_T2}')
    a(f'v_lshl_add_u32 v{V_L1}, v{V_T0}, 3, v{V_T2}')
    st(10)
    a(f's_waitcnt vmcnt({vm.need("st")})')
    st(11)
    R = [ST_ + 8 * r + i for r in range(2) for i in range(4)]
    for r in range(2):
        for i in range(4): a(f'v_add_f32 v{ST_+8*r+i}, v{ST_+8*r+i}, v{ST_+8*r+4+i}')
    xreduce(R, 'v_add_f32', SC)
    a('s_nop 0')
    for x in R: a(f'v_mov_b32_dpp v{x+4}, v{x} row_ror:8 row_mask:0xf bank_mask:0xf')
    for x in R: a(f'v_mul_f32 v{x}, {f2h(1/512)}, v{x}')
    for i, x in enumerate(R): a(f'v_mul_f32 v{SC+i}, v{x}, v{x}')
    for i, x in enumerate(R): a(f'v_fma_f32 v{x+4}, v{x+4}, s{S_PFS}, -v{SC+i}')
    for x in R: a(f'v_max_f32 v{x+4}, 0, v{x+4}')
    for x in R: a(f'v_add_f32 v{x+4}, {f2h(1e-5)}, v{x+4}')
    for x in R: a(f'v_rsq_f32 v{x+4}, v{x+4}')
    for i, x in enumerate(R): a(f'v_mul_f32 v{x+4}, s{S_VF[i>>2]}, v{x+4}')
    for x in R: a(f'v_mul_f32 v{x}, -v{x}, v{x+4}')
    a('s_mov_b64 exec, 0xff')
    for r in range(2):
        a(f's_lshl_b32 s{S_T0}, s{S_B6[r]}, 8')
        a(f's_add_u32 s{S_T0}, s{S_T0}, {TB}')
        a(f'v_add_u32 v{V_T0}, s{S_T0}, v{V_L16}')
        a(f'ds_write_b128 v{V_T0}, {vr(ST_+8*r+4,4)}')
        a(f'ds_write_b128 v{V_T0}, {vr(ST_+8*r,4)} offset:128')
    a('s_mov_b64 exec, -1')
    a('s_waitcnt lgkmcnt(0)')
    a('s_barrier')
    st(12)
    if stamp: a('s_waitcnt lgkmcnt(0)')
    halves = [(b6, hf) for b6 in range(6) for hf in range(2) if not (b6 == 0 and hf == 0) and not (b6 == 5 and hf == 1)]
    lq = LdsQ()
    def tread(n):
        b6, hf = halves[n]
        t = ST_ + 8 * (n % 2)
        a(f'ds_read_b128 {vr(t,4)}, v{V_MX} offset:{b6*256 + hf*64}'); lq.issue(('t', n))
        a(f'ds_read_b128 {vr(t+4,4)}, v{V_MX} offset:{b6*256 + hf*64 + 128}'); lq.issue(('t', n))
    tread(0)
    for n, (b6, hf) in enumerate(halves):
        if n + 1 < len(halves): tread(n + 1)
        t = ST_ + 8 * (n % 2)
        a(f's_waitcnt vmcnt({vm.need(("g", b6))}) lgkmcnt({lq.need(("t", n))})')
        for ch in range(2):
            for i in range(2):
                r = RG + 8 * b6 + 4 * ch + 2 * hf + i
                c(f'v_lshlrev_b32 v{SC+4*ch+2*i}, 16, v{r}')
                c(f'v_and_b32 v{SC+4*ch+2*i+1}, 0xffff0000, v{r}')
        for ch in range(2):
            for i in range(2):
                c(f'v_pk_fma_f32 {vr(SC+4*ch+2*i,2)}, {vr(SC+4*ch+2*i,2)}, {vr(t+2*i,2)}, {vr(t+4+2*i,2)}')
        for ch in range(2):
            r = RG + 8 * b6 + 4 * ch + 2 * hf
            for i in range(2): c(f'v_cvt_pk_bf16_f32 v{r+i}, v{SC+4*ch+2*i}, v{SC+4*ch+2*i+1}')
            a(f'ds_write_b64 v{V_F0}, {vr(r,2)} offset:{ch*16*GS + (8*b6 - 4 + 4*hf)*8}'); lq.issue('w')
    st(13)
    if stamp: a('s_waitcnt lgkmcnt(0)')
    BR = [B1, 16]; AC = [48, 104]
    def acc(ch, aa): return (48 + 4 * aa) if aa < 4 else (104 + 4 * (aa - 4))
    for ch in range(2):
        for e in range(16):
            a(f'ds_read_b64 {vr(BR[ch]+2*e,2)}, v{V_F1} offset:{ch*16*GS + e*8}'); lq.issue(('b', ch, e))
    a(f's_waitcnt vmcnt({vm.need("dw")})')
    PKc = 120
    for ch in range(2):
        for dl in range(9):
            a(f's_waitcnt lgkmcnt({min(15, lq.need(("b", ch, dl + 7)))})')
            for aa in range(8):
                d = vr(acc(ch, aa), 4)
                c(f'v_mfma_f32_4x4x4_16b_bf16 {d}, {vr(CA_+20*ch+2*dl,2)}, {vr(BR[ch]+2*(aa+dl),2)}, {d if dl else 0}', bg_pace // 2)
        if ch == 0: a('s_waitcnt lgkmcnt(0)')
        a('s_nop 3')
        for p in range(4):
            pk = PKc + 4 * (p & 1)
            for k in range(2):
                b = acc(ch, 2 * p + k)
                c(f'v_cvt_pk_bf16_f32 v{pk+2*k}, v{b}, v{b+1}')
                c(f'v_cvt_pk_bf16_f32 v{pk+2*k+1}, v{b+2}, v{b+3}')
            a(f'ds_write_b128 v{V_L0}, {vr(pk,4)} offset:{ch*4*CS + 16*p}'); lq.issue('cw')
    st(14)
    if stamp: a('s_waitcnt lgkmcnt(0)')
    TRD = 16
    for fr in range(8):
        for jj in range(2):
            a(f'ds_read_b64_tr_b16 {vr(TRD+4*fr+2*jj,2)}, v{V_L1} offset:{jj*4*CS + fr*32}'); lq.issue(('tr', fr))
    a(f's_lshl_b32 s{S_PO}, s{S_GRP}, 17')
    a(f's_add_u32 s{S_PO}, s{S_PO}, s{S_T2}')
    a(f's_add_u32 s{S_PO}, s{S_PO}, {WS_UC}')
    a(f's_waitcnt vmcnt({min(63, vm.need("u"))})')
    for fr in range(8):
        cc = TRD + 4 * fr; ub = 64 + 16 * (fr & 1); u = UB + 4 * fr
        a(f's_waitcnt lgkmcnt({lq.need(("tr", fr))})')
        for i in range(4):
            c(f'v_lshlrev_b32 v{ub+2*i}, 16, v{cc+i}')
            c(f'v_and_b32 v{ub+2*i+1}, 0xffff0000, v{cc+i}')
        for i in range(4):
            c(f'v_lshlrev_b32 v{ub+8+2*i}, 16, v{u+i}')
            c(f'v_and_b32 v{ub+8+2*i+1}, 0xffff0000, v{u+i}')
        for i in range(4): c(f'v_pk_mul_f32 {vr(ub+2*i,2)}, {vr(ub+2*i,2)}, {vr(ub+8+2*i,2)}')
        for i in range(4): c(f'v_cvt_pk_bf16_f32 v{u+i}, v{ub+2*i}, v{ub+2*i+1}')
        ucst.append((f'buffer_store_dwordx4 {vr(u,4)}, v{V_L16}, {SRD}, s{S_PO} offen offset:{(fr&1)*1024} sc1', fr))
    while bg: bgone()
    for op, fr in ucst:
        if fr % 2 == 0 and fr: a(f's_add_u32 s{S_PO}, s{S_PO}, {TILE}')
        emit(op, 'ucs')
    a(f's_add_u32 s{S_VOFF}, s{S_VOFF}, {TILE}')
    a(f's_add_u32 s{S_VDMA}, s{S_VDMA}, {TILE}')
    a(f's_mov_b32 s{S_KDMA}, s{S_W8K}')
    a(f's_mov_b32 s{S_VRD}, {2*TILE}')
    st(1)
    if prefetch:
        a(f's_add_u32 s{S_PFOFF}, s{S_PFOFF}, s{S_W}')
        a(f's_and_b32 s{S_T1}, s{S_PFOFF}, 15')
        a(f's_lshl_b32 s{S_T1}, s{S_T1}, 11')
        a(f's_cmp_ge_u32 s{S_PFOFF}, 16')
        a(f's_cselect_b32 s{S_PFOFF}, {WS_VT - WS_XA - TILE}, 0')
        a(f's_add_u32 s{S_T1}, s{S_T1}, s{S_PFOFF}')
        a(f's_add_u32 s{S_T1}, s{S_T1}, {prefetch * TILE}')
        a(f'v_lshlrev_b32 v{V_PF}, 5, v0')
        a(f'v_add_u32 v{V_PF}, s{S_T1}, v{V_PF}')
    a(f'v_and_b32 v{V_T0}, 15, v0')
    a(f'v_lshrrev_b32 v{V_T1}, 4, v0')
    a(f'v_lshlrev_b32 v{V_T2}, 4, v{V_T1}')
    a(f'v_lshl_add_u32 v{V_XO}, v{V_T0}, 10, v{V_T2}')
    a(f'v_mov_b32 v{V_KA}, v{V_L16}')
    a(f'v_add_u32 v{V_VA}, s{S_VRD}, v{V_L16}')
    a(f'v_mov_b32 v{V_L0}, 0')
    a(f'v_mov_b32 v{V_L1}, 0')
    nround = -(-64 // NR)
    sizes = [64 // nround + (1 if i < 64 % nround else 0) for i in range(nround)]
    slotmap = [i for sz in sizes for i in range(sz)]
    assert LA + 1 <= min(sizes) and max(sizes) <= NR and V_RING + 4 * NR <= V_PF
    def slot(f): return V_RING + 4 * slotmap[f % 64]
    def rd(f):
        if f < 32 and chain: return f'ds_read_b128 {vr(slot(f),4)}, v{V_KA} offset:{((f & 15)*2 + (f >> 4))*1024}'
        if f < 32: return f'ds_read_b128 {vr(slot(f),4)}, v{V_KA} offset:{f*1024}'
        return f'ds_read_b128 {vr(slot(f),4)}, v{V_VA} offset:{(f-32)*1024}'
    def Sreg(kh, qh): return V_S + (kh * 2 + qh) * 4
    def mfmas(f, zero_c=False):
        order = (1, 0) if (snake and (f & 1)) else (0, 1)
        out = []
        if chain and f < 32:
            kh = f >> 4; s0 = f & 14; qh = (f & 1) ^ ((f >> 1) & 1); fb = f & ~1
            for k in range(2):
                s = s0 + k
                c = vr(Sreg(kh, qh), 4) if s else ('0' if zero_c else vr(V_NEGM + 4 * qh, 4))
                out.append(f'v_mfma_f32_16x16x32_bf16 {vr(Sreg(kh,qh),4)}, {vr(slot(fb+k),4)}, {ar((s*2+qh)*4,4)}, {c}')
            return out
        for qh in order:
            if f < 32:
                s, kh = f >> 1, f & 1
                c = vr(Sreg(kh, qh), 4) if s else ('0' if zero_c else vr(V_NEGM + 4 * qh, 4))
                out.append(f'v_mfma_f32_16x16x32_bf16 {vr(Sreg(kh,qh),4)}, {vr(slot(f),4)}, {ar((s*2+qh)*4,4)}, {c}')
            else:
                b = f - 32
                out.append(f'v_mfma_f32_16x16x32_bf16 {Oreg(b,qh)}, {vr(slot(f),4)}, {vr(V_P+4*qh,4)}, {Oreg(b,qh)}')
        return out
    a(f's_waitcnt vmcnt({vm.need(("Q", 31))})')
    a('s_barrier')
    q = LdsQ()
    zero = [f'v_mov_b32 v{192+i}, 0' for i in range(64)]
    for f in range(LA):
        a(rd(f)); q.issue(f)
    for f in range(32):
        a(f's_waitcnt lgkmcnt({q.need(f | 1)})')
        for m in mfmas(f, zero_c=True):
            a(m)
            if zero: a(zero.pop(0))
        if f + LA < 32:
            a(rd(f + LA)); q.issue(f + LA)
    a('s_nop 7')
    def max_all():
        ops = [f'v_max3_f32 v{V_MX}, v{V_S}, v{V_S+1}, v{V_S+2}']
        for i in range(6): ops.append(f'v_max3_f32 v{V_MX}, v{V_MX}, v{V_S+3+2*i}, v{V_S+4+2*i}')
        ops.append(f'v_max_f32 v{V_MX}, v{V_MX}, v{V_S+15}')
        return ops
    def rowmax2(d0, d1, tmp):
        for qh, dst in ((0, d0), (1, d1)):
            r0, r1 = Sreg(0, qh), Sreg(1, qh)
            a(f'v_max3_f32 v{dst}, v{r0}, v{r0+1}, v{r0+2}')
            a(f'v_max3_f32 v{dst}, v{dst}, v{r0+3}, v{r1}')
            a(f'v_max3_f32 v{dst}, v{dst}, v{r1+1}, v{r1+2}')
            a(f'v_max_f32 v{dst}, v{dst}, v{r1+3}')
        xreduce([d0, d1], 'v_max_f32', tmp)
    exp_ops = [f'v_exp_f32 v{V_E+i}, v{V_S+i}' for i in range(16)]
    sum_ops = [f'v_add_f32 v{V_L1 if (i >> 2) & 1 else V_L0}, v{V_L1 if (i >> 2) & 1 else V_L0}, v{V_E+i}' for i in range(16)]
    cvt_ops = []
    for qh in range(2):
        for kh in range(2):
            e = V_E + (kh * 2 + qh) * 4
            for i in range(2):
                cvt_ops.append(f'v_cvt_pk_bf16_f32 v{V_P+4*qh+2*kh+i}, v{e+2*i}, v{e+2*i+1}')
    rowmax2(V_F0, V_F1, 120)
    for qh, dst in ((0, V_F0), (1, V_F1)):
        for kh in range(2):
            for i in range(4): a(f'v_sub_f32 v{Sreg(kh,qh)+i}, v{Sreg(kh,qh)+i}, v{dst}')
        for i in range(4): a(f'v_sub_f32 v{V_NEGM+4*qh+i}, 0, v{dst}')
    for o in exp_ops: a(o)
    for o in zero: a(o)
    a(f'v_xor_b32 v{V_KA}, 0x8000, v{V_KA}')
    a(f's_getreg_b32 s{S_XCC}, hwreg(HW_REG_XCC_ID, 0, 4)')
    a(f's_add_u32 s{S_XCC}, s{S_XCC}, 1')
    a(f's_lshl_b32 s{S_FLO}, s{S_GRP}, 9')
    a(f's_add_u32 s{S_FLO}, s{S_FLO}, {WS_FLAG}')
    a(f'v_and_b32 v{V_FL}, 3, v0')
    a(f'v_lshlrev_b32 v{V_FL}, 7, v{V_FL}')
    a('s_waitcnt vmcnt(0)')
    a('s_barrier')
    def flag_store(off):
        lab = a.label(name + '_fs')
        a(f's_cmp_lg_u32 s{S_W}, 0')
        a(f's_cbranch_scc1 {lab}')
        a(f's_lshl_b32 s{S_T3}, s{S_SPLIT}, 7')
        a(f's_add_u32 s{S_T3}, s{S_T3}, s{S_FLO}')
        a(f'v_mov_b32 v{V_T0}, 0\n v_mov_b32 v{V_T1}, s{S_XCC}')
        a('s_mov_b64 exec, 1')
        a(f'buffer_store_dword v{V_T1}, v{V_T0}, {SRD}, s{S_T3} offen offset:{off} sc1')
        a('s_mov_b64 exec, -1')
        a(f'{lab}:')
    flag_store(0)
    st(2); st(8, True)
    if stamp: a('s_waitcnt lgkmcnt(0)')
    q = LdsQ()
    for f in range(LA):
        a(rd(f)); q.issue(f)

    L_loop = f'{name}_loop'
    rare = []
    border = list(range(8, 32)) + list(range(8))
    YB = 192
    stream = [('pv', b) for b in border] + [('yc', T, f) for T in range(4) for f in range(32)]
    NS = len(stream)
    WA = [V_VA, V_DV0, V_DV1, V_PF]
    def srd_(i):
        it = stream[i]
        if it[0] == 'pv': return f'ds_read_b128 {vr(slot(i),4)}, v{V_KA} offset:{it[1]*1024}'
        if chain and it[1]: return f'ds_read_b128 {vr(slot(i),4)}, v{WA[it[1]]} offset:{((it[2] & 15)*2 + (it[2] >> 4))*1024}'
        return f'ds_read_b128 {vr(slot(i),4)}, v{WA[it[1]]} offset:{it[2]*1024}'
    def ucload(f):
        ops = []
        if f % 4 == 0 and f: ops.append(f's_add_u32 s{S_UCO}, s{S_UCO}, 4096')
        ops.append((f'buffer_load_dwordx4 {ar(4*f,4)}, v{V_L16}, {SRD}, s{S_UCO} offen offset:{(f%4)*1024} sc1', ('uc', f)))
        return ops
    stubs = []
    class Dual:
        def __init__(self, op, tag, fast): self.op, self.tag, self.fast = op, tag, fast
    def em(o):
        if isinstance(o, Dual) and force_slow:
            emit(f'{o.op} sc1', o.tag); return
        if isinstance(o, Dual):
            lab = a.label(name + '_ds')
            a(f's_cbranch_vccnz {lab}')
            emit(f'{o.op} {o.fast}', o.tag)
            a(f'{lab}b:')
            stubs.append((lab, o.op))
            return
        if callable(o): o = o()
        if noyc and isinstance(o, tuple) and ((o[1] == 'x' and 'x' in noyc) or (isinstance(o[1], tuple) and o[1][0] in ('uc', 'wc') and o[1][0] in noyc)):
            vm.last[o[1]] = vm.last.get('dL', 0); return
        if isinstance(o, tuple): emit(*o)
        else: emit(o)
    nuc = [0]
    def body(last):
        tag = 'L' if last else 'M'
        L_r1, L_r1b, L_r2, L_r2b = [f'{name}_{x}{tag}' for x in ('r1', 'r1b', 'r2', 'r2b')]
        rare.append((L_r1, L_r1b, L_r2, L_r2b))
        fill = [[] for _ in range(128)]
        cap = [CAP - 1 if p % 2 == 0 else CAP for p in range(128)]
        for p in range(128):
            if p % 2 == 1 and ((p + 1) // 2) % wait_every == 0: cap[p] -= 1
        cap[127] -= 3
        def put(pos, ops, cost):
            if not isinstance(ops, list): ops = [ops]
            while cap[pos] < cost: pos += 1
            cap[pos] -= cost
            fill[pos] += ops
            return pos
        if not last: bw = f's_waitcnt vmcnt({1 if prefetch else 0})'
        else: bw = lambda: f's_waitcnt vmcnt({vm.need("dL")})'
        pb = put(2 * bar_pos + 1, [bw] + ([] if 'nobar' in dbg and not last else ['s_barrier']), 2)
        assert pb < 2 * (64 - LA)
        dk, dv = dma_ops(V_DK0, V_DK1, S_WCO if last else S_KOFF, S_KDMA), dma_ops(V_DV0, V_DV1, S_VOFF, S_VDMA)
        dm = dv + dk if last else dk + dv
        p = 0
        if last and not tailpf:
            p = put(p, (f'buffer_load_dword v{V_PFD}, v{V_FL}, {SRD}, s{S_FLO} offen sc1', 'poll'), dma_cost) + 1
            for c in range(npf, 3 if pfill else 0):
                p = put(p, f'buffer_load_dword v{V_T0}, v{V_PF}, {SRD}, s{S_PFS} offen', dma_cost) + 1
                p = put(p, f's_add_u32 s{S_PFS}, s{S_PFS}, 8192', 1) + 1
            if pfill: p = put(p, f'buffer_load_dword v{V_T0}, v{V_L16}, {SRD}, s{S_PFS} offen', dma_cost) + 1
        for pre, op in dm:
            if pre: p = put(p, pre, 1) + 1
            p = put(p, (op, 'dL'), dma_cost) + dma_gap
        if prefetch and not last:
            p = put(p, f'buffer_load_dword v{V_PFD}, v{V_PF}, s[96:99], s{S_PFS} offen {pf_flags}', dma_cost) + 1
        pdma = p
        assert pdma <= pb
        if last and not tailpf:
            p = put(56, [lambda: f's_waitcnt vmcnt({vm.need("poll")})', f'v_cmp_eq_u32 s[{S_T3}:{S_T3+1}], 0, v{V_PFD}'], 2) + 2
            p = put(p, [f's_cmp_eq_u64 s[{S_T3}:{S_T3+1}], 0', f's_cbranch_scc0 {name}_cfslow', f'{name}_cfok:'], 2) + 1
            p = put(p, f'v_cmp_ne_u32 s[{S_SLOW}:{S_SLOW+1}], s{S_XCC}, v{V_PFD}', 1) + 1
            assert p <= pdma + 4
        p = 68
        for o in max_all(): p = put(p, o, 1)
        p = put(p, f'v_cmp_lt_f32 vcc, {hex(THR)}, v{V_MX}', 1) + 1
        p = put(p + brgap, ([] if 'nobr1' in dbg else [f's_cbranch_vccnz {L_r1}']) + [f'{L_r1b}:'], 1) + 1
        for i, o in enumerate(exp_ops):
            if 'noexp' not in dbg: p = put(p, o, 2)
        p = 0
        for o in cvt_ops: p = put(p, o, 1)
        for o in sum_ops: p = put(p, o, 1)
        assert p < 60
        upd = [f's_add_u32 s{S_KOFF}, s{S_KOFF}, {TILE}', f's_add_u32 s{S_PFS}, s{S_PFS}, s{S_PFST}',
               f's_add_u32 s{S_VOFF}, s{S_VOFF}, {TILE}',
               f's_xor_b32 s{S_KDMA}, s{S_KDMA}, {TILE}',
               f's_add_u32 s{S_VDMA}, s{S_VDMA}, {TILE}',
               f's_cmp_ge_u32 s{S_VDMA}, {5*TILE}', f's_cselect_b32 s{S_T1}, {3*TILE}, 0',
               f's_sub_u32 s{S_VDMA}, s{S_VDMA}, s{S_T1}',
               f's_add_u32 s{S_VRD}, s{S_VRD}, {TILE}',
               f's_cmp_ge_u32 s{S_VRD}, {5*TILE}', f's_cselect_b32 s{S_VRD}, {2*TILE}, s{S_VRD}',
               f's_sub_u32 s{S_CNT}, s{S_CNT}, 1']
        if not last:
            p = pdma
            for o in upd: p = put(p, o, 1)
            put(2 * (32 - LA) + 1, f'v_xor_b32 v{V_KA}, 0x8000, v{V_KA}', 1)
            put(max(p + 1, 2 * (64 - LA) + 1), f'v_add_u32 v{V_VA}, s{S_VRD}, v{V_L16}', 1)
        else:
            p = 2 * (32 - LA) + 1
            for o in [f's_sub_u32 s{S_KOFF}, s{S_VDMA}, s{S_W8K}', f'v_add_u32 v{V_KA}, s{S_KOFF}, v{V_L16}',
                      f's_sub_u32 s{S_WB0}, s{S_KDMA}, s{S_W8K}', f's_xor_b32 s{S_WB1}, s{S_WB0}, {TILE}', f's_mov_b32 s{S_WB3}, s{S_VRD}',
                      f's_add_u32 s{S_WB2}, s{S_WB3}, s{S_KOFF}', f's_sub_u32 s{S_WB2}, {9*TILE}, s{S_WB2}']:
                p = put(p, o, 1) + 1
            p = max(pdma, 66)
            while p < 127 and nuc[0] < 32:
                fill[p] += ucload(nuc[0]); nuc[0] += 1
                p += uc_pace
        for f in range(64):
            if f % wait_every == 0:
                a(f's_waitcnt lgkmcnt({q.need(min(f + wait_every - 1, 63))})')
            mm = mfmas(f)
            a(mm[0])
            nf = f + LA
            if nf < 64 or not last:
                a(rd(nf % 64)); q.issue(nf % 64)
            else:
                a(srd_(nf - 64)); q.issue(('s', nf - 64))
            for o in fill[2 * f]: em(o)
            a(mm[1])
            for o in fill[2 * f + 1]: em(o)
        if 'nobr2' not in dbg: a(f's_cbranch_vccnz {L_r2}')
        a(f'{L_r2b}:')
    a(f's_lshl_b32 s{S_WCO}, s{S_SPLIT}, 17')
    a(f's_add_u32 s{S_WCO}, s{S_WCO}, {WS_WC}')
    a(f's_lshl_b32 s{S_UCO}, s{S_GRP}, 2')
    a(f's_add_u32 s{S_UCO}, s{S_UCO}, s{S_W}')
    a(f's_lshl_b32 s{S_UCO}, s{S_UCO}, 15')
    a(f's_add_u32 s{S_UCO}, s{S_UCO}, {WS_UC}')
    a(f's_mov_b32 s{S_PFS}, s{S_KOFF}')
    a(f's_mov_b32 s{S_PFST}, {TILE}')
    a(f's_mov_b32 s{S_PH}, 0')
    NPH = 4 if tailpf else 0
    a(f's_sub_u32 s{S_CNT}, s{S_CNT}, {NPH}')
    make_srd(a, 96, S_WS, 0, WS_SIZE)
    a(f's_lshl_b32 s{S_PB}, s{S_GRP}, 2')
    a(f's_add_u32 s{S_PB}, s{S_PB}, s{S_SPLIT}')
    a(f's_lshl_b32 s{S_PB}, s{S_PB}, 2')
    a(f's_add_u32 s{S_PB}, s{S_PB}, s{S_W}')
    a(f's_lshl_b32 s{S_PB}, s{S_PB}, 15')
    a(f's_add_u32 s{S_PB}, s{S_PB}, {WS_PART}')
    a('.p2align 6')
    a(f'{L_loop}:')
    body(False)
    a(f's_cmp_lg_u32 s{S_CNT}, 0')
    a(f's_cbranch_scc1 {L_loop}')
    if tailpf:
        a(f's_add_u32 s{S_PH}, s{S_PH}, 1')
        a(f's_mov_b32 s{S_CNT}, 1')
        a(f's_cmp_eq_u32 s{S_PH}, 5\n s_cbranch_scc1 {name}_ph5')
        a(f's_cmp_eq_u32 s{S_PH}, 4\n s_cbranch_scc1 {name}_ph4')
        a(f's_cmp_eq_u32 s{S_PH}, 3\n s_cbranch_scc1 {name}_ph3')
        a(f's_cmp_eq_u32 s{S_PH}, 2\n s_cbranch_scc1 {name}_ph2')
        a(f's_mov_b32 s96, s{S_X}\n s_mov_b32 s97, s{S_X+1}\n s_mov_b32 s98, 8192000')
        a(f'v_lshrrev_b32 v{V_PF}, 1, v0')
        a(f'v_lshlrev_b32 v{V_PF}, 10, v{V_PF}')
        a(f'v_and_b32 v{V_T0}, 1, v0')
        a(f'v_lshl_add_u32 v{V_PF}, v{V_T0}, 7, v{V_PF}')
        a(f's_lshl_b32 s{S_PFS}, s{S_QB}, 15')
        a(f's_lshl_b32 s{S_T1}, s{S_SPLIT}, 8')
        a(f's_add_u32 s{S_PFS}, s{S_PFS}, s{S_T1}')
        a(f's_branch {L_loop}')
        a(f'{name}_ph2:')
        a(f's_mov_b32 s96, s{S_WS}\n s_mov_b32 s97, s{S_WS+1}\n s_mov_b32 s98, {WS_SIZE}')
        a(f'v_mov_b32 v{V_PF}, v{V_FL}')
        a(f's_mov_b32 s{S_PFS}, s{S_FLO}')
        a(f's_branch {L_loop}')
        a(f'{name}_ph3:')
        a('s_waitcnt vmcnt(0)')
        a(f'v_cmp_eq_u32 s[{S_T3}:{S_T3+1}], 0, v{V_PFD}')
        a(f'v_lshlrev_b32 v{V_PF}, 7, v0')
        a(f's_lshl_b32 s{S_PFS}, s{S_SPLIT}, 13')
        a(f's_add_u32 s{S_PFS}, s{S_PFS}, s{S_UCO}')
        a('s_nop 1')
        a(f's_cmp_eq_u64 s[{S_T3}:{S_T3+1}], 0')
        a(f's_cbranch_scc0 {name}_cfslow')
        a(f'{name}_cfok:')
        a(f's_branch {L_loop}')
        a(f'{name}_ph4:')
        a(f'v_lshlrev_b32 v{V_PF}, 6, v0')
        a(f's_and_b32 s{S_PFS}, s{S_TILE}, 7')
        a(f's_lshl_b32 s{S_PFS}, s{S_PFS}, 2')
        a(f's_add_u32 s{S_PFS}, s{S_PFS}, s{S_W}')
        a(f's_lshl_b32 s{S_PFS}, s{S_PFS}, 12')
        a(f's_add_u32 s{S_PFS}, s{S_PFS}, s{S_WCO}')
        a(f's_branch {L_loop}')
        a(f'{name}_ph5:')
    st(3); st(9, True)
    if stamp: a('s_waitcnt lgkmcnt(0)')
    body(True)
    st(15)
    if stamp: a('s_waitcnt lgkmcnt(0)')
    def smf(i):
        it = stream[i]; out = []
        if chain and it[0] == 'yc' and it[1]:
            T, f = it[1], it[2]; ch = f >> 4; qh = (f & 1) ^ ((f >> 1) & 1)
            d = vr(YB + 8 * (2 * T + ch) + 4 * qh, 4)
            for k in range(2):
                s = (f & 14) + k
                out.append(f'v_mfma_f32_16x16x32_bf16 {d}, {vr(slot((i & ~1) + k),4)}, {ar((s*2+qh)*4,4)}, {d if s else 0}')
            return out
        for qh in ((1, 0) if (snake and (i & 1)) else (0, 1)):
            if it[0] == 'pv':
                out.append(f'v_mfma_f32_16x16x32_bf16 {Oreg(it[1],qh)}, {vr(slot(i),4)}, {vr(V_P+4*qh,4)}, {Oreg(it[1],qh)}')
            else:
                T, f = it[1], it[2]; s, ch = f >> 1, f & 1
                d = vr(YB + 8 * (2 * T + ch) + 4 * qh, 4)
                out.append(f'v_mfma_f32_16x16x32_bf16 {d}, {vr(slot(i),4)}, {ar((s*2+qh)*4,4)}, {d if s else 0}')
        return out
    a(f's_mov_b64 vcc, s[{S_SLOW}:{S_SLOW+1}]' if not force_slow else 's_mov_b64 vcc, -1')
    for o in cvt_ops: a(o)
    a(f's_lshl_b32 s{S_T0}, s{S_GRP}, 2')
    a(f'v_add_u32 v{WA[0]}, s{S_WB0}, v{V_L16}')
    pend = [(0, o, 1) for o in sum_ops]
    for i, sb in enumerate((S_WB1, S_WB2, S_WB3)): pend.append((0, f'v_add_u32 v{WA[i+1]}, s{sb}, v{V_L16}', 1))
    rot = 0
    for qd in range(1, 4):
        hdr = [f's_add_u32 s{S_PO}, s{S_PB}, {(qd-1)*8192}']
        for gm in range(4):
            for qh in range(2):
                b0 = 8 * qd + 2 * gm
                ready = 2 * (border.index(b0 + 1) + 1) + 6
                idx = gm * 2 + qh
                if idx == 0:
                    for h in hdr: pend.append((0, h, 1))
                if idx == 4: pend.append((ready, f's_add_u32 s{S_PO}, s{S_PO}, 4096', 1))
                tb = V_S + 8 * (rot % 2); pk = V_E + 4 * (rot % 4); rot += 1
                srcs = []
                for b in range(2):
                    for r in range(4):
                        o = Obase(b0 + b, qh) + r
                        if qd == 1: srcs.append(o)
                        else:
                            pend.append((ready, f'v_accvgpr_read_b32 v{tb+4*b+r}, a{o}', 1)); srcs.append(tb + 4 * b + r)
                for r in range(4): pend.append((ready, f'v_cvt_pk_bf16_f32 v{pk+r}, v{srcs[2*r]}, v{srcs[2*r+1]}', 1))
                pend.append((ready, Dual(f'buffer_store_dwordx4 {vr(pk,4)}, v{V_L16}, {SRD}, s{S_PO} offen offset:{(idx%4)*1024}', 'part', fast_st), 2))
    def stats_block():
        xreduce([V_L0, V_L1], 'v_add_f32', 124)
        a(f'v_mov_b32 v120, v{V_L0}')
        a(f'v_sub_f32 v121, 0, v{V_NEGM}')
        a(f'v_mov_b32 v122, v{V_L1}')
        a(f'v_sub_f32 v123, 0, v{V_NEGM+4}')
        a(f's_add_u32 s{S_T1}, s{S_PB}, {3*8192}')
        em(Dual(f'buffer_store_dwordx4 v[120:123], v{V_L16}, {SRD}, s{S_T1} offen', 'part', fast_st))
    XV = V_P
    def x_setup():
        a(f'v_lshrrev_b32 v{V_T0}, 4, v0')
        a(f'v_and_b32 v{V_T1}, 15, v0')
        a(f'v_xor_b32 v{V_T2}, v{V_T0}, v{V_T1}')
        a(f'v_lshlrev_b32 v{V_T2}, 4, v{V_T2}')
        a(f'v_lshl_add_u32 v{XV}, v{V_T0}, 10, v{V_T2}')
        for i in range(1, 4): a(f'v_xor_b32 v{XV+i}, {i*64}, v{XV}')
        a(f's_add_u32 s{S_KOFF}, s{S_KOFF}, s{S_W8K}')
        a(f'v_lshl_add_u32 v{XV+4}, v{V_T1}, 8, v{V_T2}')
        a(f'v_add_u32 v{XV+4}, s{S_KOFF}, v{XV+4}')
        for i in range(1, 4): a(f'v_xor_b32 v{XV+4+i}, {i*64}, v{XV+4}')
        a(f'v_add_u32 v{V_XO}, s{S_KOFF}, v{V_L16}')
        a(f's_lshl_b32 s{S_T4}, s{S_QB}, 15')
        a(f's_lshl_b32 s{S_T1}, s{S_SPLIT}, 8')
        a(f's_add_u32 s{S_T4}, s{S_T4}, s{S_T1}')
    def wc_dma(T):
        out = []
        first = [f's_add_u32 s{S_WCO}, s{S_WCO}, {TILE}', f's_add_u32 s{S_T2}, s{(S_WB0, S_WB1, S_WB2, S_WB3)[T]}, s{S_W8K}']
        for pre, op in dma_ops(V_DK0, V_DK1, S_WCO, S_T2):
            g = first; first = []
            if pre: g += [pre, 's_nop 0']
            out.append(g + [(op, ('wc', T))])
        return out
    dq = [ucload(f) for f in range(nuc[0], 32)]
    def xdma():
        return [[f's_add_u32 m0, s{S_KOFF}, {k*1024}', f's_add_u32 s{S_T1}, s{S_T4}, {k*4096}',
                 (f'buffer_load_dwordx4 v{XV+(k&3)}, {SRX}, s{S_T1} offen lds', 'x')] for k in range(8)]
    def pop():
        _, op, c = pend.pop(0); em(op)
        if isinstance(op, Dual):
            for _ in range(ld_per_st):
                if dq:
                    for o in dq.pop(0): em(o)
        return c
    lim = [64]
    def run(i0, i1, every=0):
        for i in range(i0, i1):
            it = stream[i]; w = []
            if it[0] == 'yc' and it[1] == 0 and it[2] % 2 == 0: w.append(f'vmcnt({min(63, vm.need(("uc", it[2] | 1)))})')
            if i % 2 == 0: w.append(f'lgkmcnt({q.need(("s", min(i + 1, NS - 1)))})')
            if w: a('s_waitcnt ' + ' '.join(w))
            mm = smf(i)
            for h in range(2):
                pos = 2 * i + h
                a(mm[h])
                budget = pv_budget
                if h == 0 and i + LA < NS:
                    nx = stream[i + LA]
                    if nx[0] == 'yc' and nx[2] == 0 and nx[1] in (1, 2):
                        a(f's_waitcnt vmcnt({min(63, vm.need(("wc", 1 if nx[1] == 1 else 3)))})')
                        a('s_barrier')
                    a(srd_(i + LA)); q.issue(('s', i + LA)); budget -= 1
                while pend and pend[0][0] <= pos and budget > 0: budget -= pop()
                if every and dq and pos % every == 1:
                    for o in dq.pop(0): em(o)
    run(0, 32)
    a('s_barrier')
    x_setup()
    while pend: pop()
    stats_block()
    dq += wc_dma(1) + wc_dma(2) + wc_dma(3)
    while len(dq) > 24 - flag_after:
        for o in dq.pop(0): em(o)
    st(4)
    a(f's_lshl_b32 s{S_T3}, s{S_SPLIT}, 7')
    a(f's_add_u32 s{S_T3}, s{S_T3}, s{S_FLO}')
    a(f's_lshl_b32 s{S_PH}, s{S_W}, 2')
    a(f's_add_u32 s{S_FLO}, s{S_FLO}, s{S_PH}')
    a(f's_add_u32 s{S_T3}, s{S_T3}, s{S_PH}')
    a(f'v_mov_b32 v{V_T0}, 0\n v_mov_b32 v{V_T1}, 1')
    a(f's_lshl_b32 s{S_CNT}, 1, s{S_SPLIT}')
    a('s_mov_b64 exec, 1')
    a(f's_waitcnt vmcnt({vm.need("part")})')
    em(Dual(f'buffer_store_dword v{V_T1}, v{V_T0}, {SRD}, s{S_T3} offen offset:4', None, ''))
    a('s_mov_b64 exec, -1')
    st(5)
    if stamp: a('s_waitcnt lgkmcnt(0)')
    poll = f'buffer_load_dword v{V_PFD}, v{V_FL}, {SRD}, s{S_FLO} offen offset:4 sc1'
    dq.insert(min(poll_after, len(dq)), [(poll, 'poll')])
    STR = [56, 60, 124]
    def getmask(w):
        a(f's_waitcnt vmcnt({w})')
        a(f'v_cmp_eq_u32 vcc, 1, v{V_PFD}')
        a('s_nop 3')
        a(f's_and_b32 s{S_PFS}, vcc_lo, 15')
        a(f's_andn2_b32 s{S_PFS}, s{S_PFS}, s{S_CNT}')
        a(f's_or_b32 s{S_CNT}, s{S_CNT}, s{S_PFS}')
    def slot_hdr(k):
        return [f's_sub_u32 s{S_T1}, s{S_SPLIT}, {k+1}', f's_and_b32 s{S_T1}, s{S_T1}, 3', f's_bitcmp1_b32 s{S_PFS}, s{S_T1}']
    def slot_adr():
        return [f's_add_u32 s{S_T1}, s{S_T1}, s{S_T0}', f's_lshl_b32 s{S_T1}, s{S_T1}, 2', f's_add_u32 s{S_T1}, s{S_T1}, s{S_W}',
                f's_lshl_b32 s{S_PO}, s{S_T1}, 15', f's_add_u32 s{S_T1}, s{S_PO}, {WS_PART + 3*8192}']
    def slot_loads(k, vo):
        out = [[f'buffer_load_dwordx4 {vr(STR[k],4)}, v{vo}, {SRD}, s{S_T1} offen sc1']]
        for h4 in range(2):
            for i in range(4):
                pre = [f's_add_u32 s{S_T1}, s{S_PO}, {WS_PART + k*8192 + h4*4096}'] if i == 0 else []
                out.append(pre + [f'buffer_load_dwordx4 {ar(128+(k*8+h4*4+i)*4,4)}, v{vo}, {SRD}, s{S_T1} offen offset:{i*1024} sc1'])
        return out
    def check():
        getmask(0)
        for k in range(3):
            lab = a.label(name + '_ck')
            for o in slot_hdr(k): a(o)
            a(f's_cbranch_scc0 {lab}')
            for o in slot_adr(): a(o)
            for g in slot_loads(k, V_L16):
                for o in g: a(o)
            a(f'{lab}:')
    run(32, chk_at, every=2)
    assert not dq
    st(20)
    if stamp: a('s_waitcnt lgkmcnt(0)')
    getmask(vm.need('poll'))
    for k in range(3):
        first = slot_hdr(k) + [f's_cselect_b32 s{S_PH}, 0, 0x80000000', f'v_or_b32 v{V_T2}, s{S_PH}, v{V_L16}'] + slot_adr()
        for g in slot_loads(k, V_T2):
            dq.append(first + g); first = []
    dq += xdma() + [[poll]]
    run(chk_at, NS, every=r_pace)
    assert not dq, len(dq)
    st(21)
    a(f's_waitcnt vmcnt({vm.need("x")})')
    st(22)
    if stamp: a('s_waitcnt lgkmcnt(0)')
    for idx in range(8):
        gm, qh = idx >> 1, idx & 1
        a(f'ds_read_b128 {vr(V_S+4*idx,4)}, v{XV+4+gm} offset:{qh*4096}')
    a('s_nop 3')
    for idx in range(8):
        gm, qh = idx >> 1, idx & 1
        xb = V_S + 4 * idx
        a(f's_waitcnt lgkmcnt({7-idx})')
        for i in range(4):
            a(f'v_lshlrev_b32 v{64+2*i}, 16, v{xb+i}')
            a(f'v_and_b32 v{64+2*i+1}, 0xffff0000, v{xb+i}')
        for i in range(4):
            y = YB + 8 * (2 * gm + (i >> 1)) + 4 * qh + 2 * (i & 1)
            a(f'v_pk_add_f32 {vr(y,2)}, {vr(y,2)}, {vr(64+2*i,2)}')
    st(23)
    a(f'{name}_spin:')
    check()
    a(f's_cmp_eq_u32 s{S_CNT}, 15')
    a(f's_cbranch_scc1 {name}_got')
    a(poll)
    a(f's_branch {name}_spin')
    a(f'{name}_got:')
    st(6)
    a('s_waitcnt vmcnt(0)')
    st(24)
    allst = [120] + STR
    for qh in range(2):
        t = V_T0 + qh
        a(f'v_max3_f32 v{t}, v{allst[0]+2*qh+1}, v{allst[1]+2*qh+1}, v{allst[2]+2*qh+1}')
        a(f'v_max_f32 v{t}, v{t}, v{allst[3]+2*qh+1}')
    for qh in range(2):
        for b in allst: a(f'v_sub_f32 v{b+2*qh+1}, v{b+2*qh+1}, v{V_T0+qh}')
    for qh in range(2):
        for b in allst: a(f'v_exp_f32 v{b+2*qh+1}, v{b+2*qh+1}')
    for qh in range(2):
        a(f'v_mul_f32 v{V_T0+qh}, v{allst[0]+2*qh}, v{allst[0]+2*qh+1}')
    for b in allst[1:]:
        for qh in range(2): a(f'v_fmac_f32 v{V_T0+qh}, v{b+2*qh}, v{b+2*qh+1}')
    for qh in range(2): a(f'v_rcp_f32 v{V_T0+qh}, v{V_T0+qh}')
    a('s_nop 0')
    for qh in range(2):
        for b in allst: a(f'v_mul_f32 v{b+2*qh+1}, v{b+2*qh+1}, v{V_T0+qh}')
    for i in range(4): a(f'v_or_b32 v{XV+i}, s{S_VALID}, v{XV+i}')
    for qh in range(2):
        for gm in range(4):
            idx = gm * 2 + qh
            ys = [YB + 8 * (2 * gm + (i >> 1)) + 4 * qh + 2 * (i & 1) for i in range(4)]
            for i in range(4):
                a(f'v_pk_fma_f32 {vr(ys[i],2)}, {vr(ys[i]-64,2)}, {vr(120+2*qh,2)}, {vr(ys[i],2)} op_sel:[0,1,0] op_sel_hi:[1,1,1]')
            for k in range(3):
                ub = 64 + 12 * k
                for i in range(4): a(f'v_accvgpr_read_b32 v{ub+8+i}, a{128+(k*8+idx)*4+i}')
                for i in range(4):
                    a(f'v_lshlrev_b32 v{ub+2*i}, 16, v{ub+8+i}')
                    a(f'v_and_b32 v{ub+2*i+1}, 0xffff0000, v{ub+8+i}')
                for i in range(4):
                    a(f'v_pk_fma_f32 {vr(ys[i],2)}, {vr(ub+2*i,2)}, {vr(STR[k]+2*qh,2)}, {vr(ys[i],2)} op_sel:[0,1,0] op_sel_hi:[1,1,1]')
            ob = 100 + 4 * (gm & 1)
            for i in range(4): a(f'v_cvt_pk_bf16_f32 v{ob+i}, v{ys[i]}, v{ys[i]+1}')
            a(f'ds_write_b128 v{XV+4+gm}, {vr(ob,4)} offset:{qh*4096}')
            if qh == 1 and gm == 0:
                a('s_waitcnt lgkmcnt(1)')
                for i in range(4):
                    a(f's_add_u32 s{S_T1}, s{S_T4}, {i*4096}')
                    a(f'buffer_store_dwordx4 {vr(V_S+4*i,4)}, v{XV+i}, {SRO}, s{S_T1} offen {out_flags}')
        for i in range(4): a(f'ds_read_b128 {vr(V_S+16*qh+4*i,4)}, v{V_XO} offset:{(4*qh+i)*1024}')
    for i in range(4):
        a(f's_add_u32 s{S_T1}, s{S_T4}, {(4+i)*4096}')
        a(f's_waitcnt lgkmcnt({3-i})')
        a(f'buffer_store_dwordx4 {vr(V_S+16+4*i,4)}, v{XV+i}, {SRO}, s{S_T1} offen {out_flags}')
    if stamp:
        a('s_waitcnt vmcnt(0)')
        st(7)
        a('s_waitcnt lgkmcnt(0)')
        a(f's_cmp_lg_u32 s{S_W}, 0')
        a(f's_cbranch_scc1 {name}_end')
        a(f's_lshl_b32 s{S_T1}, s2, 7')
        a(f's_add_u32 s{S_T1}, s{S_T1}, {WS_STAMP}')
        for i in range(32): a(f'v_mov_b32 v{16+i}, s{64+i}')
        a(f'v_mov_b32 v{V_T0}, 0')
        a('s_mov_b64 exec, 1')
        for i in range(8):
            a(f'buffer_store_dwordx4 {vr(16+4*i,4)}, v{V_T0}, {SRD}, s{S_T1} offen offset:{16*i}')
    a(f'{name}_end:')
    a('s_endpgm')
    for lab, op in stubs:
        a(f'{lab}:')
        a(f'{op} sc1')
        a(f's_branch {lab}b')
    a(f'{name}_cfslow:')
    a('s_sleep 2')
    a(f'buffer_load_dword v{V_PFD}, v{V_FL}, {SRD}, s{S_FLO} offen sc1')
    a('s_waitcnt vmcnt(0)')
    a(f'v_cmp_eq_u32 s[{S_T3}:{S_T3+1}], 0, v{V_PFD}')
    a('s_nop 3')
    a(f's_cmp_eq_u64 s[{S_T3}:{S_T3+1}], 0')
    a(f's_cbranch_scc0 {name}_cfslow')
    a(f's_branch {name}_cfok')
    for (L_r1, L_r1b, L_r2, L_r2b) in rare:
        a(f'{L_r1}:')
        rowmax2(V_T1, V_T2, 120)
        for qh, dst in ((0, V_T1), (1, V_T2)):
            a(f'v_max_f32 v{dst}, 0, v{dst}')
            fr = V_F1 if qh else V_F0
            a(f'v_sub_f32 v{fr}, 0, v{dst}')
            a(f'v_exp_f32 v{fr}, v{fr}')
            for kh in range(2):
                for i in range(4): a(f'v_sub_f32 v{Sreg(kh,qh)+i}, v{Sreg(kh,qh)+i}, v{dst}')
            for i in range(4): a(f'v_sub_f32 v{V_NEGM+4*qh+i}, v{V_NEGM+4*qh+i}, v{dst}')
            l = V_L1 if qh else V_L0
            a(f'v_mul_f32 v{l}, v{l}, v{fr}')
        a(f's_branch {L_r1b}')
        a(f'{L_r2}:')
        a('s_nop 7')
        for beta in range(32):
            for qh in range(2):
                fr = V_F1 if qh else V_F0
                b = Obase(beta, qh)
                if beta < 16:
                    for r in range(4): a(f'v_mul_f32 v{b+r}, v{b+r}, v{fr}')
                else:
                    for r in range(4): a(f'v_accvgpr_read_b32 v{120+r}, a{b+r}')
                    for r in range(4): a(f'v_mul_f32 v{120+r}, v{120+r}, v{fr}')
                    for r in range(4): a(f'v_accvgpr_write_b32 a{b+r}, v{120+r}')
        a(f's_branch {L_r2b}')
    a('code_end:')
    a('s_endpgm')
    kernel_desc(a, name, 512, 102, 256)
```

```python
from asmlib import *
from layout import *
from attn2 import LdsQ
from k2 import f2h, VmQ, code_prefetch

V_DK0, V_DK1, V_DV0, V_DV1, V_KA, V_VA, V_L16, V_L0, V_L1, V_MX, V_F0, V_F1, V_T0, V_T1, V_T2 = range(1, 16)
V_S, V_E, V_P, V_NEGM, V_RING = 16, 32, 48, 56, 64
V_PF, V_PFD, V_XO, V_FL = 116, 117, 118, 119
S_X, S_OUTP, S_WS, S_SRD, S_SRX, S_SRO = 4, 6, 40, 8, 12, 16
(S_KOFF, S_VOFF, S_KDMA, S_VDMA, S_VRD, S_CNT, S_W, S_QB, S_SPLIT, S_T0, S_T1, S_VALID, S_GRP, S_W8K, S_PFOFF, S_T2) = range(20, 36)
S_TILE, S_B125, S_T3, S_T4 = 36, 37, 38, 39
S_WB0, S_WB1, S_WB2, S_WB3, S_UCO, S_WCO, S_FLO, S_PO = range(56, 64)
S_PFS, S_PFST, S_PH, S_XCC, S_SLOW, S_PB = 44, 45, 46, 47, 48, 54

def Obase(beta, qh): return 128 + 8 * (beta % 16) + 4 * qh
def Oreg(beta, qh): return vr(Obase(beta, qh), 4) if beta < 16 else ar(Obase(beta, qh), 4)

def gen_attn(a, name, dma_gap=3, dma_cost=2, CAP=2, bar_pos=50, NR=13, LA=10, wait_every=4, THR=0x41800000,
             stamp=False, snake=True, prefetch=2, pf=True, pv_pace=4, pv_budget=6, out_flags='sc1', npf=0, fast_st='nt', flag_at=140, force_slow=True, tailst=False, pfill=False, st_pace=9, ld_pace=2, yc_budget=2, bg_pace=10, tailpf=True, pf_flags='sc1', uc_pace=4, chk_at=60, dbg=(), dbgout=False, brgap=3, chain=True, poll_after=8, r_pace=5, chk2_at=0, noyc=False, ld_per_st=0, flag_after=0, rounds=((56, 3), (112, 3))):
    SRD, SRX, SRO = [f's[{b}:{b+3}]' for b in (S_SRD, S_SRX, S_SRO)]
    def st(i, cyc=False):
        if tailst and 10 <= i <= 14: return
        if i >= 20:
            if not tailst: return
            i -= 10
        if stamp: a(f'{"s_memtime" if cyc else "s_memrealtime"} s[{64+2*i}:{65+2*i}]')
    kernel_begin(a, name)
    a(f's_cmp_ge_u32 s2, 256\n s_cbranch_scc1 {name}_end')
    a(f's_load_dwordx2 s[{S_WS}:{S_WS+1}], s[0:1], 88')
    a(f's_load_dwordx2 s[{S_X}:{S_X+1}], s[0:1], 0')
    a(f's_load_dwordx2 s[{S_OUTP}:{S_OUTP+1}], s[0:1], 72')
    st(0)
    if pf: code_prefetch(a, name, f'{name}_end', 13, 255, 42, 256, 0, 65536)
    a(f'v_lshrrev_b32 v{V_T0}, 6, v0')
    a(f'v_and_b32 v0, 63, v0')
    a(f'v_readfirstlane_b32 s{S_W}, v{V_T0}')
    a(f'v_lshlrev_b32 v{V_L16}, 4, v0')
    a(f's_and_b32 s{S_T0}, s2, 7')
    a(f's_lshr_b32 s{S_T1}, s2, 3')
    a(f's_and_b32 s{S_SPLIT}, s{S_T1}, 3')
    a(f's_lshr_b32 s{S_T1}, s{S_T1}, 2')
    a(f's_lshl_b32 s{S_PFOFF}, s{S_T1}, 2')
    a(f's_and_b32 s{S_TILE}, s{S_T0}, 3')
    a(f's_lshl_b32 s{S_TILE}, s{S_TILE}, 3')
    a(f's_add_u32 s{S_TILE}, s{S_TILE}, s{S_T1}')
    a(f's_lshr_b32 s{S_T0}, s{S_T0}, 2')
    a(f's_lshl_b32 s{S_GRP}, s{S_T0}, 5')
    a(f's_add_u32 s{S_GRP}, s{S_GRP}, s{S_TILE}')
    a(f's_mul_i32 s{S_B125}, s{S_T0}, 125')
    ucst = []
    def late_setup():
        a(f's_lshl_b32 s{S_QB}, s{S_TILE}, 2')
        a(f's_add_u32 s{S_QB}, s{S_QB}, s{S_W}')
        a(f's_cmp_lt_u32 s{S_QB}, 125')
        a(f's_cselect_b32 s{S_VALID}, 0, 0x80000000')
        a(f's_min_u32 s{S_QB}, s{S_QB}, 124')
        a(f's_add_u32 s{S_QB}, s{S_QB}, s{S_B125}')
        a(f's_mul_i32 s{S_T1}, s{S_SPLIT}, 31')
        a(f's_cmp_lg_u32 s{S_SPLIT}, 0')
        a(f's_addc_u32 s{S_T1}, s{S_T1}, s{S_B125}')
        a(f's_cmp_lg_u32 s{S_SPLIT}, 0')
        a(f's_cselect_b32 s{S_CNT}, 29, 30')
        a(f's_lshl_b32 s{S_KOFF}, s{S_T1}, 15')
        a(f's_add_u32 s{S_VOFF}, s{S_KOFF}, {WS_VT}')
        if WS_XA: a(f's_add_u32 s{S_KOFF}, s{S_KOFF}, {WS_XA}')
        a(f's_lshl_b32 s{S_W8K}, s{S_W}, 13')
        a(f'v_add_u32 v{V_DK0}, s{S_W8K}, v{V_L16}')
        a(f'v_add_u32 v{V_DK1}, 4096, v{V_DK0}')
        a(f's_add_u32 s{S_T1}, s{S_W}, s{S_SPLIT}')
        a(f's_and_b32 s{S_T1}, s{S_T1}, 3')
        a(f's_lshl_b32 s{S_T1}, s{S_T1}, 13')
        a(f'v_add_u32 v{V_DV0}, s{S_T1}, v{V_L16}')
        a(f'v_add_u32 v{V_DV1}, 4096, v{V_DV0}')
        make_srd(a, S_SRX, S_X, 0, 8192000)
        make_srd(a, S_SRO, S_OUTP, 0, 8192000)
        a(f's_mov_b32 s{S_PFS}, {f2h(1/512)}')
    a('s_waitcnt lgkmcnt(0)')
    make_srd(a, S_SRD, S_WS, 0, WS_SIZE)
    vm = VmQ()
    def emit(o, tag=None):
        a(o)
        if o.startswith('buffer_'): vm.issue(tag)
    def dma_ops(v0, v1, soff, sbase):
        ops = []
        for g in range(2):
            for i in range(4):
                pre = None
                if i == 0:
                    pre = f's_mov_b32 m0, s{sbase}' if g == 0 else f's_add_u32 m0, s{sbase}, 4096'
                ops.append((pre, f'buffer_load_dwordx4 v{v0 if g == 0 else v1}, {SRD}, s{soff} offen offset:{i*1024} lds'))
        return ops
    def emit_dma_now(tag, *args):
        for pre, op in dma_ops(*args):
            if pre: a(pre); a('s_nop 0')
            emit(op, tag)
    def xreduce(regs, op, tmp):
        for sw in ('v_permlane16_swap_b32', 'v_permlane32_swap_b32'):
            for i, r in enumerate(regs): a(f'v_mov_b32 v{tmp+i}, v{r}')
            if len(regs) < 3: a('s_nop 1')
            else: a('s_nop 0')
            for i, r in enumerate(regs): a(f'{sw} v{tmp+i}, v{r}')
            a('s_nop 1')
            for i, r in enumerate(regs): a(f'{op} v{r}, v{r}, v{tmp+i}')

    TB = 3 * TILE; GNB = TB + 2048; GS = 328; CS = 272
    RG, CA_, ST_, SC, UB, B1 = 16, 64, 104, 120, 224, 192
    S_VF = [S_WB0, S_WB1]; S_B6 = [S_WB2, S_WB3]
    a(f's_lshl_b32 s{S_T3}, s{S_SPLIT}, 2')
    a(f's_add_u32 s{S_T3}, s{S_T3}, s{S_W}')
    a(f's_lshl_b32 s{S_T4}, s{S_TILE}, 2')
    a(f's_sub_u32 s{S_T4}, s{S_T4}, 1')
    for rnd in range(2):
        if rnd == 0: a(f's_mov_b32 s{S_B6[0]}, s{S_W}')
        else:
            a(f's_cmp_lt_u32 s{S_W}, 2')
            a(f's_cselect_b32 s{S_T0}, 4, 0')
            a(f's_add_u32 s{S_B6[1]}, s{S_W}, s{S_T0}')
        a(f's_add_u32 s{S_T0}, s{S_T4}, s{S_B6[rnd]}')
        a(f's_cmp_lt_u32 s{S_T0}, 125')
        a(f's_cselect_b32 s{S_VF[rnd]}, 1.0, 0')
        a(f's_cselect_b32 s{S_T0}, s{S_T0}, 0')
        a(f's_add_u32 s{S_T0}, s{S_T0}, s{S_B125}')
        a(f's_lshl_b32 s{S_T0}, s{S_T0}, 11')
        a(f's_add_u32 s{S_T0}, s{S_T0}, {WS_ST}')
        for h in range(2):
            emit(f'buffer_load_dwordx4 {vr(ST_+8*rnd+4*h,4)}, v{V_L16}, {SRD}, s{S_T0} offen offset:{h*1024}', 'st')
    a(f's_lshl_b32 s{S_T2}, s{S_T3}, 11')
    def blk_off(b6, base, dst):
        a(f's_add_u32 s{dst}, s{S_T4}, {b6}')
        a(f's_cmp_lt_u32 s{dst}, 125')
        a(f's_cselect_b32 s{dst}, s{dst}, 0')
        a(f's_add_u32 s{dst}, s{dst}, s{S_B125}')
        a(f's_lshl_b32 s{dst}, s{dst}, 15')
        a(f's_add_u32 s{dst}, s{dst}, s{S_T2}')
    S_BO = [50, 51, 52, 53]
    for b6 in range(6):
        dst = S_BO[b6 - 1] if 1 <= b6 <= 4 else S_T0
        blk_off(b6, WS_G, dst)
        a(f's_add_u32 s{S_T1}, s{dst}, {WS_G}')
        for ch in range(2):
            emit(f'buffer_load_dwordx4 {vr(RG+8*b6+4*ch,4)}, v{V_L16}, {SRD}, s{S_T1} offen offset:{ch*1024}', ('g', b6))
    a(f's_mul_i32 s{S_T0}, s{S_T3}, 10240')
    a(f's_add_u32 s{S_T0}, s{S_T0}, {WS_DWT}')
    for i in range(10):
        if i % 4 == 0 and i: a(f's_add_u32 s{S_T0}, s{S_T0}, 4096')
        emit(f'buffer_load_dwordx4 {vr(CA_+4*i,4)}, v{V_L16}, {SRD}, s{S_T0} offen offset:{(i%4)*1024}', 'dw')
    late_setup()
    bg = []
    for b in range(4):
        bg.append(f's_add_u32 s{S_T1}, s{S_BO[b]}, {WS_U}')
        for th in range(2): bg.append((f'buffer_load_dwordx4 {vr(UB+8*b+4*th,4)}, v{V_L16}, {SRD}, s{S_T1} offen offset:{th*1024}', 'u'))
    def bg_dma(tag, *args):
        for pre, op in dma_ops(*args):
            if pre: bg.append(pre); bg.append('s_nop 0')
            bg.append((op, tag))
    bg.append(f's_mov_b32 s{S_KDMA}, s{S_W8K}')
    bg_dma('K0', V_DK0, V_DK1, S_KOFF, S_KDMA)
    bg.append(f's_lshl_b32 s{S_T1}, s{S_QB}, 15')
    bg.append(f's_add_u32 s{S_T1}, s{S_T1}, {WS_Q}')
    for f in range(32):
        if f % 4 == 0 and f: bg.append(f's_add_u32 s{S_T1}, s{S_T1}, 4096')
        bg.append((f'buffer_load_dwordx4 {ar(4*f,4)}, v{V_L16}, {SRD}, s{S_T1} offen offset:{(f%4)*1024}', ('Q', f)))
    bg += [f's_add_u32 s{S_KOFF}, s{S_KOFF}, {TILE}', f's_add_u32 s{S_KDMA}, s{S_KDMA}, {TILE}']
    bg_dma('K1', V_DK0, V_DK1, S_KOFF, S_KDMA)
    bg += [f's_add_u32 s{S_KOFF}, s{S_KOFF}, {TILE}', f's_add_u32 s{S_VDMA}, s{S_W8K}, {2*TILE}']
    bg_dma('V0', V_DV0, V_DV1, S_VOFF, S_VDMA)
    bgc = [0]
    def bgone():
        while bg:
            o = bg.pop(0)
            if isinstance(o, tuple):
                emit(*o); return
            a(o)
    def c(o, every=bg_pace):
        a(o); bgc[0] += 1
        if bgc[0] % every == 0: bgone()
    for i in range(128): c(f'v_accvgpr_write_b32 a{128+i}, 0', 16)
    for i in range(64): c(f'v_mov_b32 v{128+i}, 0', 16)
    a(f's_mul_i32 s{S_T0}, s{S_W}, {32*GS}')
    a(f's_add_u32 s{S_T0}, s{S_T0}, {GNB}')
    a(f'v_and_b32 v{V_T0}, 15, v0')
    a(f'v_lshrrev_b32 v{V_T1}, 4, v0')
    a(f'v_mul_u32_u24 v{V_F0}, {GS}, v{V_T0}')
    a(f'v_lshl_add_u32 v{V_F0}, v{V_T1}, 3, v{V_F0}')
    a(f'v_add_u32 v{V_F0}, s{S_T0}, v{V_F0}')
    a(f'v_lshlrev_b32 v{V_MX}, 4, v{V_T1}')
    a(f'v_add_u32 v{V_MX}, {TB}, v{V_MX}')
    a(f'v_lshrrev_b32 v{V_T2}, 2, v0')
    a(f'v_and_b32 v{V_T0}, 3, v0')
    a(f'v_mul_u32_u24 v{V_F1}, {GS}, v{V_T2}')
    a(f'v_lshl_add_u32 v{V_F1}, v{V_T0}, 6, v{V_F1}')
    a(f'v_add_u32 v{V_F1}, s{S_T0}, v{V_F1}')
    a(f'v_and_b32 v{V_T2}, 3, v{V_T2}')
    a(f'v_lshl_add_u32 v{V_T2}, v{V_T1}, 3, v{V_T2}')
    a(f'v_mul_u32_u24 v{V_T2}, {CS}, v{V_T2}')
    a(f'v_add_u32 v{V_T2}, s{S_T0}, v{V_T2}')
    a(f'v_lshl_add_u32 v{V_L0}, v{V_T0}, 6, v{V_T2}')
    a(f'v_lshl_add_u32 v{V_L1}, v{V_T0}, 3, v{V_T2}')
    st(10)
    a(f's_waitcnt vmcnt({vm.need("st")})')
    st(11)
    R = [ST_ + 8 * r + i for r in range(2) for i in range(4)]
    for r in range(2):
        for i in range(4): a(f'v_add_f32 v{ST_+8*r+i}, v{ST_+8*r+i}, v{ST_+8*r+4+i}')
    xreduce(R, 'v_add_f32', SC)
    a('s_nop 0')
    for x in R: a(f'v_mov_b32_dpp v{x+4}, v{x} row_ror:8 row_mask:0xf bank_mask:0xf')
    for x in R: a(f'v_mul_f32 v{x}, {f2h(1/512)}, v{x}')
    for i, x in enumerate(R): a(f'v_mul_f32 v{SC+i}, v{x}, v{x}')
    for i, x in enumerate(R): a(f'v_fma_f32 v{x+4}, v{x+4}, s{S_PFS}, -v{SC+i}')
    for x in R: a(f'v_max_f32 v{x+4}, 0, v{x+4}')
    for x in R: a(f'v_add_f32 v{x+4}, {f2h(1e-5)}, v{x+4}')
    for x in R: a(f'v_rsq_f32 v{x+4}, v{x+4}')
    for i, x in enumerate(R): a(f'v_mul_f32 v{x+4}, s{S_VF[i>>2]}, v{x+4}')
    for x in R: a(f'v_mul_f32 v{x}, -v{x}, v{x+4}')
    a('s_mov_b64 exec, 0xff')
    for r in range(2):
        a(f's_lshl_b32 s{S_T0}, s{S_B6[r]}, 8')
        a(f's_add_u32 s{S_T0}, s{S_T0}, {TB}')
        a(f'v_add_u32 v{V_T0}, s{S_T0}, v{V_L16}')
        a(f'ds_write_b128 v{V_T0}, {vr(ST_+8*r+4,4)}')
        a(f'ds_write_b128 v{V_T0}, {vr(ST_+8*r,4)} offset:128')
    a('s_mov_b64 exec, -1')
    a('s_waitcnt lgkmcnt(0)')
    a('s_barrier')
    st(12)
    if stamp: a('s_waitcnt lgkmcnt(0)')
    halves = [(b6, hf) for b6 in range(6) for hf in range(2) if not (b6 == 0 and hf == 0) and not (b6 == 5 and hf == 1)]
    lq = LdsQ()
    def tread(n):
        b6, hf = halves[n]
        t = ST_ + 8 * (n % 2)
        a(f'ds_read_b128 {vr(t,4)}, v{V_MX} offset:{b6*256 + hf*64}'); lq.issue(('t', n))
        a(f'ds_read_b128 {vr(t+4,4)}, v{V_MX} offset:{b6*256 + hf*64 + 128}'); lq.issue(('t', n))
    tread(0)
    for n, (b6, hf) in enumerate(halves):
        if n + 1 < len(halves): tread(n + 1)
        t = ST_ + 8 * (n % 2)
        a(f's_waitcnt vmcnt({vm.need(("g", b6))}) lgkmcnt({lq.need(("t", n))})')
        for ch in range(2):
            for i in range(2):
                r = RG + 8 * b6 + 4 * ch + 2 * hf + i
                c(f'v_lshlrev_b32 v{SC+4*ch+2*i}, 16, v{r}')
                c(f'v_and_b32 v{SC+4*ch+2*i+1}, 0xffff0000, v{r}')
        for ch in range(2):
            for i in range(2):
                c(f'v_pk_fma_f32 {vr(SC+4*ch+2*i,2)}, {vr(SC+4*ch+2*i,2)}, {vr(t+2*i,2)}, {vr(t+4+2*i,2)}')
        for ch in range(2):
            r = RG + 8 * b6 + 4 * ch + 2 * hf
            for i in range(2): c(f'v_cvt_pk_bf16_f32 v{r+i}, v{SC+4*ch+2*i}, v{SC+4*ch+2*i+1}')
            a(f'ds_write_b64 v{V_F0}, {vr(r,2)} offset:{ch*16*GS + (8*b6 - 4 + 4*hf)*8}'); lq.issue('w')
    st(13)
    if stamp: a('s_waitcnt lgkmcnt(0)')
    BR = [B1, 16]; AC = [48, 104]
    def acc(ch, aa): return (48 + 4 * aa) if aa < 4 else (104 + 4 * (aa - 4))
    for ch in range(2):
        for e in range(16):
            a(f'ds_read_b64 {vr(BR[ch]+2*e,2)}, v{V_F1} offset:{ch*16*GS + e*8}'); lq.issue(('b', ch, e))
    a(f's_waitcnt vmcnt({vm.need("dw")})')
    PKc = 120
    for ch in range(2):
        for dl in range(9):
            a(f's_waitcnt lgkmcnt({min(15, lq.need(("b", ch, dl + 7)))})')
            for aa in range(8):
                d = vr(acc(ch, aa), 4)
                c(f'v_mfma_f32_4x4x4_16b_bf16 {d}, {vr(CA_+20*ch+2*dl,2)}, {vr(BR[ch]+2*(aa+dl),2)}, {d if dl else 0}', bg_pace // 2)
        if ch == 0: a('s_waitcnt lgkmcnt(0)')
        a('s_nop 3')
        for p in range(4):
            pk = PKc + 4 * (p & 1)
            for k in range(2):
                b = acc(ch, 2 * p + k)
                c(f'v_cvt_pk_bf16_f32 v{pk+2*k}, v{b}, v{b+1}')
                c(f'v_cvt_pk_bf16_f32 v{pk+2*k+1}, v{b+2}, v{b+3}')
            a(f'ds_write_b128 v{V_L0}, {vr(pk,4)} offset:{ch*4*CS + 16*p}'); lq.issue('cw')
    st(14)
    if stamp: a('s_waitcnt lgkmcnt(0)')
    TRD = 16
    for fr in range(8):
        for jj in range(2):
            a(f'ds_read_b64_tr_b16 {vr(TRD+4*fr+2*jj,2)}, v{V_L1} offset:{jj*4*CS + fr*32}'); lq.issue(('tr', fr))
    a(f's_lshl_b32 s{S_PO}, s{S_GRP}, 17')
    a(f's_add_u32 s{S_PO}, s{S_PO}, s{S_T2}')
    a(f's_add_u32 s{S_PO}, s{S_PO}, {WS_UC}')
    a(f's_waitcnt vmcnt({min(63, vm.need("u"))})')
    for fr in range(8):
        cc = TRD + 4 * fr; ub = 64 + 16 * (fr & 1); u = UB + 4 * fr
        a(f's_waitcnt lgkmcnt({lq.need(("tr", fr))})')
        for i in range(4):
            c(f'v_lshlrev_b32 v{ub+2*i}, 16, v{cc+i}')
            c(f'v_and_b32 v{ub+2*i+1}, 0xffff0000, v{cc+i}')
        for i in range(4):
            c(f'v_lshlrev_b32 v{ub+8+2*i}, 16, v{u+i}')
            c(f'v_and_b32 v{ub+8+2*i+1}, 0xffff0000, v{u+i}')
        for i in range(4): c(f'v_pk_mul_f32 {vr(ub+2*i,2)}, {vr(ub+2*i,2)}, {vr(ub+8+2*i,2)}')
        for i in range(4): c(f'v_cvt_pk_bf16_f32 v{u+i}, v{ub+2*i}, v{ub+2*i+1}')
        ucst.append((f'buffer_store_dwordx4 {vr(u,4)}, v{V_L16}, {SRD}, s{S_PO} offen offset:{(fr&1)*1024} sc1', fr))
    while bg: bgone()
    for op, fr in ucst:
        if fr % 2 == 0 and fr: a(f's_add_u32 s{S_PO}, s{S_PO}, {TILE}')
        emit(op, 'ucs')
    a(f's_add_u32 s{S_VOFF}, s{S_VOFF}, {TILE}')
    a(f's_add_u32 s{S_VDMA}, s{S_VDMA}, {TILE}')
    a(f's_mov_b32 s{S_KDMA}, s{S_W8K}')
    a(f's_mov_b32 s{S_VRD}, {2*TILE}')
    st(1)
    if prefetch:
        a(f's_add_u32 s{S_PFOFF}, s{S_PFOFF}, s{S_W}')
        a(f's_and_b32 s{S_T1}, s{S_PFOFF}, 15')
        a(f's_lshl_b32 s{S_T1}, s{S_T1}, 11')
        a(f's_cmp_ge_u32 s{S_PFOFF}, 16')
        a(f's_cselect_b32 s{S_PFOFF}, {WS_VT - WS_XA - TILE}, 0')
        a(f's_add_u32 s{S_T1}, s{S_T1}, s{S_PFOFF}')
        a(f's_add_u32 s{S_T1}, s{S_T1}, {prefetch * TILE}')
        a(f'v_lshlrev_b32 v{V_PF}, 5, v0')
        a(f'v_add_u32 v{V_PF}, s{S_T1}, v{V_PF}')
    a(f'v_and_b32 v{V_T0}, 15, v0')
    a(f'v_lshrrev_b32 v{V_T1}, 4, v0')
    a(f'v_lshlrev_b32 v{V_T2}, 4, v{V_T1}')
    a(f'v_lshl_add_u32 v{V_XO}, v{V_T0}, 10, v{V_T2}')
    a(f'v_mov_b32 v{V_KA}, v{V_L16}')
    a(f'v_add_u32 v{V_VA}, s{S_VRD}, v{V_L16}')
    a(f'v_mov_b32 v{V_L0}, 0')
    a(f'v_mov_b32 v{V_L1}, 0')
    nround = -(-64 // NR)
    sizes = [64 // nround + (1 if i < 64 % nround else 0) for i in range(nround)]
    slotmap = [i for sz in sizes for i in range(sz)]
    assert LA + 1 <= min(sizes) and max(sizes) <= NR and V_RING + 4 * NR <= V_PF
    def slot(f): return V_RING + 4 * slotmap[f % 64]
    def rd(f):
        if f < 32 and chain: return f'ds_read_b128 {vr(slot(f),4)}, v{V_KA} offset:{((f & 15)*2 + (f >> 4))*1024}'
        if f < 32: return f'ds_read_b128 {vr(slot(f),4)}, v{V_KA} offset:{f*1024}'
        return f'ds_read_b128 {vr(slot(f),4)}, v{V_VA} offset:{(f-32)*1024}'
    def Sreg(kh, qh): return V_S + (kh * 2 + qh) * 4
    def mfmas(f, zero_c=False):
        order = (1, 0) if (snake and (f & 1)) else (0, 1)
        out = []
        if chain and f < 32:
            kh = f >> 4; s0 = f & 14; qh = (f & 1) ^ ((f >> 1) & 1); fb = f & ~1
            for k in range(2):
                s = s0 + k
                c = vr(Sreg(kh, qh), 4) if s else ('0' if zero_c else vr(V_NEGM + 4 * qh, 4))
                out.append(f'v_mfma_f32_16x16x32_bf16 {vr(Sreg(kh,qh),4)}, {vr(slot(fb+k),4)}, {ar((s*2+qh)*4,4)}, {c}')
            return out
        for qh in order:
            if f < 32:
                s, kh = f >> 1, f & 1
                c = vr(Sreg(kh, qh), 4) if s else ('0' if zero_c else vr(V_NEGM + 4 * qh, 4))
                out.append(f'v_mfma_f32_16x16x32_bf16 {vr(Sreg(kh,qh),4)}, {vr(slot(f),4)}, {ar((s*2+qh)*4,4)}, {c}')
            else:
                b = f - 32
                out.append(f'v_mfma_f32_16x16x32_bf16 {Oreg(b,qh)}, {vr(slot(f),4)}, {vr(V_P+4*qh,4)}, {Oreg(b,qh)}')
        return out
    a(f's_waitcnt vmcnt({vm.need(("Q", 31))})')
    a('s_barrier')
    q = LdsQ()
    zero = [f'v_mov_b32 v{192+i}, 0' for i in range(64)]
    for f in range(LA):
        a(rd(f)); q.issue(f)
    for f in range(32):
        a(f's_waitcnt lgkmcnt({q.need(f | 1)})')
        for m in mfmas(f, zero_c=True):
            a(m)
            if zero: a(zero.pop(0))
        if f + LA < 32:
            a(rd(f + LA)); q.issue(f + LA)
    a('s_nop 7')
    def max_all():
        ops = [f'v_max3_f32 v{V_MX}, v{V_S}, v{V_S+1}, v{V_S+2}']
        for i in range(6): ops.append(f'v_max3_f32 v{V_MX}, v{V_MX}, v{V_S+3+2*i}, v{V_S+4+2*i}')
        ops.append(f'v_max_f32 v{V_MX}, v{V_MX}, v{V_S+15}')
        return ops
    def rowmax2(d0, d1, tmp):
        for qh, dst in ((0, d0), (1, d1)):
            r0, r1 = Sreg(0, qh), Sreg(1, qh)
            a(f'v_max3_f32 v{dst}, v{r0}, v{r0+1}, v{r0+2}')
            a(f'v_max3_f32 v{dst}, v{dst}, v{r0+3}, v{r1}')
            a(f'v_max3_f32 v{dst}, v{dst}, v{r1+1}, v{r1+2}')
            a(f'v_max_f32 v{dst}, v{dst}, v{r1+3}')
        xreduce([d0, d1], 'v_max_f32', tmp)
    exp_ops = [f'v_exp_f32 v{V_E+i}, v{V_S+i}' for i in range(16)]
    sum_ops = [f'v_add_f32 v{V_L1 if (i >> 2) & 1 else V_L0}, v{V_L1 if (i >> 2) & 1 else V_L0}, v{V_E+i}' for i in range(16)]
    cvt_ops = []
    for qh in range(2):
        for kh in range(2):
            e = V_E + (kh * 2 + qh) * 4
            for i in range(2):
                cvt_ops.append(f'v_cvt_pk_bf16_f32 v{V_P+4*qh+2*kh+i}, v{e+2*i}, v{e+2*i+1}')
    rowmax2(V_F0, V_F1, 120)
    for qh, dst in ((0, V_F0), (1, V_F1)):
        for kh in range(2):
            for i in range(4): a(f'v_sub_f32 v{Sreg(kh,qh)+i}, v{Sreg(kh,qh)+i}, v{dst}')
        for i in range(4): a(f'v_sub_f32 v{V_NEGM+4*qh+i}, 0, v{dst}')
    for o in exp_ops: a(o)
    for o in zero: a(o)
    a(f'v_xor_b32 v{V_KA}, 0x8000, v{V_KA}')
    a(f's_getreg_b32 s{S_XCC}, hwreg(HW_REG_XCC_ID, 0, 4)')
    a(f's_add_u32 s{S_XCC}, s{S_XCC}, 1')
    a(f's_lshl_b32 s{S_FLO}, s{S_GRP}, 9')
    a(f's_add_u32 s{S_FLO}, s{S_FLO}, {WS_FLAG}')
    a(f'v_and_b32 v{V_FL}, 3, v0')
    a(f'v_lshlrev_b32 v{V_FL}, 7, v{V_FL}')
    a('s_waitcnt vmcnt(0)')
    a('s_barrier')
    def flag_store(off):
        lab = a.label(name + '_fs')
        a(f's_cmp_lg_u32 s{S_W}, 0')
        a(f's_cbranch_scc1 {lab}')
        a(f's_lshl_b32 s{S_T3}, s{S_SPLIT}, 7')
        a(f's_add_u32 s{S_T3}, s{S_T3}, s{S_FLO}')
        a(f'v_mov_b32 v{V_T0}, 0\n v_mov_b32 v{V_T1}, s{S_XCC}')
        a('s_mov_b64 exec, 1')
        a(f'buffer_store_dword v{V_T1}, v{V_T0}, {SRD}, s{S_T3} offen offset:{off} sc1')
        a('s_mov_b64 exec, -1')
        a(f'{lab}:')
    flag_store(0)
    st(2); st(8, True)
    if stamp: a('s_waitcnt lgkmcnt(0)')
    q = LdsQ()
    for f in range(LA):
        a(rd(f)); q.issue(f)

    L_loop = f'{name}_loop'
    rare = []
    border = list(range(8, 32)) + list(range(8))
    YB = 192
    stream = [('pv', b) for b in border] + [('yc', T, f) for T in range(4) for f in range(32)]
    NS = len(stream)
    WA = [V_VA, V_DV0, V_DV1, V_PF]
    def srd_(i):
        it = stream[i]
        if it[0] == 'pv': return f'ds_read_b128 {vr(slot(i),4)}, v{V_KA} offset:{it[1]*1024}'
        if chain and it[1]: return f'ds_read_b128 {vr(slot(i),4)}, v{WA[it[1]]} offset:{((it[2] & 15)*2 + (it[2] >> 4))*1024}'
        return f'ds_read_b128 {vr(slot(i),4)}, v{WA[it[1]]} offset:{it[2]*1024}'
    def ucload(f):
        ops = []
        if f % 4 == 0 and f: ops.append(f's_add_u32 s{S_UCO}, s{S_UCO}, 4096')
        ops.append((f'buffer_load_dwordx4 {ar(4*f,4)}, v{V_L16}, {SRD}, s{S_UCO} offen offset:{(f%4)*1024} sc1', ('uc', f)))
        return ops
    stubs = []
    class Dual:
        def __init__(self, op, tag, fast): self.op, self.tag, self.fast = op, tag, fast
    def em(o):
        if isinstance(o, Dual) and force_slow:
            emit(f'{o.op} sc1', o.tag); return
        if isinstance(o, Dual):
            lab = a.label(name + '_ds')
            a(f's_cbranch_vccnz {lab}')
            emit(f'{o.op} {o.fast}', o.tag)
            a(f'{lab}b:')
            stubs.append((lab, o.op))
            return
        if callable(o): o = o()
        if noyc and isinstance(o, tuple) and ((o[1] == 'x' and 'x' in noyc) or (isinstance(o[1], tuple) and o[1][0] in ('uc', 'wc') and o[1][0] in noyc)):
            vm.last[o[1]] = vm.last.get('dL', 0); return
        if isinstance(o, tuple): emit(*o)
        else: emit(o)
    nuc = [0]
    def body(last):
        tag = 'L' if last else 'M'
        L_r1, L_r1b, L_r2, L_r2b = [f'{name}_{x}{tag}' for x in ('r1', 'r1b', 'r2', 'r2b')]
        rare.append((L_r1, L_r1b, L_r2, L_r2b))
        fill = [[] for _ in range(128)]
        cap = [CAP - 1 if p % 2 == 0 else CAP for p in range(128)]
        for p in range(128):
            if p % 2 == 1 and ((p + 1) // 2) % wait_every == 0: cap[p] -= 1
        cap[127] -= 3
        def put(pos, ops, cost):
            if not isinstance(ops, list): ops = [ops]
            while cap[pos] < cost: pos += 1
            cap[pos] -= cost
            fill[pos] += ops
            return pos
        if not last: bw = f's_waitcnt vmcnt({1 if prefetch else 0})'
        else: bw = lambda: f's_waitcnt vmcnt({vm.need("dL")})'
        pb = put(2 * bar_pos + 1, [bw] + ([] if 'nobar' in dbg and not last else ['s_barrier']), 2)
        assert pb < 2 * (64 - LA)
        dk, dv = dma_ops(V_DK0, V_DK1, S_WCO if last else S_KOFF, S_KDMA), dma_ops(V_DV0, V_DV1, S_VOFF, S_VDMA)
        dm = dv + dk if last else dk + dv
        p = 0
        if last and not tailpf:
            p = put(p, (f'buffer_load_dword v{V_PFD}, v{V_FL}, {SRD}, s{S_FLO} offen sc1', 'poll'), dma_cost) + 1
            for c in range(npf, 3 if pfill else 0):
                p = put(p, f'buffer_load_dword v{V_T0}, v{V_PF}, {SRD}, s{S_PFS} offen', dma_cost) + 1
                p = put(p, f's_add_u32 s{S_PFS}, s{S_PFS}, 8192', 1) + 1
            if pfill: p = put(p, f'buffer_load_dword v{V_T0}, v{V_L16}, {SRD}, s{S_PFS} offen', dma_cost) + 1
        for pre, op in dm:
            if pre: p = put(p, pre, 1) + 1
            p = put(p, (op, 'dL'), dma_cost) + dma_gap
        if prefetch and not last:
            p = put(p, f'buffer_load_dword v{V_PFD}, v{V_PF}, s[96:99], s{S_PFS} offen {pf_flags}', dma_cost) + 1
        pdma = p
        assert pdma <= pb
        if last and not tailpf:
            p = put(56, [lambda: f's_waitcnt vmcnt({vm.need("poll")})', f'v_cmp_eq_u32 s[{S_T3}:{S_T3+1}], 0, v{V_PFD}'], 2) + 2
            p = put(p, [f's_cmp_eq_u64 s[{S_T3}:{S_T3+1}], 0', f's_cbranch_scc0 {name}_cfslow', f'{name}_cfok:'], 2) + 1
            p = put(p, f'v_cmp_ne_u32 s[{S_SLOW}:{S_SLOW+1}], s{S_XCC}, v{V_PFD}', 1) + 1
            assert p <= pdma + 4
        p = 68
        for o in max_all(): p = put(p, o, 1)
        p = put(p, f'v_cmp_lt_f32 vcc, {hex(THR)}, v{V_MX}', 1) + 1
        p = put(p + brgap, ([] if 'nobr1' in dbg else [f's_cbranch_vccnz {L_r1}']) + [f'{L_r1b}:'], 1) + 1
        for i, o in enumerate(exp_ops):
            if 'noexp' not in dbg: p = put(p, o, 2)
        p = 0
        for o in cvt_ops: p = put(p, o, 1)
        for o in sum_ops: p = put(p, o, 1)
        assert p < 60
        upd = [f's_add_u32 s{S_KOFF}, s{S_KOFF}, {TILE}', f's_add_u32 s{S_PFS}, s{S_PFS}, s{S_PFST}',
               f's_add_u32 s{S_VOFF}, s{S_VOFF}, {TILE}',
               f's_xor_b32 s{S_KDMA}, s{S_KDMA}, {TILE}',
               f's_add_u32 s{S_VDMA}, s{S_VDMA}, {TILE}',
               f's_cmp_ge_u32 s{S_VDMA}, {5*TILE}', f's_cselect_b32 s{S_T1}, {3*TILE}, 0',
               f's_sub_u32 s{S_VDMA}, s{S_VDMA}, s{S_T1}',
               f's_add_u32 s{S_VRD}, s{S_VRD}, {TILE}',
               f's_cmp_ge_u32 s{S_VRD}, {5*TILE}', f's_cselect_b32 s{S_VRD}, {2*TILE}, s{S_VRD}',
               f's_sub_u32 s{S_CNT}, s{S_CNT}, 1']
        if not last:
            p = pdma
            for o in upd: p = put(p, o, 1)
            put(2 * (32 - LA) + 1, f'v_xor_b32 v{V_KA}, 0x8000, v{V_KA}', 1)
            put(max(p + 1, 2 * (64 - LA) + 1), f'v_add_u32 v{V_VA}, s{S_VRD}, v{V_L16}', 1)
        else:
            p = 2 * (32 - LA) + 1
            for o in [f's_sub_u32 s{S_KOFF}, s{S_VDMA}, s{S_W8K}', f'v_add_u32 v{V_KA}, s{S_KOFF}, v{V_L16}',
                      f's_sub_u32 s{S_WB0}, s{S_KDMA}, s{S_W8K}', f's_xor_b32 s{S_WB1}, s{S_WB0}, {TILE}', f's_mov_b32 s{S_WB3}, s{S_VRD}',
                      f's_add_u32 s{S_WB2}, s{S_WB3}, s{S_KOFF}', f's_sub_u32 s{S_WB2}, {9*TILE}, s{S_WB2}']:
                p = put(p, o, 1) + 1
            p = max(pdma, 66)
            while p < 127 and nuc[0] < 32:
                fill[p] += ucload(nuc[0]); nuc[0] += 1
                p += uc_pace
        for f in range(64):
            if f % wait_every == 0:
                a(f's_waitcnt lgkmcnt({q.need(min(f + wait_every - 1, 63))})')
            mm = mfmas(f)
            a(mm[0])
            nf = f + LA
            if nf < 64 or not last:
                a(rd(nf % 64)); q.issue(nf % 64)
            else:
                a(srd_(nf - 64)); q.issue(('s', nf - 64))
            for o in fill[2 * f]: em(o)
            a(mm[1])
            for o in fill[2 * f + 1]: em(o)
        if 'nobr2' not in dbg: a(f's_cbranch_vccnz {L_r2}')
        a(f'{L_r2b}:')
    a(f's_lshl_b32 s{S_WCO}, s{S_SPLIT}, 17')
    a(f's_add_u32 s{S_WCO}, s{S_WCO}, {WS_WC}')
    a(f's_lshl_b32 s{S_UCO}, s{S_GRP}, 2')
    a(f's_add_u32 s{S_UCO}, s{S_UCO}, s{S_W}')
    a(f's_lshl_b32 s{S_UCO}, s{S_UCO}, 15')
    a(f's_add_u32 s{S_UCO}, s{S_UCO}, {WS_UC}')
    a(f's_mov_b32 s{S_PFS}, s{S_KOFF}')
    a(f's_mov_b32 s{S_PFST}, {TILE}')
    a(f's_mov_b32 s{S_PH}, 0')
    NPH = 4 if tailpf else 0
    a(f's_sub_u32 s{S_CNT}, s{S_CNT}, {NPH}')
    make_srd(a, 96, S_WS, 0, WS_SIZE)
    a(f's_lshl_b32 s{S_PB}, s{S_GRP}, 2')
    a(f's_add_u32 s{S_PB}, s{S_PB}, s{S_SPLIT}')
    a(f's_lshl_b32 s{S_PB}, s{S_PB}, 2')
    a(f's_add_u32 s{S_PB}, s{S_PB}, s{S_W}')
    a(f's_lshl_b32 s{S_PB}, s{S_PB}, 15')
    a(f's_add_u32 s{S_PB}, s{S_PB}, {WS_PART}')
    a('.p2align 6')
    a(f'{L_loop}:')
    body(False)
    a(f's_cmp_lg_u32 s{S_CNT}, 0')
    a(f's_cbranch_scc1 {L_loop}')
    if tailpf:
        a(f's_add_u32 s{S_PH}, s{S_PH}, 1')
        a(f's_mov_b32 s{S_CNT}, 1')
        a(f's_cmp_eq_u32 s{S_PH}, 5\n s_cbranch_scc1 {name}_ph5')
        a(f's_cmp_eq_u32 s{S_PH}, 4\n s_cbranch_scc1 {name}_ph4')
        a(f's_cmp_eq_u32 s{S_PH}, 3\n s_cbranch_scc1 {name}_ph3')
        a(f's_cmp_eq_u32 s{S_PH}, 2\n s_cbranch_scc1 {name}_ph2')
        a(f's_mov_b32 s96, s{S_X}\n s_mov_b32 s97, s{S_X+1}\n s_mov_b32 s98, 8192000')
        a(f'v_lshrrev_b32 v{V_PF}, 1, v0')
        a(f'v_lshlrev_b32 v{V_PF}, 10, v{V_PF}')
        a(f'v_and_b32 v{V_T0}, 1, v0')
        a(f'v_lshl_add_u32 v{V_PF}, v{V_T0}, 7, v{V_PF}')
        a(f's_lshl_b32 s{S_PFS}, s{S_QB}, 15')
        a(f's_lshl_b32 s{S_T1}, s{S_SPLIT}, 8')
        a(f's_add_u32 s{S_PFS}, s{S_PFS}, s{S_T1}')
        a(f's_branch {L_loop}')
        a(f'{name}_ph2:')
        a(f's_mov_b32 s96, s{S_WS}\n s_mov_b32 s97, s{S_WS+1}\n s_mov_b32 s98, {WS_SIZE}')
        a(f'v_mov_b32 v{V_PF}, v{V_FL}')
        a(f's_mov_b32 s{S_PFS}, s{S_FLO}')
        a(f's_branch {L_loop}')
        a(f'{name}_ph3:')
        a('s_waitcnt vmcnt(0)')
        a(f'v_cmp_eq_u32 s[{S_T3}:{S_T3+1}], 0, v{V_PFD}')
        a(f'v_lshlrev_b32 v{V_PF}, 7, v0')
        a(f's_lshl_b32 s{S_PFS}, s{S_SPLIT}, 13')
        a(f's_add_u32 s{S_PFS}, s{S_PFS}, s{S_UCO}')
        a('s_nop 1')
        a(f's_cmp_eq_u64 s[{S_T3}:{S_T3+1}], 0')
        a(f's_cbranch_scc0 {name}_cfslow')
        a(f'{name}_cfok:')
        a(f's_branch {L_loop}')
        a(f'{name}_ph4:')
        a(f'v_lshlrev_b32 v{V_PF}, 6, v0')
        a(f's_and_b32 s{S_PFS}, s{S_TILE}, 7')
        a(f's_lshl_b32 s{S_PFS}, s{S_PFS}, 2')
        a(f's_add_u32 s{S_PFS}, s{S_PFS}, s{S_W}')
        a(f's_lshl_b32 s{S_PFS}, s{S_PFS}, 12')
        a(f's_add_u32 s{S_PFS}, s{S_PFS}, s{S_WCO}')
        a(f's_branch {L_loop}')
        a(f'{name}_ph5:')
    st(3); st(9, True)
    if stamp: a('s_waitcnt lgkmcnt(0)')
    body(True)
    st(15)
    if stamp: a('s_waitcnt lgkmcnt(0)')
    def smf(i):
        it = stream[i]; out = []
        if chain and it[0] == 'yc' and it[1]:
            T, f = it[1], it[2]; ch = f >> 4; qh = (f & 1) ^ ((f >> 1) & 1)
            d = vr(YB + 8 * (2 * T + ch) + 4 * qh, 4)
            for k in range(2):
                s = (f & 14) + k
                out.append(f'v_mfma_f32_16x16x32_bf16 {d}, {vr(slot((i & ~1) + k),4)}, {ar((s*2+qh)*4,4)}, {d if s else 0}')
            return out
        for qh in ((1, 0) if (snake and (i & 1)) else (0, 1)):
            if it[0] == 'pv':
                out.append(f'v_mfma_f32_16x16x32_bf16 {Oreg(it[1],qh)}, {vr(slot(i),4)}, {vr(V_P+4*qh,4)}, {Oreg(it[1],qh)}')
            else:
                T, f = it[1], it[2]; s, ch = f >> 1, f & 1
                d = vr(YB + 8 * (2 * T + ch) + 4 * qh, 4)
                out.append(f'v_mfma_f32_16x16x32_bf16 {d}, {vr(slot(i),4)}, {ar((s*2+qh)*4,4)}, {d if s else 0}')
        return out
    a(f's_mov_b64 vcc, s[{S_SLOW}:{S_SLOW+1}]' if not force_slow else 's_mov_b64 vcc, -1')
    for o in cvt_ops: a(o)
    a(f's_lshl_b32 s{S_T0}, s{S_GRP}, 2')
    a(f'v_add_u32 v{WA[0]}, s{S_WB0}, v{V_L16}')
    pend = [(0, o, 1) for o in sum_ops]
    for i, sb in enumerate((S_WB1, S_WB2, S_WB3)): pend.append((0, f'v_add_u32 v{WA[i+1]}, s{sb}, v{V_L16}', 1))
    rot = 0
    for qd in range(1, 4):
        hdr = [f's_add_u32 s{S_PO}, s{S_PB}, {(qd-1)*8192}']
        for gm in range(4):
            for qh in range(2):
                b0 = 8 * qd + 2 * gm
                ready = 2 * (border.index(b0 + 1) + 1) + 6
                idx = gm * 2 + qh
                if idx == 0:
                    for h in hdr: pend.append((0, h, 1))
                if idx == 4: pend.append((ready, f's_add_u32 s{S_PO}, s{S_PO}, 4096', 1))
                tb = V_S + 8 * (rot % 2); pk = V_E + 4 * (rot % 4); rot += 1
                srcs = []
                for b in range(2):
                    for r in range(4):
                        o = Obase(b0 + b, qh) + r
                        if qd == 1: srcs.append(o)
                        else:
                            pend.append((ready, f'v_accvgpr_read_b32 v{tb+4*b+r}, a{o}', 1)); srcs.append(tb + 4 * b + r)
                for r in range(4): pend.append((ready, f'v_cvt_pk_bf16_f32 v{pk+r}, v{srcs[2*r]}, v{srcs[2*r+1]}', 1))
                pend.append((ready, Dual(f'buffer_store_dwordx4 {vr(pk,4)}, v{V_L16}, {SRD}, s{S_PO} offen offset:{(idx%4)*1024}', 'part', fast_st), 2))
    def stats_block():
        xreduce([V_L0, V_L1], 'v_add_f32', 124)
        a(f'v_mov_b32 v120, v{V_L0}')
        a(f'v_sub_f32 v121, 0, v{V_NEGM}')
        a(f'v_mov_b32 v122, v{V_L1}')
        a(f'v_sub_f32 v123, 0, v{V_NEGM+4}')
        a(f's_add_u32 s{S_T1}, s{S_PB}, {3*8192}')
        em(Dual(f'buffer_store_dwordx4 v[120:123], v{V_L16}, {SRD}, s{S_T1} offen', 'part', fast_st))
    XV = V_P
    def x_setup():
        a(f'v_lshrrev_b32 v{V_T0}, 4, v0')
        a(f'v_and_b32 v{V_T1}, 15, v0')
        a(f'v_xor_b32 v{V_T2}, v{V_T0}, v{V_T1}')
        a(f'v_lshlrev_b32 v{V_T2}, 4, v{V_T2}')
        a(f'v_lshl_add_u32 v{XV}, v{V_T0}, 10, v{V_T2}')
        for i in range(1, 4): a(f'v_xor_b32 v{XV+i}, {i*64}, v{XV}')
        a(f's_add_u32 s{S_KOFF}, s{S_KOFF}, s{S_W8K}')
        a(f'v_lshl_add_u32 v{XV+4}, v{V_T1}, 8, v{V_T2}')
        a(f'v_add_u32 v{XV+4}, s{S_KOFF}, v{XV+4}')
        for i in range(1, 4): a(f'v_xor_b32 v{XV+4+i}, {i*64}, v{XV+4}')
        a(f'v_add_u32 v{V_XO}, s{S_KOFF}, v{V_L16}')
        a(f's_lshl_b32 s{S_T4}, s{S_QB}, 15')
        a(f's_lshl_b32 s{S_T1}, s{S_SPLIT}, 8')
        a(f's_add_u32 s{S_T4}, s{S_T4}, s{S_T1}')
    def wc_dma(T):
        out = []
        first = [f's_add_u32 s{S_WCO}, s{S_WCO}, {TILE}', f's_add_u32 s{S_T2}, s{(S_WB0, S_WB1, S_WB2, S_WB3)[T]}, s{S_W8K}']
        for pre, op in dma_ops(V_DK0, V_DK1, S_WCO, S_T2):
            g = first; first = []
            if pre: g += [pre, 's_nop 0']
            out.append(g + [(op, ('wc', T))])
        return out
    dq = [ucload(f) for f in range(nuc[0], 32)]
    def xdma():
        return [[f's_add_u32 m0, s{S_KOFF}, {k*1024}', f's_add_u32 s{S_T1}, s{S_T4}, {k*4096}',
                 (f'buffer_load_dwordx4 v{XV+(k&3)}, {SRX}, s{S_T1} offen lds', 'x')] for k in range(8)]
    def pop():
        _, op, c = pend.pop(0); em(op)
        if isinstance(op, Dual):
            for _ in range(ld_per_st):
                if dq:
                    for o in dq.pop(0): em(o)
        return c
    lim = [64]
    def run(i0, i1, every=0):
        for i in range(i0, i1):
            it = stream[i]; w = []
            if it[0] == 'yc' and it[1] == 0 and it[2] % 2 == 0: w.append(f'vmcnt({min(63, vm.need(("uc", it[2] | 1)))})')
            if i % 2 == 0: w.append(f'lgkmcnt({q.need(("s", min(i + 1, NS - 1)))})')
            if w: a('s_waitcnt ' + ' '.join(w))
            mm = smf(i)
            for h in range(2):
                pos = 2 * i + h
                a(mm[h])
                budget = pv_budget
                if h == 0 and i + LA < NS:
                    nx = stream[i + LA]
                    if nx[0] == 'yc' and nx[2] == 0 and nx[1] in (1, 2):
                        a(f's_waitcnt vmcnt({min(63, vm.need(("wc", 1 if nx[1] == 1 else 3)))})')
                        a('s_barrier')
                    a(srd_(i + LA)); q.issue(('s', i + LA)); budget -= 1
                while pend and pend[0][0] <= pos and budget > 0: budget -= pop()
                if every and dq and pos % every == 1:
                    for o in dq.pop(0): em(o)
    run(0, 32)
    a('s_barrier')
    x_setup()
    while pend: pop()
    stats_block()
    dq += wc_dma(1) + wc_dma(2) + wc_dma(3)
    while len(dq) > 24 - flag_after:
        for o in dq.pop(0): em(o)
    st(4)
    a(f's_lshl_b32 s{S_T3}, s{S_SPLIT}, 7')
    a(f's_add_u32 s{S_T3}, s{S_T3}, s{S_FLO}')
    a(f's_lshl_b32 s{S_PH}, s{S_W}, 2')
    a(f's_add_u32 s{S_FLO}, s{S_FLO}, s{S_PH}')
    a(f's_add_u32 s{S_T3}, s{S_T3}, s{S_PH}')
    a(f'v_mov_b32 v{V_T0}, 0\n v_mov_b32 v{V_T1}, 1')
    a(f's_lshl_b32 s{S_CNT}, 1, s{S_SPLIT}')
    a('s_mov_b64 exec, 1')
    a(f's_waitcnt vmcnt({vm.need("part")})')
    em(Dual(f'buffer_store_dword v{V_T1}, v{V_T0}, {SRD}, s{S_T3} offen offset:4', None, ''))
    a('s_mov_b64 exec, -1')
    st(5)
    if stamp: a('s_waitcnt lgkmcnt(0)')
    poll = f'buffer_load_dword v{V_PFD}, v{V_FL}, {SRD}, s{S_FLO} offen offset:4 sc1'
    dq.insert(min(poll_after, len(dq)), [(poll, 'poll')])
    STR = [56, 60, 124]
    def getmask(w):
        a(f's_waitcnt vmcnt({w})')
        a(f'v_cmp_eq_u32 vcc, 1, v{V_PFD}')
        a('s_nop 3')
        a(f's_and_b32 s{S_PFS}, vcc_lo, 15')
        a(f's_andn2_b32 s{S_PFS}, s{S_PFS}, s{S_CNT}')
        a(f's_or_b32 s{S_CNT}, s{S_CNT}, s{S_PFS}')
    def slot_hdr(k):
        return [f's_sub_u32 s{S_T1}, s{S_SPLIT}, {k+1}', f's_and_b32 s{S_T1}, s{S_T1}, 3', f's_bitcmp1_b32 s{S_PFS}, s{S_T1}']
    def slot_adr():
        return [f's_add_u32 s{S_T1}, s{S_T1}, s{S_T0}', f's_lshl_b32 s{S_T1}, s{S_T1}, 2', f's_add_u32 s{S_T1}, s{S_T1}, s{S_W}',
                f's_lshl_b32 s{S_PO}, s{S_T1}, 15', f's_add_u32 s{S_T1}, s{S_PO}, {WS_PART + 3*8192}']
    def slot_loads(k, vo):
        out = [[f'buffer_load_dwordx4 {vr(STR[k],4)}, v{vo}, {SRD}, s{S_T1} offen sc1']]
        for h4 in range(2):
            for i in range(4):
                pre = [f's_add_u32 s{S_T1}, s{S_PO}, {WS_PART + k*8192 + h4*4096}'] if i == 0 else []
                out.append(pre + [f'buffer_load_dwordx4 {ar(128+(k*8+h4*4+i)*4,4)}, v{vo}, {SRD}, s{S_T1} offen offset:{i*1024} sc1'])
        return out
    def check():
        getmask(0)
        for k in range(3):
            lab = a.label(name + '_ck')
            for o in slot_hdr(k): a(o)
            a(f's_cbranch_scc0 {lab}')
            for o in slot_adr(): a(o)
            for g in slot_loads(k, V_L16):
                for o in g: a(o)
            a(f'{lab}:')
    run(32, chk_at, every=2)
    assert not dq
    st(20)
    if stamp: a('s_waitcnt lgkmcnt(0)')
    getmask(vm.need('poll'))
    for k in range(3):
        first = slot_hdr(k) + [f's_cselect_b32 s{S_PH}, 0, 0x80000000', f'v_or_b32 v{V_T2}, s{S_PH}, v{V_L16}'] + slot_adr()
        for g in slot_loads(k, V_T2):
            dq.append(first + g); first = []
    dq += xdma() + [[poll]]
    run(chk_at, NS, every=r_pace)
    assert not dq, len(dq)
    st(21)
    a(f's_waitcnt vmcnt({vm.need("x")})')
    st(22)
    if stamp: a('s_waitcnt lgkmcnt(0)')
    for idx in range(8):
        gm, qh = idx >> 1, idx & 1
        a(f'ds_read_b128 {vr(V_S+4*idx,4)}, v{XV+4+gm} offset:{qh*4096}')
    a('s_nop 3')
    for idx in range(8):
        gm, qh = idx >> 1, idx & 1
        xb = V_S + 4 * idx
        a(f's_waitcnt lgkmcnt({7-idx})')
        for i in range(4):
            a(f'v_lshlrev_b32 v{64+2*i}, 16, v{xb+i}')
            a(f'v_and_b32 v{64+2*i+1}, 0xffff0000, v{xb+i}')
        for i in range(4):
            y = YB + 8 * (2 * gm + (i >> 1)) + 4 * qh + 2 * (i & 1)
            a(f'v_pk_add_f32 {vr(y,2)}, {vr(y,2)}, {vr(64+2*i,2)}')
    st(23)
    a(f'{name}_spin:')
    check()
    a(f's_cmp_eq_u32 s{S_CNT}, 15')
    a(f's_cbranch_scc1 {name}_got')
    a(poll)
    a(f's_branch {name}_spin')
    a(f'{name}_got:')
    st(6)
    a('s_waitcnt vmcnt(0)')
    st(24)
    allst = [120] + STR
    for qh in range(2):
        t = V_T0 + qh
        a(f'v_max3_f32 v{t}, v{allst[0]+2*qh+1}, v{allst[1]+2*qh+1}, v{allst[2]+2*qh+1}')
        a(f'v_max_f32 v{t}, v{t}, v{allst[3]+2*qh+1}')
    for qh in range(2):
        for b in allst: a(f'v_sub_f32 v{b+2*qh+1}, v{b+2*qh+1}, v{V_T0+qh}')
    for qh in range(2):
        for b in allst: a(f'v_exp_f32 v{b+2*qh+1}, v{b+2*qh+1}')
    for qh in range(2):
        a(f'v_mul_f32 v{V_T0+qh}, v{allst[0]+2*qh}, v{allst[0]+2*qh+1}')
    for b in allst[1:]:
        for qh in range(2): a(f'v_fmac_f32 v{V_T0+qh}, v{b+2*qh}, v{b+2*qh+1}')
    for qh in range(2): a(f'v_rcp_f32 v{V_T0+qh}, v{V_T0+qh}')
    a('s_nop 0')
    for qh in range(2):
        for b in allst: a(f'v_mul_f32 v{b+2*qh+1}, v{b+2*qh+1}, v{V_T0+qh}')
    for i in range(4): a(f'v_or_b32 v{XV+i}, s{S_VALID}, v{XV+i}')
    for qh in range(2):
        for gm in range(4):
            idx = gm * 2 + qh
            ys = [YB + 8 * (2 * gm + (i >> 1)) + 4 * qh + 2 * (i & 1) for i in range(4)]
            for i in range(4):
                a(f'v_pk_fma_f32 {vr(ys[i],2)}, {vr(ys[i]-64,2)}, {vr(120+2*qh,2)}, {vr(ys[i],2)} op_sel:[0,1,0] op_sel_hi:[1,1,1]')
            for k in range(3):
                ub = 64 + 12 * k
                for i in range(4): a(f'v_accvgpr_read_b32 v{ub+8+i}, a{128+(k*8+idx)*4+i}')
                for i in range(4):
                    a(f'v_lshlrev_b32 v{ub+2*i}, 16, v{ub+8+i}')
                    a(f'v_and_b32 v{ub+2*i+1}, 0xffff0000, v{ub+8+i}')
                for i in range(4):
                    a(f'v_pk_fma_f32 {vr(ys[i],2)}, {vr(ub+2*i,2)}, {vr(STR[k]+2*qh,2)}, {vr(ys[i],2)} op_sel:[0,1,0] op_sel_hi:[1,1,1]')
            ob = 100 + 4 * (gm & 1)
            for i in range(4): a(f'v_cvt_pk_bf16_f32 v{ob+i}, v{ys[i]}, v{ys[i]+1}')
            a(f'ds_write_b128 v{XV+4+gm}, {vr(ob,4)} offset:{qh*4096}')
            if qh == 1 and gm == 0:
                a('s_waitcnt lgkmcnt(1)')
                for i in range(4):
                    a(f's_add_u32 s{S_T1}, s{S_T4}, {i*4096}')
                    a(f'buffer_store_dwordx4 {vr(V_S+4*i,4)}, v{XV+i}, {SRO}, s{S_T1} offen {out_flags}')
        for i in range(4): a(f'ds_read_b128 {vr(V_S+16*qh+4*i,4)}, v{V_XO} offset:{(4*qh+i)*1024}')
    for i in range(4):
        a(f's_add_u32 s{S_T1}, s{S_T4}, {(4+i)*4096}')
        a(f's_waitcnt lgkmcnt({3-i})')
        a(f'buffer_store_dwordx4 {vr(V_S+16+4*i,4)}, v{XV+i}, {SRO}, s{S_T1} offen {out_flags}')
    if stamp:
        a('s_waitcnt vmcnt(0)')
        st(7)
        a('s_waitcnt lgkmcnt(0)')
        a(f's_cmp_lg_u32 s{S_W}, 0')
        a(f's_cbranch_scc1 {name}_end')
        a(f's_lshl_b32 s{S_T1}, s2, 7')
        a(f's_add_u32 s{S_T1}, s{S_T1}, {WS_STAMP}')
        for i in range(32): a(f'v_mov_b32 v{16+i}, s{64+i}')
        a(f'v_mov_b32 v{V_T0}, 0')
        a('s_mov_b64 exec, 1')
        for i in range(8):
            a(f'buffer_store_dwordx4 {vr(16+4*i,4)}, v{V_T0}, {SRD}, s{S_T1} offen offset:{16*i}')
        if dbgout:
            a(f's_cmp_lg_u32 s2, 0\n s_cbranch_scc1 {name}_end')
            a('s_load_dwordx2 s[4:5], s[0:1], 80')
            a(f's_mov_b32 s{S_T1}, {WS_STAMP + 131072}')
            a(f'buffer_load_dwordx4 v[48:51], v{V_T0}, {SRD}, s{S_T1} offen sc1')
            a(f's_mov_b32 s{S_T1}, {WS_STAMP + 65536}')
            a(f'buffer_load_dwordx4 v[52:55], v{V_T0}, {SRD}, s{S_T1} offen sc1')
            a(f'buffer_load_dwordx4 v[56:59], v{V_T0}, {SRD}, s{S_T1} offen offset:16 sc1')
            a('s_waitcnt vmcnt(0) lgkmcnt(0)')
            a('s_sub_u32 s12, s4, 0\n s_subb_u32 s13, s5, 0\n s_mov_b32 s14, 256\n s_mov_b32 s15, 0x20000')
            src = [50, 52, 54, 56, 58, 16, 18, 20, 22, 30]
            for i, r in enumerate(src): a(f'v_sub_u32 v{64+i}, v{r}, v48')
            for i in range(3): a(f'buffer_store_dwordx4 {vr(64+4*i,4)}, v{V_T0}, s[12:15], 0 offen offset:{16*i}')
    a(f'{name}_end:')
    a('s_endpgm')
    for lab, op in stubs:
        a(f'{lab}:')
        a(f'{op} sc1')
        a(f's_branch {lab}b')
    a(f'{name}_cfslow:')
    a('s_sleep 2')
    a(f'buffer_load_dword v{V_PFD}, v{V_FL}, {SRD}, s{S_FLO} offen sc1')
    a('s_waitcnt vmcnt(0)')
    a(f'v_cmp_eq_u32 s[{S_T3}:{S_T3+1}], 0, v{V_PFD}')
    a('s_nop 3')
    a(f's_cmp_eq_u64 s[{S_T3}:{S_T3+1}], 0')
    a(f's_cbranch_scc0 {name}_cfslow')
    a(f's_branch {name}_cfok')
    for (L_r1, L_r1b, L_r2, L_r2b) in rare:
        a(f'{L_r1}:')
        rowmax2(V_T1, V_T2, 120)
        for qh, dst in ((0, V_T1), (1, V_T2)):
            a(f'v_max_f32 v{dst}, 0, v{dst}')
            fr = V_F1 if qh else V_F0
            a(f'v_sub_f32 v{fr}, 0, v{dst}')
            a(f'v_exp_f32 v{fr}, v{fr}')
            for kh in range(2):
                for i in range(4): a(f'v_sub_f32 v{Sreg(kh,qh)+i}, v{Sreg(kh,qh)+i}, v{dst}')
            for i in range(4): a(f'v_sub_f32 v{V_NEGM+4*qh+i}, v{V_NEGM+4*qh+i}, v{dst}')
            l = V_L1 if qh else V_L0
            a(f'v_mul_f32 v{l}, v{l}, v{fr}')
        a(f's_branch {L_r1b}')
        a(f'{L_r2}:')
        a('s_nop 7')
        for beta in range(32):
            for qh in range(2):
                fr = V_F1 if qh else V_F0
                b = Obase(beta, qh)
                if beta < 16:
                    for r in range(4): a(f'v_mul_f32 v{b+r}, v{b+r}, v{fr}')
                else:
                    for r in range(4): a(f'v_accvgpr_read_b32 v{120+r}, a{b+r}')
                    for r in range(4): a(f'v_mul_f32 v{120+r}, v{120+r}, v{fr}')
                    for r in range(4): a(f'v_accvgpr_write_b32 a{b+r}, v{120+r}')
        a(f's_branch {L_r2b}')
    a('code_end:')
    a('s_endpgm')
    kernel_desc(a, name, 512, 102, 256)
```

```python
from asmlib import *
from layout import *
from attn2 import LdsQ
from k2 import f2h

N_PREP_WG = 256
PREP_LDS = 163840

def gen_prep(a, name, stamp=False, code_bytes=131072, st_flags='', lnw=0, stw=4, gl=3, delay=0):
    V_L16, V_T0, V_T1, V_T2, V_T3, V_TR, V_DT, V_LR, V_LS = range(1, 10)
    V_SW, V_AR, V_BR = 10, 20, 24
    V_ACC, V_PK, V_RA, V_RB = 32, 48, 64, 96
    RAW, F, SUM, MEAN, RSTD = 64, 96, 28, 18, 56
    P_X, P_WQ, P_WK, P_WV, P_AO, P_UP, P_DW, P_DN, P_MG, P_OUT, P_DBG, P_WS = [4 + 2 * i for i in range(12)]
    S_SW, S_SA, S_SB, S_SX = 28, 32, 36, 40
    S_W, S_TI, S_TJ, S_T0, S_T1, S_T2, S_OO, S_ROLE, S_BLK, S_RB, S_CB, S_LN = range(44, 56)
    SW, SA, SB, SX = [f's[{b}:{b+3}]' for b in (S_SW, S_SA, S_SB, S_SX)]
    LA_, LB_ = 32768, 98304
    def st(i, cyc=False):
        if stamp: a(f'{"s_memtime" if cyc else "s_memrealtime"} s[{60+2*i}:{61+2*i}]')
    kernel_begin(a, name)
    a(f's_cmp_ge_u32 s2, {N_PREP_WG}\n s_cbranch_scc1 {name}_end')
    a('s_load_dwordx16 s[4:19], s[0:1], 0')
    a('s_load_dwordx8 s[20:27], s[0:1], 64')
    if stamp:
        for i in range(60, 76): a(f's_mov_b32 s{i}, 0')
    st(0); st(6, True)
    if code_bytes:
        lab = f'{name}_nopf'
        a(f's_cmp_lt_u32 s2, 248\n s_cbranch_scc1 {lab}')
        a(f's_getpc_b64 s[56:57]')
        a(f'{name}_pc:')
        a(f's_sub_u32 s56, s56, {name}_pc-{name}')
        a(f's_subb_u32 s57, s57, 0')
        a(f'v_lshlrev_b32 v{V_T0}, 7, v0')
        for i in range(-(-code_bytes // 65536)):
            a(f'v_min_u32 v{V_T1}, code_end-{name}-4, v{V_T0}')
            a(f'global_load_dword v{120+i}, v{V_T1}, s[56:57]')
            a(f'v_add_u32 v{V_T0}, 65536, v{V_T0}')
        a(f'{lab}:')
    a(f'v_lshrrev_b32 v{V_T0}, 6, v0')
    a(f'v_and_b32 v0, 63, v0')
    a(f'v_readfirstlane_b32 s{S_W}, v{V_T0}')
    a(f'v_lshlrev_b32 v{V_L16}, 4, v0')
    a(f's_lshr_b32 s{S_LN}, s{S_W}, 2')
    a(f's_and_b32 s{S_W}, s{S_W}, 3')
    a(f's_and_b32 s{S_RB}, s{S_W}, 1')
    a(f's_lshr_b32 s{S_CB}, s{S_W}, 1')
    a(f'v_and_b32 v{V_T0}, 7, v0')
    a(f'v_lshrrev_b32 v{V_T1}, 3, v0')
    a(f's_cmp_eq_u32 s{S_LN}, {1 - lnw}\n s_cbranch_scc1 {name}_role')
    a(f's_and_b32 s{S_T0}, s2, 7')
    a(f's_lshr_b32 s{S_T1}, s2, 3')
    a(f's_and_b32 s{S_BLK}, s{S_T0}, 3')
    a(f's_lshl_b32 s{S_BLK}, s{S_BLK}, 5')
    a(f's_add_u32 s{S_BLK}, s{S_BLK}, s{S_T1}')
    a(f's_cmp_lt_u32 s{S_BLK}, 125')
    a(f's_cselect_b32 s{S_T2}, 0, 0x80000000')
    a(f's_min_u32 s{S_BLK}, s{S_BLK}, 124')
    a(f's_lshr_b32 s{S_T0}, s{S_T0}, 2')
    a(f's_mul_i32 s{S_T0}, s{S_T0}, 125')
    a(f's_add_u32 s{S_BLK}, s{S_BLK}, s{S_T0}')
    a(f's_lshl_b32 s{S_BLK}, s{S_BLK}, 15')
    a(f's_lshl_b32 s{S_T0}, s{S_W}, 13')
    a(f's_add_u32 s{S_T1}, s{S_BLK}, s{S_T0}')
    a('s_waitcnt lgkmcnt(0)')
    make_srd(a, S_SX, P_X, 0, 8192000)
    for g in range(2):
        a(f's_add_u32 m0, s{S_T0}, {g*4096}')
        if g: a(f's_add_u32 s{S_T1}, s{S_T1}, 4096')
        else: a('s_nop 0')
        for i in range(4): a(f'buffer_load_dwordx4 v{V_L16}, {SX}, s{S_T1} offen offset:{i*1024} lds')
    make_srd(a, S_SW, P_WS, 0, WS_SIZE)
    a(f'v_lshlrev_b32 v{V_LR}, 4, v{V_T1}')
    a(f'v_lshl_add_u32 v{V_LR}, v{V_T0}, 10, v{V_LR}')
    a(f'v_add_u32 v{V_LR}, s{S_T0}, v{V_LR}')
    a(f'v_lshrrev_b32 v{V_T2}, 5, v0')
    a(f'v_lshlrev_b32 v{V_LS}, 11, v{V_T2}')
    a(f'v_and_b32 v{V_T2}, 3, v{V_T1}')
    a(f'v_lshl_add_u32 v{V_LS}, v{V_T2}, 8, v{V_LS}')
    a(f'v_lshl_add_u32 v{V_LS}, v{V_T0}, 4, v{V_LS}')
    a(f'v_or_b32 v{V_LS}, s{S_T2}, v{V_LS}')
    a('s_waitcnt vmcnt(0)')
    st(2)
    for i in range(8): a(f'ds_read_b128 {vr(RAW+4*i,4)}, v{V_LR} offset:{i*128}')
    for i in range(4): a(f'v_mov_b32 v{SUM+i}, 0')
    if stamp: a('s_waitcnt lgkmcnt(0)')
    for s in range(8):
        a(f's_waitcnt lgkmcnt({7-s})')
        for i in range(4):
            r = RAW + 4 * s + i; f = F + 8 * s + 2 * i
            a(f'v_lshlrev_b32 v{f}, 16, v{r}')
            a(f'v_and_b32 v{f+1}, 0xffff0000, v{r}')
        for i in range(4):
            f = F + 8 * s + 2 * i; acc = SUM + 2 * (i & 1)
            a(f'v_pk_add_f32 {vr(acc,2)}, {vr(acc,2)}, {vr(f,2)}')
    def reduce8(dst):
        a(f'v_pk_add_f32 {vr(SUM,2)}, {vr(SUM,2)}, {vr(SUM+2,2)}')
        a(f'v_add_f32 v{dst}, v{SUM}, v{SUM+1}')
        a('s_nop 1')
        a(f'v_add_f32_dpp v{dst}, v{dst}, v{dst} row_ror:8 row_mask:0xf bank_mask:0xf')
        for sw in ('v_permlane16_swap_b32', 'v_permlane32_swap_b32'):
            a(f'v_mov_b32 v{V_T2}, v{dst}')
            a('s_nop 1')
            a(f'{sw} v{V_T2}, v{dst}')
            a('s_nop 1')
            a(f'v_add_f32 v{dst}, v{dst}, v{V_T2}')
    reduce8(MEAN)
    a(f'v_mul_f32 v{MEAN}, {f2h(-1.0/512)}, v{MEAN}')
    for i in range(4): a(f'v_mov_b32 v{SUM+i}, 0')
    for k in range(32):
        f = F + 2 * k
        a(f'v_pk_add_f32 {vr(f,2)}, {vr(f,2)}, {vr(MEAN,2)} op_sel_hi:[1,0]')
        if k:
            g = f - 2; acc = SUM + 2 * (k & 1)
            a(f'v_pk_fma_f32 {vr(acc,2)}, {vr(g,2)}, {vr(g,2)}, {vr(acc,2)}')
    g = F + 62
    a(f'v_pk_fma_f32 {vr(SUM,2)}, {vr(g,2)}, {vr(g,2)}, {vr(SUM,2)}')
    reduce8(RSTD)
    a(f'v_mov_b32 v{V_T2}, {f2h(1e-5)}')
    a(f'v_fmac_f32 v{V_T2}, {f2h(1.0/512)}, v{RSTD}')
    a(f'v_rsq_f32 v{RSTD}, v{V_T2}')
    a(f's_lshl_b32 s{S_T0}, s{S_CB}, 10')
    a(f's_lshl_b32 s{S_T1}, s{S_RB}, 7')
    a(f's_add_u32 s{S_T0}, s{S_T0}, s{S_T1}')
    a(f's_add_u32 s{S_T0}, s{S_T0}, s{S_BLK}')
    if WS_XA: a(f's_add_u32 s{S_T0}, s{S_T0}, {WS_XA}')
    for s in range(8):
        for i in range(4):
            f = F + 8 * s + 2 * i
            a(f'v_pk_mul_f32 {vr(f,2)}, {vr(f,2)}, {vr(RSTD,2)} op_sel_hi:[1,0]')
        for i in range(4):
            f = F + 8 * s + 2 * i
            a(f'v_cvt_pk_bf16_f32 v{RAW+4*s+i}, v{f}, v{f+1}')
        if s: a(f's_add_u32 s{S_T0}, s{S_T0}, 4096')
        a(f'buffer_store_dwordx4 {vr(RAW+4*s,4)}, v{V_LS}, {SW}, s{S_T0} offen {st_flags}')
    st(3)
    a('s_barrier')
    a(f's_branch {name}_fin')
    a(f'{name}_role:')
    a('s_waitcnt lgkmcnt(0)')
    make_srd(a, S_SW, P_WS, 0, WS_SIZE)
    a(f's_lshl_b32 s{S_T1}, s{S_RB}, 7')
    a(f'v_xor_b32 v{V_SW}, s{S_T1}, v{V_L16}')
    for i in range(1, 8): a(f'v_xor_b32 v{V_SW+i}, {i*16}, v{V_SW}')
    a(f'v_bfe_u32 v{V_T2}, v0, 4, 1')
    a(f'v_lshlrev_b32 v{V_T2}, 2, v{V_T2}')
    a(f'v_xor_b32 v{V_T2}, v{V_T2}, v{V_T0}')
    a(f'v_lshlrev_b32 v{V_DT}, 4, v{V_T2}')
    def rows_dma(srd, sbase, ldsbase):
        a(f's_lshl_b32 s{S_T2}, s{S_W}, 14')
        a(f's_add_u32 s{S_T1}, s{sbase}, s{S_T2}')
        for g in range(4):
            a(f's_add_u32 m0, s{S_T2}, {ldsbase + g*4096}')
            if g: a(f's_add_u32 s{S_T1}, s{S_T1}, 4096')
            else: a('s_nop 0')
            for i in range(4):
                a(f'buffer_load_dwordx4 v{V_SW + 4*(g>>1) + i}, {srd}, s{S_T1} offen offset:{i*1024} lds')
    def tr_dma(npiece, stride_log2, sbase):
        a(f'v_lshl_add_u32 v{V_T3}, v{V_T1}, {stride_log2}, v{V_DT}')
        a(f's_mul_i32 s{S_T1}, s{S_W}, {npiece * 8 << stride_log2}')
        a(f's_add_u32 s{S_T1}, s{S_T1}, s{sbase}')
        a(f's_mul_i32 s{S_T2}, s{S_W}, {npiece * 1024}')
        for i in range(npiece):
            a(f's_add_u32 m0, s{S_T2}, {LB_ + i*1024}')
            if i: a(f's_add_u32 s{S_T1}, s{S_T1}, {8 << stride_log2}')
            else: a('s_nop 0')
            a(f'buffer_load_dwordx4 v{V_T3}, {SB}, s{S_T1} offen lds')
    a(f's_and_b32 s3, s2, 7')
    a(f's_lshl_b32 s3, s3, 5')
    a(f's_lshr_b32 s{S_T1}, s2, 3')
    a(f's_add_u32 s3, s3, s{S_T1}')
    a(f's_and_b32 s{S_T2}, s2, 1')
    a(f's_lshl1_add_u32 s{S_T1}, s{S_T1}, s{S_T2}')
    a(f's_add_u32 s{S_T1}, s{S_T1}, 192')
    a(f's_cmp_ge_u32 s3, 192')
    a(f's_cselect_b32 s3, s{S_T1}, s3')
    a(f's_lshr_b32 s{S_ROLE}, s3, 6')
    a(f's_and_b32 s{S_TI}, s3, 7')
    a(f's_bfe_u32 s{S_TJ}, s3, 0x30003')
    a(f's_cmp_eq_u32 s{S_ROLE}, 3\n s_cbranch_scc1 {name}_i3')
    a(f's_cmp_eq_u32 s{S_ROLE}, 1\n s_cbranch_scc1 {name}_i1')
    a(f's_cmp_eq_u32 s{S_ROLE}, 0')
    a(f's_cselect_b32 s{S_SA}, s{P_AO}, s{P_DN}')
    a(f's_cselect_b32 s{S_SA+1}, s{P_AO+1}, s{P_DN+1}')
    a(f's_cselect_b32 s{S_T0}, 0, {512*1024}')
    a(f's_mov_b32 s{S_SA+2}, {512*1024}\n s_mov_b32 s{S_SA+3}, 0x20000')
    make_srd(a, S_SB, P_MG, 0, 1024 * 1024)
    a(f's_lshl_b32 s{S_T1}, s{S_TJ}, 7')
    a(f's_add_u32 s{S_T0}, s{S_T0}, s{S_T1}')
    tr_dma(16, 10, S_T0)
    a(f's_lshl_b32 s{S_T0}, s{S_TI}, 16')
    rows_dma(SA, S_T0, LA_)
    a(f's_branch {name}_ln')
    a(f'{name}_i1:')
    make_srd(a, S_SA, P_WQ, 0, 512 * 1024)
    make_srd(a, S_SB, P_WK, 0, 512 * 1024)
    a(f's_lshl_b32 s{S_T0}, s{S_TJ}, 16')
    rows_dma(SB, S_T0, LB_)
    a(f's_lshl_b32 s{S_T0}, s{S_TI}, 16')
    rows_dma(SA, S_T0, LA_)
    a(f's_branch {name}_ln')
    a(f'{name}_i3:')
    make_srd(a, S_SA, P_WV, 0, 512 * 1024)
    make_srd(a, S_SB, P_UP, 0, 1024 * 1024)
    a(f's_cmp_ge_u32 s3, 224\n s_cbranch_scc1 {name}_i4')
    a(f's_bfe_u32 s{S_TJ}, s3, 0x40001')
    a(f's_and_b32 s{S_TI}, s3, 1')
    a(f's_lshl_b32 s{S_T0}, s{S_TJ}, 7')
    a(f's_lshl_b32 s{S_T1}, s{S_TI}, 19')
    a(f's_add_u32 s{S_T0}, s{S_T0}, s{S_T1}')
    tr_dma(8, 11, S_T0)
    a(f's_branch {name}_ln')
    a(f'{name}_i4:')
    a(f's_cmp_ge_u32 s3, 232\n s_cbranch_scc1 {name}_i5')
    a(f's_lshl_b32 s{S_T0}, s{S_TI}, 16')
    rows_dma(SA, S_T0, LA_)
    a(f's_branch {name}_ln')
    a(f'{name}_i5:')
    make_srd(a, S_SA, P_DW, 0, 31 * 1024)
    a(f's_sub_u32 s{S_OO}, s3, 232')
    a(f's_lshl_b32 s{S_OO}, s{S_OO}, 2')
    a(f's_add_u32 s{S_OO}, s{S_OO}, s{S_W}')
    a(f's_lshl_b32 s{S_OO}, s{S_OO}, 1')
    a(f's_min_u32 s{S_OO}, s{S_OO}, 158')
    a(f'v_bfe_u32 v{V_T2}, v0, 4, 2')
    a(f'v_bfe_u32 v{V_T3}, v0, 2, 2')
    a(f'v_lshl_add_u32 v{V_T2}, v{V_T2}, 3, v{V_T3}')
    a(f'v_lshlrev_b32 v{V_T2}, 1, v{V_T2}')
    a(f'v_and_b32 v{V_T3}, 3, v0')
    a(f'v_add_u32 v{V_T3}, 1, v{V_T3}')
    a(f'v_lshlrev_b32 v{V_T3}, 10, v{V_T3}')
    a(f'v_sub_u32 v{V_T2}, v{V_T2}, v{V_T3}')
    for rnd in range(2):
        a(f's_add_u32 s{S_T0}, s{S_OO}, {rnd}')
        a(f's_mul_i32 s{S_T1}, s{S_T0}, 52429')
        a(f's_lshr_b32 s{S_T1}, s{S_T1}, 18')
        a(f's_mul_i32 s{S_T2}, s{S_T1}, 5')
        a(f's_sub_u32 s{S_T0}, s{S_T0}, s{S_T2}')
        a(f's_lshl_b32 s{S_T0}, s{S_T0}, 13')
        a(f's_lshr_b32 s{S_T2}, s{S_T1}, 1')
        a(f's_lshl_b32 s{S_T2}, s{S_T2}, 6')
        a(f's_add_u32 s{S_T0}, s{S_T0}, s{S_T2}')
        a(f's_and_b32 s{S_T1}, s{S_T1}, 1')
        a(f's_lshl_b32 s{S_T1}, s{S_T1}, 3')
        a(f's_add_u32 s{S_T0}, s{S_T0}, s{S_T1}')
        a(f'v_add_u32 v{V_T3}, s{S_T0}, v{V_T2}')
        for e in range(8):
            a(f'buffer_load_ushort v{V_ACC+8*rnd+e}, v{V_T3}, {SA}, 0 offen')
            if e < 7: a(f'v_add_u32 v{V_T3}, 1024, v{V_T3}')
    a(f'{name}_ln:')
    st(2)
    a(f'v_and_b32 v{V_T0}, 15, v0')
    a(f'v_lshrrev_b32 v{V_T1}, 4, v0')
    a(f'v_bfe_u32 v{V_T2}, v0, 2, 2')
    a(f'v_and_b32 v{V_T3}, 3, v0')
    a(f'v_lshl_add_u32 v{V_TR}, v{V_T2}, 3, v{V_T3}')
    a(f'v_lshlrev_b32 v{V_TR}, 10, v{V_TR}')
    a(f'v_xor_b32 v{V_T0}, v{V_T0}, v{V_T1}')
    a(f'v_lshl_add_u32 v{V_TR}, v{V_T0}, 4, v{V_TR}')
    a(f's_lshl_b32 s{S_T0}, s{S_RB}, 15')
    a(f's_add_u32 s{S_T0}, s{S_T0}, {LA_}')
    a(f's_lshl_b32 s{S_T1}, s{S_CB}, 15')
    a(f's_add_u32 s{S_T1}, s{S_T1}, {LB_}')
    for i in range(4):
        a(f'v_xor_b32 v{V_T0}, {i*64}, v{V_TR}')
        a(f'v_add_u32 v{V_AR+i}, s{S_T0}, v{V_T0}')
        a(f'v_add_u32 v{V_BR+i}, s{S_T1}, v{V_T0}')
    a(f'v_bfe_u32 v{V_T0}, v0, 3, 1')
    a(f'v_xor_b32 v{V_T0}, s{S_CB}, v{V_T0}')
    a(f'v_lshl_add_u32 v{V_T0}, v{V_T0}, 2, v{V_T3}')
    a(f'v_lshlrev_b32 v{V_TR}, 4, v{V_T0}')
    a(f'v_lshl_add_u32 v{V_TR}, v{V_T2}, 7, v{V_TR}')
    a(f'v_lshl_add_u32 v{V_TR}, v{V_T1}, 10, v{V_TR}')
    a(f'v_add_u32 v{V_TR}, {LB_}, v{V_TR}')
    a('s_waitcnt vmcnt(0)')
    st(3)
    a('s_barrier')
    st(4)
    if stamp: a('s_waitcnt lgkmcnt(0)')
    def rd_rows(base):
        return lambda s, h, dst: [f'ds_read_b128 {vr(dst,4)}, v{base + (s & 3)} offset:{h*4096 + (s >> 2)*256}']
    def rd_tr(s, h, dst):
        return [f'ds_read_b64_tr_b16 {vr(dst+2*jj,2)}, v{V_TR} offset:{s*4096 + jj*512 + h*8}' for jj in range(2)]
    def gemm(rdB):
        rdA = rd_rows(V_AR)
        q = LdsQ()
        def issue(s):
            for h in range(2):
                for o in rdA(s, h, V_RA + 8 * (s % 4) + 4 * h): a(o); q.issue(s)
            for h in range(2):
                for o in rdB(s, h, V_RB + 8 * (s % 4) + 4 * h): a(o); q.issue(s)
        for s in range(gl): issue(s)
        for s in range(16):
            a(f's_waitcnt lgkmcnt({min(15, q.need(s))})')
            for ch in range(2):
                for b in range(2):
                    d = vr(V_ACC + ch * 8 + b * 4, 4)
                    a(f'v_mfma_f32_16x16x32_bf16 {d}, {vr(V_RA+8*(s%4)+4*b,4)}, {vr(V_RB+8*(s%4)+4*ch,4)}, {d if s else 0}')
                if ch == 0 and s + gl < 16: issue(s + gl)
        a('s_nop 7')
    a(f's_cmp_eq_u32 s{S_ROLE}, 3\n s_cbranch_scc1 {name}_c3')
    a(f's_lshl1_add_u32 s{S_OO}, s{S_TJ}, s{S_CB}')
    a(f's_lshl_b32 s{S_OO}, s{S_OO}, 15')
    a(f's_lshl1_add_u32 s{S_T0}, s{S_TI}, s{S_RB}')
    a(f's_lshl_b32 s{S_T0}, s{S_T0}, 11')
    a(f's_add_u32 s{S_OO}, s{S_OO}, s{S_T0}')
    a(f's_cmp_eq_u32 s{S_ROLE}, 1\n s_cbranch_scc1 {name}_c1')
    a(f's_cmp_eq_u32 s{S_ROLE}, 0')
    a(f's_cselect_b32 s{S_T0}, {WS_T1}, {WS_WC}' if False else f's_cselect_b32 s{S_T0}, {WS_T1 - WS_WC}, 0')
    a(f's_add_u32 s{S_OO}, s{S_OO}, s{S_T0}')
    a(f's_add_u32 s{S_OO}, s{S_OO}, {WS_WC}')
    gemm(rd_tr)
    a(f's_branch {name}_out')
    a(f'{name}_c1:')
    a(f's_add_u32 s{S_OO}, s{S_OO}, {WS_W}')
    gemm(rd_rows(V_BR))
    a(f's_mov_b32 s{S_T1}, {f2h(512 ** -0.5 * 1.4426950408889634)}')
    for i in range(16): a(f'v_mul_f32 v{V_ACC+i}, s{S_T1}, v{V_ACC+i}')
    a(f'{name}_out:')
    for i in range(8): a(f'v_cvt_pk_bf16_f32 v{V_PK+i}, v{V_ACC+2*i}, v{V_ACC+2*i+1}')
    for ch in range(2):
        a(f'buffer_store_dwordx4 {vr(V_PK+4*ch,4)}, v{V_L16}, {SW}, s{S_OO} offen offset:{ch*1024} {st_flags}')
    a(f's_branch {name}_fin')
    a(f'{name}_c3:')
    a(f's_cmp_ge_u32 s3, 224\n s_cbranch_scc1 {name}_c4')
    a(f's_lshl_b32 s{S_T0}, s{S_RB}, 14')
    a(f'v_add_u32 v{V_TR}, s{S_T0}, v{V_TR}')
    for i in range(8):
        for o in rd_tr(i >> 1, i & 1, V_RA + 4 * i): a(o)
    a(f's_lshl1_add_u32 s{S_OO}, s{S_TJ}, s{S_CB}')
    a(f's_lshl_b32 s{S_OO}, s{S_OO}, 15')
    a(f's_lshl1_add_u32 s{S_T0}, s{S_TI}, s{S_RB}')
    a(f's_lshl_b32 s{S_T0}, s{S_T0}, 13')
    a(f's_add_u32 s{S_OO}, s{S_OO}, s{S_T0}')
    a(f's_add_u32 s{S_OO}, s{S_OO}, {WS_W + 32 * TILE}')
    a(f's_add_u32 s{S_T1}, s{S_OO}, 4096')
    for i in range(8):
        a(f's_waitcnt lgkmcnt({14 - 2*i})')
        a(f'buffer_store_dwordx4 {vr(V_RA+4*i,4)}, v{V_L16}, {SW}, s{S_T1 if i >= 4 else S_OO} offen offset:{(i%4)*1024} {st_flags}')
    a(f's_branch {name}_fin')
    a(f'{name}_c4:')
    a(f's_cmp_ge_u32 s3, 232\n s_cbranch_scc1 {name}_c5')
    a(f's_lshl_b32 s{S_T0}, s{S_CB}, 9')
    for i in range(4): a(f'v_add_u32 v{V_AR+i}, s{S_T0}, v{V_AR+i}')
    for i in range(16):
        for o in rd_rows(V_AR)(i >> 1, i & 1, V_RA + 4 * i): a(o)
    a(f's_lshl1_add_u32 s{S_OO}, s{S_TI}, s{S_RB}')
    a(f's_lshl_b32 s{S_OO}, s{S_OO}, 15')
    a(f's_lshl_b32 s{S_T0}, s{S_CB}, 14')
    a(f's_add_u32 s{S_OO}, s{S_OO}, s{S_T0}')
    a(f's_add_u32 s{S_OO}, s{S_OO}, {WS_RL}')
    for i in range(16):
        if i % 4 == 0 and i: a(f's_add_u32 s{S_OO}, s{S_OO}, 4096')
        a(f's_waitcnt lgkmcnt({15 - i})')
        a(f'buffer_store_dwordx4 {vr(V_RA+4*i,4)}, v{V_L16}, {SW}, s{S_OO} offen offset:{(i%4)*1024} {st_flags}')
    a(f's_branch {name}_fin')
    a(f'{name}_c5:')
    for i in range(4): a(f'v_mov_b32 v{V_PK+i}, 0')
    a(f's_sub_u32 s{S_T0}, s3, 232')
    a(f's_lshl_b32 s{S_T0}, s{S_T0}, 12')
    a(f's_lshl_b32 s{S_T1}, s{S_W}, 10')
    a(f's_add_u32 s{S_T0}, s{S_T0}, s{S_T1}')
    a(f's_add_u32 s{S_T0}, s{S_T0}, {WS_FLAG}')
    a(f'buffer_store_dwordx4 {vr(V_PK,4)}, v{V_L16}, {SW}, s{S_T0} offen')
    for i in range(8): a(f'v_lshl_or_b32 v{V_RA+i}, v{V_ACC+2*i+1}, 16, v{V_ACC+2*i}')
    a(f's_lshl_b32 s{S_T0}, s{S_OO}, 10')
    a(f's_add_u32 s{S_T0}, s{S_T0}, {WS_DWT}')
    for h in range(2):
        a(f'buffer_store_dwordx4 {vr(V_RA+4*h,4)}, v{V_L16}, {SW}, s{S_T0} offen offset:{h*1024}')
    a(f'{name}_fin:')
    if delay:
        a(f's_mov_b32 s58, {delay}')
        a(f'{name}_dl:\n s_sub_u32 s58, s58, 1\n s_cmp_lg_u32 s58, 0\n s_cbranch_scc1 {name}_dl')
    if stamp:
        st(5)
        a('s_waitcnt vmcnt(0)')
        st(1); st(7, True)
        a('s_waitcnt lgkmcnt(0)')
        a(f's_lshl2_add_u32 s{S_T1}, s{S_LN}, s{S_W}')
        a(f's_cmp_lg_u32 s{S_T1}, {stw}')
        a(f's_cbranch_scc1 {name}_end')
        a(f's_lshl_b32 s{S_T1}, s2, 6')
        a(f's_add_u32 s{S_T1}, s{S_T1}, {WS_STAMP + 131072}')
        for i in range(16): a(f'v_mov_b32 v{32+i}, s{60+i}')
        a(f'v_mov_b32 v{V_T0}, 0')
        a('s_mov_b64 exec, 1')
        for i in range(4): a(f'buffer_store_dwordx4 {vr(32+4*i,4)}, v{V_T0}, {SW}, s{S_T1} offen offset:{16*i}')
    a(f'{name}_end:')
    a('s_endpgm')
    kernel_desc(a, name, 160, 80, 160)
```

```python
from asmlib import *
from layout import *
from attn2 import LdsQ
from k2 import f2h, VmQ, code_prefetch

V_DK0, V_DK1, V_DV0, V_DV1, V_KA, V_VA, V_L16, V_L0, V_L1, V_MX, V_F0, V_F1, V_T0, V_T1, V_T2 = range(1, 16)
V_S, V_E, V_P, V_NEGM, V_RING = 16, 32, 48, 56, 64
V_PF, V_PFD, V_XO, V_FL = 116, 117, 118, 119
S_X, S_OUTP, S_WS, S_SRD, S_SRX, S_SRO = 4, 6, 40, 8, 12, 16
(S_KOFF, S_VOFF, S_KDMA, S_VDMA, S_VRD, S_CNT, S_W, S_QB, S_SPLIT, S_T0, S_T1, S_VALID, S_GRP, S_W8K, S_PFOFF, S_T2) = range(20, 36)
S_TILE, S_B125, S_T3, S_T4 = 36, 37, 38, 39
S_WB0, S_WB1, S_WB2, S_WB3, S_UCO, S_WCO, S_FLO, S_PO = range(56, 64)
S_PFS, S_PFST, S_PH, S_XCC, S_SLOW, S_PB = 44, 45, 46, 47, 48, 54

def Obase(beta, qh): return 128 + 8 * (beta % 16) + 4 * qh
def Oreg(beta, qh): return vr(Obase(beta, qh), 4) if beta < 16 else ar(Obase(beta, qh), 4)

def gen_attn(a, name, dma_gap=3, dma_cost=2, CAP=2, bar_pos=50, NR=13, LA=10, wait_every=4, THR=0x41800000,
             stamp=False, snake=True, prefetch=2, pf=True, pv_pace=4, pv_budget=6, out_flags='sc1', npf=0, fast_st='nt', flag_at=140, force_slow=True, tailst=False, pfill=False, st_pace=9, ld_pace=2, yc_budget=2, bg_pace=10, tailpf=True, pf_flags='sc1', uc_pace=4, chk_at=60, dbg=(), dbgout=False, spin=None, brgap=3, chain=True, poll_after=8, r_pace=5, chk2_at=0, noyc=False, ld_per_st=0, flag_after=0, rounds=((56, 3), (112, 3))):
    SRD, SRX, SRO = [f's[{b}:{b+3}]' for b in (S_SRD, S_SRX, S_SRO)]
    def st(i, cyc=False):
        if tailst and 10 <= i <= 14: return
        if i >= 20:
            if not tailst: return
            i -= 10
        if stamp: a(f'{"s_memtime" if cyc else "s_memrealtime"} s[{64+2*i}:{65+2*i}]')
    kernel_begin(a, name)
    a(f's_cmp_ge_u32 s2, 256\n s_cbranch_scc1 {name}_end')
    a(f's_load_dwordx2 s[{S_WS}:{S_WS+1}], s[0:1], 88')
    a(f's_load_dwordx2 s[{S_X}:{S_X+1}], s[0:1], 0')
    a(f's_load_dwordx2 s[{S_OUTP}:{S_OUTP+1}], s[0:1], 72')
    st(0)
    if pf: code_prefetch(a, name, f'{name}_end', 13, 255, 42, 256, 0, 65536)
    a(f'v_lshrrev_b32 v{V_T0}, 6, v0')
    a(f'v_and_b32 v0, 63, v0')
    a(f'v_readfirstlane_b32 s{S_W}, v{V_T0}')
    a(f'v_lshlrev_b32 v{V_L16}, 4, v0')
    a(f's_and_b32 s{S_T0}, s2, 7')
    a(f's_lshr_b32 s{S_T1}, s2, 3')
    a(f's_and_b32 s{S_SPLIT}, s{S_T1}, 3')
    a(f's_lshr_b32 s{S_T1}, s{S_T1}, 2')
    a(f's_lshl_b32 s{S_PFOFF}, s{S_T1}, 2')
    a(f's_and_b32 s{S_TILE}, s{S_T0}, 3')
    a(f's_lshl_b32 s{S_TILE}, s{S_TILE}, 3')
    a(f's_add_u32 s{S_TILE}, s{S_TILE}, s{S_T1}')
    a(f's_lshr_b32 s{S_T0}, s{S_T0}, 2')
    a(f's_lshl_b32 s{S_GRP}, s{S_T0}, 5')
    a(f's_add_u32 s{S_GRP}, s{S_GRP}, s{S_TILE}')
    a(f's_mul_i32 s{S_B125}, s{S_T0}, 125')
    ucst = []
    def late_setup():
        a(f's_lshl_b32 s{S_QB}, s{S_TILE}, 2')
        a(f's_add_u32 s{S_QB}, s{S_QB}, s{S_W}')
        a(f's_cmp_lt_u32 s{S_QB}, 125')
        a(f's_cselect_b32 s{S_VALID}, 0, 0x80000000')
        a(f's_min_u32 s{S_QB}, s{S_QB}, 124')
        a(f's_add_u32 s{S_QB}, s{S_QB}, s{S_B125}')
        a(f's_mul_i32 s{S_T1}, s{S_SPLIT}, 31')
        a(f's_cmp_lg_u32 s{S_SPLIT}, 0')
        a(f's_addc_u32 s{S_T1}, s{S_T1}, s{S_B125}')
        a(f's_cmp_lg_u32 s{S_SPLIT}, 0')
        a(f's_cselect_b32 s{S_CNT}, 29, 30')
        a(f's_lshl_b32 s{S_KOFF}, s{S_T1}, 15')
        a(f's_add_u32 s{S_VOFF}, s{S_KOFF}, {WS_VT}')
        if WS_XA: a(f's_add_u32 s{S_KOFF}, s{S_KOFF}, {WS_XA}')
        a(f's_lshl_b32 s{S_W8K}, s{S_W}, 13')
        a(f'v_add_u32 v{V_DK0}, s{S_W8K}, v{V_L16}')
        a(f'v_add_u32 v{V_DK1}, 4096, v{V_DK0}')
        a(f's_add_u32 s{S_T1}, s{S_W}, s{S_SPLIT}')
        a(f's_and_b32 s{S_T1}, s{S_T1}, 3')
        a(f's_lshl_b32 s{S_T1}, s{S_T1}, 13')
        a(f'v_add_u32 v{V_DV0}, s{S_T1}, v{V_L16}')
        a(f'v_add_u32 v{V_DV1}, 4096, v{V_DV0}')
        make_srd(a, S_SRX, S_X, 0, 8192000)
        make_srd(a, S_SRO, S_OUTP, 0, 8192000)
        a(f's_mov_b32 s{S_PFS}, {f2h(1/512)}')
    a('s_waitcnt lgkmcnt(0)')
    make_srd(a, S_SRD, S_WS, 0, WS_SIZE)
    vm = VmQ()
    def emit(o, tag=None):
        a(o)
        if o.startswith('buffer_'): vm.issue(tag)
    def dma_ops(v0, v1, soff, sbase):
        ops = []
        for g in range(2):
            for i in range(4):
                pre = None
                if i == 0:
                    pre = f's_mov_b32 m0, s{sbase}' if g == 0 else f's_add_u32 m0, s{sbase}, 4096'
                ops.append((pre, f'buffer_load_dwordx4 v{v0 if g == 0 else v1}, {SRD}, s{soff} offen offset:{i*1024} lds'))
        return ops
    def emit_dma_now(tag, *args):
        for pre, op in dma_ops(*args):
            if pre: a(pre); a('s_nop 0')
            emit(op, tag)
    def xreduce(regs, op, tmp):
        for sw in ('v_permlane16_swap_b32', 'v_permlane32_swap_b32'):
            for i, r in enumerate(regs): a(f'v_mov_b32 v{tmp+i}, v{r}')
            if len(regs) < 3: a('s_nop 1')
            else: a('s_nop 0')
            for i, r in enumerate(regs): a(f'{sw} v{tmp+i}, v{r}')
            a('s_nop 1')
            for i, r in enumerate(regs): a(f'{op} v{r}, v{r}, v{tmp+i}')

    TB = 3 * TILE; GNB = TB + 2048; GS = 328; CS = 272
    RG, CA_, ST_, SC, UB, B1 = 16, 64, 104, 120, 224, 192
    S_VF = [S_WB0, S_WB1]; S_B6 = [S_WB2, S_WB3]
    a(f's_lshl_b32 s{S_T3}, s{S_SPLIT}, 2')
    a(f's_add_u32 s{S_T3}, s{S_T3}, s{S_W}')
    a(f's_lshl_b32 s{S_T4}, s{S_TILE}, 2')
    a(f's_sub_u32 s{S_T4}, s{S_T4}, 1')
    for rnd in range(2):
        if rnd == 0: a(f's_mov_b32 s{S_B6[0]}, s{S_W}')
        else:
            a(f's_cmp_lt_u32 s{S_W}, 2')
            a(f's_cselect_b32 s{S_T0}, 4, 0')
            a(f's_add_u32 s{S_B6[1]}, s{S_W}, s{S_T0}')
        a(f's_add_u32 s{S_T0}, s{S_T4}, s{S_B6[rnd]}')
        a(f's_cmp_lt_u32 s{S_T0}, 125')
        a(f's_cselect_b32 s{S_VF[rnd]}, 1.0, 0')
        a(f's_cselect_b32 s{S_T0}, s{S_T0}, 0')
        a(f's_add_u32 s{S_T0}, s{S_T0}, s{S_B125}')
        a(f's_lshl_b32 s{S_T0}, s{S_T0}, 11')
        a(f's_add_u32 s{S_T0}, s{S_T0}, {WS_ST}')
        for h in range(2):
            emit(f'buffer_load_dwordx4 {vr(ST_+8*rnd+4*h,4)}, v{V_L16}, {SRD}, s{S_T0} offen offset:{h*1024}', 'st')
    a(f's_lshl_b32 s{S_T2}, s{S_T3}, 11')
    def blk_off(b6, base, dst):
        a(f's_add_u32 s{dst}, s{S_T4}, {b6}')
        a(f's_cmp_lt_u32 s{dst}, 125')
        a(f's_cselect_b32 s{dst}, s{dst}, 0')
        a(f's_add_u32 s{dst}, s{dst}, s{S_B125}')
        a(f's_lshl_b32 s{dst}, s{dst}, 15')
        a(f's_add_u32 s{dst}, s{dst}, s{S_T2}')
    S_BO = [50, 51, 52, 53]
    for b6 in range(6):
        dst = S_BO[b6 - 1] if 1 <= b6 <= 4 else S_T0
        blk_off(b6, WS_G, dst)
        a(f's_add_u32 s{S_T1}, s{dst}, {WS_G}')
        for ch in range(2):
            emit(f'buffer_load_dwordx4 {vr(RG+8*b6+4*ch,4)}, v{V_L16}, {SRD}, s{S_T1} offen offset:{ch*1024}', ('g', b6))
    a(f's_mul_i32 s{S_T0}, s{S_T3}, 10240')
    a(f's_add_u32 s{S_T0}, s{S_T0}, {WS_DWT}')
    for i in range(10):
        if i % 4 == 0 and i: a(f's_add_u32 s{S_T0}, s{S_T0}, 4096')
        emit(f'buffer_load_dwordx4 {vr(CA_+4*i,4)}, v{V_L16}, {SRD}, s{S_T0} offen offset:{(i%4)*1024}', 'dw')
    late_setup()
    bg = []
    for b in range(4):
        bg.append(f's_add_u32 s{S_T1}, s{S_BO[b]}, {WS_U}')
        for th in range(2): bg.append((f'buffer_load_dwordx4 {vr(UB+8*b+4*th,4)}, v{V_L16}, {SRD}, s{S_T1} offen offset:{th*1024}', 'u'))
    def bg_dma(tag, *args):
        for pre, op in dma_ops(*args):
            if pre: bg.append(pre); bg.append('s_nop 0')
            bg.append((op, tag))
    bg.append(f's_mov_b32 s{S_KDMA}, s{S_W8K}')
    bg_dma('K0', V_DK0, V_DK1, S_KOFF, S_KDMA)
    bg.append(f's_lshl_b32 s{S_T1}, s{S_QB}, 15')
    bg.append(f's_add_u32 s{S_T1}, s{S_T1}, {WS_Q}')
    for f in range(32):
        if f % 4 == 0 and f: bg.append(f's_add_u32 s{S_T1}, s{S_T1}, 4096')
        bg.append((f'buffer_load_dwordx4 {ar(4*f,4)}, v{V_L16}, {SRD}, s{S_T1} offen offset:{(f%4)*1024}', ('Q', f)))
    bg += [f's_add_u32 s{S_KOFF}, s{S_KOFF}, {TILE}', f's_add_u32 s{S_KDMA}, s{S_KDMA}, {TILE}']
    bg_dma('K1', V_DK0, V_DK1, S_KOFF, S_KDMA)
    bg += [f's_add_u32 s{S_KOFF}, s{S_KOFF}, {TILE}', f's_add_u32 s{S_VDMA}, s{S_W8K}, {2*TILE}']
    bg_dma('V0', V_DV0, V_DV1, S_VOFF, S_VDMA)
    bgc = [0]
    def bgone():
        while bg:
            o = bg.pop(0)
            if isinstance(o, tuple):
                emit(*o); return
            a(o)
    def c(o, every=bg_pace):
        a(o); bgc[0] += 1
        if bgc[0] % every == 0: bgone()
    for i in range(128): c(f'v_accvgpr_write_b32 a{128+i}, 0', 16)
    for i in range(64): c(f'v_mov_b32 v{128+i}, 0', 16)
    a(f's_mul_i32 s{S_T0}, s{S_W}, {32*GS}')
    a(f's_add_u32 s{S_T0}, s{S_T0}, {GNB}')
    a(f'v_and_b32 v{V_T0}, 15, v0')
    a(f'v_lshrrev_b32 v{V_T1}, 4, v0')
    a(f'v_mul_u32_u24 v{V_F0}, {GS}, v{V_T0}')
    a(f'v_lshl_add_u32 v{V_F0}, v{V_T1}, 3, v{V_F0}')
    a(f'v_add_u32 v{V_F0}, s{S_T0}, v{V_F0}')
    a(f'v_lshlrev_b32 v{V_MX}, 4, v{V_T1}')
    a(f'v_add_u32 v{V_MX}, {TB}, v{V_MX}')
    a(f'v_lshrrev_b32 v{V_T2}, 2, v0')
    a(f'v_and_b32 v{V_T0}, 3, v0')
    a(f'v_mul_u32_u24 v{V_F1}, {GS}, v{V_T2}')
    a(f'v_lshl_add_u32 v{V_F1}, v{V_T0}, 6, v{V_F1}')
    a(f'v_add_u32 v{V_F1}, s{S_T0}, v{V_F1}')
    a(f'v_and_b32 v{V_T2}, 3, v{V_T2}')
    a(f'v_lshl_add_u32 v{V_T2}, v{V_T1}, 3, v{V_T2}')
    a(f'v_mul_u32_u24 v{V_T2}, {CS}, v{V_T2}')
    a(f'v_add_u32 v{V_T2}, s{S_T0}, v{V_T2}')
    a(f'v_lshl_add_u32 v{V_L0}, v{V_T0}, 6, v{V_T2}')
    a(f'v_lshl_add_u32 v{V_L1}, v{V_T0}, 3, v{V_T2}')
    st(10)
    a(f's_waitcnt vmcnt({vm.need("st")})')
    st(11)
    R = [ST_ + 8 * r + i for r in range(2) for i in range(4)]
    for r in range(2):
        for i in range(4): a(f'v_add_f32 v{ST_+8*r+i}, v{ST_+8*r+i}, v{ST_+8*r+4+i}')
    xreduce(R, 'v_add_f32', SC)
    a('s_nop 0')
    for x in R: a(f'v_mov_b32_dpp v{x+4}, v{x} row_ror:8 row_mask:0xf bank_mask:0xf')
    for x in R: a(f'v_mul_f32 v{x}, {f2h(1/512)}, v{x}')
    for i, x in enumerate(R): a(f'v_mul_f32 v{SC+i}, v{x}, v{x}')
    for i, x in enumerate(R): a(f'v_fma_f32 v{x+4}, v{x+4}, s{S_PFS}, -v{SC+i}')
    for x in R: a(f'v_max_f32 v{x+4}, 0, v{x+4}')
    for x in R: a(f'v_add_f32 v{x+4}, {f2h(1e-5)}, v{x+4}')
    for x in R: a(f'v_rsq_f32 v{x+4}, v{x+4}')
    for i, x in enumerate(R): a(f'v_mul_f32 v{x+4}, s{S_VF[i>>2]}, v{x+4}')
    for x in R: a(f'v_mul_f32 v{x}, -v{x}, v{x+4}')
    a('s_mov_b64 exec, 0xff')
    for r in range(2):
        a(f's_lshl_b32 s{S_T0}, s{S_B6[r]}, 8')
        a(f's_add_u32 s{S_T0}, s{S_T0}, {TB}')
        a(f'v_add_u32 v{V_T0}, s{S_T0}, v{V_L16}')
        a(f'ds_write_b128 v{V_T0}, {vr(ST_+8*r+4,4)}')
        a(f'ds_write_b128 v{V_T0}, {vr(ST_+8*r,4)} offset:128')
    a('s_mov_b64 exec, -1')
    a('s_waitcnt lgkmcnt(0)')
    a('s_barrier')
    st(12)
    if stamp: a('s_waitcnt lgkmcnt(0)')
    halves = [(b6, hf) for b6 in range(6) for hf in range(2) if not (b6 == 0 and hf == 0) and not (b6 == 5 and hf == 1)]
    lq = LdsQ()
    def tread(n):
        b6, hf = halves[n]
        t = ST_ + 8 * (n % 2)
        a(f'ds_read_b128 {vr(t,4)}, v{V_MX} offset:{b6*256 + hf*64}'); lq.issue(('t', n))
        a(f'ds_read_b128 {vr(t+4,4)}, v{V_MX} offset:{b6*256 + hf*64 + 128}'); lq.issue(('t', n))
    tread(0)
    for n, (b6, hf) in enumerate(halves):
        if n + 1 < len(halves): tread(n + 1)
        t = ST_ + 8 * (n % 2)
        a(f's_waitcnt vmcnt({vm.need(("g", b6))}) lgkmcnt({lq.need(("t", n))})')
        for ch in range(2):
            for i in range(2):
                r = RG + 8 * b6 + 4 * ch + 2 * hf + i
                c(f'v_lshlrev_b32 v{SC+4*ch+2*i}, 16, v{r}')
                c(f'v_and_b32 v{SC+4*ch+2*i+1}, 0xffff0000, v{r}')
        for ch in range(2):
            for i in range(2):
                c(f'v_pk_fma_f32 {vr(SC+4*ch+2*i,2)}, {vr(SC+4*ch+2*i,2)}, {vr(t+2*i,2)}, {vr(t+4+2*i,2)}')
        for ch in range(2):
            r = RG + 8 * b6 + 4 * ch + 2 * hf
            for i in range(2): c(f'v_cvt_pk_bf16_f32 v{r+i}, v{SC+4*ch+2*i}, v{SC+4*ch+2*i+1}')
            a(f'ds_write_b64 v{V_F0}, {vr(r,2)} offset:{ch*16*GS + (8*b6 - 4 + 4*hf)*8}'); lq.issue('w')
    st(13)
    if stamp: a('s_waitcnt lgkmcnt(0)')
    BR = [B1, 16]; AC = [48, 104]
    def acc(ch, aa): return (48 + 4 * aa) if aa < 4 else (104 + 4 * (aa - 4))
    for ch in range(2):
        for e in range(16):
            a(f'ds_read_b64 {vr(BR[ch]+2*e,2)}, v{V_F1} offset:{ch*16*GS + e*8}'); lq.issue(('b', ch, e))
    a(f's_waitcnt vmcnt({vm.need("dw")})')
    PKc = 120
    for ch in range(2):
        for dl in range(9):
            a(f's_waitcnt lgkmcnt({min(15, lq.need(("b", ch, dl + 7)))})')
            for aa in range(8):
                d = vr(acc(ch, aa), 4)
                c(f'v_mfma_f32_4x4x4_16b_bf16 {d}, {vr(CA_+20*ch+2*dl,2)}, {vr(BR[ch]+2*(aa+dl),2)}, {d if dl else 0}', bg_pace // 2)
        if ch == 0: a('s_waitcnt lgkmcnt(0)')
        a('s_nop 3')
        for p in range(4):
            pk = PKc + 4 * (p & 1)
            for k in range(2):
                b = acc(ch, 2 * p + k)
                c(f'v_cvt_pk_bf16_f32 v{pk+2*k}, v{b}, v{b+1}')
                c(f'v_cvt_pk_bf16_f32 v{pk+2*k+1}, v{b+2}, v{b+3}')
            a(f'ds_write_b128 v{V_L0}, {vr(pk,4)} offset:{ch*4*CS + 16*p}'); lq.issue('cw')
    st(14)
    if stamp: a('s_waitcnt lgkmcnt(0)')
    TRD = 16
    for fr in range(8):
        for jj in range(2):
            a(f'ds_read_b64_tr_b16 {vr(TRD+4*fr+2*jj,2)}, v{V_L1} offset:{jj*4*CS + fr*32}'); lq.issue(('tr', fr))
    a(f's_lshl_b32 s{S_PO}, s{S_GRP}, 17')
    a(f's_add_u32 s{S_PO}, s{S_PO}, s{S_T2}')
    a(f's_add_u32 s{S_PO}, s{S_PO}, {WS_UC}')
    a(f's_waitcnt vmcnt({min(63, vm.need("u"))})')
    for fr in range(8):
        cc = TRD + 4 * fr; ub = 64 + 16 * (fr & 1); u = UB + 4 * fr
        a(f's_waitcnt lgkmcnt({lq.need(("tr", fr))})')
        for i in range(4):
            c(f'v_lshlrev_b32 v{ub+2*i}, 16, v{cc+i}')
            c(f'v_and_b32 v{ub+2*i+1}, 0xffff0000, v{cc+i}')
        for i in range(4):
            c(f'v_lshlrev_b32 v{ub+8+2*i}, 16, v{u+i}')
            c(f'v_and_b32 v{ub+8+2*i+1}, 0xffff0000, v{u+i}')
        for i in range(4): c(f'v_pk_mul_f32 {vr(ub+2*i,2)}, {vr(ub+2*i,2)}, {vr(ub+8+2*i,2)}')
        for i in range(4): c(f'v_cvt_pk_bf16_f32 v{u+i}, v{ub+2*i}, v{ub+2*i+1}')
        ucst.append((f'buffer_store_dwordx4 {vr(u,4)}, v{V_L16}, {SRD}, s{S_PO} offen offset:{(fr&1)*1024} sc1', fr))
    while bg: bgone()
    for op, fr in ucst:
        if fr % 2 == 0 and fr: a(f's_add_u32 s{S_PO}, s{S_PO}, {TILE}')
        emit(op, 'ucs')
    a(f's_add_u32 s{S_VOFF}, s{S_VOFF}, {TILE}')
    a(f's_add_u32 s{S_VDMA}, s{S_VDMA}, {TILE}')
    a(f's_mov_b32 s{S_KDMA}, s{S_W8K}')
    a(f's_mov_b32 s{S_VRD}, {2*TILE}')
    st(1)
    if prefetch:
        a(f's_add_u32 s{S_PFOFF}, s{S_PFOFF}, s{S_W}')
        a(f's_and_b32 s{S_T1}, s{S_PFOFF}, 15')
        a(f's_lshl_b32 s{S_T1}, s{S_T1}, 11')
        a(f's_cmp_ge_u32 s{S_PFOFF}, 16')
        a(f's_cselect_b32 s{S_PFOFF}, {WS_VT - WS_XA - TILE}, 0')
        a(f's_add_u32 s{S_T1}, s{S_T1}, s{S_PFOFF}')
        a(f's_add_u32 s{S_T1}, s{S_T1}, {prefetch * TILE}')
        a(f'v_lshlrev_b32 v{V_PF}, 5, v0')
        a(f'v_add_u32 v{V_PF}, s{S_T1}, v{V_PF}')
    a(f'v_and_b32 v{V_T0}, 15, v0')
    a(f'v_lshrrev_b32 v{V_T1}, 4, v0')
    a(f'v_lshlrev_b32 v{V_T2}, 4, v{V_T1}')
    a(f'v_lshl_add_u32 v{V_XO}, v{V_T0}, 10, v{V_T2}')
    a(f'v_mov_b32 v{V_KA}, v{V_L16}')
    a(f'v_add_u32 v{V_VA}, s{S_VRD}, v{V_L16}')
    a(f'v_mov_b32 v{V_L0}, 0')
    a(f'v_mov_b32 v{V_L1}, 0')
    nround = -(-64 // NR)
    sizes = [64 // nround + (1 if i < 64 % nround else 0) for i in range(nround)]
    slotmap = [i for sz in sizes for i in range(sz)]
    assert LA + 1 <= min(sizes) and max(sizes) <= NR and V_RING + 4 * NR <= V_PF
    def slot(f): return V_RING + 4 * slotmap[f % 64]
    def rd(f):
        if f < 32 and chain: return f'ds_read_b128 {vr(slot(f),4)}, v{V_KA} offset:{((f & 15)*2 + (f >> 4))*1024}'
        if f < 32: return f'ds_read_b128 {vr(slot(f),4)}, v{V_KA} offset:{f*1024}'
        return f'ds_read_b128 {vr(slot(f),4)}, v{V_VA} offset:{(f-32)*1024}'
    def Sreg(kh, qh): return V_S + (kh * 2 + qh) * 4
    def mfmas(f, zero_c=False):
        order = (1, 0) if (snake and (f & 1)) else (0, 1)
        out = []
        if chain and f < 32:
            kh = f >> 4; s0 = f & 14; qh = (f & 1) ^ ((f >> 1) & 1); fb = f & ~1
            for k in range(2):
                s = s0 + k
                c = vr(Sreg(kh, qh), 4) if s else ('0' if zero_c else vr(V_NEGM + 4 * qh, 4))
                out.append(f'v_mfma_f32_16x16x32_bf16 {vr(Sreg(kh,qh),4)}, {vr(slot(fb+k),4)}, {ar((s*2+qh)*4,4)}, {c}')
            return out
        for qh in order:
            if f < 32:
                s, kh = f >> 1, f & 1
                c = vr(Sreg(kh, qh), 4) if s else ('0' if zero_c else vr(V_NEGM + 4 * qh, 4))
                out.append(f'v_mfma_f32_16x16x32_bf16 {vr(Sreg(kh,qh),4)}, {vr(slot(f),4)}, {ar((s*2+qh)*4,4)}, {c}')
            else:
                b = f - 32
                out.append(f'v_mfma_f32_16x16x32_bf16 {Oreg(b,qh)}, {vr(slot(f),4)}, {vr(V_P+4*qh,4)}, {Oreg(b,qh)}')
        return out
    a(f's_waitcnt vmcnt({vm.need(("Q", 31))})')
    a('s_barrier')
    q = LdsQ()
    zero = [f'v_mov_b32 v{192+i}, 0' for i in range(64)]
    for f in range(LA):
        a(rd(f)); q.issue(f)
    for f in range(32):
        a(f's_waitcnt lgkmcnt({q.need(f | 1)})')
        for m in mfmas(f, zero_c=True):
            a(m)
            if zero: a(zero.pop(0))
        if f + LA < 32:
            a(rd(f + LA)); q.issue(f + LA)
    a('s_nop 7')
    def max_all():
        ops = [f'v_max3_f32 v{V_MX}, v{V_S}, v{V_S+1}, v{V_S+2}']
        for i in range(6): ops.append(f'v_max3_f32 v{V_MX}, v{V_MX}, v{V_S+3+2*i}, v{V_S+4+2*i}')
        ops.append(f'v_max_f32 v{V_MX}, v{V_MX}, v{V_S+15}')
        return ops
    def rowmax2(d0, d1, tmp):
        for qh, dst in ((0, d0), (1, d1)):
            r0, r1 = Sreg(0, qh), Sreg(1, qh)
            a(f'v_max3_f32 v{dst}, v{r0}, v{r0+1}, v{r0+2}')
            a(f'v_max3_f32 v{dst}, v{dst}, v{r0+3}, v{r1}')
            a(f'v_max3_f32 v{dst}, v{dst}, v{r1+1}, v{r1+2}')
            a(f'v_max_f32 v{dst}, v{dst}, v{r1+3}')
        xreduce([d0, d1], 'v_max_f32', tmp)
    exp_ops = [f'v_exp_f32 v{V_E+i}, v{V_S+i}' for i in range(16)]
    sum_ops = [f'v_add_f32 v{V_L1 if (i >> 2) & 1 else V_L0}, v{V_L1 if (i >> 2) & 1 else V_L0}, v{V_E+i}' for i in range(16)]
    cvt_ops = []
    for qh in range(2):
        for kh in range(2):
            e = V_E + (kh * 2 + qh) * 4
            for i in range(2):
                cvt_ops.append(f'v_cvt_pk_bf16_f32 v{V_P+4*qh+2*kh+i}, v{e+2*i}, v{e+2*i+1}')
    rowmax2(V_F0, V_F1, 120)
    for qh, dst in ((0, V_F0), (1, V_F1)):
        for kh in range(2):
            for i in range(4): a(f'v_sub_f32 v{Sreg(kh,qh)+i}, v{Sreg(kh,qh)+i}, v{dst}')
        for i in range(4): a(f'v_sub_f32 v{V_NEGM+4*qh+i}, 0, v{dst}')
    for o in exp_ops: a(o)
    for o in zero: a(o)
    a(f'v_xor_b32 v{V_KA}, 0x8000, v{V_KA}')
    a(f's_getreg_b32 s{S_XCC}, hwreg(HW_REG_XCC_ID, 0, 4)')
    a(f's_add_u32 s{S_XCC}, s{S_XCC}, 1')
    a(f's_lshl_b32 s{S_FLO}, s{S_GRP}, 9')
    a(f's_add_u32 s{S_FLO}, s{S_FLO}, {WS_FLAG}')
    a(f'v_and_b32 v{V_FL}, 3, v0')
    a(f'v_lshlrev_b32 v{V_FL}, 7, v{V_FL}')
    a('s_waitcnt vmcnt(0)')
    a('s_barrier')
    def flag_store(off):
        lab = a.label(name + '_fs')
        a(f's_cmp_lg_u32 s{S_W}, 0')
        a(f's_cbranch_scc1 {lab}')
        a(f's_lshl_b32 s{S_T3}, s{S_SPLIT}, 7')
        a(f's_add_u32 s{S_T3}, s{S_T3}, s{S_FLO}')
        a(f'v_mov_b32 v{V_T0}, 0\n v_mov_b32 v{V_T1}, s{S_XCC}')
        a('s_mov_b64 exec, 1')
        a(f'buffer_store_dword v{V_T1}, v{V_T0}, {SRD}, s{S_T3} offen offset:{off} sc1')
        a('s_mov_b64 exec, -1')
        a(f'{lab}:')
    flag_store(0)
    st(2); st(8, True)
    if stamp: a('s_waitcnt lgkmcnt(0)')
    q = LdsQ()
    for f in range(LA):
        a(rd(f)); q.issue(f)

    L_loop = f'{name}_loop'
    rare = []
    border = list(range(8, 32)) + list(range(8))
    YB = 192
    stream = [('pv', b) for b in border] + [('yc', T, f) for T in range(4) for f in range(32)]
    NS = len(stream)
    WA = [V_VA, V_DV0, V_DV1, V_PF]
    def srd_(i):
        it = stream[i]
        if it[0] == 'pv': return f'ds_read_b128 {vr(slot(i),4)}, v{V_KA} offset:{it[1]*1024}'
        if chain and it[1]: return f'ds_read_b128 {vr(slot(i),4)}, v{WA[it[1]]} offset:{((it[2] & 15)*2 + (it[2] >> 4))*1024}'
        return f'ds_read_b128 {vr(slot(i),4)}, v{WA[it[1]]} offset:{it[2]*1024}'
    def ucload(f):
        ops = []
        if f % 4 == 0 and f: ops.append(f's_add_u32 s{S_UCO}, s{S_UCO}, 4096')
        ops.append((f'buffer_load_dwordx4 {ar(4*f,4)}, v{V_L16}, {SRD}, s{S_UCO} offen offset:{(f%4)*1024} sc1', ('uc', f)))
        return ops
    stubs = []
    class Dual:
        def __init__(self, op, tag, fast): self.op, self.tag, self.fast = op, tag, fast
    def em(o):
        if isinstance(o, Dual) and force_slow:
            emit(f'{o.op} sc1', o.tag); return
        if isinstance(o, Dual):
            lab = a.label(name + '_ds')
            a(f's_cbranch_vccnz {lab}')
            emit(f'{o.op} {o.fast}', o.tag)
            a(f'{lab}b:')
            stubs.append((lab, o.op))
            return
        if callable(o): o = o()
        if noyc and isinstance(o, tuple) and ((o[1] == 'x' and 'x' in noyc) or (isinstance(o[1], tuple) and o[1][0] in ('uc', 'wc') and o[1][0] in noyc)):
            vm.last[o[1]] = vm.last.get('dL', 0); return
        if isinstance(o, tuple): emit(*o)
        else: emit(o)
    nuc = [0]
    def body(last):
        tag = 'L' if last else 'M'
        L_r1, L_r1b, L_r2, L_r2b = [f'{name}_{x}{tag}' for x in ('r1', 'r1b', 'r2', 'r2b')]
        rare.append((L_r1, L_r1b, L_r2, L_r2b))
        fill = [[] for _ in range(128)]
        cap = [CAP - 1 if p % 2 == 0 else CAP for p in range(128)]
        for p in range(128):
            if p % 2 == 1 and ((p + 1) // 2) % wait_every == 0: cap[p] -= 1
        cap[127] -= 3
        def put(pos, ops, cost):
            if not isinstance(ops, list): ops = [ops]
            while cap[pos] < cost: pos += 1
            cap[pos] -= cost
            fill[pos] += ops
            return pos
        if not last: bw = f's_waitcnt vmcnt({1 if prefetch else 0})'
        else: bw = lambda: f's_waitcnt vmcnt({vm.need("dL")})'
        pb = put(2 * bar_pos + 1, [bw] + ([] if 'nobar' in dbg and not last else ['s_barrier']), 2)
        assert pb < 2 * (64 - LA)
        dk, dv = dma_ops(V_DK0, V_DK1, S_WCO if last else S_KOFF, S_KDMA), dma_ops(V_DV0, V_DV1, S_VOFF, S_VDMA)
        dm = dv + dk if last else dk + dv
        p = 0
        if last and not tailpf:
            p = put(p, (f'buffer_load_dword v{V_PFD}, v{V_FL}, {SRD}, s{S_FLO} offen sc1', 'poll'), dma_cost) + 1
            for c in range(npf, 3 if pfill else 0):
                p = put(p, f'buffer_load_dword v{V_T0}, v{V_PF}, {SRD}, s{S_PFS} offen', dma_cost) + 1
                p = put(p, f's_add_u32 s{S_PFS}, s{S_PFS}, 8192', 1) + 1
            if pfill: p = put(p, f'buffer_load_dword v{V_T0}, v{V_L16}, {SRD}, s{S_PFS} offen', dma_cost) + 1
        for pre, op in dm:
            if pre: p = put(p, pre, 1) + 1
            p = put(p, (op, 'dL'), dma_cost) + dma_gap
        if prefetch and not last:
            p = put(p, f'buffer_load_dword v{V_PFD}, v{V_PF}, s[96:99], s{S_PFS} offen {pf_flags}', dma_cost) + 1
        pdma = p
        assert pdma <= pb
        if last and not tailpf:
            p = put(56, [lambda: f's_waitcnt vmcnt({vm.need("poll")})', f'v_cmp_eq_u32 s[{S_T3}:{S_T3+1}], 0, v{V_PFD}'], 2) + 2
            p = put(p, [f's_cmp_eq_u64 s[{S_T3}:{S_T3+1}], 0', f's_cbranch_scc0 {name}_cfslow', f'{name}_cfok:'], 2) + 1
            p = put(p, f'v_cmp_ne_u32 s[{S_SLOW}:{S_SLOW+1}], s{S_XCC}, v{V_PFD}', 1) + 1
            assert p <= pdma + 4
        p = 68
        for o in max_all(): p = put(p, o, 1)
        p = put(p, f'v_cmp_lt_f32 vcc, {hex(THR)}, v{V_MX}', 1) + 1
        p = put(p + brgap, ([] if 'nobr1' in dbg else [f's_cbranch_vccnz {L_r1}']) + [f'{L_r1b}:'], 1) + 1
        for i, o in enumerate(exp_ops):
            if 'noexp' not in dbg: p = put(p, o, 2)
        p = 0
        for o in cvt_ops: p = put(p, o, 1)
        for o in sum_ops: p = put(p, o, 1)
        assert p < 60
        upd = [f's_add_u32 s{S_KOFF}, s{S_KOFF}, {TILE}', f's_add_u32 s{S_PFS}, s{S_PFS}, s{S_PFST}',
               f's_add_u32 s{S_VOFF}, s{S_VOFF}, {TILE}',
               f's_xor_b32 s{S_KDMA}, s{S_KDMA}, {TILE}',
               f's_add_u32 s{S_VDMA}, s{S_VDMA}, {TILE}',
               f's_cmp_ge_u32 s{S_VDMA}, {5*TILE}', f's_cselect_b32 s{S_T1}, {3*TILE}, 0',
               f's_sub_u32 s{S_VDMA}, s{S_VDMA}, s{S_T1}',
               f's_add_u32 s{S_VRD}, s{S_VRD}, {TILE}',
               f's_cmp_ge_u32 s{S_VRD}, {5*TILE}', f's_cselect_b32 s{S_VRD}, {2*TILE}, s{S_VRD}',
               f's_sub_u32 s{S_CNT}, s{S_CNT}, 1']
        if not last:
            p = pdma
            for o in upd: p = put(p, o, 1)
            put(2 * (32 - LA) + 1, f'v_xor_b32 v{V_KA}, 0x8000, v{V_KA}', 1)
            put(max(p + 1, 2 * (64 - LA) + 1), f'v_add_u32 v{V_VA}, s{S_VRD}, v{V_L16}', 1)
        else:
            p = 2 * (32 - LA) + 1
            for o in [f's_sub_u32 s{S_KOFF}, s{S_VDMA}, s{S_W8K}', f'v_add_u32 v{V_KA}, s{S_KOFF}, v{V_L16}',
                      f's_sub_u32 s{S_WB0}, s{S_KDMA}, s{S_W8K}', f's_xor_b32 s{S_WB1}, s{S_WB0}, {TILE}', f's_mov_b32 s{S_WB3}, s{S_VRD}',
                      f's_add_u32 s{S_WB2}, s{S_WB3}, s{S_KOFF}', f's_sub_u32 s{S_WB2}, {9*TILE}, s{S_WB2}']:
                p = put(p, o, 1) + 1
            p = max(pdma, 66)
            while p < 127 and nuc[0] < 32:
                fill[p] += ucload(nuc[0]); nuc[0] += 1
                p += uc_pace
        for f in range(64):
            if f % wait_every == 0:
                a(f's_waitcnt lgkmcnt({q.need(min(f + wait_every - 1, 63))})')
            mm = mfmas(f)
            a(mm[0])
            nf = f + LA
            if nf < 64 or not last:
                a(rd(nf % 64)); q.issue(nf % 64)
            else:
                a(srd_(nf - 64)); q.issue(('s', nf - 64))
            for o in fill[2 * f]: em(o)
            a(mm[1])
            for o in fill[2 * f + 1]: em(o)
        if 'nobr2' not in dbg: a(f's_cbranch_vccnz {L_r2}')
        a(f'{L_r2b}:')
    a(f's_lshl_b32 s{S_WCO}, s{S_SPLIT}, 17')
    a(f's_add_u32 s{S_WCO}, s{S_WCO}, {WS_WC}')
    a(f's_lshl_b32 s{S_UCO}, s{S_GRP}, 2')
    a(f's_add_u32 s{S_UCO}, s{S_UCO}, s{S_W}')
    a(f's_lshl_b32 s{S_UCO}, s{S_UCO}, 15')
    a(f's_add_u32 s{S_UCO}, s{S_UCO}, {WS_UC}')
    a(f's_mov_b32 s{S_PFS}, s{S_KOFF}')
    a(f's_mov_b32 s{S_PFST}, {TILE}')
    a(f's_mov_b32 s{S_PH}, 0')
    NPH = 4 if tailpf else 0
    a(f's_sub_u32 s{S_CNT}, s{S_CNT}, {NPH}')
    make_srd(a, 96, S_WS, 0, WS_SIZE)
    a(f's_lshl_b32 s{S_PB}, s{S_GRP}, 2')
    a(f's_add_u32 s{S_PB}, s{S_PB}, s{S_SPLIT}')
    a(f's_lshl_b32 s{S_PB}, s{S_PB}, 2')
    a(f's_add_u32 s{S_PB}, s{S_PB}, s{S_W}')
    a(f's_lshl_b32 s{S_PB}, s{S_PB}, 15')
    a(f's_add_u32 s{S_PB}, s{S_PB}, {WS_PART}')
    a('.p2align 6')
    a(f'{L_loop}:')
    body(False)
    a(f's_cmp_lg_u32 s{S_CNT}, 0')
    a(f's_cbranch_scc1 {L_loop}')
    if tailpf:
        a(f's_add_u32 s{S_PH}, s{S_PH}, 1')
        a(f's_mov_b32 s{S_CNT}, 1')
        a(f's_cmp_eq_u32 s{S_PH}, 5\n s_cbranch_scc1 {name}_ph5')
        a(f's_cmp_eq_u32 s{S_PH}, 4\n s_cbranch_scc1 {name}_ph4')
        a(f's_cmp_eq_u32 s{S_PH}, 3\n s_cbranch_scc1 {name}_ph3')
        a(f's_cmp_eq_u32 s{S_PH}, 2\n s_cbranch_scc1 {name}_ph2')
        a(f's_mov_b32 s96, s{S_X}\n s_mov_b32 s97, s{S_X+1}\n s_mov_b32 s98, 8192000')
        a(f'v_lshrrev_b32 v{V_PF}, 1, v0')
        a(f'v_lshlrev_b32 v{V_PF}, 10, v{V_PF}')
        a(f'v_and_b32 v{V_T0}, 1, v0')
        a(f'v_lshl_add_u32 v{V_PF}, v{V_T0}, 7, v{V_PF}')
        a(f's_lshl_b32 s{S_PFS}, s{S_QB}, 15')
        a(f's_lshl_b32 s{S_T1}, s{S_SPLIT}, 8')
        a(f's_add_u32 s{S_PFS}, s{S_PFS}, s{S_T1}')
        a(f's_branch {L_loop}')
        a(f'{name}_ph2:')
        a(f's_mov_b32 s96, s{S_WS}\n s_mov_b32 s97, s{S_WS+1}\n s_mov_b32 s98, {WS_SIZE}')
        a(f'v_mov_b32 v{V_PF}, v{V_FL}')
        a(f's_mov_b32 s{S_PFS}, s{S_FLO}')
        a(f's_branch {L_loop}')
        a(f'{name}_ph3:')
        a('s_waitcnt vmcnt(0)')
        a(f'v_cmp_eq_u32 s[{S_T3}:{S_T3+1}], 0, v{V_PFD}')
        a(f'v_lshlrev_b32 v{V_PF}, 7, v0')
        a(f's_lshl_b32 s{S_PFS}, s{S_SPLIT}, 13')
        a(f's_add_u32 s{S_PFS}, s{S_PFS}, s{S_UCO}')
        a('s_nop 1')
        a(f's_cmp_eq_u64 s[{S_T3}:{S_T3+1}], 0')
        a(f's_cbranch_scc0 {name}_cfslow')
        a(f'{name}_cfok:')
        a(f's_branch {L_loop}')
        a(f'{name}_ph4:')
        a(f'v_lshlrev_b32 v{V_PF}, 6, v0')
        a(f's_and_b32 s{S_PFS}, s{S_TILE}, 7')
        a(f's_lshl_b32 s{S_PFS}, s{S_PFS}, 2')
        a(f's_add_u32 s{S_PFS}, s{S_PFS}, s{S_W}')
        a(f's_lshl_b32 s{S_PFS}, s{S_PFS}, 12')
        a(f's_add_u32 s{S_PFS}, s{S_PFS}, s{S_WCO}')
        a(f's_branch {L_loop}')
        a(f'{name}_ph5:')
    st(3); st(9, True)
    if stamp: a('s_waitcnt lgkmcnt(0)')
    body(True)
    st(15)
    if stamp: a('s_waitcnt lgkmcnt(0)')
    def smf(i):
        it = stream[i]; out = []
        if chain and it[0] == 'yc' and it[1]:
            T, f = it[1], it[2]; ch = f >> 4; qh = (f & 1) ^ ((f >> 1) & 1)
            d = vr(YB + 8 * (2 * T + ch) + 4 * qh, 4)
            for k in range(2):
                s = (f & 14) + k
                out.append(f'v_mfma_f32_16x16x32_bf16 {d}, {vr(slot((i & ~1) + k),4)}, {ar((s*2+qh)*4,4)}, {d if s else 0}')
            return out
        for qh in ((1, 0) if (snake and (i & 1)) else (0, 1)):
            if it[0] == 'pv':
                out.append(f'v_mfma_f32_16x16x32_bf16 {Oreg(it[1],qh)}, {vr(slot(i),4)}, {vr(V_P+4*qh,4)}, {Oreg(it[1],qh)}')
            else:
                T, f = it[1], it[2]; s, ch = f >> 1, f & 1
                d = vr(YB + 8 * (2 * T + ch) + 4 * qh, 4)
                out.append(f'v_mfma_f32_16x16x32_bf16 {d}, {vr(slot(i),4)}, {ar((s*2+qh)*4,4)}, {d if s else 0}')
        return out
    a(f's_mov_b64 vcc, s[{S_SLOW}:{S_SLOW+1}]' if not force_slow else 's_mov_b64 vcc, -1')
    for o in cvt_ops: a(o)
    a(f's_lshl_b32 s{S_T0}, s{S_GRP}, 2')
    a(f'v_add_u32 v{WA[0]}, s{S_WB0}, v{V_L16}')
    pend = [(0, o, 1) for o in sum_ops]
    for i, sb in enumerate((S_WB1, S_WB2, S_WB3)): pend.append((0, f'v_add_u32 v{WA[i+1]}, s{sb}, v{V_L16}', 1))
    rot = 0
    for qd in range(1, 4):
        hdr = [f's_add_u32 s{S_PO}, s{S_PB}, {(qd-1)*8192}']
        for gm in range(4):
            for qh in range(2):
                b0 = 8 * qd + 2 * gm
                ready = 2 * (border.index(b0 + 1) + 1) + 6
                idx = gm * 2 + qh
                if idx == 0:
                    for h in hdr: pend.append((0, h, 1))
                if idx == 4: pend.append((ready, f's_add_u32 s{S_PO}, s{S_PO}, 4096', 1))
                tb = V_S + 8 * (rot % 2); pk = V_E + 4 * (rot % 4); rot += 1
                srcs = []
                for b in range(2):
                    for r in range(4):
                        o = Obase(b0 + b, qh) + r
                        if qd == 1: srcs.append(o)
                        else:
                            pend.append((ready, f'v_accvgpr_read_b32 v{tb+4*b+r}, a{o}', 1)); srcs.append(tb + 4 * b + r)
                for r in range(4): pend.append((ready, f'v_cvt_pk_bf16_f32 v{pk+r}, v{srcs[2*r]}, v{srcs[2*r+1]}', 1))
                pend.append((ready, Dual(f'buffer_store_dwordx4 {vr(pk,4)}, v{V_L16}, {SRD}, s{S_PO} offen offset:{(idx%4)*1024}', 'part', fast_st), 2))
    def stats_block():
        xreduce([V_L0, V_L1], 'v_add_f32', 124)
        a(f'v_mov_b32 v120, v{V_L0}')
        a(f'v_sub_f32 v121, 0, v{V_NEGM}')
        a(f'v_mov_b32 v122, v{V_L1}')
        a(f'v_sub_f32 v123, 0, v{V_NEGM+4}')
        a(f's_add_u32 s{S_T1}, s{S_PB}, {3*8192}')
        em(Dual(f'buffer_store_dwordx4 v[120:123], v{V_L16}, {SRD}, s{S_T1} offen', 'part', fast_st))
    XV = V_P
    def x_setup():
        a(f'v_lshrrev_b32 v{V_T0}, 4, v0')
        a(f'v_and_b32 v{V_T1}, 15, v0')
        a(f'v_xor_b32 v{V_T2}, v{V_T0}, v{V_T1}')
        a(f'v_lshlrev_b32 v{V_T2}, 4, v{V_T2}')
        a(f'v_lshl_add_u32 v{XV}, v{V_T0}, 10, v{V_T2}')
        for i in range(1, 4): a(f'v_xor_b32 v{XV+i}, {i*64}, v{XV}')
        a(f's_add_u32 s{S_KOFF}, s{S_KOFF}, s{S_W8K}')
        a(f'v_lshl_add_u32 v{XV+4}, v{V_T1}, 8, v{V_T2}')
        a(f'v_add_u32 v{XV+4}, s{S_KOFF}, v{XV+4}')
        for i in range(1, 4): a(f'v_xor_b32 v{XV+4+i}, {i*64}, v{XV+4}')
        a(f'v_add_u32 v{V_XO}, s{S_KOFF}, v{V_L16}')
        a(f's_lshl_b32 s{S_T4}, s{S_QB}, 15')
        a(f's_lshl_b32 s{S_T1}, s{S_SPLIT}, 8')
        a(f's_add_u32 s{S_T4}, s{S_T4}, s{S_T1}')
    def wc_dma(T):
        out = []
        first = [f's_add_u32 s{S_WCO}, s{S_WCO}, {TILE}', f's_add_u32 s{S_T2}, s{(S_WB0, S_WB1, S_WB2, S_WB3)[T]}, s{S_W8K}']
        for pre, op in dma_ops(V_DK0, V_DK1, S_WCO, S_T2):
            g = first; first = []
            if pre: g += [pre, 's_nop 0']
            out.append(g + [(op, ('wc', T))])
        return out
    dq = [ucload(f) for f in range(nuc[0], 32)]
    def xdma():
        return [[f's_add_u32 m0, s{S_KOFF}, {k*1024}', f's_add_u32 s{S_T1}, s{S_T4}, {k*4096}',
                 (f'buffer_load_dwordx4 v{XV+(k&3)}, {SRX}, s{S_T1} offen lds', 'x')] for k in range(8)]
    def pop():
        _, op, c = pend.pop(0); em(op)
        if isinstance(op, Dual):
            for _ in range(ld_per_st):
                if dq:
                    for o in dq.pop(0): em(o)
        return c
    lim = [64]
    def run(i0, i1, every=0):
        for i in range(i0, i1):
            it = stream[i]; w = []
            if it[0] == 'yc' and it[1] == 0 and it[2] % 2 == 0: w.append(f'vmcnt({min(63, vm.need(("uc", it[2] | 1)))})')
            if i % 2 == 0: w.append(f'lgkmcnt({q.need(("s", min(i + 1, NS - 1)))})')
            if w: a('s_waitcnt ' + ' '.join(w))
            mm = smf(i)
            for h in range(2):
                pos = 2 * i + h
                a(mm[h])
                budget = pv_budget
                if h == 0 and i + LA < NS:
                    nx = stream[i + LA]
                    if nx[0] == 'yc' and nx[2] == 0 and nx[1] in (1, 2):
                        a(f's_waitcnt vmcnt({min(63, vm.need(("wc", 1 if nx[1] == 1 else 3)))})')
                        a('s_barrier')
                    a(srd_(i + LA)); q.issue(('s', i + LA)); budget -= 1
                while pend and pend[0][0] <= pos and budget > 0: budget -= pop()
                if every and dq and pos % every == 1:
                    for o in dq.pop(0): em(o)
    run(0, 32)
    a('s_barrier')
    x_setup()
    while pend: pop()
    stats_block()
    dq += wc_dma(1) + wc_dma(2) + wc_dma(3)
    while len(dq) > 24 - flag_after:
        for o in dq.pop(0): em(o)
    st(4)
    a(f's_lshl_b32 s{S_T3}, s{S_SPLIT}, 7')
    a(f's_add_u32 s{S_T3}, s{S_T3}, s{S_FLO}')
    a(f's_lshl_b32 s{S_PH}, s{S_W}, 2')
    a(f's_add_u32 s{S_FLO}, s{S_FLO}, s{S_PH}')
    a(f's_add_u32 s{S_T3}, s{S_T3}, s{S_PH}')
    a(f'v_mov_b32 v{V_T0}, 0\n v_mov_b32 v{V_T1}, 1')
    a(f's_lshl_b32 s{S_CNT}, 1, s{S_SPLIT}')
    a('s_mov_b64 exec, 1')
    a(f's_waitcnt vmcnt({vm.need("part")})')
    em(Dual(f'buffer_store_dword v{V_T1}, v{V_T0}, {SRD}, s{S_T3} offen offset:4', None, ''))
    a('s_mov_b64 exec, -1')
    st(5)
    if stamp: a('s_waitcnt lgkmcnt(0)')
    poll = f'buffer_load_dword v{V_PFD}, v{V_FL}, {SRD}, s{S_FLO} offen offset:4 sc1'
    dq.insert(min(poll_after, len(dq)), [(poll, 'poll')])
    STR = [56, 60, 124]
    def getmask(w):
        a(f's_waitcnt vmcnt({w})')
        a(f'v_cmp_eq_u32 vcc, 1, v{V_PFD}')
        a('s_nop 3')
        a(f's_and_b32 s{S_PFS}, vcc_lo, 15')
        a(f's_andn2_b32 s{S_PFS}, s{S_PFS}, s{S_CNT}')
        a(f's_or_b32 s{S_CNT}, s{S_CNT}, s{S_PFS}')
    def slot_hdr(k):
        return [f's_sub_u32 s{S_T1}, s{S_SPLIT}, {k+1}', f's_and_b32 s{S_T1}, s{S_T1}, 3', f's_bitcmp1_b32 s{S_PFS}, s{S_T1}']
    def slot_adr():
        return [f's_add_u32 s{S_T1}, s{S_T1}, s{S_T0}', f's_lshl_b32 s{S_T1}, s{S_T1}, 2', f's_add_u32 s{S_T1}, s{S_T1}, s{S_W}',
                f's_lshl_b32 s{S_PO}, s{S_T1}, 15', f's_add_u32 s{S_T1}, s{S_PO}, {WS_PART + 3*8192}']
    def slot_loads(k, vo):
        out = [[f'buffer_load_dwordx4 {vr(STR[k],4)}, v{vo}, {SRD}, s{S_T1} offen sc1']]
        for h4 in range(2):
            for i in range(4):
                pre = [f's_add_u32 s{S_T1}, s{S_PO}, {WS_PART + k*8192 + h4*4096}'] if i == 0 else []
                out.append(pre + [f'buffer_load_dwordx4 {ar(128+(k*8+h4*4+i)*4,4)}, v{vo}, {SRD}, s{S_T1} offen offset:{i*1024} sc1'])
        return out
    def check():
        getmask(0)
        for k in range(3):
            lab = a.label(name + '_ck')
            for o in slot_hdr(k): a(o)
            a(f's_cbranch_scc0 {lab}')
            for o in slot_adr(): a(o)
            for g in slot_loads(k, V_L16):
                for o in g: a(o)
            a(f'{lab}:')
    run(32, chk_at, every=2)
    assert not dq
    st(20)
    if stamp: a('s_waitcnt lgkmcnt(0)')
    getmask(vm.need('poll'))
    for k in range(3):
        first = slot_hdr(k) + [f's_cselect_b32 s{S_PH}, 0, 0x80000000', f'v_or_b32 v{V_T2}, s{S_PH}, v{V_L16}'] + slot_adr()
        for g in slot_loads(k, V_T2):
            dq.append(first + g); first = []
    dq += xdma() + [[poll]]
    run(chk_at, NS, every=r_pace)
    assert not dq, len(dq)
    st(21)
    a(f's_waitcnt vmcnt({vm.need("x")})')
    st(22)
    if stamp: a('s_waitcnt lgkmcnt(0)')
    for idx in range(8):
        gm, qh = idx >> 1, idx & 1
        a(f'ds_read_b128 {vr(V_S+4*idx,4)}, v{XV+4+gm} offset:{qh*4096}')
    a('s_nop 3')
    for idx in range(8):
        gm, qh = idx >> 1, idx & 1
        xb = V_S + 4 * idx
        a(f's_waitcnt lgkmcnt({7-idx})')
        for i in range(4):
            a(f'v_lshlrev_b32 v{64+2*i}, 16, v{xb+i}')
            a(f'v_and_b32 v{64+2*i+1}, 0xffff0000, v{xb+i}')
        for i in range(4):
            y = YB + 8 * (2 * gm + (i >> 1)) + 4 * qh + 2 * (i & 1)
            a(f'v_pk_add_f32 {vr(y,2)}, {vr(y,2)}, {vr(64+2*i,2)}')
    st(23)
    a(f'{name}_spin:')
    check()
    a(f's_cmp_eq_u32 s{S_CNT}, 15')
    a(f's_cbranch_scc1 {name}_got')
    a(poll)
    a(f's_branch {name}_spin')
    a(f'{name}_got:')
    st(6)
    a('s_waitcnt vmcnt(0)')
    st(24)
    allst = [120] + STR
    for qh in range(2):
        t = V_T0 + qh
        a(f'v_max3_f32 v{t}, v{allst[0]+2*qh+1}, v{allst[1]+2*qh+1}, v{allst[2]+2*qh+1}')
        a(f'v_max_f32 v{t}, v{t}, v{allst[3]+2*qh+1}')
    for qh in range(2):
        for b in allst: a(f'v_sub_f32 v{b+2*qh+1}, v{b+2*qh+1}, v{V_T0+qh}')
    for qh in range(2):
        for b in allst: a(f'v_exp_f32 v{b+2*qh+1}, v{b+2*qh+1}')
    for qh in range(2):
        a(f'v_mul_f32 v{V_T0+qh}, v{allst[0]+2*qh}, v{allst[0]+2*qh+1}')
    for b in allst[1:]:
        for qh in range(2): a(f'v_fmac_f32 v{V_T0+qh}, v{b+2*qh}, v{b+2*qh+1}')
    for qh in range(2): a(f'v_rcp_f32 v{V_T0+qh}, v{V_T0+qh}')
    a('s_nop 0')
    for qh in range(2):
        for b in allst: a(f'v_mul_f32 v{b+2*qh+1}, v{b+2*qh+1}, v{V_T0+qh}')
    for i in range(4): a(f'v_or_b32 v{XV+i}, s{S_VALID}, v{XV+i}')
    for qh in range(2):
        for gm in range(4):
            idx = gm * 2 + qh
            ys = [YB + 8 * (2 * gm + (i >> 1)) + 4 * qh + 2 * (i & 1) for i in range(4)]
            for i in range(4):
                a(f'v_pk_fma_f32 {vr(ys[i],2)}, {vr(ys[i]-64,2)}, {vr(120+2*qh,2)}, {vr(ys[i],2)} op_sel:[0,1,0] op_sel_hi:[1,1,1]')
            for k in range(3):
                ub = 64 + 12 * k
                for i in range(4): a(f'v_accvgpr_read_b32 v{ub+8+i}, a{128+(k*8+idx)*4+i}')
                for i in range(4):
                    a(f'v_lshlrev_b32 v{ub+2*i}, 16, v{ub+8+i}')
                    a(f'v_and_b32 v{ub+2*i+1}, 0xffff0000, v{ub+8+i}')
                for i in range(4):
                    a(f'v_pk_fma_f32 {vr(ys[i],2)}, {vr(ub+2*i,2)}, {vr(STR[k]+2*qh,2)}, {vr(ys[i],2)} op_sel:[0,1,0] op_sel_hi:[1,1,1]')
            ob = 100 + 4 * (gm & 1)
            for i in range(4): a(f'v_cvt_pk_bf16_f32 v{ob+i}, v{ys[i]}, v{ys[i]+1}')
            a(f'ds_write_b128 v{XV+4+gm}, {vr(ob,4)} offset:{qh*4096}')
            if qh == 1 and gm == 0:
                a('s_waitcnt lgkmcnt(1)')
                for i in range(4):
                    a(f's_add_u32 s{S_T1}, s{S_T4}, {i*4096}')
                    a(f'buffer_store_dwordx4 {vr(V_S+4*i,4)}, v{XV+i}, {SRO}, s{S_T1} offen {out_flags}')
        for i in range(4): a(f'ds_read_b128 {vr(V_S+16*qh+4*i,4)}, v{V_XO} offset:{(4*qh+i)*1024}')
    for i in range(4):
        a(f's_add_u32 s{S_T1}, s{S_T4}, {(4+i)*4096}')
        a(f's_waitcnt lgkmcnt({3-i})')
        a(f'buffer_store_dwordx4 {vr(V_S+16+4*i,4)}, v{XV+i}, {SRO}, s{S_T1} offen {out_flags}')
    if stamp:
        a('s_waitcnt vmcnt(0)')
        st(7)
        a('s_waitcnt lgkmcnt(0)')
        a(f's_cmp_lg_u32 s{S_W}, 0')
        a(f's_cbranch_scc1 {name}_end')
        a(f's_lshl_b32 s{S_T1}, s2, 7')
        a(f's_add_u32 s{S_T1}, s{S_T1}, {WS_STAMP}')
        for i in range(32): a(f'v_mov_b32 v{16+i}, s{64+i}')
        a(f'v_mov_b32 v{V_T0}, 0')
        a('s_mov_b64 exec, 1')
        for i in range(8):
            a(f'buffer_store_dwordx4 {vr(16+4*i,4)}, v{V_T0}, {SRD}, s{S_T1} offen offset:{16*i}')
        if dbgout:
            a(f's_cmp_lg_u32 s2, 0\n s_cbranch_scc1 {name}_end')
            a('s_load_dwordx2 s[4:5], s[0:1], 80')
            a(f's_mov_b32 s{S_T1}, {WS_STAMP + 131072}')
            a(f'buffer_load_dwordx4 v[48:51], v{V_T0}, {SRD}, s{S_T1} offen sc1')
            a(f's_mov_b32 s{S_T1}, {WS_STAMP + 65536}')
            a(f'buffer_load_dwordx4 v[52:55], v{V_T0}, {SRD}, s{S_T1} offen sc1')
            a(f'buffer_load_dwordx4 v[56:59], v{V_T0}, {SRD}, s{S_T1} offen offset:16 sc1')
            a('s_waitcnt vmcnt(0) lgkmcnt(0)')
            a('s_sub_u32 s12, s4, 0\n s_subb_u32 s13, s5, 0\n s_mov_b32 s14, 256\n s_mov_b32 s15, 0x20000')
            src = [50, 52, 54, 56, 58, 16, 18, 20, 22, 30]
            for i, r in enumerate(src): a(f'v_sub_u32 v{64+i}, v{r}, v48')
            for i in range(3): a(f'buffer_store_dwordx4 {vr(64+4*i,4)}, v{V_T0}, s[12:15], 0 offen offset:{16*i}')
            if spin is not None:
                ra, rb = spin
                a(f'v_sub_u32 v80, v{rb}, v{ra}')
                a('v_add_u32 v80, 2000, v80')
                a('v_add_u32 v80, v30, v80')
                a('s_nop 1')
                a('v_readfirstlane_b32 s20, v80')
                a(f'{name}_sp:')
                a('s_memrealtime s[22:23]')
                a('s_waitcnt lgkmcnt(0)')
                a('s_sub_u32 s21, s20, s22')
                a('s_cmp_gt_i32 s21, 0')
                a(f's_cbranch_scc1 {name}_sp')
    a(f'{name}_end:')
    a('s_endpgm')
    for lab, op in stubs:
        a(f'{lab}:')
        a(f'{op} sc1')
        a(f's_branch {lab}b')
    a(f'{name}_cfslow:')
    a('s_sleep 2')
    a(f'buffer_load_dword v{V_PFD}, v{V_FL}, {SRD}, s{S_FLO} offen sc1')
    a('s_waitcnt vmcnt(0)')
    a(f'v_cmp_eq_u32 s[{S_T3}:{S_T3+1}], 0, v{V_PFD}')
    a('s_nop 3')
    a(f's_cmp_eq_u64 s[{S_T3}:{S_T3+1}], 0')
    a(f's_cbranch_scc0 {name}_cfslow')
    a(f's_branch {name}_cfok')
    for (L_r1, L_r1b, L_r2, L_r2b) in rare:
        a(f'{L_r1}:')
        rowmax2(V_T1, V_T2, 120)
        for qh, dst in ((0, V_T1), (1, V_T2)):
            a(f'v_max_f32 v{dst}, 0, v{dst}')
            fr = V_F1 if qh else V_F0
            a(f'v_sub_f32 v{fr}, 0, v{dst}')
            a(f'v_exp_f32 v{fr}, v{fr}')
            for kh in range(2):
                for i in range(4): a(f'v_sub_f32 v{Sreg(kh,qh)+i}, v{Sreg(kh,qh)+i}, v{dst}')
            for i in range(4): a(f'v_sub_f32 v{V_NEGM+4*qh+i}, v{V_NEGM+4*qh+i}, v{dst}')
            l = V_L1 if qh else V_L0
            a(f'v_mul_f32 v{l}, v{l}, v{fr}')
        a(f's_branch {L_r1b}')
        a(f'{L_r2}:')
        a('s_nop 7')
        for beta in range(32):
            for qh in range(2):
                fr = V_F1 if qh else V_F0
                b = Obase(beta, qh)
                if beta < 16:
                    for r in range(4): a(f'v_mul_f32 v{b+r}, v{b+r}, v{fr}')
                else:
                    for r in range(4): a(f'v_accvgpr_read_b32 v{120+r}, a{b+r}')
                    for r in range(4): a(f'v_mul_f32 v{120+r}, v{120+r}, v{fr}')
                    for r in range(4): a(f'v_accvgpr_write_b32 a{b+r}, v{120+r}')
        a(f's_branch {L_r2b}')
    a('code_end:')
    a('s_endpgm')
    kernel_desc(a, name, 512, 102, 256)
```

```python
import sys, json
from asmlib import *
import k1, k2, k3
def build(path, stamp=False, o1={}, o2={}, o3={}, nops=0, nop_pos=1):
    a = Asm()
    hdr = open('standalone__conformer_family_branchformer__speech.s.ref').read().split('\n')
    for ln in hdr:
        if ln.startswith(';') and '@launch' not in ln and 'Override launch' not in ln and 'grid=ceil' not in ln: a.raw(ln)
    for i in range(nops if nop_pos == 0 else 0): a.raw('; @launch kernel=nop_kernel grid=(256,1,1) block=(256,1,1) lds=0')
    a.raw(f'; @launch kernel=prep_kernel grid=({k1.N_PREP_WG},1,1) block=(512,1,1) lds={k1.PREP_LDS}')
    for i in range(nops if nop_pos == 1 else 0): a.raw('; @launch kernel=nop_kernel grid=(256,1,1) block=(256,1,1) lds=0')
    a.raw('; @launch kernel=rg_kernel grid=(256,1,1) block=(512,1,1) lds=163840')
    a.raw('; @launch kernel=attn_kernel grid=(256,1,1) block=(256,1,1) lds=163840')
    a.raw('.amdgcn_target "amdgcn-amd-amdhsa--gfx950"')
    k1.gen_prep(a, 'prep_kernel', stamp=stamp, **o1)
    k2.gen_rg(a, 'rg_kernel', stamp=stamp, **o2)
    k3.gen_attn(a, 'attn_kernel', stamp=stamp, **o3)
    if nops:
        kernel_begin(a, 'nop_kernel'); a('s_endpgm'); kernel_desc(a, 'nop_kernel', 8, 16, 8)
    open(path, 'w').write(a.text())
if __name__ == '__main__':
    o = json.loads(sys.argv[2]) if len(sys.argv) > 2 else {}
    build(sys.argv[1], **o)
```

```python
from asmlib import *
from layout import *
from attn2 import LdsQ
import struct
def f2h(x): return hex(struct.unpack('<I', struct.pack('<f', x))[0])

class VmQ:
    def __init__(self): self.n = 0; self.last = {}
    def issue(self, tag=None):
        self.n += 1
        if tag is not None: self.last[tag] = self.n
    def need(self, tag): return self.n - self.last[tag]

def code_prefetch(a, name, end_label, vt, vd, sp, nthreads, first_wg, nbytes_max):
    lab = f'{name}_nopf'
    a(f's_sub_u32 s{sp}, s2, {first_wg}')
    a(f's_cmp_ge_u32 s{sp}, 8\n s_cbranch_scc1 {lab}')
    a(f's_getpc_b64 s[{sp}:{sp+1}]')
    a(f'{name}_pc:')
    a(f's_sub_u32 s{sp}, s{sp}, {name}_pc-{name}')
    a(f's_subb_u32 s{sp+1}, s{sp+1}, 0')
    a(f'v_lshlrev_b32 v{vt}, 7, v0')
    for i in range(-(-nbytes_max // (nthreads * 128))):
        a(f'v_min_u32 v{vt+1}, {end_label}-{name}-4, v{vt}')
        a(f'global_load_dword v{vd}, v{vt+1}, s[{sp}:{sp+1}]')
        a(f'v_add_u32 v{vt}, {nthreads*128}, v{vt}')
    a(f'{lab}:')

def gen_rg(a, name, stamp=False, NR=8, LA=7, chain=False, wait_every=2, bar_pos=20, per_gap=2, XPRE=12, st_flags='sc1', fuse=True, pf=True, nogelu=False, prio=0, stepst=False, sched=0, burst=40, twice=False, nost=False, stw=0, vs=(10, 21, 53, 83, 99, 115)):
    V_L16, V_RA, V_ST, V_DMA, V_C0, V_C1, V_T0, V_T1, V_W0, V_FL, V_T2 = range(1, 12)
    ACC = {'u': 16, 'g': 32, 'q': 48, 'v': 48}
    V_RING, V_Z, V_PK, V_STG, V_SS = 64, 88, 96, 104, 112
    S_WS, S_SRD = 4, 8
    S_W, S_BLK, S_CG, S_T0, S_T1, S_WOFF, S_DB, S_OUT, S_XO, S_T2, S_M0, S_M1 = range(24, 36)
    RS = [64, 68, 72, 76, 80, 84, 12, 92][:NR]
    def st(i, cyc=False):
        if stamp: a(f'{"s_memtime" if cyc else "s_memrealtime"} s[{44+2*i}:{45+2*i}]')
    kernel_begin(a, name)
    a(f's_cmp_ge_u32 s2, 256\n s_cbranch_scc1 {name}_end')
    a('s_mov_b32 s40, 0')
    a(f'{name}_again:')
    a(f's_load_dwordx2 s[{S_WS}:{S_WS+1}], s[0:1], 88')
    st(0)
    if pf: code_prefetch(a, name, f'{name}_end', 14, 13, 36, 512, 0, 32768)
    a(f'v_lshrrev_b32 v{V_T0}, 6, v0')
    a(f'v_cmp_eq_u32 vcc, 0, v0')
    a(f'v_and_b32 v0, 63, v0')
    a(f'v_readfirstlane_b32 s{S_W}, v{V_T0}')
    a(f'v_lshlrev_b32 v{V_L16}, 4, v0')
    a(f'v_bfrev_b32 v{V_T1}, 1')
    a(f'v_cndmask_b32 v{V_T2}, v{V_T1}, 0, vcc')
    a(f's_and_b32 s{S_T0}, s2, 7')
    a(f's_lshr_b32 s{S_T1}, s2, 3')
    a(f's_and_b32 s{S_CG}, s{S_T1}, 7')
    a(f's_lshr_b32 s{S_T1}, s{S_T1}, 3')
    a(f's_and_b32 s{S_BLK}, s{S_T0}, 3')
    a(f's_lshl_b32 s{S_BLK}, s{S_BLK}, 2')
    a(f's_add_u32 s{S_BLK}, s{S_BLK}, s{S_T1}')
    a(f's_lshl_b32 s{S_BLK}, s{S_BLK}, 3')
    a(f's_add_u32 s{S_BLK}, s{S_BLK}, s{S_W}')
    a(f's_cmp_lt_u32 s{S_BLK}, 125')
    a(f's_cselect_b32 s{S_T1}, 0, 0x80000000')
    a(f'v_or_b32 v{V_ST}, s{S_T1}, v{V_L16}')
    a(f's_cmp_eq_u32 s{S_W}, 0')
    a(f's_cselect_b32 s{S_T1}, 0, 0x80000000')
    a(f'v_or_b32 v{V_W0}, s{S_T1}, v{V_L16}')
    a(f's_min_u32 s{S_BLK}, s{S_BLK}, 124')
    a(f's_lshr_b32 s{S_T0}, s{S_T0}, 2')
    a(f's_mul_i32 s{S_T0}, s{S_T0}, 125')
    a(f's_add_u32 s{S_BLK}, s{S_BLK}, s{S_T0}')
    a(f's_lshl_b32 s{S_DB}, s{S_W}, 12')
    a(f'v_add_u32 v{V_DMA}, s{S_DB}, v{V_L16}')
    a(f's_lshl_b32 s{S_WOFF}, s{S_CG}, 16')
    a(f's_add_u32 s{S_WOFF}, s{S_WOFF}, {WS_W}')
    a(f's_lshl_b32 s{S_OUT}, s{S_BLK}, 15')
    a(f's_lshl_b32 s{S_T0}, s{S_CG}, 12')
    a(f's_add_u32 s{S_OUT}, s{S_OUT}, s{S_T0}')
    a(f's_and_b32 s{S_M0}, s2, 15')
    a(f's_lshl_b32 s{S_M0}, s{S_M0}, 15')
    a(f's_add_u32 s{S_M0}, s{S_M0}, {WS_RL}')
    a(f's_lshr_b32 s{S_M1}, s2, 4')
    a(f's_lshl_b32 s{S_M1}, s{S_M1}, 15')
    a(f's_add_u32 s{S_M1}, s{S_M1}, {WS_T1}')
    a('s_waitcnt lgkmcnt(0)')
    make_srd(a, S_SRD, S_WS, 0, WS_SIZE)
    SRD = f's[{S_SRD}:{S_SRD+3}]'
    seq = ['u', 'q', 'g', 'q', 'u', 'g', 'v', 'v']
    half = [0, 0, 0, 1, 1, 1, 0, 1]
    ACN = [16, 48, 32, 48, 16, 32, 48, 16]
    wbase = {'q': 0, 'v': 16, 'u': 32, 'g': 48}
    obase = {'q': WS_Q, 'v': WS_VT, 'u': WS_U, 'g': WS_G}
    vm = VmQ(); q = LdsQ()
    def emit(o, tag=None):
        a(o)
        if o.startswith('buffer_'): vm.issue(tag)
        if o.startswith('ds_'): q.issue(tag)
    def dma(n):
        ops = [f's_add_u32 s{S_T1}, s{S_WOFF}, {(wbase[seq[n]] + half[n]) * TILE}', f's_add_u32 m0, s{S_DB}, {(n % 5) * TILE}', 's_nop 0']
        for i in range(4):
            ops.append(f'buffer_load_dwordx4 v{V_DMA}, {SRD}, s{S_T1} offen offset:{i*1024} lds')
        return [(o, ('W', n)) for o in ops]
    for i in range(4): emit(f'buffer_load_dwordx4 {vr(V_RING+4*i,4)}, v{V_DMA}, {SRD}, s{S_M0} offen offset:{i*1024}', 'p3')
    for i in range(4): emit(f'buffer_load_dwordx4 {vr(V_RING+16+4*i,4)}, v{V_DMA}, {SRD}, s{S_M1} offen offset:{i*1024}', 'p3')
    for o, t in dma(0): emit(o, t)
    if fuse:
        for o, t in dma(1): emit(o, t)
    a(f's_lshl_b32 s{S_XO}, s{S_BLK}, 15')
    if WS_XA: a(f's_add_u32 s{S_XO}, s{S_XO}, {WS_XA}')
    def xload(f):
        ops = []
        if f % 4 == 0 and f: ops.append((f's_add_u32 s{S_XO}, s{S_XO}, 4096', None))
        ops.append((f'buffer_load_dwordx4 {ar(4*f,4)}, v{V_L16}, {SRD}, s{S_XO} offen offset:{(f%4)*1024}', ('X', f)))
        return ops
    for f in range(XPRE):
        for o, t in xload(f): emit(o, t)
    extra = []
    for f in range(XPRE, 32):
        extra += xload(f)
        if f == 24 and not fuse: extra += dma(1)
    extra += dma(2) + dma(3)
    c0 = -2.0 * 0.7978845608028654 * 1.4426950408889634
    a(f'v_mov_b32 v{V_C0}, {f2h(c0)}')
    a(f'v_mov_b32 v{V_C1}, {f2h(c0 * 0.044715)}')
    a(f'v_add_u32 v{V_RA}, {2*TILE}, v{V_L16}')
    a(f'v_add_u32 v{V_T1}, {4*TILE}, v{V_L16}')
    a(f'v_and_b32 v{V_FL}, 31, v0')
    a(f'v_lshlrev_b32 v{V_FL}, 2, v{V_FL}')
    PA = ACC['g']
    a(f's_waitcnt vmcnt({vm.need("p3")})')
    for sl in range(2):
        for ch in range(2):
            for b in range(2):
                d = vr(PA + ch * 8 + b * 4, 4)
                a(f'v_mfma_f32_16x16x32_bf16 {d}, {vr(V_RING+(2*sl+b)*4,4)}, {vr(V_RING+16+(2*sl+ch)*4,4)}, {d if sl else 0}')
    a(f'v_add_u32 v{V_T0}, {4*TILE}, v{V_DMA}')
    a('s_nop 6')
    for i in range(4): a(f'ds_write_b128 v{V_T0}, {vr(PA+4*i,4)} offset:{i*1024}')
    a(f's_waitcnt vmcnt({vm.need(("W", 1 if fuse else 0))}) lgkmcnt(0)')
    a('s_barrier')
    st(1); st(4, True)
    a(f's_lshr_b32 s{S_T0}, s{S_W}, 1')
    a(f's_lshl_b32 s{S_T0}, s{S_T0}, 10')
    a(f's_and_b32 s{S_T2}, s{S_W}, 1')
    a(f's_lshl_b32 s{S_T2}, s{S_T2}, 3')
    a(f's_add_u32 s{S_T0}, s{S_T0}, s{S_T2}')
    a(f'v_add_u32 v{V_T0}, s{S_T0}, v{V_T1}')
    for w in range(8): a(f'ds_read_b64 {vr(PA+2*w,2)}, v{V_T0} offset:{w*4096}')
    a(f's_lshl_b32 s{S_T0}, s2, 11')
    a(f's_lshr_b32 s{S_T2}, s{S_W}, 2')
    a(f's_lshl_b32 s{S_T2}, s{S_T2}, 10')
    a(f's_add_u32 s{S_T0}, s{S_T0}, s{S_T2}')
    a(f's_and_b32 s{S_T2}, s{S_W}, 3')
    a(f's_lshl_b32 s{S_T2}, s{S_T2}, 2')
    a(f's_add_u32 s{S_T0}, s{S_T0}, s{S_T2}')
    a(f's_add_u32 s{S_M0}, s{S_T0}, {WS_W + 16 * TILE}')
    a('s_waitcnt lgkmcnt(0)')
    for st_ in (4, 2, 1):
        for i in range(st_): a(f'v_pk_add_f32 {vr(PA+2*i,2)}, {vr(PA+2*i,2)}, {vr(PA+2*(i+st_),2)}')
    a(f'v_cvt_pk_bf16_f32 v{V_STG}, v{PA}, v{PA+1}')
    k = max(i for i, (o, t) in enumerate(extra) if t == ('W', 2)) + 1
    extra.insert(k, (f'buffer_store_dword v{V_STG}, v{V_L16}, {SRD}, s{S_M0} offen sc1', 'p3s'))
    if stamp: a('s_waitcnt lgkmcnt(0)')
    for i in range(16): a(f'v_mov_b32 v{V_SS+i}, 0')

    stream = []
    if fuse:
        for s in range(16):
            for n in range(2):
                for ch in range(2): stream.append((n, 2 * s + ch))
    for n in range(2 if fuse else 0, 8):
        for f in range(32): stream.append((n, f))
    NS = len(stream)
    def rd(G):
        n, f = stream[G]
        if chain and n >= 2: f = (f & 15) * 2 + (f >> 4)
        b = n % 5
        reg = (V_L16, V_L16, V_RA, V_RA, V_T1)[b]
        off = (b & 1) * TILE + f * 1024 if b < 4 else f * 1024
        return f'ds_read_b128 {vr(RS[G % NR], 4)}, v{reg} offset:{off}'
    def mfmas(G):
        n, f = stream[G]
        ty = seq[n]; s, ch = f >> 1, f & 1
        w = vr(RS[G % NR], 4)
        out = []
        if chain and n >= 2:
            ch = f >> 4; rh = (f & 1) ^ ((f >> 1) & 1)
            for k in range(2):
                s = (f & 14) + k
                x = ar((s * 2 + rh) * 4, 4); w = vr(RS[((G & ~1) + k) % NR], 4)
                if ty in 'vg': d = vr(ACN[n] + ch * 8 + rh * 4, 4); A, B = x, w
                else: d = vr(ACN[n] + rh * 8 + ch * 4, 4); A, B = w, x
                out.append(f'v_mfma_f32_16x16x32_bf16 {d}, {A}, {B}, {d if s else 0}')
            return out
        for rh in range(2):
            x = ar((s * 2 + rh) * 4, 4)
            if ty in 'vg':
                d = vr(ACN[n] + ch * 8 + rh * 4, 4); A, B = x, w
            else:
                d = vr(ACN[n] + rh * 8 + ch * 4, 4); A, B = w, x
            out.append(f'v_mfma_f32_16x16x32_bf16 {d}, {A}, {B}, {d if s else 0}')
        return out
    pkrot = [0]
    def epilogue(n):
        ty = seq[n]
        acc = ACN[n]; ops = []
        for o in range(2):
            base = acc + 8 * o
            if ty in 'ug' and not nogelu:
                def chain(e):
                    z = V_Z + e % 4; x = base + e
                    return [(f'v_mul_f32 v{z}, v{x}, v{x}', 1), (f'v_fma_f32 v{z}, v{z}, v{V_C1}, v{V_C0}', 1), (f'v_mul_f32 v{z}, v{z}, v{x}', 1),
                            (f'v_exp_f32 v{z}, v{z}', 2), (f'v_add_f32 v{z}, 1.0, v{z}', 1), (f'v_rcp_f32 v{z}, v{z}', 2), (f'v_mul_f32 v{x}, v{x}, v{z}', 1)]
                if sched == 0:
                    for E in (range(4), range(4, 8)):
                        for k in range(7):
                            for e in E: ops.append(chain(e)[k])
                else:
                    items = sorted((2 * e + k, e, k) for e in range(8) for k in range(7))
                    for _, e, k in items: ops.append(chain(e)[k])
                E = range(8)
                if ty == 'g':
                    for e in E:
                        ops.append((f'v_add_f32 v{V_SS+e}, v{V_SS+e}, v{base+e}', 1))
                        ops.append((f'v_fmac_f32 v{V_SS+8+e}, v{base+e}, v{base+e}', 1))
            pk = V_PK + 4 * (pkrot[0] % 2); pkrot[0] += 1
            for i in range(4): ops.append((f'v_cvt_pk_bf16_f32 v{pk+i}, v{base+2*i}, v{base+2*i+1}', 1))
            ops.append((f's_add_u32 s{S_T0}, s{S_OUT}, {obase[ty]}', 0))
            if not nost: ops.append((f'buffer_store_dwordx4 {vr(pk,4)}, v{V_ST}, {SRD}, s{S_T0} offen offset:{half[n]*2048 + o*1024} {st_flags}', 1))
        return ops
    def vload(n, h):
        ops = [(f's_add_u32 s{S_T1}, s{S_WOFF}, {(wbase["v"] + half[n]) * TILE}', None)]
        for i in range(2): ops.append((f'buffer_load_dwordx4 {vr(V_STG+4*i,4)}, v{V_DMA}, {SRD}, s{S_T1} offen offset:{(2*h+i)*1024} sc1', ('VL', n, h)))
        return ops
    def vwrite(n, h):
        a(f's_waitcnt vmcnt({vm.need(("VL", n, h))})')
        b = n % 5
        if b >= 2: a(f'v_add_u32 v{V_T0}, {b*TILE}, v{V_DMA}')
        for i in range(2): emit(f'ds_write_b128 v{V_T0 if b >= 2 else V_DMA}, {vr(V_STG+4*i,4)} offset:{(b*TILE if b < 2 else 0) + (2*h+i)*1024}', ('VW', n))
    curprio = [0]
    if prio == 1:
        a(f's_cmp_lt_u32 s{S_W}, 4\n s_cbranch_scc1 {name}_np\n s_setprio 1\n {name}_np:')
    for G in range(LA): emit(rd(G), G)
    pend = []
    import re
    def regs_of(tok):
        m = re.match(r'-?v\[(\d+):(\d+)\]', tok)
        if m: return set(range(int(m.group(1)), int(m.group(2)) + 1))
        m = re.match(r'-?v(\d+)$', tok)
        if m: return {int(m.group(1))}
        m = re.match(r's(\d+)$', tok)
        if m: return {1000 + int(m.group(1))}
        return set()
    def rw(op):
        name_, rest = op.split(' ', 1)
        toks = [t.strip() for t in rest.replace(' offen', ',').split(',')]
        if name_.startswith('buffer_store'): return set().union(*[regs_of(t) for t in toks]), set()
        w = regs_of(toks[0]); r = set().union(*[regs_of(t) for t in toks[1:]])
        if name_.startswith('v_fmac'): r |= w
        return r, w
    lastw = {}; lasts = {}; forced = [0]
    def flush_one(op):
        prev = a.lines[-1].strip()
        if prev.startswith(('v_exp', 'v_rcp')) and (rw(prev)[1] & rw(op)[0]): a('s_nop 0')
        for pv in a.lines[-2:]:
            if pv.strip().startswith('buffer_store') and (rw(pv.strip())[0] & rw(op)[1]): a('s_nop 1')
        emit(op)
    def issue_ready(pos, budget, window=24):
        i = 0
        while budget > 0 and i < min(window, len(pend)):
            rdy, op, c, t = pend[i]
            r, w = rw(op)
            ok = rdy <= pos and c <= budget and all(lastw.get(x, -9) < pos for x in r) and all(lasts.get(x, -9) + 2 <= pos for x in w)
            if ok:
                for j in range(i):
                    r2, w2 = rw(pend[j][1])
                    if (r & w2) or (w & r2) or (w & w2): ok = False; break
            if ok:
                pend.pop(i); emit(op); budget -= max(c, 0)
                for x in w: lastw[x] = pos
                if op.startswith('buffer_store'):
                    for x in r: lasts[x] = pos
            else: i += 1
    started = set()
    last_of = {n: max(i for i, (m, f) in enumerate(stream) if m == n) for n in range(8)}
    first_of = {n: min(i for i, (m, f) in enumerate(stream) if m == n) for n in range(8)}
    for G in range(NS):
        n, f = stream[G]
        if G == first_of[n] and n >= 2 and stamp and stepst:
            a(f's_memtime s[{56+2*(n-2)}:{57+2*(n-2)}]')
            a('s_waitcnt lgkmcnt(0)')
        if G == first_of[n]:
            while any(ACN[t] == ACN[n] for (_, _, _, t) in pend):
                _, op, _, _ = pend.pop(0); flush_one(op); forced[0] += 1
        if prio == 2:
            bars = [0] + [first_of[x] - (32 - bar_pos) + 1 for x in range(2 if fuse else 1, 8)] + [NS]
            k = max(i for i, b in enumerate(bars) if b <= G)
            lv = 3 - (G - bars[k]) * 4 // (bars[k + 1] - bars[k])
            if lv != curprio[0]: a(f's_setprio {lv}'); curprio[0] = lv
        w = []
        if n == 0 and f % 2 == 0: w.append(f'vmcnt({vm.need(("X", f | 1))})')
        if G % wait_every == 0: w.append(f'lgkmcnt({min(15, q.need(min(G + wait_every - 1, NS - 1)))})')
        if w: a('s_waitcnt ' + ' '.join(w))
        mm = mfmas(G)
        for h in range(2):
            a(mm[h])
            if h == 0 and G + LA < NS: emit(rd(G + LA), G + LA)
            if sched == 0:
                budget = per_gap
                while pend and pend[0][0] <= 2 * G + h and budget > 0 and (budget >= pend[0][2] or budget == per_gap):
                    _, op, c, _ = pend.pop(0); emit(op); budget -= c
            else:
                budget = 1 if h == 0 else (1 if (G + 1) % wait_every == 0 else 2)
                if extra and h == 1: budget = 0
                issue_ready(2 * G + h, budget)
            if extra and (h == 1 or (G < 32 and not fuse)):
                o = extra.pop(0); emit(*o)
                while extra and not o[0].startswith('buffer_'):
                    o = extra.pop(0); emit(*o)
        nxt = n + 1 if not (fuse and n < 2) else 2
        if nxt < 8 and G == first_of[nxt] - (32 - bar_pos):
            if sched:
                nb = burst
                while pend and nb > 0 and pend[0][0] <= 2 * G:
                    _, op, c, _ = pend.pop(0); flush_one(op); nb -= c
            if seq[nxt] == 'v': a(f's_waitcnt lgkmcnt({min(15, q.need(("VW", nxt)))})')
            else: a(f's_waitcnt vmcnt({vm.need(("W", nxt))})')
            a('s_barrier')
            if nxt == 2: extra = extra + dma(4)
            if nxt == 3:
                assert vm.last['p3s'] < vm.last[('W', 3)]
                a(f's_lshl_b32 s{S_T2}, s2, 2')
                a(f's_add_u32 s{S_T2}, s{S_T2}, {WS_FLAG2}')
                a(f'v_mov_b32 v{V_T0}, 1')
                emit(f'buffer_store_dword v{V_T0}, v{V_T2}, {SRD}, s{S_T2} offen sc1')
            if nxt == 3: extra = extra + dma(5)
        if G == first_of[3] + vs[0]:
            a(f's_lshl_b32 s{S_T2}, s{S_CG}, 7')
            a(f's_add_u32 s{S_T2}, s{S_T2}, {WS_FLAG2}')
            emit(f'buffer_load_dword v{V_T2}, v{V_FL}, {SRD}, s{S_T2} offen sc1', 'poll')
        if G == first_of[3] + vs[1]:
            a(f's_waitcnt vmcnt({vm.need("poll")})')
            a(f'v_cmp_ne_u32 vcc, 1, v{V_T2}')
            a(f's_cbranch_vccnz {name}_slow')
            a(f'{name}_ok:')
            extra = extra + vload(6, 0)
        if G == first_of[3] + vs[2]: vwrite(6, 0); extra = extra + vload(6, 1)
        if G == first_of[3] + vs[3]: vwrite(6, 1); extra = extra + vload(7, 0)
        if G == first_of[3] + vs[4]: vwrite(7, 0); extra = extra + vload(7, 1)
        if G == first_of[3] + vs[5]: vwrite(7, 1)
        for m in range(8):
            if G == last_of[m]:
                ep = [(2 * (G + 1) + 6, op, c, m) for op, c in epilogue(m)]
                if seq[m] in 'qv' and fuse and m == 1: pend = ep + pend
                else: pend += ep
    st(2); st(5, True)
    nrem = sum(1 for p in pend if p[3] != 7)
    if nrem < 8: a('s_nop 7')
    print('k2: forced', forced[0], 'tail', len(pend))
    for _, op, _, _ in pend: flush_one(op)
    a('s_nop 0')
    for sh in (8, 4, 2, 1):
        for i in range(16): a(f'v_add_f32_dpp v{V_SS+i}, v{V_SS+i}, v{V_SS+i} row_ror:{sh} row_mask:0xf bank_mask:0xf')
    a(f'v_and_b32 v{V_T0}, 0x80000000, v{V_ST}')
    a(f'v_or_b32 v{V_T0}, v0, v{V_T0}')
    a(f's_lshl_b32 s{S_T0}, s{S_BLK}, 11')
    a(f's_lshl_b32 s{S_T1}, s{S_CG}, 8')
    a(f's_add_u32 s{S_T0}, s{S_T0}, s{S_T1}')
    a(f's_add_u32 s{S_T0}, s{S_T0}, {WS_ST}')
    a('s_mov_b32 exec_lo, 0x00010001')
    a('s_mov_b32 exec_hi, 0x00010001')
    for i in range(4):
        a(f'buffer_store_dwordx4 {vr(V_SS+4*i,4)}, v{V_T0}, {SRD}, s{S_T0} offen offset:{i*64} {st_flags}')
    if twice:
        a('s_mov_b64 exec, -1')
        a('s_waitcnt vmcnt(0)')
        a('s_barrier')
        a(f's_cmp_eq_u32 s40, 1\n s_cbranch_scc1 {name}_dn')
        a('s_mov_b32 s40, 1')
        a(f's_lshl_b32 s41, s{S_W}, 6\n v_add_u32 v0, s41, v0')
        a(f's_branch {name}_again')
        a(f'{name}_dn:')
    if stamp:
        a('s_waitcnt vmcnt(0)')
        st(3)
        a('s_waitcnt lgkmcnt(0)')
        a(f's_cmp_lg_u32 s{S_W}, {stw}')
        a(f's_cbranch_scc1 {name}_end')
        a(f's_lshl_b32 s{S_T1}, s2, 7')
        a(f's_add_u32 s{S_T1}, s{S_T1}, {WS_STAMP + 65536}')
        for i in range(24): a(f'v_mov_b32 v{16+i}, s{44+i}')
        a(f'v_mov_b32 v{V_T0}, 0')
        a('s_mov_b64 exec, 1')
        for i in range(6):
            a(f'buffer_store_dwordx4 {vr(16+4*i,4)}, v{V_T0}, {SRD}, s{S_T1} offen offset:{16*i}')
    a('s_endpgm')
    a(f'{name}_slow:')
    a('s_sleep 2')
    a(f'buffer_load_dword v{V_T2}, v{V_FL}, {SRD}, s{S_T2} offen sc1')
    a('s_waitcnt vmcnt(0)')
    a(f'v_cmp_ne_u32 vcc, 1, v{V_T2}')
    a(f's_cbranch_vccnz {name}_slow')
    a(f's_branch {name}_ok')
    a(f'{name}_end:')
    a('s_endpgm')
    kernel_desc(a, name, 256, 72, 128)
```

```python
from asmlib import *
from layout import *
from attn2 import LdsQ
from k2 import f2h, VmQ
import re

def regs_of(tok):
    m = re.match(r'-?v\[(\d+):(\d+)\]', tok)
    if m: return set(range(int(m.group(1)), int(m.group(2)) + 1))
    m = re.match(r'-?v(\d+)$', tok)
    if m: return {int(m.group(1))}
    m = re.match(r's(\d+)$', tok)
    if m: return {1000 + int(m.group(1))}
    return set()
def rw(op):
    name_, rest = op.split(' ', 1)
    toks = [t.strip().split(' ')[0] for t in rest.split(',')]
    if name_.startswith('buffer_store'): return set().union(*[regs_of(t) for t in toks]), set()
    w = regs_of(toks[0]); r = set().union(*[regs_of(t) for t in toks[1:]])
    if name_.startswith('v_fmac'): r |= w
    return r, w

def rg4(a, name, K, st, stamp, vm, hooks, LA=6, wait_every=2, bar_back=8, over=2, over2=0, XPRE=24, st_flags='sc1', fdelay=16, defer=0, pp=(16, 46)):
    V_L16, V_DK0, V_DK1 = K.V_L16, K.V_DK0, K.V_DK1
    V_ST0, V_ST1, V_RA, V_RB, V_C0, V_C1, V_FO, V_FL, V_T0, V_T1 = 3, 4, 5, 6, 8, 9, 10, 11, 13, 14
    V_Z, V_HV, V_SS, V_RING, V_GP, V_STG = 16, 24, 32, 64, 96, 112
    NR = 8
    S_W, S_W8K = K.S_W, K.S_W8K
    S_CG, S_WOFF, S_B0, S_B1, S_XO, S_M0, S_M1, S_U, S_FI, S_S0 = 64, 65, 66, 67, 68, 69, 70, 71, 72, 73
    S_T0, S_T1, S_T2 = K.S_T0, K.S_T1, K.S_T2
    SRD = f's[{K.S_SRD}:{K.S_SRD+3}]'
    q = LdsQ()
    def emit(o, tag=None):
        a(o)
        if o.startswith('buffer_'): vm.issue(tag)
        if o.startswith('ds_'): q.issue(tag)
    a(f's_bfe_u32 s{S_CG}, s2, 0x30003')
    a(f's_lshl_b32 s{S_WOFF}, s{S_CG}, 16')
    a(f's_add_u32 s{S_WOFF}, s{S_WOFF}, {WS_W}')
    a(f's_and_b32 s{S_T0}, s2, 3')
    a(f's_lshl_b32 s{S_M1}, s{S_T0}, 2')
    a(f's_lshr_b32 s{S_T2}, s2, 6')
    a(f's_add_u32 s{S_M1}, s{S_M1}, s{S_T2}')
    a(f's_and_b32 s{S_M0}, s2, 4')
    a(f's_lshl_b32 s{S_M0}, s{S_M0}, 1')
    a(f's_add_u32 s{S_M0}, s{S_M0}, s{S_CG}')
    a(f's_lshl_b32 s{S_U}, s{S_M1}, 4')
    a(f's_add_u32 s{S_U}, s{S_U}, s{S_M0}')
    a(f's_lshl_b32 s{S_M0}, s{S_M0}, 15')
    a(f's_add_u32 s{S_M0}, s{S_M0}, {WS_RL}')
    a(f's_lshl_b32 s{S_M1}, s{S_M1}, 15')
    a(f's_add_u32 s{S_M1}, s{S_M1}, {WS_T1}')
    seq = ['g', 'g', 'q', 'q', 'u', 'u', 'v', 'v']
    half = [0, 1, 0, 1, 0, 1, 0, 1]
    ACN = [128, 160, 192, 224, 128, 192, 224, 32]
    wbase = {'q': 0, 'v': 16, 'u': 32, 'g': 48}
    obase = {'q': WS_Q, 'v': WS_VT, 'u': WS_UC, 'g': WS_G}
    def dma(n):
        out = []
        for g in range(2):
            pre = [f's_add_u32 s{S_T1}, s{S_WOFF}, {(wbase[seq[n]] + half[n]) * TILE}'] if g == 0 else []
            pre += [f's_add_u32 m0, s{S_W8K}, {(n % 5) * TILE + g*4096}', 's_nop 0']
            for i in range(4):
                out.append(pre + [(f'buffer_load_dwordx4 v{V_DK1 if g else V_DK0}, {SRD}, s{S_T1} offen offset:{i*1024} {"sc1" if seq[n] == "v" else ""} lds', ('W', n))]); pre = []
        return out
    def run(groups):
        for g in groups:
            for o in g:
                if isinstance(o, tuple): emit(*o)
                else: a(o)
    PA_, PB_, PC = 192, 224, 160
    for base, so in ((PA_, S_M0), (PB_, S_M1)):
        for i in range(8): emit(f'buffer_load_dwordx4 {vr(base+4*i,4)}, v{V_DK1 if i >= 4 else V_DK0}, {SRD}, s{so} offen offset:{(i%4)*1024}', 'p3')
    run(dma(0)); run(dma(1))
    a(f's_lshr_b32 s{S_T0}, s{K.S_TILE}, 1')
    a(f's_lshl_b32 s{S_FI}, s{K.S_GRP}, 2')
    a(f's_and_b32 s{S_FI}, s{S_FI}, 0xf8')
    a(f's_add_u32 s{S_FI}, s{S_FI}, s{S_CG}')
    a(f's_lshl_b32 s{S_T0}, s{S_T0}, 3')
    a(f's_lshl1_add_u32 s{S_T0}, s{S_W}, s{S_T0}')
    for rb, (sb, vs) in enumerate(((S_B0, V_ST0), (S_B1, V_ST1))):
        a(f's_add_u32 s{sb}, s{S_T0}, {rb}')
        a(f's_cmp_lt_u32 s{sb}, 125')
        a(f's_cselect_b32 s{S_T1}, 0, 0x80000000')
        a(f'v_or_b32 v{vs}, s{S_T1}, v{V_L16}')
        a(f's_min_u32 s{sb}, s{sb}, 124')
        a(f's_add_u32 s{sb}, s{sb}, s{K.S_B125}')
        a(f's_lshl_b32 s{sb}, s{sb}, 15')
    def xload(i):
        rb, f = i >> 5, i & 31
        pre = []
        if f == 0: pre = [f's_add_u32 s{S_XO}, s{S_B1 if rb else S_B0}, {WS_XA}']
        elif f % 4 == 0: pre = [f's_add_u32 s{S_XO}, s{S_XO}, 4096']
        return pre + [(f'buffer_load_dwordx4 {ar(4*i,4)}, v{V_L16}, {SRD}, s{S_XO} offen offset:{(f%4)*1024}', ('X', i))]
    run([xload(i) for i in range(XPRE)])
    c0 = -2.0 * 0.7978845608028654 * 1.4426950408889634
    a(f'v_mov_b32 v{V_C0}, {f2h(c0)}')
    a(f'v_mov_b32 v{V_C1}, {f2h(c0 * 0.044715)}')
    a(f'v_add_u32 v{V_RA}, {2*TILE}, v{V_L16}')
    a(f'v_add_u32 v{V_RB}, {4*TILE}, v{V_L16}')
    a(f'v_and_b32 v{V_FL}, 31, v0')
    a(f'v_lshlrev_b32 v{V_FL}, 2, v{V_FL}')
    a(f'v_cmp_eq_u32 vcc, 0, v{V_DK0}')
    a(f'v_bfrev_b32 v{V_T0}, 1')
    for i in range(32): a(f'v_mov_b32 v{V_SS+i}, 0')
    a(f'v_cndmask_b32 v{V_FO}, v{V_T0}, 0, vcc')
    a(f's_lshl_b32 s{S_T0}, s{S_W}, 12')
    a(f'v_add_u32 v{V_T0}, s{S_T0}, v{V_RB}')
    a(f's_lshl_b32 s{S_T0}, s{S_W}, 10')
    a(f'v_add_u32 v{V_T1}, s{S_T0}, v{V_RB}')
    a(f's_waitcnt vmcnt({vm.need("p3")})')
    for sl in range(4):
        for ch in range(2):
            for b in range(2):
                d = vr(PC + ch * 8 + b * 4, 4)
                a(f'v_mfma_f32_16x16x32_bf16 {d}, {vr(PA_+(2*sl+b)*4,4)}, {vr(PB_+(2*sl+ch)*4,4)}, {d if sl else 0}')
    a(f's_lshl_b32 s{S_M0}, s{S_U}, 11')
    a(f's_lshr_b32 s{S_T2}, s{S_W}, 1')
    a(f's_lshl_b32 s{S_T2}, s{S_T2}, 10')
    a(f's_add_u32 s{S_M0}, s{S_M0}, s{S_T2}')
    a(f's_and_b32 s{S_T2}, s{S_W}, 1')
    a(f's_lshl_b32 s{S_T2}, s{S_T2}, 3')
    a(f's_add_u32 s{S_M0}, s{S_M0}, s{S_T2}')
    a(f's_add_u32 s{S_M0}, s{S_M0}, {WS_W + 16 * TILE}')
    a(f's_lshl_b32 s{S_T2}, s{S_CG}, 12')
    a(f's_add_u32 s46, s{S_B0}, s{S_T2}')
    a(f's_add_u32 s47, s{S_B1}, s{S_T2}')
    for i, ty in enumerate('guqv'):
        for rb in range(2): a(f's_add_u32 s{56+2*i+rb}, s{46+rb}, {obase[ty]}')
    for i in range(4): a(f'ds_write_b128 v{V_T0}, {vr(PC+4*i,4)} offset:{i*1024}')
    a(f's_waitcnt vmcnt({vm.need(("W", 1))}) lgkmcnt(0)')
    a('s_barrier')
    st(26)
    if stamp: a('s_waitcnt lgkmcnt(0)')
    for w in range(4): emit(f'ds_read_b128 {vr(PA_+4*w,4)}, v{V_T1} offset:{w*4096}', 'red')

    stream = []
    for rb in range(2):
        for s in range(16):
            for n in range(2):
                for ch in range(2): stream.append((n, s, ch, rb))
    for n in range(2, 8):
        for f in range(32): stream.append((n, f & 15, f >> 4, None))
    NS = len(stream)
    def slot(G): return V_RING + 4 * (G % NR)
    def rd(G):
        n, s, ch, rb = stream[G]
        b = n % 5
        reg = (V_L16, V_L16, V_RA, V_RA, V_RB)[b]
        off = ((b & 1) * TILE if b < 4 else 0) + (2 * s + ch) * 1024
        return f'ds_read_b128 {vr(slot(G), 4)}, v{reg} offset:{off}'
    def mf(n, s, ch, rb, rh, G):
        x = ar(rb * 128 + (s * 2 + rh) * 4, 4); w = vr(slot(G), 4)
        if seq[n] in 'vg': d = vr(ACN[n] + 16 * rb + ch * 8 + rh * 4, 4); A, B = x, w
        else: d = vr(ACN[n] + 16 * rb + rh * 8 + ch * 4, 4); A, B = w, x
        return f'v_mfma_f32_16x16x32_bf16 {d}, {A}, {B}, {d if s else 0}'
    def mfmas(G):
        n, s, ch, rb = stream[G]
        if rb is not None: return [mf(n, s, ch, rb, rh, G) for rh in range(2)]
        R = [(0, 0), (0, 1), (1, 0), (1, 1)]
        if (s >> 1) & 1: R = R[::-1]
        out = []
        for (b, rh) in R[2 * (s & 1):2 * (s & 1) + 2]:
            for k in range(2): out.append(mf(n, (s & 14) + k, ch, b, rh, (G & ~1) + k))
        return out
    for G in range(LA): emit(rd(G), G)
    a(f's_waitcnt lgkmcnt({q.need("red")})')
    for i in range(2): a(f'v_pk_add_f32 {vr(PA_+2*i,2)}, {vr(PA_+2*i,2)}, {vr(PA_+4+2*i,2)}')
    for i in range(2): a(f'v_pk_add_f32 {vr(PA_+8+2*i,2)}, {vr(PA_+8+2*i,2)}, {vr(PA_+12+2*i,2)}')
    for i in range(2): a(f'v_pk_add_f32 {vr(PA_+2*i,2)}, {vr(PA_+2*i,2)}, {vr(PA_+8+2*i,2)}')
    for i in range(2): a(f'v_cvt_pk_bf16_f32 v{V_STG+i}, v{PA_+2*i}, v{PA_+2*i+1}')
    extra = [xload(i) for i in range(XPRE, 64)]
    extra += [[(f'buffer_store_dwordx2 {vr(V_STG,2)}, v{V_L16}, {SRD}, s{S_M0} offen sc1', 'p3s')]] + dma(2) + dma(3)
    pkrot = [0]; zrot = [0]
    def epilogue(n, rb):
        ty = seq[n]; ops = []
        for o in range(2):
            base = ACN[n] + 16 * rb + 8 * o
            if ty == 'u' and half[n] * 4 + rb * 2 + o >= 8 - defer: continue
            if ty in 'ug':
                def chain(e):
                    z = (V_Z + e if n > 1 else V_Z + 4 * n + e % 4); x = base + e
                    c = [(f'v_mul_f32 v{z}, v{x}, v{x}', 1), (f'v_fma_f32 v{z}, v{z}, v{V_C1}, v{V_C0}', 1), (f'v_mul_f32 v{z}, v{z}, v{x}', 1),
                         (f'v_exp_f32 v{z}, v{z}', 2), (f'v_add_f32 v{z}, 1.0, v{z}', 1), (f'v_rcp_f32 v{z}, v{z}', 2), (f'v_mul_f32 v{x}, v{x}, v{z}', 1)]
                    if ty == 'g':
                        c += [(f'v_add_f32 v{V_SS+16*rb+e}, v{V_SS+16*rb+e}, v{x}', 1), (f'v_fmac_f32 v{V_SS+16*rb+8+e}, v{x}, v{x}', 1)]
                    return c
                L = len(chain(0))
                for _, e, k in sorted(((2 if n > 1 else 4) * e + 2 * k, e, k) for e in range(8) for k in range(L)): ops.append(chain(e)[k] + (None,))
            if ty == 'u': continue
            pk = base if n else V_GP + 8 * rb + 4 * o
            so = 56 + 2 * 'guqv'.index(ty) + rb
            for i in range(4): ops.append((f'v_cvt_pk_bf16_f32 v{pk+i}, v{base+2*i}, v{base+2*i+1}', 1, None))
            vo = (V_HV + rb) if ty == 'g' else (V_ST1 if rb else V_ST0)
            if ty != 'u': ops.append((f'buffer_store_dwordx4 {vr(pk,4)}, v{vo}, {SRD}, s{so} offen offset:{half[n]*2048 + o*1024} {st_flags}', 2, ('st', ty)))
        return ops
    def stats_ops(rb):
        ops = []
        for sh in (8, 4, 2, 1):
            for i in range(16):
                r = V_SS + 16 * rb + i
                ops.append((f'v_add_f32_dpp v{r}, v{r}, v{r} row_ror:{sh} row_mask:0xf bank_mask:0xf', 1, None))
        for i in range(4):
            ops.append((f'buffer_store_dwordx4 {vr(V_SS+16*rb+4*i,4)}, v{12 + 3*rb}, {SRD}, s{S_S0+rb} offen offset:{i*64} {st_flags}', 2, ('st', 'g')))
        return ops
    a(f'v_and_b32 v{V_T0}, 15, v0')
    a(f'v_cmp_eq_u32 vcc, 0, v{V_T0}')
    a(f'v_bfrev_b32 v{V_T1}, 1')
    for rb in range(2):
        a(f's_lshr_b32 s{S_S0+rb}, s{S_B1 if rb else S_B0}, 4')
        a(f's_lshl_b32 s{S_T2}, s{S_CG}, 8')
        a(f's_add_u32 s{S_S0+rb}, s{S_S0+rb}, s{S_T2}')
        a(f's_add_u32 s{S_S0+rb}, s{S_S0+rb}, {WS_ST}')
    a(f'v_cndmask_b32 v{V_T0}, v{V_T1}, v0, vcc')
    for rb in range(2):
        a(f'v_and_b32 v{12+3*rb}, v{V_T1}, v{V_ST1 if rb else V_ST0}')
        a(f'v_or_b32 v{12+3*rb}, v{12+3*rb}, v{V_T0}')
    for rb, wv in ((0, 0), (1, 3)):
        a(f's_cmp_eq_u32 s{S_W}, {wv}')
        a(f's_cselect_b32 s{S_T2}, 0, 0x80000000')
        a(f'v_or_b32 v{V_HV+rb}, s{S_T2}, v{V_ST1 if rb else V_ST0}')
    def vload(n, h):
        out = []
        for i in range(4):
            pre = [f's_add_u32 s{S_T1}, s{S_WOFF}, {(wbase["v"] + half[n]) * TILE}'] if i == 0 else []
            out.append(pre + [(f'buffer_load_dwordx4 {vr(V_STG+4*i,4)}, v{V_DK1 if h else V_DK0}, {SRD}, s{S_T1} offen offset:{i*1024} sc1', ('VL', n, h))])
        return out
    def vwrite(n, h):
        a(f's_waitcnt vmcnt({vm.need(("VL", n, h))})')
        a(f'v_add_u32 v{V_T0}, {(n % 5)*TILE + h*4096}, v{V_DK0}')
        for i in range(4): emit(f'ds_write_b128 v{V_T0}, {vr(V_STG+4*i,4)} offset:{i*1024}', ('VW', n))
    pend = []; lastw = {}; lasts = {}; forced = [0]
    pos = [0]
    def flush_one(op, tag):
        r, w = rw(op)
        prev = a.lines[-1].strip()
        if prev.startswith(('v_exp', 'v_rcp')) and (rw(prev)[1] & r): a('s_nop 0')
        for pv in a.lines[-2:]:
            pv = pv.strip()
            if pv.startswith('buffer_store') and (rw(pv)[0] & w): a('s_nop 1'); break
            if 'dpp' in op and pv.startswith('v_') and not pv.startswith('v_mfma') and (rw(pv)[1] & r): a('s_nop 1'); break
        emit(op, tag)
        for x in w: lastw[x] = pos[0]
        if op.startswith('buffer_store'):
            for x in r: lasts[x] = pos[0]
    def issue_ready(budget, window=28):
        i = 0; p = pos[0]
        while budget > 0 and i < min(window, len(pend)):
            rdy, op, c, tag, t = pend[i]
            r, w = rw(op)
            gap = 2 if 'dpp' in op else 1
            ok = rdy <= p and c <= budget and all(lastw.get(x, -9) + gap <= p for x in r) and all(lasts.get(x, -9) + 2 <= p for x in w)
            if ok:
                for j in range(i):
                    r2, w2 = rw(pend[j][1])
                    if (r & w2) or (w & r2) or (w & w2): ok = False; break
            if ok:
                pend.pop(i); flush_one(op, tag); budget -= c
            else: i += 1
    first_of = {n: min(i for i, it in enumerate(stream) if it[0] == n) for n in range(8)}
    last_of = {}
    for i, it in enumerate(stream):
        for rb in ((0, 1) if it[3] is None else (it[3],)): last_of[(it[0], rb)] = i
    def flag(kind):
        a(f's_lshl_b32 s{S_T2}, s{S_U if kind == 0 else S_FI}, 2')
        a(f's_add_u32 s{S_T2}, s{S_T2}, {WS_FLAG2 + 1024 * kind}')
        a(f'v_mov_b32 v{V_T1}, 1')
        emit(f'buffer_store_dword v{V_T1}, v{V_FO}, {SRD}, s{S_T2} offen sc1')
    done_at = {}; flagged = set()
    F3 = first_of[3]
    for G in range(NS):
        n, s, ch, rb = stream[G]
        if G in (0, 64): st(30 + G // 64)
        if G >= 128 and G % 32 == 0: st(30 + G // 32 - 2)
        if G == first_of[n]:
            while any((t is not None and ACN[t] == ACN[n]) or (ACN[n] == V_SS and (t is None or seq[t] == 'g')) for (_, _, _, _, t) in pend):
                _, op, _, tag, _ = pend.pop(0); flush_one(op, tag); forced[0] += 1
        w = []
        if n == 0 and ch == 0: w.append(f'vmcnt({min(63, vm.need(("X", 32 * rb + 2 * s + 1)))})')
        we = wait_every if rb is None else 4
        if G % we == 0: w.append(f'lgkmcnt({min(15, q.need(min(G + we - 1, NS - 1)))})')
        if w: a('s_waitcnt ' + ' '.join(w))
        mm = mfmas(G)
        for h, m in enumerate(mm):
            a(m)
            budget = 2
            ov = over if 'g' not in done_at else over2
            if ov and pos[0] % ov == 0: budget += 1
            if h == 0 and G + LA < NS: emit(rd(G + LA), G + LA); budget -= 1
            if h == len(mm) - 1 and (G + 1) % we == 0: budget -= 1
            if extra and h == 1 and (rb is None or G % 2 == 0):
                run([extra.pop(0)]); budget = 0
            issue_ready(budget)
            pos[0] += 1
        for ty in 'gq':
            if ty not in done_at and G > last_of[(7 - seq[::-1].index(ty), 1)] and not any(p[3] == ('st', ty) for p in pend): done_at[ty] = G
        for ty, kind in (('g', 1), ('q', 2)):
            if ty in done_at and G == done_at[ty] + fdelay:
                a(f's_waitcnt vmcnt({vm.need(("st", ty))})')
                a('s_barrier')
                flag(kind); flagged.add(kind); print('k2c flag', kind, 'at', G)
        nxt = max(n + 1, 2)
        if nxt < 8 and G == first_of[nxt] - LA - (bar_back - LA):
            tags = []
            tags.append(('W', nxt))
            todo = []
            if nxt == 3: tags.append('p3s'); todo.append(0)
            w = []
            if tags: w.append(f'vmcnt({min(vm.need(t) for t in tags)})')
            a('s_waitcnt ' + ' '.join(w))
            a('s_barrier')
            for k in todo: flag(k); flagged.add(k); print('k2m flag', k, 'at barrier', nxt)
            if nxt == 2: extra += dma(4)
            if nxt == 3: extra += dma(5)
            if ('bar', nxt) in hooks: extra += hooks[('bar', nxt)]()
        if G - NS in hooks: extra += hooks[G - NS]() or []
        if G == F3 + pp[0]:
            a(f's_lshl_b32 s{S_M1}, s{S_CG}, 7')
            a(f's_add_u32 s{S_M1}, s{S_M1}, {WS_FLAG2}')
            emit(f'buffer_load_dword v27, v{V_FL}, {SRD}, s{S_M1} offen sc1', 'poll')
        if G == F3 + pp[1]:
            a(f's_waitcnt vmcnt({vm.need("poll")})')
            a(f'v_cmp_ne_u32 vcc, 1, v27')
            a(f's_cbranch_vccnz {name}_p3slow')
            a(f'{name}_p3ok:')
            extra += dma(6) + dma(7)
        for (m, b), l in last_of.items():
            if l == G:
                ep = [(pos[0] + 7, op, c, tag, m) for op, c, tag in epilogue(m, b)]
                if seq[m] in 'qv':
                    pend[:0] = ep
                elif m == 0 and b == 1:
                    k = max([i for i, p in enumerate(pend) if p[4] == 0], default=-1) + 1
                    pend[k:k] = ep
                else:
                    pend += ep
                    if m == 1: pend += [(pos[0] + 7, op, c, tag, None) for op, c, tag in stats_ops(b)]
    print('k2m: forced', forced[0], 'tail', len(pend), 'done', done_at, 'extra left', len(extra))
    st(27); st(38)
    run(extra)
    a('s_nop 7')
    for _, op, _, tag, _ in pend: flush_one(op, tag)
    def slow():
        a(f'{name}_p3slow:')
        a('s_sleep 2')
        a(f'buffer_load_dword v27, v{V_FL}, {SRD}, s{S_M1} offen sc1')
        a('s_waitcnt vmcnt(0)')
        a(f'v_cmp_ne_u32 vcc, 1, v27')
        a(f's_cbranch_vccnz {name}_p3slow')
        a(f's_branch {name}_p3ok')
    assert flagged == {0, 1, 2}
    return flag, slow
```

```python
from asmlib import *
from layout import *
from attn2 import LdsQ
from k2 import f2h, VmQ
import re

def regs_of(tok):
    m = re.match(r'-?v\[(\d+):(\d+)\]', tok)
    if m: return set(range(int(m.group(1)), int(m.group(2)) + 1))
    m = re.match(r'-?v(\d+)$', tok)
    if m: return {int(m.group(1))}
    m = re.match(r's(\d+)$', tok)
    if m: return {1000 + int(m.group(1))}
    return set()
def rw(op):
    name_, rest = op.split(' ', 1)
    toks = [t.strip().split(' ')[0] for t in rest.split(',')]
    if name_.startswith('buffer_store'): return set().union(*[regs_of(t) for t in toks]), set()
    w = regs_of(toks[0]); r = set().union(*[regs_of(t) for t in toks[1:]])
    if name_.startswith('v_fmac'): r |= w
    return r, w

def rg4(a, name, K, st, stamp, vm, LA=8, wait_every=2, bar_back=10, over=3, XPRE=16, late=None, st_flags='sc1'):
    V_L16, V_DK0, V_DK1 = K.V_L16, K.V_DK0, K.V_DK1
    V_ST0, V_ST1, V_RA, V_RB, V_C0, V_C1, V_FO, V_FL, V_T0, V_T1 = 3, 4, 5, 6, 8, 9, 10, 11, 13, 14
    V_Z, V_PK, V_SS, V_RING, V_STG = 16, 24, 32, 64, 112
    NR = 12
    S_W, S_W8K = K.S_W, K.S_W8K
    S_CG, S_WOFF, S_B0, S_B1, S_XO, S_M0, S_M1, S_U, S_FI = 20, 21, 22, 23, 24, 25, 27, 44, 45
    S_T0, S_T1, S_T2 = K.S_T0, K.S_T1, K.S_T2
    SRD = f's[{K.S_SRD}:{K.S_SRD+3}]'
    q = LdsQ()
    def emit(o, tag=None):
        a(o)
        if o.startswith('buffer_'): vm.issue(tag)
        if o.startswith('ds_'): q.issue(tag)
    a(f's_bfe_u32 s{S_CG}, s2, 0x30003')
    a(f's_lshl_b32 s{S_W8K}, s{S_W}, 13')
    a(f'v_add_u32 v{V_DK0}, s{S_W8K}, v{V_L16}')
    a(f'v_add_u32 v{V_DK1}, 4096, v{V_DK0}')
    a(f's_lshl_b32 s{S_WOFF}, s{S_CG}, 16')
    a(f's_add_u32 s{S_WOFF}, s{S_WOFF}, {WS_W}')
    a(f's_and_b32 s{S_T0}, s2, 3')
    a(f's_lshl_b32 s{S_M1}, s{S_T0}, 2')
    a(f's_lshr_b32 s{S_T2}, s2, 6')
    a(f's_add_u32 s{S_M1}, s{S_M1}, s{S_T2}')
    a(f's_and_b32 s{S_M0}, s2, 4')
    a(f's_lshl_b32 s{S_M0}, s{S_M0}, 1')
    a(f's_add_u32 s{S_M0}, s{S_M0}, s{S_CG}')
    a(f's_lshl_b32 s{S_U}, s{S_M1}, 4')
    a(f's_add_u32 s{S_U}, s{S_U}, s{S_M0}')
    a(f's_lshl_b32 s{S_M0}, s{S_M0}, 15')
    a(f's_add_u32 s{S_M0}, s{S_M0}, {WS_RL}')
    a(f's_lshl_b32 s{S_M1}, s{S_M1}, 15')
    a(f's_add_u32 s{S_M1}, s{S_M1}, {WS_T1}')
    seq = ['g', 'g', 'u', 'u', 'q', 'q', 'v', 'v']
    half = [0, 1, 0, 1, 0, 1, 0, 1]
    ACN = [128, 160, 192, 224, 128, 160, 128, 160]
    wbase = {'q': 0, 'v': 16, 'u': 32, 'g': 48}
    obase = {'q': WS_Q, 'v': WS_VT, 'u': WS_U, 'g': WS_G}
    def dma(n):
        out = []
        for g in range(2):
            pre = [f's_add_u32 s{S_T1}, s{S_WOFF}, {(wbase[seq[n]] + half[n]) * TILE}'] if g == 0 else []
            pre += [f's_add_u32 m0, s{S_W8K}, {(n % 5) * TILE + g*4096}', 's_nop 0']
            for i in range(4):
                out.append(pre + [(f'buffer_load_dwordx4 v{V_DK1 if g else V_DK0}, {SRD}, s{S_T1} offen offset:{i*1024} lds', ('W', n))]); pre = []
        return out
    def run(groups):
        for g in groups:
            for o in g:
                if isinstance(o, tuple): emit(*o)
                else: a(o)
    PA_, PB_, PC = 192, 224, 160
    for base, so in ((PA_, S_M0), (PB_, S_M1)):
        for i in range(8): emit(f'buffer_load_dwordx4 {vr(base+4*i,4)}, v{V_DK1 if i >= 4 else V_DK0}, {SRD}, s{so} offen offset:{(i%4)*1024}', 'p3')
    run(dma(0)); run(dma(1))
    a(f's_lshr_b32 s{S_T0}, s{K.S_TILE}, 1')
    a(f's_lshl_b32 s{S_FI}, s{K.S_GRP}, 2')
    a(f's_and_b32 s{S_FI}, s{S_FI}, 0xf8')
    a(f's_add_u32 s{S_FI}, s{S_FI}, s{S_CG}')
    a(f's_lshl_b32 s{S_T0}, s{S_T0}, 3')
    a(f's_lshl1_add_u32 s{S_T0}, s{S_W}, s{S_T0}')
    for rb, (sb, vs) in enumerate(((S_B0, V_ST0), (S_B1, V_ST1))):
        a(f's_add_u32 s{sb}, s{S_T0}, {rb}')
        a(f's_cmp_lt_u32 s{sb}, 125')
        a(f's_cselect_b32 s{S_T1}, 0, 0x80000000')
        a(f'v_or_b32 v{vs}, s{S_T1}, v{V_L16}')
        a(f's_min_u32 s{sb}, s{sb}, 124')
        a(f's_add_u32 s{sb}, s{sb}, s{K.S_B125}')
        a(f's_lshl_b32 s{sb}, s{sb}, 15')
    def xload(i):
        rb, f = i >> 5, i & 31
        pre = []
        if f == 0: pre = [f's_add_u32 s{S_XO}, s{S_B1 if rb else S_B0}, {WS_XA}']
        elif f % 4 == 0: pre = [f's_add_u32 s{S_XO}, s{S_XO}, 4096']
        return pre + [(f'buffer_load_dwordx4 {ar(4*i,4)}, v{V_L16}, {SRD}, s{S_XO} offen offset:{(f%4)*1024}', ('X', i))]
    run([xload(i) for i in range(XPRE)])
    c0 = -2.0 * 0.7978845608028654 * 1.4426950408889634
    a(f'v_mov_b32 v{V_C0}, {f2h(c0)}')
    a(f'v_mov_b32 v{V_C1}, {f2h(c0 * 0.044715)}')
    a(f'v_add_u32 v{V_RA}, {2*TILE}, v{V_L16}')
    a(f'v_add_u32 v{V_RB}, {4*TILE}, v{V_L16}')
    a(f'v_and_b32 v{V_FL}, 31, v0')
    a(f'v_lshlrev_b32 v{V_FL}, 2, v{V_FL}')
    a(f'v_cmp_eq_u32 vcc, 0, v{V_DK0}')
    a(f'v_bfrev_b32 v{V_T0}, 1')
    for i in range(32): a(f'v_mov_b32 v{V_SS+i}, 0')
    a(f'v_cndmask_b32 v{V_FO}, v{V_T0}, 0, vcc')
    a(f's_lshl_b32 s{S_T0}, s{S_W}, 12')
    a(f'v_add_u32 v{V_T0}, s{S_T0}, v{V_RB}')
    a(f's_lshl_b32 s{S_T0}, s{S_W}, 10')
    a(f'v_add_u32 v{V_T1}, s{S_T0}, v{V_RB}')
    a(f's_waitcnt vmcnt({vm.need("p3")})')
    for sl in range(4):
        for ch in range(2):
            for b in range(2):
                d = vr(PC + ch * 8 + b * 4, 4)
                a(f'v_mfma_f32_16x16x32_bf16 {d}, {vr(PA_+(2*sl+b)*4,4)}, {vr(PB_+(2*sl+ch)*4,4)}, {d if sl else 0}')
    a(f's_lshl_b32 s{S_M0}, s{S_U}, 11')
    a(f's_lshr_b32 s{S_T2}, s{S_W}, 1')
    a(f's_lshl_b32 s{S_T2}, s{S_T2}, 10')
    a(f's_add_u32 s{S_M0}, s{S_M0}, s{S_T2}')
    a(f's_and_b32 s{S_T2}, s{S_W}, 1')
    a(f's_lshl_b32 s{S_T2}, s{S_T2}, 3')
    a(f's_add_u32 s{S_M0}, s{S_M0}, s{S_T2}')
    a(f's_add_u32 s{S_M0}, s{S_M0}, {WS_W + 16 * TILE}')
    a(f's_lshl_b32 s{S_T2}, s{S_CG}, 12')
    a(f's_add_u32 s46, s{S_B0}, s{S_T2}')
    a(f's_add_u32 s47, s{S_B1}, s{S_T2}')
    for i, ty in enumerate('guqv'):
        for rb in range(2): a(f's_add_u32 s{56+2*i+rb}, s{46+rb}, {obase[ty]}')
    for i in range(4): a(f'ds_write_b128 v{V_T0}, {vr(PC+4*i,4)} offset:{i*1024}')
    a(f's_waitcnt vmcnt({vm.need(("W", 1))}) lgkmcnt(0)')
    a('s_barrier')
    st(26)
    if stamp: a('s_waitcnt lgkmcnt(0)')
    for w in range(4): emit(f'ds_read_b128 {vr(PA_+4*w,4)}, v{V_T1} offset:{w*4096}', 'red')

    stream = []
    for rb in range(2):
        for s in range(16):
            for n in range(2):
                for ch in range(2): stream.append((n, s, ch, rb))
    for n in range(2, 8):
        for f in range(32): stream.append((n, f & 15, f >> 4, None))
    NS = len(stream)
    def slot(G): return V_RING + 4 * (G % NR)
    def rd(G):
        n, s, ch, rb = stream[G]
        b = n % 5
        reg = (V_L16, V_L16, V_RA, V_RA, V_RB)[b]
        off = ((b & 1) * TILE if b < 4 else 0) + (2 * s + ch) * 1024
        return f'ds_read_b128 {vr(slot(G), 4)}, v{reg} offset:{off}'
    def mf(n, s, ch, rb, rh, G):
        x = ar(rb * 128 + (s * 2 + rh) * 4, 4); w = vr(slot(G), 4)
        if seq[n] in 'vg': d = vr(ACN[n] + 16 * rb + ch * 8 + rh * 4, 4); A, B = x, w
        else: d = vr(ACN[n] + 16 * rb + rh * 8 + ch * 4, 4); A, B = w, x
        return f'v_mfma_f32_16x16x32_bf16 {d}, {A}, {B}, {d if s else 0}'
    def mfmas(G):
        n, s, ch, rb = stream[G]
        if rb is not None: return [mf(n, s, ch, rb, rh, G) for rh in range(2)]
        R = [(0, 0), (0, 1), (1, 0), (1, 1)]
        if (s >> 1) & 1: R = R[::-1]
        out = []
        for (b, rh) in R[2 * (s & 1):2 * (s & 1) + 2]:
            for k in range(2): out.append(mf(n, (s & 14) + k, ch, b, rh, (G & ~1) + k))
        return out
    for G in range(LA): emit(rd(G), G)
    a(f's_waitcnt lgkmcnt({q.need("red")})')
    for i in range(2): a(f'v_pk_add_f32 {vr(PA_+2*i,2)}, {vr(PA_+2*i,2)}, {vr(PA_+4+2*i,2)}')
    for i in range(2): a(f'v_pk_add_f32 {vr(PA_+8+2*i,2)}, {vr(PA_+8+2*i,2)}, {vr(PA_+12+2*i,2)}')
    for i in range(2): a(f'v_pk_add_f32 {vr(PA_+2*i,2)}, {vr(PA_+2*i,2)}, {vr(PA_+8+2*i,2)}')
    for i in range(2): a(f'v_cvt_pk_bf16_f32 v{V_STG+i}, v{PA_+2*i}, v{PA_+2*i+1}')
    extra = [xload(i) for i in range(XPRE, 64)]
    extra += [[(f'buffer_store_dwordx2 {vr(V_STG,2)}, v{V_L16}, {SRD}, s{S_M0} offen sc1', 'p3s')]] + dma(2) + dma(3)
    pkrot = [0]; zrot = [0]
    def epilogue(n, rb):
        ty = seq[n]; ops = []
        for o in range(2):
            base = ACN[n] + 16 * rb + 8 * o
            if ty in 'ug':
                def chain(e):
                    z = V_Z + 8 * o + e; x = base + e
                    c = [(f'v_mul_f32 v{z}, v{x}, v{x}', 1), (f'v_fma_f32 v{z}, v{z}, v{V_C1}, v{V_C0}', 1), (f'v_mul_f32 v{z}, v{z}, v{x}', 1),
                         (f'v_exp_f32 v{z}, v{z}', 2), (f'v_add_f32 v{z}, 1.0, v{z}', 1), (f'v_rcp_f32 v{z}, v{z}', 2), (f'v_mul_f32 v{x}, v{x}, v{z}', 1)]
                    if ty == 'g':
                        c += [(f'v_add_f32 v{V_SS+16*rb+e}, v{V_SS+16*rb+e}, v{x}', 1), (f'v_fmac_f32 v{V_SS+16*rb+8+e}, v{x}, v{x}', 1)]
                    return c
                L = len(chain(0))
                for _, e, k in sorted((2 * e + 2 * k, e, k) for e in range(8) for k in range(L)): ops.append(chain(e)[k] + (None,))
            pk = base; so = 56 + 2 * 'guqv'.index(ty) + rb
            for i in range(4): ops.append((f'v_cvt_pk_bf16_f32 v{pk+i}, v{base+2*i}, v{base+2*i+1}', 1, None))
            ops.append((f'buffer_store_dwordx4 {vr(pk,4)}, v{V_ST1 if rb else V_ST0}, {SRD}, s{so} offen offset:{half[n]*2048 + o*1024} {st_flags}', 2, ('st', ty)))
        return ops
    def stats_ops(rb):
        ops = []
        for sh in (8, 4, 2, 1):
            for i in range(16):
                r = V_SS + 16 * rb + i
                ops.append((f'v_add_f32_dpp v{r}, v{r}, v{r} row_ror:{sh} row_mask:0xf bank_mask:0xf', 1, None))
        for i in range(4):
            ops.append((f'buffer_store_dwordx4 {vr(V_SS+16*rb+4*i,4)}, v{12 + 3*rb}, {SRD}, s{50+rb} offen offset:{i*64} {st_flags}', 2, ('st', 'g')))
        return ops
    a(f'v_and_b32 v{V_T0}, 15, v0')
    a(f'v_cmp_eq_u32 vcc, 0, v{V_T0}')
    a(f'v_bfrev_b32 v{V_T1}, 1')
    for rb in range(2):
        a(f's_lshr_b32 s{50+rb}, s{S_B1 if rb else S_B0}, 4')
        a(f's_lshl_b32 s{S_T2}, s{S_CG}, 8')
        a(f's_add_u32 s{50+rb}, s{50+rb}, s{S_T2}')
        a(f's_add_u32 s{50+rb}, s{50+rb}, {WS_ST}')
    a(f'v_cndmask_b32 v{V_T0}, v{V_T1}, v0, vcc')
    for rb in range(2):
        a(f'v_and_b32 v{12+3*rb}, v{V_T1}, v{V_ST1 if rb else V_ST0}')
        a(f'v_or_b32 v{12+3*rb}, v{12+3*rb}, v{V_T0}')
    def vload(n, h):
        out = []
        for i in range(4):
            pre = [f's_add_u32 s{S_T1}, s{S_WOFF}, {(wbase["v"] + half[n]) * TILE}'] if i == 0 else []
            out.append(pre + [(f'buffer_load_dwordx4 {vr(V_STG+4*i,4)}, v{V_DK1 if h else V_DK0}, {SRD}, s{S_T1} offen offset:{i*1024} sc1', ('VL', n, h))])
        return out
    def vwrite(n, h):
        a(f's_waitcnt vmcnt({vm.need(("VL", n, h))})')
        a(f'v_add_u32 v{V_T0}, {(n % 5)*TILE + h*4096}, v{V_DK0}')
        for i in range(4): emit(f'ds_write_b128 v{V_T0}, {vr(V_STG+4*i,4)} offset:{i*1024}', ('VW', n))
    pend = []; lastw = {}; lasts = {}; forced = [0]
    pos = [0]
    def flush_one(op, tag):
        r, w = rw(op)
        prev = a.lines[-1].strip()
        if prev.startswith(('v_exp', 'v_rcp')) and (rw(prev)[1] & r): a('s_nop 0')
        for pv in a.lines[-2:]:
            pv = pv.strip()
            if pv.startswith('buffer_store') and (rw(pv)[0] & w): a('s_nop 1'); break
            if 'dpp' in op and pv.startswith('v_') and not pv.startswith('v_mfma') and (rw(pv)[1] & r): a('s_nop 1'); break
        emit(op, tag)
        for x in w: lastw[x] = pos[0]
        if op.startswith('buffer_store'):
            for x in r: lasts[x] = pos[0]
    def issue_ready(budget, window=28):
        i = 0; p = pos[0]
        while budget > 0 and i < min(window, len(pend)):
            rdy, op, c, tag, t = pend[i]
            r, w = rw(op)
            gap = 2 if 'dpp' in op else 1
            ok = rdy <= p and c <= budget and all(lastw.get(x, -9) + gap <= p for x in r) and all(lasts.get(x, -9) + 2 <= p for x in w)
            if ok:
                for j in range(i):
                    r2, w2 = rw(pend[j][1])
                    if (r & w2) or (w & r2) or (w & w2): ok = False; break
            if ok:
                pend.pop(i); flush_one(op, tag); budget -= c
            else: i += 1
    first_of = {n: min(i for i, it in enumerate(stream) if it[0] == n) for n in range(8)}
    last_of = {}
    for i, it in enumerate(stream):
        for rb in ((0, 1) if it[3] is None else (it[3],)): last_of[(it[0], rb)] = i
    def flag(kind):
        a(f's_lshl_b32 s{S_T2}, s{S_U if kind == 0 else S_FI}, 2')
        a(f's_add_u32 s{S_T2}, s{S_T2}, {WS_FLAG2 + 1024 * kind}')
        a(f'v_mov_b32 v{V_T1}, 1')
        emit(f'buffer_store_dword v{V_T1}, v{V_FO}, {SRD}, s{S_T2} offen sc1')
    done_at = {}; flagged = set()
    F3 = first_of[3]
    for G in range(NS):
        n, s, ch, rb = stream[G]
        if G == first_of[n]:
            while any(t is not None and ACN[t] == ACN[n] for (_, _, _, _, t) in pend):
                _, op, _, tag, _ = pend.pop(0); flush_one(op, tag); forced[0] += 1
        w = []
        if n == 0 and ch == 0: w.append(f'vmcnt({min(63, vm.need(("X", 32 * rb + 2 * s + 1)))})')
        we = wait_every if rb is None else 4
        if G % we == 0: w.append(f'lgkmcnt({min(15, q.need(min(G + we - 1, NS - 1)))})')
        if w: a('s_waitcnt ' + ' '.join(w))
        mm = mfmas(G)
        for h, m in enumerate(mm):
            a(m)
            budget = 2
            if over and pos[0] % over == 0: budget += 1
            if h == 0 and G + LA < NS: emit(rd(G + LA), G + LA); budget -= 1
            if h == len(mm) - 1 and (G + 1) % we == 0: budget -= 1
            if extra and h == 1 and (rb is None or G % 2 == 0 or G < 64):
                run([extra.pop(0)]); budget = 0
            issue_ready(budget)
            pos[0] += 1
        for ty in 'guq':
            if ty not in done_at and G > last_of[(seq.index(ty) + 1, 1)] and not any(p[3] == ('st', ty) for p in pend): done_at[ty] = G
        nxt = max(n + 1, 2)
        if nxt < 8 and G == first_of[nxt] - LA - (bar_back - LA):
            tags = []
            if seq[nxt] != 'v': tags.append(('W', nxt))
            todo = []
            if nxt == 3: tags.append('p3s'); todo.append(0)
            if 'g' in done_at and 1 not in flagged and G - done_at['g'] >= 12: tags.append(('st', 'g')); todo.append(1)
            w = []
            if tags: w.append(f'vmcnt({min(vm.need(t) for t in tags)})')
            if seq[nxt] == 'v': w.append(f'lgkmcnt({min(15, q.need(("VW", nxt)))})')
            a('s_waitcnt ' + ' '.join(w))
            a('s_barrier')
            for k in todo: flag(k); flagged.add(k); print('k2m flag', k, 'at barrier', nxt)
            if nxt == 2: extra += dma(4)
            if nxt == 3: extra += dma(5)
            if late: extra += late(nxt)
        if G == F3 + 8:
            a(f's_lshl_b32 s{S_M1}, s{S_CG}, 7')
            a(f's_add_u32 s{S_M1}, s{S_M1}, {WS_FLAG2}')
            emit(f'buffer_load_dword v{V_T1}, v{V_FL}, {SRD}, s{S_M1} offen sc1', 'poll')
        if G == F3 + 20:
            a(f's_waitcnt vmcnt({vm.need("poll")})')
            a(f'v_cmp_ne_u32 vcc, 1, v{V_T1}')
            a(f's_cbranch_vccnz {name}_p3slow')
            a(f'{name}_p3ok:')
            extra += vload(6, 0)
        if G == F3 + 44: vwrite(6, 0); extra += vload(6, 1)
        if G == F3 + 68: vwrite(6, 1); extra += vload(7, 0)
        if G == F3 + 92: vwrite(7, 0); extra += vload(7, 1)
        if G == F3 + 116: vwrite(7, 1)
        for (m, b), l in last_of.items():
            if l == G:
                ep = [(pos[0] + 7, op, c, tag, m) for op, c, tag in epilogue(m, b)]
                if seq[m] in 'qv':
                    pend[:0] = ep
                else:
                    pend += ep
                    if m == 1: pend += [(pos[0] + 7, op, c, tag, None) for op, c, tag in stats_ops(b)]
    print('k2m: forced', forced[0], 'tail', len(pend), 'done', done_at, 'extra left', len(extra))
    st(27)
    run(extra)
    a('s_nop 7')
    for _, op, _, tag, _ in pend: flush_one(op, tag)
    def slow():
        a(f'{name}_p3slow:')
        a('s_sleep 2')
        a(f'buffer_load_dword v{V_T1}, v{V_FL}, {SRD}, s{S_M1} offen sc1')
        a('s_waitcnt vmcnt(0)')
        a(f'v_cmp_ne_u32 vcc, 1, v{V_T1}')
        a(f's_cbranch_vccnz {name}_p3slow')
        a(f's_branch {name}_p3ok')
    return flag, flagged, slow
```

```python
from asmlib import *
from layout import *
from attn2 import LdsQ
from k2 import f2h, VmQ, code_prefetch

V_DK0, V_DK1, V_DV0, V_DV1, V_KA, V_VA, V_L16, V_L0, V_L1, V_MX, V_F0, V_F1, V_T0, V_T1, V_T2 = range(1, 16)
V_S, V_E, V_P, V_NEGM, V_RING = 16, 32, 48, 56, 64
V_PF, V_PFD, V_XO, V_FL = 116, 117, 118, 119
S_X, S_OUTP, S_WS, S_SRD, S_SRX, S_SRO = 4, 6, 40, 8, 12, 16
(S_KOFF, S_VOFF, S_KDMA, S_VDMA, S_VRD, S_CNT, S_W, S_QB, S_SPLIT, S_T0, S_T1, S_VALID, S_GRP, S_W8K, S_PFOFF, S_T2) = range(20, 36)
S_TILE, S_B125, S_T3, S_T4 = 36, 37, 38, 39
S_WB0, S_WB1, S_WB2, S_WB3, S_UCO, S_WCO, S_FLO, S_PO = range(56, 64)
S_PFS, S_PFST, S_PH, S_XCC, S_SLOW, S_PB = 44, 45, 46, 47, 48, 54

def Obase(beta, qh): return 128 + 8 * (beta % 16) + 4 * qh
def Oreg(beta, qh): return vr(Obase(beta, qh), 4) if beta < 16 else ar(Obase(beta, qh), 4)

def gen_attn(a, name, dma_gap=3, dma_cost=2, CAP=2, bar_pos=50, NR=13, LA=10, wait_every=4, THR=0x41800000,
             stamp=False, snake=True, prefetch=2, pf=True, pv_pace=4, pv_budget=6, out_flags='sc1', npf=0, fast_st='nt', flag_at=140, force_slow=True, tailst=False, pfill=False, st_pace=9, ld_pace=2, yc_budget=2, bg_pace=10, tailpf=True, pf_flags='sc1', uc_pace=4, chk_at=60, merged=False, o2={}, dbg=(), dbgout=False, spin=None, brgap=3, chain=True, poll_after=8, r_pace=5, chk2_at=0, noyc=False, ld_per_st=0, flag_after=0, rounds=((56, 3), (112, 3))):
    SRD, SRX, SRO = [f's[{b}:{b+3}]' for b in (S_SRD, S_SRX, S_SRO)]
    def st(i, cyc=False):
        if i >= 26: i -= 16
        elif merged and 10 <= i <= 12: return
        if tailst and 10 <= i <= 14: return
        if i >= 20:
            if not tailst: return
            i -= 10
        if stamp: a(f'{"s_memtime" if cyc else "s_memrealtime"} s[{64+2*i}:{65+2*i}]')
    kernel_begin(a, name)
    a(f's_cmp_ge_u32 s2, 256\n s_cbranch_scc1 {name}_end')
    a(f's_load_dwordx2 s[{S_WS}:{S_WS+1}], s[0:1], 88')
    a(f's_load_dwordx2 s[{S_X}:{S_X+1}], s[0:1], 0')
    a(f's_load_dwordx2 s[{S_OUTP}:{S_OUTP+1}], s[0:1], 72')
    st(0)
    if pf: code_prefetch(a, name, f'{name}_end', 13, 127, 42, 256, 0, 98304 if merged else 65536)
    a(f'v_lshrrev_b32 v{V_T0}, 6, v0')
    a(f'v_and_b32 v0, 63, v0')
    a(f'v_readfirstlane_b32 s{S_W}, v{V_T0}')
    a(f'v_lshlrev_b32 v{V_L16}, 4, v0')
    a(f's_and_b32 s{S_T0}, s2, 7')
    a(f's_lshr_b32 s{S_T1}, s2, 3')
    a(f's_and_b32 s{S_SPLIT}, s{S_T1}, 3')
    a(f's_lshr_b32 s{S_T1}, s{S_T1}, 2')
    a(f's_lshl_b32 s{S_PFOFF}, s{S_T1}, 2')
    a(f's_and_b32 s{S_TILE}, s{S_T0}, 3')
    a(f's_lshl_b32 s{S_TILE}, s{S_TILE}, 3')
    a(f's_add_u32 s{S_TILE}, s{S_TILE}, s{S_T1}')
    a(f's_lshr_b32 s{S_T0}, s{S_T0}, 2')
    a(f's_lshl_b32 s{S_GRP}, s{S_T0}, 5')
    a(f's_add_u32 s{S_GRP}, s{S_GRP}, s{S_TILE}')
    a(f's_mul_i32 s{S_B125}, s{S_T0}, 125')
    ucst = []
    def late_setup():
        a(f's_lshl_b32 s{S_QB}, s{S_TILE}, 2')
        a(f's_add_u32 s{S_QB}, s{S_QB}, s{S_W}')
        a(f's_cmp_lt_u32 s{S_QB}, 125')
        a(f's_cselect_b32 s{S_VALID}, 0, 0x80000000')
        a(f's_min_u32 s{S_QB}, s{S_QB}, 124')
        a(f's_add_u32 s{S_QB}, s{S_QB}, s{S_B125}')
        a(f's_mul_i32 s{S_T1}, s{S_SPLIT}, 31')
        a(f's_cmp_lg_u32 s{S_SPLIT}, 0')
        a(f's_addc_u32 s{S_T1}, s{S_T1}, s{S_B125}')
        a(f's_cmp_lg_u32 s{S_SPLIT}, 0')
        a(f's_cselect_b32 s{S_CNT}, 29, 30')
        a(f's_lshl_b32 s{S_KOFF}, s{S_T1}, 15')
        a(f's_add_u32 s{S_VOFF}, s{S_KOFF}, {WS_VT}')
        if WS_XA: a(f's_add_u32 s{S_KOFF}, s{S_KOFF}, {WS_XA}')
        a(f's_lshl_b32 s{S_W8K}, s{S_W}, 13')
        a(f'v_add_u32 v{V_DK0}, s{S_W8K}, v{V_L16}')
        a(f'v_add_u32 v{V_DK1}, 4096, v{V_DK0}')
        a(f's_add_u32 s{S_T1}, s{S_W}, s{S_SPLIT}')
        a(f's_and_b32 s{S_T1}, s{S_T1}, 3')
        a(f's_lshl_b32 s{S_T1}, s{S_T1}, 13')
        a(f'v_add_u32 v{V_DV0}, s{S_T1}, v{V_L16}')
        a(f'v_add_u32 v{V_DV1}, 4096, v{V_DV0}')
        make_srd(a, S_SRX, S_X, 0, 8192000)
        make_srd(a, S_SRO, S_OUTP, 0, 8192000)
        a(f's_mov_b32 s{S_PFS}, {f2h(1/512)}')
    a('s_waitcnt lgkmcnt(0)')
    make_srd(a, S_SRD, S_WS, 0, WS_SIZE)
    vm = VmQ()
    def emit(o, tag=None):
        a(o)
        if o.startswith('buffer_'): vm.issue(tag)
    def dma_ops(v0, v1, soff, sbase):
        ops = []
        for g in range(2):
            for i in range(4):
                pre = None
                if i == 0:
                    pre = f's_mov_b32 m0, s{sbase}' if g == 0 else f's_add_u32 m0, s{sbase}, 4096'
                ops.append((pre, f'buffer_load_dwordx4 v{v0 if g == 0 else v1}, {SRD}, s{soff} offen offset:{i*1024} lds'))
        return ops
    def emit_dma_now(tag, *args):
        for pre, op in dma_ops(*args):
            if pre: a(pre); a('s_nop 0')
            emit(op, tag)
    def xreduce(regs, op, tmp):
        for sw in ('v_permlane16_swap_b32', 'v_permlane32_swap_b32'):
            for i, r in enumerate(regs): a(f'v_mov_b32 v{tmp+i}, v{r}')
            if len(regs) < 3: a('s_nop 1')
            else: a('s_nop 0')
            for i, r in enumerate(regs): a(f'{sw} v{tmp+i}, v{r}')
            a('s_nop 1')
            for i, r in enumerate(regs): a(f'{op} v{r}, v{r}, v{tmp+i}')

    if merged:
        import k2m, sys
        flagf, flagged, p3slow = k2m.rg4(a, name, sys.modules[__name__], st, stamp, vm, **o2)
        a('s_waitcnt vmcnt(0) lgkmcnt(0)')
        a('s_barrier')
        flagf(3)
        a(f's_and_b32 s{S_T0}, s{S_GRP}, 32')
        a(f's_lshl_b32 s{S_T0}, s{S_T0}, 4')
        a(f's_add_u32 s{S_T0}, s{S_T0}, {WS_FLAG2 + 3072}')
        a(f'v_lshlrev_b32 v{V_T0}, 3, v0')
        a(f'{name}_gw:')
        a(f'buffer_load_dwordx2 v[16:17], v{V_T0}, {SRD}, s{S_T0} offen sc1')
        a('s_waitcnt vmcnt(0)')
        a('v_and_b32 v16, v16, v17')
        a('v_cmp_ne_u32 vcc, 1, v16')
        a(f's_cbranch_vccnz {name}_gw')
        a('buffer_inv sc1')
        a('s_waitcnt vmcnt(0)')
        a('s_barrier')
        st(28)
    TB = 3 * TILE; GNB = TB + 2048; GS = 328; CS = 272
    RG, CA_, ST_, SC, UB, B1 = 16, 64, 104, 120, 224, 192
    S_VF = [S_WB0, S_WB1]; S_B6 = [S_WB2, S_WB3]
    a(f's_lshl_b32 s{S_T3}, s{S_SPLIT}, 2')
    a(f's_add_u32 s{S_T3}, s{S_T3}, s{S_W}')
    a(f's_lshl_b32 s{S_T4}, s{S_TILE}, 2')
    a(f's_sub_u32 s{S_T4}, s{S_T4}, 1')
    for rnd in range(2):
        if rnd == 0: a(f's_mov_b32 s{S_B6[0]}, s{S_W}')
        else:
            a(f's_cmp_lt_u32 s{S_W}, 2')
            a(f's_cselect_b32 s{S_T0}, 4, 0')
            a(f's_add_u32 s{S_B6[1]}, s{S_W}, s{S_T0}')
        a(f's_add_u32 s{S_T0}, s{S_T4}, s{S_B6[rnd]}')
        a(f's_cmp_lt_u32 s{S_T0}, 125')
        a(f's_cselect_b32 s{S_VF[rnd]}, 1.0, 0')
        a(f's_cselect_b32 s{S_T0}, s{S_T0}, 0')
        a(f's_add_u32 s{S_T0}, s{S_T0}, s{S_B125}')
        a(f's_lshl_b32 s{S_T0}, s{S_T0}, 11')
        a(f's_add_u32 s{S_T0}, s{S_T0}, {WS_ST}')
        for h in range(2):
            emit(f'buffer_load_dwordx4 {vr(ST_+8*rnd+4*h,4)}, v{V_L16}, {SRD}, s{S_T0} offen offset:{h*1024}', 'st')
    a(f's_lshl_b32 s{S_T2}, s{S_T3}, 11')
    def blk_off(b6, base, dst):
        a(f's_add_u32 s{dst}, s{S_T4}, {b6}')
        a(f's_cmp_lt_u32 s{dst}, 125')
        a(f's_cselect_b32 s{dst}, s{dst}, 0')
        a(f's_add_u32 s{dst}, s{dst}, s{S_B125}')
        a(f's_lshl_b32 s{dst}, s{dst}, 15')
        a(f's_add_u32 s{dst}, s{dst}, s{S_T2}')
    S_BO = [50, 51, 52, 53]
    for b6 in range(6):
        dst = S_BO[b6 - 1] if 1 <= b6 <= 4 else S_T0
        blk_off(b6, WS_G, dst)
        a(f's_add_u32 s{S_T1}, s{dst}, {WS_G}')
        for ch in range(2):
            emit(f'buffer_load_dwordx4 {vr(RG+8*b6+4*ch,4)}, v{V_L16}, {SRD}, s{S_T1} offen offset:{ch*1024}', ('g', b6))
    a(f's_mul_i32 s{S_T0}, s{S_T3}, 10240')
    a(f's_add_u32 s{S_T0}, s{S_T0}, {WS_DWT}')
    for i in range(10):
        if i % 4 == 0 and i: a(f's_add_u32 s{S_T0}, s{S_T0}, 4096')
        emit(f'buffer_load_dwordx4 {vr(CA_+4*i,4)}, v{V_L16}, {SRD}, s{S_T0} offen offset:{(i%4)*1024}', 'dw')
    late_setup()
    bg = []
    for b in range(4):
        bg.append(f's_add_u32 s{S_T1}, s{S_BO[b]}, {WS_U}')
        for th in range(2): bg.append((f'buffer_load_dwordx4 {vr(UB+8*b+4*th,4)}, v{V_L16}, {SRD}, s{S_T1} offen offset:{th*1024}', 'u'))
    def bg_dma(tag, *args):
        for pre, op in dma_ops(*args):
            if pre: bg.append(pre); bg.append('s_nop 0')
            bg.append((op, tag))
    bg.append(f's_mov_b32 s{S_KDMA}, s{S_W8K}')
    bg_dma('K0', V_DK0, V_DK1, S_KOFF, S_KDMA)
    bg.append(f's_lshl_b32 s{S_T1}, s{S_QB}, 15')
    bg.append(f's_add_u32 s{S_T1}, s{S_T1}, {WS_Q}')
    for f in range(32):
        if f % 4 == 0 and f: bg.append(f's_add_u32 s{S_T1}, s{S_T1}, 4096')
        bg.append((f'buffer_load_dwordx4 {ar(4*f,4)}, v{V_L16}, {SRD}, s{S_T1} offen offset:{(f%4)*1024}', ('Q', f)))
    bg += [f's_add_u32 s{S_KOFF}, s{S_KOFF}, {TILE}', f's_add_u32 s{S_KDMA}, s{S_KDMA}, {TILE}']
    bg_dma('K1', V_DK0, V_DK1, S_KOFF, S_KDMA)
    bg += [f's_add_u32 s{S_KOFF}, s{S_KOFF}, {TILE}', f's_add_u32 s{S_VDMA}, s{S_W8K}, {2*TILE}']
    bg_dma('V0', V_DV0, V_DV1, S_VOFF, S_VDMA)
    bgc = [0]
    def bgone():
        while bg:
            o = bg.pop(0)
            if isinstance(o, tuple):
                emit(*o); return
            a(o)
    def c(o, every=bg_pace):
        a(o); bgc[0] += 1
        if bgc[0] % every == 0: bgone()
    for i in range(128): c(f'v_accvgpr_write_b32 a{128+i}, 0', 16)
    for i in range(64): c(f'v_mov_b32 v{128+i}, 0', 16)
    a(f's_mul_i32 s{S_T0}, s{S_W}, {32*GS}')
    a(f's_add_u32 s{S_T0}, s{S_T0}, {GNB}')
    a(f'v_and_b32 v{V_T0}, 15, v0')
    a(f'v_lshrrev_b32 v{V_T1}, 4, v0')
    a(f'v_mul_u32_u24 v{V_F0}, {GS}, v{V_T0}')
    a(f'v_lshl_add_u32 v{V_F0}, v{V_T1}, 3, v{V_F0}')
    a(f'v_add_u32 v{V_F0}, s{S_T0}, v{V_F0}')
    a(f'v_lshlrev_b32 v{V_MX}, 4, v{V_T1}')
    a(f'v_add_u32 v{V_MX}, {TB}, v{V_MX}')
    a(f'v_lshrrev_b32 v{V_T2}, 2, v0')
    a(f'v_and_b32 v{V_T0}, 3, v0')
    a(f'v_mul_u32_u24 v{V_F1}, {GS}, v{V_T2}')
    a(f'v_lshl_add_u32 v{V_F1}, v{V_T0}, 6, v{V_F1}')
    a(f'v_add_u32 v{V_F1}, s{S_T0}, v{V_F1}')
    a(f'v_and_b32 v{V_T2}, 3, v{V_T2}')
    a(f'v_lshl_add_u32 v{V_T2}, v{V_T1}, 3, v{V_T2}')
    a(f'v_mul_u32_u24 v{V_T2}, {CS}, v{V_T2}')
    a(f'v_add_u32 v{V_T2}, s{S_T0}, v{V_T2}')
    a(f'v_lshl_add_u32 v{V_L0}, v{V_T0}, 6, v{V_T2}')
    a(f'v_lshl_add_u32 v{V_L1}, v{V_T0}, 3, v{V_T2}')
    st(10)
    a(f's_waitcnt vmcnt({vm.need("st")})')
    st(11)
    R = [ST_ + 8 * r + i for r in range(2) for i in range(4)]
    for r in range(2):
        for i in range(4): a(f'v_add_f32 v{ST_+8*r+i}, v{ST_+8*r+i}, v{ST_+8*r+4+i}')
    xreduce(R, 'v_add_f32', SC)
    a('s_nop 0')
    for x in R: a(f'v_mov_b32_dpp v{x+4}, v{x} row_ror:8 row_mask:0xf bank_mask:0xf')
    for x in R: a(f'v_mul_f32 v{x}, {f2h(1/512)}, v{x}')
    for i, x in enumerate(R): a(f'v_mul_f32 v{SC+i}, v{x}, v{x}')
    for i, x in enumerate(R): a(f'v_fma_f32 v{x+4}, v{x+4}, s{S_PFS}, -v{SC+i}')
    for x in R: a(f'v_max_f32 v{x+4}, 0, v{x+4}')
    for x in R: a(f'v_add_f32 v{x+4}, {f2h(1e-5)}, v{x+4}')
    for x in R: a(f'v_rsq_f32 v{x+4}, v{x+4}')
    for i, x in enumerate(R): a(f'v_mul_f32 v{x+4}, s{S_VF[i>>2]}, v{x+4}')
    for x in R: a(f'v_mul_f32 v{x}, -v{x}, v{x+4}')
    a('s_mov_b64 exec, 0xff')
    for r in range(2):
        a(f's_lshl_b32 s{S_T0}, s{S_B6[r]}, 8')
        a(f's_add_u32 s{S_T0}, s{S_T0}, {TB}')
        a(f'v_add_u32 v{V_T0}, s{S_T0}, v{V_L16}')
        a(f'ds_write_b128 v{V_T0}, {vr(ST_+8*r+4,4)}')
        a(f'ds_write_b128 v{V_T0}, {vr(ST_+8*r,4)} offset:128')
    a('s_mov_b64 exec, -1')
    a('s_waitcnt lgkmcnt(0)')
    a('s_barrier')
    st(12)
    if stamp: a('s_waitcnt lgkmcnt(0)')
    halves = [(b6, hf) for b6 in range(6) for hf in range(2) if not (b6 == 0 and hf == 0) and not (b6 == 5 and hf == 1)]
    lq = LdsQ()
    def tread(n):
        b6, hf = halves[n]
        t = ST_ + 8 * (n % 2)
        a(f'ds_read_b128 {vr(t,4)}, v{V_MX} offset:{b6*256 + hf*64}'); lq.issue(('t', n))
        a(f'ds_read_b128 {vr(t+4,4)}, v{V_MX} offset:{b6*256 + hf*64 + 128}'); lq.issue(('t', n))
    tread(0)
    for n, (b6, hf) in enumerate(halves):
        if n + 1 < len(halves): tread(n + 1)
        t = ST_ + 8 * (n % 2)
        a(f's_waitcnt vmcnt({vm.need(("g", b6))}) lgkmcnt({lq.need(("t", n))})')
        for ch in range(2):
            for i in range(2):
                r = RG + 8 * b6 + 4 * ch + 2 * hf + i
                c(f'v_lshlrev_b32 v{SC+4*ch+2*i}, 16, v{r}')
                c(f'v_and_b32 v{SC+4*ch+2*i+1}, 0xffff0000, v{r}')
        for ch in range(2):
            for i in range(2):
                c(f'v_pk_fma_f32 {vr(SC+4*ch+2*i,2)}, {vr(SC+4*ch+2*i,2)}, {vr(t+2*i,2)}, {vr(t+4+2*i,2)}')
        for ch in range(2):
            r = RG + 8 * b6 + 4 * ch + 2 * hf
            for i in range(2): c(f'v_cvt_pk_bf16_f32 v{r+i}, v{SC+4*ch+2*i}, v{SC+4*ch+2*i+1}')
            a(f'ds_write_b64 v{V_F0}, {vr(r,2)} offset:{ch*16*GS + (8*b6 - 4 + 4*hf)*8}'); lq.issue('w')
    st(13)
    if stamp: a('s_waitcnt lgkmcnt(0)')
    BR = [B1, 16]; AC = [48, 104]
    def acc(ch, aa): return (48 + 4 * aa) if aa < 4 else (104 + 4 * (aa - 4))
    for ch in range(2):
        for e in range(16):
            a(f'ds_read_b64 {vr(BR[ch]+2*e,2)}, v{V_F1} offset:{ch*16*GS + e*8}'); lq.issue(('b', ch, e))
    a(f's_waitcnt vmcnt({vm.need("dw")})')
    PKc = 120
    for ch in range(2):
        for dl in range(9):
            a(f's_waitcnt lgkmcnt({min(15, lq.need(("b", ch, dl + 7)))})')
            for aa in range(8):
                d = vr(acc(ch, aa), 4)
                c(f'v_mfma_f32_4x4x4_16b_bf16 {d}, {vr(CA_+20*ch+2*dl,2)}, {vr(BR[ch]+2*(aa+dl),2)}, {d if dl else 0}', bg_pace // 2)
        if ch == 0: a('s_waitcnt lgkmcnt(0)')
        a('s_nop 3')
        for p in range(4):
            pk = PKc + 4 * (p & 1)
            for k in range(2):
                b = acc(ch, 2 * p + k)
                c(f'v_cvt_pk_bf16_f32 v{pk+2*k}, v{b}, v{b+1}')
                c(f'v_cvt_pk_bf16_f32 v{pk+2*k+1}, v{b+2}, v{b+3}')
            a(f'ds_write_b128 v{V_L0}, {vr(pk,4)} offset:{ch*4*CS + 16*p}'); lq.issue('cw')
    st(14)
    if stamp: a('s_waitcnt lgkmcnt(0)')
    TRD = 16
    for fr in range(8):
        for jj in range(2):
            a(f'ds_read_b64_tr_b16 {vr(TRD+4*fr+2*jj,2)}, v{V_L1} offset:{jj*4*CS + fr*32}'); lq.issue(('tr', fr))
    a(f's_lshl_b32 s{S_PO}, s{S_GRP}, 17')
    a(f's_add_u32 s{S_PO}, s{S_PO}, s{S_T2}')
    a(f's_add_u32 s{S_PO}, s{S_PO}, {WS_UC}')
    a(f's_waitcnt vmcnt({min(63, vm.need("u"))})')
    for fr in range(8):
        cc = TRD + 4 * fr; ub = 64 + 16 * (fr & 1); u = UB + 4 * fr
        a(f's_waitcnt lgkmcnt({lq.need(("tr", fr))})')
        for i in range(4):
            c(f'v_lshlrev_b32 v{ub+2*i}, 16, v{cc+i}')
            c(f'v_and_b32 v{ub+2*i+1}, 0xffff0000, v{cc+i}')
        for i in range(4):
            c(f'v_lshlrev_b32 v{ub+8+2*i}, 16, v{u+i}')
            c(f'v_and_b32 v{ub+8+2*i+1}, 0xffff0000, v{u+i}')
        for i in range(4): c(f'v_pk_mul_f32 {vr(ub+2*i,2)}, {vr(ub+2*i,2)}, {vr(ub+8+2*i,2)}')
        for i in range(4): c(f'v_cvt_pk_bf16_f32 v{u+i}, v{ub+2*i}, v{ub+2*i+1}')
        ucst.append((f'buffer_store_dwordx4 {vr(u,4)}, v{V_L16}, {SRD}, s{S_PO} offen offset:{(fr&1)*1024} sc1', fr))
    while bg: bgone()
    for op, fr in ucst:
        if fr % 2 == 0 and fr: a(f's_add_u32 s{S_PO}, s{S_PO}, {TILE}')
        emit(op, 'ucs')
    a(f's_add_u32 s{S_VOFF}, s{S_VOFF}, {TILE}')
    a(f's_add_u32 s{S_VDMA}, s{S_VDMA}, {TILE}')
    a(f's_mov_b32 s{S_KDMA}, s{S_W8K}')
    a(f's_mov_b32 s{S_VRD}, {2*TILE}')
    st(1)
    if prefetch:
        a(f's_add_u32 s{S_PFOFF}, s{S_PFOFF}, s{S_W}')
        a(f's_and_b32 s{S_T1}, s{S_PFOFF}, 15')
        a(f's_lshl_b32 s{S_T1}, s{S_T1}, 11')
        a(f's_cmp_ge_u32 s{S_PFOFF}, 16')
        a(f's_cselect_b32 s{S_PFOFF}, {WS_VT - WS_XA - TILE}, 0')
        a(f's_add_u32 s{S_T1}, s{S_T1}, s{S_PFOFF}')
        a(f's_add_u32 s{S_T1}, s{S_T1}, {prefetch * TILE}')
        a(f'v_lshlrev_b32 v{V_PF}, 5, v0')
        a(f'v_add_u32 v{V_PF}, s{S_T1}, v{V_PF}')
    a(f'v_and_b32 v{V_T0}, 15, v0')
    a(f'v_lshrrev_b32 v{V_T1}, 4, v0')
    a(f'v_lshlrev_b32 v{V_T2}, 4, v{V_T1}')
    a(f'v_lshl_add_u32 v{V_XO}, v{V_T0}, 10, v{V_T2}')
    a(f'v_mov_b32 v{V_KA}, v{V_L16}')
    a(f'v_add_u32 v{V_VA}, s{S_VRD}, v{V_L16}')
    a(f'v_mov_b32 v{V_L0}, 0')
    a(f'v_mov_b32 v{V_L1}, 0')
    nround = -(-64 // NR)
    sizes = [64 // nround + (1 if i < 64 % nround else 0) for i in range(nround)]
    slotmap = [i for sz in sizes for i in range(sz)]
    assert LA + 1 <= min(sizes) and max(sizes) <= NR and V_RING + 4 * NR <= V_PF
    def slot(f): return V_RING + 4 * slotmap[f % 64]
    def rd(f):
        if f < 32 and chain: return f'ds_read_b128 {vr(slot(f),4)}, v{V_KA} offset:{((f & 15)*2 + (f >> 4))*1024}'
        if f < 32: return f'ds_read_b128 {vr(slot(f),4)}, v{V_KA} offset:{f*1024}'
        return f'ds_read_b128 {vr(slot(f),4)}, v{V_VA} offset:{(f-32)*1024}'
    def Sreg(kh, qh): return V_S + (kh * 2 + qh) * 4
    def mfmas(f, zero_c=False):
        order = (1, 0) if (snake and (f & 1)) else (0, 1)
        out = []
        if chain and f < 32:
            kh = f >> 4; s0 = f & 14; qh = (f & 1) ^ ((f >> 1) & 1); fb = f & ~1
            for k in range(2):
                s = s0 + k
                c = vr(Sreg(kh, qh), 4) if s else ('0' if zero_c else vr(V_NEGM + 4 * qh, 4))
                out.append(f'v_mfma_f32_16x16x32_bf16 {vr(Sreg(kh,qh),4)}, {vr(slot(fb+k),4)}, {ar((s*2+qh)*4,4)}, {c}')
            return out
        for qh in order:
            if f < 32:
                s, kh = f >> 1, f & 1
                c = vr(Sreg(kh, qh), 4) if s else ('0' if zero_c else vr(V_NEGM + 4 * qh, 4))
                out.append(f'v_mfma_f32_16x16x32_bf16 {vr(Sreg(kh,qh),4)}, {vr(slot(f),4)}, {ar((s*2+qh)*4,4)}, {c}')
            else:
                b = f - 32
                out.append(f'v_mfma_f32_16x16x32_bf16 {Oreg(b,qh)}, {vr(slot(f),4)}, {vr(V_P+4*qh,4)}, {Oreg(b,qh)}')
        return out
    a(f's_waitcnt vmcnt({vm.need(("Q", 31))})')
    a('s_barrier')
    q = LdsQ()
    zero = [f'v_mov_b32 v{192+i}, 0' for i in range(64)]
    for f in range(LA):
        a(rd(f)); q.issue(f)
    for f in range(32):
        a(f's_waitcnt lgkmcnt({q.need(f | 1)})')
        for m in mfmas(f, zero_c=True):
            a(m)
            if zero: a(zero.pop(0))
        if f + LA < 32:
            a(rd(f + LA)); q.issue(f + LA)
    a('s_nop 7')
    def max_all():
        ops = [f'v_max3_f32 v{V_MX}, v{V_S}, v{V_S+1}, v{V_S+2}']
        for i in range(6): ops.append(f'v_max3_f32 v{V_MX}, v{V_MX}, v{V_S+3+2*i}, v{V_S+4+2*i}')
        ops.append(f'v_max_f32 v{V_MX}, v{V_MX}, v{V_S+15}')
        return ops
    def rowmax2(d0, d1, tmp):
        for qh, dst in ((0, d0), (1, d1)):
            r0, r1 = Sreg(0, qh), Sreg(1, qh)
            a(f'v_max3_f32 v{dst}, v{r0}, v{r0+1}, v{r0+2}')
            a(f'v_max3_f32 v{dst}, v{dst}, v{r0+3}, v{r1}')
            a(f'v_max3_f32 v{dst}, v{dst}, v{r1+1}, v{r1+2}')
            a(f'v_max_f32 v{dst}, v{dst}, v{r1+3}')
        xreduce([d0, d1], 'v_max_f32', tmp)
    exp_ops = [f'v_exp_f32 v{V_E+i}, v{V_S+i}' for i in range(16)]
    sum_ops = [f'v_add_f32 v{V_L1 if (i >> 2) & 1 else V_L0}, v{V_L1 if (i >> 2) & 1 else V_L0}, v{V_E+i}' for i in range(16)]
    cvt_ops = []
    for qh in range(2):
        for kh in range(2):
            e = V_E + (kh * 2 + qh) * 4
            for i in range(2):
                cvt_ops.append(f'v_cvt_pk_bf16_f32 v{V_P+4*qh+2*kh+i}, v{e+2*i}, v{e+2*i+1}')
    rowmax2(V_F0, V_F1, 120)
    for qh, dst in ((0, V_F0), (1, V_F1)):
        for kh in range(2):
            for i in range(4): a(f'v_sub_f32 v{Sreg(kh,qh)+i}, v{Sreg(kh,qh)+i}, v{dst}')
        for i in range(4): a(f'v_sub_f32 v{V_NEGM+4*qh+i}, 0, v{dst}')
    for o in exp_ops: a(o)
    for o in zero: a(o)
    a(f'v_xor_b32 v{V_KA}, 0x8000, v{V_KA}')
    a(f's_getreg_b32 s{S_XCC}, hwreg(HW_REG_XCC_ID, 0, 4)')
    a(f's_add_u32 s{S_XCC}, s{S_XCC}, 1')
    a(f's_lshl_b32 s{S_FLO}, s{S_GRP}, 9')
    a(f's_add_u32 s{S_FLO}, s{S_FLO}, {WS_FLAG}')
    a(f'v_and_b32 v{V_FL}, 3, v0')
    a(f'v_lshlrev_b32 v{V_FL}, 7, v{V_FL}')
    a('s_waitcnt vmcnt(0)')
    a('s_barrier')
    def flag_store(off):
        lab = a.label(name + '_fs')
        a(f's_cmp_lg_u32 s{S_W}, 0')
        a(f's_cbranch_scc1 {lab}')
        a(f's_lshl_b32 s{S_T3}, s{S_SPLIT}, 7')
        a(f's_add_u32 s{S_T3}, s{S_T3}, s{S_FLO}')
        a(f'v_mov_b32 v{V_T0}, 0\n v_mov_b32 v{V_T1}, s{S_XCC}')
        a('s_mov_b64 exec, 1')
        a(f'buffer_store_dword v{V_T1}, v{V_T0}, {SRD}, s{S_T3} offen offset:{off} sc1')
        a('s_mov_b64 exec, -1')
        a(f'{lab}:')
    flag_store(0)
    st(2); st(8, True)
    if stamp: a('s_waitcnt lgkmcnt(0)')
    q = LdsQ()
    for f in range(LA):
        a(rd(f)); q.issue(f)

    L_loop = f'{name}_loop'
    rare = []
    border = list(range(8, 32)) + list(range(8))
    YB = 192
    stream = [('pv', b) for b in border] + [('yc', T, f) for T in range(4) for f in range(32)]
    NS = len(stream)
    WA = [V_VA, V_DV0, V_DV1, V_PF]
    def srd_(i):
        it = stream[i]
        if it[0] == 'pv': return f'ds_read_b128 {vr(slot(i),4)}, v{V_KA} offset:{it[1]*1024}'
        if chain and it[1]: return f'ds_read_b128 {vr(slot(i),4)}, v{WA[it[1]]} offset:{((it[2] & 15)*2 + (it[2] >> 4))*1024}'
        return f'ds_read_b128 {vr(slot(i),4)}, v{WA[it[1]]} offset:{it[2]*1024}'
    def ucload(f):
        ops = []
        if f % 4 == 0 and f: ops.append(f's_add_u32 s{S_UCO}, s{S_UCO}, 4096')
        ops.append((f'buffer_load_dwordx4 {ar(4*f,4)}, v{V_L16}, {SRD}, s{S_UCO} offen offset:{(f%4)*1024} sc1', ('uc', f)))
        return ops
    stubs = []
    class Dual:
        def __init__(self, op, tag, fast): self.op, self.tag, self.fast = op, tag, fast
    def em(o):
        if isinstance(o, Dual) and force_slow:
            emit(f'{o.op} sc1', o.tag); return
        if isinstance(o, Dual):
            lab = a.label(name + '_ds')
            a(f's_cbranch_vccnz {lab}')
            emit(f'{o.op} {o.fast}', o.tag)
            a(f'{lab}b:')
            stubs.append((lab, o.op))
            return
        if callable(o): o = o()
        if noyc and isinstance(o, tuple) and ((o[1] == 'x' and 'x' in noyc) or (isinstance(o[1], tuple) and o[1][0] in ('uc', 'wc') and o[1][0] in noyc)):
            vm.last[o[1]] = vm.last.get('dL', 0); return
        if isinstance(o, tuple): emit(*o)
        else: emit(o)
    nuc = [0]
    def body(last):
        tag = 'L' if last else 'M'
        L_r1, L_r1b, L_r2, L_r2b = [f'{name}_{x}{tag}' for x in ('r1', 'r1b', 'r2', 'r2b')]
        rare.append((L_r1, L_r1b, L_r2, L_r2b))
        fill = [[] for _ in range(128)]
        cap = [CAP - 1 if p % 2 == 0 else CAP for p in range(128)]
        for p in range(128):
            if p % 2 == 1 and ((p + 1) // 2) % wait_every == 0: cap[p] -= 1
        cap[127] -= 3
        def put(pos, ops, cost):
            if not isinstance(ops, list): ops = [ops]
            while cap[pos] < cost: pos += 1
            cap[pos] -= cost
            fill[pos] += ops
            return pos
        if not last: bw = f's_waitcnt vmcnt({1 if prefetch else 0})'
        else: bw = lambda: f's_waitcnt vmcnt({vm.need("dL")})'
        pb = put(2 * bar_pos + 1, [bw] + ([] if 'nobar' in dbg and not last else ['s_barrier']), 2)
        assert pb < 2 * (64 - LA)
        dk, dv = dma_ops(V_DK0, V_DK1, S_WCO if last else S_KOFF, S_KDMA), dma_ops(V_DV0, V_DV1, S_VOFF, S_VDMA)
        dm = dv + dk if last else dk + dv
        p = 0
        if last and not tailpf:
            p = put(p, (f'buffer_load_dword v{V_PFD}, v{V_FL}, {SRD}, s{S_FLO} offen sc1', 'poll'), dma_cost) + 1
            for c in range(npf, 3 if pfill else 0):
                p = put(p, f'buffer_load_dword v{V_T0}, v{V_PF}, {SRD}, s{S_PFS} offen', dma_cost) + 1
                p = put(p, f's_add_u32 s{S_PFS}, s{S_PFS}, 8192', 1) + 1
            if pfill: p = put(p, f'buffer_load_dword v{V_T0}, v{V_L16}, {SRD}, s{S_PFS} offen', dma_cost) + 1
        for pre, op in dm:
            if pre: p = put(p, pre, 1) + 1
            p = put(p, (op, 'dL'), dma_cost) + dma_gap
        if prefetch and not last:
            p = put(p, f'buffer_load_dword v{V_PFD}, v{V_PF}, s[96:99], s{S_PFS} offen {pf_flags}', dma_cost) + 1
        pdma = p
        assert pdma <= pb
        if last and not tailpf:
            p = put(56, [lambda: f's_waitcnt vmcnt({vm.need("poll")})', f'v_cmp_eq_u32 s[{S_T3}:{S_T3+1}], 0, v{V_PFD}'], 2) + 2
            p = put(p, [f's_cmp_eq_u64 s[{S_T3}:{S_T3+1}], 0', f's_cbranch_scc0 {name}_cfslow', f'{name}_cfok:'], 2) + 1
            p = put(p, f'v_cmp_ne_u32 s[{S_SLOW}:{S_SLOW+1}], s{S_XCC}, v{V_PFD}', 1) + 1
            assert p <= pdma + 4
        p = 68
        for o in max_all(): p = put(p, o, 1)
        p = put(p, f'v_cmp_lt_f32 vcc, {hex(THR)}, v{V_MX}', 1) + 1
        p = put(p + brgap, ([] if 'nobr1' in dbg else [f's_cbranch_vccnz {L_r1}']) + [f'{L_r1b}:'], 1) + 1
        for i, o in enumerate(exp_ops):
            if 'noexp' not in dbg: p = put(p, o, 2)
        p = 0
        for o in cvt_ops: p = put(p, o, 1)
        for o in sum_ops: p = put(p, o, 1)
        assert p < 60
        upd = [f's_add_u32 s{S_KOFF}, s{S_KOFF}, {TILE}', f's_add_u32 s{S_PFS}, s{S_PFS}, s{S_PFST}',
               f's_add_u32 s{S_VOFF}, s{S_VOFF}, {TILE}',
               f's_xor_b32 s{S_KDMA}, s{S_KDMA}, {TILE}',
               f's_add_u32 s{S_VDMA}, s{S_VDMA}, {TILE}',
               f's_cmp_ge_u32 s{S_VDMA}, {5*TILE}', f's_cselect_b32 s{S_T1}, {3*TILE}, 0',
               f's_sub_u32 s{S_VDMA}, s{S_VDMA}, s{S_T1}',
               f's_add_u32 s{S_VRD}, s{S_VRD}, {TILE}',
               f's_cmp_ge_u32 s{S_VRD}, {5*TILE}', f's_cselect_b32 s{S_VRD}, {2*TILE}, s{S_VRD}',
               f's_sub_u32 s{S_CNT}, s{S_CNT}, 1']
        if not last:
            p = pdma
            for o in upd: p = put(p, o, 1)
            put(2 * (32 - LA) + 1, f'v_xor_b32 v{V_KA}, 0x8000, v{V_KA}', 1)
            put(max(p + 1, 2 * (64 - LA) + 1), f'v_add_u32 v{V_VA}, s{S_VRD}, v{V_L16}', 1)
        else:
            p = 2 * (32 - LA) + 1
            for o in [f's_sub_u32 s{S_KOFF}, s{S_VDMA}, s{S_W8K}', f'v_add_u32 v{V_KA}, s{S_KOFF}, v{V_L16}',
                      f's_sub_u32 s{S_WB0}, s{S_KDMA}, s{S_W8K}', f's_xor_b32 s{S_WB1}, s{S_WB0}, {TILE}', f's_mov_b32 s{S_WB3}, s{S_VRD}',
                      f's_add_u32 s{S_WB2}, s{S_WB3}, s{S_KOFF}', f's_sub_u32 s{S_WB2}, {9*TILE}, s{S_WB2}']:
                p = put(p, o, 1) + 1
            p = max(pdma, 66)
            while p < 127 and nuc[0] < 32:
                fill[p] += ucload(nuc[0]); nuc[0] += 1
                p += uc_pace
        for f in range(64):
            if f % wait_every == 0:
                a(f's_waitcnt lgkmcnt({q.need(min(f + wait_every - 1, 63))})')
            mm = mfmas(f)
            a(mm[0])
            nf = f + LA
            if nf < 64 or not last:
                a(rd(nf % 64)); q.issue(nf % 64)
            else:
                a(srd_(nf - 64)); q.issue(('s', nf - 64))
            for o in fill[2 * f]: em(o)
            a(mm[1])
            for o in fill[2 * f + 1]: em(o)
        if 'nobr2' not in dbg: a(f's_cbranch_vccnz {L_r2}')
        a(f'{L_r2b}:')
    a(f's_lshl_b32 s{S_WCO}, s{S_SPLIT}, 17')
    a(f's_add_u32 s{S_WCO}, s{S_WCO}, {WS_WC}')
    a(f's_lshl_b32 s{S_UCO}, s{S_GRP}, 2')
    a(f's_add_u32 s{S_UCO}, s{S_UCO}, s{S_W}')
    a(f's_lshl_b32 s{S_UCO}, s{S_UCO}, 15')
    a(f's_add_u32 s{S_UCO}, s{S_UCO}, {WS_UC}')
    a(f's_mov_b32 s{S_PFS}, s{S_KOFF}')
    a(f's_mov_b32 s{S_PFST}, {TILE}')
    a(f's_mov_b32 s{S_PH}, 0')
    NPH = 4 if tailpf else 0
    a(f's_sub_u32 s{S_CNT}, s{S_CNT}, {NPH}')
    make_srd(a, 96, S_WS, 0, WS_SIZE)
    a(f's_lshl_b32 s{S_PB}, s{S_GRP}, 2')
    a(f's_add_u32 s{S_PB}, s{S_PB}, s{S_SPLIT}')
    a(f's_lshl_b32 s{S_PB}, s{S_PB}, 2')
    a(f's_add_u32 s{S_PB}, s{S_PB}, s{S_W}')
    a(f's_lshl_b32 s{S_PB}, s{S_PB}, 15')
    a(f's_add_u32 s{S_PB}, s{S_PB}, {WS_PART}')
    a('.p2align 6')
    a(f'{L_loop}:')
    body(False)
    a(f's_cmp_lg_u32 s{S_CNT}, 0')
    a(f's_cbranch_scc1 {L_loop}')
    if tailpf:
        a(f's_add_u32 s{S_PH}, s{S_PH}, 1')
        a(f's_mov_b32 s{S_CNT}, 1')
        a(f's_cmp_eq_u32 s{S_PH}, 5\n s_cbranch_scc1 {name}_ph5')
        a(f's_cmp_eq_u32 s{S_PH}, 4\n s_cbranch_scc1 {name}_ph4')
        a(f's_cmp_eq_u32 s{S_PH}, 3\n s_cbranch_scc1 {name}_ph3')
        a(f's_cmp_eq_u32 s{S_PH}, 2\n s_cbranch_scc1 {name}_ph2')
        a(f's_mov_b32 s96, s{S_X}\n s_mov_b32 s97, s{S_X+1}\n s_mov_b32 s98, 8192000')
        a(f'v_lshrrev_b32 v{V_PF}, 1, v0')
        a(f'v_lshlrev_b32 v{V_PF}, 10, v{V_PF}')
        a(f'v_and_b32 v{V_T0}, 1, v0')
        a(f'v_lshl_add_u32 v{V_PF}, v{V_T0}, 7, v{V_PF}')
        a(f's_lshl_b32 s{S_PFS}, s{S_QB}, 15')
        a(f's_lshl_b32 s{S_T1}, s{S_SPLIT}, 8')
        a(f's_add_u32 s{S_PFS}, s{S_PFS}, s{S_T1}')
        a(f's_branch {L_loop}')
        a(f'{name}_ph2:')
        a(f's_mov_b32 s96, s{S_WS}\n s_mov_b32 s97, s{S_WS+1}\n s_mov_b32 s98, {WS_SIZE}')
        a(f'v_mov_b32 v{V_PF}, v{V_FL}')
        a(f's_mov_b32 s{S_PFS}, s{S_FLO}')
        a(f's_branch {L_loop}')
        a(f'{name}_ph3:')
        a('s_waitcnt vmcnt(0)')
        a(f'v_cmp_eq_u32 s[{S_T3}:{S_T3+1}], 0, v{V_PFD}')
        a(f'v_lshlrev_b32 v{V_PF}, 7, v0')
        a(f's_lshl_b32 s{S_PFS}, s{S_SPLIT}, 13')
        a(f's_add_u32 s{S_PFS}, s{S_PFS}, s{S_UCO}')
        a('s_nop 1')
        a(f's_cmp_eq_u64 s[{S_T3}:{S_T3+1}], 0')
        a(f's_cbranch_scc0 {name}_cfslow')
        a(f'{name}_cfok:')
        a(f's_branch {L_loop}')
        a(f'{name}_ph4:')
        a(f'v_lshlrev_b32 v{V_PF}, 6, v0')
        a(f's_and_b32 s{S_PFS}, s{S_TILE}, 7')
        a(f's_lshl_b32 s{S_PFS}, s{S_PFS}, 2')
        a(f's_add_u32 s{S_PFS}, s{S_PFS}, s{S_W}')
        a(f's_lshl_b32 s{S_PFS}, s{S_PFS}, 12')
        a(f's_add_u32 s{S_PFS}, s{S_PFS}, s{S_WCO}')
        a(f's_branch {L_loop}')
        a(f'{name}_ph5:')
    st(3); st(9, True)
    if stamp: a('s_waitcnt lgkmcnt(0)')
    body(True)
    st(15)
    if stamp: a('s_waitcnt lgkmcnt(0)')
    def smf(i):
        it = stream[i]; out = []
        if chain and it[0] == 'yc' and it[1]:
            T, f = it[1], it[2]; ch = f >> 4; qh = (f & 1) ^ ((f >> 1) & 1)
            d = vr(YB + 8 * (2 * T + ch) + 4 * qh, 4)
            for k in range(2):
                s = (f & 14) + k
                out.append(f'v_mfma_f32_16x16x32_bf16 {d}, {vr(slot((i & ~1) + k),4)}, {ar((s*2+qh)*4,4)}, {d if s else 0}')
            return out
        for qh in ((1, 0) if (snake and (i & 1)) else (0, 1)):
            if it[0] == 'pv':
                out.append(f'v_mfma_f32_16x16x32_bf16 {Oreg(it[1],qh)}, {vr(slot(i),4)}, {vr(V_P+4*qh,4)}, {Oreg(it[1],qh)}')
            else:
                T, f = it[1], it[2]; s, ch = f >> 1, f & 1
                d = vr(YB + 8 * (2 * T + ch) + 4 * qh, 4)
                out.append(f'v_mfma_f32_16x16x32_bf16 {d}, {vr(slot(i),4)}, {ar((s*2+qh)*4,4)}, {d if s else 0}')
        return out
    a(f's_mov_b64 vcc, s[{S_SLOW}:{S_SLOW+1}]' if not force_slow else 's_mov_b64 vcc, -1')
    for o in cvt_ops: a(o)
    a(f's_lshl_b32 s{S_T0}, s{S_GRP}, 2')
    a(f'v_add_u32 v{WA[0]}, s{S_WB0}, v{V_L16}')
    pend = [(0, o, 1) for o in sum_ops]
    for i, sb in enumerate((S_WB1, S_WB2, S_WB3)): pend.append((0, f'v_add_u32 v{WA[i+1]}, s{sb}, v{V_L16}', 1))
    rot = 0
    for qd in range(1, 4):
        hdr = [f's_add_u32 s{S_PO}, s{S_PB}, {(qd-1)*8192}']
        for gm in range(4):
            for qh in range(2):
                b0 = 8 * qd + 2 * gm
                ready = 2 * (border.index(b0 + 1) + 1) + 6
                idx = gm * 2 + qh
                if idx == 0:
                    for h in hdr: pend.append((0, h, 1))
                if idx == 4: pend.append((ready, f's_add_u32 s{S_PO}, s{S_PO}, 4096', 1))
                tb = V_S + 8 * (rot % 2); pk = V_E + 4 * (rot % 4); rot += 1
                srcs = []
                for b in range(2):
                    for r in range(4):
                        o = Obase(b0 + b, qh) + r
                        if qd == 1: srcs.append(o)
                        else:
                            pend.append((ready, f'v_accvgpr_read_b32 v{tb+4*b+r}, a{o}', 1)); srcs.append(tb + 4 * b + r)
                for r in range(4): pend.append((ready, f'v_cvt_pk_bf16_f32 v{pk+r}, v{srcs[2*r]}, v{srcs[2*r+1]}', 1))
                pend.append((ready, Dual(f'buffer_store_dwordx4 {vr(pk,4)}, v{V_L16}, {SRD}, s{S_PO} offen offset:{(idx%4)*1024}', 'part', fast_st), 2))
    def stats_block():
        xreduce([V_L0, V_L1], 'v_add_f32', 124)
        a(f'v_mov_b32 v120, v{V_L0}')
        a(f'v_sub_f32 v121, 0, v{V_NEGM}')
        a(f'v_mov_b32 v122, v{V_L1}')
        a(f'v_sub_f32 v123, 0, v{V_NEGM+4}')
        a(f's_add_u32 s{S_T1}, s{S_PB}, {3*8192}')
        em(Dual(f'buffer_store_dwordx4 v[120:123], v{V_L16}, {SRD}, s{S_T1} offen', 'part', fast_st))
    XV = V_P
    def x_setup():
        a(f'v_lshrrev_b32 v{V_T0}, 4, v0')
        a(f'v_and_b32 v{V_T1}, 15, v0')
        a(f'v_xor_b32 v{V_T2}, v{V_T0}, v{V_T1}')
        a(f'v_lshlrev_b32 v{V_T2}, 4, v{V_T2}')
        a(f'v_lshl_add_u32 v{XV}, v{V_T0}, 10, v{V_T2}')
        for i in range(1, 4): a(f'v_xor_b32 v{XV+i}, {i*64}, v{XV}')
        a(f's_add_u32 s{S_KOFF}, s{S_KOFF}, s{S_W8K}')
        a(f'v_lshl_add_u32 v{XV+4}, v{V_T1}, 8, v{V_T2}')
        a(f'v_add_u32 v{XV+4}, s{S_KOFF}, v{XV+4}')
        for i in range(1, 4): a(f'v_xor_b32 v{XV+4+i}, {i*64}, v{XV+4}')
        a(f'v_add_u32 v{V_XO}, s{S_KOFF}, v{V_L16}')
        a(f's_lshl_b32 s{S_T4}, s{S_QB}, 15')
        a(f's_lshl_b32 s{S_T1}, s{S_SPLIT}, 8')
        a(f's_add_u32 s{S_T4}, s{S_T4}, s{S_T1}')
    def wc_dma(T):
        out = []
        first = [f's_add_u32 s{S_WCO}, s{S_WCO}, {TILE}', f's_add_u32 s{S_T2}, s{(S_WB0, S_WB1, S_WB2, S_WB3)[T]}, s{S_W8K}']
        for pre, op in dma_ops(V_DK0, V_DK1, S_WCO, S_T2):
            g = first; first = []
            if pre: g += [pre, 's_nop 0']
            out.append(g + [(op, ('wc', T))])
        return out
    dq = [ucload(f) for f in range(nuc[0], 32)]
    def xdma():
        return [[f's_add_u32 m0, s{S_KOFF}, {k*1024}', f's_add_u32 s{S_T1}, s{S_T4}, {k*4096}',
                 (f'buffer_load_dwordx4 v{XV+(k&3)}, {SRX}, s{S_T1} offen lds', 'x')] for k in range(8)]
    def pop():
        _, op, c = pend.pop(0); em(op)
        if isinstance(op, Dual):
            for _ in range(ld_per_st):
                if dq:
                    for o in dq.pop(0): em(o)
        return c
    lim = [64]
    def run(i0, i1, every=0):
        for i in range(i0, i1):
            it = stream[i]; w = []
            if it[0] == 'yc' and it[1] == 0 and it[2] % 2 == 0: w.append(f'vmcnt({min(63, vm.need(("uc", it[2] | 1)))})')
            if i % 2 == 0: w.append(f'lgkmcnt({q.need(("s", min(i + 1, NS - 1)))})')
            if w: a('s_waitcnt ' + ' '.join(w))
            mm = smf(i)
            for h in range(2):
                pos = 2 * i + h
                a(mm[h])
                budget = pv_budget
                if h == 0 and i + LA < NS:
                    nx = stream[i + LA]
                    if nx[0] == 'yc' and nx[2] == 0 and nx[1] in (1, 2):
                        a(f's_waitcnt vmcnt({min(63, vm.need(("wc", 1 if nx[1] == 1 else 3)))})')
                        a('s_barrier')
                    a(srd_(i + LA)); q.issue(('s', i + LA)); budget -= 1
                while pend and pend[0][0] <= pos and budget > 0: budget -= pop()
                if every and dq and pos % every == 1:
                    for o in dq.pop(0): em(o)
    run(0, 32)
    a('s_barrier')
    x_setup()
    while pend: pop()
    stats_block()
    dq += wc_dma(1) + wc_dma(2) + wc_dma(3)
    while len(dq) > 24 - flag_after:
        for o in dq.pop(0): em(o)
    st(4)
    a(f's_lshl_b32 s{S_T3}, s{S_SPLIT}, 7')
    a(f's_add_u32 s{S_T3}, s{S_T3}, s{S_FLO}')
    a(f's_lshl_b32 s{S_PH}, s{S_W}, 2')
    a(f's_add_u32 s{S_FLO}, s{S_FLO}, s{S_PH}')
    a(f's_add_u32 s{S_T3}, s{S_T3}, s{S_PH}')
    a(f'v_mov_b32 v{V_T0}, 0\n v_mov_b32 v{V_T1}, 1')
    a(f's_lshl_b32 s{S_CNT}, 1, s{S_SPLIT}')
    a('s_mov_b64 exec, 1')
    a(f's_waitcnt vmcnt({vm.need("part")})')
    em(Dual(f'buffer_store_dword v{V_T1}, v{V_T0}, {SRD}, s{S_T3} offen offset:4', None, ''))
    a('s_mov_b64 exec, -1')
    st(5)
    if stamp: a('s_waitcnt lgkmcnt(0)')
    poll = f'buffer_load_dword v{V_PFD}, v{V_FL}, {SRD}, s{S_FLO} offen offset:4 sc1'
    dq.insert(min(poll_after, len(dq)), [(poll, 'poll')])
    STR = [56, 60, 124]
    def getmask(w):
        a(f's_waitcnt vmcnt({w})')
        a(f'v_cmp_eq_u32 vcc, 1, v{V_PFD}')
        a('s_nop 3')
        a(f's_and_b32 s{S_PFS}, vcc_lo, 15')
        a(f's_andn2_b32 s{S_PFS}, s{S_PFS}, s{S_CNT}')
        a(f's_or_b32 s{S_CNT}, s{S_CNT}, s{S_PFS}')
    def slot_hdr(k):
        return [f's_sub_u32 s{S_T1}, s{S_SPLIT}, {k+1}', f's_and_b32 s{S_T1}, s{S_T1}, 3', f's_bitcmp1_b32 s{S_PFS}, s{S_T1}']
    def slot_adr():
        return [f's_add_u32 s{S_T1}, s{S_T1}, s{S_T0}', f's_lshl_b32 s{S_T1}, s{S_T1}, 2', f's_add_u32 s{S_T1}, s{S_T1}, s{S_W}',
                f's_lshl_b32 s{S_PO}, s{S_T1}, 15', f's_add_u32 s{S_T1}, s{S_PO}, {WS_PART + 3*8192}']
    def slot_loads(k, vo):
        out = [[f'buffer_load_dwordx4 {vr(STR[k],4)}, v{vo}, {SRD}, s{S_T1} offen sc1']]
        for h4 in range(2):
            for i in range(4):
                pre = [f's_add_u32 s{S_T1}, s{S_PO}, {WS_PART + k*8192 + h4*4096}'] if i == 0 else []
                out.append(pre + [f'buffer_load_dwordx4 {ar(128+(k*8+h4*4+i)*4,4)}, v{vo}, {SRD}, s{S_T1} offen offset:{i*1024} sc1'])
        return out
    def check():
        getmask(0)
        for k in range(3):
            lab = a.label(name + '_ck')
            for o in slot_hdr(k): a(o)
            a(f's_cbranch_scc0 {lab}')
            for o in slot_adr(): a(o)
            for g in slot_loads(k, V_L16):
                for o in g: a(o)
            a(f'{lab}:')
    run(32, chk_at, every=2)
    assert not dq
    st(20)
    if stamp: a('s_waitcnt lgkmcnt(0)')
    getmask(vm.need('poll'))
    for k in range(3):
        first = slot_hdr(k) + [f's_cselect_b32 s{S_PH}, 0, 0x80000000', f'v_or_b32 v{V_T2}, s{S_PH}, v{V_L16}'] + slot_adr()
        for g in slot_loads(k, V_T2):
            dq.append(first + g); first = []
    dq += xdma() + [[poll]]
    run(chk_at, NS, every=r_pace)
    assert not dq, len(dq)
    st(21)
    a(f's_waitcnt vmcnt({vm.need("x")})')
    st(22)
    if stamp: a('s_waitcnt lgkmcnt(0)')
    for idx in range(8):
        gm, qh = idx >> 1, idx & 1
        a(f'ds_read_b128 {vr(V_S+4*idx,4)}, v{XV+4+gm} offset:{qh*4096}')
    a('s_nop 3')
    for idx in range(8):
        gm, qh = idx >> 1, idx & 1
        xb = V_S + 4 * idx
        a(f's_waitcnt lgkmcnt({7-idx})')
        for i in range(4):
            a(f'v_lshlrev_b32 v{64+2*i}, 16, v{xb+i}')
            a(f'v_and_b32 v{64+2*i+1}, 0xffff0000, v{xb+i}')
        for i in range(4):
            y = YB + 8 * (2 * gm + (i >> 1)) + 4 * qh + 2 * (i & 1)
            a(f'v_pk_add_f32 {vr(y,2)}, {vr(y,2)}, {vr(64+2*i,2)}')
    st(23)
    a(f'{name}_spin:')
    check()
    a(f's_cmp_eq_u32 s{S_CNT}, 15')
    a(f's_cbranch_scc1 {name}_got')
    a(poll)
    a(f's_branch {name}_spin')
    a(f'{name}_got:')
    st(6)
    a('s_waitcnt vmcnt(0)')
    st(24)
    allst = [120] + STR
    for qh in range(2):
        t = V_T0 + qh
        a(f'v_max3_f32 v{t}, v{allst[0]+2*qh+1}, v{allst[1]+2*qh+1}, v{allst[2]+2*qh+1}')
        a(f'v_max_f32 v{t}, v{t}, v{allst[3]+2*qh+1}')
    for qh in range(2):
        for b in allst: a(f'v_sub_f32 v{b+2*qh+1}, v{b+2*qh+1}, v{V_T0+qh}')
    for qh in range(2):
        for b in allst: a(f'v_exp_f32 v{b+2*qh+1}, v{b+2*qh+1}')
    for qh in range(2):
        a(f'v_mul_f32 v{V_T0+qh}, v{allst[0]+2*qh}, v{allst[0]+2*qh+1}')
    for b in allst[1:]:
        for qh in range(2): a(f'v_fmac_f32 v{V_T0+qh}, v{b+2*qh}, v{b+2*qh+1}')
    for qh in range(2): a(f'v_rcp_f32 v{V_T0+qh}, v{V_T0+qh}')
    a('s_nop 0')
    for qh in range(2):
        for b in allst: a(f'v_mul_f32 v{b+2*qh+1}, v{b+2*qh+1}, v{V_T0+qh}')
    for i in range(4): a(f'v_or_b32 v{XV+i}, s{S_VALID}, v{XV+i}')
    for qh in range(2):
        for gm in range(4):
            idx = gm * 2 + qh
            ys = [YB + 8 * (2 * gm + (i >> 1)) + 4 * qh + 2 * (i & 1) for i in range(4)]
            for i in range(4):
                a(f'v_pk_fma_f32 {vr(ys[i],2)}, {vr(ys[i]-64,2)}, {vr(120+2*qh,2)}, {vr(ys[i],2)} op_sel:[0,1,0] op_sel_hi:[1,1,1]')
            for k in range(3):
                ub = 64 + 12 * k
                for i in range(4): a(f'v_accvgpr_read_b32 v{ub+8+i}, a{128+(k*8+idx)*4+i}')
                for i in range(4):
                    a(f'v_lshlrev_b32 v{ub+2*i}, 16, v{ub+8+i}')
                    a(f'v_and_b32 v{ub+2*i+1}, 0xffff0000, v{ub+8+i}')
                for i in range(4):
                    a(f'v_pk_fma_f32 {vr(ys[i],2)}, {vr(ub+2*i,2)}, {vr(STR[k]+2*qh,2)}, {vr(ys[i],2)} op_sel:[0,1,0] op_sel_hi:[1,1,1]')
            ob = 100 + 4 * (gm & 1)
            for i in range(4): a(f'v_cvt_pk_bf16_f32 v{ob+i}, v{ys[i]}, v{ys[i]+1}')
            a(f'ds_write_b128 v{XV+4+gm}, {vr(ob,4)} offset:{qh*4096}')
            if qh == 1 and gm == 0:
                a('s_waitcnt lgkmcnt(1)')
                for i in range(4):
                    a(f's_add_u32 s{S_T1}, s{S_T4}, {i*4096}')
                    a(f'buffer_store_dwordx4 {vr(V_S+4*i,4)}, v{XV+i}, {SRO}, s{S_T1} offen {out_flags}')
        for i in range(4): a(f'ds_read_b128 {vr(V_S+16*qh+4*i,4)}, v{V_XO} offset:{(4*qh+i)*1024}')
    for i in range(4):
        a(f's_add_u32 s{S_T1}, s{S_T4}, {(4+i)*4096}')
        a(f's_waitcnt lgkmcnt({3-i})')
        a(f'buffer_store_dwordx4 {vr(V_S+16+4*i,4)}, v{XV+i}, {SRO}, s{S_T1} offen {out_flags}')
    if stamp:
        a('s_waitcnt vmcnt(0)')
        st(7)
        a('s_waitcnt lgkmcnt(0)')
        a(f's_cmp_lg_u32 s{S_W}, 0')
        a(f's_cbranch_scc1 {name}_end')
        a(f's_lshl_b32 s{S_T1}, s2, 7')
        a(f's_add_u32 s{S_T1}, s{S_T1}, {WS_STAMP}')
        for i in range(32): a(f'v_mov_b32 v{16+i}, s{64+i}')
        a(f'v_mov_b32 v{V_T0}, 0')
        a('s_mov_b64 exec, 1')
        for i in range(8):
            a(f'buffer_store_dwordx4 {vr(16+4*i,4)}, v{V_T0}, {SRD}, s{S_T1} offen offset:{16*i}')
        if dbgout:
            a(f's_cmp_lg_u32 s2, 0\n s_cbranch_scc1 {name}_end')
            a('s_load_dwordx2 s[4:5], s[0:1], 80')
            a(f's_mov_b32 s{S_T1}, {WS_STAMP + 131072}')
            a(f'buffer_load_dwordx4 v[48:51], v{V_T0}, {SRD}, s{S_T1} offen sc1')
            a(f's_mov_b32 s{S_T1}, {WS_STAMP + 65536}')
            a(f'buffer_load_dwordx4 v[52:55], v{V_T0}, {SRD}, s{S_T1} offen sc1')
            a(f'buffer_load_dwordx4 v[56:59], v{V_T0}, {SRD}, s{S_T1} offen offset:16 sc1')
            a('s_waitcnt vmcnt(0) lgkmcnt(0)')
            a('s_sub_u32 s12, s4, 0\n s_subb_u32 s13, s5, 0\n s_mov_b32 s14, 256\n s_mov_b32 s15, 0x20000')
            src = [50, 52, 54, 56, 58, 16, 18, 20, 22, 30]
            for i, r in enumerate(src): a(f'v_sub_u32 v{64+i}, v{r}, v48')
            for i in range(3): a(f'buffer_store_dwordx4 {vr(64+4*i,4)}, v{V_T0}, s[12:15], 0 offen offset:{16*i}')
            if spin is not None:
                ra, rb = spin
                a(f'v_sub_u32 v80, v{rb}, v{ra}')
                a('v_add_u32 v80, 2000, v80')
                a('v_add_u32 v80, v30, v80')
                a('s_nop 1')
                a('v_readfirstlane_b32 s20, v80')
                a(f'{name}_sp:')
                a('s_memrealtime s[22:23]')
                a('s_waitcnt lgkmcnt(0)')
                a('s_sub_u32 s21, s20, s22')
                a('s_cmp_gt_i32 s21, 0')
                a(f's_cbranch_scc1 {name}_sp')
    a(f'{name}_end:')
    a('s_endpgm')
    if merged: p3slow()
    for lab, op in stubs:
        a(f'{lab}:')
        a(f'{op} sc1')
        a(f's_branch {lab}b')
    a(f'{name}_cfslow:')
    a('s_sleep 2')
    a(f'buffer_load_dword v{V_PFD}, v{V_FL}, {SRD}, s{S_FLO} offen sc1')
    a('s_waitcnt vmcnt(0)')
    a(f'v_cmp_eq_u32 s[{S_T3}:{S_T3+1}], 0, v{V_PFD}')
    a('s_nop 3')
    a(f's_cmp_eq_u64 s[{S_T3}:{S_T3+1}], 0')
    a(f's_cbranch_scc0 {name}_cfslow')
    a(f's_branch {name}_cfok')
    for (L_r1, L_r1b, L_r2, L_r2b) in rare:
        a(f'{L_r1}:')
        rowmax2(V_T1, V_T2, 120)
        for qh, dst in ((0, V_T1), (1, V_T2)):
            a(f'v_max_f32 v{dst}, 0, v{dst}')
            fr = V_F1 if qh else V_F0
            a(f'v_sub_f32 v{fr}, 0, v{dst}')
            a(f'v_exp_f32 v{fr}, v{fr}')
            for kh in range(2):
                for i in range(4): a(f'v_sub_f32 v{Sreg(kh,qh)+i}, v{Sreg(kh,qh)+i}, v{dst}')
            for i in range(4): a(f'v_sub_f32 v{V_NEGM+4*qh+i}, v{V_NEGM+4*qh+i}, v{dst}')
            l = V_L1 if qh else V_L0
            a(f'v_mul_f32 v{l}, v{l}, v{fr}')
        a(f's_branch {L_r1b}')
        a(f'{L_r2}:')
        a('s_nop 7')
        for beta in range(32):
            for qh in range(2):
                fr = V_F1 if qh else V_F0
                b = Obase(beta, qh)
                if beta < 16:
                    for r in range(4): a(f'v_mul_f32 v{b+r}, v{b+r}, v{fr}')
                else:
                    for r in range(4): a(f'v_accvgpr_read_b32 v{120+r}, a{b+r}')
                    for r in range(4): a(f'v_mul_f32 v{120+r}, v{120+r}, v{fr}')
                    for r in range(4): a(f'v_accvgpr_write_b32 a{b+r}, v{120+r}')
        a(f's_branch {L_r2b}')
    a('code_end:')
    a('s_endpgm')
    kernel_desc(a, name, 512, 102, 256)
```

```python
from asmlib import *
from layout import *
from attn2 import LdsQ
from k2 import f2h, VmQ, code_prefetch

V_DK0, V_DK1, V_DV0, V_DV1, V_KA, V_VA, V_L16, V_L0, V_L1, V_MX, V_F0, V_F1, V_T0, V_T1, V_T2 = range(1, 16)
V_S, V_E, V_P, V_NEGM, V_RING = 16, 32, 48, 56, 64
V_PF, V_PFD, V_XO, V_FL = 116, 117, 118, 119
S_X, S_OUTP, S_WS, S_SRD, S_SRX, S_SRO = 4, 6, 40, 8, 12, 16
(S_KOFF, S_VOFF, S_KDMA, S_VDMA, S_VRD, S_CNT, S_W, S_QB, S_SPLIT, S_T0, S_T1, S_VALID, S_GRP, S_W8K, S_PFOFF, S_T2) = range(20, 36)
S_TILE, S_B125, S_T3, S_T4 = 36, 37, 38, 39
S_WB0, S_WB1, S_WB2, S_WB3, S_UCO, S_WCO, S_FLO, S_PO = range(56, 64)
S_PFS, S_PFST, S_PH, S_XCC, S_SLOW, S_PB = 44, 45, 46, 47, 48, 54

def Obase(beta, qh): return 128 + 8 * (beta % 16) + 4 * qh
def Oreg(beta, qh): return vr(Obase(beta, qh), 4) if beta < 16 else ar(Obase(beta, qh), 4)

def gen_main(a, name, dma_gap=3, dma_cost=2, CAP=2, bar_pos=50, NR=13, LA=10, wait_every=4, THR=0x41800000,
             stamp=False, snake=True, prefetch=2, pf=True, pv_pace=4, pv_budget=6, out_flags='sc1', npf=0, fast_st='nt', flag_at=140, force_slow=True, tailst=False, pfill=False, st_pace=9, ld_pace=2, yc_budget=2, bg_pace=14, tailpf=True, pf_flags='sc1', uc_pace=4, chk_at=60, merged=True, gst=False, o2={}, hk=(-48, -24, -74), vchk=16, dbg=(), dbgout=False, spin=None, brgap=3, chain=True, poll_after=8, r_pace=5, chk2_at=0, noyc=False, ld_per_st=0, flag_after=0, rounds=((56, 3), (112, 3))):
    SRD, SRX, SRO = [f's[{b}:{b+3}]' for b in (S_SRD, S_SRX, S_SRO)]
    def st(i, cyc=False):
        gs = [1, 2, 3, 4, 5, 6, 8, 9, 12, 13, 14, 15]
        if i >= 30:
            if not gst: return
            i = gs[i - 30]; cyc = True
        elif gst and i in gs: return
        if tailst and 10 <= i <= 14: return
        if 20 <= i < 26:
            if not tailst: return
            i -= 10
        if i >= 26: i -= 16
        if stamp:
            a(f'{"s_memtime" if cyc else "s_memrealtime"} s[100:101]')
            a('s_waitcnt lgkmcnt(0)')
            a(f's_mov_b32 s{80+i}, s100')
    kernel_begin(a, name)
    a(f's_cmp_ge_u32 s2, 256\n s_cbranch_scc1 {name}_end')
    a(f's_load_dwordx2 s[{S_WS}:{S_WS+1}], s[0:1], 88')
    a(f's_load_dwordx2 s[{S_X}:{S_X+1}], s[0:1], 0')
    a(f's_load_dwordx2 s[{S_OUTP}:{S_OUTP+1}], s[0:1], 72')
    st(0)
    if pf: code_prefetch(a, name, f'{name}_end', 13, 127, 42, 256, 0, 98304 if merged else 65536)
    a(f'v_lshrrev_b32 v{V_T0}, 6, v0')
    a(f'v_and_b32 v0, 63, v0')
    a(f'v_readfirstlane_b32 s{S_W}, v{V_T0}')
    a(f'v_lshlrev_b32 v{V_L16}, 4, v0')
    a(f's_and_b32 s{S_T0}, s2, 7')
    a(f's_lshr_b32 s{S_T1}, s2, 3')
    a(f's_and_b32 s{S_SPLIT}, s{S_T1}, 3')
    a(f's_lshr_b32 s{S_T1}, s{S_T1}, 2')
    a(f's_lshl_b32 s{S_PFOFF}, s{S_T1}, 2')
    a(f's_and_b32 s{S_TILE}, s{S_T0}, 3')
    a(f's_lshl_b32 s{S_TILE}, s{S_TILE}, 3')
    a(f's_add_u32 s{S_TILE}, s{S_TILE}, s{S_T1}')
    a(f's_lshr_b32 s{S_T0}, s{S_T0}, 2')
    a(f's_lshl_b32 s{S_GRP}, s{S_T0}, 5')
    a(f's_add_u32 s{S_GRP}, s{S_GRP}, s{S_TILE}')
    a(f's_mul_i32 s{S_B125}, s{S_T0}, 125')
    ucst = []
    def late_setup():
        a(f's_lshl_b32 s{S_QB}, s{S_TILE}, 2')
        a(f's_add_u32 s{S_QB}, s{S_QB}, s{S_W}')
        a(f's_cmp_lt_u32 s{S_QB}, 125')
        a(f's_cselect_b32 s{S_VALID}, 0, 0x80000000')
        a(f's_min_u32 s{S_QB}, s{S_QB}, 124')
        a(f's_add_u32 s{S_QB}, s{S_QB}, s{S_B125}')
        a(f's_mul_i32 s{S_T1}, s{S_SPLIT}, 31')
        a(f's_cmp_lg_u32 s{S_SPLIT}, 0')
        a(f's_addc_u32 s{S_T1}, s{S_T1}, s{S_B125}')
        a(f's_cmp_lg_u32 s{S_SPLIT}, 0')
        a(f's_cselect_b32 s{S_CNT}, 29, 30')
        a(f's_lshl_b32 s{S_KOFF}, s{S_T1}, 15')
        a(f's_add_u32 s{S_VOFF}, s{S_KOFF}, {WS_VT}')
        if WS_XA: a(f's_add_u32 s{S_KOFF}, s{S_KOFF}, {WS_XA}')
        a(f's_lshl_b32 s{S_W8K}, s{S_W}, 13')
        a(f'v_add_u32 v{V_DK0}, s{S_W8K}, v{V_L16}')
        a(f'v_add_u32 v{V_DK1}, 4096, v{V_DK0}')
        make_srd(a, S_SRX, S_X, 0, 8192000)
        make_srd(a, S_SRO, S_OUTP, 0, 8192000)
        a(f's_mov_b32 s{S_PFS}, {f2h(1/512)}')
    a('s_waitcnt lgkmcnt(0)')
    make_srd(a, S_SRD, S_WS, 0, WS_SIZE)
    vm = VmQ()
    def emit(o, tag=None):
        a(o)
        if o.startswith('buffer_'): vm.issue(tag)
    def dma_ops(v0, v1, soff, sbase):
        ops = []
        for g in range(2):
            for i in range(4):
                pre = None
                if i == 0:
                    pre = f's_mov_b32 m0, s{sbase}' if g == 0 else f's_add_u32 m0, s{sbase}, 4096'
                ops.append((pre, f'buffer_load_dwordx4 v{v0 if g == 0 else v1}, {SRD}, s{soff} offen offset:{i*1024} {"sc1" if v0 == V_DV0 else ""} lds'))
        return ops
    def emit_dma_now(tag, *args):
        for pre, op in dma_ops(*args):
            if pre: a(pre); a('s_nop 0')
            emit(op, tag)
    def xreduce(regs, op, tmp):
        for sw in ('v_permlane16_swap_b32', 'v_permlane32_swap_b32'):
            for i, r in enumerate(regs): a(f'v_mov_b32 v{tmp+i}, v{r}')
            if len(regs) < 3: a('s_nop 1')
            else: a('s_nop 0')
            for i, r in enumerate(regs): a(f'{sw} v{tmp+i}, v{r}')
            a('s_nop 1')
            for i, r in enumerate(regs): a(f'{op} v{r}, v{r}, v{tmp+i}')

    import k2c, sys
    late_setup()
    TB = 3 * TILE; GN = TB + 2560; GS = 584; CV = GN + 64 * GS; CS = 144
    S_VF = [42, 43, 49]; S_B10 = [50, 51, 52]; S_BT, S_RT = 53, 55
    S_CG = 64
    V_PL, V_PQ, V_HD = 26, 27, 28
    STL = [[112, 116], [120, 124], [164, 172]]
    a(f's_lshr_b32 s{S_BT}, s{S_TILE}, 1')
    a(f's_lshr_b32 s{S_RT}, s{S_GRP}, 1')
    def poll_ops(first_expr, ngrp, kind, dst, tag):
        pass
    def slowpoll(lab, dst, vo, so):
        slows.append((lab, dst, vo, so))
    slows = []
    def h_poll1():
        assert hk[2] < hk[0]
        chk('fq', V_PQ, 11, S_SLOW, 'pollq')
        a(f'v_lshrrev_b32 v11, 3, v0')
        a(f'v_min_u32 v11, 2, v11')
        a(f's_sub_u32 s{S_T3}, s{S_BT}, 1')
        a(f'v_add_u32 v11, s{S_T3}, v11')
        a(f'v_med3_i32 v11, v11, 0, 15')
        a(f'v_and_b32 v13, 7, v0')
        a(f'v_lshl_add_u32 v11, v11, 3, v13')
        a(f'v_lshlrev_b32 v11, 2, v11')
        a(f's_and_b32 s{S_T3}, s{S_GRP}, 32')
        a(f's_lshl_b32 s{S_T3}, s{S_T3}, 4')
        a(f's_add_u32 s{S_T3}, s{S_T3}, {WS_FLAG2 + 1024}')
        emit(f'buffer_load_dword v{V_PL}, v11, {SRD}, s{S_T3} offen sc1', 'poll1')
    def chk(lab, dst, vo, so, tag):
        a(f's_waitcnt vmcnt({vm.need(tag)})')
        a(f'v_cmp_ne_u32 vcc, 1, v{dst}')
        a(f's_cbranch_vccnz {name}_{lab}s')
        a(f'{name}_{lab}k:')
        slows.append((lab, dst, vo, so))
    def h_loads1():
        chk('f1', V_PL, 11, S_T3, 'poll1')
        out = []
        for rnd in range(3):
            pre = [f's_lshl_b32 s{S_T4}, s{S_BT}, 3']
            if rnd < 2: pre.append(f's_add_u32 s{S_B10[rnd]}, s{S_W}, {4*rnd}')
            else: pre += [f's_cmp_lt_u32 s{S_W}, 2', f's_cselect_b32 s{S_T3}, 8, 4', f's_add_u32 s{S_B10[2]}, s{S_W}, s{S_T3}']
            pre += [f's_add_u32 s{S_T3}, s{S_T4}, s{S_B10[rnd]}', f's_sub_u32 s{S_T3}, s{S_T3}, 1', f's_cmp_lt_u32 s{S_T3}, 125',
                    f's_cselect_b32 s{S_VF[rnd]}, 1.0, 0', f's_cselect_b32 s{S_T3}, s{S_T3}, s{S_T4}', f's_add_u32 s{S_T3}, s{S_T3}, s{S_B125}',
                    f's_lshl_b32 s{S_T3}, s{S_T3}, 11', f's_add_u32 s{S_T3}, s{S_T3}, {WS_ST}']
            for h in range(2):
                out.append(pre + [(f'buffer_load_dwordx4 {vr(STL[rnd][h],4)}, v{V_L16}, {SRD}, s{S_T3} offen offset:{h*1024} sc1', 'st')]); pre = []
        pre = [f's_and_b32 s{S_PH}, s{S_W}, 1', f's_mul_i32 s{S_T3}, s{S_PH}, 9', f's_add_u32 s{S_T3}, s{S_T3}, s{S_T4}', f's_sub_u32 s{S_T3}, s{S_T3}, 1',
               f's_cmp_lt_u32 s{S_T3}, 125', f's_cselect_b32 s{S_T3}, s{S_T3}, s{S_T4}', f's_add_u32 s{S_T3}, s{S_T3}, s{S_B125}', f's_lshl_b32 s{S_T3}, s{S_T3}, 15',
               f's_lshr_b32 s{S_XCC}, s{S_W}, 1', f's_lshl1_add_u32 s{S_XCC}, s{S_CG}, s{S_XCC}', f's_lshl_b32 s{S_XCC}, s{S_XCC}, 11', f's_add_u32 s{S_T3}, s{S_T3}, s{S_XCC}',
               f's_xor_b32 s{S_XCC}, s{S_PH}, 1', f's_lshl_b32 s{S_XCC}, s{S_XCC}, 3', f's_add_u32 s{S_T3}, s{S_T3}, s{S_XCC}', f's_add_u32 s{S_T3}, s{S_T3}, {WS_G}']
        for ch in range(2):
            out.append(pre + [(f'buffer_load_dwordx2 {vr(V_HD+2*ch,2)}, v{V_L16}, {SRD}, s{S_T3} offen offset:{ch*1024} sc1', 'st')]); pre = []
        return out
    def h_k0():
        out = []
        first = [f's_mov_b32 s{S_KDMA}, s{S_W8K}']
        for pre, op in dma_ops(V_DK0, V_DK1, S_KOFF, S_KDMA):
            out.append(first + ([pre, 's_nop 0'] if pre else []) + [(op, 'K0')]); first = []
        pre = [f's_mul_i32 s{S_T4}, s{S_CG}, 20480', f's_mul_i32 s{S_XCC}, s{S_W}, 5120', f's_add_u32 s{S_T4}, s{S_T4}, s{S_XCC}',
               f's_add_u32 s{S_T4}, s{S_T4}, {WS_DWT}', f's_add_u32 m0, s{S_XCC}, {CV}', 's_nop 0']
        for i in range(5):
            if i == 4: pre = [f's_add_u32 s{S_T4}, s{S_T4}, 4096', f's_add_u32 m0, s{S_XCC}, {CV + 4096}', 's_nop 0']
            out.append(pre + [(f'buffer_load_dwordx4 v{V_L16}, {SRD}, s{S_T4} offen offset:{(i%4)*1024} lds', 'K0')]); pre = []
        return out
    def h_pollq():
        a(f'v_and_b32 v11, 7, v0')
        a(f'v_lshlrev_b32 v11, 2, v11')
        a(f's_lshl_b32 s{S_SLOW}, s{S_RT}, 5')
        a(f's_add_u32 s{S_SLOW}, s{S_SLOW}, {WS_FLAG2 + 2048}')
        emit(f'buffer_load_dword v{V_PQ}, v11, {SRD}, s{S_SLOW} offen sc1', 'pollq')
    hooks = {hk[0]: h_poll1, hk[1]: h_loads1, ('bar', 7): h_k0, hk[2]: h_pollq}
    flagf, p3slow = k2c.rg4(a, name, sys.modules[__name__], st, stamp, vm, hooks, **o2)
    AT = [[64, 68, 72, 76, 80, 84, 88, 92, 16, 20], [224, 228, 232, 236, 240, 244, 248, 252, 180, 188]]
    UACC = [128, 192]
    def gfrag(T, rb, ch): return (96 + 8 * rb + 4 * ch) if T == 0 else (160 + 16 * rb + 8 * ch)
    bg = []
    bg.append(f's_lshl_b32 s{S_T1}, s{S_QB}, 15')
    bg.append(f's_add_u32 s{S_T1}, s{S_T1}, {WS_Q}')
    for f in range(32):
        if f % 4 == 0 and f: bg.append(f's_add_u32 s{S_T1}, s{S_T1}, 4096')
        bg.append((f'buffer_load_dwordx4 {ar(4*f,4)}, v{V_L16}, {SRD}, s{S_T1} offen offset:{(f%4)*1024} sc1', ('Q', f)))
    def bg_dma(tag, *args, **kw):
        for pre, op in dma_ops(*args, **kw):
            if pre: bg.append(pre); bg.append('s_nop 0')
            bg.append((op, tag))
    bgc = [0]
    def bgone():
        while bg:
            o = bg.pop(0)
            if isinstance(o, tuple):
                emit(*o); return
            a(o)
    def c(o, every=bg_pace):
        a(o); bgc[0] += 1
        if bgc[0] % every == 0: bgone()
    for _ in range(4): bgone()
    defer = o2.get('defer', 0)
    for idx in range(8 - defer, 8):
        base = UACC[idx >> 2] + 8 * (idx & 3); Z = 64
        for i in range(4): c(f'v_pk_mul_f32 {vr(Z+2*i,2)}, {vr(base+2*i,2)}, {vr(base+2*i,2)}')
        for i in range(4): c(f'v_pk_fma_f32 {vr(Z+2*i,2)}, {vr(Z+2*i,2)}, v[8:9], v[8:9] op_sel:[0,1,0] op_sel_hi:[1,1,0]')
        for i in range(4): c(f'v_pk_mul_f32 {vr(Z+2*i,2)}, {vr(Z+2*i,2)}, {vr(base+2*i,2)}')
        for i in range(8): c(f'v_exp_f32 v{Z+i}, v{Z+i}')
        for i in range(4): c(f'v_pk_add_f32 {vr(Z+2*i,2)}, {vr(Z+2*i,2)}, 1.0 op_sel_hi:[1,0]')
        for i in range(8): c(f'v_rcp_f32 v{Z+i}, v{Z+i}')
        for i in range(4): c(f'v_pk_mul_f32 {vr(base+2*i,2)}, {vr(base+2*i,2)}, {vr(Z+2*i,2)}')
    SC = 56
    a(f's_waitcnt vmcnt({vm.need("st")})')
    R = [(STL[r][0] + i, STL[r][1] + i) for r in range(3) for i in range(4)]
    TM = 32
    for x, y in R: c(f'v_add_f32 v{x}, v{x}, v{y}')
    xreduce([x for x, y in R], 'v_add_f32', TM)
    a('s_nop 0')
    for x, y in R: c(f'v_mov_b32_dpp v{y}, v{x} row_ror:8 row_mask:0xf bank_mask:0xf')
    for x, y in R: c(f'v_mul_f32 v{x}, {f2h(1/512)}, v{x}')
    for i, (x, y) in enumerate(R): c(f'v_mul_f32 v{TM+i}, v{x}, v{x}')
    for i, (x, y) in enumerate(R): c(f'v_fma_f32 v{y}, v{y}, s{S_PFS}, -v{TM+i}')
    for x, y in R: c(f'v_max_f32 v{y}, 0, v{y}')
    for x, y in R: c(f'v_add_f32 v{y}, {f2h(1e-5)}, v{y}')
    for x, y in R: c(f'v_rsq_f32 v{y}, v{y}')
    for i, (x, y) in enumerate(R): c(f'v_mul_f32 v{y}, s{S_VF[i>>2]}, v{y}')
    for x, y in R: c(f'v_mul_f32 v{x}, -v{x}, v{y}')
    a('s_mov_b64 exec, 0xff')
    for r in range(3):
        a(f's_lshl_b32 s{S_T0}, s{S_B10[r]}, 8')
        a(f's_add_u32 s{S_T0}, s{S_T0}, {TB}')
        a(f'v_add_u32 v{V_T0}, s{S_T0}, v{V_L16}')
        a(f'ds_write_b128 v{V_T0}, {vr(STL[r][1],4)}')
        a(f'ds_write_b128 v{V_T0}, {vr(STL[r][0],4)} offset:128')
    a('s_mov_b64 exec, -1')
    A_NW, A_TR, A_HW, A_HT, A_BR, A_CW, A_CR = 5, 6, 8, 9, 11, 12, 15
    a(f'v_and_b32 v{V_T0}, 15, v0')
    a(f'v_lshrrev_b32 v{V_T1}, 4, v0')
    a(f'v_mul_u32_u24 v{A_HW}, {GS}, v{V_T0}')
    a(f'v_lshl_add_u32 v{A_HW}, v{V_T1}, 3, v{A_HW}')
    a(f's_lshl_b32 s{S_T0}, s{S_W}, 7')
    a(f's_add_u32 s{S_T0}, s{S_T0}, {GN}')
    a(f'v_add_u32 v{A_NW}, s{S_T0}, v{A_HW}')
    a(f's_lshr_b32 s{S_T2}, s{S_W}, 1')
    a(f's_mul_i32 s{S_T2}, s{S_T2}, {32*GS}')
    a(f's_mul_i32 s{S_T3}, s{S_PH}, {68*8}')
    a(f's_add_u32 s{S_T2}, s{S_T2}, s{S_T3}')
    a(f's_add_u32 s{S_T2}, s{S_T2}, {GN}')
    a(f'v_add_u32 v{A_HW}, s{S_T2}, v{A_HW}')
    a(f'v_lshlrev_b32 v{A_HT}, 4, v{V_T1}')
    a(f's_lshl_b32 s{S_T2}, s{S_W}, 9')
    a(f's_add_u32 s{S_T2}, s{S_T2}, {TB + 256}')
    a(f'v_add_u32 v{A_TR}, s{S_T2}, v{A_HT}')
    a(f's_mul_i32 s{S_T2}, s{S_PH}, {9*256 - 64}')
    a(f's_add_u32 s{S_T2}, s{S_T2}, {TB + 64}')
    a(f'v_add_u32 v{A_HT}, s{S_T2}, v{A_HT}')
    a(f'v_lshrrev_b32 v{A_CW}, 2, v0')
    a(f'v_and_b32 v{V_T0}, 3, v0')
    a(f'v_mul_u32_u24 v{A_BR}, {GS}, v{A_CW}')
    a(f'v_lshl_add_u32 v{A_BR}, v{V_T0}, 5, v{A_BR}')
    a(f'v_add_u32 v{A_BR}, s{S_T0}, v{A_BR}')
    a(f'v_and_b32 v{A_CW}, 3, v{A_CW}')
    a(f'v_lshl_add_u32 v{A_CW}, v{V_T1}, 3, v{A_CW}')
    a(f'v_mul_u32_u24 v{A_CW}, {CS}, v{A_CW}')
    a(f's_mul_i32 s{S_T2}, s{S_W}, {32*CS}')
    a(f's_add_u32 s{S_T2}, s{S_T2}, {CV}')
    a(f'v_add_u32 v{A_CW}, s{S_T2}, v{A_CW}')
    a(f'v_lshl_add_u32 v{A_CR}, v{V_T0}, 3, v{A_CW}')
    a(f'v_lshl_add_u32 v{A_CW}, v{V_T0}, 5, v{A_CW}')
    a('s_waitcnt lgkmcnt(0)')
    a('s_barrier')
    st(12)
    bg += [f's_add_u32 s{S_KOFF}, s{S_KOFF}, {TILE}', f's_add_u32 s{S_KDMA}, s{S_KDMA}, {TILE}']
    bg_dma('K1', V_DK0, V_DK1, S_KOFF, S_KDMA)
    bg += [f's_add_u32 s{S_KOFF}, s{S_KOFF}, {TILE}']
    lq = LdsQ()
    a(f'v_add_u32 v{V_T0}, {CV}, v{V_L16}')
    twr = [f'ds_read_b128 {vr(AT[i//10][i%10],4)}, v{V_T0} offset:{i*1024}' for i in range(20)]
    units = [('h',)] + [(rb, hf) for rb in range(2) for hf in range(2)]
    def tread(n):
        t = 112 + 8 * (n % 2); u = units[n]
        ad, off = (A_HT, 0) if u[0] == 'h' else (A_TR, u[0] * 256 + u[1] * 64)
        a(f'ds_read_b128 {vr(t,4)}, v{ad} offset:{off}'); lq.issue(('t', n))
        a(f'ds_read_b128 {vr(t+4,4)}, v{ad} offset:{off + 128}'); lq.issue(('t', n))
    tread(0)
    for n, u in enumerate(units):
        if n + 1 < len(units): tread(n + 1)
        t = 112 + 8 * (n % 2)
        a(f's_waitcnt lgkmcnt({lq.need(("t", n))})')
        for _ in range(4): a(twr.pop(0)); lq.issue('tw')
        for T in range(1 if u[0] == 'h' else 2):
            src = lambda ch: (V_HD + 2 * ch) if u[0] == 'h' else gfrag(T, u[0], ch) + 2 * u[1]
            for ch in range(2):
                for i in range(2):
                    c(f'v_lshlrev_b32 v{SC+4*ch+2*i}, 16, v{src(ch)+i}')
                    c(f'v_and_b32 v{SC+4*ch+2*i+1}, 0xffff0000, v{src(ch)+i}')
            for ch in range(2):
                for i in range(2): c(f'v_pk_fma_f32 {vr(SC+4*ch+2*i,2)}, {vr(SC+4*ch+2*i,2)}, {vr(t+2*i,2)}, {vr(t+4+2*i,2)}')
            for ch in range(2):
                for i in range(2): c(f'v_cvt_pk_bf16_f32 v{src(ch)+i}, v{SC+4*ch+2*i}, v{SC+4*ch+2*i+1}')
                if u[0] == 'h': a(f'ds_write_b64 v{A_HW}, {vr(src(ch),2)} offset:{ch*16*GS}')
                else: a(f'ds_write_b64 v{A_NW}, {vr(src(ch),2)} offset:{(32*T + 16*ch)*GS + (4 + 8*u[0] + 4*u[1])*8}')
                lq.issue('w')
    a(f's_waitcnt vmcnt({vm.need(("st", "v"))}) lgkmcnt(0)')
    a('s_barrier')
    flagf(3)
    st(13)
    BR = [32, 96]
    def acc(aa): return (56 + 4 * aa) if aa < 2 else (120 + 4 * (aa - 2))
    def bread(gi):
        for e in range(12):
            a(f'ds_read_b64 {vr(BR[gi&1]+2*e,2)}, v{A_BR} offset:{gi*16*GS + e*8}'); lq.issue(('b', gi, e))
    bread(0)
    CF = 160; PKc = 176
    def mult(T):
        for fr in range(4):
            rb, rh = fr >> 1, fr & 1
            cc = CF + 4 * fr; u = UACC[T] + 16 * rb + 8 * rh; ub = 64 + 8 * (fr & 1)
            a(f's_waitcnt lgkmcnt({min(15, lq.need(("tr", T, fr)))})')
            for i in range(4):
                c(f'v_lshlrev_b32 v{ub+2*i}, 16, v{cc+i}')
                c(f'v_and_b32 v{ub+2*i+1}, 0xffff0000, v{cc+i}')
            for i in range(4): c(f'v_pk_mul_f32 {vr(ub+2*i,2)}, {vr(ub+2*i,2)}, {vr(u+2*i,2)}')
            for i in range(4): c(f'v_cvt_pk_bf16_f32 v{u+i}, v{ub+2*i}, v{ub+2*i+1}')
            ucst.append(f'buffer_store_dwordx4 {vr(u,4)}, v{3+rb}, {SRD}, s{58+rb} offen offset:{T*2048 + rh*1024} sc1')
    for gi in range(4):
        T, ch = gi >> 1, gi & 1
        if gi < 3: bread(gi + 1)
        for dl in range(9):
            if dl % 3 == 0: a(f's_waitcnt lgkmcnt({min(15, lq.need(("b", gi, dl + 5)))})')
            ar_ = AT[T][5 * ch + dl // 2] + 2 * (dl & 1)
            for aa in range(4):
                d = vr(acc(aa), 4)
                c(f'v_mfma_f32_4x4x4_16b_bf16 {d}, {vr(ar_,2)}, {vr(BR[gi&1]+2*(aa+dl),2)}, {d if dl else 0}', bg_pace // 2)
        a('s_nop 4')
        for p in range(2):
            pk = PKc if p == 0 else 184
            for k in range(2):
                b = acc(2 * p + k)
                c(f'v_cvt_pk_bf16_f32 v{pk+2*k}, v{b}, v{b+1}')
                c(f'v_cvt_pk_bf16_f32 v{pk+2*k+1}, v{b+2}, v{b+3}')
            a(f'ds_write_b128 v{A_CW}, {vr(pk,4)} offset:{ch*4*CS + 16*p}'); lq.issue('cw')
        if gi == 2: mult(0)
        if ch == 1:
            for fr in range(4):
                for jj in range(2):
                    a(f'ds_read_b64_tr_b16 {vr(CF+4*fr+2*jj,2)}, v{A_CR} offset:{jj*4*CS + fr*32}'); lq.issue(('tr', T, fr))
    while bg: bgone()
    a(f's_sub_u32 s{S_T0}, s{S_VOFF}, {WS_VT}')
    a(f's_lshr_b32 s{S_T0}, s{S_T0}, 15')
    a(f's_sub_u32 s{S_T0}, s{S_T0}, s{S_B125}')
    a(f's_add_u32 s{S_T2}, s{S_T0}, s{S_CNT}')
    a(f's_add_u32 s{S_T2}, s{S_T2}, 1')
    a(f's_lshr_b32 s{S_T0}, s{S_T0}, 3')
    a(f's_lshr_b32 s{S_T2}, s{S_T2}, 3')
    a(f'v_lshrrev_b32 v{A_NW}, 3, v0')
    a(f'v_add_u32 v{A_NW}, s{S_T0}, v{A_NW}')
    a(f'v_min_u32 v{A_NW}, s{S_T2}, v{A_NW}')
    a(f'v_and_b32 v{V_T0}, 7, v0')
    a(f'v_lshl_add_u32 v{A_NW}, v{A_NW}, 3, v{V_T0}')
    a(f'v_lshlrev_b32 v{V_XO}, 2, v{A_NW}')
    a(f's_and_b32 s{S_T3}, s{S_GRP}, 32')
    a(f's_lshl_b32 s{S_T3}, s{S_T3}, 4')
    a(f's_add_u32 s{S_T3}, s{S_T3}, {WS_FLAG2 + 3072}')
    mult(1)
    emit(f'buffer_load_dword v{V_PFD}, v{V_XO}, {SRD}, s{S_T3} offen sc1', 'pollv')
    for op in ucst: emit(op, 'ucs')
    a(f'v_mov_b32 v127, v10')
    a(f's_add_u32 s{S_T1}, s{S_W}, s{S_SPLIT}')
    a(f's_and_b32 s{S_T1}, s{S_T1}, 3')
    a(f's_lshl_b32 s{S_T1}, s{S_T1}, 13')
    a(f'v_add_u32 v{V_DV0}, s{S_T1}, v{V_L16}')
    a(f'v_add_u32 v{V_DV1}, 4096, v{V_DV0}')
    a(f's_mov_b32 s{S_KDMA}, s{S_W8K}')
    a(f's_mov_b32 s{S_VRD}, {2*TILE}')
    st(1)
    if prefetch:
        a(f's_add_u32 s{S_PFOFF}, s{S_PFOFF}, s{S_W}')
        a(f's_and_b32 s{S_T1}, s{S_PFOFF}, 15')
        a(f's_lshl_b32 s{S_T1}, s{S_T1}, 11')
        a(f's_cmp_ge_u32 s{S_PFOFF}, 16')
        a(f's_cselect_b32 s{S_PFOFF}, {WS_VT - WS_XA - TILE}, 0')
        a(f's_add_u32 s{S_T1}, s{S_T1}, s{S_PFOFF}')
        a(f's_add_u32 s{S_T1}, s{S_T1}, {prefetch * TILE}')
        a(f'v_lshlrev_b32 v{V_PF}, 5, v0')
        a(f'v_add_u32 v{V_PF}, s{S_T1}, v{V_PF}')
    a(f'v_mov_b32 v{V_KA}, v{V_L16}')
    a(f'v_add_u32 v{V_VA}, s{S_VRD}, v{V_L16}')
    a(f'v_mov_b32 v{V_L0}, 0')
    a(f'v_mov_b32 v{V_L1}, 0')
    nround = -(-64 // NR)
    sizes = [64 // nround + (1 if i < 64 % nround else 0) for i in range(nround)]
    slotmap = [i for sz in sizes for i in range(sz)]
    assert LA + 1 <= min(sizes) and max(sizes) <= NR and V_RING + 4 * NR <= V_PF
    def slot(f): return V_RING + 4 * slotmap[f % 64]
    def rd(f):
        if f < 32 and chain: return f'ds_read_b128 {vr(slot(f),4)}, v{V_KA} offset:{((f & 15)*2 + (f >> 4))*1024}'
        if f < 32: return f'ds_read_b128 {vr(slot(f),4)}, v{V_KA} offset:{f*1024}'
        return f'ds_read_b128 {vr(slot(f),4)}, v{V_VA} offset:{(f-32)*1024}'
    def Sreg(kh, qh): return V_S + (kh * 2 + qh) * 4
    def mfmas(f, zero_c=False, first=False):
        order = (1, 0) if (snake and (f & 1)) else (0, 1)
        out = []
        if chain and f < 32:
            kh = f >> 4; s0 = f & 14; qh = (f & 1) ^ ((f >> 1) & 1); fb = f & ~1
            for k in range(2):
                s = s0 + k
                c = vr(Sreg(kh, qh), 4) if s else ('0' if zero_c else vr(V_NEGM + 4 * qh, 4))
                out.append(f'v_mfma_f32_16x16x32_bf16 {vr(Sreg(kh,qh),4)}, {vr(slot(fb+k),4)}, {ar((s*2+qh)*4,4)}, {c}')
            return out
        for qh in order:
            if f < 32:
                s, kh = f >> 1, f & 1
                c = vr(Sreg(kh, qh), 4) if s else ('0' if zero_c else vr(V_NEGM + 4 * qh, 4))
                out.append(f'v_mfma_f32_16x16x32_bf16 {vr(Sreg(kh,qh),4)}, {vr(slot(f),4)}, {ar((s*2+qh)*4,4)}, {c}')
            else:
                b = f - 32
                out.append(f'v_mfma_f32_16x16x32_bf16 {Oreg(b,qh)}, {vr(slot(f),4)}, {vr(V_P+4*qh,4)}, {0 if first else Oreg(b,qh)}')
        return out
    q = LdsQ()
    zero = []
    for f in range(LA):
        a(rd(f)); q.issue(f)
    a(f's_waitcnt vmcnt({vm.need(("Q", 31))})')
    v0ops = []
    for f in range(32):
        a(f's_waitcnt lgkmcnt({q.need(f | 1)})')
        for m in mfmas(f, zero_c=True):
            a(m)
        if f + LA < 32:
            a(rd(f + LA)); q.issue(f + LA)
        if f == vchk:
            chk('fv', V_PFD, V_XO, S_T3, 'pollv')
            a(f's_add_u32 s{S_VDMA}, s{S_W8K}, {2*TILE}')
            v0ops = dma_ops(V_DV0, V_DV1, S_VOFF, S_VDMA)
        if v0ops:
            pre, op = v0ops.pop(0)
            if pre: a(pre); a('s_nop 0')
            emit(op, 'V0')
    for pre, op in v0ops:
        if pre: a(pre); a('s_nop 0')
        emit(op, 'V0')
    a(f's_add_u32 s{S_VOFF}, s{S_VOFF}, {TILE}')
    a(f's_add_u32 s{S_VDMA}, s{S_VDMA}, {TILE}')
    a('s_nop 5')
    def max_all():
        ops = [f'v_max3_f32 v{V_MX}, v{V_S}, v{V_S+1}, v{V_S+2}']
        for i in range(6): ops.append(f'v_max3_f32 v{V_MX}, v{V_MX}, v{V_S+3+2*i}, v{V_S+4+2*i}')
        ops.append(f'v_max_f32 v{V_MX}, v{V_MX}, v{V_S+15}')
        return ops
    def rowmax2(d0, d1, tmp):
        for qh, dst in ((0, d0), (1, d1)):
            r0, r1 = Sreg(0, qh), Sreg(1, qh)
            a(f'v_max3_f32 v{dst}, v{r0}, v{r0+1}, v{r0+2}')
            a(f'v_max3_f32 v{dst}, v{dst}, v{r0+3}, v{r1}')
            a(f'v_max3_f32 v{dst}, v{dst}, v{r1+1}, v{r1+2}')
            a(f'v_max_f32 v{dst}, v{dst}, v{r1+3}')
        xreduce([d0, d1], 'v_max_f32', tmp)
    exp_ops = [f'v_exp_f32 v{V_E+i}, v{V_S+i}' for i in range(16)]
    sum_ops = [f'v_add_f32 v{V_L1 if (i >> 2) & 1 else V_L0}, v{V_L1 if (i >> 2) & 1 else V_L0}, v{V_E+i}' for i in range(16)]
    cvt_ops = []
    for qh in range(2):
        for kh in range(2):
            e = V_E + (kh * 2 + qh) * 4
            for i in range(2):
                cvt_ops.append(f'v_cvt_pk_bf16_f32 v{V_P+4*qh+2*kh+i}, v{e+2*i}, v{e+2*i+1}')
    rowmax2(V_F0, V_F1, 120)
    for qh, dst in ((0, V_F0), (1, V_F1)):
        for kh in range(2):
            for i in range(4): a(f'v_sub_f32 v{Sreg(kh,qh)+i}, v{Sreg(kh,qh)+i}, v{dst}')
        for i in range(4): a(f'v_sub_f32 v{V_NEGM+4*qh+i}, 0, v{dst}')
    for o in exp_ops: a(o)
    for o in zero: a(o)
    a(f'v_xor_b32 v{V_KA}, 0x8000, v{V_KA}')
    a(f's_lshl_b32 s{S_FLO}, s{S_GRP}, 9')
    a(f's_add_u32 s{S_FLO}, s{S_FLO}, {WS_FLAG}')
    a(f'v_and_b32 v{V_FL}, 3, v0')
    a(f'v_lshlrev_b32 v{V_FL}, 7, v{V_FL}')
    a(f's_lshl_b32 s{S_T2}, s72, 2')
    a(f's_add_u32 s{S_T2}, s{S_T2}, {WS_FLAG2 + 4096}')
    a(f'v_mov_b32 v126, 1')
    a(f's_waitcnt vmcnt({vm.need("K1")})')
    a('s_barrier')
    st(2); st(8, True)
    if stamp: a('s_waitcnt lgkmcnt(0)')
    q = LdsQ()
    for f in range(LA):
        a(rd(f)); q.issue(f)

    L_loop = f'{name}_loop'
    rare = []
    border = list(range(8, 32)) + list(range(8))
    YB = 192
    stream = [('pv', b) for b in border] + [('yc', T, f) for T in range(4) for f in range(32)]
    NS = len(stream)
    WA = [V_VA, V_DV0, V_DV1, V_PF]
    def srd_(i):
        it = stream[i]
        if it[0] == 'pv': return f'ds_read_b128 {vr(slot(i),4)}, v{V_KA} offset:{it[1]*1024}'
        if chain and it[1]: return f'ds_read_b128 {vr(slot(i),4)}, v{WA[it[1]]} offset:{((it[2] & 15)*2 + (it[2] >> 4))*1024}'
        return f'ds_read_b128 {vr(slot(i),4)}, v{WA[it[1]]} offset:{it[2]*1024}'
    def ucload(f):
        ops = []
        if f % 4 == 0 and f: ops.append(f's_add_u32 s{S_UCO}, s{S_UCO}, 4096')
        ops.append((f'buffer_load_dwordx4 {ar(4*f,4)}, v{V_L16}, {SRD}, s{S_UCO} offen offset:{(f%4)*1024} sc1', ('uc', f)))
        return ops
    stubs = []
    class Dual:
        def __init__(self, op, tag, fast): self.op, self.tag, self.fast = op, tag, fast
    def em(o):
        if isinstance(o, Dual) and force_slow:
            emit(f'{o.op} sc1', o.tag); return
        if isinstance(o, Dual):
            lab = a.label(name + '_ds')
            a(f's_cbranch_vccnz {lab}')
            emit(f'{o.op} {o.fast}', o.tag)
            a(f'{lab}b:')
            stubs.append((lab, o.op))
            return
        if callable(o): o = o()
        if noyc and isinstance(o, tuple) and ((o[1] == 'x' and 'x' in noyc) or (isinstance(o[1], tuple) and o[1][0] in ('uc', 'wc') and o[1][0] in noyc)):
            vm.last[o[1]] = vm.last.get('dL', 0); return
        if isinstance(o, tuple): emit(*o)
        else: emit(o)
    nuc = [0]
    def body(last, first=False):
        tag = 'L' if last else ('F' if first else 'M')
        L_r1, L_r1b, L_r2, L_r2b = [f'{name}_{x}{tag}' for x in ('r1', 'r1b', 'r2', 'r2b')]
        rare.append((L_r1, L_r1b, L_r2, L_r2b))
        fill = [[] for _ in range(128)]
        cap = [CAP - 1 if p % 2 == 0 else CAP for p in range(128)]
        for p in range(128):
            if p % 2 == 1 and ((p + 1) // 2) % wait_every == 0: cap[p] -= 1
        cap[127] -= 3
        def put(pos, ops, cost):
            if not isinstance(ops, list): ops = [ops]
            while cap[pos] < cost: pos += 1
            cap[pos] -= cost
            fill[pos] += ops
            return pos
        if not last: bw = f's_waitcnt vmcnt({1 if prefetch else 0})'
        else: bw = lambda: f's_waitcnt vmcnt({vm.need("dL")})'
        pb = put(2 * bar_pos + 1, [bw] + ([] if 'nobar' in dbg and not last else ['s_barrier']), 2)
        assert pb < 2 * (64 - LA)
        if first:
            pf_ = put(2 * (32 - LA) - 5, [lambda: f's_waitcnt vmcnt({vm.need("V0")})', 's_barrier',
                                          f'buffer_store_dword v126, v127, {SRD}, s{S_T2} offen sc1'], 2)
            assert pf_ < 2 * (32 - LA)
        dk, dv = dma_ops(V_DK0, V_DK1, S_WCO if last else S_KOFF, S_KDMA), dma_ops(V_DV0, V_DV1, S_VOFF, S_VDMA)
        dm = dv + dk if last else dk + dv
        p = 0
        if last and not tailpf:
            p = put(p, (f'buffer_load_dword v{V_PFD}, v{V_FL}, {SRD}, s{S_FLO} offen sc1', 'poll'), dma_cost) + 1
            for c in range(npf, 3 if pfill else 0):
                p = put(p, f'buffer_load_dword v{V_T0}, v{V_PF}, {SRD}, s{S_PFS} offen', dma_cost) + 1
                p = put(p, f's_add_u32 s{S_PFS}, s{S_PFS}, 8192', 1) + 1
            if pfill: p = put(p, f'buffer_load_dword v{V_T0}, v{V_L16}, {SRD}, s{S_PFS} offen', dma_cost) + 1
        for pre, op in dm:
            if pre: p = put(p, pre, 1) + 1
            p = put(p, (op, 'dL'), dma_cost) + dma_gap
        if prefetch and not last:
            p = put(p, f'buffer_load_dword v{V_PFD}, v{V_PF}, s[96:99], s{S_PFS} offen {pf_flags}', dma_cost) + 1
        pdma = p
        assert pdma <= pb
        if last and not tailpf:
            p = put(56, [lambda: f's_waitcnt vmcnt({vm.need("poll")})', f'v_cmp_eq_u32 s[{S_T3}:{S_T3+1}], 0, v{V_PFD}'], 2) + 2
            p = put(p, [f's_cmp_eq_u64 s[{S_T3}:{S_T3+1}], 0', f's_cbranch_scc0 {name}_cfslow', f'{name}_cfok:'], 2) + 1
            p = put(p, f'v_cmp_ne_u32 s[{S_SLOW}:{S_SLOW+1}], s{S_XCC}, v{V_PFD}', 1) + 1
            assert p <= pdma + 4
        p = 68
        for o in max_all(): p = put(p, o, 1)
        p = put(p, f'v_cmp_lt_f32 vcc, {hex(THR)}, v{V_MX}', 1) + 1
        p = put(p + brgap, ([] if 'nobr1' in dbg else [f's_cbranch_vccnz {L_r1}']) + [f'{L_r1b}:'], 1) + 1
        for i, o in enumerate(exp_ops):
            if 'noexp' not in dbg: p = put(p, o, 2)
        p = 0
        for o in cvt_ops: p = put(p, o, 1)
        for o in sum_ops: p = put(p, o, 1)
        assert p < 60
        upd = [f's_add_u32 s{S_KOFF}, s{S_KOFF}, {TILE}', f's_add_u32 s{S_PFS}, s{S_PFS}, s{S_PFST}',
               f's_add_u32 s{S_VOFF}, s{S_VOFF}, {TILE}',
               f's_xor_b32 s{S_KDMA}, s{S_KDMA}, {TILE}',
               f's_add_u32 s{S_VDMA}, s{S_VDMA}, {TILE}',
               f's_cmp_ge_u32 s{S_VDMA}, {5*TILE}', f's_cselect_b32 s{S_T1}, {3*TILE}, 0',
               f's_sub_u32 s{S_VDMA}, s{S_VDMA}, s{S_T1}',
               f's_add_u32 s{S_VRD}, s{S_VRD}, {TILE}',
               f's_cmp_ge_u32 s{S_VRD}, {5*TILE}', f's_cselect_b32 s{S_VRD}, {2*TILE}, s{S_VRD}',
               f's_sub_u32 s{S_CNT}, s{S_CNT}, 1']
        if not last:
            p = pdma
            for o in upd: p = put(p, o, 1)
            put(2 * (32 - LA) + 1, f'v_xor_b32 v{V_KA}, 0x8000, v{V_KA}', 1)
            put(max(p + 1, 2 * (64 - LA) + 1), f'v_add_u32 v{V_VA}, s{S_VRD}, v{V_L16}', 1)
        else:
            p = 2 * (32 - LA) + 1
            for o in [f's_sub_u32 s{S_KOFF}, s{S_VDMA}, s{S_W8K}', f'v_add_u32 v{V_KA}, s{S_KOFF}, v{V_L16}',
                      f's_sub_u32 s{S_WB0}, s{S_KDMA}, s{S_W8K}', f's_xor_b32 s{S_WB1}, s{S_WB0}, {TILE}', f's_mov_b32 s{S_WB3}, s{S_VRD}',
                      f's_add_u32 s{S_WB2}, s{S_WB3}, s{S_KOFF}', f's_sub_u32 s{S_WB2}, {9*TILE}, s{S_WB2}']:
                p = put(p, o, 1) + 1
            p = max(pdma, 66)
            while p < 127 and nuc[0] < 32:
                fill[p] += ucload(nuc[0]); nuc[0] += 1
                p += uc_pace
        for f in range(64):
            if f % wait_every == 0:
                a(f's_waitcnt lgkmcnt({q.need(min(f + wait_every - 1, 63))})')
            mm = mfmas(f, first=first)
            a(mm[0])
            nf = f + LA
            if nf < 64 or not last:
                a(rd(nf % 64)); q.issue(nf % 64)
            else:
                a(srd_(nf - 64)); q.issue(('s', nf - 64))
            for o in fill[2 * f]: em(o)
            a(mm[1])
            for o in fill[2 * f + 1]: em(o)
        if 'nobr2' not in dbg: a(f's_cbranch_vccnz {L_r2}')
        a(f'{L_r2b}:')
    a(f's_lshl_b32 s{S_WCO}, s{S_SPLIT}, 17')
    a(f's_add_u32 s{S_WCO}, s{S_WCO}, {WS_WC}')
    a(f's_lshl_b32 s{S_UCO}, s{S_QB}, 15')
    a(f's_add_u32 s{S_UCO}, s{S_UCO}, {WS_UC}')
    a(f's_mov_b32 s{S_PFS}, s{S_KOFF}')
    a(f's_mov_b32 s{S_PFST}, {TILE}')
    a(f's_mov_b32 s{S_PH}, 0')
    NPH = 4 if tailpf else 0
    a(f's_sub_u32 s{S_CNT}, s{S_CNT}, {NPH}')
    make_srd(a, 96, S_WS, 0, WS_SIZE)
    a(f's_lshl_b32 s{S_PB}, s{S_GRP}, 2')
    a(f's_add_u32 s{S_PB}, s{S_PB}, s{S_SPLIT}')
    a(f's_lshl_b32 s{S_PB}, s{S_PB}, 2')
    a(f's_add_u32 s{S_PB}, s{S_PB}, s{S_W}')
    a(f's_lshl_b32 s{S_PB}, s{S_PB}, 15')
    a(f's_add_u32 s{S_PB}, s{S_PB}, {WS_PART}')
    body(False, first=True)
    a('.p2align 6')
    a(f'{L_loop}:')
    body(False)
    a(f's_cmp_lg_u32 s{S_CNT}, 0')
    a(f's_cbranch_scc1 {L_loop}')
    if tailpf:
        a(f's_add_u32 s{S_PH}, s{S_PH}, 1')
        a(f's_mov_b32 s{S_CNT}, 1')
        a(f's_cmp_eq_u32 s{S_PH}, 5\n s_cbranch_scc1 {name}_ph5')
        a(f's_cmp_eq_u32 s{S_PH}, 4\n s_cbranch_scc1 {name}_ph4')
        a(f's_cmp_eq_u32 s{S_PH}, 3\n s_cbranch_scc1 {name}_ph3')
        a(f's_cmp_eq_u32 s{S_PH}, 2\n s_cbranch_scc1 {name}_ph2')
        a(f's_mov_b32 s96, s{S_X}\n s_mov_b32 s97, s{S_X+1}\n s_mov_b32 s98, 8192000')
        a(f'v_lshrrev_b32 v{V_PF}, 1, v0')
        a(f'v_lshlrev_b32 v{V_PF}, 10, v{V_PF}')
        a(f'v_and_b32 v{V_T0}, 1, v0')
        a(f'v_lshl_add_u32 v{V_PF}, v{V_T0}, 7, v{V_PF}')
        a(f's_lshl_b32 s{S_PFS}, s{S_QB}, 15')
        a(f's_lshl_b32 s{S_T1}, s{S_SPLIT}, 8')
        a(f's_add_u32 s{S_PFS}, s{S_PFS}, s{S_T1}')
        a(f's_branch {L_loop}')
        a(f'{name}_ph2:')
        a(f's_mov_b32 s96, s{S_WS}\n s_mov_b32 s97, s{S_WS+1}\n s_mov_b32 s98, {WS_SIZE}')
        a(f'v_and_b32 v{V_XO}, 7, v0')
        a(f'v_lshlrev_b32 v{V_XO}, 2, v{V_XO}')
        a(f'v_mov_b32 v{V_PF}, v{V_XO}')
        a(f's_add_u32 s{S_SLOW}, s{S_SLOW}, 2048')
        a(f's_mov_b32 s{S_PFS}, s{S_SLOW}')
        a(f's_branch {L_loop}')
        a(f'{name}_ph3:')
        a('s_waitcnt vmcnt(0)')
        a(f'v_cmp_eq_u32 s[{S_T3}:{S_T3+1}], 0, v{V_PFD}')
        a(f'v_lshlrev_b32 v{V_PF}, 7, v0')
        a(f's_lshl_b32 s{S_PFS}, s{S_SPLIT}, 13')
        a(f's_add_u32 s{S_PFS}, s{S_PFS}, s{S_UCO}')
        a('s_nop 1')
        a(f's_cmp_eq_u64 s[{S_T3}:{S_T3+1}], 0')
        a(f's_cbranch_scc0 {name}_cfslow')
        a(f'{name}_cfok:')
        a(f's_branch {L_loop}')
        a(f'{name}_ph4:')
        a(f'v_lshlrev_b32 v{V_PF}, 6, v0')
        a(f's_and_b32 s{S_PFS}, s{S_TILE}, 7')
        a(f's_lshl_b32 s{S_PFS}, s{S_PFS}, 2')
        a(f's_add_u32 s{S_PFS}, s{S_PFS}, s{S_W}')
        a(f's_lshl_b32 s{S_PFS}, s{S_PFS}, 12')
        a(f's_add_u32 s{S_PFS}, s{S_PFS}, s{S_WCO}')
        a(f's_branch {L_loop}')
        a(f'{name}_ph5:')
    st(3); st(9, True)
    if stamp: a('s_waitcnt lgkmcnt(0)')
    body(True)
    st(15)
    if stamp: a('s_waitcnt lgkmcnt(0)')
    def smf(i):
        it = stream[i]; out = []
        if chain and it[0] == 'yc' and it[1]:
            T, f = it[1], it[2]; ch = f >> 4; qh = (f & 1) ^ ((f >> 1) & 1)
            d = vr(YB + 8 * (2 * T + ch) + 4 * qh, 4)
            for k in range(2):
                s = (f & 14) + k
                out.append(f'v_mfma_f32_16x16x32_bf16 {d}, {vr(slot((i & ~1) + k),4)}, {ar((s*2+qh)*4,4)}, {d if s else 0}')
            return out
        for qh in ((1, 0) if (snake and (i & 1)) else (0, 1)):
            if it[0] == 'pv':
                out.append(f'v_mfma_f32_16x16x32_bf16 {Oreg(it[1],qh)}, {vr(slot(i),4)}, {vr(V_P+4*qh,4)}, {Oreg(it[1],qh)}')
            else:
                T, f = it[1], it[2]; s, ch = f >> 1, f & 1
                d = vr(YB + 8 * (2 * T + ch) + 4 * qh, 4)
                out.append(f'v_mfma_f32_16x16x32_bf16 {d}, {vr(slot(i),4)}, {ar((s*2+qh)*4,4)}, {d if s else 0}')
        return out
    a(f's_mov_b64 vcc, s[{S_SLOW}:{S_SLOW+1}]' if not force_slow else 's_mov_b64 vcc, -1')
    for o in cvt_ops: a(o)
    a(f's_lshl_b32 s{S_T0}, s{S_GRP}, 2')
    a(f'v_add_u32 v{WA[0]}, s{S_WB0}, v{V_L16}')
    pend = [(0, o, 1) for o in sum_ops]
    for i, sb in enumerate((S_WB1, S_WB2, S_WB3)): pend.append((0, f'v_add_u32 v{WA[i+1]}, s{sb}, v{V_L16}', 1))
    rot = 0
    for qd in range(1, 4):
        hdr = [f's_add_u32 s{S_PO}, s{S_PB}, {(qd-1)*8192}']
        for gm in range(4):
            for qh in range(2):
                b0 = 8 * qd + 2 * gm
                ready = 2 * (border.index(b0 + 1) + 1) + 6
                idx = gm * 2 + qh
                if idx == 0:
                    for h in hdr: pend.append((0, h, 1))
                if idx == 4: pend.append((ready, f's_add_u32 s{S_PO}, s{S_PO}, 4096', 1))
                tb = V_S + 8 * (rot % 2); pk = V_E + 4 * (rot % 4); rot += 1
                srcs = []
                for b in range(2):
                    for r in range(4):
                        o = Obase(b0 + b, qh) + r
                        if qd == 1: srcs.append(o)
                        else:
                            pend.append((ready, f'v_accvgpr_read_b32 v{tb+4*b+r}, a{o}', 1)); srcs.append(tb + 4 * b + r)
                for r in range(4): pend.append((ready, f'v_cvt_pk_bf16_f32 v{pk+r}, v{srcs[2*r]}, v{srcs[2*r+1]}', 1))
                pend.append((ready, Dual(f'buffer_store_dwordx4 {vr(pk,4)}, v{V_L16}, {SRD}, s{S_PO} offen offset:{(idx%4)*1024}', 'part', fast_st), 2))
    def stats_block():
        xreduce([V_L0, V_L1], 'v_add_f32', 124)
        a(f'v_mov_b32 v120, v{V_L0}')
        a(f'v_sub_f32 v121, 0, v{V_NEGM}')
        a(f'v_mov_b32 v122, v{V_L1}')
        a(f'v_sub_f32 v123, 0, v{V_NEGM+4}')
        a(f's_add_u32 s{S_T1}, s{S_PB}, {3*8192}')
        em(Dual(f'buffer_store_dwordx4 v[120:123], v{V_L16}, {SRD}, s{S_T1} offen', 'part', fast_st))
    XV = V_P
    def x_setup():
        a(f'v_lshrrev_b32 v{V_T0}, 4, v0')
        a(f'v_and_b32 v{V_T1}, 15, v0')
        a(f'v_xor_b32 v{V_T2}, v{V_T0}, v{V_T1}')
        a(f'v_lshlrev_b32 v{V_T2}, 4, v{V_T2}')
        a(f'v_lshl_add_u32 v{XV}, v{V_T0}, 10, v{V_T2}')
        for i in range(1, 4): a(f'v_xor_b32 v{XV+i}, {i*64}, v{XV}')
        a(f's_add_u32 s{S_KOFF}, s{S_KOFF}, s{S_W8K}')
        a(f'v_lshl_add_u32 v{XV+4}, v{V_T1}, 8, v{V_T2}')
        a(f'v_add_u32 v{XV+4}, s{S_KOFF}, v{XV+4}')
        for i in range(1, 4): a(f'v_xor_b32 v{XV+4+i}, {i*64}, v{XV+4}')
        a(f'v_add_u32 v{V_XO}, s{S_KOFF}, v{V_L16}')
        a(f's_lshl_b32 s{S_T4}, s{S_QB}, 15')
        a(f's_lshl_b32 s{S_T1}, s{S_SPLIT}, 8')
        a(f's_add_u32 s{S_T4}, s{S_T4}, s{S_T1}')
    def wc_dma(T):
        out = []
        first = [f's_add_u32 s{S_WCO}, s{S_WCO}, {TILE}', f's_add_u32 s{S_T2}, s{(S_WB0, S_WB1, S_WB2, S_WB3)[T]}, s{S_W8K}']
        for pre, op in dma_ops(V_DK0, V_DK1, S_WCO, S_T2):
            g = first; first = []
            if pre: g += [pre, 's_nop 0']
            out.append(g + [(op, ('wc', T))])
        return out
    dq = [ucload(f) for f in range(nuc[0], 32)]
    def xdma():
        return [[f's_add_u32 m0, s{S_KOFF}, {k*1024}', f's_add_u32 s{S_T1}, s{S_T4}, {k*4096}',
                 (f'buffer_load_dwordx4 v{XV+(k&3)}, {SRX}, s{S_T1} offen lds', 'x')] for k in range(8)]
    def pop():
        _, op, c = pend.pop(0); em(op)
        if isinstance(op, Dual):
            for _ in range(ld_per_st):
                if dq:
                    for o in dq.pop(0): em(o)
        return c
    lim = [64]
    def run(i0, i1, every=0):
        for i in range(i0, i1):
            it = stream[i]; w = []
            if it[0] == 'yc' and it[1] == 0 and it[2] % 2 == 0: w.append(f'vmcnt({min(63, vm.need(("uc", it[2] | 1)))})')
            if i % 2 == 0: w.append(f'lgkmcnt({q.need(("s", min(i + 1, NS - 1)))})')
            if w: a('s_waitcnt ' + ' '.join(w))
            mm = smf(i)
            for h in range(2):
                pos = 2 * i + h
                a(mm[h])
                budget = pv_budget
                if h == 0 and i + LA < NS:
                    nx = stream[i + LA]
                    if nx[0] == 'yc' and nx[2] == 0 and nx[1] in (1, 2):
                        a(f's_waitcnt vmcnt({min(63, vm.need(("wc", 1 if nx[1] == 1 else 3)))})')
                        a('s_barrier')
                    a(srd_(i + LA)); q.issue(('s', i + LA)); budget -= 1
                while pend and pend[0][0] <= pos and budget > 0: budget -= pop()
                if every and dq and pos % every == 1:
                    for o in dq.pop(0): em(o)
    run(0, 32)
    a('s_barrier')
    x_setup()
    while pend: pop()
    stats_block()
    dq += wc_dma(1) + wc_dma(2) + wc_dma(3)
    while len(dq) > 24 - flag_after:
        for o in dq.pop(0): em(o)
    st(4)
    a(f's_lshl_b32 s{S_T3}, s{S_SPLIT}, 7')
    a(f's_add_u32 s{S_T3}, s{S_T3}, s{S_FLO}')
    a(f's_lshl_b32 s{S_PH}, s{S_W}, 2')
    a(f's_add_u32 s{S_FLO}, s{S_FLO}, s{S_PH}')
    a(f's_add_u32 s{S_T3}, s{S_T3}, s{S_PH}')
    a(f'v_mov_b32 v{V_T0}, 0\n v_mov_b32 v{V_T1}, 1')
    a(f's_lshl_b32 s{S_CNT}, 1, s{S_SPLIT}')
    a('s_mov_b64 exec, 1')
    a(f's_waitcnt vmcnt({vm.need("part")})')
    em(Dual(f'buffer_store_dword v{V_T1}, v{V_T0}, {SRD}, s{S_T3} offen offset:4', None, ''))
    a('s_mov_b64 exec, -1')
    st(5)
    if stamp: a('s_waitcnt lgkmcnt(0)')
    poll = f'buffer_load_dword v{V_PFD}, v{V_FL}, {SRD}, s{S_FLO} offen offset:4 sc1'
    dq.insert(min(poll_after, len(dq)), [(poll, 'poll')])
    STR = [56, 60, 124]
    def getmask(w):
        a(f's_waitcnt vmcnt({w})')
        a(f'v_cmp_eq_u32 vcc, 1, v{V_PFD}')
        a('s_nop 3')
        a(f's_and_b32 s{S_PFS}, vcc_lo, 15')
        a(f's_andn2_b32 s{S_PFS}, s{S_PFS}, s{S_CNT}')
        a(f's_or_b32 s{S_CNT}, s{S_CNT}, s{S_PFS}')
    def slot_hdr(k):
        return [f's_sub_u32 s{S_T1}, s{S_SPLIT}, {k+1}', f's_and_b32 s{S_T1}, s{S_T1}, 3', f's_bitcmp1_b32 s{S_PFS}, s{S_T1}']
    def slot_adr():
        return [f's_add_u32 s{S_T1}, s{S_T1}, s{S_T0}', f's_lshl_b32 s{S_T1}, s{S_T1}, 2', f's_add_u32 s{S_T1}, s{S_T1}, s{S_W}',
                f's_lshl_b32 s{S_PO}, s{S_T1}, 15', f's_add_u32 s{S_T1}, s{S_PO}, {WS_PART + 3*8192}']
    def slot_loads(k, vo):
        out = [[f'buffer_load_dwordx4 {vr(STR[k],4)}, v{vo}, {SRD}, s{S_T1} offen sc1']]
        for h4 in range(2):
            for i in range(4):
                pre = [f's_add_u32 s{S_T1}, s{S_PO}, {WS_PART + k*8192 + h4*4096}'] if i == 0 else []
                out.append(pre + [f'buffer_load_dwordx4 {ar(128+(k*8+h4*4+i)*4,4)}, v{vo}, {SRD}, s{S_T1} offen offset:{i*1024} sc1'])
        return out
    def check():
        getmask(0)
        for k in range(3):
            lab = a.label(name + '_ck')
            for o in slot_hdr(k): a(o)
            a(f's_cbranch_scc0 {lab}')
            for o in slot_adr(): a(o)
            for g in slot_loads(k, V_L16):
                for o in g: a(o)
            a(f'{lab}:')
    run(32, chk_at, every=2)
    assert not dq
    st(20)
    if stamp: a('s_waitcnt lgkmcnt(0)')
    getmask(vm.need('poll'))
    for k in range(3):
        first = slot_hdr(k) + [f's_cselect_b32 s{S_PH}, 0, 0x80000000', f'v_or_b32 v{V_T2}, s{S_PH}, v{V_L16}'] + slot_adr()
        for g in slot_loads(k, V_T2):
            dq.append(first + g); first = []
    dq += xdma() + [[poll]]
    run(chk_at, NS, every=r_pace)
    assert not dq, len(dq)
    st(21)
    a(f's_waitcnt vmcnt({vm.need("x")})')
    st(22)
    if stamp: a('s_waitcnt lgkmcnt(0)')
    for idx in range(8):
        gm, qh = idx >> 1, idx & 1
        a(f'ds_read_b128 {vr(V_S+4*idx,4)}, v{XV+4+gm} offset:{qh*4096}')
    a('s_nop 3')
    for idx in range(8):
        gm, qh = idx >> 1, idx & 1
        xb = V_S + 4 * idx
        a(f's_waitcnt lgkmcnt({7-idx})')
        for i in range(4):
            a(f'v_lshlrev_b32 v{64+2*i}, 16, v{xb+i}')
            a(f'v_and_b32 v{64+2*i+1}, 0xffff0000, v{xb+i}')
        for i in range(4):
            y = YB + 8 * (2 * gm + (i >> 1)) + 4 * qh + 2 * (i & 1)
            a(f'v_pk_add_f32 {vr(y,2)}, {vr(y,2)}, {vr(64+2*i,2)}')
    st(23)
    a(f'{name}_spin:')
    check()
    a(f's_cmp_eq_u32 s{S_CNT}, 15')
    a(f's_cbranch_scc1 {name}_got')
    a(poll)
    a(f's_branch {name}_spin')
    a(f'{name}_got:')
    st(6)
    a('s_waitcnt vmcnt(0)')
    st(24)
    allst = [120] + STR
    for qh in range(2):
        t = V_T0 + qh
        a(f'v_max3_f32 v{t}, v{allst[0]+2*qh+1}, v{allst[1]+2*qh+1}, v{allst[2]+2*qh+1}')
        a(f'v_max_f32 v{t}, v{t}, v{allst[3]+2*qh+1}')
    for qh in range(2):
        for b in allst: a(f'v_sub_f32 v{b+2*qh+1}, v{b+2*qh+1}, v{V_T0+qh}')
    for qh in range(2):
        for b in allst: a(f'v_exp_f32 v{b+2*qh+1}, v{b+2*qh+1}')
    for qh in range(2):
        a(f'v_mul_f32 v{V_T0+qh}, v{allst[0]+2*qh}, v{allst[0]+2*qh+1}')
    for b in allst[1:]:
        for qh in range(2): a(f'v_fmac_f32 v{V_T0+qh}, v{b+2*qh}, v{b+2*qh+1}')
    for qh in range(2): a(f'v_rcp_f32 v{V_T0+qh}, v{V_T0+qh}')
    a('s_nop 0')
    for qh in range(2):
        for b in allst: a(f'v_mul_f32 v{b+2*qh+1}, v{b+2*qh+1}, v{V_T0+qh}')
    for i in range(4): a(f'v_or_b32 v{XV+i}, s{S_VALID}, v{XV+i}')
    for qh in range(2):
        for gm in range(4):
            idx = gm * 2 + qh
            ys = [YB + 8 * (2 * gm + (i >> 1)) + 4 * qh + 2 * (i & 1) for i in range(4)]
            for i in range(4):
                a(f'v_pk_fma_f32 {vr(ys[i],2)}, {vr(ys[i]-64,2)}, {vr(120+2*qh,2)}, {vr(ys[i],2)} op_sel:[0,1,0] op_sel_hi:[1,1,1]')
            for k in range(3):
                ub = 64 + 12 * k
                for i in range(4): a(f'v_accvgpr_read_b32 v{ub+8+i}, a{128+(k*8+idx)*4+i}')
                for i in range(4):
                    a(f'v_lshlrev_b32 v{ub+2*i}, 16, v{ub+8+i}')
                    a(f'v_and_b32 v{ub+2*i+1}, 0xffff0000, v{ub+8+i}')
                for i in range(4):
                    a(f'v_pk_fma_f32 {vr(ys[i],2)}, {vr(ub+2*i,2)}, {vr(STR[k]+2*qh,2)}, {vr(ys[i],2)} op_sel:[0,1,0] op_sel_hi:[1,1,1]')
            ob = 100 + 4 * (gm & 1)
            for i in range(4): a(f'v_cvt_pk_bf16_f32 v{ob+i}, v{ys[i]}, v{ys[i]+1}')
            a(f'ds_write_b128 v{XV+4+gm}, {vr(ob,4)} offset:{qh*4096}')
            if qh == 1 and gm == 0:
                a('s_waitcnt lgkmcnt(1)')
                for i in range(4):
                    a(f's_add_u32 s{S_T1}, s{S_T4}, {i*4096}')
                    a(f'buffer_store_dwordx4 {vr(V_S+4*i,4)}, v{XV+i}, {SRO}, s{S_T1} offen {out_flags}')
        for i in range(4): a(f'ds_read_b128 {vr(V_S+16*qh+4*i,4)}, v{V_XO} offset:{(4*qh+i)*1024}')
    for i in range(4):
        a(f's_add_u32 s{S_T1}, s{S_T4}, {(4+i)*4096}')
        a(f's_waitcnt lgkmcnt({3-i})')
        a(f'buffer_store_dwordx4 {vr(V_S+16+4*i,4)}, v{XV+i}, {SRO}, s{S_T1} offen {out_flags}')
    if stamp:
        a('s_waitcnt vmcnt(0)')
        st(7)
        a('s_waitcnt lgkmcnt(0)')
        a(f's_cmp_lg_u32 s{S_W}, 0')
        a(f's_cbranch_scc1 {name}_end')
        a(f's_lshl_b32 s{S_T1}, s2, 7')
        a(f's_add_u32 s{S_T1}, s{S_T1}, {WS_STAMP}')
        for i in range(16): a(f'v_mov_b32 v{16+2*i}, s{80+i}\n v_mov_b32 v{17+2*i}, 0')
        a(f'v_mov_b32 v{V_T0}, 0')
        a('s_mov_b64 exec, 1')
        for i in range(8):
            a(f'buffer_store_dwordx4 {vr(16+4*i,4)}, v{V_T0}, {SRD}, s{S_T1} offen offset:{16*i}')
        if dbgout:
            a(f's_cmp_lg_u32 s2, 0\n s_cbranch_scc1 {name}_end')
            a('s_load_dwordx2 s[4:5], s[0:1], 80')
            a(f's_mov_b32 s{S_T1}, {WS_STAMP + 131072}')
            a(f'buffer_load_dwordx4 v[48:51], v{V_T0}, {SRD}, s{S_T1} offen sc1')
            a(f's_mov_b32 s{S_T1}, {WS_STAMP + 65536}')
            a(f'buffer_load_dwordx4 v[52:55], v{V_T0}, {SRD}, s{S_T1} offen sc1')
            a(f'buffer_load_dwordx4 v[56:59], v{V_T0}, {SRD}, s{S_T1} offen offset:16 sc1')
            a('s_waitcnt vmcnt(0) lgkmcnt(0)')
            a('s_sub_u32 s12, s4, 0\n s_subb_u32 s13, s5, 0\n s_mov_b32 s14, 256\n s_mov_b32 s15, 0x20000')
            src = [50, 52, 54, 56, 58, 16, 18, 20, 22, 30]
            for i, r in enumerate(src): a(f'v_sub_u32 v{64+i}, v{r}, v48')
            for i in range(3): a(f'buffer_store_dwordx4 {vr(64+4*i,4)}, v{V_T0}, s[12:15], 0 offen offset:{16*i}')
            if spin is not None:
                ra, rb = spin
                a(f'v_sub_u32 v80, v{rb}, v{ra}')
                a('v_add_u32 v80, 2000, v80')
                a('v_add_u32 v80, v30, v80')
                a('s_nop 1')
                a('v_readfirstlane_b32 s20, v80')
                a(f'{name}_sp:')
                a('s_memrealtime s[22:23]')
                a('s_waitcnt lgkmcnt(0)')
                a('s_sub_u32 s21, s20, s22')
                a('s_cmp_gt_i32 s21, 0')
                a(f's_cbranch_scc1 {name}_sp')
    a(f'{name}_end:')
    a('s_endpgm')
    p3slow()
    for lab, dst, vo, so in slows:
        a(f'{name}_{lab}s:')
        a('s_sleep 2')
        a(f'buffer_load_dword v{dst}, v{vo}, {SRD}, s{so} offen sc1')
        a('s_waitcnt vmcnt(0)')
        a(f'v_cmp_ne_u32 vcc, 1, v{dst}')
        a(f's_cbranch_vccnz {name}_{lab}s')
        a(f's_branch {name}_{lab}k')
    for lab, op in stubs:
        a(f'{lab}:')
        a(f'{op} sc1')
        a(f's_branch {lab}b')
    a(f'{name}_cfslow:')
    a('s_sleep 2')
    a(f'buffer_load_dword v{V_PFD}, v{V_XO}, {SRD}, s{S_SLOW} offen sc1')
    a('s_waitcnt vmcnt(0)')
    a(f'v_cmp_eq_u32 s[{S_T3}:{S_T3+1}], 0, v{V_PFD}')
    a('s_nop 3')
    a(f's_cmp_eq_u64 s[{S_T3}:{S_T3+1}], 0')
    a(f's_cbranch_scc0 {name}_cfslow')
    a(f's_branch {name}_cfok')
    for (L_r1, L_r1b, L_r2, L_r2b) in rare:
        a(f'{L_r1}:')
        rowmax2(V_T1, V_T2, 120)
        for qh, dst in ((0, V_T1), (1, V_T2)):
            a(f'v_max_f32 v{dst}, 0, v{dst}')
            fr = V_F1 if qh else V_F0
            a(f'v_sub_f32 v{fr}, 0, v{dst}')
            a(f'v_exp_f32 v{fr}, v{fr}')
            for kh in range(2):
                for i in range(4): a(f'v_sub_f32 v{Sreg(kh,qh)+i}, v{Sreg(kh,qh)+i}, v{dst}')
            for i in range(4): a(f'v_sub_f32 v{V_NEGM+4*qh+i}, v{V_NEGM+4*qh+i}, v{dst}')
            l = V_L1 if qh else V_L0
            a(f'v_mul_f32 v{l}, v{l}, v{fr}')
        a(f's_branch {L_r1b}')
        a(f'{L_r2}:')
        a('s_nop 7')
        for beta in range(32):
            for qh in range(2):
                fr = V_F1 if qh else V_F0
                b = Obase(beta, qh)
                if beta < 16:
                    for r in range(4): a(f'v_mul_f32 v{b+r}, v{b+r}, v{fr}')
                else:
                    for r in range(4): a(f'v_accvgpr_read_b32 v{120+r}, a{b+r}')
                    for r in range(4): a(f'v_mul_f32 v{120+r}, v{120+r}, v{fr}')
                    for r in range(4): a(f'v_accvgpr_write_b32 a{b+r}, v{120+r}')
        a(f's_branch {L_r2b}')
    a('code_end:')
    a('s_endpgm')
    kernel_desc(a, name, 512, 102, 256)
```

```python
import sys, json
from asmlib import *
import k1, k2, k3, km
def build(path, stamp=False, o1={}, o2={}, o3={}, nops=0, nop_pos=1, merged=False):
    a = Asm()
    hdr = open('standalone__conformer_family_branchformer__speech.s.ref').read().split('\n')
    for ln in hdr:
        if ln.startswith(';') and '@launch' not in ln and 'Override launch' not in ln and 'grid=ceil' not in ln: a.raw(ln)
    for i in range(nops if nop_pos == 0 else 0): a.raw('; @launch kernel=nop_kernel grid=(256,1,1) block=(256,1,1) lds=0')
    a.raw(f'; @launch kernel=prep_kernel grid=({k1.N_PREP_WG},1,1) block=(512,1,1) lds={k1.PREP_LDS}')
    for i in range(nops if nop_pos == 1 else 0): a.raw('; @launch kernel=nop_kernel grid=(256,1,1) block=(256,1,1) lds=0')
    if not merged: a.raw('; @launch kernel=rg_kernel grid=(256,1,1) block=(512,1,1) lds=163840')
    a.raw('; @launch kernel=attn_kernel grid=(256,1,1) block=(256,1,1) lds=163840')
    a.raw('.amdgcn_target "amdgcn-amd-amdhsa--gfx950"')
    k1.gen_prep(a, 'prep_kernel', stamp=stamp, **o1)
    if not merged:
        k2.gen_rg(a, 'rg_kernel', stamp=stamp, **o2)
        k3.gen_attn(a, 'attn_kernel', stamp=stamp, **o3)
    else:
        km.gen_main(a, 'attn_kernel', stamp=stamp, o2=o2, **o3)
    if nops:
        kernel_begin(a, 'nop_kernel'); a('s_endpgm'); kernel_desc(a, 'nop_kernel', 8, 16, 8)
    open(path, 'w').write(a.text())
if __name__ == '__main__':
    o = json.loads(sys.argv[2]) if len(sys.argv) > 2 else {}
    build(sys.argv[1], **o)
```

```python
from asmlib import *
from layout import *
from attn2 import LdsQ
from k2 import f2h, VmQ
import re
import pz

def regs_of(tok):
    m = re.match(r'-?v\[(\d+):(\d+)\]', tok)
    if m: return set(range(int(m.group(1)), int(m.group(2)) + 1))
    m = re.match(r'-?v(\d+)$', tok)
    if m: return {int(m.group(1))}
    m = re.match(r's(\d+)$', tok)
    if m: return {1000 + int(m.group(1))}
    return set()
def rw(op):
    name_, rest = op.split(' ', 1)
    toks = [t.strip().split(' ')[0] for t in rest.split(',')]
    if name_.startswith('buffer_store'): return set().union(*[regs_of(t) for t in toks]), set()
    w = regs_of(toks[0]); r = set().union(*[regs_of(t) for t in toks[1:]])
    if name_.startswith('v_fmac'): r |= w
    return r, w

def rg4(a, name, K, st, stamp, vm, hooks, slows, LA=6, wait_every=2, bar_back=8, over=1, over2=3, XPRE=24, st_flags='sc1', fdelay=16, defer=0, pp=(16, 46), rp=(20, 40, 62, 108), o1={}):
    V_L16, V_DK0, V_DK1 = K.V_L16, K.V_DK0, K.V_DK1
    V_ST0, V_ST1, V_RA, V_C0, V_C1, V_FO, V_FL, V_T0, V_T1 = 3, 4, 5, 8, 9, 10, 11, 13, 14
    V_WT, V_WD, S_TAG = (K.V_WT0, K.V_WT1), K.V_WD, K.S_TAG
    V_Z, V_HV, V_SS, V_RING, V_GP, V_STG = 16, 24, 32, 64, 96, 112
    NR = 8
    S_W, S_W8K = K.S_W, K.S_W8K
    S_CG, S_WOFF, S_B0, S_B1, S_XO, S_M0, S_M1, S_U, S_FI, S_S0 = 64, 65, 66, 67, 68, 69, 70, 71, 72, 73
    S_RAW = K.S_FLO
    S_T0, S_T1, S_T2 = K.S_T0, K.S_T1, K.S_T2
    SRD = f's[{K.S_SRD}:{K.S_SRD+3}]'
    q = LdsQ()
    def emit(o, tag=None):
        a(o)
        if o.startswith('buffer_'): vm.issue(tag)
        if o.startswith('ds_'): q.issue(tag)
    seq = ['g', 'g', 'q', 'q', 'u', 'u', 'v', 'v']
    half = [0, 1, 0, 1, 0, 1, 0, 1]
    ACN = [128, 160, 192, 224, 128, 192, 224, 32]
    wbase = {'q': 0, 'v': 16, 'u': 32, 'g': 48}
    obase = {'q': WS_Q, 'v': WS_VT, 'u': WS_UC, 'g': WS_G}
    BUF = {2: 2, 3: 3, 6: 3, 7: 2}
    def dma(n):
        out = []
        for g in range(2):
            pre = [f's_add_u32 s{S_T1}, s{S_WOFF}, {(wbase[seq[n]] + half[n]) * TILE}'] if g == 0 else []
            pre += [f's_add_u32 m0, s{S_W8K}, {BUF[n] * TILE + g*4096}', 's_nop 0']
            for i in range(4):
                out.append(pre + [(f'buffer_load_dwordx4 v{V_DK1 if g else V_DK0}, {SRD}, s{S_T1} offen offset:{i*1024} sc1 lds', ('W', n))]); pre = []
        return out
    def rawdma(n, kh):
        out = []
        for i in range(8):
            pre = [f's_add_u32 m0, s{S_W8K}, {kh * TILE + i*1024}', f's_add_u32 s{S_T1}, s{S_RAW}, {(1024 if seq[n] == "g" else 0) + kh * (1 << 19) + i * 16384}']
            out.append(pre + [(f'buffer_load_dwordx4 v{V_WD}, s[76:79], s{S_T1} offen lds', ('W', n, kh))])
        return out
    def run(groups):
        for g in groups:
            for o in g:
                if isinstance(o, tuple): emit(*o)
                else: a(o)
    PA_, PB_, PC = 192, 224, 112
    def flag(kind):
        a(f's_lshl_b32 s{S_T2}, s{ {0: S_U, 6: 3}.get(kind, S_FI) }, 2')
        a(f's_add_u32 s{S_T2}, s{S_T2}, {WS_FLAG2 + 1024 * kind}')
        a(f'v_mov_b32 v{V_T1}, s{S_TAG}')
        emit(f'buffer_store_dword v{V_T1}, v{V_FO}, {SRD}, s{S_T2} offen sc1')
    def mid1():
        a(f's_bfe_u32 s{S_CG}, s2, 0x30003')
        a(f's_lshl_b32 s{S_FI}, s{K.S_GRP}, 2')
        a(f's_and_b32 s{S_FI}, s{S_FI}, 0xf8')
        a(f's_lshl_b32 s{S_XO}, s{S_FI}, 2')
        a(f's_add_u32 s{S_FI}, s{S_FI}, s{S_CG}')
        flag(5)
        a(f's_lshl_b32 s{S_RAW}, s{S_W}, 17')
        a(f's_lshl_b32 s{S_T1}, s{S_CG}, 7')
        a(f's_add_u32 s{S_RAW}, s{S_RAW}, s{S_T1}')
        run(rawdma(0, 0))
        a(f's_add_u32 s{S_XO}, s{S_XO}, {WS_FLAG2 + 5 * 1024}')
        a(f'v_and_b32 v{V_FL}, 7, v0')
        a(f'v_lshlrev_b32 v{V_FL}, 2, v{V_FL}')
    def pollA():
        a(f'buffer_load_dword v27, v{V_FL}, {SRD}, s{S_XO} offen sc1')
    tagslow = pz.prep(a, name, K, st, mid1, pollA, **o1)
    vm.issue('role'); vm.issue('role')
    a(f'v_cmp_ne_u32 vcc, s{S_TAG}, v27')
    a(f's_lshr_b32 s{S_T0}, s{K.S_TILE}, 1')
    a(f's_lshl_b32 s{S_T0}, s{S_T0}, 3')
    a(f's_lshl1_add_u32 s{S_T0}, s{S_W}, s{S_T0}')
    a(f's_cbranch_vccnz {name}_fas')
    a(f'{name}_fak:')
    slows.append(('fa', 27, V_FL, S_XO))
    for rb, (sb, vs) in enumerate(((S_B0, V_ST0), (S_B1, V_ST1))):
        a(f's_add_u32 s{sb}, s{S_T0}, {rb}')
        a(f's_cmp_lt_u32 s{sb}, 125')
        a(f's_cselect_b32 s{S_T1}, 0, 0x80000000')
        a(f'v_or_b32 v{vs}, s{S_T1}, v{V_L16}')
        a(f's_min_u32 s{sb}, s{sb}, 124')
        a(f's_add_u32 s{sb}, s{sb}, s{K.S_B125}')
        a(f's_lshl_b32 s{sb}, s{sb}, 15')
    def xload(i):
        rb, f = i >> 5, i & 31
        pre = []
        if f == 0: pre = [f's_add_u32 s{S_XO}, s{S_B1 if rb else S_B0}, {WS_XA}']
        elif f % 4 == 0: pre = [f's_add_u32 s{S_XO}, s{S_XO}, 4096']
        return pre + [(f'buffer_load_dwordx4 {ar(4*i,4)}, v{V_L16}, {SRD}, s{S_XO} offen offset:{(f%4)*1024} sc1', ('X', i))]
    run([xload(i) for i in range(8)])
    a('s_barrier')
    run(rawdma(0, 1))
    run([xload(i) for i in range(8, XPRE)])
    st(43)
    a(f's_lshl_b32 s{S_WOFF}, s{S_CG}, 16')
    a(f's_add_u32 s{S_WOFF}, s{S_WOFF}, {WS_W}')
    a(f's_and_b32 s{S_T0}, s2, 3')
    a(f's_lshl_b32 s{S_M1}, s{S_T0}, 2')
    a(f's_lshr_b32 s{S_T2}, s2, 6')
    a(f's_add_u32 s{S_M1}, s{S_M1}, s{S_T2}')
    a(f's_and_b32 s{S_M0}, s2, 4')
    a(f's_lshl_b32 s{S_M0}, s{S_M0}, 1')
    a(f's_add_u32 s{S_M0}, s{S_M0}, s{S_CG}')
    a(f's_lshl_b32 s{S_U}, s{S_M1}, 4')
    a(f's_add_u32 s{S_U}, s{S_U}, s{S_M0}')
    a(f's_lshl_b32 s{S_M0}, s{S_M0}, 15')
    a(f's_add_u32 s{S_M0}, s{S_M0}, {WS_RL}')
    a(f's_lshl_b32 s{S_M1}, s{S_M1}, 15')
    a(f's_add_u32 s{S_M1}, s{S_M1}, {WS_T1}')
    c0 = -2.0 * 0.7978845608028654 * 1.4426950408889634
    a(f'v_mov_b32 v{V_C0}, {f2h(c0)}')
    a(f'v_mov_b32 v{V_C1}, {f2h(c0 * 0.044715)}')
    a(f'v_add_u32 v{V_RA}, {2*TILE}, v{V_L16}')
    for i in range(32): a(f'v_mov_b32 v{V_SS+i}, 0')
    a(f's_lshl_b32 s{S_T2}, s{S_CG}, 12')
    a(f's_add_u32 s46, s{S_B0}, s{S_T2}')
    a(f's_add_u32 s47, s{S_B1}, s{S_T2}')
    OS = {'g': 56, 'u': 58, 'q': 60, 'v': 52}
    for ty in 'guqv':
        for rb in range(2): a(f's_add_u32 s{OS[ty]+rb}, s{46+rb}, {obase[ty]}')
    def p3loads():
        out = []
        for base, so in ((PA_, S_M0), (PB_, S_M1)):
            for i in range(8): out.append([(f'buffer_load_dwordx4 {vr(base+4*i,4)}, v{V_DK1 if i >= 4 else V_DK0}, {SRD}, s{so} offen offset:{(i%4)*1024} sc1', 'p3')])
        return out
    def p3mfma():
        a(f's_waitcnt vmcnt({vm.need("p3")})')
        for sl in range(4):
            for ch in range(2):
                for b in range(2):
                    d = vr(PC + ch * 8 + b * 4, 4)
                    a(f'v_mfma_f32_16x16x32_bf16 {d}, {vr(PA_+(2*sl+b)*4,4)}, {vr(PB_+(2*sl+ch)*4,4)}, {d if sl else 0}')
        a(f's_lshl_b32 s{S_M0}, s{S_U}, 11')
        a(f's_lshr_b32 s{S_T2}, s{S_W}, 1')
        a(f's_lshl_b32 s{S_T2}, s{S_T2}, 10')
        a(f's_add_u32 s{S_M0}, s{S_M0}, s{S_T2}')
        a(f's_and_b32 s{S_T2}, s{S_W}, 1')
        a(f's_lshl_b32 s{S_T2}, s{S_T2}, 3')
        a(f's_add_u32 s{S_M0}, s{S_M0}, s{S_T2}')
        a(f's_add_u32 s{S_M0}, s{S_M0}, {WS_W + 16 * TILE}')
        a(f's_lshl_b32 s{S_T2}, s{S_W}, 12')
        a(f's_add_u32 s{S_T2}, s{S_T2}, {4*TILE}')
        a(f'v_add_u32 v{V_T0}, s{S_T2}, v{V_L16}')
        for i in range(4): emit(f'ds_write_b128 v{V_T0}, {vr(PC+4*i,4)} offset:{i*1024}', 'p3w')
    def p3read():
        a(f's_lshl_b32 s{S_T2}, s{S_W}, 10')
        a(f's_add_u32 s{S_T2}, s{S_T2}, {4*TILE}')
        a(f'v_add_u32 v{V_T0}, s{S_T2}, v{V_L16}')
        for w in range(4): emit(f'ds_read_b128 {vr(PC+4*w,4)}, v{V_T0} offset:{w*4096}', 'red')
    def p3sum():
        a(f's_waitcnt lgkmcnt({min(15, q.need("red"))})')
        for i in range(4): a(f'v_add_f32 v{PC+i}, v{PC+i}, v{PC+4+i}')
        for i in range(4): a(f'v_add_f32 v{PC+8+i}, v{PC+8+i}, v{PC+12+i}')
        for i in range(4): a(f'v_add_f32 v{PC+i}, v{PC+i}, v{PC+8+i}')
        for i in range(2): a(f'v_cvt_pk_bf16_f32 v{PC+4+i}, v{PC+2*i}, v{PC+2*i+1}')
        emit(f'buffer_store_dwordx2 {vr(PC+4,2)}, v{V_L16}, {SRD}, s{S_M0} offen sc1', 'p3s')

    stream = []
    for rb in range(2):
        for s in range(16):
            for n in range(2):
                for ch in range(2): stream.append((n, s, ch, rb))
    for n in range(2, 8):
        for f in range(32): stream.append((n, f & 15, f >> 4, None))
    NS = len(stream)
    def slot(G): return V_RING + 4 * (G % NR)
    def rd(G):
        n, s, ch, rb = stream[G]
        if seq[n] in 'gu':
            return [f'ds_read_b64_tr_b16 {vr(slot(G)+2*jj, 2)}, v{V_WT[half[n]]} offset:{s*4096 + jj*512 + ch*8}' for jj in range(2)]
        return [f'ds_read_b128 {vr(slot(G), 4)}, v{V_RA} offset:{(BUF[n] - 2) * TILE + (2 * s + ch) * 1024}']
    def mf(n, s, ch, rb, rh, G):
        x = ar(rb * 128 + (s * 2 + rh) * 4, 4); w = vr(slot(G), 4)
        if seq[n] in 'vg': d = vr(ACN[n] + 16 * rb + ch * 8 + rh * 4, 4); A, B = x, w
        else: d = vr(ACN[n] + 16 * rb + rh * 8 + ch * 4, 4); A, B = w, x
        return f'v_mfma_f32_16x16x32_bf16 {d}, {A}, {B}, {d if s else 0}'
    def mfmas(G):
        n, s, ch, rb = stream[G]
        if rb is not None: return [mf(n, s, ch, rb, rh, G) for rh in range(2)]
        R = [(0, 0), (0, 1), (1, 0), (1, 1)]
        if (s >> 1) & 1: R = R[::-1]
        out = []
        for (b, rh) in R[2 * (s & 1):2 * (s & 1) + 2]:
            for k in range(2): out.append(mf(n, (s & 14) + k, ch, b, rh, (G & ~1) + k))
        return out
    for G in range(LA):
        for o in rd(G): emit(o, G)
    extra = [xload(i) for i in range(XPRE, 64)]
    pkrot = [0]; zrot = [0]
    def epilogue(n, rb):
        ty = seq[n]; ops = []
        for o in range(2):
            base = ACN[n] + 16 * rb + 8 * o
            if ty == 'u' and half[n] * 4 + rb * 2 + o >= 8 - defer: continue
            if ty in 'ug':
                def chain(e):
                    z = (V_Z + e if n > 1 else V_Z + 4 * n + e % 4); x = base + e
                    c = [(f'v_mul_f32 v{z}, v{x}, v{x}', 1), (f'v_fma_f32 v{z}, v{z}, v{V_C1}, v{V_C0}', 1), (f'v_mul_f32 v{z}, v{z}, v{x}', 1),
                         (f'v_exp_f32 v{z}, v{z}', 2), (f'v_add_f32 v{z}, 1.0, v{z}', 1), (f'v_rcp_f32 v{z}, v{z}', 2), (f'v_mul_f32 v{x}, v{x}, v{z}', 1)]
                    if ty == 'g':
                        c += [(f'v_add_f32 v{V_SS+16*rb+e}, v{V_SS+16*rb+e}, v{x}', 1), (f'v_fmac_f32 v{V_SS+16*rb+8+e}, v{x}, v{x}', 1)]
                    return c
                L = len(chain(0))
                for _, e, k in sorted(((2 if n > 1 else 4) * e + 2 * k, e, k) for e in range(8) for k in range(L)): ops.append(chain(e)[k] + (None,))
            if ty == 'u': continue
            pk = base if n else V_GP + 8 * rb + 4 * o
            so = OS[ty] + rb
            for i in range(4): ops.append((f'v_cvt_pk_bf16_f32 v{pk+i}, v{base+2*i}, v{base+2*i+1}', 1, None))
            vo = (V_HV + rb) if ty == 'g' else (V_ST1 if rb else V_ST0)
            if ty != 'u': ops.append((f'buffer_store_dwordx4 {vr(pk,4)}, v{vo}, {SRD}, s{so} offen offset:{half[n]*2048 + o*1024} {st_flags}', 2, ('st', ty)))
        return ops
    def stats_ops(rb):
        ops = []
        for sh in (8, 4, 2, 1):
            for i in range(16):
                r = V_SS + 16 * rb + i
                ops.append((f'v_add_f32_dpp v{r}, v{r}, v{r} row_ror:{sh} row_mask:0xf bank_mask:0xf', 1, None))
        for i in range(4):
            ops.append((f'buffer_store_dwordx4 {vr(V_SS+16*rb+4*i,4)}, v{12 + 3*rb}, {SRD}, s{S_S0+rb} offen offset:{i*64} {st_flags}', 2, ('st', 'g')))
        return ops
    a(f'v_and_b32 v{V_T0}, 15, v0')
    a(f'v_cmp_eq_u32 vcc, 0, v{V_T0}')
    a(f'v_bfrev_b32 v{V_T1}, 1')
    for rb in range(2):
        a(f's_lshr_b32 s{S_S0+rb}, s{S_B1 if rb else S_B0}, 4')
        a(f's_lshl_b32 s{S_T2}, s{S_CG}, 8')
        a(f's_add_u32 s{S_S0+rb}, s{S_S0+rb}, s{S_T2}')
        a(f's_add_u32 s{S_S0+rb}, s{S_S0+rb}, {WS_ST}')
    a(f'v_cndmask_b32 v{V_T0}, v{V_T1}, v0, vcc')
    for rb in range(2):
        a(f'v_and_b32 v{12+3*rb}, v{V_T1}, v{V_ST1 if rb else V_ST0}')
        a(f'v_or_b32 v{12+3*rb}, v{12+3*rb}, v{V_T0}')
    for rb, wv in ((0, 0), (1, 3)):
        a(f's_cmp_eq_u32 s{S_W}, {wv}')
        a(f's_cselect_b32 s{S_T2}, 0, 0x80000000')
        a(f'v_or_b32 v{V_HV+rb}, s{S_T2}, v{V_ST1 if rb else V_ST0}')
    pend = []; lastw = {}; lasts = {}; forced = [0]
    pos = [0]
    def flush_one(op, tag):
        r, w = rw(op)
        prev = a.lines[-1].strip()
        if prev.startswith(('v_exp', 'v_rcp')) and (rw(prev)[1] & r): a('s_nop 0')
        for pv in a.lines[-2:]:
            pv = pv.strip()
            if pv.startswith('buffer_store') and (rw(pv)[0] & w): a('s_nop 1'); break
            if 'dpp' in op and pv.startswith('v_') and not pv.startswith('v_mfma') and (rw(pv)[1] & r): a('s_nop 1'); break
        emit(op, tag)
        for x in w: lastw[x] = pos[0]
        if op.startswith('buffer_store'):
            for x in r: lasts[x] = pos[0]
    def issue_ready(budget, window=28):
        i = 0; p = pos[0]
        while budget > 0 and i < min(window, len(pend)):
            rdy, op, c, tag, t = pend[i]
            r, w = rw(op)
            gap = 2 if 'dpp' in op else 1
            ok = rdy <= p and c <= budget and all(lastw.get(x, -9) + gap <= p for x in r) and all(lasts.get(x, -9) + 2 <= p for x in w)
            if ok:
                for j in range(i):
                    r2, w2 = rw(pend[j][1])
                    if (r & w2) or (w & r2) or (w & w2): ok = False; break
            if ok:
                pend.pop(i); flush_one(op, tag); budget -= c
            else: i += 1
    first_of = {n: min(i for i, it in enumerate(stream) if it[0] == n) for n in range(8)}
    last_of = {}
    for i, it in enumerate(stream):
        for rb in ((0, 1) if it[3] is None else (it[3],)): last_of[(it[0], rb)] = i
    done_at = {}; flagged = set()
    F3 = first_of[3]
    for G in range(NS):
        n, s, ch, rb = stream[G]
        if G in (0, 64): st(30 + G // 64)
        if G >= 128 and G % 32 == 0: st(30 + G // 32 - 2)
        if G == first_of[n]:
            while any((t is not None and ACN[t] == ACN[n]) or (ACN[n] == V_SS and (t is None or seq[t] == 'g')) for (_, _, _, _, t) in pend):
                _, op, _, tag, _ = pend.pop(0); flush_one(op, tag); forced[0] += 1
        w = []
        if n == 0 and ch == 0: w.append(f'vmcnt({min(63, vm.need(("X", 32 * rb + 2 * s + 1)))})')
        we = wait_every
        if G % we == 0: w.append(f'lgkmcnt({min(15, q.need(min(G + we - 1, NS - 1)))})')
        if w: a('s_waitcnt ' + ' '.join(w))
        mm = mfmas(G)
        for h, m in enumerate(mm):
            a(m)
            budget = 2
            ov = over if 'g' not in done_at else over2
            if ov and pos[0] % ov == 0: budget += 1
            if G + LA < NS and h < len(rd(G + LA)): emit(rd(G + LA)[h], G + LA); budget -= 1
            if h == len(mm) - 1 and (G + 1) % we == 0: budget -= 1
            if extra and h == len(mm) // 2 and (rb is None or G % 2 == 0 or G > rp[2]):
                run([extra.pop(0)]); budget = 0
            issue_ready(budget)
            pos[0] += 1
        for ty in 'gq':
            if ty not in done_at and G > last_of[(7 - seq[::-1].index(ty), 1)] and not any(p[3] == ('st', ty) for p in pend): done_at[ty] = G
        for ty, kind in (('g', 1), ('q', 2)):
            if ty in done_at and G == done_at[ty] + fdelay:
                a(f's_waitcnt vmcnt({vm.need(("st", ty))})')
                a('s_barrier')
                flag(kind); flagged.add(kind); print('k2c flag', kind, 'at', G)
        nxt = max(n + 1, 2)
        if nxt < 8 and G == first_of[nxt] - LA - (bar_back - LA):
            tags = []; todo = []; w = []
            if nxt == 4: tags.append(('W', 4, 1))
            elif nxt != 5: tags.append(('W', nxt))
            if nxt == 3: tags.append('p3s'); todo.append(0)
            if tags: w.append(f'vmcnt({min(vm.need(t) for t in tags)})')
            if nxt == 2: w.append(f'lgkmcnt({min(15, q.need("p3w"))})')
            if nxt != 5:
                a('s_waitcnt ' + ' '.join(w))
                a('s_barrier')
            for k in todo: flag(k); flagged.add(k)
            if nxt == 2: p3read()
            if ('bar', nxt) in hooks: extra += hooks[('bar', nxt)]()
        if G == rp[0]:
            a(f's_waitcnt vmcnt({vm.need(("W", 0, 1))})')
            a('s_barrier')
            flag(6)
        if G == rp[1]:
            a(f's_mov_b32 s46, {WS_FLAG2 + 6 * 1024}')
            emit(f'buffer_load_dwordx4 {vr(PC,4)}, v{V_L16}, {SRD}, s46 offen sc1', 'pollr')
        if G == rp[2]:
            a(f's_waitcnt vmcnt({vm.need("pollr")})')
            a(f'{name}_frc:')
            for i in range(4): a(f'v_xor_b32 v{PC+i}, s{S_TAG}, v{PC+i}')
            a(f'v_or3_b32 v{PC}, v{PC}, v{PC+1}, v{PC+2}')
            a(f'v_or_b32 v{PC}, v{PC}, v{PC+3}')
            a(f'v_cmp_ne_u32 vcc, 0, v{PC}')
            a(f's_cbranch_vccnz {name}_frs')
            extra += p3loads() + dma(2) + dma(3)
        if G == rp[3]: p3mfma()
        if G == first_of[2] - 2: p3sum()
        if G == first_of[2] + 4:
            a('s_barrier')
            extra += rawdma(4, 0) + rawdma(4, 1)
        if G - NS in hooks: extra += hooks[G - NS]() or []
        if G == F3 + pp[0]:
            a(f'v_and_b32 v{V_FL}, 31, v0')
            a(f'v_lshlrev_b32 v{V_FL}, 2, v{V_FL}')
            a(f's_lshl_b32 s{S_M1}, s{S_CG}, 7')
            a(f's_add_u32 s{S_M1}, s{S_M1}, {WS_FLAG2}')
            emit(f'buffer_load_dword v27, v{V_FL}, {SRD}, s{S_M1} offen sc1', 'poll')
        if G == F3 + pp[1]:
            a(f's_waitcnt vmcnt({vm.need("poll")})')
            a(f'v_cmp_ne_u32 vcc, s{S_TAG}, v27')
            a(f's_cbranch_vccnz {name}_p3slow')
            a(f'{name}_p3ok:')
            a('s_barrier')
            extra += dma(6) + dma(7)
        for (m, b), l in last_of.items():
            if l == G:
                ep = [(pos[0] + 7, op, c, tag, m) for op, c, tag in epilogue(m, b)]
                if seq[m] in 'qv':
                    pend[:0] = ep
                elif m == 0 and b == 1:
                    k = max([i for i, p in enumerate(pend) if p[4] == 0], default=-1) + 1
                    pend[k:k] = ep
                else:
                    pend += ep
                    if m == 1: pend += [(pos[0] + 7, op, c, tag, None) for op, c, tag in stats_ops(b)]
    print('k2m: forced', forced[0], 'tail', len(pend), 'done', done_at, 'extra left', len(extra))
    st(27); st(38)
    run(extra)
    a('s_nop 7')
    for _, op, _, tag, _ in pend: flush_one(op, tag)
    def slow():
        tagslow()
        a(f'{name}_frs:')
        a('s_sleep 8')
        a(f'buffer_load_dwordx4 {vr(PC,4)}, v{V_L16}, {SRD}, s46 offen sc1')
        a('s_waitcnt vmcnt(0)')
        a(f's_branch {name}_frc')
        a(f'{name}_p3slow:')
        a('s_sleep 8')
        a(f'buffer_load_dword v27, v{V_FL}, {SRD}, s{S_M1} offen sc1')
        a('s_waitcnt vmcnt(0)')
        a(f'v_cmp_ne_u32 vcc, s{S_TAG}, v27')
        a(f's_cbranch_vccnz {name}_p3slow')
        a(f's_branch {name}_p3ok')
    assert flagged == {0, 1, 2}
    return flag, slow
```

```python
from asmlib import *
from layout import *
from attn2 import LdsQ
from k2 import f2h, VmQ, code_prefetch

V_DK0, V_DK1, V_DV0, V_DV1, V_KA, V_VA, V_L16, V_L0, V_L1, V_MX, V_F0, V_F1, V_T0, V_T1, V_T2 = range(1, 16)
V_S, V_E, V_P, V_NEGM, V_RING = 16, 32, 48, 56, 64
V_PF, V_PFD, V_XO, V_FL = 116, 117, 118, 119
V_WT0, V_WT1, V_WD, V_FO = 6, 28, 29, 10
S_TAG = 75
S_X, S_OUTP, S_WS, S_SRD, S_SRX, S_SRO = 4, 6, 40, 8, 12, 16
(S_KOFF, S_VOFF, S_KDMA, S_VDMA, S_VRD, S_CNT, S_W, S_QB, S_SPLIT, S_T0, S_T1, S_VALID, S_GRP, S_W8K, S_PFOFF, S_T2) = range(20, 36)
S_TILE, S_B125, S_T3, S_T4 = 36, 37, 38, 39
S_WB0, S_WB1, S_WB2, S_WB3, S_UCO, S_WCO, S_FLO, S_PO = range(56, 64)
S_PFS, S_PFST, S_PH, S_XCC, S_SLOW, S_PB = 44, 45, 46, 47, 48, 54

def Obase(beta, qh): return 128 + 8 * (beta % 16) + 4 * qh
def Oreg(beta, qh): return vr(Obase(beta, qh), 4) if beta < 16 else ar(Obase(beta, qh), 4)

def gen_main(a, name, dma_gap=3, dma_cost=2, CAP=2, bar_pos=50, NR=13, LA=10, wait_every=4, THR=0x41800000,
             stamp=False, snake=True, prefetch=2, pf=True, pv_pace=4, pv_budget=6, out_flags='sc1', npf=0, fast_st='nt', flag_at=140, force_slow=True, tailst=False, pfill=False, st_pace=9, ld_pace=2, yc_budget=2, bg_pace=14, tailpf=True, pf_flags='sc1', uc_pace=4, chk_at=60, merged=True, gst=False, pst=False, slp=8, pf_wg=0, o2={}, hk=(-48, -24, -74), vchk=16, dbg=(), dbgout=False, spin=None, brgap=3, chain=True, poll_after=8, r_pace=5, chk2_at=0, noyc=False, ld_per_st=0, flag_after=0, rounds=((56, 3), (112, 3))):
    SRD, SRX, SRO = [f's[{b}:{b+3}]' for b in (S_SRD, S_SRX, S_SRO)]
    def st(i, cyc=False):
        gs = [1, 2, 3, 4, 5, 6, 8, 9, 12, 13, 14, 15]
        if i >= 40:
            if i == 43: i = 10
            elif pst: i = [4, 5, 6][i - 40]
            else: return
        elif pst and i in (4, 5, 6): return
        if i >= 30:
            if not gst: return
            i = gs[i - 30]; cyc = True
        elif gst and i in gs: return
        if tailst and 10 <= i <= 14: return
        if 20 <= i < 26:
            if not tailst: return
            i -= 10
        if i >= 26: i -= 16
        if stamp:
            a(f'{"s_memtime" if cyc else "s_memrealtime"} s[100:101]')
            a('s_waitcnt lgkmcnt(0)')
            a(f's_mov_b32 s{80+i}, s100')
    kernel_begin(a, name)
    a(f's_cmp_ge_u32 s2, 256\n s_cbranch_scc1 {name}_end')
    a('s_load_dwordx16 s[56:71], s[0:1], 0')
    a('s_load_dwordx8 s[72:79], s[0:1], 64')
    st(0)
    if pf:
        a(f's_getpc_b64 s[42:43]')
        a(f'{name}_pc:')
        a(f's_sub_u32 s42, s42, {name}_pc-{name}')
        a(f's_subb_u32 s43, s43, 0')
        a(f's_lshr_b32 s44, s2, 3')
        a(f's_mul_i32 s44, s44, 3072')
        a(f'v_subrev_u32 v13, 192, v0')
        a(f'v_cmp_gt_u32 vcc, 24, v13')
        a(f'v_lshlrev_b32 v13, 7, v13')
        a(f'v_add_u32 v13, s44, v13')
        a(f'v_min_u32 v13, {name}_end-{name}-4, v13')
        a(f's_and_saveexec_b64 s[44:45], vcc')
        a(f's_cbranch_execz {name}_nopf')
        a(f'global_load_dword v250, v13, s[42:43]')
        a(f'{name}_nopf:')
        a(f's_mov_b64 exec, s[44:45]')
    a(f'v_lshrrev_b32 v{V_T0}, 6, v0')
    a(f'v_cmp_eq_u32 vcc, 0, v0')
    a(f'v_bfrev_b32 v{V_T1}, 1')
    a(f'v_and_b32 v0, 63, v0')
    a(f'v_readfirstlane_b32 s{S_W}, v{V_T0}')
    a(f'v_lshlrev_b32 v{V_L16}, 4, v0')
    a(f'v_cndmask_b32 v{V_FO}, v{V_T1}, 0, vcc')
    a(f's_and_b32 s{S_T0}, s2, 7')
    a(f's_lshr_b32 s{S_T1}, s2, 3')
    a(f's_and_b32 s{S_SPLIT}, s{S_T1}, 3')
    a(f's_lshr_b32 s{S_T1}, s{S_T1}, 2')
    a(f's_lshl_b32 s{S_PFOFF}, s{S_T1}, 2')
    a(f's_and_b32 s{S_TILE}, s{S_T0}, 3')
    a(f's_lshl_b32 s{S_TILE}, s{S_TILE}, 3')
    a(f's_add_u32 s{S_TILE}, s{S_TILE}, s{S_T1}')
    a(f's_lshr_b32 s{S_T0}, s{S_T0}, 2')
    a(f's_lshl_b32 s{S_GRP}, s{S_T0}, 5')
    a(f's_add_u32 s{S_GRP}, s{S_GRP}, s{S_TILE}')
    a(f's_mul_i32 s{S_B125}, s{S_T0}, 125')
    ucst = []
    def late_setup():
        a(f's_lshl_b32 s{S_QB}, s{S_TILE}, 2')
        a(f's_add_u32 s{S_QB}, s{S_QB}, s{S_W}')
        a(f's_cmp_lt_u32 s{S_QB}, 125')
        a(f's_cselect_b32 s{S_VALID}, 0, 0x80000000')
        a(f's_min_u32 s{S_QB}, s{S_QB}, 124')
        a(f's_add_u32 s{S_QB}, s{S_QB}, s{S_B125}')
        a(f's_mul_i32 s{S_T1}, s{S_SPLIT}, 31')
        a(f's_cmp_lg_u32 s{S_SPLIT}, 0')
        a(f's_addc_u32 s{S_T1}, s{S_T1}, s{S_B125}')
        a(f's_cmp_lg_u32 s{S_SPLIT}, 0')
        a(f's_cselect_b32 s{S_CNT}, 29, 30')
        a(f's_lshl_b32 s{S_KOFF}, s{S_T1}, 15')
        a(f's_add_u32 s{S_VOFF}, s{S_KOFF}, {WS_VT}')
        if WS_XA: a(f's_add_u32 s{S_KOFF}, s{S_KOFF}, {WS_XA}')
        a(f's_lshl_b32 s{S_W8K}, s{S_W}, 13')
        a(f'v_add_u32 v{V_DK0}, s{S_W8K}, v{V_L16}')
        a(f'v_add_u32 v{V_DK1}, 4096, v{V_DK0}')
    vm = VmQ()
    def emit(o, tag=None):
        a(o)
        if o.startswith('buffer_'): vm.issue(tag)
    def dma_ops(v0, v1, soff, sbase):
        ops = []
        for g in range(2):
            for i in range(4):
                pre = None
                if i == 0:
                    pre = f's_mov_b32 m0, s{sbase}' if g == 0 else f's_add_u32 m0, s{sbase}, 4096'
                ops.append((pre, f'buffer_load_dwordx4 v{v0 if g == 0 else v1}, {SRD}, s{soff} offen offset:{i*1024} sc1 lds'))
        return ops
    def emit_dma_now(tag, *args):
        for pre, op in dma_ops(*args):
            if pre: a(pre); a('s_nop 0')
            emit(op, tag)
    def xreduce(regs, op, tmp):
        for sw in ('v_permlane16_swap_b32', 'v_permlane32_swap_b32'):
            for i, r in enumerate(regs): a(f'v_mov_b32 v{tmp+i}, v{r}')
            if len(regs) < 3: a('s_nop 1')
            else: a('s_nop 0')
            for i, r in enumerate(regs): a(f'{sw} v{tmp+i}, v{r}')
            a('s_nop 1')
            for i, r in enumerate(regs): a(f'{op} v{r}, v{r}, v{tmp+i}')

    import k2z, sys
    late_setup()
    GN = 3 * TILE; GS = 584; CV = GN + 64 * GS; CS = 144; TB = CV + 20480
    S_VF = [42, 43, 49]; S_B10 = [50, 51, 45]; S_BT, S_RT = 63, 55
    S_CG = 64
    V_PL, V_PQ, V_HD = 26, 27, 28
    STL = [[112, 116], [120, 124], [164, 172]]
    def poll_ops(first_expr, ngrp, kind, dst, tag):
        pass
    def slowpoll(lab, dst, vo, so):
        slows.append((lab, dst, vo, so))
    slows = []
    def h_poll1():
        assert hk[2] < hk[0]
        chk('fq', V_PQ, 11, S_SLOW, 'pollq')
        a(f'v_lshrrev_b32 v11, 3, v0')
        a(f'v_min_u32 v11, 2, v11')
        a(f's_sub_u32 s{S_T3}, s{S_BT}, 1')
        a(f'v_add_u32 v11, s{S_T3}, v11')
        a(f'v_med3_i32 v11, v11, 0, 15')
        a(f'v_and_b32 v13, 7, v0')
        a(f'v_lshl_add_u32 v11, v11, 3, v13')
        a(f'v_lshlrev_b32 v11, 2, v11')
        a(f's_and_b32 s{S_T3}, s{S_GRP}, 32')
        a(f's_lshl_b32 s{S_T3}, s{S_T3}, 4')
        a(f's_add_u32 s{S_T3}, s{S_T3}, {WS_FLAG2 + 1024}')
        emit(f'buffer_load_dword v{V_PL}, v11, {SRD}, s{S_T3} offen sc1', 'poll1')
    def chk(lab, dst, vo, so, tag):
        a(f's_waitcnt vmcnt({vm.need(tag)})')
        a(f'v_cmp_ne_u32 vcc, s{S_TAG}, v{dst}')
        a(f's_cbranch_vccnz {name}_{lab}s')
        a(f'{name}_{lab}k:')
        slows.append((lab, dst, vo, so))
    def h_loads1():
        chk('f1', V_PL, 11, S_T3, 'poll1')
        out = []
        for rnd in range(3):
            pre = [f's_lshl_b32 s{S_T4}, s{S_BT}, 3']
            if rnd < 2: pre.append(f's_add_u32 s{S_B10[rnd]}, s{S_W}, {4*rnd}')
            else: pre += [f's_cmp_lt_u32 s{S_W}, 2', f's_cselect_b32 s{S_T3}, 8, 4', f's_add_u32 s{S_B10[2]}, s{S_W}, s{S_T3}']
            pre += [f's_add_u32 s{S_T3}, s{S_T4}, s{S_B10[rnd]}', f's_sub_u32 s{S_T3}, s{S_T3}, 1', f's_cmp_lt_u32 s{S_T3}, 125',
                    f's_cselect_b32 s{S_VF[rnd]}, 1.0, 0', f's_cselect_b32 s{S_T3}, s{S_T3}, s{S_T4}', f's_add_u32 s{S_T3}, s{S_T3}, s{S_B125}',
                    f's_lshl_b32 s{S_T3}, s{S_T3}, 11', f's_add_u32 s{S_T3}, s{S_T3}, {WS_ST}']
            for h in range(2):
                out.append(pre + [(f'buffer_load_dwordx4 {vr(STL[rnd][h],4)}, v{V_L16}, {SRD}, s{S_T3} offen offset:{h*1024} sc1', 'st')]); pre = []
        pre = [f's_and_b32 s{S_PH}, s{S_W}, 1', f's_mul_i32 s{S_T3}, s{S_PH}, 9', f's_add_u32 s{S_T3}, s{S_T3}, s{S_T4}', f's_sub_u32 s{S_T3}, s{S_T3}, 1',
               f's_cmp_lt_u32 s{S_T3}, 125', f's_cselect_b32 s{S_T3}, s{S_T3}, s{S_T4}', f's_add_u32 s{S_T3}, s{S_T3}, s{S_B125}', f's_lshl_b32 s{S_T3}, s{S_T3}, 15',
               f's_lshr_b32 s{S_XCC}, s{S_W}, 1', f's_lshl1_add_u32 s{S_XCC}, s{S_CG}, s{S_XCC}', f's_lshl_b32 s{S_XCC}, s{S_XCC}, 11', f's_add_u32 s{S_T3}, s{S_T3}, s{S_XCC}',
               f's_xor_b32 s{S_XCC}, s{S_PH}, 1', f's_lshl_b32 s{S_XCC}, s{S_XCC}, 3', f's_add_u32 s{S_T3}, s{S_T3}, s{S_XCC}', f's_add_u32 s{S_T3}, s{S_T3}, {WS_G}']
        for ch in range(2):
            out.append(pre + [(f'buffer_load_dwordx2 {vr(V_HD+2*ch,2)}, v{V_L16}, {SRD}, s{S_T3} offen offset:{ch*1024} sc1', 'st')]); pre = []
        return out
    def h_k0():
        out = []
        first = [f's_mov_b32 s{S_KDMA}, s{S_W8K}']
        for pre, op in dma_ops(V_DK0, V_DK1, S_KOFF, S_KDMA):
            out.append(first + ([pre, 's_nop 0'] if pre else []) + [(op, 'K0')]); first = []
        pre = [f's_mul_i32 s{S_T4}, s{S_CG}, 20480', f's_mul_i32 s{S_XCC}, s{S_W}, 5120', f's_add_u32 s{S_T4}, s{S_T4}, s{S_XCC}',
               f's_add_u32 s{S_T4}, s{S_T4}, {WS_DWT}', f's_add_u32 m0, s{S_XCC}, {CV}', 's_nop 0']
        for i in range(5):
            if i == 4: pre = [f's_add_u32 s{S_T4}, s{S_T4}, 4096', f's_add_u32 m0, s{S_XCC}, {CV + 4096}', 's_nop 0']
            out.append(pre + [(f'buffer_load_dwordx4 v{V_L16}, {SRD}, s{S_T4} offen offset:{(i%4)*1024} sc1 lds', 'K0')]); pre = []
        return out
    def h_pollq():
        a(f's_lshr_b32 s{S_BT}, s{S_TILE}, 1')
        a(f's_lshr_b32 s{S_RT}, s{S_GRP}, 1')
        a(f's_mov_b32 s{S_PFS}, {f2h(1/512)}')
        a(f'v_and_b32 v11, 7, v0')
        a(f'v_lshlrev_b32 v11, 2, v11')
        a(f's_lshl_b32 s{S_SLOW}, s{S_RT}, 5')
        a(f's_add_u32 s{S_SLOW}, s{S_SLOW}, {WS_FLAG2 + 2048}')
        emit(f'buffer_load_dword v{V_PQ}, v11, {SRD}, s{S_SLOW} offen sc1', 'pollq')
    hooks = {hk[0]: h_poll1, hk[1]: h_loads1, ('bar', 7): h_k0, hk[2]: h_pollq}
    flagf, p3slow = k2z.rg4(a, name, sys.modules[__name__], st, stamp, vm, hooks, slows, **o2)
    AT = [[64, 68, 72, 76, 80, 84, 88, 92, 16, 20], [224, 228, 232, 236, 240, 244, 248, 252, 180, 188]]
    UACC = [128, 192]
    def gfrag(T, rb, ch): return (96 + 8 * rb + 4 * ch) if T == 0 else (160 + 16 * rb + 8 * ch)
    bg = []
    bg.append(f's_lshl_b32 s{S_T1}, s{S_QB}, 15')
    bg.append(f's_add_u32 s{S_T1}, s{S_T1}, {WS_Q}')
    for f in range(32):
        if f % 4 == 0 and f: bg.append(f's_add_u32 s{S_T1}, s{S_T1}, 4096')
        bg.append((f'buffer_load_dwordx4 {ar(4*f,4)}, v{V_L16}, {SRD}, s{S_T1} offen offset:{(f%4)*1024} sc1', ('Q', f)))
    def bg_dma(tag, *args, **kw):
        for pre, op in dma_ops(*args, **kw):
            if pre: bg.append(pre); bg.append('s_nop 0')
            bg.append((op, tag))
    bgc = [0]
    def bgone():
        while bg:
            o = bg.pop(0)
            if isinstance(o, tuple):
                emit(*o); return
            a(o)
    def c(o, every=bg_pace):
        a(o); bgc[0] += 1
        if bgc[0] % every == 0: bgone()
    for _ in range(4): bgone()
    defer = o2.get('defer', 0)
    for idx in range(8 - defer, 8):
        base = UACC[idx >> 2] + 8 * (idx & 3); Z = 64
        for i in range(4): c(f'v_pk_mul_f32 {vr(Z+2*i,2)}, {vr(base+2*i,2)}, {vr(base+2*i,2)}')
        for i in range(4): c(f'v_pk_fma_f32 {vr(Z+2*i,2)}, {vr(Z+2*i,2)}, v[8:9], v[8:9] op_sel:[0,1,0] op_sel_hi:[1,1,0]')
        for i in range(4): c(f'v_pk_mul_f32 {vr(Z+2*i,2)}, {vr(Z+2*i,2)}, {vr(base+2*i,2)}')
        for i in range(8): c(f'v_exp_f32 v{Z+i}, v{Z+i}')
        for i in range(4): c(f'v_pk_add_f32 {vr(Z+2*i,2)}, {vr(Z+2*i,2)}, 1.0 op_sel_hi:[1,0]')
        for i in range(8): c(f'v_rcp_f32 v{Z+i}, v{Z+i}')
        for i in range(4): c(f'v_pk_mul_f32 {vr(base+2*i,2)}, {vr(base+2*i,2)}, {vr(Z+2*i,2)}')
    SC = 56
    a(f's_waitcnt vmcnt({vm.need("st")})')
    R = [(STL[r][0] + i, STL[r][1] + i) for r in range(3) for i in range(4)]
    TM = 32
    for x, y in R: c(f'v_add_f32 v{x}, v{x}, v{y}')
    xreduce([x for x, y in R], 'v_add_f32', TM)
    a('s_nop 0')
    for x, y in R: c(f'v_mov_b32_dpp v{y}, v{x} row_ror:8 row_mask:0xf bank_mask:0xf')
    for x, y in R: c(f'v_mul_f32 v{x}, {f2h(1/512)}, v{x}')
    for i, (x, y) in enumerate(R): c(f'v_mul_f32 v{TM+i}, v{x}, v{x}')
    for i, (x, y) in enumerate(R): c(f'v_fma_f32 v{y}, v{y}, s{S_PFS}, -v{TM+i}')
    for x, y in R: c(f'v_max_f32 v{y}, 0, v{y}')
    for x, y in R: c(f'v_add_f32 v{y}, {f2h(1e-5)}, v{y}')
    for x, y in R: c(f'v_rsq_f32 v{y}, v{y}')
    for i, (x, y) in enumerate(R): c(f'v_mul_f32 v{y}, s{S_VF[i>>2]}, v{y}')
    for x, y in R: c(f'v_mul_f32 v{x}, -v{x}, v{y}')
    a('s_mov_b64 exec, 0xff')
    for r in range(3):
        a(f's_lshl_b32 s{S_T0}, s{S_B10[r]}, 8')
        a(f's_add_u32 s{S_T0}, s{S_T0}, {TB}')
        a(f'v_add_u32 v{V_T0}, s{S_T0}, v{V_L16}')
        a(f'ds_write_b128 v{V_T0}, {vr(STL[r][1],4)}')
        a(f'ds_write_b128 v{V_T0}, {vr(STL[r][0],4)} offset:128')
    a('s_mov_b64 exec, -1')
    A_NW, A_TR, A_HW, A_HT, A_BR, A_CW, A_CR = 5, 6, 8, 9, 11, 12, 15
    a(f'v_and_b32 v{V_T0}, 15, v0')
    a(f'v_lshrrev_b32 v{V_T1}, 4, v0')
    a(f'v_mul_u32_u24 v{A_HW}, {GS}, v{V_T0}')
    a(f'v_lshl_add_u32 v{A_HW}, v{V_T1}, 3, v{A_HW}')
    a(f's_lshl_b32 s{S_T0}, s{S_W}, 7')
    a(f's_add_u32 s{S_T0}, s{S_T0}, {GN}')
    a(f'v_add_u32 v{A_NW}, s{S_T0}, v{A_HW}')
    a(f's_lshr_b32 s{S_T2}, s{S_W}, 1')
    a(f's_mul_i32 s{S_T2}, s{S_T2}, {32*GS}')
    a(f's_mul_i32 s{S_T3}, s{S_PH}, {68*8}')
    a(f's_add_u32 s{S_T2}, s{S_T2}, s{S_T3}')
    a(f's_add_u32 s{S_T2}, s{S_T2}, {GN}')
    a(f'v_add_u32 v{A_HW}, s{S_T2}, v{A_HW}')
    a(f'v_lshlrev_b32 v{A_HT}, 4, v{V_T1}')
    a(f's_lshl_b32 s{S_T2}, s{S_W}, 9')
    a(f's_add_u32 s{S_T2}, s{S_T2}, {TB + 256}')
    a(f'v_add_u32 v{A_TR}, s{S_T2}, v{A_HT}')
    a(f's_mul_i32 s{S_T2}, s{S_PH}, {9*256 - 64}')
    a(f's_add_u32 s{S_T2}, s{S_T2}, {TB + 64}')
    a(f'v_add_u32 v{A_HT}, s{S_T2}, v{A_HT}')
    a(f'v_lshrrev_b32 v{A_CW}, 2, v0')
    a(f'v_and_b32 v{V_T0}, 3, v0')
    a(f'v_mul_u32_u24 v{A_BR}, {GS}, v{A_CW}')
    a(f'v_lshl_add_u32 v{A_BR}, v{V_T0}, 5, v{A_BR}')
    a(f'v_add_u32 v{A_BR}, s{S_T0}, v{A_BR}')
    a(f'v_and_b32 v{A_CW}, 3, v{A_CW}')
    a(f'v_lshl_add_u32 v{A_CW}, v{V_T1}, 3, v{A_CW}')
    a(f'v_mul_u32_u24 v{A_CW}, {CS}, v{A_CW}')
    a(f's_mul_i32 s{S_T2}, s{S_W}, {32*CS}')
    a(f's_add_u32 s{S_T2}, s{S_T2}, {CV}')
    a(f'v_add_u32 v{A_CW}, s{S_T2}, v{A_CW}')
    a(f'v_lshl_add_u32 v{A_CR}, v{V_T0}, 3, v{A_CW}')
    a(f'v_lshl_add_u32 v{A_CW}, v{V_T0}, 5, v{A_CW}')
    a('s_waitcnt lgkmcnt(0)')
    a('s_barrier')
    st(12)
    bg += [f's_add_u32 s{S_KOFF}, s{S_KOFF}, {TILE}', f's_add_u32 s{S_KDMA}, s{S_KDMA}, {TILE}']
    bg_dma('K1', V_DK0, V_DK1, S_KOFF, S_KDMA)
    bg += [f's_add_u32 s{S_KOFF}, s{S_KOFF}, {TILE}']
    lq = LdsQ()
    a(f'v_add_u32 v{V_T0}, {CV}, v{V_L16}')
    twr = [f'ds_read_b128 {vr(AT[i//10][i%10],4)}, v{V_T0} offset:{i*1024}' for i in range(20)]
    units = [('h',)] + [(rb, hf) for rb in range(2) for hf in range(2)]
    def tread(n):
        t = 112 + 8 * (n % 2); u = units[n]
        ad, off = (A_HT, 0) if u[0] == 'h' else (A_TR, u[0] * 256 + u[1] * 64)
        a(f'ds_read_b128 {vr(t,4)}, v{ad} offset:{off}'); lq.issue(('t', n))
        a(f'ds_read_b128 {vr(t+4,4)}, v{ad} offset:{off + 128}'); lq.issue(('t', n))
    tread(0)
    for n, u in enumerate(units):
        if n + 1 < len(units): tread(n + 1)
        t = 112 + 8 * (n % 2)
        a(f's_waitcnt lgkmcnt({lq.need(("t", n))})')
        for _ in range(4): a(twr.pop(0)); lq.issue('tw')
        for T in range(1 if u[0] == 'h' else 2):
            src = lambda ch: (V_HD + 2 * ch) if u[0] == 'h' else gfrag(T, u[0], ch) + 2 * u[1]
            for ch in range(2):
                for i in range(2):
                    c(f'v_lshlrev_b32 v{SC+4*ch+2*i}, 16, v{src(ch)+i}')
                    c(f'v_and_b32 v{SC+4*ch+2*i+1}, 0xffff0000, v{src(ch)+i}')
            for ch in range(2):
                for i in range(2): c(f'v_pk_fma_f32 {vr(SC+4*ch+2*i,2)}, {vr(SC+4*ch+2*i,2)}, {vr(t+2*i,2)}, {vr(t+4+2*i,2)}')
            for ch in range(2):
                for i in range(2): c(f'v_cvt_pk_bf16_f32 v{src(ch)+i}, v{SC+4*ch+2*i}, v{SC+4*ch+2*i+1}')
                if u[0] == 'h': a(f'ds_write_b64 v{A_HW}, {vr(src(ch),2)} offset:{ch*16*GS}')
                else: a(f'ds_write_b64 v{A_NW}, {vr(src(ch),2)} offset:{(32*T + 16*ch)*GS + (4 + 8*u[0] + 4*u[1])*8}')
                lq.issue('w')
    a(f's_waitcnt vmcnt({vm.need(("st", "v"))}) lgkmcnt(0)')
    a('s_barrier')
    flagf(3)
    st(13)
    BR = [32, 96]
    def acc(aa): return (56 + 4 * aa) if aa < 2 else (120 + 4 * (aa - 2))
    def bread(gi):
        for e in range(12):
            a(f'ds_read_b64 {vr(BR[gi&1]+2*e,2)}, v{A_BR} offset:{gi*16*GS + e*8}'); lq.issue(('b', gi, e))
    bread(0)
    CF = 160; PKc = 176
    def mult(T):
        for fr in range(4):
            rb, rh = fr >> 1, fr & 1
            cc = CF + 4 * fr; u = UACC[T] + 16 * rb + 8 * rh; ub = 64 + 8 * (fr & 1)
            a(f's_waitcnt lgkmcnt({min(15, lq.need(("tr", T, fr)))})')
            for i in range(4):
                c(f'v_lshlrev_b32 v{ub+2*i}, 16, v{cc+i}')
                c(f'v_and_b32 v{ub+2*i+1}, 0xffff0000, v{cc+i}')
            for i in range(4): c(f'v_pk_mul_f32 {vr(ub+2*i,2)}, {vr(ub+2*i,2)}, {vr(u+2*i,2)}')
            for i in range(4): c(f'v_cvt_pk_bf16_f32 v{u+i}, v{ub+2*i}, v{ub+2*i+1}')
            ucst.append(f'buffer_store_dwordx4 {vr(u,4)}, v{3+rb}, {SRD}, s{58+rb} offen offset:{T*2048 + rh*1024} sc1')
    for gi in range(4):
        T, ch = gi >> 1, gi & 1
        if gi < 3: bread(gi + 1)
        for dl in range(9):
            if dl % 3 == 0: a(f's_waitcnt lgkmcnt({min(15, lq.need(("b", gi, dl + 5)))})')
            ar_ = AT[T][5 * ch + dl // 2] + 2 * (dl & 1)
            for aa in range(4):
                d = vr(acc(aa), 4)
                c(f'v_mfma_f32_4x4x4_16b_bf16 {d}, {vr(ar_,2)}, {vr(BR[gi&1]+2*(aa+dl),2)}, {d if dl else 0}', bg_pace // 2)
        a('s_nop 4')
        for p in range(2):
            pk = PKc if p == 0 else 184
            for k in range(2):
                b = acc(2 * p + k)
                c(f'v_cvt_pk_bf16_f32 v{pk+2*k}, v{b}, v{b+1}')
                c(f'v_cvt_pk_bf16_f32 v{pk+2*k+1}, v{b+2}, v{b+3}')
            a(f'ds_write_b128 v{A_CW}, {vr(pk,4)} offset:{ch*4*CS + 16*p}'); lq.issue('cw')
        if gi == 2: mult(0)
        if ch == 1:
            for fr in range(4):
                for jj in range(2):
                    a(f'ds_read_b64_tr_b16 {vr(CF+4*fr+2*jj,2)}, v{A_CR} offset:{jj*4*CS + fr*32}'); lq.issue(('tr', T, fr))
    while bg: bgone()
    a(f's_sub_u32 s{S_T0}, s{S_VOFF}, {WS_VT}')
    a(f's_lshr_b32 s{S_T0}, s{S_T0}, 15')
    a(f's_sub_u32 s{S_T0}, s{S_T0}, s{S_B125}')
    a(f's_add_u32 s{S_T2}, s{S_T0}, s{S_CNT}')
    a(f's_add_u32 s{S_T2}, s{S_T2}, 1')
    a(f's_lshr_b32 s{S_T0}, s{S_T0}, 3')
    a(f's_lshr_b32 s{S_T2}, s{S_T2}, 3')
    a(f'v_lshrrev_b32 v{A_NW}, 3, v0')
    a(f'v_add_u32 v{A_NW}, s{S_T0}, v{A_NW}')
    a(f'v_min_u32 v{A_NW}, s{S_T2}, v{A_NW}')
    a(f'v_and_b32 v{V_T0}, 7, v0')
    a(f'v_lshl_add_u32 v{A_NW}, v{A_NW}, 3, v{V_T0}')
    a(f'v_lshlrev_b32 v{V_XO}, 2, v{A_NW}')
    a(f's_and_b32 s{S_T3}, s{S_GRP}, 32')
    a(f's_lshl_b32 s{S_T3}, s{S_T3}, 4')
    a(f's_add_u32 s{S_T3}, s{S_T3}, {WS_FLAG2 + 3072}')
    mult(1)
    emit(f'buffer_load_dword v{V_PFD}, v{V_XO}, {SRD}, s{S_T3} offen sc1', 'pollv')
    for op in ucst: emit(op, 'ucs')
    a(f'v_mov_b32 v127, v10')
    a(f's_add_u32 s{S_T1}, s{S_W}, s{S_SPLIT}')
    a(f's_and_b32 s{S_T1}, s{S_T1}, 3')
    a(f's_lshl_b32 s{S_T1}, s{S_T1}, 13')
    a(f'v_add_u32 v{V_DV0}, s{S_T1}, v{V_L16}')
    a(f'v_add_u32 v{V_DV1}, 4096, v{V_DV0}')
    a(f's_mov_b32 s{S_KDMA}, s{S_W8K}')
    a(f's_mov_b32 s{S_VRD}, {2*TILE}')
    st(1)
    if prefetch:
        a(f's_add_u32 s{S_PFOFF}, s{S_PFOFF}, s{S_W}')
        a(f's_and_b32 s{S_T1}, s{S_PFOFF}, 15')
        a(f's_lshl_b32 s{S_T1}, s{S_T1}, 11')
        a(f's_cmp_ge_u32 s{S_PFOFF}, 16')
        a(f's_cselect_b32 s{S_PFOFF}, {WS_VT - WS_XA - TILE}, 0')
        a(f's_add_u32 s{S_T1}, s{S_T1}, s{S_PFOFF}')
        a(f's_add_u32 s{S_T1}, s{S_T1}, {prefetch * TILE}')
        a(f'v_lshlrev_b32 v{V_PF}, 5, v0')
        a(f'v_add_u32 v{V_PF}, s{S_T1}, v{V_PF}')
    a(f'v_mov_b32 v{V_KA}, v{V_L16}')
    a(f'v_add_u32 v{V_VA}, s{S_VRD}, v{V_L16}')
    a(f'v_mov_b32 v{V_L0}, 0')
    a(f'v_mov_b32 v{V_L1}, 0')
    nround = -(-64 // NR)
    sizes = [64 // nround + (1 if i < 64 % nround else 0) for i in range(nround)]
    slotmap = [i for sz in sizes for i in range(sz)]
    assert LA + 1 <= min(sizes) and max(sizes) <= NR and V_RING + 4 * NR <= V_PF
    def slot(f): return V_RING + 4 * slotmap[f % 64]
    def rd(f):
        if f < 32 and chain: return f'ds_read_b128 {vr(slot(f),4)}, v{V_KA} offset:{((f & 15)*2 + (f >> 4))*1024}'
        if f < 32: return f'ds_read_b128 {vr(slot(f),4)}, v{V_KA} offset:{f*1024}'
        return f'ds_read_b128 {vr(slot(f),4)}, v{V_VA} offset:{(f-32)*1024}'
    def Sreg(kh, qh): return V_S + (kh * 2 + qh) * 4
    def mfmas(f, zero_c=False, first=False):
        order = (1, 0) if (snake and (f & 1)) else (0, 1)
        out = []
        if chain and f < 32:
            kh = f >> 4; s0 = f & 14; qh = (f & 1) ^ ((f >> 1) & 1); fb = f & ~1
            for k in range(2):
                s = s0 + k
                c = vr(Sreg(kh, qh), 4) if s else ('0' if zero_c else vr(V_NEGM + 4 * qh, 4))
                out.append(f'v_mfma_f32_16x16x32_bf16 {vr(Sreg(kh,qh),4)}, {vr(slot(fb+k),4)}, {ar((s*2+qh)*4,4)}, {c}')
            return out
        for qh in order:
            if f < 32:
                s, kh = f >> 1, f & 1
                c = vr(Sreg(kh, qh), 4) if s else ('0' if zero_c else vr(V_NEGM + 4 * qh, 4))
                out.append(f'v_mfma_f32_16x16x32_bf16 {vr(Sreg(kh,qh),4)}, {vr(slot(f),4)}, {ar((s*2+qh)*4,4)}, {c}')
            else:
                b = f - 32
                out.append(f'v_mfma_f32_16x16x32_bf16 {Oreg(b,qh)}, {vr(slot(f),4)}, {vr(V_P+4*qh,4)}, {0 if first else Oreg(b,qh)}')
        return out
    q = LdsQ()
    zero = []
    for f in range(LA):
        a(rd(f)); q.issue(f)
    a(f's_waitcnt vmcnt({vm.need(("Q", 31))})')
    v0ops = []
    for f in range(32):
        a(f's_waitcnt lgkmcnt({q.need(f | 1)})')
        for m in mfmas(f, zero_c=True):
            a(m)
        if f + LA < 32:
            a(rd(f + LA)); q.issue(f + LA)
        if f == vchk:
            chk('fv', V_PFD, V_XO, S_T3, 'pollv')
            a(f's_add_u32 s{S_VDMA}, s{S_W8K}, {2*TILE}')
            v0ops = dma_ops(V_DV0, V_DV1, S_VOFF, S_VDMA)
        if v0ops:
            pre, op = v0ops.pop(0)
            if pre: a(pre); a('s_nop 0')
            emit(op, 'V0')
    for pre, op in v0ops:
        if pre: a(pre); a('s_nop 0')
        emit(op, 'V0')
    a(f's_add_u32 s{S_VOFF}, s{S_VOFF}, {TILE}')
    a(f's_add_u32 s{S_VDMA}, s{S_VDMA}, {TILE}')
    a('s_nop 5')
    def max_all():
        ops = [f'v_max3_f32 v{V_MX}, v{V_S}, v{V_S+1}, v{V_S+2}']
        for i in range(6): ops.append(f'v_max3_f32 v{V_MX}, v{V_MX}, v{V_S+3+2*i}, v{V_S+4+2*i}')
        ops.append(f'v_max_f32 v{V_MX}, v{V_MX}, v{V_S+15}')
        return ops
    def rowmax2(d0, d1, tmp):
        for qh, dst in ((0, d0), (1, d1)):
            r0, r1 = Sreg(0, qh), Sreg(1, qh)
            a(f'v_max3_f32 v{dst}, v{r0}, v{r0+1}, v{r0+2}')
            a(f'v_max3_f32 v{dst}, v{dst}, v{r0+3}, v{r1}')
            a(f'v_max3_f32 v{dst}, v{dst}, v{r1+1}, v{r1+2}')
            a(f'v_max_f32 v{dst}, v{dst}, v{r1+3}')
        xreduce([d0, d1], 'v_max_f32', tmp)
    exp_ops = [f'v_exp_f32 v{V_E+i}, v{V_S+i}' for i in range(16)]
    sum_ops = [f'v_add_f32 v{V_L1 if (i >> 2) & 1 else V_L0}, v{V_L1 if (i >> 2) & 1 else V_L0}, v{V_E+i}' for i in range(16)]
    cvt_ops = []
    for qh in range(2):
        for kh in range(2):
            e = V_E + (kh * 2 + qh) * 4
            for i in range(2):
                cvt_ops.append(f'v_cvt_pk_bf16_f32 v{V_P+4*qh+2*kh+i}, v{e+2*i}, v{e+2*i+1}')
    rowmax2(V_F0, V_F1, 120)
    for qh, dst in ((0, V_F0), (1, V_F1)):
        for kh in range(2):
            for i in range(4): a(f'v_sub_f32 v{Sreg(kh,qh)+i}, v{Sreg(kh,qh)+i}, v{dst}')
        for i in range(4): a(f'v_sub_f32 v{V_NEGM+4*qh+i}, 0, v{dst}')
    for o in exp_ops: a(o)
    for o in zero: a(o)
    a(f'v_xor_b32 v{V_KA}, 0x8000, v{V_KA}')
    a(f's_lshl_b32 s{S_FLO}, s{S_GRP}, 9')
    a(f's_add_u32 s{S_FLO}, s{S_FLO}, {WS_FLAG}')
    a(f'v_and_b32 v{V_FL}, 3, v0')
    a(f'v_lshlrev_b32 v{V_FL}, 7, v{V_FL}')
    a(f's_lshl_b32 s{S_T2}, s72, 2')
    a(f's_add_u32 s{S_T2}, s{S_T2}, {WS_FLAG2 + 4096}')
    a(f'v_mov_b32 v126, s{S_TAG}')
    a(f's_waitcnt vmcnt({vm.need("K1")})')
    a('s_barrier')
    st(2); st(8, True)
    if stamp: a('s_waitcnt lgkmcnt(0)')
    q = LdsQ()
    for f in range(LA):
        a(rd(f)); q.issue(f)

    L_loop = f'{name}_loop'
    rare = []
    border = list(range(8, 32)) + list(range(8))
    YB = 192
    stream = [('pv', b) for b in border] + [('yc', T, f) for T in range(4) for f in range(32)]
    NS = len(stream)
    WA = [V_VA, V_DV0, V_DV1, V_PF]
    def srd_(i):
        it = stream[i]
        if it[0] == 'pv': return f'ds_read_b128 {vr(slot(i),4)}, v{V_KA} offset:{it[1]*1024}'
        if chain and it[1]: return f'ds_read_b128 {vr(slot(i),4)}, v{WA[it[1]]} offset:{((it[2] & 15)*2 + (it[2] >> 4))*1024}'
        return f'ds_read_b128 {vr(slot(i),4)}, v{WA[it[1]]} offset:{it[2]*1024}'
    def ucload(f):
        ops = []
        if f % 4 == 0 and f: ops.append(f's_add_u32 s{S_UCO}, s{S_UCO}, 4096')
        ops.append((f'buffer_load_dwordx4 {ar(4*f,4)}, v{V_L16}, {SRD}, s{S_UCO} offen offset:{(f%4)*1024} sc1', ('uc', f)))
        return ops
    stubs = []
    class Dual:
        def __init__(self, op, tag, fast): self.op, self.tag, self.fast = op, tag, fast
    def em(o):
        if isinstance(o, Dual) and force_slow:
            emit(f'{o.op} sc1', o.tag); return
        if isinstance(o, Dual):
            lab = a.label(name + '_ds')
            a(f's_cbranch_vccnz {lab}')
            emit(f'{o.op} {o.fast}', o.tag)
            a(f'{lab}b:')
            stubs.append((lab, o.op))
            return
        if callable(o): o = o()
        if noyc and isinstance(o, tuple) and ((o[1] == 'x' and 'x' in noyc) or (isinstance(o[1], tuple) and o[1][0] in ('uc', 'wc') and o[1][0] in noyc)):
            vm.last[o[1]] = vm.last.get('dL', 0); return
        if isinstance(o, tuple): emit(*o)
        else: emit(o)
    nuc = [0]
    def body(last, first=False):
        tag = 'L' if last else ('F' if first else 'M')
        L_r1, L_r1b, L_r2, L_r2b = [f'{name}_{x}{tag}' for x in ('r1', 'r1b', 'r2', 'r2b')]
        rare.append((L_r1, L_r1b, L_r2, L_r2b))
        fill = [[] for _ in range(128)]
        cap = [CAP - 1 if p % 2 == 0 else CAP for p in range(128)]
        for p in range(128):
            if p % 2 == 1 and ((p + 1) // 2) % wait_every == 0: cap[p] -= 1
        cap[127] -= 3
        def put(pos, ops, cost):
            if not isinstance(ops, list): ops = [ops]
            while cap[pos] < cost: pos += 1
            cap[pos] -= cost
            fill[pos] += ops
            return pos
        if not last: bw = f's_waitcnt vmcnt({1 if prefetch else 0})'
        else: bw = lambda: f's_waitcnt vmcnt({vm.need("dL")})'
        pb = put(2 * bar_pos + 1, [bw] + ([] if 'nobar' in dbg and not last else ['s_barrier']), 2)
        assert pb < 2 * (64 - LA)
        if first:
            pf_ = put(2 * (32 - LA) - 5, [lambda: f's_waitcnt vmcnt({vm.need("V0")})', 's_barrier',
                                          f'buffer_store_dword v126, v127, {SRD}, s{S_T2} offen sc1'], 2)
            assert pf_ < 2 * (32 - LA)
        dk, dv = dma_ops(V_DK0, V_DK1, S_WCO if last else S_KOFF, S_KDMA), dma_ops(V_DV0, V_DV1, S_VOFF, S_VDMA)
        dm = dv + dk if last else dk + dv
        p = 0
        if last and not tailpf:
            p = put(p, (f'buffer_load_dword v{V_PFD}, v{V_FL}, {SRD}, s{S_FLO} offen sc1', 'poll'), dma_cost) + 1
            for c in range(npf, 3 if pfill else 0):
                p = put(p, f'buffer_load_dword v{V_T0}, v{V_PF}, {SRD}, s{S_PFS} offen', dma_cost) + 1
                p = put(p, f's_add_u32 s{S_PFS}, s{S_PFS}, 8192', 1) + 1
            if pfill: p = put(p, f'buffer_load_dword v{V_T0}, v{V_L16}, {SRD}, s{S_PFS} offen', dma_cost) + 1
        for pre, op in dm:
            if pre: p = put(p, pre, 1) + 1
            p = put(p, (op, 'dL'), dma_cost) + dma_gap
        if prefetch and not last:
            p = put(p, f'buffer_load_dword v{V_PFD}, v{V_PF}, s[96:99], s{S_PFS} offen {pf_flags}', dma_cost) + 1
        pdma = p
        assert pdma <= pb
        if last and not tailpf:
            p = put(56, [lambda: f's_waitcnt vmcnt({vm.need("poll")})', f'v_cmp_ne_u32 s[{S_T3}:{S_T3+1}], s{S_TAG}, v{V_PFD}'], 2) + 2
            p = put(p, [f's_cmp_eq_u64 s[{S_T3}:{S_T3+1}], 0', f's_cbranch_scc0 {name}_cfslow', f'{name}_cfok:'], 2) + 1
            p = put(p, f'v_cmp_ne_u32 s[{S_SLOW}:{S_SLOW+1}], s{S_XCC}, v{V_PFD}', 1) + 1
            assert p <= pdma + 4
        p = 68
        for o in max_all(): p = put(p, o, 1)
        p = put(p, f'v_cmp_lt_f32 vcc, {hex(THR)}, v{V_MX}', 1) + 1
        p = put(p + brgap, ([] if 'nobr1' in dbg else [f's_cbranch_vccnz {L_r1}']) + [f'{L_r1b}:'], 1) + 1
        for i, o in enumerate(exp_ops):
            if 'noexp' not in dbg: p = put(p, o, 2)
        p = 0
        for o in cvt_ops: p = put(p, o, 1)
        for o in sum_ops: p = put(p, o, 1)
        assert p < 60
        upd = [f's_add_u32 s{S_KOFF}, s{S_KOFF}, {TILE}', f's_add_u32 s{S_PFS}, s{S_PFS}, s{S_PFST}',
               f's_add_u32 s{S_VOFF}, s{S_VOFF}, {TILE}',
               f's_xor_b32 s{S_KDMA}, s{S_KDMA}, {TILE}',
               f's_add_u32 s{S_VDMA}, s{S_VDMA}, {TILE}',
               f's_cmp_ge_u32 s{S_VDMA}, {5*TILE}', f's_cselect_b32 s{S_T1}, {3*TILE}, 0',
               f's_sub_u32 s{S_VDMA}, s{S_VDMA}, s{S_T1}',
               f's_add_u32 s{S_VRD}, s{S_VRD}, {TILE}',
               f's_cmp_ge_u32 s{S_VRD}, {5*TILE}', f's_cselect_b32 s{S_VRD}, {2*TILE}, s{S_VRD}',
               f's_sub_u32 s{S_CNT}, s{S_CNT}, 1']
        if not last:
            p = pdma
            for o in upd: p = put(p, o, 1)
            put(2 * (32 - LA) + 1, f'v_xor_b32 v{V_KA}, 0x8000, v{V_KA}', 1)
            put(max(p + 1, 2 * (64 - LA) + 1), f'v_add_u32 v{V_VA}, s{S_VRD}, v{V_L16}', 1)
        else:
            p = 2 * (32 - LA) + 1
            for o in [f's_sub_u32 s{S_KOFF}, s{S_VDMA}, s{S_W8K}', f'v_add_u32 v{V_KA}, s{S_KOFF}, v{V_L16}',
                      f's_sub_u32 s{S_WB0}, s{S_KDMA}, s{S_W8K}', f's_xor_b32 s{S_WB1}, s{S_WB0}, {TILE}', f's_mov_b32 s{S_WB3}, s{S_VRD}',
                      f's_add_u32 s{S_WB2}, s{S_WB3}, s{S_KOFF}', f's_sub_u32 s{S_WB2}, {9*TILE}, s{S_WB2}']:
                p = put(p, o, 1) + 1
            p = max(pdma, 66)
            while p < 127 and nuc[0] < 32:
                fill[p] += ucload(nuc[0]); nuc[0] += 1
                p += uc_pace
        for f in range(64):
            if f % wait_every == 0:
                a(f's_waitcnt lgkmcnt({q.need(min(f + wait_every - 1, 63))})')
            mm = mfmas(f, first=first)
            a(mm[0])
            nf = f + LA
            if nf < 64 or not last:
                a(rd(nf % 64)); q.issue(nf % 64)
            else:
                a(srd_(nf - 64)); q.issue(('s', nf - 64))
            for o in fill[2 * f]: em(o)
            a(mm[1])
            for o in fill[2 * f + 1]: em(o)
        if 'nobr2' not in dbg: a(f's_cbranch_vccnz {L_r2}')
        a(f'{L_r2b}:')
    a(f's_lshl_b32 s{S_WCO}, s{S_SPLIT}, 17')
    a(f's_add_u32 s{S_WCO}, s{S_WCO}, {WS_WC}')
    a(f's_lshl_b32 s{S_UCO}, s{S_QB}, 15')
    a(f's_add_u32 s{S_UCO}, s{S_UCO}, {WS_UC}')
    a(f's_mov_b32 s{S_PFS}, s{S_KOFF}')
    a(f's_mov_b32 s{S_PFST}, {TILE}')
    a(f's_mov_b32 s{S_PH}, 0')
    NPH = 4 if tailpf else 0
    a(f's_sub_u32 s{S_CNT}, s{S_CNT}, {NPH}')
    make_srd(a, 96, S_WS, 0, WS_SIZE)
    a(f's_lshl_b32 s{S_PB}, s{S_GRP}, 2')
    a(f's_add_u32 s{S_PB}, s{S_PB}, s{S_SPLIT}')
    a(f's_lshl_b32 s{S_PB}, s{S_PB}, 2')
    a(f's_add_u32 s{S_PB}, s{S_PB}, s{S_W}')
    a(f's_lshl_b32 s{S_PB}, s{S_PB}, 15')
    a(f's_add_u32 s{S_PB}, s{S_PB}, {WS_PART}')
    body(False, first=True)
    a('.p2align 6')
    a(f'{L_loop}:')
    body(False)
    a(f's_cmp_lg_u32 s{S_CNT}, 0')
    a(f's_cbranch_scc1 {L_loop}')
    if tailpf:
        a(f's_add_u32 s{S_PH}, s{S_PH}, 1')
        a(f's_mov_b32 s{S_CNT}, 1')
        a(f's_cmp_eq_u32 s{S_PH}, 5\n s_cbranch_scc1 {name}_ph5')
        a(f's_cmp_eq_u32 s{S_PH}, 4\n s_cbranch_scc1 {name}_ph4')
        a(f's_cmp_eq_u32 s{S_PH}, 3\n s_cbranch_scc1 {name}_ph3')
        a(f's_cmp_eq_u32 s{S_PH}, 2\n s_cbranch_scc1 {name}_ph2')
        a(f's_mov_b32 s96, s{S_X}\n s_mov_b32 s97, s{S_X+1}\n s_mov_b32 s98, 8192000')
        a(f'v_lshrrev_b32 v{V_PF}, 1, v0')
        a(f'v_lshlrev_b32 v{V_PF}, 10, v{V_PF}')
        a(f'v_and_b32 v{V_T0}, 1, v0')
        a(f'v_lshl_add_u32 v{V_PF}, v{V_T0}, 7, v{V_PF}')
        a(f's_lshl_b32 s{S_PFS}, s{S_QB}, 15')
        a(f's_lshl_b32 s{S_T1}, s{S_SPLIT}, 8')
        a(f's_add_u32 s{S_PFS}, s{S_PFS}, s{S_T1}')
        a(f's_branch {L_loop}')
        a(f'{name}_ph2:')
        a(f's_mov_b32 s96, s{S_WS}\n s_mov_b32 s97, s{S_WS+1}\n s_mov_b32 s98, {WS_SIZE}')
        a(f'v_and_b32 v{V_XO}, 7, v0')
        a(f'v_lshlrev_b32 v{V_XO}, 2, v{V_XO}')
        a(f'v_mov_b32 v{V_PF}, v{V_XO}')
        a(f's_add_u32 s{S_SLOW}, s{S_SLOW}, 2048')
        a(f's_mov_b32 s{S_PFS}, s{S_SLOW}')
        a(f's_branch {L_loop}')
        a(f'{name}_ph3:')
        a('s_waitcnt vmcnt(0)')
        a(f'v_cmp_ne_u32 s[{S_T3}:{S_T3+1}], s{S_TAG}, v{V_PFD}')
        a(f'v_lshlrev_b32 v{V_PF}, 7, v0')
        a(f's_lshl_b32 s{S_PFS}, s{S_SPLIT}, 13')
        a(f's_add_u32 s{S_PFS}, s{S_PFS}, s{S_UCO}')
        a('s_nop 1')
        a(f's_cmp_eq_u64 s[{S_T3}:{S_T3+1}], 0')
        a(f's_cbranch_scc0 {name}_cfslow')
        a(f'{name}_cfok:')
        a(f's_branch {L_loop}')
        a(f'{name}_ph4:')
        a(f'v_lshlrev_b32 v{V_PF}, 6, v0')
        a(f's_and_b32 s{S_PFS}, s{S_TILE}, 7')
        a(f's_lshl_b32 s{S_PFS}, s{S_PFS}, 2')
        a(f's_add_u32 s{S_PFS}, s{S_PFS}, s{S_W}')
        a(f's_lshl_b32 s{S_PFS}, s{S_PFS}, 12')
        a(f's_add_u32 s{S_PFS}, s{S_PFS}, s{S_WCO}')
        a(f's_branch {L_loop}')
        a(f'{name}_ph5:')
    st(3); st(9, True)
    if stamp: a('s_waitcnt lgkmcnt(0)')
    body(True)
    st(15)
    if stamp: a('s_waitcnt lgkmcnt(0)')
    def smf(i):
        it = stream[i]; out = []
        if chain and it[0] == 'yc' and it[1]:
            T, f = it[1], it[2]; ch = f >> 4; qh = (f & 1) ^ ((f >> 1) & 1)
            d = vr(YB + 8 * (2 * T + ch) + 4 * qh, 4)
            for k in range(2):
                s = (f & 14) + k
                out.append(f'v_mfma_f32_16x16x32_bf16 {d}, {vr(slot((i & ~1) + k),4)}, {ar((s*2+qh)*4,4)}, {d if s else 0}')
            return out
        for qh in ((1, 0) if (snake and (i & 1)) else (0, 1)):
            if it[0] == 'pv':
                out.append(f'v_mfma_f32_16x16x32_bf16 {Oreg(it[1],qh)}, {vr(slot(i),4)}, {vr(V_P+4*qh,4)}, {Oreg(it[1],qh)}')
            else:
                T, f = it[1], it[2]; s, ch = f >> 1, f & 1
                d = vr(YB + 8 * (2 * T + ch) + 4 * qh, 4)
                out.append(f'v_mfma_f32_16x16x32_bf16 {d}, {vr(slot(i),4)}, {ar((s*2+qh)*4,4)}, {d if s else 0}')
        return out
    a(f's_mov_b64 vcc, s[{S_SLOW}:{S_SLOW+1}]' if not force_slow else 's_mov_b64 vcc, -1')
    for o in cvt_ops: a(o)
    a(f's_lshl_b32 s{S_T0}, s{S_GRP}, 2')
    a(f'v_add_u32 v{WA[0]}, s{S_WB0}, v{V_L16}')
    pend = [(0, o, 1) for o in sum_ops]
    for i, sb in enumerate((S_WB1, S_WB2, S_WB3)): pend.append((0, f'v_add_u32 v{WA[i+1]}, s{sb}, v{V_L16}', 1))
    rot = 0
    for qd in range(1, 4):
        hdr = [f's_add_u32 s{S_PO}, s{S_PB}, {(qd-1)*8192}']
        for gm in range(4):
            for qh in range(2):
                b0 = 8 * qd + 2 * gm
                ready = 2 * (border.index(b0 + 1) + 1) + 6
                idx = gm * 2 + qh
                if idx == 0:
                    for h in hdr: pend.append((0, h, 1))
                if idx == 4: pend.append((ready, f's_add_u32 s{S_PO}, s{S_PO}, 4096', 1))
                tb = V_S + 8 * (rot % 2); pk = V_E + 4 * (rot % 4); rot += 1
                srcs = []
                for b in range(2):
                    for r in range(4):
                        o = Obase(b0 + b, qh) + r
                        if qd == 1: srcs.append(o)
                        else:
                            pend.append((ready, f'v_accvgpr_read_b32 v{tb+4*b+r}, a{o}', 1)); srcs.append(tb + 4 * b + r)
                for r in range(4): pend.append((ready, f'v_cvt_pk_bf16_f32 v{pk+r}, v{srcs[2*r]}, v{srcs[2*r+1]}', 1))
                pend.append((ready, Dual(f'buffer_store_dwordx4 {vr(pk,4)}, v{V_L16}, {SRD}, s{S_PO} offen offset:{(idx%4)*1024}', 'part', fast_st), 2))
    def stats_block():
        xreduce([V_L0, V_L1], 'v_add_f32', 124)
        a(f'v_mov_b32 v120, v{V_L0}')
        a(f'v_sub_f32 v121, 0, v{V_NEGM}')
        a(f'v_mov_b32 v122, v{V_L1}')
        a(f'v_sub_f32 v123, 0, v{V_NEGM+4}')
        a(f's_add_u32 s{S_T1}, s{S_PB}, {3*8192}')
        em(Dual(f'buffer_store_dwordx4 v[120:123], v{V_L16}, {SRD}, s{S_T1} offen', 'part', fast_st))
    XV = V_P
    def x_setup():
        a(f'v_lshrrev_b32 v{V_T0}, 4, v0')
        a(f'v_and_b32 v{V_T1}, 15, v0')
        a(f'v_xor_b32 v{V_T2}, v{V_T0}, v{V_T1}')
        a(f'v_lshlrev_b32 v{V_T2}, 4, v{V_T2}')
        a(f'v_lshl_add_u32 v{XV}, v{V_T0}, 10, v{V_T2}')
        for i in range(1, 4): a(f'v_xor_b32 v{XV+i}, {i*64}, v{XV}')
        a(f's_add_u32 s{S_KOFF}, s{S_KOFF}, s{S_W8K}')
        a(f'v_lshl_add_u32 v{XV+4}, v{V_T1}, 8, v{V_T2}')
        a(f'v_add_u32 v{XV+4}, s{S_KOFF}, v{XV+4}')
        for i in range(1, 4): a(f'v_xor_b32 v{XV+4+i}, {i*64}, v{XV+4}')
        a(f'v_add_u32 v{V_XO}, s{S_KOFF}, v{V_L16}')
        a(f's_lshl_b32 s{S_T4}, s{S_QB}, 15')
        a(f's_lshl_b32 s{S_T1}, s{S_SPLIT}, 8')
        a(f's_add_u32 s{S_T4}, s{S_T4}, s{S_T1}')
    def wc_dma(T):
        out = []
        first = [f's_add_u32 s{S_WCO}, s{S_WCO}, {TILE}', f's_add_u32 s{S_T2}, s{(S_WB0, S_WB1, S_WB2, S_WB3)[T]}, s{S_W8K}']
        for pre, op in dma_ops(V_DK0, V_DK1, S_WCO, S_T2):
            g = first; first = []
            if pre: g += [pre, 's_nop 0']
            out.append(g + [(op, ('wc', T))])
        return out
    dq = [ucload(f) for f in range(nuc[0], 32)]
    def xdma():
        return [[f's_add_u32 m0, s{S_KOFF}, {k*1024}', f's_add_u32 s{S_T1}, s{S_T4}, {k*4096}',
                 (f'buffer_load_dwordx4 v{XV+(k&3)}, {SRX}, s{S_T1} offen lds', 'x')] for k in range(8)]
    def pop():
        _, op, c = pend.pop(0); em(op)
        if isinstance(op, Dual):
            for _ in range(ld_per_st):
                if dq:
                    for o in dq.pop(0): em(o)
        return c
    lim = [64]
    def run(i0, i1, every=0):
        for i in range(i0, i1):
            it = stream[i]; w = []
            if it[0] == 'yc' and it[1] == 0 and it[2] % 2 == 0: w.append(f'vmcnt({min(63, vm.need(("uc", it[2] | 1)))})')
            if i % 2 == 0: w.append(f'lgkmcnt({q.need(("s", min(i + 1, NS - 1)))})')
            if w: a('s_waitcnt ' + ' '.join(w))
            mm = smf(i)
            for h in range(2):
                pos = 2 * i + h
                a(mm[h])
                budget = pv_budget
                if h == 0 and i + LA < NS:
                    nx = stream[i + LA]
                    if nx[0] == 'yc' and nx[2] == 0 and nx[1] in (1, 2):
                        a(f's_waitcnt vmcnt({min(63, vm.need(("wc", 1 if nx[1] == 1 else 3)))})')
                        a('s_barrier')
                    a(srd_(i + LA)); q.issue(('s', i + LA)); budget -= 1
                while pend and pend[0][0] <= pos and budget > 0: budget -= pop()
                if every and dq and pos % every == 1:
                    for o in dq.pop(0): em(o)
    run(0, 32)
    a('s_barrier')
    x_setup()
    while pend: pop()
    stats_block()
    dq += wc_dma(1) + wc_dma(2) + wc_dma(3)
    while len(dq) > 24 - flag_after:
        for o in dq.pop(0): em(o)
    st(4)
    a(f's_lshl_b32 s{S_T3}, s{S_SPLIT}, 7')
    a(f's_add_u32 s{S_T3}, s{S_T3}, s{S_FLO}')
    a(f's_lshl_b32 s{S_PH}, s{S_W}, 2')
    a(f's_add_u32 s{S_FLO}, s{S_FLO}, s{S_PH}')
    a(f's_add_u32 s{S_T3}, s{S_T3}, s{S_PH}')
    a(f'v_mov_b32 v{V_T0}, 0\n v_mov_b32 v{V_T1}, s{S_TAG}')
    a(f's_lshl_b32 s{S_CNT}, 1, s{S_SPLIT}')
    a('s_mov_b64 exec, 1')
    a(f's_waitcnt vmcnt({vm.need("part")})')
    em(Dual(f'buffer_store_dword v{V_T1}, v{V_T0}, {SRD}, s{S_T3} offen offset:4', None, ''))
    a('s_mov_b64 exec, -1')
    st(5)
    if stamp: a('s_waitcnt lgkmcnt(0)')
    poll = f'buffer_load_dword v{V_PFD}, v{V_FL}, {SRD}, s{S_FLO} offen offset:4 sc1'
    dq.insert(min(poll_after, len(dq)), [(poll, 'poll')])
    STR = [56, 60, 124]
    def getmask(w):
        a(f's_waitcnt vmcnt({w})')
        a(f'v_cmp_eq_u32 vcc, s{S_TAG}, v{V_PFD}')
        a('s_nop 3')
        a(f's_and_b32 s{S_PFS}, vcc_lo, 15')
        a(f's_andn2_b32 s{S_PFS}, s{S_PFS}, s{S_CNT}')
        a(f's_or_b32 s{S_CNT}, s{S_CNT}, s{S_PFS}')
    def slot_hdr(k):
        return [f's_sub_u32 s{S_T1}, s{S_SPLIT}, {k+1}', f's_and_b32 s{S_T1}, s{S_T1}, 3', f's_bitcmp1_b32 s{S_PFS}, s{S_T1}']
    def slot_adr():
        return [f's_add_u32 s{S_T1}, s{S_T1}, s{S_T0}', f's_lshl_b32 s{S_T1}, s{S_T1}, 2', f's_add_u32 s{S_T1}, s{S_T1}, s{S_W}',
                f's_lshl_b32 s{S_PO}, s{S_T1}, 15', f's_add_u32 s{S_T1}, s{S_PO}, {WS_PART + 3*8192}']
    def slot_loads(k, vo):
        out = [[f'buffer_load_dwordx4 {vr(STR[k],4)}, v{vo}, {SRD}, s{S_T1} offen sc1']]
        for h4 in range(2):
            for i in range(4):
                pre = [f's_add_u32 s{S_T1}, s{S_PO}, {WS_PART + k*8192 + h4*4096}'] if i == 0 else []
                out.append(pre + [f'buffer_load_dwordx4 {ar(128+(k*8+h4*4+i)*4,4)}, v{vo}, {SRD}, s{S_T1} offen offset:{i*1024} sc1'])
        return out
    def check():
        getmask(0)
        for k in range(3):
            lab = a.label(name + '_ck')
            for o in slot_hdr(k): a(o)
            a(f's_cbranch_scc0 {lab}')
            for o in slot_adr(): a(o)
            for g in slot_loads(k, V_L16):
                for o in g: a(o)
            a(f'{lab}:')
    run(32, chk_at, every=2)
    assert not dq
    st(20)
    if stamp: a('s_waitcnt lgkmcnt(0)')
    getmask(vm.need('poll'))
    for k in range(3):
        first = slot_hdr(k) + [f's_cselect_b32 s{S_PH}, 0, 0x80000000', f'v_or_b32 v{V_T2}, s{S_PH}, v{V_L16}'] + slot_adr()
        for g in slot_loads(k, V_T2):
            dq.append(first + g); first = []
    dq += xdma() + [[poll]]
    run(chk_at, NS, every=r_pace)
    assert not dq, len(dq)
    st(21)
    a(f's_waitcnt vmcnt({vm.need("x")})')
    st(22)
    if stamp: a('s_waitcnt lgkmcnt(0)')
    for idx in range(8):
        gm, qh = idx >> 1, idx & 1
        a(f'ds_read_b128 {vr(V_S+4*idx,4)}, v{XV+4+gm} offset:{qh*4096}')
    a('s_nop 3')
    for idx in range(8):
        gm, qh = idx >> 1, idx & 1
        xb = V_S + 4 * idx
        a(f's_waitcnt lgkmcnt({7-idx})')
        for i in range(4):
            a(f'v_lshlrev_b32 v{64+2*i}, 16, v{xb+i}')
            a(f'v_and_b32 v{64+2*i+1}, 0xffff0000, v{xb+i}')
        for i in range(4):
            y = YB + 8 * (2 * gm + (i >> 1)) + 4 * qh + 2 * (i & 1)
            a(f'v_pk_add_f32 {vr(y,2)}, {vr(y,2)}, {vr(64+2*i,2)}')
    st(23)
    a(f'{name}_spin:')
    check()
    a(f's_cmp_eq_u32 s{S_CNT}, 15')
    a(f's_cbranch_scc1 {name}_got')
    a(poll)
    a(f's_branch {name}_spin')
    a(f'{name}_got:')
    st(6)
    a('s_waitcnt vmcnt(0)')
    st(24)
    allst = [120] + STR
    for qh in range(2):
        t = V_T0 + qh
        a(f'v_max3_f32 v{t}, v{allst[0]+2*qh+1}, v{allst[1]+2*qh+1}, v{allst[2]+2*qh+1}')
        a(f'v_max_f32 v{t}, v{t}, v{allst[3]+2*qh+1}')
    for qh in range(2):
        for b in allst: a(f'v_sub_f32 v{b+2*qh+1}, v{b+2*qh+1}, v{V_T0+qh}')
    for qh in range(2):
        for b in allst: a(f'v_exp_f32 v{b+2*qh+1}, v{b+2*qh+1}')
    for qh in range(2):
        a(f'v_mul_f32 v{V_T0+qh}, v{allst[0]+2*qh}, v{allst[0]+2*qh+1}')
    for b in allst[1:]:
        for qh in range(2): a(f'v_fmac_f32 v{V_T0+qh}, v{b+2*qh}, v{b+2*qh+1}')
    for qh in range(2): a(f'v_rcp_f32 v{V_T0+qh}, v{V_T0+qh}')
    a('s_nop 0')
    for qh in range(2):
        for b in allst: a(f'v_mul_f32 v{b+2*qh+1}, v{b+2*qh+1}, v{V_T0+qh}')
    for i in range(4): a(f'v_or_b32 v{XV+i}, s{S_VALID}, v{XV+i}')
    for qh in range(2):
        for gm in range(4):
            idx = gm * 2 + qh
            ys = [YB + 8 * (2 * gm + (i >> 1)) + 4 * qh + 2 * (i & 1) for i in range(4)]
            for i in range(4):
                a(f'v_pk_fma_f32 {vr(ys[i],2)}, {vr(ys[i]-64,2)}, {vr(120+2*qh,2)}, {vr(ys[i],2)} op_sel:[0,1,0] op_sel_hi:[1,1,1]')
            for k in range(3):
                ub = 64 + 12 * k
                for i in range(4): a(f'v_accvgpr_read_b32 v{ub+8+i}, a{128+(k*8+idx)*4+i}')
                for i in range(4):
                    a(f'v_lshlrev_b32 v{ub+2*i}, 16, v{ub+8+i}')
                    a(f'v_and_b32 v{ub+2*i+1}, 0xffff0000, v{ub+8+i}')
                for i in range(4):
                    a(f'v_pk_fma_f32 {vr(ys[i],2)}, {vr(ub+2*i,2)}, {vr(STR[k]+2*qh,2)}, {vr(ys[i],2)} op_sel:[0,1,0] op_sel_hi:[1,1,1]')
            ob = 100 + 4 * (gm & 1)
            for i in range(4): a(f'v_cvt_pk_bf16_f32 v{ob+i}, v{ys[i]}, v{ys[i]+1}')
            a(f'ds_write_b128 v{XV+4+gm}, {vr(ob,4)} offset:{qh*4096}')
            if qh == 1 and gm == 0:
                a('s_waitcnt lgkmcnt(1)')
                for i in range(4):
                    a(f's_add_u32 s{S_T1}, s{S_T4}, {i*4096}')
                    a(f'buffer_store_dwordx4 {vr(V_S+4*i,4)}, v{XV+i}, {SRO}, s{S_T1} offen {out_flags}')
        for i in range(4): a(f'ds_read_b128 {vr(V_S+16*qh+4*i,4)}, v{V_XO} offset:{(4*qh+i)*1024}')
    for i in range(4):
        a(f's_add_u32 s{S_T1}, s{S_T4}, {(4+i)*4096}')
        a(f's_waitcnt lgkmcnt({3-i})')
        a(f'buffer_store_dwordx4 {vr(V_S+16+4*i,4)}, v{XV+i}, {SRO}, s{S_T1} offen {out_flags}')
    if stamp:
        a('s_waitcnt vmcnt(0)')
        st(7)
        a('s_waitcnt lgkmcnt(0)')
        a(f's_cmp_lg_u32 s{S_W}, 0')
        a(f's_cbranch_scc1 {name}_end')
        a(f's_lshl_b32 s{S_T1}, s2, 7')
        a(f's_add_u32 s{S_T1}, s{S_T1}, {WS_STAMP}')
        for i in range(16): a(f'v_mov_b32 v{16+2*i}, s{80+i}\n v_mov_b32 v{17+2*i}, 0')
        a(f'v_mov_b32 v{V_T0}, 0')
        a('s_mov_b64 exec, 1')
        for i in range(8):
            a(f'buffer_store_dwordx4 {vr(16+4*i,4)}, v{V_T0}, {SRD}, s{S_T1} offen offset:{16*i}')
        if dbgout:
            a(f's_cmp_lg_u32 s2, 0\n s_cbranch_scc1 {name}_end')
            a('s_load_dwordx2 s[4:5], s[0:1], 80')
            a(f's_mov_b32 s{S_T1}, {WS_STAMP + 131072}')
            a(f'buffer_load_dwordx4 v[48:51], v{V_T0}, {SRD}, s{S_T1} offen sc1')
            a(f's_mov_b32 s{S_T1}, {WS_STAMP + 65536}')
            a(f'buffer_load_dwordx4 v[52:55], v{V_T0}, {SRD}, s{S_T1} offen sc1')
            a(f'buffer_load_dwordx4 v[56:59], v{V_T0}, {SRD}, s{S_T1} offen offset:16 sc1')
            a('s_waitcnt vmcnt(0) lgkmcnt(0)')
            a('s_sub_u32 s12, s4, 0\n s_subb_u32 s13, s5, 0\n s_mov_b32 s14, 256\n s_mov_b32 s15, 0x20000')
            src = [50, 52, 54, 56, 58, 16, 18, 20, 22, 30]
            for i, r in enumerate(src): a(f'v_sub_u32 v{64+i}, v{r}, v48')
            for i in range(3): a(f'buffer_store_dwordx4 {vr(64+4*i,4)}, v{V_T0}, s[12:15], 0 offen offset:{16*i}')
            if spin is not None:
                ra, rb = spin
                a(f'v_sub_u32 v80, v{rb}, v{ra}')
                a('v_add_u32 v80, 2000, v80')
                a('v_add_u32 v80, v30, v80')
                a('s_nop 1')
                a('v_readfirstlane_b32 s20, v80')
                a(f'{name}_sp:')
                a('s_memrealtime s[22:23]')
                a('s_waitcnt lgkmcnt(0)')
                a('s_sub_u32 s21, s20, s22')
                a('s_cmp_gt_i32 s21, 0')
                a(f's_cbranch_scc1 {name}_sp')
    a(f'{name}_end:')
    a('s_endpgm')
    p3slow()
    for lab, dst, vo, so in slows:
        a(f'{name}_{lab}s:')
        a(f's_sleep {slp}')
        a(f'buffer_load_dword v{dst}, v{vo}, {SRD}, s{so} offen sc1')
        a('s_waitcnt vmcnt(0)')
        a(f'v_cmp_ne_u32 vcc, s{S_TAG}, v{dst}')
        a(f's_cbranch_vccnz {name}_{lab}s')
        a(f's_branch {name}_{lab}k')
    for lab, op in stubs:
        a(f'{lab}:')
        a(f'{op} sc1')
        a(f's_branch {lab}b')
    a(f'{name}_cfslow:')
    a(f's_sleep {slp}')
    a(f'buffer_load_dword v{V_PFD}, v{V_XO}, {SRD}, s{S_SLOW} offen sc1')
    a('s_waitcnt vmcnt(0)')
    a(f'v_cmp_ne_u32 s[{S_T3}:{S_T3+1}], s{S_TAG}, v{V_PFD}')
    a('s_nop 3')
    a(f's_cmp_eq_u64 s[{S_T3}:{S_T3+1}], 0')
    a(f's_cbranch_scc0 {name}_cfslow')
    a(f's_branch {name}_cfok')
    for (L_r1, L_r1b, L_r2, L_r2b) in rare:
        a(f'{L_r1}:')
        rowmax2(V_T1, V_T2, 120)
        for qh, dst in ((0, V_T1), (1, V_T2)):
            a(f'v_max_f32 v{dst}, 0, v{dst}')
            fr = V_F1 if qh else V_F0
            a(f'v_sub_f32 v{fr}, 0, v{dst}')
            a(f'v_exp_f32 v{fr}, v{fr}')
            for kh in range(2):
                for i in range(4): a(f'v_sub_f32 v{Sreg(kh,qh)+i}, v{Sreg(kh,qh)+i}, v{dst}')
            for i in range(4): a(f'v_sub_f32 v{V_NEGM+4*qh+i}, v{V_NEGM+4*qh+i}, v{dst}')
            l = V_L1 if qh else V_L0
            a(f'v_mul_f32 v{l}, v{l}, v{fr}')
        a(f's_branch {L_r1b}')
        a(f'{L_r2}:')
        a('s_nop 7')
        for beta in range(32):
            for qh in range(2):
                fr = V_F1 if qh else V_F0
                b = Obase(beta, qh)
                if beta < 16:
                    for r in range(4): a(f'v_mul_f32 v{b+r}, v{b+r}, v{fr}')
                else:
                    for r in range(4): a(f'v_accvgpr_read_b32 v{120+r}, a{b+r}')
                    for r in range(4): a(f'v_mul_f32 v{120+r}, v{120+r}, v{fr}')
                    for r in range(4): a(f'v_accvgpr_write_b32 a{b+r}, v{120+r}')
        a(f's_branch {L_r2b}')
    a('code_end:')
    a('s_endpgm')
    kernel_desc(a, name, 512, 102, 256)
```

```python
from asmlib import *
from layout import *
from attn2 import LdsQ
from k2 import f2h

P_X, P_WQ, P_WK, P_WV, P_AO, P_UP, P_DW, P_DN, P_MG, P_OUT, P_DBG, P_WS = [56 + 2 * i for i in range(12)]

def prep(a, name, K, st, mid1, pollA, gl=3):
    V_L16 = K.V_L16
    V_T0, V_T1, V_T2, V_T3, V_TR, V_DT, V_LR, V_LS = 13, 14, 15, 12, 5, 6, 8, 9
    V_SW, V_AR, V_BR = 16, 160, 164
    V_ACC, V_PK, V_RA, V_RB = 32, 48, 64, 96
    RAW, F, SUM, MEAN, RSTD = 64, 96, 168, 172, 174
    S_SA, S_SB = 44, 48
    S_TI, S_TJ, S_OO, S_ROLE, S_RB, S_CB, S_BLK = 52, 53, 54, 55, 42, 43, K.S_T4
    S_W, S_T0, S_T1, S_T2 = K.S_W, K.S_T0, K.S_T1, K.S_T2
    SW, SX = [f's[{b}:{b+3}]' for b in (K.S_SRD, K.S_SRX)]
    SA, SB = [f's[{b}:{b+3}]' for b in (S_SA, S_SB)]
    LA_, LB_ = 32768, 98304
    a(f's_lshr_b32 s{S_BLK}, s{K.S_TILE}, 1')
    a(f's_lshl_b32 s{S_BLK}, s{S_BLK}, 3')
    a(f's_bfe_u32 s{S_T0}, s2, 0x30003')
    a(f's_add_u32 s{S_BLK}, s{S_BLK}, s{S_T0}')
    a(f's_cmp_lt_u32 s{S_BLK}, 125')
    a(f's_cselect_b32 s{S_T2}, 0, 0x80000000')
    a(f's_min_u32 s{S_BLK}, s{S_BLK}, 124')
    a(f's_add_u32 s{S_BLK}, s{S_BLK}, s{K.S_B125}')
    a(f's_lshl_b32 s{S_BLK}, s{S_BLK}, 15')
    a(f'v_and_b32 v{V_T0}, 7, v0')
    a(f'v_lshrrev_b32 v{V_T1}, 3, v0')
    a(f'v_lshlrev_b32 v{V_LR}, 4, v{V_T1}')
    a(f'v_lshl_add_u32 v{V_LR}, v{V_T0}, 10, v{V_LR}')
    a(f'v_add_u32 v{V_LR}, s{K.S_W8K}, v{V_LR}')
    a(f'v_lshrrev_b32 v{V_T2}, 5, v0')
    a(f'v_lshlrev_b32 v{V_LS}, 11, v{V_T2}')
    a(f'v_and_b32 v{V_T2}, 3, v{V_T1}')
    a(f'v_lshl_add_u32 v{V_LS}, v{V_T2}, 8, v{V_LS}')
    a(f'v_lshl_add_u32 v{V_LS}, v{V_T0}, 4, v{V_LS}')
    a(f'v_or_b32 v{V_LS}, s{S_T2}, v{V_LS}')
    a(f's_and_b32 s{S_RB}, s{S_W}, 1')
    a(f's_lshr_b32 s{S_CB}, s{S_W}, 1')
    a(f's_lshl_b32 s{S_T1}, s{S_RB}, 7')
    a(f'v_xor_b32 v{V_SW}, s{S_T1}, v{V_L16}')
    for i in range(1, 8): a(f'v_xor_b32 v{V_SW+i}, {i*16}, v{V_SW}')
    a(f'v_bfe_u32 v{V_T2}, v0, 4, 1')
    a(f'v_lshlrev_b32 v{V_T2}, 2, v{V_T2}')
    a(f'v_xor_b32 v{V_T2}, v{V_T2}, v{V_T0}')
    a(f'v_lshlrev_b32 v{V_DT}, 4, v{V_T2}')
    a(f'v_lshl_add_u32 v{K.V_WD}, v{V_T1}, 11, v{V_DT}')
    a(f's_and_b32 s3, s2, 7')
    a(f's_lshl_b32 s3, s3, 5')
    a(f's_lshr_b32 s{S_T1}, s2, 3')
    a(f's_add_u32 s3, s3, s{S_T1}')
    a(f's_and_b32 s{S_T2}, s2, 1')
    a(f's_lshl1_add_u32 s{S_T1}, s{S_T1}, s{S_T2}')
    a(f's_add_u32 s{S_T1}, s{S_T1}, 192')
    a(f's_cmp_ge_u32 s3, 192')
    a(f's_cselect_b32 s3, s{S_T1}, s3')
    a(f's_lshr_b32 s{S_ROLE}, s3, 6')
    a(f's_and_b32 s{S_TI}, s3, 7')
    a(f's_bfe_u32 s{S_TJ}, s3, 0x30003')
    a('s_waitcnt lgkmcnt(0)')
    make_srd(a, K.S_SRX, P_X, 0, 8192000)
    for g in range(2):
        a(f's_add_u32 m0, s{K.S_W8K}, {g*4096}')
        a('s_nop 0')
        for i in range(4): a(f'buffer_load_dwordx4 v{K.V_DK1 if g else K.V_DK0}, {SX}, s{S_BLK} offen offset:{i*1024} lds')
    make_srd(a, 96, P_DBG, 0, 256)
    a(f's_cmp_lt_u32 s2, 248\n s_cbranch_scc1 {name}_notag')
    a('s_memrealtime s[100:101]')
    a('v_mov_b32 v25, 0')
    a('s_waitcnt lgkmcnt(0)')
    a('s_or_b32 s100, s100, 1')
    a('v_mov_b32 v24, s100')
    a(f'buffer_atomic_cmpswap v[24:25], v{K.V_FO}, s[96:99], 0 offen sc1')
    a(f'{name}_notag:')
    def rows_dma(srd, sbase, ldsbase):
        a(f's_lshl_b32 s{S_T2}, s{S_W}, 14')
        a(f's_add_u32 s{S_T1}, s{sbase}, s{S_T2}')
        for g in range(4):
            a(f's_add_u32 m0, s{S_T2}, {ldsbase + g*4096}')
            if g: a(f's_add_u32 s{S_T1}, s{S_T1}, 4096')
            else: a('s_nop 0')
            for i in range(4):
                a(f'buffer_load_dwordx4 v{V_SW + 4*(g>>1) + i}, {srd}, s{S_T1} offen offset:{i*1024} lds')
    def tr_dma(npiece, stride_log2, sbase):
        a(f'v_lshl_add_u32 v{V_T3}, v{V_T1}, {stride_log2}, v{V_DT}')
        a(f's_mul_i32 s{S_T1}, s{S_W}, {npiece * 8 << stride_log2}')
        a(f's_add_u32 s{S_T1}, s{S_T1}, s{sbase}')
        a(f's_mul_i32 s{S_T2}, s{S_W}, {npiece * 1024}')
        for i in range(npiece):
            a(f's_add_u32 m0, s{S_T2}, {LB_ + i*1024}')
            if i: a(f's_add_u32 s{S_T1}, s{S_T1}, {8 << stride_log2}')
            else: a('s_nop 0')
            a(f'buffer_load_dwordx4 v{V_T3}, {SB}, s{S_T1} offen lds')
    def wpf(n):
        a(f'buffer_load_dword v26, v27, s[76:79], 0 offen')
        a(f's_waitcnt vmcnt({n + 1})')
    make_srd(a, K.S_SRD, P_WS, 0, WS_SIZE)
    a(f's_mov_b32 s{K.S_X}, s{P_X}\n s_mov_b32 s{K.S_X+1}, s{P_X+1}')
    a(f's_mov_b32 s{K.S_WS}, s{P_WS}\n s_mov_b32 s{K.S_WS+1}, s{P_WS+1}')
    make_srd(a, K.S_SRO, P_OUT, 0, 8192000)
    make_srd(a, 76, P_UP, 0, 1024 * 1024)
    a(f's_lshr_b32 s{S_T1}, s2, 6')
    a(f's_lshl2_add_u32 s{S_T1}, s{S_T1}, s{S_W}')
    a(f's_lshl_b32 s{S_T1}, s{S_T1}, 16')
    a(f's_lshl_b32 s{S_T0}, s{S_T0}, 7')
    a(f's_add_u32 s{S_T1}, s{S_T1}, s{S_T0}')
    a(f's_add_u32 s{S_T1}, s{S_T1}, 1024')
    a(f'v_and_b32 v27, 31, v0')
    a(f'v_lshlrev_b32 v27, 11, v27')
    a(f'v_add_u32 v27, s{S_T1}, v27')
    a(f's_cmp_eq_u32 s{S_ROLE}, 3\n s_cbranch_scc1 {name}_i3')
    a(f's_cmp_eq_u32 s{S_ROLE}, 1\n s_cbranch_scc1 {name}_i1')
    a(f's_cmp_eq_u32 s{S_ROLE}, 0')
    a(f's_cselect_b32 s{S_SA}, s{P_AO}, s{P_DN}')
    a(f's_cselect_b32 s{S_SA+1}, s{P_AO+1}, s{P_DN+1}')
    a(f's_cselect_b32 s{S_T0}, 0, {512*1024}')
    a(f's_mov_b32 s{S_SA+2}, {512*1024}\n s_mov_b32 s{S_SA+3}, 0x20000')
    make_srd(a, S_SB, P_MG, 0, 1024 * 1024)
    a(f's_lshl_b32 s{S_T1}, s{S_TJ}, 7')
    a(f's_add_u32 s{S_T0}, s{S_T0}, s{S_T1}')
    tr_dma(16, 10, S_T0)
    a(f's_lshl_b32 s{S_T0}, s{S_TI}, 16')
    rows_dma(SA, S_T0, LA_)
    wpf(32)
    a(f's_branch {name}_ln')
    a(f'{name}_i1:')
    make_srd(a, S_SA, P_WQ, 0, 512 * 1024)
    make_srd(a, S_SB, P_WK, 0, 512 * 1024)
    a(f's_lshl_b32 s{S_T0}, s{S_TJ}, 16')
    rows_dma(SB, S_T0, LB_)
    a(f's_lshl_b32 s{S_T0}, s{S_TI}, 16')
    rows_dma(SA, S_T0, LA_)
    wpf(32)
    a(f's_branch {name}_ln')
    a(f'{name}_i3:')
    a(f's_cmp_ge_u32 s3, 208\n s_cbranch_scc1 {name}_i5')
    make_srd(a, S_SA, P_WV, 0, 512 * 1024)
    a(f's_lshl_b32 s{S_T0}, s{S_TI}, 16')
    rows_dma(SA, S_T0, LA_)
    wpf(16)
    a(f's_branch {name}_ln')
    a(f'{name}_i5:')
    make_srd(a, S_SA, P_DW, 0, 31 * 1024)
    a(f's_sub_u32 s{S_OO}, s3, 208')
    a(f's_lshl2_add_u32 s{S_OO}, s{S_OO}, s{S_W}')
    a(f's_min_u32 s{S_OO}, s{S_OO}, 159')
    a(f'v_bfe_u32 v{V_T2}, v0, 4, 2')
    a(f'v_bfe_u32 v{V_T3}, v0, 2, 2')
    a(f'v_lshl_add_u32 v{V_T2}, v{V_T2}, 3, v{V_T3}')
    a(f'v_lshlrev_b32 v{V_T2}, 1, v{V_T2}')
    a(f'v_and_b32 v{V_T3}, 3, v0')
    a(f'v_add_u32 v{V_T3}, 1, v{V_T3}')
    a(f'v_lshlrev_b32 v{V_T3}, 10, v{V_T3}')
    a(f'v_sub_u32 v{V_T2}, v{V_T2}, v{V_T3}')
    a(f's_mul_i32 s{S_T1}, s{S_OO}, 52429')
    a(f's_lshr_b32 s{S_T1}, s{S_T1}, 18')
    a(f's_mul_i32 s{S_T2}, s{S_T1}, 5')
    a(f's_sub_u32 s{S_T0}, s{S_OO}, s{S_T2}')
    a(f's_lshl_b32 s{S_T0}, s{S_T0}, 13')
    a(f's_lshr_b32 s{S_T2}, s{S_T1}, 1')
    a(f's_lshl_b32 s{S_T2}, s{S_T2}, 6')
    a(f's_add_u32 s{S_T0}, s{S_T0}, s{S_T2}')
    a(f's_and_b32 s{S_T1}, s{S_T1}, 1')
    a(f's_lshl_b32 s{S_T1}, s{S_T1}, 3')
    a(f's_add_u32 s{S_T0}, s{S_T0}, s{S_T1}')
    a(f'v_add_u32 v{V_T3}, s{S_T0}, v{V_T2}')
    for e in range(8):
        a(f'buffer_load_ushort v{V_ACC+e}, v{V_T3}, {SA}, 0 offen')
        if e < 7: a(f'v_add_u32 v{V_T3}, 1024, v{V_T3}')
    wpf(8)
    a(f'{name}_ln:')
    st(40)
    for i in range(8): a(f'ds_read_b128 {vr(RAW+4*i,4)}, v{V_LR} offset:{i*128}')
    for i in range(4): a(f'v_mov_b32 v{SUM+i}, 0')
    for s in range(8):
        a(f's_waitcnt lgkmcnt({7-s})')
        for i in range(4):
            r = RAW + 4 * s + i; f = F + 8 * s + 2 * i
            a(f'v_lshlrev_b32 v{f}, 16, v{r}')
            a(f'v_and_b32 v{f+1}, 0xffff0000, v{r}')
        for i in range(4):
            f = F + 8 * s + 2 * i; acc = SUM + 2 * (i & 1)
            a(f'v_pk_add_f32 {vr(acc,2)}, {vr(acc,2)}, {vr(f,2)}')
    def reduce8(dst):
        a(f'v_pk_add_f32 {vr(SUM,2)}, {vr(SUM,2)}, {vr(SUM+2,2)}')
        a(f'v_add_f32 v{dst}, v{SUM}, v{SUM+1}')
        a('s_nop 1')
        a(f'v_add_f32_dpp v{dst}, v{dst}, v{dst} row_ror:8 row_mask:0xf bank_mask:0xf')
        for sw in ('v_permlane16_swap_b32', 'v_permlane32_swap_b32'):
            a(f'v_mov_b32 v{V_T2}, v{dst}')
            a('s_nop 1')
            a(f'{sw} v{V_T2}, v{dst}')
            a('s_nop 1')
            a(f'v_add_f32 v{dst}, v{dst}, v{V_T2}')
    reduce8(MEAN)
    a(f'v_mul_f32 v{MEAN}, {f2h(-1.0/512)}, v{MEAN}')
    for i in range(4): a(f'v_mov_b32 v{SUM+i}, 0')
    for k in range(32):
        f = F + 2 * k
        a(f'v_pk_add_f32 {vr(f,2)}, {vr(f,2)}, {vr(MEAN,2)} op_sel_hi:[1,0]')
        if k:
            g = f - 2; acc = SUM + 2 * (k & 1)
            a(f'v_pk_fma_f32 {vr(acc,2)}, {vr(g,2)}, {vr(g,2)}, {vr(acc,2)}')
    g = F + 62
    a(f'v_pk_fma_f32 {vr(SUM,2)}, {vr(g,2)}, {vr(g,2)}, {vr(SUM,2)}')
    reduce8(RSTD)
    a(f'v_mov_b32 v{V_T2}, {f2h(1e-5)}')
    a(f'v_fmac_f32 v{V_T2}, {f2h(1.0/512)}, v{RSTD}')
    a(f'v_rsq_f32 v{RSTD}, v{V_T2}')
    a(f's_lshl_b32 s{S_T0}, s{S_CB}, 10')
    a(f's_lshl_b32 s{S_T1}, s{S_RB}, 7')
    a(f's_add_u32 s{S_T0}, s{S_T0}, s{S_T1}')
    a(f's_add_u32 s{S_T0}, s{S_T0}, s{S_BLK}')
    if WS_XA: a(f's_add_u32 s{S_T0}, s{S_T0}, {WS_XA}')
    for s in range(8):
        for i in range(4):
            f = F + 8 * s + 2 * i
            a(f'v_pk_mul_f32 {vr(f,2)}, {vr(f,2)}, {vr(RSTD,2)} op_sel_hi:[1,0]')
        for i in range(4):
            f = F + 8 * s + 2 * i
            a(f'v_cvt_pk_bf16_f32 v{RAW+4*s+i}, v{f}, v{f+1}')
        if s: a(f's_add_u32 s{S_T0}, s{S_T0}, 4096')
        a(f'buffer_store_dwordx4 {vr(RAW+4*s,4)}, v{V_LS}, {SW}, s{S_T0} offen sc1')
    a('v_mov_b32 v25, 0')
    a('buffer_load_dword v24, v25, s[96:99], 0 offen sc1')
    st(41)
    a(f'v_and_b32 v{V_T0}, 15, v0')
    a(f'v_lshrrev_b32 v{V_T1}, 4, v0')
    a(f'v_bfe_u32 v{V_T2}, v0, 2, 2')
    a(f'v_and_b32 v{V_T3}, 3, v0')
    a(f'v_lshl_add_u32 v{V_TR}, v{V_T2}, 3, v{V_T3}')
    a(f'v_lshlrev_b32 v{V_TR}, 10, v{V_TR}')
    a(f'v_xor_b32 v{V_T0}, v{V_T0}, v{V_T1}')
    a(f'v_lshl_add_u32 v{V_TR}, v{V_T0}, 4, v{V_TR}')
    a(f's_lshl_b32 s{S_T0}, s{S_RB}, 15')
    a(f's_add_u32 s{S_T0}, s{S_T0}, {LA_}')
    a(f's_lshl_b32 s{S_T1}, s{S_CB}, 15')
    a(f's_add_u32 s{S_T1}, s{S_T1}, {LB_}')
    for i in range(4):
        a(f'v_xor_b32 v{V_T0}, {i*64}, v{V_TR}')
        a(f'v_add_u32 v{V_AR+i}, s{S_T0}, v{V_T0}')
        a(f'v_add_u32 v{V_BR+i}, s{S_T1}, v{V_T0}')
    a(f'v_bfe_u32 v{V_T0}, v0, 3, 1')
    a(f'v_lshl_add_u32 v{V_T0}, v{V_T0}, 2, v{V_T3}')
    a(f'v_lshlrev_b32 v{K.V_WT0}, 4, v{V_T0}')
    a(f'v_lshl_add_u32 v{K.V_WT0}, v{V_T2}, 7, v{K.V_WT0}')
    a(f'v_lshl_add_u32 v{K.V_WT0}, v{V_T1}, 10, v{K.V_WT0}')
    a(f'v_xor_b32 v{K.V_WT1}, 64, v{K.V_WT0}')
    a(f's_lshl_b32 s{S_T0}, s{S_CB}, 6')
    a(f'v_xor_b32 v{V_TR}, s{S_T0}, v{K.V_WT0}')
    a(f'v_add_u32 v{V_TR}, {LB_}, v{V_TR}')
    a(f'{name}_tagw:')
    a('s_waitcnt vmcnt(0)')
    a(f'v_readfirstlane_b32 s{K.S_TAG}, v24')
    a('s_nop 3')
    a(f's_cmp_eq_u32 s{K.S_TAG}, 0')
    a(f's_cbranch_scc1 {name}_tags')
    a('s_barrier')
    st(42)
    mid1()
    def rd_rows(base):
        return lambda s, h, dst: [f'ds_read_b128 {vr(dst,4)}, v{base + (s & 3)} offset:{h*4096 + (s >> 2)*256}']
    def rd_tr(s, h, dst):
        return [f'ds_read_b64_tr_b16 {vr(dst+2*jj,2)}, v{V_TR} offset:{s*4096 + jj*512 + h*8}' for jj in range(2)]
    def gemm(rdB):
        rdA = rd_rows(V_AR)
        q = LdsQ()
        def issue(s):
            for h in range(2):
                for o in rdA(s, h, V_RA + 8 * (s % 4) + 4 * h): a(o); q.issue(s)
            for h in range(2):
                for o in rdB(s, h, V_RB + 8 * (s % 4) + 4 * h): a(o); q.issue(s)
        for s in range(gl): issue(s)
        for s in range(16):
            a(f's_waitcnt lgkmcnt({min(15, q.need(s))})')
            for ch in range(2):
                for b in range(2):
                    d = vr(V_ACC + ch * 8 + b * 4, 4)
                    a(f'v_mfma_f32_16x16x32_bf16 {d}, {vr(V_RA+8*(s%4)+4*b,4)}, {vr(V_RB+8*(s%4)+4*ch,4)}, {d if s else 0}')
                if ch == 0 and s + gl < 16: issue(s + gl)
            if s == 7: pollA()
        a('s_nop 7')
    a(f's_cmp_eq_u32 s{S_ROLE}, 3\n s_cbranch_scc1 {name}_c3')
    a(f's_lshl1_add_u32 s{S_OO}, s{S_TJ}, s{S_CB}')
    a(f's_lshl_b32 s{S_OO}, s{S_OO}, 15')
    a(f's_lshl1_add_u32 s{S_T0}, s{S_TI}, s{S_RB}')
    a(f's_lshl_b32 s{S_T0}, s{S_T0}, 11')
    a(f's_add_u32 s{S_OO}, s{S_OO}, s{S_T0}')
    a(f's_cmp_eq_u32 s{S_ROLE}, 1\n s_cbranch_scc1 {name}_c1')
    a(f's_cmp_eq_u32 s{S_ROLE}, 0')
    a(f's_cselect_b32 s{S_T0}, {WS_T1 - WS_WC}, 0')
    a(f's_add_u32 s{S_OO}, s{S_OO}, s{S_T0}')
    a(f's_add_u32 s{S_OO}, s{S_OO}, {WS_WC}')
    gemm(rd_tr)
    a(f's_branch {name}_out')
    a(f'{name}_c1:')
    a(f's_add_u32 s{S_OO}, s{S_OO}, {WS_W}')
    gemm(rd_rows(V_BR))
    a(f's_mov_b32 s{S_T1}, {f2h(512 ** -0.5 * 1.4426950408889634)}')
    for i in range(16): a(f'v_mul_f32 v{V_ACC+i}, s{S_T1}, v{V_ACC+i}')
    a(f'{name}_out:')
    for i in range(8): a(f'v_cvt_pk_bf16_f32 v{V_PK+i}, v{V_ACC+2*i}, v{V_ACC+2*i+1}')
    for ch in range(2):
        a(f'buffer_store_dwordx4 {vr(V_PK+4*ch,4)}, v{V_L16}, {SW}, s{S_OO} offen offset:{ch*1024} sc1')
    a('s_waitcnt vmcnt(2)')
    a(f's_branch {name}_pfin')
    a(f'{name}_c3:')
    a(f's_cmp_ge_u32 s3, 208\n s_cbranch_scc1 {name}_c5')
    a(f's_lshl1_add_u32 s{S_T1}, s{S_TJ}, s{S_CB}')
    a(f's_lshl_b32 s{S_T0}, s{S_T1}, 8')
    for i in range(4): a(f'v_add_u32 v{V_AR+i}, s{S_T0}, v{V_AR+i}')
    for i in range(8):
        for o in rd_rows(V_AR)(i >> 1, i & 1, V_RA + 4 * i): a(o)
    a(f's_lshl1_add_u32 s{S_OO}, s{S_TI}, s{S_RB}')
    a(f's_lshl_b32 s{S_OO}, s{S_OO}, 15')
    a(f's_lshl_b32 s{S_T0}, s{S_T1}, 13')
    a(f's_add_u32 s{S_OO}, s{S_OO}, s{S_T0}')
    a(f's_add_u32 s{S_OO}, s{S_OO}, {WS_RL}')
    for i in range(8):
        if i % 4 == 0 and i: a(f's_add_u32 s{S_OO}, s{S_OO}, 4096')
        a(f's_waitcnt lgkmcnt({7 - i})')
        a(f'buffer_store_dwordx4 {vr(V_RA+4*i,4)}, v{V_L16}, {SW}, s{S_OO} offen offset:{(i%4)*1024} sc1')
    a(f's_branch {name}_c6')
    a(f'{name}_c5:')
    for i in range(4): a(f'v_lshl_or_b32 v{V_RA+i}, v{V_ACC+2*i+1}, 16, v{V_ACC+2*i}')
    a(f's_lshl_b32 s{S_T0}, s{S_OO}, 10')
    a(f's_add_u32 s{S_T0}, s{S_T0}, {WS_DWT}')
    a(f'buffer_store_dwordx4 {vr(V_RA,4)}, v{V_L16}, {SW}, s{S_T0} offen sc1')
    a(f'{name}_c6:')
    pollA()
    a('s_waitcnt vmcnt(0)')
    a(f'{name}_pfin:')
    def slow():
        a(f'{name}_tags:')
        a('s_sleep 4')
        a('buffer_load_dword v24, v25, s[96:99], 0 offen sc1')
        a(f's_branch {name}_tagw')
    return slow
```

```python
import sys, json
from asmlib import *
import k1, k2, k3, km
def build(path, stamp=False, o1={}, o2={}, o3={}, nops=0, nop_pos=1, merged=False):
    a = Asm()
    hdr = open('standalone__conformer_family_branchformer__speech.s.ref').read().split('\n')
    for ln in hdr:
        if ln.startswith(';') and '@launch' not in ln and 'Override launch' not in ln and 'grid=ceil' not in ln: a.raw(ln)
    for i in range(nops if nop_pos == 0 else 0): a.raw('; @launch kernel=nop_kernel grid=(256,1,1) block=(256,1,1) lds=0')
    a.raw(f'; @launch kernel=prep_kernel grid=({k1.N_PREP_WG},1,1) block=(512,1,1) lds={k1.PREP_LDS}')
    for i in range(nops if nop_pos == 1 else 0): a.raw('; @launch kernel=nop_kernel grid=(256,1,1) block=(256,1,1) lds=0')
    if not merged: a.raw('; @launch kernel=rg_kernel grid=(256,1,1) block=(512,1,1) lds=163840')
    a.raw('; @launch kernel=attn_kernel grid=(256,1,1) block=(256,1,1) lds=163840')
    a.raw('.amdgcn_target "amdgcn-amd-amdhsa--gfx950"')
    k1.gen_prep(a, 'prep_kernel', stamp=stamp, **o1)
    if not merged:
        k2.gen_rg(a, 'rg_kernel', stamp=stamp, **o2)
        k3.gen_attn(a, 'attn_kernel', stamp=stamp, **o3)
    else:
        km.gen_main(a, 'attn_kernel', stamp=stamp, o2=o2, **o3)
    if nops:
        kernel_begin(a, 'nop_kernel'); a('s_endpgm'); kernel_desc(a, 'nop_kernel', 8, 16, 8)
    open(path, 'w').write(a.text())
def build1(path, stamp=False, o2={}, o3={}):
    import kz
    NAME = 'standalone__conformer_family_branchformer__speech_kernel'
    a = Asm()
    hdr = open('standalone__conformer_family_branchformer__speech.s.ref').read().split('\n')
    for ln in hdr:
        if ln.startswith(';') and '@launch' not in ln and 'Override launch' not in ln and 'grid=ceil' not in ln: a.raw(ln)
    a.raw(f'; @launch kernel=mega_kernel grid=(256,1,1) block=(256,1,1) lds=163840')
    a.raw('.amdgcn_target "amdgcn-amd-amdhsa--gfx950"')
    kz.gen_main(a, 'mega_kernel', stamp=stamp, o2=o2, **o3)
    open(path, 'w').write(a.text())
if __name__ == '__main__':
    o = json.loads(sys.argv[2]) if len(sys.argv) > 2 else {}
    if o.pop('one', False): build1(sys.argv[1], **o)
    else: build(sys.argv[1], **o)
```

```python
from asmlib import *
from layout import *
from attn2 import LdsQ
from k2 import f2h, VmQ
import re
import pz

def regs_of(tok):
    m = re.match(r'-?v\[(\d+):(\d+)\]', tok)
    if m: return set(range(int(m.group(1)), int(m.group(2)) + 1))
    m = re.match(r'-?v(\d+)$', tok)
    if m: return {int(m.group(1))}
    m = re.match(r's(\d+)$', tok)
    if m: return {1000 + int(m.group(1))}
    return set()
def rw(op):
    name_, rest = op.split(' ', 1)
    toks = [t.strip().split(' ')[0] for t in rest.split(',')]
    if name_.startswith('buffer_store'): return set().union(*[regs_of(t) for t in toks]), set()
    w = regs_of(toks[0]); r = set().union(*[regs_of(t) for t in toks[1:]])
    if name_.startswith('v_fmac'): r |= w
    return r, w

def rg4(a, name, K, st, stamp, vm, hooks, slows, LA=5, wait_every=2, bar_back=8, over=1, over2=0, XPRE=24, st_flags='sc1', fdelay=16, defer=0, pp=(14, 30, 48), rp=(20, 104, 130, 164), fastx=78, o1={}):
    V_L16, V_DK0, V_DK1 = K.V_L16, K.V_DK0, K.V_DK1
    V_ST0, V_ST1, V_RA, V_C0, V_C1, V_FO, V_FL, V_T0, V_T1 = 3, 4, 5, 8, 9, 10, 11, 13, 14
    V_WT, V_WD, S_TAG = (K.V_WT0, K.V_WT1), K.V_WD, K.S_TAG
    V_Z, V_HV, V_SS, V_RING, V_GP, V_STG = 16, 24, 32, 64, 96, 112
    NR = 7
    S_W, S_W8K = K.S_W, K.S_W8K
    S_CG, S_WOFF, S_B0, S_B1, S_XO, S_M0, S_M1, S_U, S_FI, S_S0 = 64, 65, 66, 67, 68, 69, 70, 71, 72, 73
    S_RAW = K.S_FLO
    S_T0, S_T1, S_T2 = K.S_T0, K.S_T1, K.S_T2
    SRD = f's[{K.S_SRD}:{K.S_SRD+3}]'
    q = LdsQ()
    def emit(o, tag=None):
        a(o)
        if o.startswith('buffer_'): vm.issue(tag)
        if o.startswith('ds_'): q.issue(tag)
    seq = ['g', 'g', 'u', 'u', 'q', 'q', 'v', 'v']
    half = [0, 1, 0, 1, 0, 1, 0, 1]
    ACN = [128, 160, 192, 224, 128, 32, 128, 32]
    wbase = {'q': 0, 'v': 16, 'u': 32, 'g': 48}
    obase = {'q': WS_Q, 'v': WS_VT, 'u': WS_UC, 'g': WS_G}
    BUF = {4: 4, 5: 1, 6: 3, 7: 2}
    def dma(n):
        out = []
        for g in range(2):
            pre = [f's_add_u32 s{S_T1}, s{S_WOFF}, {(wbase[seq[n]] + half[n]) * TILE}'] if g == 0 else []
            pre += [f's_add_u32 m0, s{S_W8K}, {BUF[n] * TILE + g*4096}', 's_nop 0']
            for i in range(4):
                out.append(pre + [(f'buffer_load_dwordx4 v{V_DK1 if g else V_DK0}, {SRD}, s{S_T1} offen offset:{i*1024} sc1 lds', ('W', n))]); pre = []
        return out
    def rawdma(n, kh):
        out = []
        for i in range(8):
            pre = [f's_add_u32 m0, s{S_W8K}, {(n + kh) * TILE + i*1024}', f's_add_u32 s{S_T1}, s{S_RAW}, {(1024 if seq[n] == "g" else 0) + kh * (1 << 19) + i * 16384}']
            out.append(pre + [(f'buffer_load_dwordx4 v{V_WD}, s[76:79], s{S_T1} offen lds', ('W', n, kh))])
        return out
    def run(groups):
        for g in groups:
            for o in g:
                if isinstance(o, tuple): emit(*o)
                else: a(o)
    PA_, PB_, PC = 192, 224, 112
    def flag(kind):
        a(f's_lshl_b32 s{S_T2}, s{ {0: S_U, 6: 3}.get(kind, S_FI) }, 7')
        a(f's_add_u32 s{S_T2}, s{S_T2}, {ZF + ZK * kind}')
        a(f'v_mov_b32 v{V_T1}, s{S_TAG}')
        emit(f'buffer_store_dword v{V_T1}, v{V_FO}, {SRD}, s{S_T2} offen sc1')
    def mid1():
        a(f's_bfe_u32 s{S_CG}, s2, 0x30003')
        a(f's_lshl_b32 s{S_FI}, s{K.S_GRP}, 2')
        a(f's_and_b32 s{S_FI}, s{S_FI}, 0xf8')
        a(f's_lshl_b32 s{S_XO}, s{S_FI}, 7')
        a(f's_add_u32 s{S_FI}, s{S_FI}, s{S_CG}')
        flag(5)
        a(f's_lshl_b32 s{S_RAW}, s{S_W}, 17')
        a(f's_lshl_b32 s{S_T1}, s{S_CG}, 7')
        a(f's_add_u32 s{S_RAW}, s{S_RAW}, s{S_T1}')
        run(rawdma(0, 0))
        a(f's_add_u32 s{S_XO}, s{S_XO}, {ZF + 5 * ZK}')
        a(f'v_and_b32 v{V_FL}, 7, v0')
        a(f'v_lshlrev_b32 v{V_FL}, 7, v{V_FL}')
    def pollA():
        a(f'buffer_load_dword v27, v{V_FL}, {SRD}, s{S_XO} offen sc1')
    tagslow = pz.prep(a, name, K, st, mid1, pollA, **o1)
    vm.issue('role'); vm.issue('role')
    a(f'v_cmp_ne_u32 vcc, s{S_TAG}, v27')
    a(f's_lshr_b32 s{S_T0}, s{K.S_TILE}, 1')
    a(f's_lshl_b32 s{S_T0}, s{S_T0}, 3')
    a(f's_lshl1_add_u32 s{S_T0}, s{S_W}, s{S_T0}')
    a(f's_cbranch_vccnz {name}_fas')
    a(f'{name}_fak:')
    slows.append(('fa', 27, V_FL, S_XO))
    for rb, (sb, vs) in enumerate(((S_B0, V_ST0), (S_B1, V_ST1))):
        a(f's_add_u32 s{sb}, s{S_T0}, {rb}')
        a(f's_cmp_lt_u32 s{sb}, 125')
        a(f's_cselect_b32 s{S_T1}, 0, 0x80000000')
        a(f'v_or_b32 v{vs}, s{S_T1}, v{V_L16}')
        a(f's_min_u32 s{sb}, s{sb}, 124')
        a(f's_add_u32 s{sb}, s{sb}, s{K.S_B125}')
        a(f's_lshl_b32 s{sb}, s{sb}, 15')
    def xload(i):
        rb, f = i >> 5, i & 31
        pre = []
        if f == 0: pre = [f's_add_u32 s{S_XO}, s{S_B1 if rb else S_B0}, {WS_XA}']
        elif f % 4 == 0: pre = [f's_add_u32 s{S_XO}, s{S_XO}, 4096']
        return pre + [(f'buffer_load_dwordx4 {ar(4*i,4)}, v{V_L16}, {SRD}, s{S_XO} offen offset:{(f%4)*1024} sc1', ('X', i))]
    run([xload(i) for i in range(8)])
    a('s_barrier')
    run(rawdma(0, 1))
    run([xload(i) for i in range(8, XPRE)])
    st(43)
    a(f's_lshl_b32 s{S_WOFF}, s{S_CG}, 16')
    a(f's_add_u32 s{S_WOFF}, s{S_WOFF}, {WS_W}')
    a(f's_and_b32 s{S_T0}, s2, 3')
    a(f's_lshl_b32 s{S_M1}, s{S_T0}, 2')
    a(f's_lshr_b32 s{S_T2}, s2, 6')
    a(f's_add_u32 s{S_M1}, s{S_M1}, s{S_T2}')
    a(f's_and_b32 s{S_M0}, s2, 4')
    a(f's_lshl_b32 s{S_M0}, s{S_M0}, 1')
    a(f's_add_u32 s{S_M0}, s{S_M0}, s{S_CG}')
    a(f's_lshl_b32 s{S_U}, s{S_M1}, 4')
    a(f's_add_u32 s{S_U}, s{S_U}, s{S_M0}')
    a(f's_lshl_b32 s{S_M0}, s{S_M0}, 15')
    a(f's_add_u32 s{S_M0}, s{S_M0}, {WS_RL}')
    a(f's_lshl_b32 s{S_M1}, s{S_M1}, 15')
    a(f's_add_u32 s{S_M1}, s{S_M1}, {WS_T1}')
    c0 = -2.0 * 0.7978845608028654 * 1.4426950408889634
    a(f'v_mov_b32 v{V_C0}, {f2h(c0)}')
    a(f'v_mov_b32 v{V_C1}, {f2h(c0 * 0.044715)}')
    a(f'v_add_u32 v{V_RA}, {2*TILE}, v{V_L16}')
    for i in range(32): a(f'v_mov_b32 v{V_SS+i}, 0')
    a(f's_lshl_b32 s{S_T2}, s{S_CG}, 12')
    a(f's_add_u32 s46, s{S_B0}, s{S_T2}')
    a(f's_add_u32 s47, s{S_B1}, s{S_T2}')
    OS = {'g': 56, 'u': 58, 'q': 60, 'v': 52}
    for ty in 'guqv':
        for rb in range(2): a(f's_add_u32 s{OS[ty]+rb}, s{46+rb}, {obase[ty]}')
    a(f'v_lshrrev_b32 v{V_T0}, 3, v0')
    a(f'v_and_b32 v{V_T1}, 7, v0')
    a(f's_lshl_b32 s{S_T2}, s{S_CG}, 3')
    a(f's_add_u32 s{S_T2}, s{S_T2}, 64')
    a(f'v_add_u32 v{V_FL}, s{S_T2}, v{V_T1}')
    a(f's_lshr_b32 s{S_T2}, s{S_U}, 5')
    a(f's_lshl_b32 s{S_T2}, s{S_T2}, 3')
    a(f'v_add_u32 v26, s{S_T2}, v{V_T1}')
    a(f'v_cmp_eq_u32 vcc, 1, v{V_T0}')
    a(f's_lshl_b32 s{S_T2}, s{K.S_SPLIT}, 4')
    a(f's_add_u32 s{S_T2}, s{S_T2}, {128 - 24}')
    a(f'v_cndmask_b32 v{V_FL}, v{V_FL}, v26, vcc')
    a(f'v_add_u32 v26, s{S_T2}, v0')
    a(f'v_subrev_u32 v27, 3, v{V_T0}')
    a(f'v_cmp_gt_u32 vcc, 2, v27')
    a(f's_mul_i32 s{S_T2}, s{S_CG}, 5')
    a(f's_add_u32 s{S_T2}, s{S_T2}, 206')
    a(f'v_cndmask_b32 v{V_FL}, v{V_FL}, v26, vcc')
    a(f'v_min_u32 v26, 6, v{V_T1}')
    a(f'v_add_u32 v26, s{S_T2}, v26')
    a(f'v_cmp_eq_u32 vcc, 2, v{V_T0}')
    a(f's_bfe_u32 s{S_T2}, s{S_U}, 0x30001')
    a(f's_add_u32 s{S_T2}, s{S_T2}, 192')
    a(f'v_cndmask_b32 v{V_FL}, v{V_FL}, v26, vcc')
    a(f'v_lshl_add_u32 v26, v{V_T1}, 3, s{S_T2}')
    a(f'v_subrev_u32 v27, 16, v0')
    a(f'v_cmp_gt_u32 vcc, 2, v27')
    a('s_nop 1')
    a(f'v_cndmask_b32 v{V_FL}, v{V_FL}, v26, vcc')
    a(f'v_lshlrev_b32 v{V_FL}, 7, v{V_FL}')
    PC = 92
    def p3dma():
        out = []
        for b, so in ((0, S_M0), (1, S_M1)):
            for h in range(2):
                pre = [f's_add_u32 m0, s{S_W8K}, {b * TILE + h*4096}', 's_nop 0']
                for i in range(4):
                    out.append(pre + [(f'buffer_load_dwordx4 v{V_DK1 if h else V_DK0}, {SRD}, s{so} offen offset:{i*1024} sc1 lds', 'p3')]); pre = []
        return out
    a(f's_and_b32 s{S_T2}, s{S_W}, 1')
    a(f's_lshl_b32 s{S_T2}, s{S_T2}, 10')
    a(f'v_add_u32 v30, s{S_T2}, v{V_L16}')
    a(f's_lshr_b32 s{S_T2}, s{S_W}, 1')
    a(f's_lshl_b32 s{S_T2}, s{S_T2}, 10')
    a(f'v_add_u32 v31, s{S_T2}, v{V_L16}')
    def p3step(j):
        b = V_STG + 8 * (j % 2)
        if 2 <= j < 18:
            a(f's_waitcnt lgkmcnt({min(15, q.need(("p3r", j - 2)))})')
            a(f'v_mfma_f32_16x16x32_bf16 {vr(PC,4)}, {vr(b,4)}, {vr(b+4,4)}, {vr(PC,4) if j > 2 else 0}')
        if j < 16:
            emit(f'ds_read_b128 {vr(b,4)}, v30 offset:{j*2048}', ('p3r', j))
            emit(f'ds_read_b128 {vr(b+4,4)}, v31 offset:{TILE + j*2048}', ('p3r', j))
        if j == 18:
            a(f's_lshl_b32 s{S_M0}, s{S_U}, 11')
            a(f's_lshr_b32 s{S_T2}, s{S_W}, 1')
            a(f's_lshl_b32 s{S_T2}, s{S_T2}, 10')
            a(f's_add_u32 s{S_M0}, s{S_M0}, s{S_T2}')
            a(f's_and_b32 s{S_T2}, s{S_W}, 1')
            a(f's_lshl_b32 s{S_T2}, s{S_T2}, 3')
            a(f's_add_u32 s{S_M0}, s{S_M0}, s{S_T2}')
            a(f's_add_u32 s{S_M0}, s{S_M0}, {WS_W + 16 * TILE}')
            for i in range(2): a(f'v_cvt_pk_bf16_f32 v{PC+i}, v{PC+2*i}, v{PC+2*i+1}')
            emit(f'buffer_store_dwordx2 {vr(PC,2)}, v{V_L16}, {SRD}, s{S_M0} offen sc1', 'p3s')

    stream = []
    for rb in range(2):
        for s in range(16):
            for n in range(2):
                for ch in range(2): stream.append((n, s, ch, rb))
    for n in range(2, 8):
        for f in range(32): stream.append((n, f & 15, f >> 4, None))
    NS = len(stream)
    def slot(G): return V_RING + 4 * (G % NR)
    def rd(G):
        n, s, ch, rb = stream[G]
        if seq[n] in 'gu':
            return [f'ds_read_b64_tr_b16 {vr(slot(G)+2*jj, 2)}, v{V_WT[half[n]]} offset:{s*4096 + jj*512 + ch*8}' for jj in range(2)]
        reg, off = {4: (V_WD, 0), 1: (V_L16, TILE), 3: (V_RA, TILE), 2: (V_RA, 0)}[BUF[n]]
        return [f'ds_read_b128 {vr(slot(G), 4)}, v{reg} offset:{off + (2 * s + ch) * 1024}']
    def mf(n, s, ch, rb, rh, G):
        x = ar(rb * 128 + (s * 2 + rh) * 4, 4); w = vr(slot(G), 4)
        if seq[n] in 'vg': d = vr(ACN[n] + 16 * rb + ch * 8 + rh * 4, 4); A, B = x, w
        else: d = vr(ACN[n] + 16 * rb + rh * 8 + ch * 4, 4); A, B = w, x
        return f'v_mfma_f32_16x16x32_bf16 {d}, {A}, {B}, {d if s else 0}'
    def mfmas(G):
        n, s, ch, rb = stream[G]
        if rb is not None: return [mf(n, s, ch, rb, rh, G) for rh in range(2)]
        R = [(0, 0), (0, 1), (1, 0), (1, 1)]
        if (s >> 1) & 1: R = R[::-1]
        out = []
        for (b, rh) in R[2 * (s & 1):2 * (s & 1) + 2]:
            for k in range(2): out.append(mf(n, (s & 14) + k, ch, b, rh, (G & ~1) + k))
        return out
    for G in range(LA):
        for o in rd(G): emit(o, G)
    extra = [xload(i) for i in range(XPRE, 64)] + rawdma(2, 0) + rawdma(2, 1)
    pkrot = [0]; zrot = [0]
    def epilogue(n, rb):
        ty = seq[n]; ops = []
        for o in range(2):
            base = ACN[n] + 16 * rb + 8 * o
            if ty == 'u' and half[n] * 4 + rb * 2 + o >= 8 - defer: continue
            if ty in 'ug':
                def chain(e):
                    z = (V_Z + e if n > 1 else V_Z + 4 * n + e % 4); x = base + e
                    c = [(f'v_mul_f32 v{z}, v{x}, v{x}', 1), (f'v_fma_f32 v{z}, v{z}, v{V_C1}, v{V_C0}', 1), (f'v_mul_f32 v{z}, v{z}, v{x}', 1),
                         (f'v_exp_f32 v{z}, v{z}', 2), (f'v_add_f32 v{z}, 1.0, v{z}', 1), (f'v_rcp_f32 v{z}, v{z}', 2), (f'v_mul_f32 v{x}, v{x}, v{z}', 1)]
                    if ty == 'g':
                        c += [(f'v_add_f32 v{V_SS+16*rb+e}, v{V_SS+16*rb+e}, v{x}', 1), (f'v_fmac_f32 v{V_SS+16*rb+8+e}, v{x}, v{x}', 1)]
                    return c
                L = len(chain(0))
                for _, e, k in sorted(((2 if n > 1 else 4) * e + 2 * k, e, k) for e in range(8) for k in range(L)): ops.append(chain(e)[k] + (None,))
            if ty == 'u': continue
            pk = base if n else V_GP + 8 * rb + 4 * o
            so = OS[ty] + rb
            for i in range(4): ops.append((f'v_cvt_pk_bf16_f32 v{pk+i}, v{base+2*i}, v{base+2*i+1}', 1, None))
            vo = (V_HV + rb) if ty == 'g' else (V_ST1 if rb else V_ST0)
            if ty != 'u': ops.append((f'buffer_store_dwordx4 {vr(pk,4)}, v{vo}, {SRD}, s{so} offen offset:{half[n]*2048 + o*1024} {st_flags}', 2, ('st', ty)))
        return ops
    def stats_ops(rb):
        ops = []
        for sh in (8, 4, 2, 1):
            for i in range(16):
                r = V_SS + 16 * rb + i
                ops.append((f'v_add_f32_dpp v{r}, v{r}, v{r} row_ror:{sh} row_mask:0xf bank_mask:0xf', 1, None))
        for i in range(4):
            ops.append((f'buffer_store_dwordx4 {vr(V_SS+16*rb+4*i,4)}, v{12 + 3*rb}, {SRD}, s{S_S0+rb} offen offset:{i*64} {st_flags}', 2, ('st', 'g')))
        return ops
    a(f'v_and_b32 v{V_T0}, 15, v0')
    a(f'v_cmp_eq_u32 vcc, 0, v{V_T0}')
    a(f'v_bfrev_b32 v{V_T1}, 1')
    for rb in range(2):
        a(f's_lshr_b32 s{S_S0+rb}, s{S_B1 if rb else S_B0}, 4')
        a(f's_lshl_b32 s{S_T2}, s{S_CG}, 8')
        a(f's_add_u32 s{S_S0+rb}, s{S_S0+rb}, s{S_T2}')
        a(f's_add_u32 s{S_S0+rb}, s{S_S0+rb}, {WS_ST}')
    a(f'v_cndmask_b32 v{V_T0}, v{V_T1}, v0, vcc')
    for rb in range(2):
        a(f'v_and_b32 v{12+3*rb}, v{V_T1}, v{V_ST1 if rb else V_ST0}')
        a(f'v_or_b32 v{12+3*rb}, v{12+3*rb}, v{V_T0}')
    for rb, wv in ((0, 0), (1, 3)):
        a(f's_cmp_eq_u32 s{S_W}, {wv}')
        a(f's_cselect_b32 s{S_T2}, 0, 0x80000000')
        a(f'v_or_b32 v{V_HV+rb}, s{S_T2}, v{V_ST1 if rb else V_ST0}')
    pend = []; lastw = {}; lasts = {}; forced = [0]
    pos = [0]
    def flush_one(op, tag):
        r, w = rw(op)
        prev = a.lines[-1].strip()
        if prev.startswith(('v_exp', 'v_rcp')) and (rw(prev)[1] & r): a('s_nop 0')
        for pv in a.lines[-2:]:
            pv = pv.strip()
            if pv.startswith('buffer_store') and (rw(pv)[0] & w): a('s_nop 1'); break
            if 'dpp' in op and pv.startswith('v_') and not pv.startswith('v_mfma') and (rw(pv)[1] & r): a('s_nop 1'); break
        emit(op, tag)
        for x in w: lastw[x] = pos[0]
        if op.startswith('buffer_store'):
            for x in r: lasts[x] = pos[0]
    def issue_ready(budget, window=28):
        i = 0; p = pos[0]
        while budget > 0 and i < min(window, len(pend)):
            rdy, op, c, tag, t = pend[i]
            r, w = rw(op)
            gap = 2 if 'dpp' in op else 1
            ok = rdy <= p and c <= budget and all(lastw.get(x, -9) + gap <= p for x in r) and all(lasts.get(x, -9) + 2 <= p for x in w)
            if ok:
                for j in range(i):
                    r2, w2 = rw(pend[j][1])
                    if (r & w2) or (w & r2) or (w & w2): ok = False; break
            if ok:
                pend.pop(i); flush_one(op, tag); budget -= c
            else: i += 1
    first_of = {n: min(i for i, it in enumerate(stream) if it[0] == n) for n in range(8)}
    last_of = {}
    for i, it in enumerate(stream):
        for rb in ((0, 1) if it[3] is None else (it[3],)): last_of[(it[0], rb)] = i
    done_at = {}; flagged = set()
    F3 = first_of[3]
    for G in range(NS):
        n, s, ch, rb = stream[G]
        if G in (0, 64): st(30 + G // 64)
        if G >= 128 and G % 32 == 0: st(30 + G // 32 - 2)
        if G == first_of[n]:
            while any((t is not None and ACN[t] == ACN[n]) or (ACN[n] == V_SS and (t is None or seq[t] == 'g')) for (_, _, _, _, t) in pend):
                _, op, _, tag, _ = pend.pop(0); flush_one(op, tag); forced[0] += 1
        w = []
        if n == 0 and ch == 0: w.append(f'vmcnt({min(63, vm.need(("X", 32 * rb + 2 * s + 1)))})')
        we = wait_every
        if G % we == 0: w.append(f'lgkmcnt({min(15, q.need(min(G + we - 1, NS - 1)))})')
        if w: a('s_waitcnt ' + ' '.join(w))
        mm = mfmas(G)
        for h, m in enumerate(mm):
            a(m)
            budget = 2
            ov = over if 'g' not in done_at else over2
            if ov and pos[0] % ov == 0: budget += 1
            if G + LA < NS and h < len(rd(G + LA)): emit(rd(G + LA)[h], G + LA); budget -= 1
            if h == len(mm) - 1 and (G + 1) % we == 0: budget -= 1
            if extra and h == len(mm) // 2 and (rb is None or G % 2 == 0 or G > fastx):
                run([extra.pop(0)]); budget = 0
            issue_ready(budget)
            pos[0] += 1
        for ty in 'gq':
            if ty not in done_at and G > last_of[(7 - seq[::-1].index(ty), 1)] and not any(p[3] == ('st', ty) for p in pend): done_at[ty] = G
        for ty, kind in (('g', 1), ('q', 2)):
            if ty in done_at and G == done_at[ty] + fdelay:
                a(f's_waitcnt vmcnt({vm.need(("st", ty))})')
                a('s_barrier')
                flag(kind); flagged.add(kind); print('k2c flag', kind, 'at', G)
        def bar(tags):
            if tags: a(f's_waitcnt vmcnt({min(vm.need(t) for t in tags)})')
            a('s_barrier')
        if G == rp[0]:
            bar([('W', 0, 1)])
            flag(6)
        if G == rp[1]:
            a(f's_mov_b32 s46, {ZF + 6 * ZK}')
            emit(f'buffer_load_dword v27, v{V_FL}, {SRD}, s46 offen sc1', 'pollr')
        if G == first_of[2] - bar_back: bar([('W', 2, 1)])
        if G == first_of[2] - LA - 1:
            for r in V_WT: a(f'v_add_u32 v{r}, {2*TILE}, v{r}')
            a(f'v_add_u32 v{V_WD}, {4*TILE}, v{V_L16}')
        if G == rp[2]:
            assert G >= first_of[2]
            a(f's_waitcnt vmcnt({vm.need("pollr")})')
            a(f'v_cmp_ne_u32 vcc, s{S_TAG}, v27')
            a(f's_cbranch_vccnz {name}_frs')
            a(f'{name}_frk:')
            slows.append(('fr', 27, V_FL, 46))
            bar([])
            extra += p3dma() + dma(4)
        if G == rp[3]: bar(['p3'])
        if 0 <= G - rp[3] <= 18: p3step(G - rp[3])
        if G == first_of[4] - bar_back:
            assert G >= rp[3] + 17
            bar([('W', 4)])
            extra += dma(5)
        if G == rp[3] + 18 + pp[0]:
            bar(['p3s']); flag(0); flagged.add(0)
        if G == first_of[5] - bar_back: bar([('W', 5)])
        if G == rp[3] + 18 + pp[1]:
            a(f'v_and_b32 v{V_FL}, 31, v0')
            a(f'v_lshlrev_b32 v{V_FL}, 7, v{V_FL}')
            a(f's_lshl_b32 s{S_M1}, s{S_CG}, 12')
            a(f's_add_u32 s{S_M1}, s{S_M1}, {ZF}')
            emit(f'buffer_load_dword v27, v{V_FL}, {SRD}, s{S_M1} offen sc1', 'poll')
        if G == rp[3] + 18 + pp[2]:
            assert G > first_of[5] - bar_back
            a(f's_waitcnt vmcnt({vm.need("poll")})')
            a(f'v_cmp_ne_u32 vcc, s{S_TAG}, v27')
            a(f's_cbranch_vccnz {name}_p3slow')
            a(f'{name}_p3ok:')
            extra[:0] = dma(6) + dma(7)
        if G == first_of[6] - LA - 1: bar([('W', 6)])
        if G == first_of[7] - bar_back: bar([('W', 7)])
        if G - NS in hooks: extra += hooks[G - NS]() or []
        for (m, b), l in last_of.items():
            if l == G:
                ep = [(pos[0] + 7, op, c, tag, m) for op, c, tag in epilogue(m, b)]
                if seq[m] in 'qv':
                    pend[:0] = ep
                elif m == 0 and b == 1:
                    k = max([i for i, p in enumerate(pend) if p[4] == 0], default=-1) + 1
                    pend[k:k] = ep
                else:
                    pend += ep
                    if m == 1: pend += [(pos[0] + 7, op, c, tag, None) for op, c, tag in stats_ops(b)]
    print('k2m: forced', forced[0], 'tail', len(pend), 'done', done_at, 'extra left', len(extra))
    st(27); st(38)
    run(extra)
    a('s_nop 7')
    for _, op, _, tag, _ in pend: flush_one(op, tag)
    def slow():
        tagslow()
        a(f'{name}_p3slow:')
        a('s_sleep 8')
        a(f'buffer_load_dword v27, v{V_FL}, {SRD}, s{S_M1} offen sc1')
        a('s_waitcnt vmcnt(0)')
        a(f'v_cmp_ne_u32 vcc, s{S_TAG}, v27')
        a(f's_cbranch_vccnz {name}_p3slow')
        a(f's_branch {name}_p3ok')
    assert flagged == {0, 1, 2}
    return flag, slow
```

```python
from asmlib import *
from layout import *
from attn2 import LdsQ
from k2 import f2h, VmQ, code_prefetch

V_DK0, V_DK1, V_DV0, V_DV1, V_KA, V_VA, V_L16, V_L0, V_L1, V_MX, V_F0, V_F1, V_T0, V_T1, V_T2 = range(1, 16)
V_S, V_E, V_P, V_NEGM, V_RING = 16, 32, 48, 56, 64
V_PF, V_PFD, V_XO, V_FL = 116, 117, 118, 119
V_WT0, V_WT1, V_WD, V_FO = 6, 28, 29, 10
S_TAG = 75
S_X, S_OUTP, S_WS, S_SRD, S_SRX, S_SRO = 4, 6, 40, 8, 12, 16
(S_KOFF, S_VOFF, S_KDMA, S_VDMA, S_VRD, S_CNT, S_W, S_QB, S_SPLIT, S_T0, S_T1, S_VALID, S_GRP, S_W8K, S_PFOFF, S_T2) = range(20, 36)
S_TILE, S_B125, S_T3, S_T4 = 36, 37, 38, 39
S_WB0, S_WB1, S_WB2, S_WB3, S_UCO, S_WCO, S_FLO, S_PO = range(56, 64)
S_PFS, S_PFST, S_PH, S_XCC, S_SLOW, S_PB = 44, 45, 46, 47, 48, 54

def Obase(beta, qh): return 128 + 8 * (beta % 16) + 4 * qh
def Oreg(beta, qh): return vr(Obase(beta, qh), 4) if beta < 16 else ar(Obase(beta, qh), 4)

def gen_main(a, name, dma_gap=3, dma_cost=2, CAP=2, bar_pos=50, NR=13, LA=10, wait_every=4, THR=0x41800000,
             stamp=False, snake=True, prefetch=2, pf=True, pv_pace=4, pv_budget=6, out_flags='sc1', npf=0, fast_st='nt', flag_at=140, force_slow=True, tailst=False, pfill=False, st_pace=9, ld_pace=2, yc_budget=2, bg_pace=14, tailpf=True, pf_flags='sc1', uc_pace=4, chk_at=60, merged=True, gst=False, pst=False, slp=8, pf_wg=0, o2={}, hk=(-62, -38, -22), vchk=16, dbg=(), dbgout=False, spin=None, brgap=3, chain=True, poll_after=8, r_pace=5, chk2_at=0, noyc=False, ld_per_st=0, flag_after=0, rounds=((56, 3), (112, 3))):
    SRD, SRX, SRO = [f's[{b}:{b+3}]' for b in (S_SRD, S_SRX, S_SRO)]
    def st(i, cyc=False):
        gs = [1, 2, 3, 4, 5, 6, 8, 9, 12, 13, 14, 15]
        if i >= 40:
            if i == 43: i = 10
            elif pst: i = [4, 5, 6][i - 40]
            else: return
        elif pst and i in (4, 5, 6): return
        if i >= 30:
            if not gst: return
            i = gs[i - 30]; cyc = True
        elif gst and i in gs: return
        if tailst and 10 <= i <= 14: return
        if 20 <= i < 26:
            if not tailst: return
            i -= 10
        if i >= 26: i -= 16
        if stamp:
            a(f'{"s_memtime" if cyc else "s_memrealtime"} s[100:101]')
            a('s_waitcnt lgkmcnt(0)')
            a(f's_mov_b32 s{80+i}, s100')
    kernel_begin(a, name)
    a(f's_cmp_ge_u32 s2, 256\n s_cbranch_scc1 {name}_end')
    a('s_load_dwordx16 s[56:71], s[0:1], 0')
    a('s_load_dwordx8 s[72:79], s[0:1], 64')
    st(0)
    if pf:
        a(f's_getpc_b64 s[42:43]')
        a(f'{name}_pc:')
        a(f's_sub_u32 s42, s42, {name}_pc-{name}')
        a(f's_subb_u32 s43, s43, 0')
        a(f's_lshr_b32 s44, s2, 3')
        a(f's_mul_i32 s44, s44, 3072')
        a(f'v_subrev_u32 v13, 192, v0')
        a(f'v_cmp_gt_u32 vcc, 24, v13')
        a(f'v_lshlrev_b32 v13, 7, v13')
        a(f'v_add_u32 v13, s44, v13')
        a(f'v_min_u32 v13, {name}_end-{name}-4, v13')
        a(f's_and_saveexec_b64 s[44:45], vcc')
        a(f's_cbranch_execz {name}_nopf')
        a(f'global_load_dword v250, v13, s[42:43]')
        a(f'{name}_nopf:')
        a(f's_mov_b64 exec, s[44:45]')
    a(f'v_lshrrev_b32 v{V_T0}, 6, v0')
    a(f'v_cmp_eq_u32 vcc, 0, v0')
    a(f'v_bfrev_b32 v{V_T1}, 1')
    a(f'v_and_b32 v0, 63, v0')
    a(f'v_readfirstlane_b32 s{S_W}, v{V_T0}')
    a(f'v_lshlrev_b32 v{V_L16}, 4, v0')
    a(f'v_cndmask_b32 v{V_FO}, v{V_T1}, 0, vcc')
    a(f's_and_b32 s{S_T0}, s2, 7')
    a(f's_lshr_b32 s{S_T1}, s2, 3')
    a(f's_and_b32 s{S_SPLIT}, s{S_T1}, 3')
    a(f's_lshr_b32 s{S_T1}, s{S_T1}, 2')
    a(f's_lshl_b32 s{S_PFOFF}, s{S_T1}, 2')
    a(f's_and_b32 s{S_TILE}, s{S_T0}, 3')
    a(f's_lshl_b32 s{S_TILE}, s{S_TILE}, 3')
    a(f's_add_u32 s{S_TILE}, s{S_TILE}, s{S_T1}')
    a(f's_lshr_b32 s{S_T0}, s{S_T0}, 2')
    a(f's_lshl_b32 s{S_GRP}, s{S_T0}, 5')
    a(f's_add_u32 s{S_GRP}, s{S_GRP}, s{S_TILE}')
    a(f's_mul_i32 s{S_B125}, s{S_T0}, 125')
    ucst = []
    def late_setup():
        a(f's_lshl_b32 s{S_QB}, s{S_TILE}, 2')
        a(f's_add_u32 s{S_QB}, s{S_QB}, s{S_W}')
        a(f's_cmp_lt_u32 s{S_QB}, 125')
        a(f's_cselect_b32 s{S_VALID}, 0, 0x80000000')
        a(f's_min_u32 s{S_QB}, s{S_QB}, 124')
        a(f's_add_u32 s{S_QB}, s{S_QB}, s{S_B125}')
        a(f's_mul_i32 s{S_T1}, s{S_SPLIT}, 31')
        a(f's_cmp_lg_u32 s{S_SPLIT}, 0')
        a(f's_addc_u32 s{S_T1}, s{S_T1}, s{S_B125}')
        a(f's_cmp_lg_u32 s{S_SPLIT}, 0')
        a(f's_cselect_b32 s{S_CNT}, 29, 30')
        a(f's_lshl_b32 s{S_KOFF}, s{S_T1}, 15')
        a(f's_add_u32 s{S_VOFF}, s{S_KOFF}, {WS_VT}')
        if WS_XA: a(f's_add_u32 s{S_KOFF}, s{S_KOFF}, {WS_XA}')
        a(f's_lshl_b32 s{S_W8K}, s{S_W}, 13')
        a(f'v_add_u32 v{V_DK0}, s{S_W8K}, v{V_L16}')
        a(f'v_add_u32 v{V_DK1}, 4096, v{V_DK0}')
    vm = VmQ()
    def emit(o, tag=None):
        a(o)
        if o.startswith('buffer_'): vm.issue(tag)
    def dma_ops(v0, v1, soff, sbase):
        ops = []
        for g in range(2):
            for i in range(4):
                pre = None
                if i == 0:
                    pre = f's_mov_b32 m0, s{sbase}' if g == 0 else f's_add_u32 m0, s{sbase}, 4096'
                ops.append((pre, f'buffer_load_dwordx4 v{v0 if g == 0 else v1}, {SRD}, s{soff} offen offset:{i*1024} sc1 lds'))
        return ops
    def emit_dma_now(tag, *args):
        for pre, op in dma_ops(*args):
            if pre: a(pre); a('s_nop 0')
            emit(op, tag)
    def xreduce(regs, op, tmp):
        for sw in ('v_permlane16_swap_b32', 'v_permlane32_swap_b32'):
            for i, r in enumerate(regs): a(f'v_mov_b32 v{tmp+i}, v{r}')
            if len(regs) < 3: a('s_nop 1')
            else: a('s_nop 0')
            for i, r in enumerate(regs): a(f'{sw} v{tmp+i}, v{r}')
            a('s_nop 1')
            for i, r in enumerate(regs): a(f'{op} v{r}, v{r}, v{tmp+i}')

    import k2z, sys
    late_setup()
    GN = 3 * TILE; GS = 584; CV = GN + 64 * GS; CS = 144; TB = CV + 20480
    S_VF = [42, 43, 49]; S_B10 = [50, 51, 45]; S_BT, S_RT = 63, 55
    S_CG = 64
    V_PL, V_PQ, V_HD = 26, 27, 28
    STL = [[112, 116], [120, 124], [164, 172]]
    def poll_ops(first_expr, ngrp, kind, dst, tag):
        pass
    def slowpoll(lab, dst, vo, so):
        slows.append((lab, dst, vo, so))
    slows = []
    def h_poll1():
        a(f's_lshr_b32 s{S_BT}, s{S_TILE}, 1')
        a(f'v_lshrrev_b32 v13, 3, v0')
        a(f's_sub_u32 s{S_T3}, s{S_BT}, 1')
        a(f'v_add_u32 v11, s{S_T3}, v13')
        a(f'v_med3_i32 v11, v11, 0, 15')
        a(f's_lshr_b32 s{S_T3}, s{S_KOFF}, 15')
        a(f's_sub_u32 s{S_T3}, s{S_T3}, s{S_B125}')
        a(f'v_cmp_lt_u32 vcc, 2, v13')
        a(f'v_and_b32 v13, 1, v13')
        a(f'v_add_u32 v13, s{S_T3}, v13')
        a(f'v_lshrrev_b32 v13, 3, v13')
        a(f'v_cndmask_b32 v11, v11, v13, vcc')
        a(f'v_and_b32 v13, 7, v0')
        a(f'v_lshl_add_u32 v11, v11, 3, v13')
        a(f'v_lshlrev_b32 v11, 7, v11')
        a(f's_and_b32 s{S_T3}, s{S_GRP}, 32')
        a(f's_lshl_b32 s{S_T3}, s{S_T3}, 9')
        a(f's_add_u32 s{S_T3}, s{S_T3}, {ZF + ZK}')
        emit(f'buffer_load_dword v{V_PL}, v11, {SRD}, s{S_T3} offen sc1', 'poll1')
    def chk(lab, dst, vo, so, tag):
        a(f's_waitcnt vmcnt({vm.need(tag)})')
        a(f'v_cmp_ne_u32 vcc, s{S_TAG}, v{dst}')
        a(f's_cbranch_vccnz {name}_{lab}s')
        a(f'{name}_{lab}k:')
        slows.append((lab, dst, vo, so))
    def h_loads1():
        chk('f1', V_PL, 11, S_T3, 'poll1')
        out = []
        for rnd in range(3):
            pre = [f's_lshl_b32 s{S_T4}, s{S_BT}, 3']
            if rnd < 2: pre.append(f's_add_u32 s{S_B10[rnd]}, s{S_W}, {4*rnd}')
            else: pre += [f's_cmp_lt_u32 s{S_W}, 2', f's_cselect_b32 s{S_T3}, 8, 4', f's_add_u32 s{S_B10[2]}, s{S_W}, s{S_T3}']
            pre += [f's_add_u32 s{S_T3}, s{S_T4}, s{S_B10[rnd]}', f's_sub_u32 s{S_T3}, s{S_T3}, 1', f's_cmp_lt_u32 s{S_T3}, 125',
                    f's_cselect_b32 s{S_VF[rnd]}, 1.0, 0', f's_cselect_b32 s{S_T3}, s{S_T3}, s{S_T4}', f's_add_u32 s{S_T3}, s{S_T3}, s{S_B125}',
                    f's_lshl_b32 s{S_T3}, s{S_T3}, 11', f's_add_u32 s{S_T3}, s{S_T3}, {WS_ST}']
            for h in range(2):
                out.append(pre + [(f'buffer_load_dwordx4 {vr(STL[rnd][h],4)}, v{V_L16}, {SRD}, s{S_T3} offen offset:{h*1024} sc1', 'st')]); pre = []
        pre = [f's_and_b32 s{S_PH}, s{S_W}, 1', f's_mul_i32 s{S_T3}, s{S_PH}, 9', f's_add_u32 s{S_T3}, s{S_T3}, s{S_T4}', f's_sub_u32 s{S_T3}, s{S_T3}, 1',
               f's_cmp_lt_u32 s{S_T3}, 125', f's_cselect_b32 s{S_T3}, s{S_T3}, s{S_T4}', f's_add_u32 s{S_T3}, s{S_T3}, s{S_B125}', f's_lshl_b32 s{S_T3}, s{S_T3}, 15',
               f's_lshr_b32 s{S_XCC}, s{S_W}, 1', f's_lshl1_add_u32 s{S_XCC}, s{S_CG}, s{S_XCC}', f's_lshl_b32 s{S_XCC}, s{S_XCC}, 11', f's_add_u32 s{S_T3}, s{S_T3}, s{S_XCC}',
               f's_xor_b32 s{S_XCC}, s{S_PH}, 1', f's_lshl_b32 s{S_XCC}, s{S_XCC}, 3', f's_add_u32 s{S_T3}, s{S_T3}, s{S_XCC}', f's_add_u32 s{S_T3}, s{S_T3}, {WS_G}']
        for ch in range(2):
            out.append(pre + [(f'buffer_load_dwordx2 {vr(V_HD+2*ch,2)}, v{V_L16}, {SRD}, s{S_T3} offen offset:{ch*1024} sc1', 'st')]); pre = []
        return h_k0() + out
    def h_k0():
        out = []
        first = [f's_mov_b32 s{S_KDMA}, s{S_W8K}']
        for pre, op in dma_ops(V_DK0, V_DK1, S_KOFF, S_KDMA):
            out.append(first + ([pre, 's_nop 0'] if pre else []) + [(op, 'K0')]); first = []
        pre = [f's_mul_i32 s{S_T4}, s{S_CG}, 20480', f's_mul_i32 s{S_XCC}, s{S_W}, 5120', f's_add_u32 s{S_T4}, s{S_T4}, s{S_XCC}',
               f's_add_u32 s{S_T4}, s{S_T4}, {WS_DWT}', f's_add_u32 m0, s{S_XCC}, {CV}', 's_nop 0']
        for i in range(5):
            if i == 4: pre = [f's_add_u32 s{S_T4}, s{S_T4}, 4096', f's_add_u32 m0, s{S_XCC}, {CV + 4096}', 's_nop 0']
            out.append(pre + [(f'buffer_load_dwordx4 v{V_L16}, {SRD}, s{S_T4} offen offset:{(i%4)*1024} sc1 lds', 'K0')]); pre = []
        return out
    def h_pollq():
        a(f's_lshr_b32 s{S_BT}, s{S_TILE}, 1')
        a(f's_lshr_b32 s{S_RT}, s{S_GRP}, 1')
        a(f's_mov_b32 s{S_PFS}, {f2h(1/512)}')
        assert hk[2] > hk[1]
        a(f'v_and_b32 v11, 7, v0')
        a(f'v_lshlrev_b32 v11, 7, v11')
        a(f's_lshl_b32 s{S_SLOW}, s{S_RT}, 10')
        a(f's_add_u32 s{S_SLOW}, s{S_SLOW}, {ZF + 2 * ZK}')
        emit(f'buffer_load_dword v{V_PQ}, v11, {SRD}, s{S_SLOW} offen sc1', 'pollq')
    assert hk[1] > -40
    hooks = {hk[0]: h_poll1, hk[1]: h_loads1, hk[2]: h_pollq}
    flagf, p3slow = k2z.rg4(a, name, sys.modules[__name__], st, stamp, vm, hooks, slows, **o2)
    AT = [[64, 68, 72, 76, 80, 84, 88, 92, 16, 20], [128, 132, 136, 140, 144, 148, 152, 156, 180, 188]]
    UACC = [192, 224]
    def gfrag(T, rb, ch): return (96 + 8 * rb + 4 * ch) if T == 0 else (160 + 16 * rb + 8 * ch)
    chk('fq', V_PQ, 11, S_SLOW, 'pollq')
    bg = []
    bg.append(f's_lshl_b32 s{S_T1}, s{S_QB}, 15')
    bg.append(f's_add_u32 s{S_T1}, s{S_T1}, {WS_Q}')
    for f in range(32):
        if f % 4 == 0 and f: bg.append(f's_add_u32 s{S_T1}, s{S_T1}, 4096')
        bg.append((f'buffer_load_dwordx4 {ar(4*f,4)}, v{V_L16}, {SRD}, s{S_T1} offen offset:{(f%4)*1024} sc1', ('Q', f)))
    def bg_dma(tag, *args, **kw):
        for pre, op in dma_ops(*args, **kw):
            if pre: bg.append(pre); bg.append('s_nop 0')
            bg.append((op, tag))
    bgc = [0]
    def bgone():
        while bg:
            o = bg.pop(0)
            if isinstance(o, tuple):
                emit(*o); return
            a(o)
    def c(o, every=bg_pace):
        a(o); bgc[0] += 1
        if bgc[0] % every == 0: bgone()
    for _ in range(4): bgone()
    defer = o2.get('defer', 0)
    for idx in range(8 - defer, 8):
        base = UACC[idx >> 2] + 8 * (idx & 3); Z = 64
        for i in range(4): c(f'v_pk_mul_f32 {vr(Z+2*i,2)}, {vr(base+2*i,2)}, {vr(base+2*i,2)}')
        for i in range(4): c(f'v_pk_fma_f32 {vr(Z+2*i,2)}, {vr(Z+2*i,2)}, v[8:9], v[8:9] op_sel:[0,1,0] op_sel_hi:[1,1,0]')
        for i in range(4): c(f'v_pk_mul_f32 {vr(Z+2*i,2)}, {vr(Z+2*i,2)}, {vr(base+2*i,2)}')
        for i in range(8): c(f'v_exp_f32 v{Z+i}, v{Z+i}')
        for i in range(4): c(f'v_pk_add_f32 {vr(Z+2*i,2)}, {vr(Z+2*i,2)}, 1.0 op_sel_hi:[1,0]')
        for i in range(8): c(f'v_rcp_f32 v{Z+i}, v{Z+i}')
        for i in range(4): c(f'v_pk_mul_f32 {vr(base+2*i,2)}, {vr(base+2*i,2)}, {vr(Z+2*i,2)}')
    SC = 56
    a(f's_waitcnt vmcnt({vm.need("st")})')
    R = [(STL[r][0] + i, STL[r][1] + i) for r in range(3) for i in range(4)]
    TM = 32
    for x, y in R: c(f'v_add_f32 v{x}, v{x}, v{y}')
    xreduce([x for x, y in R], 'v_add_f32', TM)
    a('s_nop 0')
    for x, y in R: c(f'v_mov_b32_dpp v{y}, v{x} row_ror:8 row_mask:0xf bank_mask:0xf')
    for x, y in R: c(f'v_mul_f32 v{x}, {f2h(1/512)}, v{x}')
    for i, (x, y) in enumerate(R): c(f'v_mul_f32 v{TM+i}, v{x}, v{x}')
    for i, (x, y) in enumerate(R): c(f'v_fma_f32 v{y}, v{y}, s{S_PFS}, -v{TM+i}')
    for x, y in R: c(f'v_max_f32 v{y}, 0, v{y}')
    for x, y in R: c(f'v_add_f32 v{y}, {f2h(1e-5)}, v{y}')
    for x, y in R: c(f'v_rsq_f32 v{y}, v{y}')
    for i, (x, y) in enumerate(R): c(f'v_mul_f32 v{y}, s{S_VF[i>>2]}, v{y}')
    for x, y in R: c(f'v_mul_f32 v{x}, -v{x}, v{y}')
    a('s_mov_b64 exec, 0xff')
    for r in range(3):
        a(f's_lshl_b32 s{S_T0}, s{S_B10[r]}, 8')
        a(f's_add_u32 s{S_T0}, s{S_T0}, {TB}')
        a(f'v_add_u32 v{V_T0}, s{S_T0}, v{V_L16}')
        a(f'ds_write_b128 v{V_T0}, {vr(STL[r][1],4)}')
        a(f'ds_write_b128 v{V_T0}, {vr(STL[r][0],4)} offset:128')
    a('s_mov_b64 exec, -1')
    A_NW, A_TR, A_HW, A_HT, A_BR, A_CW, A_CR = 5, 6, 8, 9, 11, 12, 15
    a(f'v_and_b32 v{V_T0}, 15, v0')
    a(f'v_lshrrev_b32 v{V_T1}, 4, v0')
    a(f'v_mul_u32_u24 v{A_HW}, {GS}, v{V_T0}')
    a(f'v_lshl_add_u32 v{A_HW}, v{V_T1}, 3, v{A_HW}')
    a(f's_lshl_b32 s{S_T0}, s{S_W}, 7')
    a(f's_add_u32 s{S_T0}, s{S_T0}, {GN}')
    a(f'v_add_u32 v{A_NW}, s{S_T0}, v{A_HW}')
    a(f's_lshr_b32 s{S_T2}, s{S_W}, 1')
    a(f's_mul_i32 s{S_T2}, s{S_T2}, {32*GS}')
    a(f's_mul_i32 s{S_T3}, s{S_PH}, {68*8}')
    a(f's_add_u32 s{S_T2}, s{S_T2}, s{S_T3}')
    a(f's_add_u32 s{S_T2}, s{S_T2}, {GN}')
    a(f'v_add_u32 v{A_HW}, s{S_T2}, v{A_HW}')
    a(f'v_lshlrev_b32 v{A_HT}, 4, v{V_T1}')
    a(f's_lshl_b32 s{S_T2}, s{S_W}, 9')
    a(f's_add_u32 s{S_T2}, s{S_T2}, {TB + 256}')
    a(f'v_add_u32 v{A_TR}, s{S_T2}, v{A_HT}')
    a(f's_mul_i32 s{S_T2}, s{S_PH}, {9*256 - 64}')
    a(f's_add_u32 s{S_T2}, s{S_T2}, {TB + 64}')
    a(f'v_add_u32 v{A_HT}, s{S_T2}, v{A_HT}')
    a(f'v_lshrrev_b32 v{A_CW}, 2, v0')
    a(f'v_and_b32 v{V_T0}, 3, v0')
    a(f'v_mul_u32_u24 v{A_BR}, {GS}, v{A_CW}')
    a(f'v_lshl_add_u32 v{A_BR}, v{V_T0}, 5, v{A_BR}')
    a(f'v_add_u32 v{A_BR}, s{S_T0}, v{A_BR}')
    a(f'v_and_b32 v{A_CW}, 3, v{A_CW}')
    a(f'v_lshl_add_u32 v{A_CW}, v{V_T1}, 3, v{A_CW}')
    a(f'v_mul_u32_u24 v{A_CW}, {CS}, v{A_CW}')
    a(f's_mul_i32 s{S_T2}, s{S_W}, {32*CS}')
    a(f's_add_u32 s{S_T2}, s{S_T2}, {CV}')
    a(f'v_add_u32 v{A_CW}, s{S_T2}, v{A_CW}')
    a(f'v_lshl_add_u32 v{A_CR}, v{V_T0}, 3, v{A_CW}')
    a(f'v_lshl_add_u32 v{A_CW}, v{V_T0}, 5, v{A_CW}')
    a('s_waitcnt lgkmcnt(0)')
    a('s_barrier')
    st(12)
    bg += [f's_add_u32 s{S_KOFF}, s{S_KOFF}, {TILE}', f's_add_u32 s{S_KDMA}, s{S_KDMA}, {TILE}']
    bg_dma('K1', V_DK0, V_DK1, S_KOFF, S_KDMA)
    bg += [f's_add_u32 s{S_KOFF}, s{S_KOFF}, {TILE}']
    lq = LdsQ()
    a(f'v_add_u32 v{V_T0}, {CV}, v{V_L16}')
    twr = [f'ds_read_b128 {vr(AT[i//10][i%10],4)}, v{V_T0} offset:{i*1024}' for i in range(20)]
    units = [('h',)] + [(rb, hf) for rb in range(2) for hf in range(2)]
    def tread(n):
        t = 112 + 8 * (n % 2); u = units[n]
        ad, off = (A_HT, 0) if u[0] == 'h' else (A_TR, u[0] * 256 + u[1] * 64)
        a(f'ds_read_b128 {vr(t,4)}, v{ad} offset:{off}'); lq.issue(('t', n))
        a(f'ds_read_b128 {vr(t+4,4)}, v{ad} offset:{off + 128}'); lq.issue(('t', n))
    tread(0)
    for n, u in enumerate(units):
        if n + 1 < len(units): tread(n + 1)
        t = 112 + 8 * (n % 2)
        a(f's_waitcnt lgkmcnt({lq.need(("t", n))})')
        for _ in range(4): a(twr.pop(0)); lq.issue('tw')
        for T in range(1 if u[0] == 'h' else 2):
            src = lambda ch: (V_HD + 2 * ch) if u[0] == 'h' else gfrag(T, u[0], ch) + 2 * u[1]
            for ch in range(2):
                for i in range(2):
                    c(f'v_lshlrev_b32 v{SC+4*ch+2*i}, 16, v{src(ch)+i}')
                    c(f'v_and_b32 v{SC+4*ch+2*i+1}, 0xffff0000, v{src(ch)+i}')
            for ch in range(2):
                for i in range(2): c(f'v_pk_fma_f32 {vr(SC+4*ch+2*i,2)}, {vr(SC+4*ch+2*i,2)}, {vr(t+2*i,2)}, {vr(t+4+2*i,2)}')
            for ch in range(2):
                for i in range(2): c(f'v_cvt_pk_bf16_f32 v{src(ch)+i}, v{SC+4*ch+2*i}, v{SC+4*ch+2*i+1}')
                if u[0] == 'h': a(f'ds_write_b64 v{A_HW}, {vr(src(ch),2)} offset:{ch*16*GS}')
                else: a(f'ds_write_b64 v{A_NW}, {vr(src(ch),2)} offset:{(32*T + 16*ch)*GS + (4 + 8*u[0] + 4*u[1])*8}')
                lq.issue('w')
    a(f's_waitcnt vmcnt({vm.need(("st", "v"))}) lgkmcnt(0)')
    a('s_barrier')
    flagf(3)
    st(13)
    BR = [32, 96]
    def acc(aa): return (56 + 4 * aa) if aa < 2 else (120 + 4 * (aa - 2))
    def bread(gi):
        for e in range(12):
            a(f'ds_read_b64 {vr(BR[gi&1]+2*e,2)}, v{A_BR} offset:{gi*16*GS + e*8}'); lq.issue(('b', gi, e))
    bread(0)
    CF = 160; PKc = 176
    def mult(T):
        for fr in range(4):
            rb, rh = fr >> 1, fr & 1
            cc = CF + 4 * fr; u = UACC[T] + 16 * rb + 8 * rh; ub = 64 + 8 * (fr & 1)
            a(f's_waitcnt lgkmcnt({min(15, lq.need(("tr", T, fr)))})')
            for i in range(4):
                c(f'v_lshlrev_b32 v{ub+2*i}, 16, v{cc+i}')
                c(f'v_and_b32 v{ub+2*i+1}, 0xffff0000, v{cc+i}')
            for i in range(4): c(f'v_pk_mul_f32 {vr(ub+2*i,2)}, {vr(ub+2*i,2)}, {vr(u+2*i,2)}')
            for i in range(4): c(f'v_cvt_pk_bf16_f32 v{u+i}, v{ub+2*i}, v{ub+2*i+1}')
            ucst.append(f'buffer_store_dwordx4 {vr(u,4)}, v{3+rb}, {SRD}, s{58+rb} offen offset:{T*2048 + rh*1024} sc1')
    for gi in range(4):
        T, ch = gi >> 1, gi & 1
        if gi < 3: bread(gi + 1)
        for dl in range(9):
            if dl % 3 == 0: a(f's_waitcnt lgkmcnt({min(15, lq.need(("b", gi, dl + 5)))})')
            ar_ = AT[T][5 * ch + dl // 2] + 2 * (dl & 1)
            for aa in range(4):
                d = vr(acc(aa), 4)
                c(f'v_mfma_f32_4x4x4_16b_bf16 {d}, {vr(ar_,2)}, {vr(BR[gi&1]+2*(aa+dl),2)}, {d if dl else 0}', bg_pace // 2)
        a('s_nop 4')
        for p in range(2):
            pk = PKc if p == 0 else 184
            for k in range(2):
                b = acc(2 * p + k)
                c(f'v_cvt_pk_bf16_f32 v{pk+2*k}, v{b}, v{b+1}')
                c(f'v_cvt_pk_bf16_f32 v{pk+2*k+1}, v{b+2}, v{b+3}')
            a(f'ds_write_b128 v{A_CW}, {vr(pk,4)} offset:{ch*4*CS + 16*p}'); lq.issue('cw')
        if gi == 2: mult(0)
        if ch == 1:
            for fr in range(4):
                for jj in range(2):
                    a(f'ds_read_b64_tr_b16 {vr(CF+4*fr+2*jj,2)}, v{A_CR} offset:{jj*4*CS + fr*32}'); lq.issue(('tr', T, fr))
    while bg: bgone()
    a(f's_sub_u32 s{S_T0}, s{S_VOFF}, {WS_VT}')
    a(f's_lshr_b32 s{S_T0}, s{S_T0}, 15')
    a(f's_sub_u32 s{S_T0}, s{S_T0}, s{S_B125}')
    a(f's_add_u32 s{S_T2}, s{S_T0}, s{S_CNT}')
    a(f's_add_u32 s{S_T2}, s{S_T2}, 1')
    a(f's_lshr_b32 s{S_T0}, s{S_T0}, 3')
    a(f's_lshr_b32 s{S_T2}, s{S_T2}, 3')
    a(f'v_lshrrev_b32 v{A_NW}, 3, v0')
    a(f'v_add_u32 v{A_NW}, s{S_T0}, v{A_NW}')
    a(f'v_min_u32 v{A_NW}, s{S_T2}, v{A_NW}')
    a(f'v_and_b32 v{V_T0}, 7, v0')
    a(f'v_lshl_add_u32 v{A_NW}, v{A_NW}, 3, v{V_T0}')
    a(f'v_lshlrev_b32 v{V_XO}, 7, v{A_NW}')
    a(f's_and_b32 s{S_T3}, s{S_GRP}, 32')
    a(f's_lshl_b32 s{S_T3}, s{S_T3}, 9')
    a(f's_add_u32 s{S_T3}, s{S_T3}, {ZF + 3 * ZK}')
    mult(1)
    emit(f'buffer_load_dword v{V_PFD}, v{V_XO}, {SRD}, s{S_T3} offen sc1', 'pollv')
    for op in ucst: emit(op, 'ucs')
    a(f'v_mov_b32 v127, v10')
    a(f's_add_u32 s{S_T1}, s{S_W}, s{S_SPLIT}')
    a(f's_and_b32 s{S_T1}, s{S_T1}, 3')
    a(f's_lshl_b32 s{S_T1}, s{S_T1}, 13')
    a(f'v_add_u32 v{V_DV0}, s{S_T1}, v{V_L16}')
    a(f'v_add_u32 v{V_DV1}, 4096, v{V_DV0}')
    a(f's_mov_b32 s{S_KDMA}, s{S_W8K}')
    a(f's_mov_b32 s{S_VRD}, {2*TILE}')
    st(1)
    if prefetch:
        a(f's_add_u32 s{S_PFOFF}, s{S_PFOFF}, s{S_W}')
        a(f's_and_b32 s{S_T1}, s{S_PFOFF}, 15')
        a(f's_lshl_b32 s{S_T1}, s{S_T1}, 11')
        a(f's_cmp_ge_u32 s{S_PFOFF}, 16')
        a(f's_cselect_b32 s{S_PFOFF}, {WS_VT - WS_XA - TILE}, 0')
        a(f's_add_u32 s{S_T1}, s{S_T1}, s{S_PFOFF}')
        a(f's_add_u32 s{S_T1}, s{S_T1}, {prefetch * TILE}')
        a(f'v_lshlrev_b32 v{V_PF}, 5, v0')
        a(f'v_add_u32 v{V_PF}, s{S_T1}, v{V_PF}')
    a(f'v_mov_b32 v{V_KA}, v{V_L16}')
    a(f'v_add_u32 v{V_VA}, s{S_VRD}, v{V_L16}')
    a(f'v_mov_b32 v{V_L0}, 0')
    a(f'v_mov_b32 v{V_L1}, 0')
    nround = -(-64 // NR)
    sizes = [64 // nround + (1 if i < 64 % nround else 0) for i in range(nround)]
    slotmap = [i for sz in sizes for i in range(sz)]
    assert LA + 1 <= min(sizes) and max(sizes) <= NR and V_RING + 4 * NR <= V_PF
    def slot(f): return V_RING + 4 * slotmap[f % 64]
    def rd(f):
        if f < 32 and chain: return f'ds_read_b128 {vr(slot(f),4)}, v{V_KA} offset:{((f & 15)*2 + (f >> 4))*1024}'
        if f < 32: return f'ds_read_b128 {vr(slot(f),4)}, v{V_KA} offset:{f*1024}'
        return f'ds_read_b128 {vr(slot(f),4)}, v{V_VA} offset:{(f-32)*1024}'
    def Sreg(kh, qh): return V_S + (kh * 2 + qh) * 4
    def mfmas(f, zero_c=False, first=False):
        order = (1, 0) if (snake and (f & 1)) else (0, 1)
        out = []
        if chain and f < 32:
            kh = f >> 4; s0 = f & 14; qh = (f & 1) ^ ((f >> 1) & 1); fb = f & ~1
            for k in range(2):
                s = s0 + k
                c = vr(Sreg(kh, qh), 4) if s else ('0' if zero_c else vr(V_NEGM + 4 * qh, 4))
                out.append(f'v_mfma_f32_16x16x32_bf16 {vr(Sreg(kh,qh),4)}, {vr(slot(fb+k),4)}, {ar((s*2+qh)*4,4)}, {c}')
            return out
        for qh in order:
            if f < 32:
                s, kh = f >> 1, f & 1
                c = vr(Sreg(kh, qh), 4) if s else ('0' if zero_c else vr(V_NEGM + 4 * qh, 4))
                out.append(f'v_mfma_f32_16x16x32_bf16 {vr(Sreg(kh,qh),4)}, {vr(slot(f),4)}, {ar((s*2+qh)*4,4)}, {c}')
            else:
                b = f - 32
                out.append(f'v_mfma_f32_16x16x32_bf16 {Oreg(b,qh)}, {vr(slot(f),4)}, {vr(V_P+4*qh,4)}, {0 if first else Oreg(b,qh)}')
        return out
    q = LdsQ()
    zero = []
    for f in range(LA):
        a(rd(f)); q.issue(f)
    a(f's_waitcnt vmcnt({vm.need(("Q", 31))})')
    v0ops = []
    for f in range(32):
        a(f's_waitcnt lgkmcnt({q.need(f | 1)})')
        for m in mfmas(f, zero_c=True):
            a(m)
        if f + LA < 32:
            a(rd(f + LA)); q.issue(f + LA)
        if f == vchk:
            chk('fv', V_PFD, V_XO, S_T3, 'pollv')
            a(f's_add_u32 s{S_VDMA}, s{S_W8K}, {2*TILE}')
            v0ops = dma_ops(V_DV0, V_DV1, S_VOFF, S_VDMA)
        if v0ops:
            pre, op = v0ops.pop(0)
            if pre: a(pre); a('s_nop 0')
            emit(op, 'V0')
    for pre, op in v0ops:
        if pre: a(pre); a('s_nop 0')
        emit(op, 'V0')
    a(f's_add_u32 s{S_VOFF}, s{S_VOFF}, {TILE}')
    a(f's_add_u32 s{S_VDMA}, s{S_VDMA}, {TILE}')
    a('s_nop 5')
    def max_all():
        ops = [f'v_max3_f32 v{V_MX}, v{V_S}, v{V_S+1}, v{V_S+2}']
        for i in range(6): ops.append(f'v_max3_f32 v{V_MX}, v{V_MX}, v{V_S+3+2*i}, v{V_S+4+2*i}')
        ops.append(f'v_max_f32 v{V_MX}, v{V_MX}, v{V_S+15}')
        return ops
    def rowmax2(d0, d1, tmp):
        for qh, dst in ((0, d0), (1, d1)):
            r0, r1 = Sreg(0, qh), Sreg(1, qh)
            a(f'v_max3_f32 v{dst}, v{r0}, v{r0+1}, v{r0+2}')
            a(f'v_max3_f32 v{dst}, v{dst}, v{r0+3}, v{r1}')
            a(f'v_max3_f32 v{dst}, v{dst}, v{r1+1}, v{r1+2}')
            a(f'v_max_f32 v{dst}, v{dst}, v{r1+3}')
        xreduce([d0, d1], 'v_max_f32', tmp)
    exp_ops = [f'v_exp_f32 v{V_E+i}, v{V_S+i}' for i in range(16)]
    sum_ops = [f'v_add_f32 v{V_L1 if (i >> 2) & 1 else V_L0}, v{V_L1 if (i >> 2) & 1 else V_L0}, v{V_E+i}' for i in range(16)]
    cvt_ops = []
    for qh in range(2):
        for kh in range(2):
            e = V_E + (kh * 2 + qh) * 4
            for i in range(2):
                cvt_ops.append(f'v_cvt_pk_bf16_f32 v{V_P+4*qh+2*kh+i}, v{e+2*i}, v{e+2*i+1}')
    rowmax2(V_F0, V_F1, 120)
    for qh, dst in ((0, V_F0), (1, V_F1)):
        for kh in range(2):
            for i in range(4): a(f'v_sub_f32 v{Sreg(kh,qh)+i}, v{Sreg(kh,qh)+i}, v{dst}')
        for i in range(4): a(f'v_sub_f32 v{V_NEGM+4*qh+i}, 0, v{dst}')
    for o in exp_ops: a(o)
    for o in zero: a(o)
    a(f'v_xor_b32 v{V_KA}, 0x8000, v{V_KA}')
    a(f's_lshl2_add_u32 s{S_FLO}, s{S_GRP}, s{S_W}')
    a(f's_lshl_b32 s{S_FLO}, s{S_FLO}, 9')
    a(f's_add_u32 s{S_FLO}, s{S_FLO}, {ZF_PART}')
    a(f'v_and_b32 v{V_FL}, 3, v0')
    a(f'v_lshlrev_b32 v{V_FL}, 7, v{V_FL}')
    a(f's_lshl_b32 s{S_T2}, s72, 7')
    a(f's_add_u32 s{S_T2}, s{S_T2}, {ZF + 4 * ZK}')
    a(f'v_mov_b32 v126, s{S_TAG}')
    a(f's_waitcnt vmcnt({vm.need("K1")})')
    a('s_barrier')
    st(2); st(8, True)
    if stamp: a('s_waitcnt lgkmcnt(0)')
    q = LdsQ()
    for f in range(LA):
        a(rd(f)); q.issue(f)

    L_loop = f'{name}_loop'
    rare = []
    border = list(range(8, 32)) + list(range(8))
    YB = 192
    stream = [('pv', b) for b in border] + [('yc', T, f) for T in range(4) for f in range(32)]
    NS = len(stream)
    WA = [V_VA, V_DV0, V_DV1, V_PF]
    def srd_(i):
        it = stream[i]
        if it[0] == 'pv': return f'ds_read_b128 {vr(slot(i),4)}, v{V_KA} offset:{it[1]*1024}'
        if chain and it[1]: return f'ds_read_b128 {vr(slot(i),4)}, v{WA[it[1]]} offset:{((it[2] & 15)*2 + (it[2] >> 4))*1024}'
        return f'ds_read_b128 {vr(slot(i),4)}, v{WA[it[1]]} offset:{it[2]*1024}'
    def ucload(f):
        ops = []
        if f % 4 == 0 and f: ops.append(f's_add_u32 s{S_UCO}, s{S_UCO}, 4096')
        ops.append((f'buffer_load_dwordx4 {ar(4*f,4)}, v{V_L16}, {SRD}, s{S_UCO} offen offset:{(f%4)*1024} sc1', ('uc', f)))
        return ops
    stubs = []
    class Dual:
        def __init__(self, op, tag, fast): self.op, self.tag, self.fast = op, tag, fast
    def em(o):
        if isinstance(o, Dual) and force_slow:
            emit(f'{o.op} sc1', o.tag); return
        if isinstance(o, Dual):
            lab = a.label(name + '_ds')
            a(f's_cbranch_vccnz {lab}')
            emit(f'{o.op} {o.fast}', o.tag)
            a(f'{lab}b:')
            stubs.append((lab, o.op))
            return
        if callable(o): o = o()
        if noyc and isinstance(o, tuple) and ((o[1] == 'x' and 'x' in noyc) or (isinstance(o[1], tuple) and o[1][0] in ('uc', 'wc') and o[1][0] in noyc)):
            vm.last[o[1]] = vm.last.get('dL', 0); return
        if isinstance(o, tuple): emit(*o)
        else: emit(o)
    nuc = [0]
    def body(last, first=False):
        tag = 'L' if last else ('F' if first else 'M')
        L_r1, L_r1b, L_r2, L_r2b = [f'{name}_{x}{tag}' for x in ('r1', 'r1b', 'r2', 'r2b')]
        rare.append((L_r1, L_r1b, L_r2, L_r2b))
        fill = [[] for _ in range(128)]
        cap = [CAP - 1 if p % 2 == 0 else CAP for p in range(128)]
        for p in range(128):
            if p % 2 == 1 and ((p + 1) // 2) % wait_every == 0: cap[p] -= 1
        cap[127] -= 3
        def put(pos, ops, cost):
            if not isinstance(ops, list): ops = [ops]
            while cap[pos] < cost: pos += 1
            cap[pos] -= cost
            fill[pos] += ops
            return pos
        if not last: bw = f's_waitcnt vmcnt({1 if prefetch else 0})'
        else: bw = lambda: f's_waitcnt vmcnt({vm.need("dL")})'
        pb = put(2 * bar_pos + 1, [bw] + ([] if 'nobar' in dbg and not last else ['s_barrier']), 2)
        assert pb < 2 * (64 - LA)
        if first:
            pf_ = put(2 * (32 - LA) - 5, [lambda: f's_waitcnt vmcnt({vm.need("V0")})', 's_barrier',
                                          f'buffer_store_dword v126, v127, {SRD}, s{S_T2} offen sc1'], 2)
            assert pf_ < 2 * (32 - LA)
        dk, dv = dma_ops(V_DK0, V_DK1, S_WCO if last else S_KOFF, S_KDMA), dma_ops(V_DV0, V_DV1, S_VOFF, S_VDMA)
        dm = dv + dk if last else dk + dv
        p = 0
        if last and not tailpf:
            p = put(p, (f'buffer_load_dword v{V_PFD}, v{V_FL}, {SRD}, s{S_FLO} offen sc1', 'poll'), dma_cost) + 1
            for c in range(npf, 3 if pfill else 0):
                p = put(p, f'buffer_load_dword v{V_T0}, v{V_PF}, {SRD}, s{S_PFS} offen', dma_cost) + 1
                p = put(p, f's_add_u32 s{S_PFS}, s{S_PFS}, 8192', 1) + 1
            if pfill: p = put(p, f'buffer_load_dword v{V_T0}, v{V_L16}, {SRD}, s{S_PFS} offen', dma_cost) + 1
        for pre, op in dm:
            if pre: p = put(p, pre, 1) + 1
            p = put(p, (op, 'dL'), dma_cost) + dma_gap
        if prefetch and not last:
            p = put(p, f'buffer_load_dword v{V_PFD}, v{V_PF}, s[96:99], s{S_PFS} offen {pf_flags}', dma_cost) + 1
        pdma = p
        assert pdma <= pb
        if last and not tailpf:
            p = put(56, [lambda: f's_waitcnt vmcnt({vm.need("poll")})', f'v_cmp_ne_u32 s[{S_T3}:{S_T3+1}], s{S_TAG}, v{V_PFD}'], 2) + 2
            p = put(p, [f's_cmp_eq_u64 s[{S_T3}:{S_T3+1}], 0', f's_cbranch_scc0 {name}_cfslow', f'{name}_cfok:'], 2) + 1
            p = put(p, f'v_cmp_ne_u32 s[{S_SLOW}:{S_SLOW+1}], s{S_XCC}, v{V_PFD}', 1) + 1
            assert p <= pdma + 4
        p = 68
        for o in max_all(): p = put(p, o, 1)
        p = put(p, f'v_cmp_lt_f32 vcc, {hex(THR)}, v{V_MX}', 1) + 1
        p = put(p + brgap, ([] if 'nobr1' in dbg else [f's_cbranch_vccnz {L_r1}']) + [f'{L_r1b}:'], 1) + 1
        for i, o in enumerate(exp_ops):
            if 'noexp' not in dbg: p = put(p, o, 2)
        p = 0
        for o in cvt_ops: p = put(p, o, 1)
        for o in sum_ops: p = put(p, o, 1)
        assert p < 60
        upd = [f's_add_u32 s{S_KOFF}, s{S_KOFF}, {TILE}', f's_add_u32 s{S_PFS}, s{S_PFS}, s{S_PFST}',
               f's_add_u32 s{S_VOFF}, s{S_VOFF}, {TILE}',
               f's_xor_b32 s{S_KDMA}, s{S_KDMA}, {TILE}',
               f's_add_u32 s{S_VDMA}, s{S_VDMA}, {TILE}',
               f's_cmp_ge_u32 s{S_VDMA}, {5*TILE}', f's_cselect_b32 s{S_T1}, {3*TILE}, 0',
               f's_sub_u32 s{S_VDMA}, s{S_VDMA}, s{S_T1}',
               f's_add_u32 s{S_VRD}, s{S_VRD}, {TILE}',
               f's_cmp_ge_u32 s{S_VRD}, {5*TILE}', f's_cselect_b32 s{S_VRD}, {2*TILE}, s{S_VRD}',
               f's_sub_u32 s{S_CNT}, s{S_CNT}, 1']
        if not last:
            p = pdma
            for o in upd: p = put(p, o, 1)
            put(2 * (32 - LA) + 1, f'v_xor_b32 v{V_KA}, 0x8000, v{V_KA}', 1)
            put(max(p + 1, 2 * (64 - LA) + 1), f'v_add_u32 v{V_VA}, s{S_VRD}, v{V_L16}', 1)
        else:
            p = 2 * (32 - LA) + 1
            for o in [f's_sub_u32 s{S_KOFF}, s{S_VDMA}, s{S_W8K}', f'v_add_u32 v{V_KA}, s{S_KOFF}, v{V_L16}',
                      f's_sub_u32 s{S_WB0}, s{S_KDMA}, s{S_W8K}', f's_xor_b32 s{S_WB1}, s{S_WB0}, {TILE}', f's_mov_b32 s{S_WB3}, s{S_VRD}',
                      f's_add_u32 s{S_WB2}, s{S_WB3}, s{S_KOFF}', f's_sub_u32 s{S_WB2}, {9*TILE}, s{S_WB2}']:
                p = put(p, o, 1) + 1
            p = max(pdma, 66)
            while p < 127 and nuc[0] < 32:
                fill[p] += ucload(nuc[0]); nuc[0] += 1
                p += uc_pace
        for f in range(64):
            if f % wait_every == 0:
                a(f's_waitcnt lgkmcnt({q.need(min(f + wait_every - 1, 63))})')
            mm = mfmas(f, first=first)
            a(mm[0])
            nf = f + LA
            if nf < 64 or not last:
                a(rd(nf % 64)); q.issue(nf % 64)
            else:
                a(srd_(nf - 64)); q.issue(('s', nf - 64))
            for o in fill[2 * f]: em(o)
            a(mm[1])
            for o in fill[2 * f + 1]: em(o)
        if 'nobr2' not in dbg: a(f's_cbranch_vccnz {L_r2}')
        a(f'{L_r2b}:')
    a(f's_lshl_b32 s{S_WCO}, s{S_SPLIT}, 17')
    a(f's_add_u32 s{S_WCO}, s{S_WCO}, {WS_WC}')
    a(f's_lshl_b32 s{S_UCO}, s{S_QB}, 15')
    a(f's_add_u32 s{S_UCO}, s{S_UCO}, {WS_UC}')
    a(f's_mov_b32 s{S_PFS}, s{S_KOFF}')
    a(f's_mov_b32 s{S_PFST}, {TILE}')
    a(f's_mov_b32 s{S_PH}, 0')
    NPH = 4 if tailpf else 0
    a(f's_sub_u32 s{S_CNT}, s{S_CNT}, {NPH}')
    make_srd(a, 96, S_WS, 0, WS_SIZE)
    a(f's_lshl_b32 s{S_PB}, s{S_GRP}, 2')
    a(f's_add_u32 s{S_PB}, s{S_PB}, s{S_SPLIT}')
    a(f's_lshl_b32 s{S_PB}, s{S_PB}, 2')
    a(f's_add_u32 s{S_PB}, s{S_PB}, s{S_W}')
    a(f's_lshl_b32 s{S_PB}, s{S_PB}, 15')
    a(f's_add_u32 s{S_PB}, s{S_PB}, {WS_PART}')
    body(False, first=True)
    a('.p2align 6')
    a(f'{L_loop}:')
    body(False)
    a(f's_cmp_lg_u32 s{S_CNT}, 0')
    a(f's_cbranch_scc1 {L_loop}')
    if tailpf:
        a(f's_add_u32 s{S_PH}, s{S_PH}, 1')
        a(f's_mov_b32 s{S_CNT}, 1')
        a(f's_cmp_eq_u32 s{S_PH}, 5\n s_cbranch_scc1 {name}_ph5')
        a(f's_cmp_eq_u32 s{S_PH}, 4\n s_cbranch_scc1 {name}_ph4')
        a(f's_cmp_eq_u32 s{S_PH}, 3\n s_cbranch_scc1 {name}_ph3')
        a(f's_cmp_eq_u32 s{S_PH}, 2\n s_cbranch_scc1 {name}_ph2')
        a(f's_mov_b32 s96, s{S_X}\n s_mov_b32 s97, s{S_X+1}\n s_mov_b32 s98, 8192000')
        a(f'v_lshrrev_b32 v{V_PF}, 1, v0')
        a(f'v_lshlrev_b32 v{V_PF}, 10, v{V_PF}')
        a(f'v_and_b32 v{V_T0}, 1, v0')
        a(f'v_lshl_add_u32 v{V_PF}, v{V_T0}, 7, v{V_PF}')
        a(f's_lshl_b32 s{S_PFS}, s{S_QB}, 15')
        a(f's_lshl_b32 s{S_T1}, s{S_SPLIT}, 8')
        a(f's_add_u32 s{S_PFS}, s{S_PFS}, s{S_T1}')
        a(f's_branch {L_loop}')
        a(f'{name}_ph2:')
        a(f's_mov_b32 s96, s{S_WS}\n s_mov_b32 s97, s{S_WS+1}\n s_mov_b32 s98, {WS_SIZE}')
        a(f'v_and_b32 v{V_XO}, 7, v0')
        a(f'v_lshlrev_b32 v{V_XO}, 7, v{V_XO}')
        a(f'v_mov_b32 v{V_PF}, v{V_XO}')
        a(f's_add_u32 s{S_SLOW}, s{S_SLOW}, {2 * ZK}')
        a(f's_mov_b32 s{S_PFS}, s{S_SLOW}')
        a(f's_branch {L_loop}')
        a(f'{name}_ph3:')
        a('s_waitcnt vmcnt(0)')
        a(f'v_cmp_ne_u32 s[{S_T3}:{S_T3+1}], s{S_TAG}, v{V_PFD}')
        a(f'v_lshlrev_b32 v{V_PF}, 7, v0')
        a(f's_lshl_b32 s{S_PFS}, s{S_SPLIT}, 13')
        a(f's_add_u32 s{S_PFS}, s{S_PFS}, s{S_UCO}')
        a('s_nop 1')
        a(f's_cmp_eq_u64 s[{S_T3}:{S_T3+1}], 0')
        a(f's_cbranch_scc0 {name}_cfslow')
        a(f'{name}_cfok:')
        a(f's_branch {L_loop}')
        a(f'{name}_ph4:')
        a(f'v_lshlrev_b32 v{V_PF}, 6, v0')
        a(f's_and_b32 s{S_PFS}, s{S_TILE}, 7')
        a(f's_lshl_b32 s{S_PFS}, s{S_PFS}, 2')
        a(f's_add_u32 s{S_PFS}, s{S_PFS}, s{S_W}')
        a(f's_lshl_b32 s{S_PFS}, s{S_PFS}, 12')
        a(f's_add_u32 s{S_PFS}, s{S_PFS}, s{S_WCO}')
        a(f's_branch {L_loop}')
        a(f'{name}_ph5:')
    st(3); st(9, True)
    if stamp: a('s_waitcnt lgkmcnt(0)')
    body(True)
    st(15)
    if stamp: a('s_waitcnt lgkmcnt(0)')
    def smf(i):
        it = stream[i]; out = []
        if chain and it[0] == 'yc' and it[1]:
            T, f = it[1], it[2]; ch = f >> 4; qh = (f & 1) ^ ((f >> 1) & 1)
            d = vr(YB + 8 * (2 * T + ch) + 4 * qh, 4)
            for k in range(2):
                s = (f & 14) + k
                out.append(f'v_mfma_f32_16x16x32_bf16 {d}, {vr(slot((i & ~1) + k),4)}, {ar((s*2+qh)*4,4)}, {d if s else 0}')
            return out
        for qh in ((1, 0) if (snake and (i & 1)) else (0, 1)):
            if it[0] == 'pv':
                out.append(f'v_mfma_f32_16x16x32_bf16 {Oreg(it[1],qh)}, {vr(slot(i),4)}, {vr(V_P+4*qh,4)}, {Oreg(it[1],qh)}')
            else:
                T, f = it[1], it[2]; s, ch = f >> 1, f & 1
                d = vr(YB + 8 * (2 * T + ch) + 4 * qh, 4)
                out.append(f'v_mfma_f32_16x16x32_bf16 {d}, {vr(slot(i),4)}, {ar((s*2+qh)*4,4)}, {d if s else 0}')
        return out
    a(f's_mov_b64 vcc, s[{S_SLOW}:{S_SLOW+1}]' if not force_slow else 's_mov_b64 vcc, -1')
    for o in cvt_ops: a(o)
    a(f's_lshl_b32 s{S_T0}, s{S_GRP}, 2')
    a(f'v_add_u32 v{WA[0]}, s{S_WB0}, v{V_L16}')
    pend = [(0, o, 1) for o in sum_ops]
    for i, sb in enumerate((S_WB1, S_WB2, S_WB3)): pend.append((0, f'v_add_u32 v{WA[i+1]}, s{sb}, v{V_L16}', 1))
    rot = 0
    for qd in range(1, 4):
        hdr = [f's_add_u32 s{S_PO}, s{S_PB}, {(qd-1)*8192}']
        for gm in range(4):
            for qh in range(2):
                b0 = 8 * qd + 2 * gm
                ready = 2 * (border.index(b0 + 1) + 1) + 6
                idx = gm * 2 + qh
                if idx == 0:
                    for h in hdr: pend.append((0, h, 1))
                if idx == 4: pend.append((ready, f's_add_u32 s{S_PO}, s{S_PO}, 4096', 1))
                tb = V_S + 8 * (rot % 2); pk = V_E + 4 * (rot % 4); rot += 1
                srcs = []
                for b in range(2):
                    for r in range(4):
                        o = Obase(b0 + b, qh) + r
                        if qd == 1: srcs.append(o)
                        else:
                            pend.append((ready, f'v_accvgpr_read_b32 v{tb+4*b+r}, a{o}', 1)); srcs.append(tb + 4 * b + r)
                for r in range(4): pend.append((ready, f'v_cvt_pk_bf16_f32 v{pk+r}, v{srcs[2*r]}, v{srcs[2*r+1]}', 1))
                pend.append((ready, Dual(f'buffer_store_dwordx4 {vr(pk,4)}, v{V_L16}, {SRD}, s{S_PO} offen offset:{(idx%4)*1024}', 'part', fast_st), 2))
    def stats_block():
        xreduce([V_L0, V_L1], 'v_add_f32', 124)
        a(f'v_mov_b32 v120, v{V_L0}')
        a(f'v_sub_f32 v121, 0, v{V_NEGM}')
        a(f'v_mov_b32 v122, v{V_L1}')
        a(f'v_sub_f32 v123, 0, v{V_NEGM+4}')
        a(f's_add_u32 s{S_T1}, s{S_PB}, {3*8192}')
        em(Dual(f'buffer_store_dwordx4 v[120:123], v{V_L16}, {SRD}, s{S_T1} offen', 'part', fast_st))
    XV = V_P
    def x_setup():
        a(f'v_lshrrev_b32 v{V_T0}, 4, v0')
        a(f'v_and_b32 v{V_T1}, 15, v0')
        a(f'v_xor_b32 v{V_T2}, v{V_T0}, v{V_T1}')
        a(f'v_lshlrev_b32 v{V_T2}, 4, v{V_T2}')
        a(f'v_lshl_add_u32 v{XV}, v{V_T0}, 10, v{V_T2}')
        for i in range(1, 4): a(f'v_xor_b32 v{XV+i}, {i*64}, v{XV}')
        a(f's_add_u32 s{S_KOFF}, s{S_KOFF}, s{S_W8K}')
        a(f'v_lshl_add_u32 v{XV+4}, v{V_T1}, 8, v{V_T2}')
        a(f'v_add_u32 v{XV+4}, s{S_KOFF}, v{XV+4}')
        for i in range(1, 4): a(f'v_xor_b32 v{XV+4+i}, {i*64}, v{XV+4}')
        a(f'v_add_u32 v{V_XO}, s{S_KOFF}, v{V_L16}')
        a(f's_lshl_b32 s{S_T4}, s{S_QB}, 15')
        a(f's_lshl_b32 s{S_T1}, s{S_SPLIT}, 8')
        a(f's_add_u32 s{S_T4}, s{S_T4}, s{S_T1}')
    def wc_dma(T):
        out = []
        first = [f's_add_u32 s{S_WCO}, s{S_WCO}, {TILE}', f's_add_u32 s{S_T2}, s{(S_WB0, S_WB1, S_WB2, S_WB3)[T]}, s{S_W8K}']
        for pre, op in dma_ops(V_DK0, V_DK1, S_WCO, S_T2):
            g = first; first = []
            if pre: g += [pre, 's_nop 0']
            out.append(g + [(op, ('wc', T))])
        return out
    dq = [ucload(f) for f in range(nuc[0], 32)]
    def xdma():
        return [[f's_add_u32 m0, s{S_KOFF}, {k*1024}', f's_add_u32 s{S_T1}, s{S_T4}, {k*4096}',
                 (f'buffer_load_dwordx4 v{XV+(k&3)}, {SRX}, s{S_T1} offen lds', 'x')] for k in range(8)]
    def pop():
        _, op, c = pend.pop(0); em(op)
        if isinstance(op, Dual):
            for _ in range(ld_per_st):
                if dq:
                    for o in dq.pop(0): em(o)
        return c
    lim = [64]
    def run(i0, i1, every=0):
        for i in range(i0, i1):
            it = stream[i]; w = []
            if it[0] == 'yc' and it[1] == 0 and it[2] % 2 == 0: w.append(f'vmcnt({min(63, vm.need(("uc", it[2] | 1)))})')
            if i % 2 == 0: w.append(f'lgkmcnt({q.need(("s", min(i + 1, NS - 1)))})')
            if w: a('s_waitcnt ' + ' '.join(w))
            mm = smf(i)
            for h in range(2):
                pos = 2 * i + h
                a(mm[h])
                budget = pv_budget
                if h == 0 and i + LA < NS:
                    nx = stream[i + LA]
                    if nx[0] == 'yc' and nx[2] == 0 and nx[1] in (1, 2):
                        a(f's_waitcnt vmcnt({min(63, vm.need(("wc", 1 if nx[1] == 1 else 3)))})')
                        a('s_barrier')
                    a(srd_(i + LA)); q.issue(('s', i + LA)); budget -= 1
                while pend and pend[0][0] <= pos and budget > 0: budget -= pop()
                if every and dq and pos % every == 1:
                    for o in dq.pop(0): em(o)
    run(0, 32)
    a('s_barrier')
    x_setup()
    while pend: pop()
    stats_block()
    dq += wc_dma(1) + wc_dma(2) + wc_dma(3)
    while len(dq) > 24 - flag_after:
        for o in dq.pop(0): em(o)
    st(4)
    a(f's_lshl_b32 s{S_T3}, s{S_SPLIT}, 7')
    a(f's_add_u32 s{S_T3}, s{S_T3}, s{S_FLO}')
    a(f'v_mov_b32 v{V_T0}, 0\n v_mov_b32 v{V_T1}, s{S_TAG}')
    a(f's_lshl_b32 s{S_CNT}, 1, s{S_SPLIT}')
    a('s_mov_b64 exec, 1')
    a(f's_waitcnt vmcnt({vm.need("part")})')
    em(Dual(f'buffer_store_dword v{V_T1}, v{V_T0}, {SRD}, s{S_T3} offen offset:4', None, ''))
    a('s_mov_b64 exec, -1')
    st(5)
    if stamp: a('s_waitcnt lgkmcnt(0)')
    poll = f'buffer_load_dword v{V_PFD}, v{V_FL}, {SRD}, s{S_FLO} offen offset:4 sc1'
    dq.insert(min(poll_after, len(dq)), [(poll, 'poll')])
    STR = [56, 60, 124]
    def getmask(w):
        a(f's_waitcnt vmcnt({w})')
        a(f'v_cmp_eq_u32 vcc, s{S_TAG}, v{V_PFD}')
        a('s_nop 3')
        a(f's_and_b32 s{S_PFS}, vcc_lo, 15')
        a(f's_andn2_b32 s{S_PFS}, s{S_PFS}, s{S_CNT}')
        a(f's_or_b32 s{S_CNT}, s{S_CNT}, s{S_PFS}')
    def slot_hdr(k):
        return [f's_sub_u32 s{S_T1}, s{S_SPLIT}, {k+1}', f's_and_b32 s{S_T1}, s{S_T1}, 3', f's_bitcmp1_b32 s{S_PFS}, s{S_T1}']
    def slot_adr():
        return [f's_add_u32 s{S_T1}, s{S_T1}, s{S_T0}', f's_lshl_b32 s{S_T1}, s{S_T1}, 2', f's_add_u32 s{S_T1}, s{S_T1}, s{S_W}',
                f's_lshl_b32 s{S_PO}, s{S_T1}, 15', f's_add_u32 s{S_T1}, s{S_PO}, {WS_PART + 3*8192}']
    def slot_loads(k, vo):
        out = [[f'buffer_load_dwordx4 {vr(STR[k],4)}, v{vo}, {SRD}, s{S_T1} offen sc1']]
        for h4 in range(2):
            for i in range(4):
                pre = [f's_add_u32 s{S_T1}, s{S_PO}, {WS_PART + k*8192 + h4*4096}'] if i == 0 else []
                out.append(pre + [f'buffer_load_dwordx4 {ar(128+(k*8+h4*4+i)*4,4)}, v{vo}, {SRD}, s{S_T1} offen offset:{i*1024} sc1'])
        return out
    def check():
        getmask(0)
        for k in range(3):
            lab = a.label(name + '_ck')
            for o in slot_hdr(k): a(o)
            a(f's_cbranch_scc0 {lab}')
            for o in slot_adr(): a(o)
            for g in slot_loads(k, V_L16):
                for o in g: a(o)
            a(f'{lab}:')
    run(32, chk_at, every=2)
    assert not dq
    st(20)
    if stamp: a('s_waitcnt lgkmcnt(0)')
    getmask(vm.need('poll'))
    for k in range(3):
        first = slot_hdr(k) + [f's_cselect_b32 s{S_PH}, 0, 0x80000000', f'v_or_b32 v{V_T2}, s{S_PH}, v{V_L16}'] + slot_adr()
        for g in slot_loads(k, V_T2):
            dq.append(first + g); first = []
    dq += xdma() + [[poll]]
    run(chk_at, NS, every=r_pace)
    assert not dq, len(dq)
    st(21)
    a(f's_waitcnt vmcnt({vm.need("x")})')
    st(22)
    if stamp: a('s_waitcnt lgkmcnt(0)')
    for idx in range(8):
        gm, qh = idx >> 1, idx & 1
        a(f'ds_read_b128 {vr(V_S+4*idx,4)}, v{XV+4+gm} offset:{qh*4096}')
    a('s_nop 3')
    for idx in range(8):
        gm, qh = idx >> 1, idx & 1
        xb = V_S + 4 * idx
        a(f's_waitcnt lgkmcnt({7-idx})')
        for i in range(4):
            a(f'v_lshlrev_b32 v{64+2*i}, 16, v{xb+i}')
            a(f'v_and_b32 v{64+2*i+1}, 0xffff0000, v{xb+i}')
        for i in range(4):
            y = YB + 8 * (2 * gm + (i >> 1)) + 4 * qh + 2 * (i & 1)
            a(f'v_pk_add_f32 {vr(y,2)}, {vr(y,2)}, {vr(64+2*i,2)}')
    st(23)
    a(f'{name}_spin:')
    check()
    a(f's_cmp_eq_u32 s{S_CNT}, 15')
    a(f's_cbranch_scc1 {name}_got')
    a(poll)
    a(f's_branch {name}_spin')
    a(f'{name}_got:')
    st(6)
    a('s_waitcnt vmcnt(0)')
    st(24)
    allst = [120] + STR
    for qh in range(2):
        t = V_T0 + qh
        a(f'v_max3_f32 v{t}, v{allst[0]+2*qh+1}, v{allst[1]+2*qh+1}, v{allst[2]+2*qh+1}')
        a(f'v_max_f32 v{t}, v{t}, v{allst[3]+2*qh+1}')
    for qh in range(2):
        for b in allst: a(f'v_sub_f32 v{b+2*qh+1}, v{b+2*qh+1}, v{V_T0+qh}')
    for qh in range(2):
        for b in allst: a(f'v_exp_f32 v{b+2*qh+1}, v{b+2*qh+1}')
    for qh in range(2):
        a(f'v_mul_f32 v{V_T0+qh}, v{allst[0]+2*qh}, v{allst[0]+2*qh+1}')
    for b in allst[1:]:
        for qh in range(2): a(f'v_fmac_f32 v{V_T0+qh}, v{b+2*qh}, v{b+2*qh+1}')
    for qh in range(2): a(f'v_rcp_f32 v{V_T0+qh}, v{V_T0+qh}')
    a('s_nop 0')
    for qh in range(2):
        for b in allst: a(f'v_mul_f32 v{b+2*qh+1}, v{b+2*qh+1}, v{V_T0+qh}')
    for i in range(4): a(f'v_or_b32 v{XV+i}, s{S_VALID}, v{XV+i}')
    for qh in range(2):
        for gm in range(4):
            idx = gm * 2 + qh
            ys = [YB + 8 * (2 * gm + (i >> 1)) + 4 * qh + 2 * (i & 1) for i in range(4)]
            for i in range(4):
                a(f'v_pk_fma_f32 {vr(ys[i],2)}, {vr(ys[i]-64,2)}, {vr(120+2*qh,2)}, {vr(ys[i],2)} op_sel:[0,1,0] op_sel_hi:[1,1,1]')
            for k in range(3):
                ub = 64 + 12 * k
                for i in range(4): a(f'v_accvgpr_read_b32 v{ub+8+i}, a{128+(k*8+idx)*4+i}')
                for i in range(4):
                    a(f'v_lshlrev_b32 v{ub+2*i}, 16, v{ub+8+i}')
                    a(f'v_and_b32 v{ub+2*i+1}, 0xffff0000, v{ub+8+i}')
                for i in range(4):
                    a(f'v_pk_fma_f32 {vr(ys[i],2)}, {vr(ub+2*i,2)}, {vr(STR[k]+2*qh,2)}, {vr(ys[i],2)} op_sel:[0,1,0] op_sel_hi:[1,1,1]')
            ob = 100 + 4 * (gm & 1)
            for i in range(4): a(f'v_cvt_pk_bf16_f32 v{ob+i}, v{ys[i]}, v{ys[i]+1}')
            a(f'ds_write_b128 v{XV+4+gm}, {vr(ob,4)} offset:{qh*4096}')
            if qh == 1 and gm == 0:
                a('s_waitcnt lgkmcnt(1)')
                for i in range(4):
                    a(f's_add_u32 s{S_T1}, s{S_T4}, {i*4096}')
                    a(f'buffer_store_dwordx4 {vr(V_S+4*i,4)}, v{XV+i}, {SRO}, s{S_T1} offen {out_flags}')
        for i in range(4): a(f'ds_read_b128 {vr(V_S+16*qh+4*i,4)}, v{V_XO} offset:{(4*qh+i)*1024}')
    for i in range(4):
        a(f's_add_u32 s{S_T1}, s{S_T4}, {(4+i)*4096}')
        a(f's_waitcnt lgkmcnt({3-i})')
        a(f'buffer_store_dwordx4 {vr(V_S+16+4*i,4)}, v{XV+i}, {SRO}, s{S_T1} offen {out_flags}')
    if stamp:
        a('s_waitcnt vmcnt(0)')
        st(7)
        a('s_waitcnt lgkmcnt(0)')
        a(f's_cmp_lg_u32 s{S_W}, 0')
        a(f's_cbranch_scc1 {name}_end')
        a(f's_lshl_b32 s{S_T1}, s2, 7')
        a(f's_add_u32 s{S_T1}, s{S_T1}, {WS_STAMP}')
        for i in range(16): a(f'v_mov_b32 v{16+2*i}, s{80+i}\n v_mov_b32 v{17+2*i}, 0')
        a(f'v_mov_b32 v{V_T0}, 0')
        a('s_mov_b64 exec, 1')
        for i in range(8):
            a(f'buffer_store_dwordx4 {vr(16+4*i,4)}, v{V_T0}, {SRD}, s{S_T1} offen offset:{16*i}')
        if dbgout:
            a(f's_cmp_lg_u32 s2, 0\n s_cbranch_scc1 {name}_end')
            a('s_load_dwordx2 s[4:5], s[0:1], 80')
            a(f's_mov_b32 s{S_T1}, {WS_STAMP + 131072}')
            a(f'buffer_load_dwordx4 v[48:51], v{V_T0}, {SRD}, s{S_T1} offen sc1')
            a(f's_mov_b32 s{S_T1}, {WS_STAMP + 65536}')
            a(f'buffer_load_dwordx4 v[52:55], v{V_T0}, {SRD}, s{S_T1} offen sc1')
            a(f'buffer_load_dwordx4 v[56:59], v{V_T0}, {SRD}, s{S_T1} offen offset:16 sc1')
            a('s_waitcnt vmcnt(0) lgkmcnt(0)')
            a('s_sub_u32 s12, s4, 0\n s_subb_u32 s13, s5, 0\n s_mov_b32 s14, 256\n s_mov_b32 s15, 0x20000')
            src = [50, 52, 54, 56, 58, 16, 18, 20, 22, 30]
            for i, r in enumerate(src): a(f'v_sub_u32 v{64+i}, v{r}, v48')
            for i in range(3): a(f'buffer_store_dwordx4 {vr(64+4*i,4)}, v{V_T0}, s[12:15], 0 offen offset:{16*i}')
            if spin is not None:
                ra, rb = spin
                a(f'v_sub_u32 v80, v{rb}, v{ra}')
                a('v_add_u32 v80, 2000, v80')
                a('v_add_u32 v80, v30, v80')
                a('s_nop 1')
                a('v_readfirstlane_b32 s20, v80')
                a(f'{name}_sp:')
                a('s_memrealtime s[22:23]')
                a('s_waitcnt lgkmcnt(0)')
                a('s_sub_u32 s21, s20, s22')
                a('s_cmp_gt_i32 s21, 0')
                a(f's_cbranch_scc1 {name}_sp')
    a(f'{name}_end:')
    a('s_endpgm')
    p3slow()
    for lab, dst, vo, so in slows:
        a(f'{name}_{lab}s:')
        a(f's_sleep {slp}')
        a(f'buffer_load_dword v{dst}, v{vo}, {SRD}, s{so} offen sc1')
        a('s_waitcnt vmcnt(0)')
        a(f'v_cmp_ne_u32 vcc, s{S_TAG}, v{dst}')
        a(f's_cbranch_vccnz {name}_{lab}s')
        a(f's_branch {name}_{lab}k')
    for lab, op in stubs:
        a(f'{lab}:')
        a(f'{op} sc1')
        a(f's_branch {lab}b')
    a(f'{name}_cfslow:')
    a(f's_sleep {slp}')
    a(f'buffer_load_dword v{V_PFD}, v{V_XO}, {SRD}, s{S_SLOW} offen sc1')
    a('s_waitcnt vmcnt(0)')
    a(f'v_cmp_ne_u32 s[{S_T3}:{S_T3+1}], s{S_TAG}, v{V_PFD}')
    a('s_nop 3')
    a(f's_cmp_eq_u64 s[{S_T3}:{S_T3+1}], 0')
    a(f's_cbranch_scc0 {name}_cfslow')
    a(f's_branch {name}_cfok')
    for (L_r1, L_r1b, L_r2, L_r2b) in rare:
        a(f'{L_r1}:')
        rowmax2(V_T1, V_T2, 120)
        for qh, dst in ((0, V_T1), (1, V_T2)):
            a(f'v_max_f32 v{dst}, 0, v{dst}')
            fr = V_F1 if qh else V_F0
            a(f'v_sub_f32 v{fr}, 0, v{dst}')
            a(f'v_exp_f32 v{fr}, v{fr}')
            for kh in range(2):
                for i in range(4): a(f'v_sub_f32 v{Sreg(kh,qh)+i}, v{Sreg(kh,qh)+i}, v{dst}')
            for i in range(4): a(f'v_sub_f32 v{V_NEGM+4*qh+i}, v{V_NEGM+4*qh+i}, v{dst}')
            l = V_L1 if qh else V_L0
            a(f'v_mul_f32 v{l}, v{l}, v{fr}')
        a(f's_branch {L_r1b}')
        a(f'{L_r2}:')
        a('s_nop 7')
        for beta in range(32):
            for qh in range(2):
                fr = V_F1 if qh else V_F0
                b = Obase(beta, qh)
                if beta < 16:
                    for r in range(4): a(f'v_mul_f32 v{b+r}, v{b+r}, v{fr}')
                else:
                    for r in range(4): a(f'v_accvgpr_read_b32 v{120+r}, a{b+r}')
                    for r in range(4): a(f'v_mul_f32 v{120+r}, v{120+r}, v{fr}')
                    for r in range(4): a(f'v_accvgpr_write_b32 a{b+r}, v{120+r}')
        a(f's_branch {L_r2b}')
    a('code_end:')
    a('s_endpgm')
    kernel_desc(a, name, 512, 102, 256)
```

```python
import sys, json
from asmlib import *
import k1, k2, k3, km
def build(path, stamp=False, o1={}, o2={}, o3={}, nops=0, nop_pos=1, merged=False):
    a = Asm()
    hdr = open('standalone__conformer_family_branchformer__speech.s.ref').read().split('\n')
    for ln in hdr:
        if ln.startswith(';') and '@launch' not in ln and 'Override launch' not in ln and 'grid=ceil' not in ln: a.raw(ln)
    for i in range(nops if nop_pos == 0 else 0): a.raw('; @launch kernel=nop_kernel grid=(256,1,1) block=(256,1,1) lds=0')
    a.raw(f'; @launch kernel=prep_kernel grid=({k1.N_PREP_WG},1,1) block=(512,1,1) lds={k1.PREP_LDS}')
    for i in range(nops if nop_pos == 1 else 0): a.raw('; @launch kernel=nop_kernel grid=(256,1,1) block=(256,1,1) lds=0')
    if not merged: a.raw('; @launch kernel=rg_kernel grid=(256,1,1) block=(512,1,1) lds=163840')
    a.raw('; @launch kernel=attn_kernel grid=(256,1,1) block=(256,1,1) lds=163840')
    a.raw('.amdgcn_target "amdgcn-amd-amdhsa--gfx950"')
    k1.gen_prep(a, 'prep_kernel', stamp=stamp, **o1)
    if not merged:
        k2.gen_rg(a, 'rg_kernel', stamp=stamp, **o2)
        k3.gen_attn(a, 'attn_kernel', stamp=stamp, **o3)
    else:
        km.gen_main(a, 'attn_kernel', stamp=stamp, o2=o2, **o3)
    if nops:
        kernel_begin(a, 'nop_kernel'); a('s_endpgm'); kernel_desc(a, 'nop_kernel', 8, 16, 8)
    open(path, 'w').write(a.text())
def build1(path, stamp=False, o2={}, o3={}, final=False):
    import kz
    NAME = 'standalone__conformer_family_branchformer__speech_kernel'
    a = Asm()
    hdr = open('standalone__conformer_family_branchformer__speech.s.ref').read().split('\n')
    for ln in hdr:
        if ln.startswith(';') and '@launch' not in ln and 'Override launch' not in ln and 'grid=ceil' not in ln: a.raw(ln)
    if final: a.raw('; @launch grid=(256,1,1) block=(256,1,1) lds=163840')
    else: a.raw(f'; @launch kernel=mega_kernel grid=(256,1,1) block=(256,1,1) lds=163840')
    a.raw('.amdgcn_target "amdgcn-amd-amdhsa--gfx950"')
    kz.gen_main(a, 'mega_kernel', stamp=stamp, o2=o2, **o3)
    t = a.text()
    if final:
        import re
        t = re.sub(r'mega_kernel_', 'L_', t).replace('mega_kernel', NAME)
    open(path, 'w').write(t)
if __name__ == '__main__':
    o = json.loads(sys.argv[2]) if len(sys.argv) > 2 else {}
    if o.pop('one', False): build1(sys.argv[1], **o)
    else: build(sys.argv[1], **o)
```

```python
from asmlib import *
from layout import *
from attn2 import LdsQ
from k2 import f2h, VmQ
import re
import pz

def regs_of(tok):
    m = re.match(r'-?v\[(\d+):(\d+)\]', tok)
    if m: return set(range(int(m.group(1)), int(m.group(2)) + 1))
    m = re.match(r'-?v(\d+)$', tok)
    if m: return {int(m.group(1))}
    m = re.match(r's(\d+)$', tok)
    if m: return {1000 + int(m.group(1))}
    return set()
def rw(op):
    name_, rest = op.split(' ', 1)
    toks = [t.strip().split(' ')[0] for t in rest.split(' quad_perm')[0].split(',')]
    if name_.startswith('buffer_store'): return set().union(*[regs_of(t) for t in toks]), set()
    w = regs_of(toks[0]); r = set().union(*[regs_of(t) for t in toks[1:]])
    if name_.startswith('v_fmac') or 'dpp' in name_: r |= w
    return r, w

def rg4(a, name, K, st, stamp, vm, hooks, slows, late, LA=5, wait_every=4, bar_back=8, over=1, over2=0, XPRE=16, st_flags='sc1', fdelay=20, fdelayq=14, defer=0, pp=(14, 34, 56), rp=(20, 100, 128, 156), fastx=78, o1={}):
    V_L16, V_DK0, V_DK1 = K.V_L16, K.V_DK0, K.V_DK1
    V_ST0, V_ST1, V_RA, V_C0, V_C1, V_FO, V_FL, V_T0, V_T1 = 3, 4, 5, 8, 9, 10, 11, 13, 14
    V_WT, V_WD, S_TAG = (K.V_WT0, K.V_WT1), K.V_WD, K.S_TAG
    V_Z, V_HV, V_SS, V_RING, V_GP, V_STG = 16, 24, 32, 64, 96, 112
    NR = 7
    S_W, S_W8K = K.S_W, K.S_W8K
    S_CG, S_WOFF, S_B0, S_B1, S_XO, S_M0, S_M1, S_U, S_FI, S_S0 = 64, 65, 66, 67, 68, 69, 70, 71, 72, 73
    S_RAW = K.S_FLO
    S_T0, S_T1, S_T2 = K.S_T0, K.S_T1, K.S_T2
    SRD = f's[{K.S_SRD}:{K.S_SRD+3}]'
    q = LdsQ()
    def emit(o, tag=None):
        a(o)
        if o.startswith('buffer_'): vm.issue(tag)
        if o.startswith('ds_'): q.issue(tag)
    seq = ['g', 'g', 'u', 'u', 'q', 'q', 'v', 'v']
    half = [0, 1, 0, 1, 0, 1, 0, 1]
    ACN = [128, 160, 192, 224, 128, 32, 128, 32]
    wbase = {'q': 0, 'v': 16, 'u': 32, 'g': 48}
    obase = {'q': WS_Q, 'v': WS_VT, 'u': WS_UC, 'g': WS_G}
    BUF = {4: 4, 5: 1, 6: 3, 7: 2}
    def dma(n):
        out = []
        for g in range(2):
            pre = [f's_add_u32 s{S_T1}, s{S_WOFF}, {(wbase[seq[n]] + half[n]) * TILE}'] if g == 0 else []
            pre += [f's_add_u32 m0, s{S_W8K}, {BUF[n] * TILE + g*4096}', 's_nop 0']
            for i in range(4):
                out.append(pre + [(f'buffer_load_dwordx4 v{V_DK1 if g else V_DK0}, {SRD}, s{S_T1} offen offset:{i*1024} sc1 lds', ('W', n))]); pre = []
        return out
    def rawdma(n, kh):
        out = []
        for i in range(8):
            pre = [f's_add_u32 m0, s{S_W8K}, {(n + kh) * TILE + i*1024}', f's_add_u32 s{S_T1}, s{S_RAW}, {(1024 if seq[n] == "g" else 0) + kh * (1 << 19) + i * 16384}']
            out.append(pre + [(f'buffer_load_dwordx4 v{V_WD}, s[76:79], s{S_T1} offen lds', ('W', n, kh))])
        return out
    def run(groups):
        for g in groups:
            for o in g:
                if isinstance(o, tuple): emit(*o)
                else: a(o)
    PA_, PB_, PC = 192, 224, 112
    def flag(kind):
        a(f's_lshl_b32 s{S_T2}, s{ {0: S_U, 6: 3}.get(kind, S_FI) }, 7')
        a(f's_add_u32 s{S_T2}, s{S_T2}, {ZF + ZK * kind}')
        a(f'v_mov_b32 v{V_T1}, s{S_TAG}')
        emit(f'buffer_store_dword v{V_T1}, v{V_FO}, {SRD}, s{S_T2} offen sc1')
    def mid1():
        a(f's_bfe_u32 s{S_CG}, s2, 0x30003')
        a(f's_lshl_b32 s{S_FI}, s{K.S_GRP}, 2')
        a(f's_and_b32 s{S_FI}, s{S_FI}, 0xf8')
        a(f's_lshl_b32 s{S_XO}, s{S_FI}, 7')
        a(f's_add_u32 s{S_FI}, s{S_FI}, s{S_CG}')
        a(f's_lshl_b32 s{S_RAW}, s{S_W}, 17')
        a(f's_lshl_b32 s{S_T1}, s{S_CG}, 7')
        a(f's_add_u32 s{S_RAW}, s{S_RAW}, s{S_T1}')
        run(rawdma(0, 0))
        a(f's_add_u32 s{S_XO}, s{S_XO}, {ZF + 5 * ZK}')
        a(f'v_and_b32 v{V_FL}, 7, v0')
        a(f'v_lshlrev_b32 v{V_FL}, 7, v{V_FL}')
    def pollA():
        a(f'buffer_load_dword v27, v{V_FL}, {SRD}, s{S_XO} offen sc1')
    tagslow = pz.prep(a, name, K, st, mid1, lambda: flag(5), pollA, late, **o1)
    vm.issue('role'); vm.issue('role')
    a(f's_lshr_b32 s{S_T0}, s{K.S_TILE}, 1')
    a(f's_lshl_b32 s{S_T0}, s{S_T0}, 3')
    a(f's_lshl1_add_u32 s{S_T0}, s{S_W}, s{S_T0}')
    for rb, (sb, vs) in enumerate(((S_B0, V_ST0), (S_B1, V_ST1))):
        a(f's_add_u32 s{sb}, s{S_T0}, {rb}')
        a(f's_cmp_lt_u32 s{sb}, 125')
        a(f's_cselect_b32 s{S_T1}, 0, 0x80000000')
        a(f'v_or_b32 v{vs}, s{S_T1}, v{V_L16}')
        a(f's_min_u32 s{sb}, s{sb}, 124')
        a(f's_add_u32 s{sb}, s{sb}, s{K.S_B125}')
        a(f's_lshl_b32 s{sb}, s{sb}, 15')
    def xload(i):
        rb, f = i >> 5, i & 31
        pre = []
        if f == 0: pre = [f's_add_u32 s{S_XO}, s{S_B1 if rb else S_B0}, {WS_XA}']
        elif f % 4 == 0: pre = [f's_add_u32 s{S_XO}, s{S_XO}, 4096']
        return pre + [(f'buffer_load_dwordx4 {ar(4*i,4)}, v{V_L16}, {SRD}, s{S_XO} offen offset:{(f%4)*1024} sc1', ('X', i))]
    a('s_waitcnt vmcnt(4)')
    a('s_barrier')
    run(rawdma(0, 1))
    a(f's_lshl_b32 s{S_WOFF}, s{S_CG}, 16')
    a(f's_add_u32 s{S_WOFF}, s{S_WOFF}, {WS_W}')
    a(f's_and_b32 s{S_T0}, s2, 3')
    a(f's_lshl_b32 s{S_M1}, s{S_T0}, 2')
    a(f's_lshr_b32 s{S_T2}, s2, 6')
    a(f's_add_u32 s{S_M1}, s{S_M1}, s{S_T2}')
    a(f's_and_b32 s{S_M0}, s2, 4')
    a(f's_lshl_b32 s{S_M0}, s{S_M0}, 1')
    a(f's_add_u32 s{S_M0}, s{S_M0}, s{S_CG}')
    a(f's_lshl_b32 s{S_U}, s{S_M1}, 4')
    a(f's_add_u32 s{S_U}, s{S_U}, s{S_M0}')
    a(f's_lshl_b32 s{S_M0}, s{S_M0}, 15')
    a(f's_add_u32 s{S_M0}, s{S_M0}, {WS_RL}')
    a(f's_lshl_b32 s{S_M1}, s{S_M1}, 15')
    a(f's_add_u32 s{S_M1}, s{S_M1}, {WS_T1}')
    c0 = -2.0 * 0.7978845608028654 * 1.4426950408889634
    a(f'v_mov_b32 v{V_C0}, {f2h(c0)}')
    a(f'v_mov_b32 v{V_C1}, {f2h(c0 * 0.044715)}')
    a(f'v_add_u32 v{V_RA}, {2*TILE}, v{V_L16}')
    for i in range(32): a(f'v_mov_b32 v{V_SS+i}, 0')
    a(f's_lshl_b32 s{S_T2}, s{S_CG}, 12')
    a(f's_add_u32 s46, s{S_B0}, s{S_T2}')
    a(f's_add_u32 s47, s{S_B1}, s{S_T2}')
    OS = {'g': 56, 'u': 58, 'q': 60, 'v': 52}
    for ty in 'guqv':
        for rb in range(2): a(f's_add_u32 s{OS[ty]+rb}, s{46+rb}, {obase[ty]}')
    a(f'v_lshrrev_b32 v{V_T0}, 3, v0')
    a(f'v_and_b32 v{V_T1}, 7, v0')
    a(f's_lshl_b32 s{S_T2}, s{S_CG}, 3')
    a(f's_add_u32 s{S_T2}, s{S_T2}, 64')
    a(f'v_add_u32 v113, s{S_T2}, v{V_T1}')
    a(f's_lshr_b32 s{S_T2}, s{S_U}, 5')
    a(f's_lshl_b32 s{S_T2}, s{S_T2}, 3')
    a(f'v_add_u32 v114, s{S_T2}, v{V_T1}')
    a(f'v_cmp_eq_u32 vcc, 1, v{V_T0}')
    a(f's_lshl_b32 s{S_T2}, s{K.S_SPLIT}, 4')
    a(f's_add_u32 s{S_T2}, s{S_T2}, {128 - 24}')
    a(f'v_cndmask_b32 v113, v113, v114, vcc')
    a(f'v_add_u32 v114, s{S_T2}, v0')
    a(f'v_subrev_u32 v115, 3, v{V_T0}')
    a(f'v_cmp_gt_u32 vcc, 2, v115')
    a(f's_mul_i32 s{S_T2}, s{S_CG}, 5')
    a(f's_add_u32 s{S_T2}, s{S_T2}, 206')
    a(f'v_cndmask_b32 v113, v113, v114, vcc')
    a(f'v_min_u32 v114, 6, v{V_T1}')
    a(f'v_add_u32 v114, s{S_T2}, v114')
    a(f'v_cmp_eq_u32 vcc, 2, v{V_T0}')
    a(f's_bfe_u32 s{S_T2}, s{S_U}, 0x30001')
    a(f's_add_u32 s{S_T2}, s{S_T2}, 192')
    a(f'v_cndmask_b32 v113, v113, v114, vcc')
    a(f'v_lshl_add_u32 v114, v{V_T1}, 3, s{S_T2}')
    a(f'v_subrev_u32 v115, 16, v0')
    a(f'v_cmp_gt_u32 vcc, 2, v115')
    a('s_nop 1')
    a(f'v_cndmask_b32 v113, v113, v114, vcc')
    a(f'v_lshlrev_b32 v113, 7, v113')
    PC = 92
    def p3dma():
        out = []
        for b, so in ((0, S_M0), (1, S_M1)):
            for h in range(2):
                pre = [f's_add_u32 m0, s{S_W8K}, {b * TILE + h*4096}', 's_nop 0']
                for i in range(4):
                    out.append(pre + [(f'buffer_load_dwordx4 v{V_DK1 if h else V_DK0}, {SRD}, s{so} offen offset:{i*1024} sc1 lds', 'p3')]); pre = []
        return out
    a(f's_and_b32 s{S_T2}, s{S_W}, 1')
    a(f's_lshl_b32 s{S_T2}, s{S_T2}, 10')
    a(f'v_add_u32 v30, s{S_T2}, v{V_L16}')
    a(f's_lshr_b32 s{S_T2}, s{S_W}, 1')
    a(f's_lshl_b32 s{S_T2}, s{S_T2}, 10')
    a(f'v_add_u32 v31, s{S_T2}, v{V_L16}')
    def p3step(j):
        b = V_STG + 8 * (j % 2)
        if 2 <= j < 18:
            a(f's_waitcnt lgkmcnt({min(15, q.need(("p3r", j - 2)))})')
            a(f'v_mfma_f32_16x16x32_bf16 {vr(PC,4)}, {vr(b,4)}, {vr(b+4,4)}, {vr(PC,4) if j > 2 else 0}')
        if j < 16:
            emit(f'ds_read_b128 {vr(b,4)}, v30 offset:{j*2048}', ('p3r', j))
            emit(f'ds_read_b128 {vr(b+4,4)}, v31 offset:{TILE + j*2048}', ('p3r', j))
        if j == 18:
            a(f's_lshl_b32 s{S_M0}, s{S_U}, 11')
            a(f's_lshr_b32 s{S_T2}, s{S_W}, 1')
            a(f's_lshl_b32 s{S_T2}, s{S_T2}, 10')
            a(f's_add_u32 s{S_M0}, s{S_M0}, s{S_T2}')
            a(f's_and_b32 s{S_T2}, s{S_W}, 1')
            a(f's_lshl_b32 s{S_T2}, s{S_T2}, 3')
            a(f's_add_u32 s{S_M0}, s{S_M0}, s{S_T2}')
            a(f's_add_u32 s{S_M0}, s{S_M0}, {WS_W + 16 * TILE}')
            for i in range(2): a(f'v_cvt_pk_bf16_f32 v{PC+i}, v{PC+2*i}, v{PC+2*i+1}')
            emit(f'buffer_store_dwordx2 {vr(PC,2)}, v{V_L16}, {SRD}, s{S_M0} offen sc1', 'p3s')

    stream = []
    for rb in range(2):
        for s in range(16):
            for n in range(2):
                for ch in range(2): stream.append((n, s, ch, rb))
    for n in range(2, 8):
        for f in range(32): stream.append((n, f & 15, f >> 4, None))
    NS = len(stream)
    def slot(G): return V_RING + 4 * (G % NR)
    def rd(G):
        n, s, ch, rb = stream[G]
        if seq[n] in 'gu':
            return [f'ds_read_b64_tr_b16 {vr(slot(G)+2*jj, 2)}, v{V_WT[half[n]]} offset:{s*4096 + jj*512 + ch*8}' for jj in range(2)]
        reg, off = {4: (V_WD, 0), 1: (V_L16, TILE), 3: (V_RA, TILE), 2: (V_RA, 0)}[BUF[n]]
        return [f'ds_read_b128 {vr(slot(G), 4)}, v{reg} offset:{off + (2 * s + ch) * 1024}']
    def mf(n, s, ch, rb, rh, G):
        x = ar(rb * 128 + (s * 2 + rh) * 4, 4); w = vr(slot(G), 4)
        if seq[n] in 'vg': d = vr(ACN[n] + 16 * rb + ch * 8 + rh * 4, 4); A, B = x, w
        else: d = vr(ACN[n] + 16 * rb + rh * 8 + ch * 4, 4); A, B = w, x
        return f'v_mfma_f32_16x16x32_bf16 {d}, {A}, {B}, {d if s else 0}'
    def mfmas(G):
        n, s, ch, rb = stream[G]
        if rb is not None: return [mf(n, s, ch, rb, rh, G) for rh in range(2)]
        R = [(0, 0), (0, 1), (1, 0), (1, 1)]
        if (s >> 1) & 1: R = R[::-1]
        out = []
        for (b, rh) in R[2 * (s & 1):2 * (s & 1) + 2]:
            for k in range(2): out.append(mf(n, (s & 14) + k, ch, b, rh, (G & ~1) + k))
        return out
    extra = [xload(i) for i in range(XPRE, 64)] + rawdma(2, 0) + rawdma(2, 1)
    pkrot = [0]; zrot = [0]
    def epilogue(n, rb):
        ty = seq[n]; ops = []
        for o in range(2):
            base = ACN[n] + 16 * rb + 8 * o
            if ty == 'u' and half[n] * 4 + rb * 2 + o >= 8 - defer: continue
            if ty in 'ug':
                def chain(e):
                    z = (V_Z + e if n > 1 else V_Z + 4 * n + e % 4); x = base + e
                    c = [(f'v_mul_f32 v{z}, v{x}, v{x}', 1), (f'v_fma_f32 v{z}, v{z}, v{V_C1}, v{V_C0}', 1), (f'v_mul_f32 v{z}, v{z}, v{x}', 1),
                         (f'v_exp_f32 v{z}, v{z}', 2), (f'v_add_f32 v{z}, 1.0, v{z}', 1), (f'v_rcp_f32 v{z}, v{z}', 2), (f'v_mul_f32 v{x}, v{x}, v{z}', 1)]
                    if ty == 'g':
                        c += [(f'v_add_f32 v{V_SS+16*rb+e}, v{V_SS+16*rb+e}, v{x}', 1), (f'v_fmac_f32 v{V_SS+16*rb+8+e}, v{x}, v{x}', 1)]
                    return c
                L = len(chain(0))
                for _, e, k in sorted(((2 if n > 1 else 4) * e + 2 * k, e, k) for e in range(8) for k in range(L)): ops.append(chain(e)[k] + (None,))
            if ty == 'u': continue
            pk = base if n else V_GP + 8 * rb + 4 * o
            so = OS[ty] + rb
            for i in range(4): ops.append((f'v_cvt_pk_bf16_f32 v{pk+i}, v{base+2*i}, v{base+2*i+1}', 1, None))
            vo = (V_HV + rb) if ty == 'g' else (V_ST1 if rb else V_ST0)
            if ty != 'u': ops.append((f'buffer_store_dwordx4 {vr(pk,4)}, v{vo}, {SRD}, s{so} offen offset:{half[n]*2048 + o*1024} {st_flags}', 2, ('st', ty)))
        return ops
    def stats_ops(rb):
        B = V_SS + 16 * rb; ops = []
        for i in range(8): ops.append((f'v_add_f32_dpp v{B+i}, v{B+i}, v{B+i} row_ror:8 row_mask:0xf bank_mask:0x3', 1, None))
        for i in range(8): ops.append((f'v_add_f32_dpp v{B+i}, v{B+8+i}, v{B+8+i} row_ror:8 row_mask:0xf bank_mask:0xc', 1, None))
        for i in range(4): ops.append((f'v_add_f32_dpp v{B+i}, v{B+i}, v{B+i} row_half_mirror row_mask:0xf bank_mask:0x5', 1, None))
        for i in range(4): ops.append((f'v_add_f32_dpp v{B+i}, v{B+4+i}, v{B+4+i} row_half_mirror row_mask:0xf bank_mask:0xa', 1, None))
        for pm in ('[2,3,0,1]', '[1,0,3,2]'):
            for i in range(4): ops.append((f'v_add_f32_dpp v{B+i}, v{B+i}, v{B+i} quad_perm:{pm} row_mask:0xf bank_mask:0xf', 1, None))
        ops.append((f'buffer_store_dwordx4 {vr(B,4)}, v{12 + 3*rb}, {SRD}, s{S_S0+rb} offen {st_flags}', 2, ('st', 'g')))
        return ops
    a(f'v_and_b32 v{V_T0}, 3, v0')
    a(f'v_cmp_eq_u32 vcc, 0, v{V_T0}')
    a(f'v_bfrev_b32 v{V_T1}, 1')
    a(f'v_and_b32 v{V_T0}, 12, v0')
    a(f'v_lshlrev_b32 v{V_T0}, 4, v{V_T0}')
    a(f'v_and_or_b32 v{V_T0}, v0, 48, v{V_T0}')
    for rb in range(2):
        a(f's_lshr_b32 s{S_S0+rb}, s{S_B1 if rb else S_B0}, 4')
        a(f's_lshl_b32 s{S_T2}, s{S_CG}, 8')
        a(f's_add_u32 s{S_S0+rb}, s{S_S0+rb}, s{S_T2}')
        a(f's_add_u32 s{S_S0+rb}, s{S_S0+rb}, {WS_ST}')
    a(f'v_cndmask_b32 v{V_T0}, v{V_T1}, v{V_T0}, vcc')
    for rb in range(2):
        a(f'v_and_b32 v{12+3*rb}, v{V_T1}, v{V_ST1 if rb else V_ST0}')
        a(f'v_or_b32 v{12+3*rb}, v{12+3*rb}, v{V_T0}')
    for rb, wv in ((0, 0), (1, 3)):
        a(f's_cmp_eq_u32 s{S_W}, {wv}')
        a(f's_cselect_b32 s{S_T2}, 0, 0x80000000')
        a(f'v_or_b32 v{V_HV+rb}, s{S_T2}, v{V_ST1 if rb else V_ST0}')
    a('s_waitcnt vmcnt(10)')
    a(f'v_cmp_ne_u32 vcc, s{S_TAG}, v27')
    a(f's_cbranch_vccnz {name}_fas')
    a(f'{name}_fak:')
    slows.append(('fa', 27, V_FL, S_XO))
    run([xload(i) for i in range(XPRE)])
    a(f'v_mov_b32 v{V_FL}, v113')
    st(43)
    for G in range(LA):
        for o in rd(G): emit(o, G)
    pend = []; lastw = {}; lasts = {}; forced = [0]
    pos = [0]
    def flush_one(op, tag):
        r, w = rw(op)
        prev = a.lines[-1].strip()
        if prev.startswith(('v_exp', 'v_rcp')) and (rw(prev)[1] & r): a('s_nop 0')
        for pv in a.lines[-2:]:
            pv = pv.strip()
            if pv.startswith('buffer_store') and (rw(pv)[0] & w): a('s_nop 1'); break
            if 'dpp' in op and pv.startswith('v_') and not pv.startswith('v_mfma') and (rw(pv)[1] & r): a('s_nop 1'); break
        emit(op, tag)
        for x in w: lastw[x] = pos[0]
        if op.startswith('buffer_store'):
            for x in r: lasts[x] = pos[0]
    def issue_ready(budget, window=28):
        i = 0; p = pos[0]
        while budget > 0 and i < min(window, len(pend)):
            rdy, op, c, tag, t = pend[i]
            r, w = rw(op)
            gap = 2 if 'dpp' in op else 1
            ok = rdy <= p and c <= budget and all(lastw.get(x, -9) + gap <= p for x in r) and all(lasts.get(x, -9) + 2 <= p for x in w)
            if ok:
                for j in range(i):
                    r2, w2 = rw(pend[j][1])
                    if (r & w2) or (w & r2) or (w & w2): ok = False; break
            if ok:
                pend.pop(i); flush_one(op, tag); budget -= c
            else: i += 1
    first_of = {n: min(i for i, it in enumerate(stream) if it[0] == n) for n in range(8)}
    last_of = {}
    for i, it in enumerate(stream):
        for rb in ((0, 1) if it[3] is None else (it[3],)): last_of[(it[0], rb)] = i
    done_at = {}; flagged = set()
    F3 = first_of[3]
    for G in range(NS):
        n, s, ch, rb = stream[G]
        if G in (0, 64): st(30 + G // 64)
        if G >= 128 and G % 32 == 0: st(30 + G // 32 - 2)
        if G == first_of[n]:
            while any((t is not None and ACN[t] == ACN[n]) or (ACN[n] == V_SS and (t is None or seq[t] == 'g')) for (_, _, _, _, t) in pend):
                _, op, _, tag, _ = pend.pop(0); flush_one(op, tag); forced[0] += 1
        w = []
        if n == 0 and ch == 0: w.append(f'vmcnt({min(63, vm.need(("X", 32 * rb + 2 * s + 1)))})')
        we = wait_every
        if G % we == 0: w.append(f'lgkmcnt({min(15, q.need(min(G + we - 1, NS - 1)))})')
        if w: a('s_waitcnt ' + ' '.join(w))
        mm = mfmas(G)
        for h, m in enumerate(mm):
            a(m)
            budget = 2
            ov = over if 'g' not in done_at else over2
            if ov and pos[0] % ov == 0: budget += 1
            if G + LA < NS and h < len(rd(G + LA)): emit(rd(G + LA)[h], G + LA); budget -= 1
            if h == len(mm) - 1 and (G + 1) % we == 0: budget -= 1
            if extra and h == len(mm) // 2 and (rb is None or G % 2 == 0 or G > fastx):
                run([extra.pop(0)]); budget = 0
            issue_ready(budget)
            pos[0] += 1
        for ty in 'gq':
            if ty not in done_at and G > last_of[(7 - seq[::-1].index(ty), 1)] and not any(p[3] == ('st', ty) for p in pend): done_at[ty] = G
        for ty, kind in (('g', 1), ('q', 2)):
            if ty in done_at and G == done_at[ty] + (fdelay if ty == 'g' else fdelayq):
                a(f's_waitcnt vmcnt({vm.need(("st", ty))})')
                a('s_barrier')
                flag(kind); flagged.add(kind); print('k2c flag', kind, 'at', G)
        def bar(tags):
            if tags: a(f's_waitcnt vmcnt({min(vm.need(t) for t in tags)})')
            a('s_barrier')
        if G == rp[0]:
            bar([('W', 0, 1)])
            flag(6)
        if G == rp[1]:
            a(f's_mov_b32 s46, {ZF + 6 * ZK}')
            emit(f'buffer_load_dword v27, v{V_FL}, {SRD}, s46 offen sc1', 'pollr')
        if G == first_of[2] - bar_back: bar([('W', 2, 1)])
        if G == first_of[2] - LA - 1:
            for r in V_WT: a(f'v_add_u32 v{r}, {2*TILE}, v{r}')
            a(f'v_add_u32 v{V_WD}, {4*TILE}, v{V_L16}')
        if G == rp[2]:
            assert G >= first_of[2]
            a(f's_waitcnt vmcnt({vm.need("pollr")})')
            a(f'v_cmp_ne_u32 vcc, s{S_TAG}, v27')
            a(f's_cbranch_vccnz {name}_frs')
            a(f'{name}_frk:')
            slows.append(('fr', 27, V_FL, 46))
            bar([])
            extra += p3dma() + dma(4)
        if G == rp[3]: bar(['p3'])
        if 0 <= G - rp[3] <= 18: p3step(G - rp[3])
        if G == first_of[4] - bar_back:
            assert G >= rp[3] + 17
            bar([('W', 4)])
            extra += dma(5)
        if G == rp[3] + 18 + pp[0]:
            bar(['p3s']); flag(0); flagged.add(0)
        if G == first_of[5] - bar_back: bar([('W', 5)])
        if G == rp[3] + 18 + pp[1]:
            a(f'v_and_b32 v{V_FL}, 31, v0')
            a(f'v_lshlrev_b32 v{V_FL}, 7, v{V_FL}')
            a(f's_lshl_b32 s{S_M1}, s{S_CG}, 12')
            a(f's_add_u32 s{S_M1}, s{S_M1}, {ZF}')
            emit(f'buffer_load_dword v27, v{V_FL}, {SRD}, s{S_M1} offen sc1', 'poll')
        if G == rp[3] + 18 + pp[2]:
            assert G > first_of[5] - bar_back
            a(f's_waitcnt vmcnt({vm.need("poll")})')
            a(f'v_cmp_ne_u32 vcc, s{S_TAG}, v27')
            a(f's_cbranch_vccnz {name}_p3slow')
            a(f'{name}_p3ok:')
            extra[:0] = dma(6) + dma(7)
        if G == first_of[6] - LA - 1: bar([('W', 6)])
        if G == first_of[7] - bar_back: bar([('W', 7)])
        if G - NS in hooks: extra += hooks[G - NS]() or []
        for (m, b), l in last_of.items():
            if l == G:
                ep = [(pos[0] + 7, op, c, tag, m) for op, c, tag in epilogue(m, b)]
                if seq[m] in 'qv':
                    pend[:0] = ep
                elif m == 0 and b == 1:
                    k = max([i for i, p in enumerate(pend) if p[4] == 0], default=-1) + 1
                    pend[k:k] = ep
                else:
                    pend += ep
                    if m == 1: pend += [(pos[0] + 7, op, c, tag, None) for op, c, tag in stats_ops(b)]
    print('k2m: forced', forced[0], 'tail', len(pend), 'done', done_at, 'extra left', len(extra))
    st(27); st(38)
    run(extra)
    a('s_nop 7')
    for _, op, _, tag, _ in pend: flush_one(op, tag)
    def slow():
        tagslow()
        a(f'{name}_p3slow:')
        a('s_sleep 8')
        a(f'buffer_load_dword v27, v{V_FL}, {SRD}, s{S_M1} offen sc1')
        a('s_waitcnt vmcnt(0)')
        a(f'v_cmp_ne_u32 vcc, s{S_TAG}, v27')
        a(f's_cbranch_vccnz {name}_p3slow')
        a(f's_branch {name}_p3ok')
    assert flagged == {0, 1, 2}
    return flag, slow
```

```python
from asmlib import *
from layout import *
from attn2 import LdsQ
from k2 import f2h, VmQ, code_prefetch

V_DK0, V_DK1, V_DV0, V_DV1, V_KA, V_VA, V_L16, V_L0, V_L1, V_MX, V_F0, V_F1, V_T0, V_T1, V_T2 = range(1, 16)
V_S, V_E, V_P, V_NEGM, V_RING = 16, 32, 48, 56, 64
V_PF, V_PFD, V_XO, V_FL = 116, 117, 118, 119
V_WT0, V_WT1, V_WD, V_FO = 6, 28, 29, 10
S_TAG = 75
S_X, S_OUTP, S_WS, S_SRD, S_SRX, S_SRO = 4, 6, 40, 8, 12, 16
(S_KOFF, S_VOFF, S_KDMA, S_VDMA, S_VRD, S_CNT, S_W, S_QB, S_SPLIT, S_T0, S_T1, S_VALID, S_GRP, S_W8K, S_PFOFF, S_T2) = range(20, 36)
S_TILE, S_B125, S_T3, S_T4 = 36, 37, 38, 39
S_WB0, S_WB1, S_WB2, S_WB3, S_UCO, S_WCO, S_FLO, S_PO = range(56, 64)
S_PFS, S_PFST, S_PH, S_XCC, S_SLOW, S_PB = 44, 45, 46, 47, 48, 54

def Obase(beta, qh): return 128 + 8 * (beta % 16) + 4 * qh
def Oreg(beta, qh): return vr(Obase(beta, qh), 4) if beta < 16 else ar(Obase(beta, qh), 4)

def gen_main(a, name, dma_gap=3, dma_cost=2, CAP=2, bar_pos=50, NR=13, LA=10, wait_every=4, THR=0x41800000,
             stamp=False, snake=True, prefetch=2, pf=True, pv_pace=4, pv_budget=6, out_flags='sc1', npf=0, fast_st='nt', flag_at=140, force_slow=True, tailst=False, pfill=False, st_pace=9, ld_pace=2, yc_budget=2, bg_pace=14, tailpf=1, tlb=True, pf_flags='sc1', uc_pace=4, chk_at=60, merged=True, gst=False, pst=False, pf_late=False, xinit=True, xi_pre=8, jit=0, slp=3, pf_wg=0, o2={}, hk=(-84, -62, -30, -15), qearly=14, vchk=16, dbg=(), dbgout=False, spin=None, brgap=3, chain=True, poll_after=8, r_pace=5, chk2_at=0, noyc=False, ld_per_st=0, flag_after=0, rounds=((56, 3), (112, 3))):
    SRD, SRX, SRO = [f's[{b}:{b+3}]' for b in (S_SRD, S_SRX, S_SRO)]
    def st(i, cyc=False):
        if jit and not cyc and i not in (0,):
            lab = a.label(name + '_jit')
            a(f's_mul_i32 s100, s2, {2654435761 * (i + jit) % (1 << 31)}')
            a(f's_mul_i32 s101, s{S_W}, {40503 * (i + 3) * jit}')
            a('s_add_u32 s100, s100, s101')
            a('s_lshr_b32 s100, s100, 26')
            a('s_cmp_lt_u32 s100, 44')
            a(f's_cbranch_scc1 {lab}')
            a(f'{lab}l:')
            a('s_sleep 16')
            a('s_sub_u32 s100, s100, 1')
            a('s_cmp_gt_u32 s100, 43')
            a(f's_cbranch_scc1 {lab}l')
            a(f'{lab}:')
        gs = [1, 2, 3, 4, 5, 6, 8, 9, 12, 13, 14, 15]
        if i >= 40:
            if i == 43: i = 10
            elif pst: i = [4, 5, 6][i - 40]
            else: return
        elif pst and i in (4, 5, 6): return
        if i >= 30:
            if not gst: return
            i = gs[i - 30]; cyc = True
        elif gst and i in gs: return
        if tailst and 10 <= i <= 14: return
        if 20 <= i < 26:
            if not tailst: return
            i -= 10
        if i >= 26: i -= 16
        if stamp:
            a(f'{"s_memtime" if cyc else "s_memrealtime"} s[100:101]')
            a('s_waitcnt lgkmcnt(0)')
            a(f's_mov_b32 s{80+i}, s100')
    kernel_begin(a, name)
    a(f's_cmp_ge_u32 s2, 256\n s_cbranch_scc1 {name}_end')
    a('s_load_dwordx16 s[56:71], s[0:1], 0')
    a('s_load_dwordx8 s[72:79], s[0:1], 64')
    st(0)
    def codepf():
        if not pf_late: return
        _codepf('v_lshl_add_u32 v251, s26, 6, v0')
    def _codepf(tid):
        a(tid)
        a(f's_getpc_b64 s[42:43]')
        a(f'{name}_pc:')
        a(f's_sub_u32 s42, s42, {name}_pc-{name}')
        a(f's_subb_u32 s43, s43, 0')
        a(f's_lshr_b32 s44, s2, 3')
        a(f's_mul_i32 s44, s44, 3072')
        a(f'v_subrev_u32 v13, 192, v251')
        a(f'v_cmp_gt_u32 vcc, 24, v13')
        a(f'v_lshlrev_b32 v13, 7, v13')
        a(f'v_add_u32 v13, s44, v13')
        a(f'v_min_u32 v13, {name}_end-{name}-4, v13')
        a(f's_and_saveexec_b64 s[44:45], vcc')
        a(f's_cbranch_execz {name}_nopf')
        a(f'global_load_dword v250, v13, s[42:43]')
        a(f'{name}_nopf:')
        a(f's_mov_b64 exec, s[44:45]')
    if not pf_late: _codepf('v_mov_b32 v251, v0')
    a(f'v_lshrrev_b32 v{V_T0}, 6, v0')
    a(f'v_cmp_eq_u32 vcc, 0, v0')
    a(f'v_bfrev_b32 v{V_T1}, 1')
    a(f'v_and_b32 v0, 63, v0')
    a(f'v_readfirstlane_b32 s{S_W}, v{V_T0}')
    a(f'v_lshlrev_b32 v{V_L16}, 4, v0')
    a(f'v_cndmask_b32 v{V_FO}, v{V_T1}, 0, vcc')
    a(f's_and_b32 s{S_T0}, s2, 7')
    a(f's_lshr_b32 s{S_T1}, s2, 3')
    a(f's_and_b32 s{S_SPLIT}, s{S_T1}, 3')
    a(f's_lshr_b32 s{S_T1}, s{S_T1}, 2')
    a(f's_lshl_b32 s{S_PFOFF}, s{S_T1}, 2')
    a(f's_and_b32 s{S_TILE}, s{S_T0}, 3')
    a(f's_lshl_b32 s{S_TILE}, s{S_TILE}, 3')
    a(f's_add_u32 s{S_TILE}, s{S_TILE}, s{S_T1}')
    a(f's_lshr_b32 s{S_T0}, s{S_T0}, 2')
    a(f's_lshl_b32 s{S_GRP}, s{S_T0}, 5')
    a(f's_add_u32 s{S_GRP}, s{S_GRP}, s{S_TILE}')
    a(f's_mul_i32 s{S_B125}, s{S_T0}, 125')
    ucst = []
    def late_setup():
        a(f's_lshl_b32 s{S_QB}, s{S_TILE}, 2')
        a(f's_add_u32 s{S_QB}, s{S_QB}, s{S_W}')
        a(f's_cmp_lt_u32 s{S_QB}, 125')
        a(f's_cselect_b32 s{S_VALID}, 0, 0x80000000')
        a(f's_min_u32 s{S_QB}, s{S_QB}, 124')
        a(f's_add_u32 s{S_QB}, s{S_QB}, s{S_B125}')
        a(f's_mul_i32 s{S_T1}, s{S_SPLIT}, 31')
        a(f's_cmp_lg_u32 s{S_SPLIT}, 0')
        a(f's_addc_u32 s{S_T1}, s{S_T1}, s{S_B125}')
        a(f's_cmp_lg_u32 s{S_SPLIT}, 0')
        a(f's_cselect_b32 s{S_CNT}, 29, 30')
        a(f's_lshl_b32 s{S_KOFF}, s{S_T1}, 15')
        a(f's_add_u32 s{S_VOFF}, s{S_KOFF}, {WS_VT}')
        if WS_XA: a(f's_add_u32 s{S_KOFF}, s{S_KOFF}, {WS_XA}')
        codepf()
    vm = VmQ()
    def emit(o, tag=None):
        a(o)
        if o.startswith('buffer_'): vm.issue(tag)
    def dma_ops(v0, v1, soff, sbase):
        ops = []
        for g in range(2):
            for i in range(4):
                pre = None
                if i == 0:
                    pre = f's_mov_b32 m0, s{sbase}' if g == 0 else f's_add_u32 m0, s{sbase}, 4096'
                ops.append((pre, f'buffer_load_dwordx4 v{v0 if g == 0 else v1}, {SRD}, s{soff} offen offset:{i*1024} sc1 lds'))
        return ops
    def emit_dma_now(tag, *args):
        for pre, op in dma_ops(*args):
            if pre: a(pre); a('s_nop 0')
            emit(op, tag)
    def xreduce(regs, op, tmp):
        for sw in ('v_permlane16_swap_b32', 'v_permlane32_swap_b32'):
            for i, r in enumerate(regs): a(f'v_mov_b32 v{tmp+i}, v{r}')
            if len(regs) < 3: a('s_nop 1')
            else: a('s_nop 0')
            for i, r in enumerate(regs): a(f'{sw} v{tmp+i}, v{r}')
            a('s_nop 1')
            for i, r in enumerate(regs): a(f'{op} v{r}, v{r}, v{tmp+i}')

    import k2z, sys
    a(f's_lshl_b32 s{S_W8K}, s{S_W}, 13')
    a(f'v_add_u32 v{V_DK0}, s{S_W8K}, v{V_L16}')
    a(f'v_add_u32 v{V_DK1}, 4096, v{V_DK0}')
    GN = 3 * TILE; GS = 584; CV = GN + 64 * GS; CS = 144; TB = CV + 20480
    S_VF = [42, 43, 49]; S_B10 = [50, 51, 45]; S_BT, S_RT = 63, 55
    S_CG = 64
    V_PL, V_PQ, V_HD = 26, 27, 28
    STL = [[112, 116], [120, 124], [164, 172]]
    def poll_ops(first_expr, ngrp, kind, dst, tag):
        pass
    def slowpoll(lab, dst, vo, so):
        slows.append((lab, dst, vo, so))
    slows = []
    def h_poll1():
        a(f's_lshr_b32 s{S_BT}, s{S_TILE}, 1')
        a(f'v_lshrrev_b32 v13, 3, v0')
        a(f's_sub_u32 s{S_T3}, s{S_BT}, 1')
        a(f'v_add_u32 v11, s{S_T3}, v13')
        a(f'v_med3_i32 v11, v11, 0, 15')
        a(f's_lshr_b32 s{S_T3}, s{S_KOFF}, 15')
        a(f's_sub_u32 s{S_T3}, s{S_T3}, s{S_B125}')
        a(f'v_cmp_lt_u32 vcc, 2, v13')
        a(f'v_and_b32 v13, 1, v13')
        a(f'v_add_u32 v13, s{S_T3}, v13')
        a(f'v_lshrrev_b32 v13, 3, v13')
        a(f'v_cndmask_b32 v11, v11, v13, vcc')
        a(f'v_and_b32 v13, 7, v0')
        a(f'v_lshl_add_u32 v11, v11, 3, v13')
        a(f'v_lshlrev_b32 v11, 7, v11')
        a(f's_and_b32 s{S_T3}, s{S_GRP}, 32')
        a(f's_lshl_b32 s{S_T3}, s{S_T3}, 9')
        a(f's_add_u32 s{S_T3}, s{S_T3}, {ZF + ZK}')
        emit(f'buffer_load_dword v{V_PL}, v11, {SRD}, s{S_T3} offen sc1', 'poll1')
    def chk(lab, dst, vo, so, tag):
        a(f's_waitcnt vmcnt({vm.need(tag)})')
        a(f'v_cmp_ne_u32 vcc, s{S_TAG}, v{dst}')
        a(f's_cbranch_vccnz {name}_{lab}s')
        a(f'{name}_{lab}k:')
        slows.append((lab, dst, vo, so))
    def h_loads1():
        chk('f1', V_PL, 11, S_T3, 'poll1')
        out = []
        for rnd in range(3):
            pre = [f's_lshl_b32 s{S_T4}, s{S_BT}, 3']
            if rnd < 2: pre.append(f's_add_u32 s{S_B10[rnd]}, s{S_W}, {4*rnd}')
            else: pre += [f's_cmp_lt_u32 s{S_W}, 2', f's_cselect_b32 s{S_T3}, 8, 4', f's_add_u32 s{S_B10[2]}, s{S_W}, s{S_T3}']
            pre += [f's_add_u32 s{S_T3}, s{S_T4}, s{S_B10[rnd]}', f's_sub_u32 s{S_T3}, s{S_T3}, 1', f's_cmp_lt_u32 s{S_T3}, 125',
                    f's_cselect_b32 s{S_VF[rnd]}, 1.0, 0', f's_cselect_b32 s{S_T3}, s{S_T3}, s{S_T4}', f's_add_u32 s{S_T3}, s{S_T3}, s{S_B125}',
                    f's_lshl_b32 s{S_T3}, s{S_T3}, 11', f's_add_u32 s{S_T3}, s{S_T3}, {WS_ST}']
            for h in range(2):
                out.append(pre + [(f'buffer_load_dwordx4 {vr(STL[rnd][h],4)}, v{V_L16}, {SRD}, s{S_T3} offen offset:{h*1024} sc1', 'st')]); pre = []
        pre = [f's_and_b32 s{S_PH}, s{S_W}, 1', f's_mul_i32 s{S_T3}, s{S_PH}, 9', f's_add_u32 s{S_T3}, s{S_T3}, s{S_T4}', f's_sub_u32 s{S_T3}, s{S_T3}, 1',
               f's_cmp_lt_u32 s{S_T3}, 125', f's_cselect_b32 s{S_T3}, s{S_T3}, s{S_T4}', f's_add_u32 s{S_T3}, s{S_T3}, s{S_B125}', f's_lshl_b32 s{S_T3}, s{S_T3}, 15',
               f's_lshr_b32 s{S_XCC}, s{S_W}, 1', f's_lshl1_add_u32 s{S_XCC}, s{S_CG}, s{S_XCC}', f's_lshl_b32 s{S_XCC}, s{S_XCC}, 11', f's_add_u32 s{S_T3}, s{S_T3}, s{S_XCC}',
               f's_xor_b32 s{S_XCC}, s{S_PH}, 1', f's_lshl_b32 s{S_XCC}, s{S_XCC}, 3', f's_add_u32 s{S_T3}, s{S_T3}, s{S_XCC}', f's_add_u32 s{S_T3}, s{S_T3}, {WS_G}']
        for ch in range(2):
            out.append(pre + [(f'buffer_load_dwordx2 {vr(V_HD+2*ch,2)}, v{V_L16}, {SRD}, s{S_T3} offen offset:{ch*1024} sc1', 'st')]); pre = []
        return h_k0() + out
    def h_k0():
        out = []
        first = [f's_mov_b32 s{S_KDMA}, s{S_W8K}']
        for pre, op in dma_ops(V_DK0, V_DK1, S_KOFF, S_KDMA):
            out.append(first + ([pre, 's_nop 0'] if pre else []) + [(op, 'K0')]); first = []
        pre = [f's_mul_i32 s{S_T4}, s{S_CG}, 20480', f's_mul_i32 s{S_XCC}, s{S_W}, 5120', f's_add_u32 s{S_T4}, s{S_T4}, s{S_XCC}',
               f's_add_u32 s{S_T4}, s{S_T4}, {WS_DWT}', f's_add_u32 m0, s{S_XCC}, {CV}', 's_nop 0']
        for i in range(5):
            if i == 4: pre = [f's_add_u32 s{S_T4}, s{S_T4}, 4096', f's_add_u32 m0, s{S_XCC}, {CV + 4096}', 's_nop 0']
            out.append(pre + [(f'buffer_load_dwordx4 v{V_L16}, {SRD}, s{S_T4} offen offset:{(i%4)*1024} sc1 lds', 'K0')]); pre = []
        return out
    def h_pollq():
        a(f's_lshr_b32 s{S_BT}, s{S_TILE}, 1')
        a(f's_lshr_b32 s{S_RT}, s{S_GRP}, 1')
        a(f's_mov_b32 s{S_PFS}, {f2h(1/512)}')
        assert hk[2] > hk[1]
        a(f'v_and_b32 v11, 7, v0')
        a(f'v_lshlrev_b32 v11, 7, v11')
        a(f's_lshl_b32 s{S_SLOW}, s{S_RT}, 10')
        a(f's_add_u32 s{S_SLOW}, s{S_SLOW}, {ZF + 2 * ZK}')
        emit(f'buffer_load_dword v{V_PQ}, v11, {SRD}, s{S_SLOW} offen sc1', 'pollq')
    assert hk[1] > -68
    def h_k1():
        out = []
        first = [f's_add_u32 s{S_KOFF}, s{S_KOFF}, {TILE}', f's_add_u32 s{S_KDMA}, s{S_KDMA}, {TILE}']
        for pre, op in dma_ops(V_DK0, V_DK1, S_KOFF, S_KDMA):
            out.append(first + ([pre, 's_nop 0'] if pre else []) + [(op, 'K1')]); first = []
        out[-1].append(f's_add_u32 s{S_KOFF}, s{S_KOFF}, {TILE}')
        return out
    def qload(f):
        pre = []
        if f == 0: pre = [f's_lshl_b32 s{S_T4}, s{S_QB}, 15', f's_add_u32 s{S_T4}, s{S_T4}, {WS_Q}']
        elif f % 4 == 0: pre = [f's_add_u32 s{S_T4}, s{S_T4}, 4096']
        return pre + [(f'buffer_load_dwordx4 {ar(4*f,4)}, v{V_L16}, {SRD}, s{S_T4} offen offset:{(f%4)*1024} sc1', ('Q', f))]
    def h_q():
        chk('fq', V_PQ, 11, S_SLOW, 'pollq')
        return [qload(f) for f in range(qearly)]
    assert hk[3] >= -15 and qearly <= -hk[3] - 1
    hooks = {hk[0]: h_poll1, hk[1]: h_loads1, hk[2]: h_pollq, -39: h_k1, hk[3]: h_q}
    flagf, p3slow = k2z.rg4(a, name, sys.modules[__name__], st, stamp, vm, hooks, slows, late_setup, **o2)
    AT = [[64, 68, 72, 76, 80, 84, 88, 92, 16, 20], [128, 132, 136, 140, 144, 148, 152, 156, 180, 188]]
    UACC = [192, 224]
    def gfrag(T, rb, ch): return (96 + 8 * rb + 4 * ch) if T == 0 else (160 + 16 * rb + 8 * ch)
    bg = []
    for f in range(qearly, 32): bg += qload(f)
    def bg_dma(tag, *args, **kw):
        for pre, op in dma_ops(*args, **kw):
            if pre: bg.append(pre); bg.append('s_nop 0')
            bg.append((op, tag))
    bgc = [0]
    def bgone():
        while bg:
            o = bg.pop(0)
            if isinstance(o, tuple):
                emit(*o); return
            a(o)
    def c(o, every=bg_pace):
        a(o); bgc[0] += 1
        if bgc[0] % every == 0: bgone()
    for _ in range(4): bgone()
    defer = o2.get('defer', 0)
    for idx in range(8 - defer, 8):
        base = UACC[idx >> 2] + 8 * (idx & 3); Z = 64
        for i in range(4): c(f'v_pk_mul_f32 {vr(Z+2*i,2)}, {vr(base+2*i,2)}, {vr(base+2*i,2)}')
        for i in range(4): c(f'v_pk_fma_f32 {vr(Z+2*i,2)}, {vr(Z+2*i,2)}, v[8:9], v[8:9] op_sel:[0,1,0] op_sel_hi:[1,1,0]')
        for i in range(4): c(f'v_pk_mul_f32 {vr(Z+2*i,2)}, {vr(Z+2*i,2)}, {vr(base+2*i,2)}')
        for i in range(8): c(f'v_exp_f32 v{Z+i}, v{Z+i}')
        for i in range(4): c(f'v_pk_add_f32 {vr(Z+2*i,2)}, {vr(Z+2*i,2)}, 1.0 op_sel_hi:[1,0]')
        for i in range(8): c(f'v_rcp_f32 v{Z+i}, v{Z+i}')
        for i in range(4): c(f'v_pk_mul_f32 {vr(base+2*i,2)}, {vr(base+2*i,2)}, {vr(Z+2*i,2)}')
    SC = 56
    a(f's_waitcnt vmcnt({vm.need("st")})')
    X = [STL[r][0] for r in range(3)]; Yr = [STL[r][1] for r in range(3)]
    for r in range(3):
        for i in range(4): c(f'v_add_f32 v{X[r]+i}, v{X[r]+i}, v{Yr[r]+i}')
    a(f'v_lshrrev_b32 v{V_T0}, 5, v0')
    a(f'v_bfe_u32 v{V_T1}, v0, 4, 1')
    for r in range(3):
        for i in (0, 2): a(f'v_permlane32_swap_b32 v{X[r]+i}, v{X[r]+i+1}')
    for r in range(3):
        for i in (0, 2): a(f'v_add_f32 v{X[r]+i}, v{X[r]+i}, v{X[r]+i+1}')
    a(f'v_lshl_add_u32 v{V_T0}, v{V_T1}, 1, v{V_T0}')
    a(f'v_and_b32 v{V_T1}, 7, v0')
    for r in range(3): a(f'v_permlane16_swap_b32 v{X[r]}, v{X[r]+2}')
    for r in range(3): a(f'v_add_f32 v{X[r]}, v{X[r]}, v{X[r]+2}')
    a(f'v_lshlrev_b32 v{V_T0}, 2, v{V_T0}')
    a(f'v_lshl_add_u32 v{V_T0}, v{V_T1}, 4, v{V_T0}')
    for r in range(3): a(f'v_mov_b32_dpp v{X[r]+1}, v{X[r]} row_ror:8 row_mask:0xf bank_mask:0xf')
    for r in range(3): c(f'v_mul_f32 v{X[r]}, {f2h(1/512)}, v{X[r]}')
    for r in range(3): c(f'v_mul_f32 v{X[r]+2}, v{X[r]}, v{X[r]}')
    for r in range(3): c(f'v_fma_f32 v{X[r]+1}, v{X[r]+1}, s{S_PFS}, -v{X[r]+2}')
    for r in range(3): c(f'v_max_f32 v{X[r]+1}, 0, v{X[r]+1}')
    for r in range(3): c(f'v_add_f32 v{X[r]+1}, {f2h(1e-5)}, v{X[r]+1}')
    for r in range(3): c(f'v_rsq_f32 v{X[r]+1}, v{X[r]+1}')
    for r in range(3):
        a(f's_lshl_b32 s{S_T0}, s{S_B10[r]}, 8')
        a(f's_add_u32 s{S_T0}, s{S_T0}, {TB}')
        a(f'v_add_u32 v{X[r]+3}, s{S_T0}, v{V_T0}')
    for r in range(3): c(f'v_mul_f32 v{X[r]+1}, s{S_VF[r]}, v{X[r]+1}')
    for r in range(3): c(f'v_mul_f32 v{X[r]}, -v{X[r]}, v{X[r]+1}')
    a('s_mov_b32 exec_lo, 0x00ff00ff')
    a('s_mov_b32 exec_hi, 0x00ff00ff')
    for r in range(3):
        a(f'ds_write_b32 v{X[r]+3}, v{X[r]+1}')
        a(f'ds_write_b32 v{X[r]+3}, v{X[r]} offset:128')
    a('s_mov_b64 exec, -1')
    A_NW, A_TR, A_HW, A_HT, A_BR, A_CW, A_CR = 5, 6, 8, 9, 11, 12, 15
    a(f'v_and_b32 v{V_T0}, 15, v0')
    a(f'v_lshrrev_b32 v{V_T1}, 4, v0')
    a(f'v_mul_u32_u24 v{A_HW}, {GS}, v{V_T0}')
    a(f'v_lshl_add_u32 v{A_HW}, v{V_T1}, 3, v{A_HW}')
    a(f's_lshl_b32 s{S_T0}, s{S_W}, 7')
    a(f's_add_u32 s{S_T0}, s{S_T0}, {GN}')
    a(f'v_add_u32 v{A_NW}, s{S_T0}, v{A_HW}')
    a(f's_lshr_b32 s{S_T2}, s{S_W}, 1')
    a(f's_mul_i32 s{S_T2}, s{S_T2}, {32*GS}')
    a(f's_mul_i32 s{S_T3}, s{S_PH}, {68*8}')
    a(f's_add_u32 s{S_T2}, s{S_T2}, s{S_T3}')
    a(f's_add_u32 s{S_T2}, s{S_T2}, {GN}')
    a(f'v_add_u32 v{A_HW}, s{S_T2}, v{A_HW}')
    a(f'v_lshlrev_b32 v{A_HT}, 4, v{V_T1}')
    a(f's_lshl_b32 s{S_T2}, s{S_W}, 9')
    a(f's_add_u32 s{S_T2}, s{S_T2}, {TB + 256}')
    a(f'v_add_u32 v{A_TR}, s{S_T2}, v{A_HT}')
    a(f's_mul_i32 s{S_T2}, s{S_PH}, {9*256 - 64}')
    a(f's_add_u32 s{S_T2}, s{S_T2}, {TB + 64}')
    a(f'v_add_u32 v{A_HT}, s{S_T2}, v{A_HT}')
    a(f'v_lshrrev_b32 v{A_CW}, 2, v0')
    a(f'v_and_b32 v{V_T0}, 3, v0')
    a(f'v_mul_u32_u24 v{A_BR}, {GS}, v{A_CW}')
    a(f'v_lshl_add_u32 v{A_BR}, v{V_T0}, 5, v{A_BR}')
    a(f'v_add_u32 v{A_BR}, s{S_T0}, v{A_BR}')
    a(f'v_and_b32 v{A_CW}, 3, v{A_CW}')
    a(f'v_lshl_add_u32 v{A_CW}, v{V_T1}, 3, v{A_CW}')
    a(f'v_mul_u32_u24 v{A_CW}, {CS}, v{A_CW}')
    a(f's_mul_i32 s{S_T2}, s{S_W}, {32*CS}')
    a(f's_add_u32 s{S_T2}, s{S_T2}, {CV}')
    a(f'v_add_u32 v{A_CW}, s{S_T2}, v{A_CW}')
    a(f'v_lshl_add_u32 v{A_CR}, v{V_T0}, 3, v{A_CW}')
    a(f'v_lshl_add_u32 v{A_CW}, v{V_T0}, 5, v{A_CW}')
    a('s_waitcnt lgkmcnt(0)')
    a('s_barrier')
    st(12)
    lq = LdsQ()
    a(f'v_add_u32 v{V_T0}, {CV}, v{V_L16}')
    twr = [f'ds_read_b128 {vr(AT[i//10][i%10],4)}, v{V_T0} offset:{i*1024}' for i in range(20)]
    units = [('h',)] + [(rb, hf) for rb in range(2) for hf in range(2)]
    def tread(n):
        t = 112 + 8 * (n % 2); u = units[n]
        ad, off = (A_HT, 0) if u[0] == 'h' else (A_TR, u[0] * 256 + u[1] * 64)
        a(f'ds_read_b128 {vr(t,4)}, v{ad} offset:{off}'); lq.issue(('t', n))
        a(f'ds_read_b128 {vr(t+4,4)}, v{ad} offset:{off + 128}'); lq.issue(('t', n))
    tread(0)
    for n, u in enumerate(units):
        if n + 1 < len(units): tread(n + 1)
        t = 112 + 8 * (n % 2)
        a(f's_waitcnt lgkmcnt({lq.need(("t", n))})')
        for _ in range(4): a(twr.pop(0)); lq.issue('tw')
        for T in range(1 if u[0] == 'h' else 2):
            src = lambda ch: (V_HD + 2 * ch) if u[0] == 'h' else gfrag(T, u[0], ch) + 2 * u[1]
            for ch in range(2):
                for i in range(2):
                    c(f'v_lshlrev_b32 v{SC+4*ch+2*i}, 16, v{src(ch)+i}')
                    c(f'v_and_b32 v{SC+4*ch+2*i+1}, 0xffff0000, v{src(ch)+i}')
            for ch in range(2):
                for i in range(2): c(f'v_pk_fma_f32 {vr(SC+4*ch+2*i,2)}, {vr(SC+4*ch+2*i,2)}, {vr(t+2*i,2)}, {vr(t+4+2*i,2)}')
            for ch in range(2):
                for i in range(2): c(f'v_cvt_pk_bf16_f32 v{src(ch)+i}, v{SC+4*ch+2*i}, v{SC+4*ch+2*i+1}')
                if u[0] == 'h': a(f'ds_write_b64 v{A_HW}, {vr(src(ch),2)} offset:{ch*16*GS}')
                else: a(f'ds_write_b64 v{A_NW}, {vr(src(ch),2)} offset:{(32*T + 16*ch)*GS + (4 + 8*u[0] + 4*u[1])*8}')
                lq.issue('w')
    a(f's_waitcnt vmcnt({vm.need(("st", "v"))}) lgkmcnt(0)')
    a('s_barrier')
    flagf(3)
    st(13)
    BR = [32, 96]
    def acc(gi, aa): return [[56, 60, 120, 124], [24, 28, 176, 184]][gi & 1][aa]
    def breads(gi): return [(f'ds_read_b64 {vr(BR[gi&1]+2*e,2)}, v{A_BR} offset:{gi*16*GS + e*8}', ('b', gi, e)) for e in range(12)]
    for o, t in breads(0): a(o); lq.issue(t)
    CF = 160; PKc = 176
    def mult(T):
        for fr in range(4):
            rb, rh = fr >> 1, fr & 1
            cc = CF + 4 * fr; u = UACC[T] + 16 * rb + 8 * rh; ub = 64 + 8 * (fr & 1)
            a(f's_waitcnt lgkmcnt({min(15, lq.need(("tr", T, fr)))})')
            for i in range(4):
                c(f'v_lshlrev_b32 v{ub+2*i}, 16, v{cc+i}')
                c(f'v_and_b32 v{ub+2*i+1}, 0xffff0000, v{cc+i}')
            for i in range(4): c(f'v_pk_mul_f32 {vr(ub+2*i,2)}, {vr(ub+2*i,2)}, {vr(u+2*i,2)}')
            for i in range(4): c(f'v_cvt_pk_bf16_f32 v{u+i}, v{ub+2*i}, v{ub+2*i+1}')
            ucst.append(f'buffer_store_dwordx4 {vr(u,4)}, v{3+rb}, {SRD}, s{58+rb} offen offset:{T*2048 + rh*1024} sc1')
    def finish(gi):
        T, ch = gi >> 1, gi & 1; ops = []
        for p in range(2):
            pk = acc(gi, 2 * p); b1 = acc(gi, 2 * p + 1)
            ops += [(f'v_cvt_pk_bf16_f32 v{pk}, v{pk}, v{pk+1}', None), (f'v_cvt_pk_bf16_f32 v{pk+1}, v{pk+2}, v{pk+3}', None),
                    (f'v_cvt_pk_bf16_f32 v{pk+2}, v{b1}, v{b1+1}', None), (f'v_cvt_pk_bf16_f32 v{pk+3}, v{b1+2}, v{b1+3}', None),
                    (f'ds_write_b128 v{A_CW}, {vr(pk,4)} offset:{ch*4*CS + 16*p}', 'cw')]
        if ch == 1:
            for fr in range(4):
                for jj in range(2): ops.append((f'ds_read_b64_tr_b16 {vr(CF+4*fr+2*jj,2)}, v{A_CR} offset:{jj*4*CS + fr*32}', ('tr', T, fr)))
        return ops
    for gi in range(4):
        T, ch = gi >> 1, gi & 1
        side = (breads(gi + 1) if gi < 3 else []) + (finish(gi - 1) if gi else [])
        if gi == 3: side = [('s_nop 0', None)] * 3 + side
        for dl in range(9):
            if dl % 3 == 0: a(f's_waitcnt lgkmcnt({min(15, lq.need(("b", gi, dl + 5)))})')
            ar_ = AT[T][5 * ch + dl // 2] + 2 * (dl & 1)
            for aa in range(4):
                d = vr(acc(gi, aa), 4)
                c(f'v_mfma_f32_4x4x4_16b_bf16 {d}, {vr(ar_,2)}, {vr(BR[gi&1]+2*(aa+dl),2)}, {d if dl else 0}', bg_pace // 2)
                if side:
                    o, t = side.pop(0); a(o)
                    if o.startswith('ds_'): lq.issue(t)
        assert not side
    mult(0)
    for o, t in finish(3):
        a(o)
        if o.startswith('ds_'): lq.issue(t)
    while bg: bgone()
    a(f's_sub_u32 s{S_T0}, s{S_VOFF}, {WS_VT}')
    a(f's_lshr_b32 s{S_T0}, s{S_T0}, 15')
    a(f's_sub_u32 s{S_T0}, s{S_T0}, s{S_B125}')
    a(f's_add_u32 s{S_T2}, s{S_T0}, s{S_CNT}')
    a(f's_add_u32 s{S_T2}, s{S_T2}, 1')
    a(f's_lshr_b32 s{S_T0}, s{S_T0}, 3')
    a(f's_lshr_b32 s{S_T2}, s{S_T2}, 3')
    a(f'v_lshrrev_b32 v{A_NW}, 3, v0')
    a(f'v_add_u32 v{A_NW}, s{S_T0}, v{A_NW}')
    a(f'v_min_u32 v{A_NW}, s{S_T2}, v{A_NW}')
    a(f'v_and_b32 v{V_T0}, 7, v0')
    a(f'v_lshl_add_u32 v{A_NW}, v{A_NW}, 3, v{V_T0}')
    a(f'v_lshlrev_b32 v{V_XO}, 7, v{A_NW}')
    a(f's_and_b32 s{S_T3}, s{S_GRP}, 32')
    a(f's_lshl_b32 s{S_T3}, s{S_T3}, 9')
    a(f's_add_u32 s{S_T3}, s{S_T3}, {ZF + 3 * ZK}')
    mult(1)
    emit(f'buffer_load_dword v{V_PFD}, v{V_XO}, {SRD}, s{S_T3} offen sc1', 'pollv')
    for op in ucst: emit(op, 'ucs')
    a(f'v_mov_b32 v127, v10')
    a(f's_add_u32 s{S_T1}, s{S_W}, s{S_SPLIT}')
    a(f's_and_b32 s{S_T1}, s{S_T1}, 3')
    a(f's_lshl_b32 s{S_T1}, s{S_T1}, 13')
    a(f'v_add_u32 v{V_DV0}, s{S_T1}, v{V_L16}')
    a(f'v_add_u32 v{V_DV1}, 4096, v{V_DV0}')
    a(f's_mov_b32 s{S_KDMA}, s{S_W8K}')
    a(f's_mov_b32 s{S_VRD}, {2*TILE}')
    st(1)
    if prefetch:
        a(f's_add_u32 s{S_PFOFF}, s{S_PFOFF}, s{S_W}')
        a(f's_and_b32 s{S_T1}, s{S_PFOFF}, 15')
        a(f's_lshl_b32 s{S_T1}, s{S_T1}, 11')
        a(f's_cmp_ge_u32 s{S_PFOFF}, 16')
        a(f's_cselect_b32 s{S_PFOFF}, {WS_VT - WS_XA - TILE}, 0')
        a(f's_add_u32 s{S_T1}, s{S_T1}, s{S_PFOFF}')
        a(f's_add_u32 s{S_T1}, s{S_T1}, {prefetch * TILE}')
        a(f'v_lshlrev_b32 v{V_PF}, 5, v0')
        a(f'v_add_u32 v{V_PF}, s{S_T1}, v{V_PF}')
    a(f'v_mov_b32 v{V_KA}, v{V_L16}')
    a(f'v_add_u32 v{V_VA}, s{S_VRD}, v{V_L16}')
    a(f'v_mov_b32 v{V_L0}, 0')
    a(f'v_mov_b32 v{V_L1}, 0')
    nround = -(-64 // NR)
    sizes = [64 // nround + (1 if i < 64 % nround else 0) for i in range(nround)]
    slotmap = [i for sz in sizes for i in range(sz)]
    assert LA + 1 <= min(sizes) and max(sizes) <= NR and V_RING + 4 * NR <= V_PF
    def slot(f): return V_RING + 4 * slotmap[f % 64]
    def rd(f):
        if f < 32 and chain: return f'ds_read_b128 {vr(slot(f),4)}, v{V_KA} offset:{((f & 15)*2 + (f >> 4))*1024}'
        if f < 32: return f'ds_read_b128 {vr(slot(f),4)}, v{V_KA} offset:{f*1024}'
        return f'ds_read_b128 {vr(slot(f),4)}, v{V_VA} offset:{(f-32)*1024}'
    def Sreg(kh, qh): return V_S + (kh * 2 + qh) * 4
    def mfmas(f, zero_c=False, first=False):
        order = (1, 0) if (snake and (f & 1)) else (0, 1)
        out = []
        if chain and f < 32:
            kh = f >> 4; s0 = f & 14; qh = (f & 1) ^ ((f >> 1) & 1); fb = f & ~1
            for k in range(2):
                s = s0 + k
                c = vr(Sreg(kh, qh), 4) if s else ('0' if zero_c else vr(V_NEGM + 4 * qh, 4))
                out.append(f'v_mfma_f32_16x16x32_bf16 {vr(Sreg(kh,qh),4)}, {vr(slot(fb+k),4)}, {ar((s*2+qh)*4,4)}, {c}')
            return out
        for qh in order:
            if f < 32:
                s, kh = f >> 1, f & 1
                c = vr(Sreg(kh, qh), 4) if s else ('0' if zero_c else vr(V_NEGM + 4 * qh, 4))
                out.append(f'v_mfma_f32_16x16x32_bf16 {vr(Sreg(kh,qh),4)}, {vr(slot(f),4)}, {ar((s*2+qh)*4,4)}, {c}')
            else:
                b = f - 32
                out.append(f'v_mfma_f32_16x16x32_bf16 {Oreg(b,qh)}, {vr(slot(f),4)}, {vr(V_P+4*qh,4)}, {0 if first else Oreg(b,qh)}')
        return out
    q = LdsQ()
    zero = []
    for f in range(LA):
        a(rd(f)); q.issue(f)
    a(f's_waitcnt vmcnt({vm.need(("Q", 31))})')
    v0ops = []
    for f in range(32):
        a(f's_waitcnt lgkmcnt({q.need(f | 1)})')
        for m in mfmas(f, zero_c=True):
            a(m)
        if f + LA < 32:
            a(rd(f + LA)); q.issue(f + LA)
        if f == vchk:
            chk('fv', V_PFD, V_XO, S_T3, 'pollv')
            a(f's_add_u32 s{S_VDMA}, s{S_W8K}, {2*TILE}')
            v0ops = dma_ops(V_DV0, V_DV1, S_VOFF, S_VDMA)
        if v0ops:
            pre, op = v0ops.pop(0)
            if pre: a(pre); a('s_nop 0')
            emit(op, 'V0')
    for pre, op in v0ops:
        if pre: a(pre); a('s_nop 0')
        emit(op, 'V0')
    a(f's_add_u32 s{S_VOFF}, s{S_VOFF}, {TILE}')
    a(f's_add_u32 s{S_VDMA}, s{S_VDMA}, {TILE}')
    a('s_nop 5')
    def max_all():
        ops = [f'v_max3_f32 v{V_MX}, v{V_S}, v{V_S+1}, v{V_S+2}']
        for i in range(6): ops.append(f'v_max3_f32 v{V_MX}, v{V_MX}, v{V_S+3+2*i}, v{V_S+4+2*i}')
        ops.append(f'v_max_f32 v{V_MX}, v{V_MX}, v{V_S+15}')
        return ops
    def rowmax2(d0, d1, tmp):
        for qh, dst in ((0, d0), (1, d1)):
            r0, r1 = Sreg(0, qh), Sreg(1, qh)
            a(f'v_max3_f32 v{dst}, v{r0}, v{r0+1}, v{r0+2}')
            a(f'v_max3_f32 v{dst}, v{dst}, v{r0+3}, v{r1}')
            a(f'v_max3_f32 v{dst}, v{dst}, v{r1+1}, v{r1+2}')
            a(f'v_max_f32 v{dst}, v{dst}, v{r1+3}')
        xreduce([d0, d1], 'v_max_f32', tmp)
    exp_ops = [f'v_exp_f32 v{V_E+i}, v{V_S+i}' for i in range(16)]
    sum_ops = [f'v_add_f32 v{V_L1 if (i >> 2) & 1 else V_L0}, v{V_L1 if (i >> 2) & 1 else V_L0}, v{V_E+i}' for i in range(16)]
    cvt_ops = []
    for qh in range(2):
        for kh in range(2):
            e = V_E + (kh * 2 + qh) * 4
            for i in range(2):
                cvt_ops.append(f'v_cvt_pk_bf16_f32 v{V_P+4*qh+2*kh+i}, v{e+2*i}, v{e+2*i+1}')
    rowmax2(V_F0, V_F1, 120)
    for qh, dst in ((0, V_F0), (1, V_F1)):
        for kh in range(2):
            for i in range(4): a(f'v_sub_f32 v{Sreg(kh,qh)+i}, v{Sreg(kh,qh)+i}, v{dst}')
        for i in range(4): a(f'v_sub_f32 v{V_NEGM+4*qh+i}, 0, v{dst}')
    for o in exp_ops: a(o)
    for o in zero: a(o)
    a(f'v_xor_b32 v{V_KA}, 0x8000, v{V_KA}')
    a(f's_lshl2_add_u32 s{S_FLO}, s{S_GRP}, s{S_W}')
    a(f's_lshl_b32 s{S_FLO}, s{S_FLO}, 9')
    a(f's_add_u32 s{S_FLO}, s{S_FLO}, {ZF_PART}')
    a(f'v_and_b32 v{V_FL}, 3, v0')
    a(f'v_lshlrev_b32 v{V_FL}, 7, v{V_FL}')
    a(f's_lshl_b32 s{S_T2}, s72, 7')
    a(f's_add_u32 s{S_T2}, s{S_T2}, {ZF + 4 * ZK}')
    a(f'v_mov_b32 v126, s{S_TAG}')
    a(f's_waitcnt vmcnt({vm.need("K1")})')
    a('s_barrier')
    st(2); st(8, True)
    if stamp: a('s_waitcnt lgkmcnt(0)')
    q = LdsQ()
    for f in range(LA):
        a(rd(f)); q.issue(f)

    L_loop = f'{name}_loop'
    rare = []
    border = list(range(8, 32)) + list(range(8))
    YB = 192
    stream = [('pv', b) for b in border] + [('yc', T, f) for T in range(4) for f in range(32)]
    NS = len(stream)
    WA = [V_VA, V_DV0, V_DV1, V_PF]
    def srd_(i):
        it = stream[i]
        if it[0] == 'pv': return f'ds_read_b128 {vr(slot(i),4)}, v{V_KA} offset:{it[1]*1024}'
        if chain and it[1]: return f'ds_read_b128 {vr(slot(i),4)}, v{WA[it[1]]} offset:{((it[2] & 15)*2 + (it[2] >> 4))*1024}'
        return f'ds_read_b128 {vr(slot(i),4)}, v{WA[it[1]]} offset:{it[2]*1024}'
    def ucload(f):
        ops = []
        if f % 4 == 0 and f: ops.append(f's_add_u32 s{S_UCO}, s{S_UCO}, 4096')
        ops.append((f'buffer_load_dwordx4 {ar(4*f,4)}, v{V_L16}, {SRD}, s{S_UCO} offen offset:{(f%4)*1024} sc1', ('uc', f)))
        return ops
    stubs = []
    class Dual:
        def __init__(self, op, tag, fast): self.op, self.tag, self.fast = op, tag, fast
    def em(o):
        if isinstance(o, Dual) and force_slow:
            emit(f'{o.op} sc1', o.tag); return
        if isinstance(o, Dual):
            lab = a.label(name + '_ds')
            a(f's_cbranch_vccnz {lab}')
            emit(f'{o.op} {o.fast}', o.tag)
            a(f'{lab}b:')
            stubs.append((lab, o.op))
            return
        if callable(o): o = o()
        if noyc and isinstance(o, tuple) and ((o[1] == 'x' and 'x' in noyc) or (isinstance(o[1], tuple) and o[1][0] in ('uc', 'wc') and o[1][0] in noyc)):
            vm.last[o[1]] = vm.last.get('dL', 0); return
        if isinstance(o, tuple): emit(*o)
        else: emit(o)
    nuc = [0]
    def body(last, first=False):
        tag = 'L' if last else ('F' if first else 'M')
        L_r1, L_r1b, L_r2, L_r2b = [f'{name}_{x}{tag}' for x in ('r1', 'r1b', 'r2', 'r2b')]
        rare.append((L_r1, L_r1b, L_r2, L_r2b))
        fill = [[] for _ in range(128)]
        cap = [CAP - 1 if p % 2 == 0 else CAP for p in range(128)]
        for p in range(128):
            if p % 2 == 1 and ((p + 1) // 2) % wait_every == 0: cap[p] -= 1
        cap[127] -= 3
        def put(pos, ops, cost):
            if not isinstance(ops, list): ops = [ops]
            while cap[pos] < cost: pos += 1
            cap[pos] -= cost
            fill[pos] += ops
            return pos
        if not last: bw = f's_waitcnt vmcnt({1 if prefetch else 0})'
        else: bw = lambda: f's_waitcnt vmcnt({vm.need("dL")})'
        pb = put(2 * bar_pos + 1, [bw] + ([] if 'nobar' in dbg and not last else ['s_barrier']), 2)
        assert pb < 2 * (64 - LA)
        if first:
            pf_ = put(2 * (32 - LA) - 5, [lambda: f's_waitcnt vmcnt({vm.need("V0")})', 's_barrier',
                                          f'buffer_store_dword v126, v127, {SRD}, s{S_T2} offen sc1'], 2)
            assert pf_ < 2 * (32 - LA)
        dk, dv = dma_ops(V_DK0, V_DK1, S_WCO if last else S_KOFF, S_KDMA), dma_ops(V_DV0, V_DV1, S_VOFF, S_VDMA)
        dm = dv + dk if last else dk + dv
        p = 0
        if last and not tailpf:
            p = put(p, (f'buffer_load_dword v{V_PFD}, v{V_FL}, {SRD}, s{S_FLO} offen sc1', 'poll'), dma_cost) + 1
            for c in range(npf, 3 if pfill else 0):
                p = put(p, f'buffer_load_dword v{V_T0}, v{V_PF}, {SRD}, s{S_PFS} offen', dma_cost) + 1
                p = put(p, f's_add_u32 s{S_PFS}, s{S_PFS}, 8192', 1) + 1
            if pfill: p = put(p, f'buffer_load_dword v{V_T0}, v{V_L16}, {SRD}, s{S_PFS} offen', dma_cost) + 1
        for pre, op in dm:
            if pre: p = put(p, pre, 1) + 1
            p = put(p, (op, 'dL'), dma_cost) + dma_gap
        if prefetch and not last:
            p = put(p, f'buffer_load_dword v{V_PFD}, v{V_PF}, s[96:99], s{S_PFS} offen {pf_flags}', dma_cost) + 1
        pdma = p
        assert pdma <= pb
        if last and not tailpf:
            p = put(56, [lambda: f's_waitcnt vmcnt({vm.need("poll")})', f'v_cmp_ne_u32 s[{S_T3}:{S_T3+1}], s{S_TAG}, v{V_PFD}'], 2) + 2
            p = put(p, [f's_cmp_eq_u64 s[{S_T3}:{S_T3+1}], 0', f's_cbranch_scc0 {name}_cfslow', f'{name}_cfok:'], 2) + 1
            p = put(p, f'v_cmp_ne_u32 s[{S_SLOW}:{S_SLOW+1}], s{S_XCC}, v{V_PFD}', 1) + 1
            assert p <= pdma + 4
        p = 68
        for o in max_all(): p = put(p, o, 1)
        p = put(p, f'v_cmp_lt_f32 vcc, {hex(THR)}, v{V_MX}', 1) + 1
        p = put(p + brgap, ([] if 'nobr1' in dbg else [f's_cbranch_vccnz {L_r1}']) + [f'{L_r1b}:'], 1) + 1
        for i, o in enumerate(exp_ops):
            if 'noexp' not in dbg: p = put(p, o, 2)
        p = 0
        for o in cvt_ops: p = put(p, o, 1)
        for o in sum_ops: p = put(p, o, 1)
        assert p < 60
        upd = [f's_add_u32 s{S_KOFF}, s{S_KOFF}, {TILE}', f's_add_u32 s{S_PFS}, s{S_PFS}, s{S_PFST}',
               f's_add_u32 s{S_VOFF}, s{S_VOFF}, {TILE}',
               f's_xor_b32 s{S_KDMA}, s{S_KDMA}, {TILE}',
               f's_add_u32 s{S_VDMA}, s{S_VDMA}, {TILE}',
               f's_cmp_ge_u32 s{S_VDMA}, {5*TILE}', f's_cselect_b32 s{S_T1}, {3*TILE}, 0',
               f's_sub_u32 s{S_VDMA}, s{S_VDMA}, s{S_T1}',
               f's_add_u32 s{S_VRD}, s{S_VRD}, {TILE}',
               f's_cmp_ge_u32 s{S_VRD}, {5*TILE}', f's_cselect_b32 s{S_VRD}, {2*TILE}, s{S_VRD}',
               f's_sub_u32 s{S_CNT}, s{S_CNT}, 1']
        if not last:
            p = pdma
            for o in upd: p = put(p, o, 1)
            put(2 * (32 - LA) + 1, f'v_xor_b32 v{V_KA}, 0x8000, v{V_KA}', 1)
            put(max(p + 1, 2 * (64 - LA) + 1), f'v_add_u32 v{V_VA}, s{S_VRD}, v{V_L16}', 1)
        else:
            p = 2 * (32 - LA) + 1
            for o in [f's_sub_u32 s{S_KOFF}, s{S_VDMA}, s{S_W8K}', f'v_add_u32 v{V_KA}, s{S_KOFF}, v{V_L16}',
                      f's_sub_u32 s{S_WB0}, s{S_KDMA}, s{S_W8K}', f's_xor_b32 s{S_WB1}, s{S_WB0}, {TILE}', f's_mov_b32 s{S_WB3}, s{S_VRD}',
                      f's_add_u32 s{S_WB2}, s{S_WB3}, s{S_KOFF}', f's_sub_u32 s{S_WB2}, {9*TILE}, s{S_WB2}']:
                p = put(p, o, 1) + 1
            p = max(pdma, 66)
            while p < 127 and nuc[0] < 32:
                fill[p] += ucload(nuc[0]); nuc[0] += 1
                p += uc_pace
        for f in range(64):
            if f % wait_every == 0:
                a(f's_waitcnt lgkmcnt({q.need(min(f + wait_every - 1, 63))})')
            mm = mfmas(f, first=first)
            a(mm[0])
            nf = f + LA
            if nf < 64 or not last:
                a(rd(nf % 64)); q.issue(nf % 64)
            else:
                a(srd_(nf - 64)); q.issue(('s', nf - 64))
            for o in fill[2 * f]: em(o)
            a(mm[1])
            for o in fill[2 * f + 1]: em(o)
        if 'nobr2' not in dbg: a(f's_cbranch_vccnz {L_r2}')
        a(f'{L_r2b}:')
    a(f's_lshl_b32 s{S_WCO}, s{S_SPLIT}, 17')
    a(f's_add_u32 s{S_WCO}, s{S_WCO}, {WS_WC}')
    a(f's_lshl_b32 s{S_UCO}, s{S_QB}, 15')
    a(f's_add_u32 s{S_UCO}, s{S_UCO}, {WS_UC}')
    a(f's_mov_b32 s{S_PFS}, s{S_KOFF}')
    a(f's_mov_b32 s{S_PFST}, {TILE}')
    a(f's_mov_b32 s{S_PH}, 0')
    NPH = 4 if tailpf else 0
    a(f's_sub_u32 s{S_CNT}, s{S_CNT}, {NPH}')
    make_srd(a, 96, S_WS, 0, WS_SIZE)
    a(f's_lshl_b32 s{S_PB}, s{S_GRP}, 2')
    a(f's_add_u32 s{S_PB}, s{S_PB}, s{S_SPLIT}')
    a(f's_lshl_b32 s{S_PB}, s{S_PB}, 2')
    a(f's_add_u32 s{S_PB}, s{S_PB}, s{S_W}')
    a(f's_lshl_b32 s{S_PB}, s{S_PB}, 15')
    a(f's_add_u32 s{S_PB}, s{S_PB}, {WS_PART}')
    body(False, first=True)
    a('.p2align 6')
    a(f'{L_loop}:')
    body(False)
    a(f's_cmp_lg_u32 s{S_CNT}, 0')
    a(f's_cbranch_scc1 {L_loop}')
    if tailpf == 1:
        a(f's_add_u32 s{S_PH}, s{S_PH}, 1')
        a(f's_mov_b32 s{S_CNT}, 1')
        a(f's_cmp_eq_u32 s{S_PH}, 5\n s_cbranch_scc1 {name}_ph5')
        a(f's_cmp_eq_u32 s{S_PH}, 4\n s_cbranch_scc1 {name}_ph4')
        a(f's_cmp_eq_u32 s{S_PH}, 3\n s_cbranch_scc1 {name}_ph3')
        a(f's_cmp_eq_u32 s{S_PH}, 2\n s_cbranch_scc1 {name}_ph2')
        a(f's_mov_b32 s96, s{S_X}\n s_mov_b32 s97, s{S_X+1}\n s_mov_b32 s98, 8192000')
        a(f'v_lshrrev_b32 v{V_PF}, 1, v0')
        a(f'v_lshlrev_b32 v{V_PF}, 10, v{V_PF}')
        a(f'v_and_b32 v{V_T0}, 1, v0')
        a(f'v_lshl_add_u32 v{V_PF}, v{V_T0}, 7, v{V_PF}')
        a(f's_lshl_b32 s{S_PFS}, s{S_QB}, 15')
        a(f's_lshl_b32 s{S_T1}, s{S_SPLIT}, 8')
        a(f's_add_u32 s{S_PFS}, s{S_PFS}, s{S_T1}')
        a(f's_branch {L_loop}')
        a(f'{name}_ph2:')
        a(f's_mov_b32 s96, s{S_WS}\n s_mov_b32 s97, s{S_WS+1}\n s_mov_b32 s98, {WS_SIZE}')
        a(f'v_and_b32 v{V_XO}, 7, v0')
        a(f'v_lshlrev_b32 v{V_XO}, 7, v{V_XO}')
        a(f'v_mov_b32 v{V_PF}, v{V_XO}')
        a(f's_add_u32 s{S_SLOW}, s{S_SLOW}, {2 * ZK}')
        a(f's_mov_b32 s{S_PFS}, s{S_SLOW}')
        a(f's_branch {L_loop}')
        a(f'{name}_ph3:')
        a('s_waitcnt vmcnt(0)')
        a(f'v_cmp_ne_u32 s[{S_T3}:{S_T3+1}], s{S_TAG}, v{V_PFD}')
        a(f'v_lshlrev_b32 v{V_PF}, 7, v0')
        a(f's_lshl_b32 s{S_PFS}, s{S_SPLIT}, 13')
        a(f's_add_u32 s{S_PFS}, s{S_PFS}, s{S_UCO}')
        a('s_nop 1')
        a(f's_cmp_eq_u64 s[{S_T3}:{S_T3+1}], 0')
        a(f's_cbranch_scc0 {name}_cfslow')
        a(f'{name}_cfok:')
        a(f's_branch {L_loop}')
        a(f'{name}_ph4:')
        a(f'v_lshlrev_b32 v{V_PF}, 6, v0')
        a(f's_and_b32 s{S_PFS}, s{S_TILE}, 7')
        a(f's_lshl_b32 s{S_PFS}, s{S_PFS}, 2')
        a(f's_add_u32 s{S_PFS}, s{S_PFS}, s{S_W}')
        a(f's_lshl_b32 s{S_PFS}, s{S_PFS}, 12')
        a(f's_add_u32 s{S_PFS}, s{S_PFS}, s{S_WCO}')
        a(f's_branch {L_loop}')
        a(f'{name}_ph5:')
    if tailpf == 2:
        a(f's_add_u32 s{S_PH}, s{S_PH}, 1')
        a(f's_mov_b32 s{S_CNT}, 1')
        a(f's_cmp_eq_u32 s{S_PH}, 5\n s_cbranch_scc1 {name}_ph5')
        a(f's_cmp_eq_u32 s{S_PH}, 4\n s_cbranch_scc1 {name}_ph4')
        a(f's_cmp_eq_u32 s{S_PH}, 3\n s_cbranch_scc1 {name}_ph3')
        a(f's_cmp_eq_u32 s{S_PH}, 2\n s_cbranch_scc1 {name}_ph2')
        a(f'v_and_b32 v{V_XO}, 7, v0')
        a(f'v_lshlrev_b32 v{V_XO}, 7, v{V_XO}')
        a(f's_add_u32 s{S_SLOW}, s{S_SLOW}, {2 * ZK}')
        a(f'buffer_load_dword v124, v{V_XO}, {SRD}, s{S_SLOW} offen sc1')
        if tlb:
            a(f'v_lshlrev_b32 v125, 10, v{V_FL}')
            a(f's_lshl_b32 s{S_T1}, s{S_GRP}, 19')
            a(f's_add_u32 s{S_T1}, s{S_T1}, {WS_PART + 28672}')
            a(f'buffer_load_dword v126, v125, {SRD}, s{S_T1} offen sc1')
            a(f's_lshl_b32 s{S_T1}, s{S_QB}, 15')
            a(f'v_mov_b32 v125, 0')
            a(f'buffer_load_dword v126, v125, {SRO}, s{S_T1} offen sc1')
        a(f's_branch {L_loop}')
        a(f'{name}_ph2:')
        a(f'v_mov_b32 v{V_PFD}, v124' if False else 's_nop 0')
        a(f'v_cmp_ne_u32 s[{S_T3}:{S_T3+1}], s{S_TAG}, v124')
        a(f'v_lshrrev_b32 v125, 1, v0')
        a(f'v_lshlrev_b32 v125, 10, v125')
        a(f'v_and_b32 v{V_T0}, 1, v0')
        a(f'v_lshl_add_u32 v125, v{V_T0}, 7, v125')
        a(f's_lshl_b32 s{S_T2}, s{S_QB}, 15')
        a(f's_lshl_b32 s{S_T1}, s{S_SPLIT}, 8')
        a(f's_add_u32 s{S_T1}, s{S_T1}, s{S_T2}')
        a(f'buffer_load_dword v126, v125, {SRX}, s{S_T1} offen')
        a(f's_cmp_eq_u64 s[{S_T3}:{S_T3+1}], 0')
        a(f's_cbranch_scc0 {name}_cfslow')
        a(f'{name}_cfok:')
        a(f's_branch {L_loop}')
        a(f'{name}_ph3:')
        a(f'v_lshlrev_b32 v125, 7, v0')
        a(f's_lshl_b32 s{S_T1}, s{S_SPLIT}, 13')
        a(f's_add_u32 s{S_T1}, s{S_T1}, s{S_UCO}')
        a(f'buffer_load_dword v126, v125, {SRD}, s{S_T1} offen sc1')
        a(f's_branch {L_loop}')
        a(f'{name}_ph4:')
        a(f'v_lshlrev_b32 v125, 6, v0')
        a(f's_and_b32 s{S_T1}, s{S_TILE}, 7')
        a(f's_lshl2_add_u32 s{S_T1}, s{S_T1}, s{S_W}')
        a(f's_lshl_b32 s{S_T1}, s{S_T1}, 12')
        a(f's_add_u32 s{S_T1}, s{S_T1}, s{S_WCO}')
        a(f'buffer_load_dword v126, v125, {SRD}, s{S_T1} offen sc1')
        a(f'v_bfrev_b32 v{V_PF}, 1')
        a(f's_branch {L_loop}')
        a(f'{name}_ph5:')
    st(3); st(9, True)
    if stamp: a('s_waitcnt lgkmcnt(0)')
    body(True)
    st(15)
    if stamp: a('s_waitcnt lgkmcnt(0)')
    def smf(i):
        it = stream[i]; out = []
        if chain and it[0] == 'yc' and it[1]:
            T, f = it[1], it[2]; ch = f >> 4; qh = (f & 1) ^ ((f >> 1) & 1)
            d = vr(YB + 8 * (2 * T + ch) + 4 * qh, 4)
            for k in range(2):
                s = (f & 14) + k
                out.append(f'v_mfma_f32_16x16x32_bf16 {d}, {vr(slot((i & ~1) + k),4)}, {ar((s*2+qh)*4,4)}, {d if s or xinit else 0}')
            return out
        for qh in ((1, 0) if (snake and (i & 1)) else (0, 1)):
            if it[0] == 'pv':
                out.append(f'v_mfma_f32_16x16x32_bf16 {Oreg(it[1],qh)}, {vr(slot(i),4)}, {vr(V_P+4*qh,4)}, {Oreg(it[1],qh)}')
            else:
                T, f = it[1], it[2]; s, ch = f >> 1, f & 1
                d = vr(YB + 8 * (2 * T + ch) + 4 * qh, 4)
                out.append(f'v_mfma_f32_16x16x32_bf16 {d}, {vr(slot(i),4)}, {ar((s*2+qh)*4,4)}, {d if s or xinit else 0}')
        return out
    a(f's_mov_b64 vcc, s[{S_SLOW}:{S_SLOW+1}]' if not force_slow else 's_mov_b64 vcc, -1')
    for o in cvt_ops: a(o)
    a(f's_lshl_b32 s{S_T0}, s{S_GRP}, 2')
    a(f'v_add_u32 v{WA[0]}, s{S_WB0}, v{V_L16}')
    pend = [(0, o, 1) for o in sum_ops]
    for i, sb in enumerate((S_WB1, S_WB2, S_WB3)): pend.append((0, f'v_add_u32 v{WA[i+1]}, s{sb}, v{V_L16}', 1))
    rot = 0
    for qd in range(1, 4):
        hdr = [f's_add_u32 s{S_PO}, s{S_PB}, {(qd-1)*8192}']
        for gm in range(4):
            for qh in range(2):
                b0 = 8 * qd + 2 * gm
                ready = 2 * (border.index(b0 + 1) + 1) + 6
                idx = gm * 2 + qh
                if idx == 0:
                    for h in hdr: pend.append((0, h, 1))
                if idx == 4: pend.append((ready, f's_add_u32 s{S_PO}, s{S_PO}, 4096', 1))
                tb = V_S + 8 * (rot % 2); pk = V_E + 4 * (rot % 4); rot += 1
                srcs = []
                for b in range(2):
                    for r in range(4):
                        o = Obase(b0 + b, qh) + r
                        if qd == 1: srcs.append(o)
                        else:
                            pend.append((ready, f'v_accvgpr_read_b32 v{tb+4*b+r}, a{o}', 1)); srcs.append(tb + 4 * b + r)
                for r in range(4): pend.append((ready, f'v_cvt_pk_bf16_f32 v{pk+r}, v{srcs[2*r]}, v{srcs[2*r+1]}', 1))
                pend.append((ready, Dual(f'buffer_store_dwordx4 {vr(pk,4)}, v{V_L16}, {SRD}, s{S_PO} offen offset:{(idx%4)*1024}', 'part', fast_st), 2))
    def stats_block():
        xreduce([V_L0, V_L1], 'v_add_f32', 124)
        a(f'v_mov_b32 v120, v{V_L0}')
        a(f'v_sub_f32 v121, 0, v{V_NEGM}')
        a(f'v_mov_b32 v122, v{V_L1}')
        a(f'v_sub_f32 v123, 0, v{V_NEGM+4}')
        a(f's_add_u32 s{S_T1}, s{S_PB}, {3*8192}')
        em(Dual(f'buffer_store_dwordx4 v[120:123], v{V_L16}, {SRD}, s{S_T1} offen', 'part', fast_st))
    XV = V_P
    def x_setup():
        a(f'v_lshrrev_b32 v{V_T0}, 4, v0')
        a(f'v_and_b32 v{V_T1}, 15, v0')
        a(f'v_xor_b32 v{V_T2}, v{V_T0}, v{V_T1}')
        a(f'v_lshlrev_b32 v{V_T2}, 4, v{V_T2}')
        a(f'v_lshl_add_u32 v{XV}, v{V_T0}, 10, v{V_T2}')
        for i in range(1, 4): a(f'v_xor_b32 v{XV+i}, {i*64}, v{XV}')
        a(f's_add_u32 s{S_KOFF}, s{S_KOFF}, s{S_W8K}')
        a(f'v_lshl_add_u32 v{XV+4}, v{V_T1}, 8, v{V_T2}')
        a(f'v_add_u32 v{XV+4}, s{S_KOFF}, v{XV+4}')
        for i in range(1, 4): a(f'v_xor_b32 v{XV+4+i}, {i*64}, v{XV+4}')
        a(f'v_add_u32 v{V_XO}, s{S_KOFF}, v{V_L16}')
        a(f's_lshl_b32 s{S_T4}, s{S_QB}, 15')
        a(f's_lshl_b32 s{S_T1}, s{S_SPLIT}, 8')
        a(f's_add_u32 s{S_T4}, s{S_T4}, s{S_T1}')
    def wc_dma(T):
        out = []
        first = [f's_add_u32 s{S_WCO}, s{S_WCO}, {TILE}', f's_add_u32 s{S_T2}, s{(S_WB0, S_WB1, S_WB2, S_WB3)[T]}, s{S_W8K}']
        for pre, op in dma_ops(V_DK0, V_DK1, S_WCO, S_T2):
            g = first; first = []
            if pre: g += [pre, 's_nop 0']
            out.append(g + [(op, ('wc', T))])
        return out
    dq = [ucload(f) for f in range(nuc[0], 32)]
    def xdma():
        return [[f's_add_u32 m0, s{S_KOFF}, {k*1024}', f's_add_u32 s{S_T1}, s{S_T4}, {k*4096}',
                 (f'buffer_load_dwordx4 v{XV+(k&3)}, {SRX}, s{S_T1} offen lds', 'x')] for k in range(8)]
    def pop():
        _, op, c = pend.pop(0); em(op)
        if isinstance(op, Dual):
            for _ in range(ld_per_st):
                if dq:
                    for o in dq.pop(0): em(o)
        return c
    lim = [64]
    def run(i0, i1, every=0):
        for i in range(i0, i1):
            it = stream[i]; w = []
            if it[0] == 'yc' and it[1] == 0 and it[2] % 2 == 0: w.append(f'vmcnt({min(63, vm.need(("uc", it[2] | 1)))})')
            if i % 2 == 0: w.append(f'lgkmcnt({min(15, q.need(("s", min(i + 1, NS - 1))))})')
            if w: a('s_waitcnt ' + ' '.join(w))
            mm = smf(i)
            for h in range(2):
                pos = 2 * i + h
                a(mm[h])
                budget = pv_budget
                if h == 0 and i + LA < NS:
                    nx = stream[i + LA]
                    if nx[0] == 'yc' and nx[2] == 0 and nx[1] in (1, 2):
                        a(f's_waitcnt vmcnt({min(63, vm.need(("wc", 1 if nx[1] == 1 else 3)))})')
                        a('s_barrier')
                    a(srd_(i + LA)); q.issue(('s', i + LA)); budget -= 1
                while pend and pend[0][0] <= pos and budget > 0: budget -= pop()
                if every and dq and pos % every == 1:
                    for o in dq.pop(0): em(o)
    run(0, 32)
    a('s_barrier')
    x_setup()
    if xinit:
        for g in xdma():
            for o in g: em(o)
    while pend: pop()
    stats_block()
    dq += wc_dma(1) + wc_dma(2) + wc_dma(3)
    while len(dq) > 24 - flag_after:
        for o in dq.pop(0): em(o)
    st(4)
    a(f's_lshl_b32 s{S_T3}, s{S_SPLIT}, 7')
    a(f's_add_u32 s{S_T3}, s{S_T3}, s{S_FLO}')
    a(f'v_mov_b32 v{V_T0}, 0\n v_mov_b32 v{V_T1}, s{S_TAG}')
    a(f's_lshl_b32 s{S_CNT}, 1, s{S_SPLIT}')
    a('s_mov_b64 exec, 1')
    a(f's_waitcnt vmcnt({vm.need("part")})')
    em(Dual(f'buffer_store_dword v{V_T1}, v{V_T0}, {SRD}, s{S_T3} offen offset:4', None, ''))
    a('s_mov_b64 exec, -1')
    st(5)
    if stamp: a('s_waitcnt lgkmcnt(0)')
    if xinit:
        for _ in range(xi_pre):
            for o in dq.pop(0): em(o)
        for idx in range(8):
            gm, qh = idx >> 1, idx & 1
            a(f'ds_read_b128 {vr(V_S+4*idx,4)}, v{XV+4+gm} offset:{qh*4096}'); q.issue(('x', idx))
        for idx in range(8):
            gm, qh = idx >> 1, idx & 1
            a(f's_waitcnt lgkmcnt({q.need(("x", idx))})')
            for i in range(4):
                y = YB + 8 * (2 * gm + (i >> 1)) + 4 * qh + 2 * (i & 1)
                a(f'v_lshlrev_b32 v{y}, 16, v{V_S+4*idx+i}')
                a(f'v_and_b32 v{y+1}, 0xffff0000, v{V_S+4*idx+i}')
        a('s_nop 1')
    poll = f'buffer_load_dword v{V_PFD}, v{V_FL}, {SRD}, s{S_FLO} offen offset:4 sc1'
    dq.insert(min(max(0, poll_after - (xi_pre if xinit else 0)), len(dq)), [(poll, 'poll')])
    STR = [56, 60, 124]
    def getmask(w):
        a(f's_waitcnt vmcnt({w})')
        a(f'v_cmp_eq_u32 vcc, s{S_TAG}, v{V_PFD}')
        a('s_nop 3')
        a(f's_and_b32 s{S_PFS}, vcc_lo, 15')
        a(f's_andn2_b32 s{S_PFS}, s{S_PFS}, s{S_CNT}')
        a(f's_or_b32 s{S_CNT}, s{S_CNT}, s{S_PFS}')
    def slot_hdr(k):
        return [f's_sub_u32 s{S_T1}, s{S_SPLIT}, {k+1}', f's_and_b32 s{S_T1}, s{S_T1}, 3', f's_bitcmp1_b32 s{S_PFS}, s{S_T1}']
    def slot_adr():
        return [f's_add_u32 s{S_T1}, s{S_T1}, s{S_T0}', f's_lshl_b32 s{S_T1}, s{S_T1}, 2', f's_add_u32 s{S_T1}, s{S_T1}, s{S_W}',
                f's_lshl_b32 s{S_PO}, s{S_T1}, 15', f's_add_u32 s{S_T1}, s{S_PO}, {WS_PART + 3*8192}']
    def slot_loads(k, vo):
        out = [[f'buffer_load_dwordx4 {vr(STR[k],4)}, v{vo}, {SRD}, s{S_T1} offen sc1']]
        for h4 in range(2):
            for i in range(4):
                pre = [f's_add_u32 s{S_T1}, s{S_PO}, {WS_PART + k*8192 + h4*4096}'] if i == 0 else []
                dst = vr(V_S + (h4*4+i)*4, 4) if (xinit and k == 0) else ar(128+(k*8+h4*4+i)*4,4)
                out.append(pre + [f'buffer_load_dwordx4 {dst}, v{vo}, {SRD}, s{S_T1} offen offset:{i*1024} sc1'])
        return out
    def check():
        getmask(0)
        for k in range(3):
            lab = a.label(name + '_ck')
            for o in slot_hdr(k): a(o)
            a(f's_cbranch_scc0 {lab}')
            for o in slot_adr(): a(o)
            for g in slot_loads(k, V_L16):
                for o in g: a(o)
            a(f'{lab}:')
    run(32, chk_at, every=2)
    assert not dq
    st(20)
    if stamp: a('s_waitcnt lgkmcnt(0)')
    getmask(vm.need('poll'))
    for k in range(3):
        first = slot_hdr(k) + [f's_cselect_b32 s{S_PH}, 0, 0x80000000', f'v_or_b32 v{V_T2}, s{S_PH}, v{V_L16}'] + slot_adr()
        for g in slot_loads(k, V_T2):
            dq.append(first + g); first = []
    dq += ([] if xinit else xdma()) + [[poll]]
    run(chk_at, NS, every=r_pace)
    assert not dq, len(dq)
    st(21)
    if not xinit:
        a(f's_waitcnt vmcnt({vm.need("x")})')
        st(22)
        if stamp: a('s_waitcnt lgkmcnt(0)')
        for idx in range(8):
            gm, qh = idx >> 1, idx & 1
            a(f'ds_read_b128 {vr(V_S+4*idx,4)}, v{XV+4+gm} offset:{qh*4096}')
        a('s_nop 3')
        for idx in range(8):
            gm, qh = idx >> 1, idx & 1
            xb = V_S + 4 * idx
            a(f's_waitcnt lgkmcnt({7-idx})')
            for i in range(4):
                a(f'v_lshlrev_b32 v{64+2*i}, 16, v{xb+i}')
                a(f'v_and_b32 v{64+2*i+1}, 0xffff0000, v{xb+i}')
            for i in range(4):
                y = YB + 8 * (2 * gm + (i >> 1)) + 4 * qh + 2 * (i & 1)
                a(f'v_pk_add_f32 {vr(y,2)}, {vr(y,2)}, {vr(64+2*i,2)}')
    st(23)
    a(f'{name}_spin:')
    check()
    a(f's_cmp_eq_u32 s{S_CNT}, 15')
    a(f's_cbranch_scc1 {name}_got')
    a(poll)
    a(f's_branch {name}_spin')
    a(f'{name}_got:')
    st(6)
    a('s_waitcnt vmcnt(0)')
    st(24)
    allst = [120] + STR
    for qh in range(2):
        t = V_T0 + qh
        a(f'v_max3_f32 v{t}, v{allst[0]+2*qh+1}, v{allst[1]+2*qh+1}, v{allst[2]+2*qh+1}')
        a(f'v_max_f32 v{t}, v{t}, v{allst[3]+2*qh+1}')
    for qh in range(2):
        for b in allst: a(f'v_sub_f32 v{b+2*qh+1}, v{b+2*qh+1}, v{V_T0+qh}')
    for qh in range(2):
        for b in allst: a(f'v_exp_f32 v{b+2*qh+1}, v{b+2*qh+1}')
    for qh in range(2):
        a(f'v_mul_f32 v{V_T0+qh}, v{allst[0]+2*qh}, v{allst[0]+2*qh+1}')
    for b in allst[1:]:
        for qh in range(2): a(f'v_fmac_f32 v{V_T0+qh}, v{b+2*qh}, v{b+2*qh+1}')
    for qh in range(2): a(f'v_rcp_f32 v{V_T0+qh}, v{V_T0+qh}')
    a('s_nop 0')
    for qh in range(2):
        for b in allst: a(f'v_mul_f32 v{b+2*qh+1}, v{b+2*qh+1}, v{V_T0+qh}')
    for i in range(4): a(f'v_or_b32 v{XV+i}, s{S_VALID}, v{XV+i}')
    for qh in range(2):
        for gm in range(4):
            idx = gm * 2 + qh
            ys = [YB + 8 * (2 * gm + (i >> 1)) + 4 * qh + 2 * (i & 1) for i in range(4)]
            for i in range(4):
                a(f'v_pk_fma_f32 {vr(ys[i],2)}, {vr(ys[i]-64,2)}, {vr(120+2*qh,2)}, {vr(ys[i],2)} op_sel:[0,1,0] op_sel_hi:[1,1,1]')
            for k in range(3):
                ub = 64 + 12 * k
                src = ub + 8
                if xinit and k == 0: src = V_S + 4 * idx
                else:
                    for i in range(4): a(f'v_accvgpr_read_b32 v{ub+8+i}, a{128+(k*8+idx)*4+i}')
                for i in range(4):
                    a(f'v_lshlrev_b32 v{ub+2*i}, 16, v{src+i}')
                    a(f'v_and_b32 v{ub+2*i+1}, 0xffff0000, v{src+i}')
                for i in range(4):
                    a(f'v_pk_fma_f32 {vr(ys[i],2)}, {vr(ub+2*i,2)}, {vr(STR[k]+2*qh,2)}, {vr(ys[i],2)} op_sel:[0,1,0] op_sel_hi:[1,1,1]')
            ob = 100 + 4 * (gm & 1)
            for i in range(4): a(f'v_cvt_pk_bf16_f32 v{ob+i}, v{ys[i]}, v{ys[i]+1}')
            a(f'ds_write_b128 v{XV+4+gm}, {vr(ob,4)} offset:{qh*4096}')
            if qh == 1 and gm == 0:
                a('s_waitcnt lgkmcnt(1)')
                for i in range(4):
                    a(f's_add_u32 s{S_T1}, s{S_T4}, {i*4096}')
                    a(f'buffer_store_dwordx4 {vr(128+8*i,4)}, v{XV+i}, {SRO}, s{S_T1} offen {out_flags}')
        for i in range(4): a(f'ds_read_b128 {vr(128+8*i+4*qh,4)}, v{V_XO} offset:{(4*qh+i)*1024}')
    for i in range(4):
        a(f's_add_u32 s{S_T1}, s{S_T4}, {(4+i)*4096}')
        a(f's_waitcnt lgkmcnt({3-i})')
        a(f'buffer_store_dwordx4 {vr(128+8*i+4,4)}, v{XV+i}, {SRO}, s{S_T1} offen {out_flags}')
    if stamp:
        a('s_waitcnt vmcnt(0)')
        st(7)
        a('s_waitcnt lgkmcnt(0)')
        a(f's_cmp_lg_u32 s{S_W}, 0')
        a(f's_cbranch_scc1 {name}_end')
        a(f's_lshl_b32 s{S_T1}, s2, 7')
        a(f's_add_u32 s{S_T1}, s{S_T1}, {WS_STAMP}')
        for i in range(16): a(f'v_mov_b32 v{16+2*i}, s{80+i}\n v_mov_b32 v{17+2*i}, 0')
        a(f'v_mov_b32 v{V_T0}, 0')
        a('s_mov_b64 exec, 1')
        for i in range(8):
            a(f'buffer_store_dwordx4 {vr(16+4*i,4)}, v{V_T0}, {SRD}, s{S_T1} offen offset:{16*i}')
        if dbgout:
            a(f's_cmp_lg_u32 s2, 0\n s_cbranch_scc1 {name}_end')
            a('s_load_dwordx2 s[4:5], s[0:1], 80')
            a(f's_mov_b32 s{S_T1}, {WS_STAMP + 131072}')
            a(f'buffer_load_dwordx4 v[48:51], v{V_T0}, {SRD}, s{S_T1} offen sc1')
            a(f's_mov_b32 s{S_T1}, {WS_STAMP + 65536}')
            a(f'buffer_load_dwordx4 v[52:55], v{V_T0}, {SRD}, s{S_T1} offen sc1')
            a(f'buffer_load_dwordx4 v[56:59], v{V_T0}, {SRD}, s{S_T1} offen offset:16 sc1')
            a('s_waitcnt vmcnt(0) lgkmcnt(0)')
            a('s_sub_u32 s12, s4, 0\n s_subb_u32 s13, s5, 0\n s_mov_b32 s14, 256\n s_mov_b32 s15, 0x20000')
            src = [50, 52, 54, 56, 58, 16, 18, 20, 22, 30]
            for i, r in enumerate(src): a(f'v_sub_u32 v{64+i}, v{r}, v48')
            for i in range(3): a(f'buffer_store_dwordx4 {vr(64+4*i,4)}, v{V_T0}, s[12:15], 0 offen offset:{16*i}')
            if spin is not None:
                ra, rb = spin
                a(f'v_sub_u32 v80, v{rb}, v{ra}')
                a('v_add_u32 v80, 2000, v80')
                a('v_add_u32 v80, v30, v80')
                a('s_nop 1')
                a('v_readfirstlane_b32 s20, v80')
                a(f'{name}_sp:')
                a('s_memrealtime s[22:23]')
                a('s_waitcnt lgkmcnt(0)')
                a('s_sub_u32 s21, s20, s22')
                a('s_cmp_gt_i32 s21, 0')
                a(f's_cbranch_scc1 {name}_sp')
    a(f'{name}_end:')
    a('s_endpgm')
    p3slow()
    for lab, dst, vo, so in slows:
        a(f'{name}_{lab}s:')
        a(f's_sleep {slp}')
        a(f'buffer_load_dword v{dst}, v{vo}, {SRD}, s{so} offen sc1')
        a('s_waitcnt vmcnt(0)')
        a(f'v_cmp_ne_u32 vcc, s{S_TAG}, v{dst}')
        a(f's_cbranch_vccnz {name}_{lab}s')
        a(f's_branch {name}_{lab}k')
    for lab, op in stubs:
        a(f'{lab}:')
        a(f'{op} sc1')
        a(f's_branch {lab}b')
    a(f'{name}_cfslow:')
    a(f's_sleep {slp}')
    a(f'buffer_load_dword v{V_PFD}, v{V_XO}, {SRD}, s{S_SLOW} offen sc1')
    a('s_waitcnt vmcnt(0)')
    a(f'v_cmp_ne_u32 s[{S_T3}:{S_T3+1}], s{S_TAG}, v{V_PFD}')
    a('s_nop 3')
    a(f's_cmp_eq_u64 s[{S_T3}:{S_T3+1}], 0')
    a(f's_cbranch_scc0 {name}_cfslow')
    a(f's_branch {name}_cfok')
    for (L_r1, L_r1b, L_r2, L_r2b) in rare:
        a(f'{L_r1}:')
        rowmax2(V_T1, V_T2, 120)
        for qh, dst in ((0, V_T1), (1, V_T2)):
            a(f'v_max_f32 v{dst}, 0, v{dst}')
            fr = V_F1 if qh else V_F0
            a(f'v_sub_f32 v{fr}, 0, v{dst}')
            a(f'v_exp_f32 v{fr}, v{fr}')
            for kh in range(2):
                for i in range(4): a(f'v_sub_f32 v{Sreg(kh,qh)+i}, v{Sreg(kh,qh)+i}, v{dst}')
            for i in range(4): a(f'v_sub_f32 v{V_NEGM+4*qh+i}, v{V_NEGM+4*qh+i}, v{dst}')
            l = V_L1 if qh else V_L0
            a(f'v_mul_f32 v{l}, v{l}, v{fr}')
        a(f's_branch {L_r1b}')
        a(f'{L_r2}:')
        a('s_nop 7')
        for beta in range(32):
            for qh in range(2):
                fr = V_F1 if qh else V_F0
                b = Obase(beta, qh)
                if beta < 16:
                    for r in range(4): a(f'v_mul_f32 v{b+r}, v{b+r}, v{fr}')
                else:
                    for r in range(4): a(f'v_accvgpr_read_b32 v{120+r}, a{b+r}')
                    for r in range(4): a(f'v_mul_f32 v{120+r}, v{120+r}, v{fr}')
                    for r in range(4): a(f'v_accvgpr_write_b32 a{b+r}, v{120+r}')
        a(f's_branch {L_r2b}')
    a('code_end:')
    a('s_endpgm')
    kernel_desc(a, name, 512, 102, 256)
```

```python
from asmlib import *
from layout import *
from attn2 import LdsQ
from k2 import f2h

P_X, P_WQ, P_WK, P_WV, P_AO, P_UP, P_DW, P_DN, P_MG, P_OUT, P_DBG, P_WS = [56 + 2 * i for i in range(12)]

def prep(a, name, K, st, mid1, flagA, pollA, late, gl=3, fa_at=9, apace=8):
    V_L16 = K.V_L16
    V_T0, V_T1, V_T2, V_T3, V_TR, V_DT, V_LR, V_LS = 13, 14, 15, 12, 5, 6, 8, 9
    V_SW, V_AR, V_BR = 16, 160, 164
    V_ACC, V_PK, V_RA, V_RB = 32, 48, 64, 96
    RAW, F, SUM, MEAN, RSTD = 64, 96, 168, 172, 174
    S_SA, S_SB = 44, 48
    S_TI, S_TJ, S_OO, S_ROLE, S_RB, S_CB, S_BLK = 52, 53, 54, 55, 42, 43, K.S_T4
    S_W, S_T0, S_T1, S_T2 = K.S_W, K.S_T0, K.S_T1, K.S_T2
    SW, SX = [f's[{b}:{b+3}]' for b in (K.S_SRD, K.S_SRX)]
    SA, SB = [f's[{b}:{b+3}]' for b in (S_SA, S_SB)]
    LA_, LB_ = 32768, 98304
    a(f's_lshr_b32 s{S_BLK}, s{K.S_TILE}, 1')
    a(f's_lshl_b32 s{S_BLK}, s{S_BLK}, 3')
    a(f's_bfe_u32 s{S_T0}, s2, 0x30003')
    a(f's_add_u32 s{S_BLK}, s{S_BLK}, s{S_T0}')
    a(f's_cmp_lt_u32 s{S_BLK}, 125')
    a(f's_cselect_b32 s{S_T2}, 0, 0x80000000')
    a(f's_min_u32 s{S_BLK}, s{S_BLK}, 124')
    a(f's_add_u32 s{S_BLK}, s{S_BLK}, s{K.S_B125}')
    a(f's_lshl_b32 s{S_BLK}, s{S_BLK}, 15')
    a('s_waitcnt lgkmcnt(0)')
    make_srd(a, K.S_SRX, P_X, 0, 8192000)
    for g in range(2):
        a(f's_add_u32 m0, s{K.S_W8K}, {g*4096}')
        a('s_nop 0')
        for i in range(4): a(f'buffer_load_dwordx4 v{K.V_DK1 if g else K.V_DK0}, {SX}, s{S_BLK} offen offset:{i*1024} lds')
    late()
    a(f'v_and_b32 v{V_T0}, 7, v0')
    a(f'v_lshrrev_b32 v{V_T1}, 3, v0')
    a(f'v_lshlrev_b32 v{V_LR}, 4, v{V_T1}')
    a(f'v_lshl_add_u32 v{V_LR}, v{V_T0}, 10, v{V_LR}')
    a(f'v_add_u32 v{V_LR}, s{K.S_W8K}, v{V_LR}')
    a(f'v_lshrrev_b32 v{V_T2}, 5, v0')
    a(f'v_lshlrev_b32 v{V_LS}, 11, v{V_T2}')
    a(f'v_and_b32 v{V_T2}, 3, v{V_T1}')
    a(f'v_lshl_add_u32 v{V_LS}, v{V_T2}, 8, v{V_LS}')
    a(f'v_lshl_add_u32 v{V_LS}, v{V_T0}, 4, v{V_LS}')
    a(f'v_or_b32 v{V_LS}, s{S_T2}, v{V_LS}')
    a(f's_and_b32 s{S_RB}, s{S_W}, 1')
    a(f's_lshr_b32 s{S_CB}, s{S_W}, 1')
    a(f's_lshl_b32 s{S_T1}, s{S_RB}, 7')
    a(f'v_xor_b32 v{V_SW}, s{S_T1}, v{V_L16}')
    for i in range(1, 8): a(f'v_xor_b32 v{V_SW+i}, {i*16}, v{V_SW}')
    a(f'v_bfe_u32 v{V_T2}, v0, 4, 1')
    a(f'v_lshlrev_b32 v{V_T2}, 2, v{V_T2}')
    a(f'v_xor_b32 v{V_T2}, v{V_T2}, v{V_T0}')
    a(f'v_lshlrev_b32 v{V_DT}, 4, v{V_T2}')
    a(f'v_lshl_add_u32 v{K.V_WD}, v{V_T1}, 11, v{V_DT}')
    a(f's_and_b32 s3, s2, 7')
    a(f's_lshl_b32 s3, s3, 5')
    a(f's_lshr_b32 s{S_T1}, s2, 3')
    a(f's_add_u32 s3, s3, s{S_T1}')
    a(f's_and_b32 s{S_T2}, s2, 1')
    a(f's_lshl1_add_u32 s{S_T1}, s{S_T1}, s{S_T2}')
    a(f's_add_u32 s{S_T1}, s{S_T1}, 192')
    a(f's_cmp_ge_u32 s3, 192')
    a(f's_cselect_b32 s3, s{S_T1}, s3')
    a(f's_lshr_b32 s{S_ROLE}, s3, 6')
    a(f's_and_b32 s{S_TI}, s3, 7')
    a(f's_bfe_u32 s{S_TJ}, s3, 0x30003')
    make_srd(a, 96, P_DBG, 0, 256)
    a(f's_cmp_lt_u32 s2, 248\n s_cbranch_scc1 {name}_notag')
    a('s_memrealtime s[100:101]')
    a('v_mov_b32 v25, 0')
    a('s_waitcnt lgkmcnt(0)')
    a('s_or_b32 s100, s100, 1')
    a('v_mov_b32 v24, s100')
    a(f'buffer_atomic_cmpswap v[24:25], v{K.V_FO}, s[96:99], 0 offen sc1')
    a(f'{name}_notag:')
    def rows_dma(srd, sbase, ldsbase):
        a(f's_lshl_b32 s{S_T2}, s{S_W}, 14')
        a(f's_add_u32 s{S_T1}, s{sbase}, s{S_T2}')
        for g in range(4):
            a(f's_add_u32 m0, s{S_T2}, {ldsbase + g*4096}')
            if g: a(f's_add_u32 s{S_T1}, s{S_T1}, 4096')
            else: a('s_nop 0')
            for i in range(4):
                a(f'buffer_load_dwordx4 v{V_SW + 4*(g>>1) + i}, {srd}, s{S_T1} offen offset:{i*1024} lds')
    def tr_dma(npiece, stride_log2, sbase):
        a(f'v_lshl_add_u32 v{V_T3}, v{V_T1}, {stride_log2}, v{V_DT}')
        a(f's_mul_i32 s{S_T1}, s{S_W}, {npiece * 8 << stride_log2}')
        a(f's_add_u32 s{S_T1}, s{S_T1}, s{sbase}')
        a(f's_mul_i32 s{S_T2}, s{S_W}, {npiece * 1024}')
        for i in range(npiece):
            a(f's_add_u32 m0, s{S_T2}, {LB_ + i*1024}')
            if i: a(f's_add_u32 s{S_T1}, s{S_T1}, {8 << stride_log2}')
            else: a('s_nop 0')
            a(f'buffer_load_dwordx4 v{V_T3}, {SB}, s{S_T1} offen lds')
    def wpf(n):
        a(f'buffer_load_dword v26, v27, s[76:79], 0 offen')
        a(f's_waitcnt vmcnt({n + 1})')
    make_srd(a, K.S_SRD, P_WS, 0, WS_SIZE)
    a(f's_mov_b32 s{K.S_X}, s{P_X}\n s_mov_b32 s{K.S_X+1}, s{P_X+1}')
    a(f's_mov_b32 s{K.S_WS}, s{P_WS}\n s_mov_b32 s{K.S_WS+1}, s{P_WS+1}')
    make_srd(a, K.S_SRO, P_OUT, 0, 8192000)
    make_srd(a, 76, P_UP, 0, 1024 * 1024)
    a(f's_lshr_b32 s{S_T1}, s2, 6')
    a(f's_lshl2_add_u32 s{S_T1}, s{S_T1}, s{S_W}')
    a(f's_lshl_b32 s{S_T1}, s{S_T1}, 16')
    a(f's_lshl_b32 s{S_T0}, s{S_T0}, 7')
    a(f's_add_u32 s{S_T1}, s{S_T1}, s{S_T0}')
    a(f's_add_u32 s{S_T1}, s{S_T1}, 1024')
    a(f'v_and_b32 v27, 31, v0')
    a(f'v_lshlrev_b32 v27, 11, v27')
    a(f'v_add_u32 v27, s{S_T1}, v27')
    a(f's_cmp_eq_u32 s{S_ROLE}, 3\n s_cbranch_scc1 {name}_i3')
    a(f's_cmp_eq_u32 s{S_ROLE}, 1\n s_cbranch_scc1 {name}_i1')
    a(f's_cmp_eq_u32 s{S_ROLE}, 0')
    a(f's_cselect_b32 s{S_SA}, s{P_AO}, s{P_DN}')
    a(f's_cselect_b32 s{S_SA+1}, s{P_AO+1}, s{P_DN+1}')
    a(f's_cselect_b32 s{S_T0}, 0, {512*1024}')
    a(f's_mov_b32 s{S_SA+2}, {512*1024}\n s_mov_b32 s{S_SA+3}, 0x20000')
    make_srd(a, S_SB, P_MG, 0, 1024 * 1024)
    a(f's_lshl_b32 s{S_T1}, s{S_TJ}, 7')
    a(f's_add_u32 s{S_T0}, s{S_T0}, s{S_T1}')
    tr_dma(16, 10, S_T0)
    wpf(16)
    a(f's_branch {name}_ln')
    a(f'{name}_i1:')
    make_srd(a, S_SA, P_WQ, 0, 512 * 1024)
    make_srd(a, S_SB, P_WK, 0, 512 * 1024)
    a(f's_lshl_b32 s{S_T0}, s{S_TJ}, 16')
    rows_dma(SB, S_T0, LB_)
    wpf(16)
    a(f's_branch {name}_ln')
    a(f'{name}_i3:')
    make_srd(a, S_SA, P_WV, 0, 512 * 1024)
    a(f's_cmp_ge_u32 s3, 208\n s_cbranch_scc1 {name}_i5')
    wpf(0)
    a(f's_branch {name}_ln')
    a(f'{name}_i5:')
    make_srd(a, S_SB, P_DW, 0, 31 * 1024)
    a(f's_mov_b32 s{S_SA+2}, 0')
    a(f's_sub_u32 s{S_OO}, s3, 208')
    a(f's_lshl2_add_u32 s{S_OO}, s{S_OO}, s{S_W}')
    a(f's_min_u32 s{S_OO}, s{S_OO}, 159')
    a(f'v_bfe_u32 v{V_T2}, v0, 4, 2')
    a(f'v_bfe_u32 v{V_T3}, v0, 2, 2')
    a(f'v_lshl_add_u32 v{V_T2}, v{V_T2}, 3, v{V_T3}')
    a(f'v_lshlrev_b32 v{V_T2}, 1, v{V_T2}')
    a(f'v_and_b32 v{V_T3}, 3, v0')
    a(f'v_add_u32 v{V_T3}, 1, v{V_T3}')
    a(f'v_lshlrev_b32 v{V_T3}, 10, v{V_T3}')
    a(f'v_sub_u32 v{V_T2}, v{V_T2}, v{V_T3}')
    a(f's_mul_i32 s{S_T1}, s{S_OO}, 52429')
    a(f's_lshr_b32 s{S_T1}, s{S_T1}, 18')
    a(f's_mul_i32 s{S_T2}, s{S_T1}, 5')
    a(f's_sub_u32 s{S_T0}, s{S_OO}, s{S_T2}')
    a(f's_lshl_b32 s{S_T0}, s{S_T0}, 13')
    a(f's_lshr_b32 s{S_T2}, s{S_T1}, 1')
    a(f's_lshl_b32 s{S_T2}, s{S_T2}, 6')
    a(f's_add_u32 s{S_T0}, s{S_T0}, s{S_T2}')
    a(f's_and_b32 s{S_T1}, s{S_T1}, 1')
    a(f's_lshl_b32 s{S_T1}, s{S_T1}, 3')
    a(f's_add_u32 s{S_T0}, s{S_T0}, s{S_T1}')
    a(f'v_add_u32 v{V_T3}, s{S_T0}, v{V_T2}')
    for e in range(8):
        a(f'buffer_load_ushort v{V_ACC+e}, v{V_T3}, {SB}, 0 offen')
        if e < 7: a(f'v_add_u32 v{V_T3}, 1024, v{V_T3}')
    wpf(8)
    a(f'{name}_ln:')
    st(40)
    aq = []
    for g in range(4):
        hd = [f's_add_u32 m0, s{S_T2}, {LA_ + g*4096}', f's_add_u32 s{S_T1}, s{S_T1}, 4096' if g else 's_nop 0']
        for i in range(4):
            aq.append(hd + [f'buffer_load_dwordx4 v{V_SW + 4*(g>>1) + i}, {SA}, s{S_T1} offen offset:{i*1024} lds']); hd = []
    a(f's_lshl_b32 s{S_T2}, s{S_W}, 14')
    a(f's_lshl_b32 s{S_T1}, s{S_TI}, 16')
    a(f's_add_u32 s{S_T1}, s{S_T1}, s{S_T2}')
    cn = [0]
    def c(o):
        a(o); cn[0] += 1
        if cn[0] % apace == 0 and aq:
            for x in aq.pop(0): a(x)
    for i in range(8): a(f'ds_read_b128 {vr(RAW+4*i,4)}, v{V_LR} offset:{i*128}')
    for i in range(4): a(f'v_mov_b32 v{SUM+i}, 0')
    for s in range(8):
        a(f's_waitcnt lgkmcnt({7-s})')
        for i in range(4):
            r = RAW + 4 * s + i; f = F + 8 * s + 2 * i
            c(f'v_lshlrev_b32 v{f}, 16, v{r}')
            c(f'v_and_b32 v{f+1}, 0xffff0000, v{r}')
        for i in range(4):
            f = F + 8 * s + 2 * i; acc = SUM + 2 * (i & 1)
            c(f'v_pk_add_f32 {vr(acc,2)}, {vr(acc,2)}, {vr(f,2)}')
    def reduce8(dst):
        a(f'v_pk_add_f32 {vr(SUM,2)}, {vr(SUM,2)}, {vr(SUM+2,2)}')
        a(f'v_add_f32 v{dst}, v{SUM}, v{SUM+1}')
        a('s_nop 1')
        a(f'v_add_f32_dpp v{dst}, v{dst}, v{dst} row_ror:8 row_mask:0xf bank_mask:0xf')
        for sw in ('v_permlane16_swap_b32', 'v_permlane32_swap_b32'):
            a(f'v_mov_b32 v{V_T2}, v{dst}')
            a('s_nop 1')
            a(f'{sw} v{V_T2}, v{dst}')
            a('s_nop 1')
            a(f'v_add_f32 v{dst}, v{dst}, v{V_T2}')
    reduce8(MEAN)
    a(f'v_mul_f32 v{MEAN}, {f2h(-1.0/512)}, v{MEAN}')
    for i in range(4): a(f'v_mov_b32 v{SUM+i}, 0')
    for k in range(32):
        f = F + 2 * k
        c(f'v_pk_add_f32 {vr(f,2)}, {vr(f,2)}, {vr(MEAN,2)} op_sel_hi:[1,0]')
        if k:
            g = f - 2; acc = SUM + 2 * (k & 1)
            c(f'v_pk_fma_f32 {vr(acc,2)}, {vr(g,2)}, {vr(g,2)}, {vr(acc,2)}')
    g = F + 62
    a(f'v_pk_fma_f32 {vr(SUM,2)}, {vr(g,2)}, {vr(g,2)}, {vr(SUM,2)}')
    reduce8(RSTD)
    a(f'v_mov_b32 v{V_T2}, {f2h(1e-5)}')
    a(f'v_fmac_f32 v{V_T2}, {f2h(1.0/512)}, v{RSTD}')
    a(f'v_rsq_f32 v{RSTD}, v{V_T2}')
    while aq:
        for x in aq.pop(0): a(x)
    a(f's_lshl_b32 s{S_T0}, s{S_CB}, 10')
    a(f's_lshl_b32 s{S_T1}, s{S_RB}, 7')
    a(f's_add_u32 s{S_T0}, s{S_T0}, s{S_T1}')
    a(f's_add_u32 s{S_T0}, s{S_T0}, s{S_BLK}')
    if WS_XA: a(f's_add_u32 s{S_T0}, s{S_T0}, {WS_XA}')
    for s in range(8):
        for i in range(4):
            f = F + 8 * s + 2 * i
            a(f'v_pk_mul_f32 {vr(f,2)}, {vr(f,2)}, {vr(RSTD,2)} op_sel_hi:[1,0]')
        for i in range(4):
            f = F + 8 * s + 2 * i
            a(f'v_cvt_pk_bf16_f32 v{RAW+4*s+i}, v{f}, v{f+1}')
        if s: a(f's_add_u32 s{S_T0}, s{S_T0}, 4096')
        a(f'buffer_store_dwordx4 {vr(RAW+4*s,4)}, v{V_LS}, {SW}, s{S_T0} offen sc1')
    a('v_mov_b32 v25, 0')
    a('buffer_load_dword v24, v25, s[96:99], 0 offen sc1')
    st(41)
    a(f'v_and_b32 v{V_T0}, 15, v0')
    a(f'v_lshrrev_b32 v{V_T1}, 4, v0')
    a(f'v_bfe_u32 v{V_T2}, v0, 2, 2')
    a(f'v_and_b32 v{V_T3}, 3, v0')
    a(f'v_lshl_add_u32 v{V_TR}, v{V_T2}, 3, v{V_T3}')
    a(f'v_lshlrev_b32 v{V_TR}, 10, v{V_TR}')
    a(f'v_xor_b32 v{V_T0}, v{V_T0}, v{V_T1}')
    a(f'v_lshl_add_u32 v{V_TR}, v{V_T0}, 4, v{V_TR}')
    a(f's_lshl_b32 s{S_T0}, s{S_RB}, 15')
    a(f's_add_u32 s{S_T0}, s{S_T0}, {LA_}')
    a(f's_lshl_b32 s{S_T1}, s{S_CB}, 15')
    a(f's_add_u32 s{S_T1}, s{S_T1}, {LB_}')
    for i in range(4):
        a(f'v_xor_b32 v{V_T0}, {i*64}, v{V_TR}')
        a(f'v_add_u32 v{V_AR+i}, s{S_T0}, v{V_T0}')
        a(f'v_add_u32 v{V_BR+i}, s{S_T1}, v{V_T0}')
    a(f'v_bfe_u32 v{V_T0}, v0, 3, 1')
    a(f'v_lshl_add_u32 v{V_T0}, v{V_T0}, 2, v{V_T3}')
    a(f'v_lshlrev_b32 v{K.V_WT0}, 4, v{V_T0}')
    a(f'v_lshl_add_u32 v{K.V_WT0}, v{V_T2}, 7, v{K.V_WT0}')
    a(f'v_lshl_add_u32 v{K.V_WT0}, v{V_T1}, 10, v{K.V_WT0}')
    a(f'v_xor_b32 v{K.V_WT1}, 64, v{K.V_WT0}')
    a(f's_lshl_b32 s{S_T0}, s{S_CB}, 6')
    a(f'v_xor_b32 v{V_TR}, s{S_T0}, v{K.V_WT0}')
    a(f'v_add_u32 v{V_TR}, {LB_}, v{V_TR}')
    a('s_waitcnt vmcnt(9)')
    a('s_barrier')
    st(42)
    mid1()
    tagl = []
    def publishA():
        lab = a.label(name + '_tag'); tagl.append(lab)
        a('s_waitcnt vmcnt(8)')
        a(f'{lab}w:')
        a(f'v_readfirstlane_b32 s{K.S_TAG}, v24')
        a('s_nop 3')
        a(f's_cmp_eq_u32 s{K.S_TAG}, 0')
        a(f's_cbranch_scc1 {lab}s')
        a('s_barrier')
        flagA()
    def rd_rows(base):
        return lambda s, h, dst: [f'ds_read_b128 {vr(dst,4)}, v{base + (s & 3)} offset:{h*4096 + (s >> 2)*256}']
    def rd_tr(s, h, dst):
        return [f'ds_read_b64_tr_b16 {vr(dst+2*jj,2)}, v{V_TR} offset:{s*4096 + jj*512 + h*8}' for jj in range(2)]
    def gemm(rdB):
        rdA = rd_rows(V_AR)
        q = LdsQ()
        def issue(s):
            for h in range(2):
                for o in rdA(s, h, V_RA + 8 * (s % 4) + 4 * h): a(o); q.issue(s)
            for h in range(2):
                for o in rdB(s, h, V_RB + 8 * (s % 4) + 4 * h): a(o); q.issue(s)
        for s in range(gl): issue(s)
        for s in range(16):
            a(f's_waitcnt lgkmcnt({min(15, q.need(s))})')
            for ch in range(2):
                for b in range(2):
                    d = vr(V_ACC + ch * 8 + b * 4, 4)
                    a(f'v_mfma_f32_16x16x32_bf16 {d}, {vr(V_RA+8*(s%4)+4*b,4)}, {vr(V_RB+8*(s%4)+4*ch,4)}, {d if s else 0}')
                if ch == 0 and s + gl < 16: issue(s + gl)
            if s == fa_at: publishA()
        pollA()
        a('s_nop 6')
    a(f's_cmp_eq_u32 s{S_ROLE}, 3\n s_cbranch_scc1 {name}_c3')
    a(f's_lshl1_add_u32 s{S_OO}, s{S_TJ}, s{S_CB}')
    a(f's_lshl_b32 s{S_OO}, s{S_OO}, 15')
    a(f's_lshl1_add_u32 s{S_T0}, s{S_TI}, s{S_RB}')
    a(f's_lshl_b32 s{S_T0}, s{S_T0}, 11')
    a(f's_add_u32 s{S_OO}, s{S_OO}, s{S_T0}')
    a(f's_cmp_eq_u32 s{S_ROLE}, 1\n s_cbranch_scc1 {name}_c1')
    a(f's_cmp_eq_u32 s{S_ROLE}, 0')
    a(f's_cselect_b32 s{S_T0}, {WS_T1 - WS_WC}, 0')
    a(f's_add_u32 s{S_OO}, s{S_OO}, s{S_T0}')
    a(f's_add_u32 s{S_OO}, s{S_OO}, {WS_WC}')
    gemm(rd_tr)
    a(f's_branch {name}_out')
    a(f'{name}_c1:')
    a(f's_add_u32 s{S_OO}, s{S_OO}, {WS_W}')
    gemm(rd_rows(V_BR))
    a(f's_mov_b32 s{S_T1}, {f2h(512 ** -0.5 * 1.4426950408889634)}')
    for i in range(16): a(f'v_mul_f32 v{V_ACC+i}, s{S_T1}, v{V_ACC+i}')
    a(f'{name}_out:')
    for i in range(8): a(f'v_cvt_pk_bf16_f32 v{V_PK+i}, v{V_ACC+2*i}, v{V_ACC+2*i+1}')
    for ch in range(2):
        a(f'buffer_store_dwordx4 {vr(V_PK+4*ch,4)}, v{V_L16}, {SW}, s{S_OO} offen offset:{ch*1024} sc1')
    a(f's_branch {name}_pfin')
    a(f'{name}_c3:')
    publishA()
    a(f's_cmp_ge_u32 s3, 208\n s_cbranch_scc1 {name}_c5')
    a(f's_lshl1_add_u32 s{S_T1}, s{S_TJ}, s{S_CB}')
    a(f's_lshl_b32 s{S_T0}, s{S_T1}, 8')
    for i in range(4): a(f'v_add_u32 v{V_AR+i}, s{S_T0}, v{V_AR+i}')
    for i in range(8):
        for o in rd_rows(V_AR)(i >> 1, i & 1, V_RA + 4 * i): a(o)
    a(f's_lshl1_add_u32 s{S_OO}, s{S_TI}, s{S_RB}')
    a(f's_lshl_b32 s{S_OO}, s{S_OO}, 15')
    a(f's_lshl_b32 s{S_T0}, s{S_T1}, 13')
    a(f's_add_u32 s{S_OO}, s{S_OO}, s{S_T0}')
    a(f's_add_u32 s{S_OO}, s{S_OO}, {WS_RL}')
    for i in range(8):
        if i % 4 == 0 and i: a(f's_add_u32 s{S_OO}, s{S_OO}, 4096')
        a(f's_waitcnt lgkmcnt({7 - i})')
        a(f'buffer_store_dwordx4 {vr(V_RA+4*i,4)}, v{V_L16}, {SW}, s{S_OO} offen offset:{(i%4)*1024} sc1')
    a(f's_branch {name}_c6')
    a(f'{name}_c5:')
    for i in range(4): a(f'v_lshl_or_b32 v{V_RA+i}, v{V_ACC+2*i+1}, 16, v{V_ACC+2*i}')
    a(f's_lshl_b32 s{S_T0}, s{S_OO}, 10')
    a(f's_add_u32 s{S_T0}, s{S_T0}, {WS_DWT}')
    a(f'buffer_store_dwordx4 {vr(V_RA,4)}, v{V_L16}, {SW}, s{S_T0} offen sc1')
    a(f'{name}_c6:')
    a('s_waitcnt vmcnt(0)')
    pollA()
    a('s_waitcnt vmcnt(0)')
    a(f'{name}_pfin:')
    def slow():
        for lab in tagl:
            a(f'{lab}s:')
            a('s_sleep 4')
            a('buffer_load_dword v24, v25, s[96:99], 0 offen sc1')
            a('s_waitcnt vmcnt(0)')
            a(f's_branch {lab}w')
    return slow
```

```python
from asmlib import *
from layout import *
from attn2 import LdsQ
from k2 import f2h

P_X, P_WQ, P_WK, P_WV, P_AO, P_UP, P_DW, P_DN, P_MG, P_OUT, P_DBG, P_WS = [56 + 2 * i for i in range(12)]

def prep(a, name, K, st, mid1, flagA, pollA, late, gl=3, fa_at=9, apace=8, wsoff=0):
    V_L16 = K.V_L16
    V_T0, V_T1, V_T2, V_T3, V_TR, V_DT, V_LR, V_LS = 13, 14, 15, 12, 5, 6, 8, 9
    V_SW, V_AR, V_BR = 16, 160, 164
    V_ACC, V_PK, V_RA, V_RB = 32, 48, 64, 96
    RAW, F, SUM, MEAN, RSTD = 64, 96, 168, 172, 174
    S_SA, S_SB = 44, 48
    S_TI, S_TJ, S_OO, S_ROLE, S_RB, S_CB, S_BLK = 52, 53, 54, 55, 42, 43, K.S_T4
    S_W, S_T0, S_T1, S_T2 = K.S_W, K.S_T0, K.S_T1, K.S_T2
    SW, SX = [f's[{b}:{b+3}]' for b in (K.S_SRD, K.S_SRX)]
    SA, SB = [f's[{b}:{b+3}]' for b in (S_SA, S_SB)]
    LA_, LB_ = 32768, 98304
    a(f's_lshr_b32 s{S_BLK}, s{K.S_TILE}, 1')
    a(f's_lshl_b32 s{S_BLK}, s{S_BLK}, 3')
    a(f's_bfe_u32 s{S_T0}, s2, 0x30003')
    a(f's_add_u32 s{S_BLK}, s{S_BLK}, s{S_T0}')
    a(f's_cmp_lt_u32 s{S_BLK}, 125')
    a(f's_cselect_b32 s{S_T2}, 0, 0x80000000')
    a(f's_min_u32 s{S_BLK}, s{S_BLK}, 124')
    a(f's_add_u32 s{S_BLK}, s{S_BLK}, s{K.S_B125}')
    a(f's_lshl_b32 s{S_BLK}, s{S_BLK}, 15')
    a('s_waitcnt lgkmcnt(0)')
    make_srd(a, K.S_SRX, P_X, 0, 8192000)
    for g in range(2):
        a(f's_add_u32 m0, s{K.S_W8K}, {g*4096}')
        a('s_nop 0')
        for i in range(4): a(f'buffer_load_dwordx4 v{K.V_DK1 if g else K.V_DK0}, {SX}, s{S_BLK} offen offset:{i*1024} lds')
    late()
    a(f'v_and_b32 v{V_T0}, 7, v0')
    a(f'v_lshrrev_b32 v{V_T1}, 3, v0')
    a(f'v_lshlrev_b32 v{V_LR}, 4, v{V_T1}')
    a(f'v_lshl_add_u32 v{V_LR}, v{V_T0}, 10, v{V_LR}')
    a(f'v_add_u32 v{V_LR}, s{K.S_W8K}, v{V_LR}')
    a(f'v_lshrrev_b32 v{V_T2}, 5, v0')
    a(f'v_lshlrev_b32 v{V_LS}, 11, v{V_T2}')
    a(f'v_and_b32 v{V_T2}, 3, v{V_T1}')
    a(f'v_lshl_add_u32 v{V_LS}, v{V_T2}, 8, v{V_LS}')
    a(f'v_lshl_add_u32 v{V_LS}, v{V_T0}, 4, v{V_LS}')
    a(f'v_or_b32 v{V_LS}, s{S_T2}, v{V_LS}')
    a(f's_and_b32 s{S_RB}, s{S_W}, 1')
    a(f's_lshr_b32 s{S_CB}, s{S_W}, 1')
    a(f's_lshl_b32 s{S_T1}, s{S_RB}, 7')
    a(f'v_xor_b32 v{V_SW}, s{S_T1}, v{V_L16}')
    for i in range(1, 8): a(f'v_xor_b32 v{V_SW+i}, {i*16}, v{V_SW}')
    a(f'v_bfe_u32 v{V_T2}, v0, 4, 1')
    a(f'v_lshlrev_b32 v{V_T2}, 2, v{V_T2}')
    a(f'v_xor_b32 v{V_T2}, v{V_T2}, v{V_T0}')
    a(f'v_lshlrev_b32 v{V_DT}, 4, v{V_T2}')
    a(f'v_lshl_add_u32 v{K.V_WD}, v{V_T1}, 11, v{V_DT}')
    a(f's_and_b32 s3, s2, 7')
    a(f's_lshl_b32 s3, s3, 5')
    a(f's_lshr_b32 s{S_T1}, s2, 3')
    a(f's_add_u32 s3, s3, s{S_T1}')
    a(f's_and_b32 s{S_T2}, s2, 1')
    a(f's_lshl1_add_u32 s{S_T1}, s{S_T1}, s{S_T2}')
    a(f's_add_u32 s{S_T1}, s{S_T1}, 192')
    a(f's_cmp_ge_u32 s3, 192')
    a(f's_cselect_b32 s3, s{S_T1}, s3')
    a(f's_lshr_b32 s{S_ROLE}, s3, 6')
    a(f's_and_b32 s{S_TI}, s3, 7')
    a(f's_bfe_u32 s{S_TJ}, s3, 0x30003')
    make_srd(a, 96, P_DBG, 0, 256)
    a(f's_cmp_lt_u32 s2, 248\n s_cbranch_scc1 {name}_notag')
    a('s_memrealtime s[100:101]')
    a('v_mov_b32 v25, 0')
    a('s_waitcnt lgkmcnt(0)')
    a('s_or_b32 s100, s100, 1')
    a('v_mov_b32 v24, s100')
    a(f'buffer_atomic_cmpswap v[24:25], v{K.V_FO}, s[96:99], 0 offen sc1')
    a(f'{name}_notag:')
    def rows_dma(srd, sbase, ldsbase):
        a(f's_lshl_b32 s{S_T2}, s{S_W}, 14')
        a(f's_add_u32 s{S_T1}, s{sbase}, s{S_T2}')
        for g in range(4):
            a(f's_add_u32 m0, s{S_T2}, {ldsbase + g*4096}')
            if g: a(f's_add_u32 s{S_T1}, s{S_T1}, 4096')
            else: a('s_nop 0')
            for i in range(4):
                a(f'buffer_load_dwordx4 v{V_SW + 4*(g>>1) + i}, {srd}, s{S_T1} offen offset:{i*1024} lds')
    def tr_dma(npiece, stride_log2, sbase):
        a(f'v_lshl_add_u32 v{V_T3}, v{V_T1}, {stride_log2}, v{V_DT}')
        a(f's_mul_i32 s{S_T1}, s{S_W}, {npiece * 8 << stride_log2}')
        a(f's_add_u32 s{S_T1}, s{S_T1}, s{sbase}')
        a(f's_mul_i32 s{S_T2}, s{S_W}, {npiece * 1024}')
        for i in range(npiece):
            a(f's_add_u32 m0, s{S_T2}, {LB_ + i*1024}')
            if i: a(f's_add_u32 s{S_T1}, s{S_T1}, {8 << stride_log2}')
            else: a('s_nop 0')
            a(f'buffer_load_dwordx4 v{V_T3}, {SB}, s{S_T1} offen lds')
    def wpf(n):
        a(f'buffer_load_dword v26, v27, s[76:79], 0 offen')
        a(f's_waitcnt vmcnt({n + 1})')
    if wsoff:
        a(f's_add_u32 s{P_WS}, s{P_WS}, {wsoff << 20}')
        a(f's_addc_u32 s{P_WS+1}, s{P_WS+1}, 0')
    make_srd(a, K.S_SRD, P_WS, 0, WS_SIZE)
    a(f's_mov_b32 s{K.S_X}, s{P_X}\n s_mov_b32 s{K.S_X+1}, s{P_X+1}')
    a(f's_mov_b32 s{K.S_WS}, s{P_WS}\n s_mov_b32 s{K.S_WS+1}, s{P_WS+1}')
    make_srd(a, K.S_SRO, P_OUT, 0, 8192000)
    make_srd(a, 76, P_UP, 0, 1024 * 1024)
    a(f's_lshr_b32 s{S_T1}, s2, 6')
    a(f's_lshl2_add_u32 s{S_T1}, s{S_T1}, s{S_W}')
    a(f's_lshl_b32 s{S_T1}, s{S_T1}, 16')
    a(f's_lshl_b32 s{S_T0}, s{S_T0}, 7')
    a(f's_add_u32 s{S_T1}, s{S_T1}, s{S_T0}')
    a(f's_add_u32 s{S_T1}, s{S_T1}, 1024')
    a(f'v_and_b32 v27, 31, v0')
    a(f'v_lshlrev_b32 v27, 11, v27')
    a(f'v_add_u32 v27, s{S_T1}, v27')
    a(f's_cmp_eq_u32 s{S_ROLE}, 3\n s_cbranch_scc1 {name}_i3')
    a(f's_cmp_eq_u32 s{S_ROLE}, 1\n s_cbranch_scc1 {name}_i1')
    a(f's_cmp_eq_u32 s{S_ROLE}, 0')
    a(f's_cselect_b32 s{S_SA}, s{P_AO}, s{P_DN}')
    a(f's_cselect_b32 s{S_SA+1}, s{P_AO+1}, s{P_DN+1}')
    a(f's_cselect_b32 s{S_T0}, 0, {512*1024}')
    a(f's_mov_b32 s{S_SA+2}, {512*1024}\n s_mov_b32 s{S_SA+3}, 0x20000')
    make_srd(a, S_SB, P_MG, 0, 1024 * 1024)
    a(f's_lshl_b32 s{S_T1}, s{S_TJ}, 7')
    a(f's_add_u32 s{S_T0}, s{S_T0}, s{S_T1}')
    tr_dma(16, 10, S_T0)
    wpf(16)
    a(f's_branch {name}_ln')
    a(f'{name}_i1:')
    make_srd(a, S_SA, P_WQ, 0, 512 * 1024)
    make_srd(a, S_SB, P_WK, 0, 512 * 1024)
    a(f's_lshl_b32 s{S_T0}, s{S_TJ}, 16')
    rows_dma(SB, S_T0, LB_)
    wpf(16)
    a(f's_branch {name}_ln')
    a(f'{name}_i3:')
    make_srd(a, S_SA, P_WV, 0, 512 * 1024)
    a(f's_cmp_ge_u32 s3, 208\n s_cbranch_scc1 {name}_i5')
    wpf(0)
    a(f's_branch {name}_ln')
    a(f'{name}_i5:')
    make_srd(a, S_SB, P_DW, 0, 31 * 1024)
    a(f's_mov_b32 s{S_SA+2}, 0')
    a(f's_sub_u32 s{S_OO}, s3, 208')
    a(f's_lshl2_add_u32 s{S_OO}, s{S_OO}, s{S_W}')
    a(f's_min_u32 s{S_OO}, s{S_OO}, 159')
    a(f'v_bfe_u32 v{V_T2}, v0, 4, 2')
    a(f'v_bfe_u32 v{V_T3}, v0, 2, 2')
    a(f'v_lshl_add_u32 v{V_T2}, v{V_T2}, 3, v{V_T3}')
    a(f'v_lshlrev_b32 v{V_T2}, 1, v{V_T2}')
    a(f'v_and_b32 v{V_T3}, 3, v0')
    a(f'v_add_u32 v{V_T3}, 1, v{V_T3}')
    a(f'v_lshlrev_b32 v{V_T3}, 10, v{V_T3}')
    a(f'v_sub_u32 v{V_T2}, v{V_T2}, v{V_T3}')
    a(f's_mul_i32 s{S_T1}, s{S_OO}, 52429')
    a(f's_lshr_b32 s{S_T1}, s{S_T1}, 18')
    a(f's_mul_i32 s{S_T2}, s{S_T1}, 5')
    a(f's_sub_u32 s{S_T0}, s{S_OO}, s{S_T2}')
    a(f's_lshl_b32 s{S_T0}, s{S_T0}, 13')
    a(f's_lshr_b32 s{S_T2}, s{S_T1}, 1')
    a(f's_lshl_b32 s{S_T2}, s{S_T2}, 6')
    a(f's_add_u32 s{S_T0}, s{S_T0}, s{S_T2}')
    a(f's_and_b32 s{S_T1}, s{S_T1}, 1')
    a(f's_lshl_b32 s{S_T1}, s{S_T1}, 3')
    a(f's_add_u32 s{S_T0}, s{S_T0}, s{S_T1}')
    a(f'v_add_u32 v{V_T3}, s{S_T0}, v{V_T2}')
    for e in range(8):
        a(f'buffer_load_ushort v{V_ACC+e}, v{V_T3}, {SB}, 0 offen')
        if e < 7: a(f'v_add_u32 v{V_T3}, 1024, v{V_T3}')
    wpf(8)
    a(f'{name}_ln:')
    st(40)
    aq = []
    for g in range(4):
        hd = [f's_add_u32 m0, s{S_T2}, {LA_ + g*4096}', f's_add_u32 s{S_T1}, s{S_T1}, 4096' if g else 's_nop 0']
        for i in range(4):
            aq.append(hd + [f'buffer_load_dwordx4 v{V_SW + 4*(g>>1) + i}, {SA}, s{S_T1} offen offset:{i*1024} lds']); hd = []
    a(f's_lshl_b32 s{S_T2}, s{S_W}, 14')
    a(f's_lshl_b32 s{S_T1}, s{S_TI}, 16')
    a(f's_add_u32 s{S_T1}, s{S_T1}, s{S_T2}')
    cn = [0]
    def c(o):
        a(o); cn[0] += 1
        if cn[0] % apace == 0 and aq:
            for x in aq.pop(0): a(x)
    for i in range(8): a(f'ds_read_b128 {vr(RAW+4*i,4)}, v{V_LR} offset:{i*128}')
    for i in range(4): a(f'v_mov_b32 v{SUM+i}, 0')
    for s in range(8):
        a(f's_waitcnt lgkmcnt({7-s})')
        for i in range(4):
            r = RAW + 4 * s + i; f = F + 8 * s + 2 * i
            c(f'v_lshlrev_b32 v{f}, 16, v{r}')
            c(f'v_and_b32 v{f+1}, 0xffff0000, v{r}')
        for i in range(4):
            f = F + 8 * s + 2 * i; acc = SUM + 2 * (i & 1)
            c(f'v_pk_add_f32 {vr(acc,2)}, {vr(acc,2)}, {vr(f,2)}')
    def reduce8(dst):
        a(f'v_pk_add_f32 {vr(SUM,2)}, {vr(SUM,2)}, {vr(SUM+2,2)}')
        a(f'v_add_f32 v{dst}, v{SUM}, v{SUM+1}')
        a('s_nop 1')
        a(f'v_add_f32_dpp v{dst}, v{dst}, v{dst} row_ror:8 row_mask:0xf bank_mask:0xf')
        for sw in ('v_permlane16_swap_b32', 'v_permlane32_swap_b32'):
            a(f'v_mov_b32 v{V_T2}, v{dst}')
            a('s_nop 1')
            a(f'{sw} v{V_T2}, v{dst}')
            a('s_nop 1')
            a(f'v_add_f32 v{dst}, v{dst}, v{V_T2}')
    reduce8(MEAN)
    a(f'v_mul_f32 v{MEAN}, {f2h(-1.0/512)}, v{MEAN}')
    for i in range(4): a(f'v_mov_b32 v{SUM+i}, 0')
    for k in range(32):
        f = F + 2 * k
        c(f'v_pk_add_f32 {vr(f,2)}, {vr(f,2)}, {vr(MEAN,2)} op_sel_hi:[1,0]')
        if k:
            g = f - 2; acc = SUM + 2 * (k & 1)
            c(f'v_pk_fma_f32 {vr(acc,2)}, {vr(g,2)}, {vr(g,2)}, {vr(acc,2)}')
    g = F + 62
    a(f'v_pk_fma_f32 {vr(SUM,2)}, {vr(g,2)}, {vr(g,2)}, {vr(SUM,2)}')
    reduce8(RSTD)
    a(f'v_mov_b32 v{V_T2}, {f2h(1e-5)}')
    a(f'v_fmac_f32 v{V_T2}, {f2h(1.0/512)}, v{RSTD}')
    a(f'v_rsq_f32 v{RSTD}, v{V_T2}')
    while aq:
        for x in aq.pop(0): a(x)
    a(f's_lshl_b32 s{S_T0}, s{S_CB}, 10')
    a(f's_lshl_b32 s{S_T1}, s{S_RB}, 7')
    a(f's_add_u32 s{S_T0}, s{S_T0}, s{S_T1}')
    a(f's_add_u32 s{S_T0}, s{S_T0}, s{S_BLK}')
    if WS_XA: a(f's_add_u32 s{S_T0}, s{S_T0}, {WS_XA}')
    for s in range(8):
        for i in range(4):
            f = F + 8 * s + 2 * i
            a(f'v_pk_mul_f32 {vr(f,2)}, {vr(f,2)}, {vr(RSTD,2)} op_sel_hi:[1,0]')
        for i in range(4):
            f = F + 8 * s + 2 * i
            a(f'v_cvt_pk_bf16_f32 v{RAW+4*s+i}, v{f}, v{f+1}')
        if s: a(f's_add_u32 s{S_T0}, s{S_T0}, 4096')
        a(f'buffer_store_dwordx4 {vr(RAW+4*s,4)}, v{V_LS}, {SW}, s{S_T0} offen sc1')
    a('v_mov_b32 v25, 0')
    a('buffer_load_dword v24, v25, s[96:99], 0 offen sc1')
    st(41)
    a(f'v_and_b32 v{V_T0}, 15, v0')
    a(f'v_lshrrev_b32 v{V_T1}, 4, v0')
    a(f'v_bfe_u32 v{V_T2}, v0, 2, 2')
    a(f'v_and_b32 v{V_T3}, 3, v0')
    a(f'v_lshl_add_u32 v{V_TR}, v{V_T2}, 3, v{V_T3}')
    a(f'v_lshlrev_b32 v{V_TR}, 10, v{V_TR}')
    a(f'v_xor_b32 v{V_T0}, v{V_T0}, v{V_T1}')
    a(f'v_lshl_add_u32 v{V_TR}, v{V_T0}, 4, v{V_TR}')
    a(f's_lshl_b32 s{S_T0}, s{S_RB}, 15')
    a(f's_add_u32 s{S_T0}, s{S_T0}, {LA_}')
    a(f's_lshl_b32 s{S_T1}, s{S_CB}, 15')
    a(f's_add_u32 s{S_T1}, s{S_T1}, {LB_}')
    for i in range(4):
        a(f'v_xor_b32 v{V_T0}, {i*64}, v{V_TR}')
        a(f'v_add_u32 v{V_AR+i}, s{S_T0}, v{V_T0}')
        a(f'v_add_u32 v{V_BR+i}, s{S_T1}, v{V_T0}')
    a(f'v_bfe_u32 v{V_T0}, v0, 3, 1')
    a(f'v_lshl_add_u32 v{V_T0}, v{V_T0}, 2, v{V_T3}')
    a(f'v_lshlrev_b32 v{K.V_WT0}, 4, v{V_T0}')
    a(f'v_lshl_add_u32 v{K.V_WT0}, v{V_T2}, 7, v{K.V_WT0}')
    a(f'v_lshl_add_u32 v{K.V_WT0}, v{V_T1}, 10, v{K.V_WT0}')
    a(f'v_xor_b32 v{K.V_WT1}, 64, v{K.V_WT0}')
    a(f's_lshl_b32 s{S_T0}, s{S_CB}, 6')
    a(f'v_xor_b32 v{V_TR}, s{S_T0}, v{K.V_WT0}')
    a(f'v_add_u32 v{V_TR}, {LB_}, v{V_TR}')
    a('s_waitcnt vmcnt(9)')
    a('s_barrier')
    st(42)
    mid1()
    tagl = []
    def publishA():
        lab = a.label(name + '_tag'); tagl.append(lab)
        a('s_waitcnt vmcnt(8)')
        a(f'{lab}w:')
        a(f'v_readfirstlane_b32 s{K.S_TAG}, v24')
        a('s_nop 3')
        a(f's_cmp_eq_u32 s{K.S_TAG}, 0')
        a(f's_cbranch_scc1 {lab}s')
        a('s_barrier')
        flagA()
    def rd_rows(base):
        return lambda s, h, dst: [f'ds_read_b128 {vr(dst,4)}, v{base + (s & 3)} offset:{h*4096 + (s >> 2)*256}']
    def rd_tr(s, h, dst):
        return [f'ds_read_b64_tr_b16 {vr(dst+2*jj,2)}, v{V_TR} offset:{s*4096 + jj*512 + h*8}' for jj in range(2)]
    def gemm(rdB):
        rdA = rd_rows(V_AR)
        q = LdsQ()
        def issue(s):
            for h in range(2):
                for o in rdA(s, h, V_RA + 8 * (s % 4) + 4 * h): a(o); q.issue(s)
            for h in range(2):
                for o in rdB(s, h, V_RB + 8 * (s % 4) + 4 * h): a(o); q.issue(s)
        for s in range(gl): issue(s)
        for s in range(16):
            a(f's_waitcnt lgkmcnt({min(15, q.need(s))})')
            for ch in range(2):
                for b in range(2):
                    d = vr(V_ACC + ch * 8 + b * 4, 4)
                    a(f'v_mfma_f32_16x16x32_bf16 {d}, {vr(V_RA+8*(s%4)+4*b,4)}, {vr(V_RB+8*(s%4)+4*ch,4)}, {d if s else 0}')
                if ch == 0 and s + gl < 16: issue(s + gl)
            if s == fa_at: publishA()
        pollA()
        a('s_nop 6')
    a(f's_cmp_eq_u32 s{S_ROLE}, 3\n s_cbranch_scc1 {name}_c3')
    a(f's_lshl1_add_u32 s{S_OO}, s{S_TJ}, s{S_CB}')
    a(f's_lshl_b32 s{S_OO}, s{S_OO}, 15')
    a(f's_lshl1_add_u32 s{S_T0}, s{S_TI}, s{S_RB}')
    a(f's_lshl_b32 s{S_T0}, s{S_T0}, 11')
    a(f's_add_u32 s{S_OO}, s{S_OO}, s{S_T0}')
    a(f's_cmp_eq_u32 s{S_ROLE}, 1\n s_cbranch_scc1 {name}_c1')
    a(f's_cmp_eq_u32 s{S_ROLE}, 0')
    a(f's_cselect_b32 s{S_T0}, {WS_T1 - WS_WC}, 0')
    a(f's_add_u32 s{S_OO}, s{S_OO}, s{S_T0}')
    a(f's_add_u32 s{S_OO}, s{S_OO}, {WS_WC}')
    gemm(rd_tr)
    a(f's_branch {name}_out')
    a(f'{name}_c1:')
    a(f's_add_u32 s{S_OO}, s{S_OO}, {WS_W}')
    gemm(rd_rows(V_BR))
    a(f's_mov_b32 s{S_T1}, {f2h(512 ** -0.5 * 1.4426950408889634)}')
    for i in range(16): a(f'v_mul_f32 v{V_ACC+i}, s{S_T1}, v{V_ACC+i}')
    a(f'{name}_out:')
    for i in range(8): a(f'v_cvt_pk_bf16_f32 v{V_PK+i}, v{V_ACC+2*i}, v{V_ACC+2*i+1}')
    for ch in range(2):
        a(f'buffer_store_dwordx4 {vr(V_PK+4*ch,4)}, v{V_L16}, {SW}, s{S_OO} offen offset:{ch*1024} sc1')
    a(f's_branch {name}_pfin')
    a(f'{name}_c3:')
    publishA()
    a(f's_cmp_ge_u32 s3, 208\n s_cbranch_scc1 {name}_c5')
    a(f's_lshl1_add_u32 s{S_T1}, s{S_TJ}, s{S_CB}')
    a(f's_lshl_b32 s{S_T0}, s{S_T1}, 8')
    for i in range(4): a(f'v_add_u32 v{V_AR+i}, s{S_T0}, v{V_AR+i}')
    for i in range(8):
        for o in rd_rows(V_AR)(i >> 1, i & 1, V_RA + 4 * i): a(o)
    a(f's_lshl1_add_u32 s{S_OO}, s{S_TI}, s{S_RB}')
    a(f's_lshl_b32 s{S_OO}, s{S_OO}, 15')
    a(f's_lshl_b32 s{S_T0}, s{S_T1}, 13')
    a(f's_add_u32 s{S_OO}, s{S_OO}, s{S_T0}')
    a(f's_add_u32 s{S_OO}, s{S_OO}, {WS_RL}')
    for i in range(8):
        if i % 4 == 0 and i: a(f's_add_u32 s{S_OO}, s{S_OO}, 4096')
        a(f's_waitcnt lgkmcnt({7 - i})')
        a(f'buffer_store_dwordx4 {vr(V_RA+4*i,4)}, v{V_L16}, {SW}, s{S_OO} offen offset:{(i%4)*1024} sc1')
    a(f's_branch {name}_c6')
    a(f'{name}_c5:')
    for i in range(4): a(f'v_lshl_or_b32 v{V_RA+i}, v{V_ACC+2*i+1}, 16, v{V_ACC+2*i}')
    a(f's_lshl_b32 s{S_T0}, s{S_OO}, 10')
    a(f's_add_u32 s{S_T0}, s{S_T0}, {WS_DWT}')
    a(f'buffer_store_dwordx4 {vr(V_RA,4)}, v{V_L16}, {SW}, s{S_T0} offen sc1')
    a(f'{name}_c6:')
    a('s_waitcnt vmcnt(0)')
    pollA()
    a('s_waitcnt vmcnt(0)')
    a(f'{name}_pfin:')
    def slow():
        for lab in tagl:
            a(f'{lab}s:')
            a('s_sleep 4')
            a('buffer_load_dword v24, v25, s[96:99], 0 offen sc1')
            a('s_waitcnt vmcnt(0)')
            a(f's_branch {lab}w')
    return slow
```

```python
from asmlib import *
from layout import *
from attn2 import LdsQ
from k2 import f2h, VmQ, code_prefetch

V_DK0, V_DK1, V_DV0, V_DV1, V_KA, V_VA, V_L16, V_L0, V_L1, V_MX, V_F0, V_F1, V_T0, V_T1, V_T2 = range(1, 16)
V_S, V_E, V_P, V_NEGM, V_RING = 16, 32, 48, 56, 64
V_PF, V_PFD, V_XO, V_FL = 116, 117, 118, 119
V_WT0, V_WT1, V_WD, V_FO = 6, 28, 29, 10
S_TAG = 75
S_X, S_OUTP, S_WS, S_SRD, S_SRX, S_SRO = 4, 6, 40, 8, 12, 16
(S_KOFF, S_VOFF, S_KDMA, S_VDMA, S_VRD, S_CNT, S_W, S_QB, S_SPLIT, S_T0, S_T1, S_VALID, S_GRP, S_W8K, S_PFOFF, S_T2) = range(20, 36)
S_TILE, S_B125, S_T3, S_T4 = 36, 37, 38, 39
S_WB0, S_WB1, S_WB2, S_WB3, S_UCO, S_WCO, S_FLO, S_PO = range(56, 64)
S_PFS, S_PFST, S_PH, S_XCC, S_SLOW, S_PB = 44, 45, 46, 47, 48, 54

def Obase(beta, qh): return 128 + 8 * (beta % 16) + 4 * qh
def Oreg(beta, qh): return vr(Obase(beta, qh), 4) if beta < 16 else ar(Obase(beta, qh), 4)

def gen_main(a, name, dma_gap=3, dma_cost=2, CAP=2, bar_pos=50, NR=13, LA=10, wait_every=4, THR=0x41800000,
             stamp=False, snake=True, prefetch=2, pf=True, pv_pace=4, pv_budget=6, out_flags='sc1', npf=0, fast_st='nt', flag_at=140, force_slow=True, tailst=False, pfill=False, st_pace=9, ld_pace=2, yc_budget=2, bg_pace=14, tailpf=1, tlb=True, pf_flags='sc1', uc_pace=4, chk_at=60, merged=True, gst=False, pst=False, nobr2=True, cmp_early=False, tail=4, t5=(3, 4, 4, 4, 16, 3), sizes4=(33, 32, 31, 29), pf_late=False, xinit=True, xi_pre=8, jit=0, slp=3, pf_wg=0, o2={}, hk=(-84, -62, -30, -15), qearly=14, vchk=16, dbg=(), dbgout=False, spin=None, brgap=3, chain=True, poll_after=8, r_pace=5, chk2_at=0, noyc=False, ld_per_st=0, flag_after=0, rounds=((56, 3), (112, 3))):
    SRD, SRX, SRO = [f's[{b}:{b+3}]' for b in (S_SRD, S_SRX, S_SRO)]
    def st(i, cyc=False):
        if jit and not cyc and i not in (0,):
            lab = a.label(name + '_jit')
            a(f's_mul_i32 s100, s2, {2654435761 * (i + jit) % (1 << 31)}')
            a(f's_mul_i32 s101, s{S_W}, {40503 * (i + 3) * jit}')
            a('s_add_u32 s100, s100, s101')
            a('s_lshr_b32 s100, s100, 26')
            a('s_cmp_lt_u32 s100, 44')
            a(f's_cbranch_scc1 {lab}')
            a(f'{lab}l:')
            a('s_sleep 16')
            a('s_sub_u32 s100, s100, 1')
            a('s_cmp_gt_u32 s100, 43')
            a(f's_cbranch_scc1 {lab}l')
            a(f'{lab}:')
        gs = [1, 2, 3, 4, 5, 6, 8, 9, 12, 13, 14, 15]
        if i >= 40:
            if i == 43: i = 10
            elif pst: i = [4, 5, 6][i - 40]
            else: return
        elif pst and i in (4, 5, 6): return
        if i >= 30:
            if not gst: return
            i = gs[i - 30]; cyc = True
        elif gst and i in gs: return
        if tailst and 10 <= i <= 14: return
        if 20 <= i < 26:
            if not tailst: return
            i -= 10
        if i >= 26: i -= 16
        if stamp:
            a(f'{"s_memtime" if cyc else "s_memrealtime"} s[100:101]')
            a('s_waitcnt lgkmcnt(0)')
            a(f's_mov_b32 s{80+i}, s100')
    kernel_begin(a, name)
    a(f's_cmp_ge_u32 s2, 256\n s_cbranch_scc1 {name}_end')
    a('s_load_dwordx16 s[56:71], s[0:1], 0')
    a('s_load_dwordx8 s[72:79], s[0:1], 64')
    st(0)
    def codepf():
        if not pf_late: return
        _codepf('v_lshl_add_u32 v251, s26, 6, v0')
    def _codepf(tid):
        a(tid)
        a(f's_getpc_b64 s[42:43]')
        a(f'{name}_pc:')
        a(f's_sub_u32 s42, s42, {name}_pc-{name}')
        a(f's_subb_u32 s43, s43, 0')
        a(f's_lshr_b32 s44, s2, 3')
        a(f's_mul_i32 s44, s44, 3072')
        a(f'v_subrev_u32 v13, 192, v251')
        a(f'v_cmp_gt_u32 vcc, 24, v13')
        a(f'v_lshlrev_b32 v13, 7, v13')
        a(f'v_add_u32 v13, s44, v13')
        a(f'v_min_u32 v13, {name}_end-{name}-4, v13')
        a(f's_and_saveexec_b64 s[44:45], vcc')
        a(f's_cbranch_execz {name}_nopf')
        a(f'global_load_dword v250, v13, s[42:43]')
        a(f'{name}_nopf:')
        a(f's_mov_b64 exec, s[44:45]')
    if not pf_late: _codepf('v_mov_b32 v251, v0')
    a(f'v_lshrrev_b32 v{V_T0}, 6, v0')
    a(f'v_cmp_eq_u32 vcc, 0, v0')
    a(f'v_bfrev_b32 v{V_T1}, 1')
    a(f'v_and_b32 v0, 63, v0')
    a(f'v_readfirstlane_b32 s{S_W}, v{V_T0}')
    a(f'v_lshlrev_b32 v{V_L16}, 4, v0')
    a(f'v_cndmask_b32 v{V_FO}, v{V_T1}, 0, vcc')
    a(f's_and_b32 s{S_T0}, s2, 7')
    a(f's_lshr_b32 s{S_T1}, s2, 3')
    a(f's_and_b32 s{S_SPLIT}, s{S_T1}, 3')
    a(f's_lshr_b32 s{S_T1}, s{S_T1}, 2')
    a(f's_lshl_b32 s{S_PFOFF}, s{S_T1}, 2')
    a(f's_and_b32 s{S_TILE}, s{S_T0}, 3')
    a(f's_lshl_b32 s{S_TILE}, s{S_TILE}, 3')
    a(f's_add_u32 s{S_TILE}, s{S_TILE}, s{S_T1}')
    a(f's_lshr_b32 s{S_T0}, s{S_T0}, 2')
    a(f's_lshl_b32 s{S_GRP}, s{S_T0}, 5')
    a(f's_add_u32 s{S_GRP}, s{S_GRP}, s{S_TILE}')
    a(f's_mul_i32 s{S_B125}, s{S_T0}, 125')
    ucst = []
    def late_setup():
        a(f's_lshl_b32 s{S_QB}, s{S_TILE}, 2')
        a(f's_add_u32 s{S_QB}, s{S_QB}, s{S_W}')
        a(f's_cmp_lt_u32 s{S_QB}, 125')
        a(f's_cselect_b32 s{S_VALID}, 0, 0x80000000')
        a(f's_min_u32 s{S_QB}, s{S_QB}, 124')
        a(f's_add_u32 s{S_QB}, s{S_QB}, s{S_B125}')
        assert sum(sizes4) == 125
        starts = [sum(sizes4[:i]) for i in range(4)]
        a(f's_lshl_b32 s{S_KOFF}, s{S_SPLIT}, 3')
        a(f's_lshr_b32 s{S_T1}, {hex(sum(v << (8*i) for i, v in enumerate(starts)))}, s{S_KOFF}')
        a(f's_and_b32 s{S_T1}, s{S_T1}, 255')
        a(f's_add_u32 s{S_T1}, s{S_T1}, s{S_B125}')
        a(f's_lshr_b32 s{S_CNT}, {hex(sum((v - 2) << (8*i) for i, v in enumerate(sizes4)))}, s{S_KOFF}')
        a(f's_and_b32 s{S_CNT}, s{S_CNT}, 255')
        a(f's_lshl_b32 s{S_KOFF}, s{S_T1}, 15')
        a(f's_add_u32 s{S_VOFF}, s{S_KOFF}, {WS_VT}')
        if WS_XA: a(f's_add_u32 s{S_KOFF}, s{S_KOFF}, {WS_XA}')
        codepf()
    vm = VmQ()
    def emit(o, tag=None):
        a(o)
        if o.startswith('buffer_'): vm.issue(tag)
    def dma_ops(v0, v1, soff, sbase):
        ops = []
        for g in range(2):
            for i in range(4):
                pre = None
                if i == 0:
                    pre = f's_mov_b32 m0, s{sbase}' if g == 0 else f's_add_u32 m0, s{sbase}, 4096'
                ops.append((pre, f'buffer_load_dwordx4 v{v0 if g == 0 else v1}, {SRD}, s{soff} offen offset:{i*1024} sc1 lds'))
        return ops
    def emit_dma_now(tag, *args):
        for pre, op in dma_ops(*args):
            if pre: a(pre); a('s_nop 0')
            emit(op, tag)
    def xreduce(regs, op, tmp):
        for sw in ('v_permlane16_swap_b32', 'v_permlane32_swap_b32'):
            for i, r in enumerate(regs): a(f'v_mov_b32 v{tmp+i}, v{r}')
            if len(regs) < 3: a('s_nop 1')
            else: a('s_nop 0')
            for i, r in enumerate(regs): a(f'{sw} v{tmp+i}, v{r}')
            a('s_nop 1')
            for i, r in enumerate(regs): a(f'{op} v{r}, v{r}, v{tmp+i}')

    import k2z, sys
    a(f's_lshl_b32 s{S_W8K}, s{S_W}, 13')
    a(f'v_add_u32 v{V_DK0}, s{S_W8K}, v{V_L16}')
    a(f'v_add_u32 v{V_DK1}, 4096, v{V_DK0}')
    GN = 3 * TILE; GS = 584; CV = GN + 64 * GS; CS = 144; TB = CV + 20480
    S_VF = [42, 43, 49]; S_B10 = [50, 51, 45]; S_BT, S_RT = 63, 55
    S_CG = 64
    V_PL, V_PQ, V_HD = 26, 27, 28
    STL = [[112, 116], [120, 124], [164, 172]]
    def poll_ops(first_expr, ngrp, kind, dst, tag):
        pass
    def slowpoll(lab, dst, vo, so):
        slows.append((lab, dst, vo, so))
    slows = []
    def h_poll1():
        a(f's_lshr_b32 s{S_BT}, s{S_TILE}, 1')
        a(f'v_lshrrev_b32 v13, 3, v0')
        a(f's_sub_u32 s{S_T3}, s{S_BT}, 1')
        a(f'v_add_u32 v11, s{S_T3}, v13')
        a(f'v_med3_i32 v11, v11, 0, 15')
        a(f's_lshr_b32 s{S_T3}, s{S_KOFF}, 15')
        a(f's_sub_u32 s{S_T3}, s{S_T3}, s{S_B125}')
        a(f'v_cmp_lt_u32 vcc, 2, v13')
        a(f'v_and_b32 v13, 1, v13')
        a(f'v_add_u32 v13, s{S_T3}, v13')
        a(f'v_lshrrev_b32 v13, 3, v13')
        a(f'v_cndmask_b32 v11, v11, v13, vcc')
        a(f'v_and_b32 v13, 7, v0')
        a(f'v_lshl_add_u32 v11, v11, 3, v13')
        a(f'v_lshlrev_b32 v11, 7, v11')
        a(f's_and_b32 s{S_T3}, s{S_GRP}, 32')
        a(f's_lshl_b32 s{S_T3}, s{S_T3}, 9')
        a(f's_add_u32 s{S_T3}, s{S_T3}, {ZF + ZK}')
        emit(f'buffer_load_dword v{V_PL}, v11, {SRD}, s{S_T3} offen sc1', 'poll1')
    def chk(lab, dst, vo, so, tag):
        a(f's_waitcnt vmcnt({vm.need(tag)})')
        a(f'v_cmp_ne_u32 vcc, s{S_TAG}, v{dst}')
        a(f's_cbranch_vccnz {name}_{lab}s')
        a(f'{name}_{lab}k:')
        slows.append((lab, dst, vo, so))
    def h_loads1():
        chk('f1', V_PL, 11, S_T3, 'poll1')
        out = []
        for rnd in range(3):
            pre = [f's_lshl_b32 s{S_T4}, s{S_BT}, 3']
            if rnd < 2: pre.append(f's_add_u32 s{S_B10[rnd]}, s{S_W}, {4*rnd}')
            else: pre += [f's_cmp_lt_u32 s{S_W}, 2', f's_cselect_b32 s{S_T3}, 8, 4', f's_add_u32 s{S_B10[2]}, s{S_W}, s{S_T3}']
            pre += [f's_add_u32 s{S_T3}, s{S_T4}, s{S_B10[rnd]}', f's_sub_u32 s{S_T3}, s{S_T3}, 1', f's_cmp_lt_u32 s{S_T3}, 125',
                    f's_cselect_b32 s{S_VF[rnd]}, 1.0, 0', f's_cselect_b32 s{S_T3}, s{S_T3}, s{S_T4}', f's_add_u32 s{S_T3}, s{S_T3}, s{S_B125}',
                    f's_lshl_b32 s{S_T3}, s{S_T3}, 11', f's_add_u32 s{S_T3}, s{S_T3}, {WS_ST}']
            for h in range(2):
                out.append(pre + [(f'buffer_load_dwordx4 {vr(STL[rnd][h],4)}, v{V_L16}, {SRD}, s{S_T3} offen offset:{h*1024} sc1', 'st')]); pre = []
        pre = [f's_and_b32 s{S_PH}, s{S_W}, 1', f's_mul_i32 s{S_T3}, s{S_PH}, 9', f's_add_u32 s{S_T3}, s{S_T3}, s{S_T4}', f's_sub_u32 s{S_T3}, s{S_T3}, 1',
               f's_cmp_lt_u32 s{S_T3}, 125', f's_cselect_b32 s{S_T3}, s{S_T3}, s{S_T4}', f's_add_u32 s{S_T3}, s{S_T3}, s{S_B125}', f's_lshl_b32 s{S_T3}, s{S_T3}, 15',
               f's_lshr_b32 s{S_XCC}, s{S_W}, 1', f's_lshl1_add_u32 s{S_XCC}, s{S_CG}, s{S_XCC}', f's_lshl_b32 s{S_XCC}, s{S_XCC}, 11', f's_add_u32 s{S_T3}, s{S_T3}, s{S_XCC}',
               f's_xor_b32 s{S_XCC}, s{S_PH}, 1', f's_lshl_b32 s{S_XCC}, s{S_XCC}, 3', f's_add_u32 s{S_T3}, s{S_T3}, s{S_XCC}', f's_add_u32 s{S_T3}, s{S_T3}, {WS_G}']
        for ch in range(2):
            out.append(pre + [(f'buffer_load_dwordx2 {vr(V_HD+2*ch,2)}, v{V_L16}, {SRD}, s{S_T3} offen offset:{ch*1024} sc1', 'st')]); pre = []
        return h_k0() + out
    def h_k0():
        out = []
        first = [f's_mov_b32 s{S_KDMA}, s{S_W8K}']
        for pre, op in dma_ops(V_DK0, V_DK1, S_KOFF, S_KDMA):
            out.append(first + ([pre, 's_nop 0'] if pre else []) + [(op, 'K0')]); first = []
        pre = [f's_mul_i32 s{S_T4}, s{S_CG}, 20480', f's_mul_i32 s{S_XCC}, s{S_W}, 5120', f's_add_u32 s{S_T4}, s{S_T4}, s{S_XCC}',
               f's_add_u32 s{S_T4}, s{S_T4}, {WS_DWT}', f's_add_u32 m0, s{S_XCC}, {CV}', 's_nop 0']
        for i in range(5):
            if i == 4: pre = [f's_add_u32 s{S_T4}, s{S_T4}, 4096', f's_add_u32 m0, s{S_XCC}, {CV + 4096}', 's_nop 0']
            out.append(pre + [(f'buffer_load_dwordx4 v{V_L16}, {SRD}, s{S_T4} offen offset:{(i%4)*1024} sc1 lds', 'K0')]); pre = []
        return out
    def h_pollq():
        a(f's_lshr_b32 s{S_BT}, s{S_TILE}, 1')
        a(f's_lshr_b32 s{S_RT}, s{S_GRP}, 1')
        a(f's_mov_b32 s{S_PFS}, {f2h(1/512)}')
        assert hk[2] > hk[1]
        a(f'v_and_b32 v11, 7, v0')
        a(f'v_lshlrev_b32 v11, 7, v11')
        a(f's_lshl_b32 s{S_SLOW}, s{S_RT}, 10')
        a(f's_add_u32 s{S_SLOW}, s{S_SLOW}, {ZF + 2 * ZK}')
        emit(f'buffer_load_dword v{V_PQ}, v11, {SRD}, s{S_SLOW} offen sc1', 'pollq')
    assert hk[1] > -68
    def h_k1():
        out = []
        first = [f's_add_u32 s{S_KOFF}, s{S_KOFF}, {TILE}', f's_add_u32 s{S_KDMA}, s{S_KDMA}, {TILE}']
        for pre, op in dma_ops(V_DK0, V_DK1, S_KOFF, S_KDMA):
            out.append(first + ([pre, 's_nop 0'] if pre else []) + [(op, 'K1')]); first = []
        out[-1].append(f's_add_u32 s{S_KOFF}, s{S_KOFF}, {TILE}')
        return out
    def qload(f):
        pre = []
        if f == 0: pre = [f's_lshl_b32 s{S_T4}, s{S_QB}, 15', f's_add_u32 s{S_T4}, s{S_T4}, {WS_Q}']
        elif f % 4 == 0: pre = [f's_add_u32 s{S_T4}, s{S_T4}, 4096']
        return pre + [(f'buffer_load_dwordx4 {ar(4*f,4)}, v{V_L16}, {SRD}, s{S_T4} offen offset:{(f%4)*1024} sc1', ('Q', f))]
    def h_q():
        chk('fq', V_PQ, 11, S_SLOW, 'pollq')
        return [qload(f) for f in range(qearly)]
    assert hk[3] >= -15 and qearly <= -hk[3] - 1
    hooks = {hk[0]: h_poll1, hk[1]: h_loads1, hk[2]: h_pollq, -39: h_k1, hk[3]: h_q}
    flagf, p3slow = k2z.rg4(a, name, sys.modules[__name__], st, stamp, vm, hooks, slows, late_setup, **o2)
    AT = [[64, 68, 72, 76, 80, 84, 88, 92, 16, 20], [128, 132, 136, 140, 144, 148, 152, 156, 180, 188]]
    UACC = [192, 224]
    def gfrag(T, rb, ch): return (96 + 8 * rb + 4 * ch) if T == 0 else (160 + 16 * rb + 8 * ch)
    bg = []
    for f in range(qearly, 32): bg += qload(f)
    def bg_dma(tag, *args, **kw):
        for pre, op in dma_ops(*args, **kw):
            if pre: bg.append(pre); bg.append('s_nop 0')
            bg.append((op, tag))
    bgc = [0]
    def bgone():
        while bg:
            o = bg.pop(0)
            if isinstance(o, tuple):
                emit(*o); return
            a(o)
    def c(o, every=bg_pace):
        a(o); bgc[0] += 1
        if bgc[0] % every == 0: bgone()
    for _ in range(4): bgone()
    defer = o2.get('defer', 0)
    for idx in range(8 - defer, 8):
        base = UACC[idx >> 2] + 8 * (idx & 3); Z = 64
        for i in range(4): c(f'v_pk_mul_f32 {vr(Z+2*i,2)}, {vr(base+2*i,2)}, {vr(base+2*i,2)}')
        for i in range(4): c(f'v_pk_fma_f32 {vr(Z+2*i,2)}, {vr(Z+2*i,2)}, v[8:9], v[8:9] op_sel:[0,1,0] op_sel_hi:[1,1,0]')
        for i in range(4): c(f'v_pk_mul_f32 {vr(Z+2*i,2)}, {vr(Z+2*i,2)}, {vr(base+2*i,2)}')
        for i in range(8): c(f'v_exp_f32 v{Z+i}, v{Z+i}')
        for i in range(4): c(f'v_pk_add_f32 {vr(Z+2*i,2)}, {vr(Z+2*i,2)}, 1.0 op_sel_hi:[1,0]')
        for i in range(8): c(f'v_rcp_f32 v{Z+i}, v{Z+i}')
        for i in range(4): c(f'v_pk_mul_f32 {vr(base+2*i,2)}, {vr(base+2*i,2)}, {vr(Z+2*i,2)}')
    SC = 56
    a(f's_waitcnt vmcnt({vm.need("st")})')
    X = [STL[r][0] for r in range(3)]; Yr = [STL[r][1] for r in range(3)]
    for r in range(3):
        for i in range(4): c(f'v_add_f32 v{X[r]+i}, v{X[r]+i}, v{Yr[r]+i}')
    a(f'v_lshrrev_b32 v{V_T0}, 5, v0')
    a(f'v_bfe_u32 v{V_T1}, v0, 4, 1')
    for r in range(3):
        for i in (0, 2): a(f'v_permlane32_swap_b32 v{X[r]+i}, v{X[r]+i+1}')
    for r in range(3):
        for i in (0, 2): a(f'v_add_f32 v{X[r]+i}, v{X[r]+i}, v{X[r]+i+1}')
    a(f'v_lshl_add_u32 v{V_T0}, v{V_T1}, 1, v{V_T0}')
    a(f'v_and_b32 v{V_T1}, 7, v0')
    for r in range(3): a(f'v_permlane16_swap_b32 v{X[r]}, v{X[r]+2}')
    for r in range(3): a(f'v_add_f32 v{X[r]}, v{X[r]}, v{X[r]+2}')
    a(f'v_lshlrev_b32 v{V_T0}, 2, v{V_T0}')
    a(f'v_lshl_add_u32 v{V_T0}, v{V_T1}, 4, v{V_T0}')
    for r in range(3): a(f'v_mov_b32_dpp v{X[r]+1}, v{X[r]} row_ror:8 row_mask:0xf bank_mask:0xf')
    for r in range(3): c(f'v_mul_f32 v{X[r]}, {f2h(1/512)}, v{X[r]}')
    for r in range(3): c(f'v_mul_f32 v{X[r]+2}, v{X[r]}, v{X[r]}')
    for r in range(3): c(f'v_fma_f32 v{X[r]+1}, v{X[r]+1}, s{S_PFS}, -v{X[r]+2}')
    for r in range(3): c(f'v_max_f32 v{X[r]+1}, 0, v{X[r]+1}')
    for r in range(3): c(f'v_add_f32 v{X[r]+1}, {f2h(1e-5)}, v{X[r]+1}')
    for r in range(3): c(f'v_rsq_f32 v{X[r]+1}, v{X[r]+1}')
    for r in range(3):
        a(f's_lshl_b32 s{S_T0}, s{S_B10[r]}, 8')
        a(f's_add_u32 s{S_T0}, s{S_T0}, {TB}')
        a(f'v_add_u32 v{X[r]+3}, s{S_T0}, v{V_T0}')
    for r in range(3): c(f'v_mul_f32 v{X[r]+1}, s{S_VF[r]}, v{X[r]+1}')
    for r in range(3): c(f'v_mul_f32 v{X[r]}, -v{X[r]}, v{X[r]+1}')
    a('s_mov_b32 exec_lo, 0x00ff00ff')
    a('s_mov_b32 exec_hi, 0x00ff00ff')
    for r in range(3):
        a(f'ds_write_b32 v{X[r]+3}, v{X[r]+1}')
        a(f'ds_write_b32 v{X[r]+3}, v{X[r]} offset:128')
    a('s_mov_b64 exec, -1')
    A_NW, A_TR, A_HW, A_HT, A_BR, A_CW, A_CR = 5, 6, 8, 9, 11, 12, 15
    a(f'v_and_b32 v{V_T0}, 15, v0')
    a(f'v_lshrrev_b32 v{V_T1}, 4, v0')
    a(f'v_mul_u32_u24 v{A_HW}, {GS}, v{V_T0}')
    a(f'v_lshl_add_u32 v{A_HW}, v{V_T1}, 3, v{A_HW}')
    a(f's_lshl_b32 s{S_T0}, s{S_W}, 7')
    a(f's_add_u32 s{S_T0}, s{S_T0}, {GN}')
    a(f'v_add_u32 v{A_NW}, s{S_T0}, v{A_HW}')
    a(f's_lshr_b32 s{S_T2}, s{S_W}, 1')
    a(f's_mul_i32 s{S_T2}, s{S_T2}, {32*GS}')
    a(f's_mul_i32 s{S_T3}, s{S_PH}, {68*8}')
    a(f's_add_u32 s{S_T2}, s{S_T2}, s{S_T3}')
    a(f's_add_u32 s{S_T2}, s{S_T2}, {GN}')
    a(f'v_add_u32 v{A_HW}, s{S_T2}, v{A_HW}')
    a(f'v_lshlrev_b32 v{A_HT}, 4, v{V_T1}')
    a(f's_lshl_b32 s{S_T2}, s{S_W}, 9')
    a(f's_add_u32 s{S_T2}, s{S_T2}, {TB + 256}')
    a(f'v_add_u32 v{A_TR}, s{S_T2}, v{A_HT}')
    a(f's_mul_i32 s{S_T2}, s{S_PH}, {9*256 - 64}')
    a(f's_add_u32 s{S_T2}, s{S_T2}, {TB + 64}')
    a(f'v_add_u32 v{A_HT}, s{S_T2}, v{A_HT}')
    a(f'v_lshrrev_b32 v{A_CW}, 2, v0')
    a(f'v_and_b32 v{V_T0}, 3, v0')
    a(f'v_mul_u32_u24 v{A_BR}, {GS}, v{A_CW}')
    a(f'v_lshl_add_u32 v{A_BR}, v{V_T0}, 5, v{A_BR}')
    a(f'v_add_u32 v{A_BR}, s{S_T0}, v{A_BR}')
    a(f'v_and_b32 v{A_CW}, 3, v{A_CW}')
    a(f'v_lshl_add_u32 v{A_CW}, v{V_T1}, 3, v{A_CW}')
    a(f'v_mul_u32_u24 v{A_CW}, {CS}, v{A_CW}')
    a(f's_mul_i32 s{S_T2}, s{S_W}, {32*CS}')
    a(f's_add_u32 s{S_T2}, s{S_T2}, {CV}')
    a(f'v_add_u32 v{A_CW}, s{S_T2}, v{A_CW}')
    a(f'v_lshl_add_u32 v{A_CR}, v{V_T0}, 3, v{A_CW}')
    a(f'v_lshl_add_u32 v{A_CW}, v{V_T0}, 5, v{A_CW}')
    a('s_waitcnt lgkmcnt(0)')
    a('s_barrier')
    st(12)
    lq = LdsQ()
    a(f'v_add_u32 v{V_T0}, {CV}, v{V_L16}')
    twr = [f'ds_read_b128 {vr(AT[i//10][i%10],4)}, v{V_T0} offset:{i*1024}' for i in range(20)]
    units = [('h',)] + [(rb, hf) for rb in range(2) for hf in range(2)]
    def tread(n):
        t = 112 + 8 * (n % 2); u = units[n]
        ad, off = (A_HT, 0) if u[0] == 'h' else (A_TR, u[0] * 256 + u[1] * 64)
        a(f'ds_read_b128 {vr(t,4)}, v{ad} offset:{off}'); lq.issue(('t', n))
        a(f'ds_read_b128 {vr(t+4,4)}, v{ad} offset:{off + 128}'); lq.issue(('t', n))
    tread(0)
    for n, u in enumerate(units):
        if n + 1 < len(units): tread(n + 1)
        t = 112 + 8 * (n % 2)
        a(f's_waitcnt lgkmcnt({lq.need(("t", n))})')
        for _ in range(4): a(twr.pop(0)); lq.issue('tw')
        for T in range(1 if u[0] == 'h' else 2):
            src = lambda ch: (V_HD + 2 * ch) if u[0] == 'h' else gfrag(T, u[0], ch) + 2 * u[1]
            for ch in range(2):
                for i in range(2):
                    c(f'v_lshlrev_b32 v{SC+4*ch+2*i}, 16, v{src(ch)+i}')
                    c(f'v_and_b32 v{SC+4*ch+2*i+1}, 0xffff0000, v{src(ch)+i}')
            for ch in range(2):
                for i in range(2): c(f'v_pk_fma_f32 {vr(SC+4*ch+2*i,2)}, {vr(SC+4*ch+2*i,2)}, {vr(t+2*i,2)}, {vr(t+4+2*i,2)}')
            for ch in range(2):
                for i in range(2): c(f'v_cvt_pk_bf16_f32 v{src(ch)+i}, v{SC+4*ch+2*i}, v{SC+4*ch+2*i+1}')
                if u[0] == 'h': a(f'ds_write_b64 v{A_HW}, {vr(src(ch),2)} offset:{ch*16*GS}')
                else: a(f'ds_write_b64 v{A_NW}, {vr(src(ch),2)} offset:{(32*T + 16*ch)*GS + (4 + 8*u[0] + 4*u[1])*8}')
                lq.issue('w')
    a(f's_waitcnt vmcnt({vm.need(("st", "v"))}) lgkmcnt(0)')
    a('s_barrier')
    flagf(3)
    st(13)
    BR = [32, 96]
    def acc(gi, aa): return [[56, 60, 120, 124], [24, 28, 176, 184]][gi & 1][aa]
    def breads(gi): return [(f'ds_read_b64 {vr(BR[gi&1]+2*e,2)}, v{A_BR} offset:{gi*16*GS + e*8}', ('b', gi, e)) for e in range(12)]
    for o, t in breads(0): a(o); lq.issue(t)
    CF = 160; PKc = 176
    def mult(T):
        for fr in range(4):
            rb, rh = fr >> 1, fr & 1
            cc = CF + 4 * fr; u = UACC[T] + 16 * rb + 8 * rh; ub = 64 + 8 * (fr & 1)
            a(f's_waitcnt lgkmcnt({min(15, lq.need(("tr", T, fr)))})')
            for i in range(4):
                c(f'v_lshlrev_b32 v{ub+2*i}, 16, v{cc+i}')
                c(f'v_and_b32 v{ub+2*i+1}, 0xffff0000, v{cc+i}')
            for i in range(4): c(f'v_pk_mul_f32 {vr(ub+2*i,2)}, {vr(ub+2*i,2)}, {vr(u+2*i,2)}')
            for i in range(4): c(f'v_cvt_pk_bf16_f32 v{u+i}, v{ub+2*i}, v{ub+2*i+1}')
            ucst.append(f'buffer_store_dwordx4 {vr(u,4)}, v{3+rb}, {SRD}, s{58+rb} offen offset:{T*2048 + rh*1024} sc1')
    def finish(gi):
        T, ch = gi >> 1, gi & 1; ops = []
        for p in range(2):
            pk = acc(gi, 2 * p); b1 = acc(gi, 2 * p + 1)
            ops += [(f'v_cvt_pk_bf16_f32 v{pk}, v{pk}, v{pk+1}', None), (f'v_cvt_pk_bf16_f32 v{pk+1}, v{pk+2}, v{pk+3}', None),
                    (f'v_cvt_pk_bf16_f32 v{pk+2}, v{b1}, v{b1+1}', None), (f'v_cvt_pk_bf16_f32 v{pk+3}, v{b1+2}, v{b1+3}', None),
                    (f'ds_write_b128 v{A_CW}, {vr(pk,4)} offset:{ch*4*CS + 16*p}', 'cw')]
        if ch == 1:
            for fr in range(4):
                for jj in range(2): ops.append((f'ds_read_b64_tr_b16 {vr(CF+4*fr+2*jj,2)}, v{A_CR} offset:{jj*4*CS + fr*32}', ('tr', T, fr)))
        return ops
    for gi in range(4):
        T, ch = gi >> 1, gi & 1
        side = (breads(gi + 1) if gi < 3 else []) + (finish(gi - 1) if gi else [])
        if gi == 3: side = [('s_nop 0', None)] * 3 + side
        for dl in range(9):
            if dl % 3 == 0: a(f's_waitcnt lgkmcnt({min(15, lq.need(("b", gi, dl + 5)))})')
            ar_ = AT[T][5 * ch + dl // 2] + 2 * (dl & 1)
            for aa in range(4):
                d = vr(acc(gi, aa), 4)
                c(f'v_mfma_f32_4x4x4_16b_bf16 {d}, {vr(ar_,2)}, {vr(BR[gi&1]+2*(aa+dl),2)}, {d if dl else 0}', bg_pace // 2)
                if side:
                    o, t = side.pop(0); a(o)
                    if o.startswith('ds_'): lq.issue(t)
        assert not side
    mult(0)
    for o, t in finish(3):
        a(o)
        if o.startswith('ds_'): lq.issue(t)
    while bg: bgone()
    a(f's_sub_u32 s{S_T0}, s{S_VOFF}, {WS_VT}')
    a(f's_lshr_b32 s{S_T0}, s{S_T0}, 15')
    a(f's_sub_u32 s{S_T0}, s{S_T0}, s{S_B125}')
    a(f's_add_u32 s{S_T2}, s{S_T0}, s{S_CNT}')
    a(f's_add_u32 s{S_T2}, s{S_T2}, 1')
    a(f's_lshr_b32 s{S_T0}, s{S_T0}, 3')
    a(f's_lshr_b32 s{S_T2}, s{S_T2}, 3')
    a(f'v_lshrrev_b32 v{A_NW}, 3, v0')
    a(f'v_add_u32 v{A_NW}, s{S_T0}, v{A_NW}')
    a(f'v_min_u32 v{A_NW}, s{S_T2}, v{A_NW}')
    a(f'v_and_b32 v{V_T0}, 7, v0')
    a(f'v_lshl_add_u32 v{A_NW}, v{A_NW}, 3, v{V_T0}')
    a(f'v_lshlrev_b32 v{V_XO}, 7, v{A_NW}')
    a(f's_and_b32 s{S_T3}, s{S_GRP}, 32')
    a(f's_lshl_b32 s{S_T3}, s{S_T3}, 9')
    a(f's_add_u32 s{S_T3}, s{S_T3}, {ZF + 3 * ZK}')
    mult(1)
    emit(f'buffer_load_dword v{V_PFD}, v{V_XO}, {SRD}, s{S_T3} offen sc1', 'pollv')
    for op in ucst: emit(op, 'ucs')
    a(f'v_mov_b32 v127, v10')
    a(f's_add_u32 s{S_T1}, s{S_W}, s{S_SPLIT}')
    a(f's_and_b32 s{S_T1}, s{S_T1}, 3')
    a(f's_lshl_b32 s{S_T1}, s{S_T1}, 13')
    a(f'v_add_u32 v{V_DV0}, s{S_T1}, v{V_L16}')
    a(f'v_add_u32 v{V_DV1}, 4096, v{V_DV0}')
    a(f's_mov_b32 s{S_KDMA}, s{S_W8K}')
    a(f's_mov_b32 s{S_VRD}, {2*TILE}')
    st(1)
    if prefetch:
        a(f's_add_u32 s{S_PFOFF}, s{S_PFOFF}, s{S_W}')
        a(f's_and_b32 s{S_T1}, s{S_PFOFF}, 15')
        a(f's_lshl_b32 s{S_T1}, s{S_T1}, 11')
        a(f's_cmp_ge_u32 s{S_PFOFF}, 16')
        a(f's_cselect_b32 s{S_PFOFF}, {WS_VT - WS_XA - TILE}, 0')
        a(f's_add_u32 s{S_T1}, s{S_T1}, s{S_PFOFF}')
        a(f's_add_u32 s{S_T1}, s{S_T1}, {prefetch * TILE}')
        a(f'v_lshlrev_b32 v{V_PF}, 5, v0')
        a(f'v_add_u32 v{V_PF}, s{S_T1}, v{V_PF}')
    a(f'v_mov_b32 v{V_KA}, v{V_L16}')
    a(f'v_add_u32 v{V_VA}, s{S_VRD}, v{V_L16}')
    a(f'v_mov_b32 v{V_L0}, 0')
    a(f'v_mov_b32 v{V_L1}, 0')
    nround = -(-64 // NR)
    sizes = [64 // nround + (1 if i < 64 % nround else 0) for i in range(nround)]
    slotmap = [i for sz in sizes for i in range(sz)]
    assert LA + 1 <= min(sizes) and max(sizes) <= NR and V_RING + 4 * NR <= V_PF
    def slot(f): return V_RING + 4 * slotmap[f % 64]
    def rd(f):
        if f < 32 and chain: return f'ds_read_b128 {vr(slot(f),4)}, v{V_KA} offset:{((f & 15)*2 + (f >> 4))*1024}'
        if f < 32: return f'ds_read_b128 {vr(slot(f),4)}, v{V_KA} offset:{f*1024}'
        return f'ds_read_b128 {vr(slot(f),4)}, v{V_VA} offset:{(f-32)*1024}'
    def Sreg(kh, qh): return V_S + (kh * 2 + qh) * 4
    def mfmas(f, zero_c=False, first=False):
        order = (1, 0) if (snake and (f & 1)) else (0, 1)
        out = []
        if chain and f < 32:
            kh = f >> 4; s0 = f & 14; qh = (f & 1) ^ ((f >> 1) & 1); fb = f & ~1
            for k in range(2):
                s = s0 + k
                c = vr(Sreg(kh, qh), 4) if s else ('0' if zero_c else vr(V_NEGM + 4 * qh, 4))
                out.append(f'v_mfma_f32_16x16x32_bf16 {vr(Sreg(kh,qh),4)}, {vr(slot(fb+k),4)}, {ar((s*2+qh)*4,4)}, {c}')
            return out
        for qh in order:
            if f < 32:
                s, kh = f >> 1, f & 1
                c = vr(Sreg(kh, qh), 4) if s else ('0' if zero_c else vr(V_NEGM + 4 * qh, 4))
                out.append(f'v_mfma_f32_16x16x32_bf16 {vr(Sreg(kh,qh),4)}, {vr(slot(f),4)}, {ar((s*2+qh)*4,4)}, {c}')
            else:
                b = f - 32
                out.append(f'v_mfma_f32_16x16x32_bf16 {Oreg(b,qh)}, {vr(slot(f),4)}, {vr(V_P+4*qh,4)}, {0 if first else Oreg(b,qh)}')
        return out
    q = LdsQ()
    zero = []
    for f in range(LA):
        a(rd(f)); q.issue(f)
    a(f's_waitcnt vmcnt({vm.need(("Q", 31))})')
    v0ops = []
    for f in range(32):
        a(f's_waitcnt lgkmcnt({q.need(f | 1)})')
        for m in mfmas(f, zero_c=True):
            a(m)
        if f + LA < 32:
            a(rd(f + LA)); q.issue(f + LA)
        if f == vchk:
            chk('fv', V_PFD, V_XO, S_T3, 'pollv')
            a(f's_add_u32 s{S_VDMA}, s{S_W8K}, {2*TILE}')
            v0ops = dma_ops(V_DV0, V_DV1, S_VOFF, S_VDMA)
        if v0ops:
            pre, op = v0ops.pop(0)
            if pre: a(pre); a('s_nop 0')
            emit(op, 'V0')
    for pre, op in v0ops:
        if pre: a(pre); a('s_nop 0')
        emit(op, 'V0')
    a(f's_add_u32 s{S_VOFF}, s{S_VOFF}, {TILE}')
    a(f's_add_u32 s{S_VDMA}, s{S_VDMA}, {TILE}')
    a('s_nop 5')
    def max_all():
        ops = [f'v_max3_f32 v{V_MX}, v{V_S}, v{V_S+1}, v{V_S+2}']
        for i in range(6): ops.append(f'v_max3_f32 v{V_MX}, v{V_MX}, v{V_S+3+2*i}, v{V_S+4+2*i}')
        ops.append(f'v_max_f32 v{V_MX}, v{V_MX}, v{V_S+15}')
        return ops
    def rowmax2(d0, d1, tmp):
        for qh, dst in ((0, d0), (1, d1)):
            r0, r1 = Sreg(0, qh), Sreg(1, qh)
            a(f'v_max3_f32 v{dst}, v{r0}, v{r0+1}, v{r0+2}')
            a(f'v_max3_f32 v{dst}, v{dst}, v{r0+3}, v{r1}')
            a(f'v_max3_f32 v{dst}, v{dst}, v{r1+1}, v{r1+2}')
            a(f'v_max_f32 v{dst}, v{dst}, v{r1+3}')
        xreduce([d0, d1], 'v_max_f32', tmp)
    exp_ops = [f'v_exp_f32 v{V_E+i}, v{V_S+i}' for i in range(16)]
    sum_ops = [f'v_add_f32 v{V_L1 if (i >> 2) & 1 else V_L0}, v{V_L1 if (i >> 2) & 1 else V_L0}, v{V_E+i}' for i in range(16)]
    cvt_ops = []
    for qh in range(2):
        for kh in range(2):
            e = V_E + (kh * 2 + qh) * 4
            for i in range(2):
                cvt_ops.append(f'v_cvt_pk_bf16_f32 v{V_P+4*qh+2*kh+i}, v{e+2*i}, v{e+2*i+1}')
    rowmax2(V_F0, V_F1, 120)
    for qh, dst in ((0, V_F0), (1, V_F1)):
        for kh in range(2):
            for i in range(4): a(f'v_sub_f32 v{Sreg(kh,qh)+i}, v{Sreg(kh,qh)+i}, v{dst}')
        for i in range(4): a(f'v_sub_f32 v{V_NEGM+4*qh+i}, 0, v{dst}')
    for o in exp_ops: a(o)
    for o in zero: a(o)
    a(f'v_xor_b32 v{V_KA}, 0x8000, v{V_KA}')
    a(f's_lshl2_add_u32 s{S_FLO}, s{S_GRP}, s{S_W}')
    a(f's_lshl_b32 s{S_FLO}, s{S_FLO}, 9')
    a(f's_add_u32 s{S_FLO}, s{S_FLO}, {ZF_PART}')
    a(f'v_and_b32 v{V_FL}, 3, v0')
    a(f'v_lshlrev_b32 v{V_FL}, 7, v{V_FL}')
    a(f's_lshl_b32 s{S_T2}, s72, 7')
    a(f's_add_u32 s{S_T2}, s{S_T2}, {ZF + 4 * ZK}')
    a(f'v_mov_b32 v126, s{S_TAG}')
    a(f's_waitcnt vmcnt({vm.need("K1")})')
    a('s_barrier')
    st(2); st(8, True)
    if stamp: a('s_waitcnt lgkmcnt(0)')
    q = LdsQ()
    for f in range(LA):
        a(rd(f)); q.issue(f)

    L_loop = f'{name}_loop'
    rare = []
    border = list(range(8, 32)) + list(range(8))
    YB = 192
    stream = [('pv', b) for b in border] + [('yc', T, f) for T in range(4) for f in range(32)]
    NS = len(stream)
    WA = [V_VA, V_DV0, V_DV1, V_PF]
    def srd_(i):
        it = stream[i]
        if it[0] == 'pv': return f'ds_read_b128 {vr(slot(i),4)}, v{V_KA} offset:{it[1]*1024}'
        if chain and it[1]: return f'ds_read_b128 {vr(slot(i),4)}, v{WA[it[1]]} offset:{((it[2] & 15)*2 + (it[2] >> 4))*1024}'
        return f'ds_read_b128 {vr(slot(i),4)}, v{WA[it[1]]} offset:{it[2]*1024}'
    def ucload(f):
        ops = []
        if f % 4 == 0 and f: ops.append(f's_add_u32 s{S_UCO}, s{S_UCO}, 4096')
        ops.append((f'buffer_load_dwordx4 {ar(4*f,4)}, v{V_L16}, {SRD}, s{S_UCO} offen offset:{(f%4)*1024} sc1', ('uc', f)))
        return ops
    stubs = []
    class Dual:
        def __init__(self, op, tag, fast): self.op, self.tag, self.fast = op, tag, fast
    def em(o):
        if isinstance(o, Dual) and force_slow:
            emit(f'{o.op} sc1', o.tag); return
        if isinstance(o, Dual):
            lab = a.label(name + '_ds')
            a(f's_cbranch_vccnz {lab}')
            emit(f'{o.op} {o.fast}', o.tag)
            a(f'{lab}b:')
            stubs.append((lab, o.op))
            return
        if callable(o): o = o()
        if noyc and isinstance(o, tuple) and ((o[1] == 'x' and 'x' in noyc) or (isinstance(o[1], tuple) and o[1][0] in ('uc', 'wc') and o[1][0] in noyc)):
            vm.last[o[1]] = vm.last.get('dL', 0); return
        if isinstance(o, tuple): emit(*o)
        else: emit(o)
    nuc = [0]
    def body(last, first=False):
        tag = 'L' if last else ('F' if first else 'M')
        L_r1, L_r1b, L_r2, L_r2b = [f'{name}_{x}{tag}' for x in ('r1', 'r1b', 'r2', 'r2b')]
        rare.append((L_r1, L_r1b, L_r2, L_r2b))
        fill = [[] for _ in range(128)]
        cap = [CAP - 1 if p % 2 == 0 else CAP for p in range(128)]
        for p in range(128):
            if p % 2 == 1 and ((p + 1) // 2) % wait_every == 0: cap[p] -= 1
        cap[127] -= 3
        if cmp_early and not (last or first): cap[126] -= 1
        def put(pos, ops, cost):
            if not isinstance(ops, list): ops = [ops]
            while cap[pos] < cost: pos += 1
            cap[pos] -= cost
            fill[pos] += ops
            return pos
        if not last: bw = f's_waitcnt vmcnt({1 if prefetch else 0})'
        else: bw = lambda: f's_waitcnt vmcnt({vm.need("dL")})'
        pb = put(2 * bar_pos + 1, [bw] + ([] if 'nobar' in dbg and not last else ['s_barrier']), 2)
        assert pb < 2 * (64 - LA)
        if first:
            pf_ = put(2 * (32 - LA) - 5, [lambda: f's_waitcnt vmcnt({vm.need("V0")})', 's_barrier',
                                          f'buffer_store_dword v126, v127, {SRD}, s{S_T2} offen sc1'], 2)
            assert pf_ < 2 * (32 - LA)
        dk, dv = dma_ops(V_DK0, V_DK1, S_WCO if last else S_KOFF, S_KDMA), dma_ops(V_DV0, V_DV1, S_VOFF, S_VDMA)
        dm = dv + dk if last else dk + dv
        p = 0
        if last and not tailpf:
            p = put(p, (f'buffer_load_dword v{V_PFD}, v{V_FL}, {SRD}, s{S_FLO} offen sc1', 'poll'), dma_cost) + 1
            for c in range(npf, 3 if pfill else 0):
                p = put(p, f'buffer_load_dword v{V_T0}, v{V_PF}, {SRD}, s{S_PFS} offen', dma_cost) + 1
                p = put(p, f's_add_u32 s{S_PFS}, s{S_PFS}, 8192', 1) + 1
            if pfill: p = put(p, f'buffer_load_dword v{V_T0}, v{V_L16}, {SRD}, s{S_PFS} offen', dma_cost) + 1
        for pre, op in dm:
            if pre: p = put(p, pre, 1) + 1
            p = put(p, (op, 'dL'), dma_cost) + dma_gap
        if prefetch and not last:
            p = put(p, f'buffer_load_dword v{V_PFD}, v{V_PF}, s[96:99], s{S_PFS} offen {pf_flags}', dma_cost) + 1
        pdma = p
        assert pdma <= pb
        if last and not tailpf:
            p = put(56, [lambda: f's_waitcnt vmcnt({vm.need("poll")})', f'v_cmp_ne_u32 s[{S_T3}:{S_T3+1}], s{S_TAG}, v{V_PFD}'], 2) + 2
            p = put(p, [f's_cmp_eq_u64 s[{S_T3}:{S_T3+1}], 0', f's_cbranch_scc0 {name}_cfslow', f'{name}_cfok:'], 2) + 1
            p = put(p, f'v_cmp_ne_u32 s[{S_SLOW}:{S_SLOW+1}], s{S_XCC}, v{V_PFD}', 1) + 1
            assert p <= pdma + 4
        p = 68
        for o in max_all(): p = put(p, o, 1)
        p = put(p, f'v_cmp_lt_f32 vcc, {hex(THR)}, v{V_MX}', 1) + 1
        p = put(p + brgap, ([] if 'nobr1' in dbg else [f's_cbranch_vccnz {L_r1}']) + [f'{L_r1b}:'], 1) + 1
        for i, o in enumerate(exp_ops):
            if 'noexp' not in dbg: p = put(p, o, 2)
        p = 0
        for o in cvt_ops: p = put(p, o, 1)
        for o in sum_ops: p = put(p, o, 1)
        assert p < 60
        upd = [f's_add_u32 s{S_KOFF}, s{S_KOFF}, {TILE}', f's_add_u32 s{S_PFS}, s{S_PFS}, s{S_PFST}',
               f's_add_u32 s{S_VOFF}, s{S_VOFF}, {TILE}',
               f's_xor_b32 s{S_KDMA}, s{S_KDMA}, {TILE}',
               f's_add_u32 s{S_VDMA}, s{S_VDMA}, {TILE}',
               f's_cmp_ge_u32 s{S_VDMA}, {5*TILE}', f's_cselect_b32 s{S_T1}, {3*TILE}, 0',
               f's_sub_u32 s{S_VDMA}, s{S_VDMA}, s{S_T1}',
               f's_add_u32 s{S_VRD}, s{S_VRD}, {TILE}',
               f's_cmp_ge_u32 s{S_VRD}, {5*TILE}', f's_cselect_b32 s{S_VRD}, {2*TILE}, s{S_VRD}',
               f's_sub_u32 s{S_CNT}, s{S_CNT}, 1']
        if not last:
            p = pdma
            for o in upd: p = put(p, o, 1)
            put(2 * (32 - LA) + 1, f'v_xor_b32 v{V_KA}, 0x8000, v{V_KA}', 1)
            put(max(p + 1, 2 * (64 - LA) + 1), f'v_add_u32 v{V_VA}, s{S_VRD}, v{V_L16}', 1)
        else:
            p = 2 * (32 - LA) + 1
            for o in [f's_sub_u32 s{S_KOFF}, s{S_VDMA}, s{S_W8K}', f'v_add_u32 v{V_KA}, s{S_KOFF}, v{V_L16}',
                      f's_sub_u32 s{S_WB0}, s{S_KDMA}, s{S_W8K}', f's_xor_b32 s{S_WB1}, s{S_WB0}, {TILE}', f's_mov_b32 s{S_WB3}, s{S_VRD}',
                      f's_add_u32 s{S_WB2}, s{S_WB3}, s{S_KOFF}', f's_sub_u32 s{S_WB2}, {9*TILE}, s{S_WB2}']:
                p = put(p, o, 1) + 1
            p = max(pdma, 66)
            while p < 127 and nuc[0] < 32:
                fill[p] += ucload(nuc[0]); nuc[0] += 1
                p += uc_pace
        for f in range(64):
            if f % wait_every == 0:
                a(f's_waitcnt lgkmcnt({q.need(min(f + wait_every - 1, 63))})')
            mm = mfmas(f, first=first)
            a(mm[0])
            nf = f + LA
            if nf < 64 or not last:
                a(rd(nf % 64)); q.issue(nf % 64)
            else:
                a(srd_(nf - 64)); q.issue(('s', nf - 64))
            for o in fill[2 * f]: em(o)
            a(mm[1])
            for o in fill[2 * f + 1]: em(o)
        if last or first or not nobr2:
            a(f's_cbranch_vccnz {L_r2}')
            a(f'{L_r2b}:')
    a(f's_lshl_b32 s{S_WCO}, s{S_SPLIT}, 17')
    a(f's_add_u32 s{S_WCO}, s{S_WCO}, {WS_WC}')
    a(f's_lshl_b32 s{S_UCO}, s{S_QB}, 15')
    a(f's_add_u32 s{S_UCO}, s{S_UCO}, {WS_UC}')
    a(f's_mov_b32 s{S_PFS}, s{S_KOFF}')
    a(f's_mov_b32 s{S_PFST}, {TILE}')
    a(f's_mov_b32 s{S_PH}, 0')
    NPH = 4 if tailpf else 0
    a(f's_sub_u32 s{S_CNT}, s{S_CNT}, {NPH}')
    make_srd(a, 96, S_WS, 0, WS_SIZE)
    a(f's_lshl_b32 s{S_PB}, s{S_GRP}, 2')
    a(f's_add_u32 s{S_PB}, s{S_PB}, s{S_SPLIT}')
    a(f's_lshl_b32 s{S_PB}, s{S_PB}, 2')
    a(f's_add_u32 s{S_PB}, s{S_PB}, s{S_W}')
    a(f's_lshl_b32 s{S_PB}, s{S_PB}, 15')
    a(f's_add_u32 s{S_PB}, s{S_PB}, {WS_PART}')
    S_LIM = 55
    a(f's_mov_b32 s{S_LIM}, 0')
    body(False, first=True)
    a('.p2align 6')
    a(f'{L_loop}:')
    body(False)
    if nobr2:
        a(f's_cmp_gt_u32 s{S_CNT}, s{S_LIM}')
        a(f's_cbranch_scc1 {L_loop}')
        a(f's_cbranch_vccnz {name}_r2M')
        a(f'{name}_r2bM:')
        a(f's_mov_b32 s{S_LIM}, 0')
    a(f's_cmp_lg_u32 s{S_CNT}, 0')
    a(f's_cbranch_scc1 {L_loop}')
    if tailpf == 1:
        a(f's_add_u32 s{S_PH}, s{S_PH}, 1')
        a(f's_mov_b32 s{S_CNT}, 1')
        a(f's_cmp_eq_u32 s{S_PH}, 5\n s_cbranch_scc1 {name}_ph5')
        a(f's_cmp_eq_u32 s{S_PH}, 4\n s_cbranch_scc1 {name}_ph4')
        a(f's_cmp_eq_u32 s{S_PH}, 3\n s_cbranch_scc1 {name}_ph3')
        a(f's_cmp_eq_u32 s{S_PH}, 2\n s_cbranch_scc1 {name}_ph2')
        a(f's_mov_b32 s96, s{S_X}\n s_mov_b32 s97, s{S_X+1}\n s_mov_b32 s98, 8192000')
        a(f'v_lshrrev_b32 v{V_PF}, 1, v0')
        a(f'v_lshlrev_b32 v{V_PF}, 10, v{V_PF}')
        a(f'v_and_b32 v{V_T0}, 1, v0')
        a(f'v_lshl_add_u32 v{V_PF}, v{V_T0}, 7, v{V_PF}')
        a(f's_lshl_b32 s{S_PFS}, s{S_QB}, 15')
        a(f's_lshl_b32 s{S_T1}, s{S_SPLIT}, 8')
        a(f's_add_u32 s{S_PFS}, s{S_PFS}, s{S_T1}')
        a(f's_branch {L_loop}')
        a(f'{name}_ph2:')
        a(f's_mov_b32 s96, s{S_WS}\n s_mov_b32 s97, s{S_WS+1}\n s_mov_b32 s98, {WS_SIZE}')
        a(f'v_and_b32 v{V_XO}, 7, v0')
        a(f'v_lshlrev_b32 v{V_XO}, 7, v{V_XO}')
        a(f'v_mov_b32 v{V_PF}, v{V_XO}')
        a(f's_add_u32 s{S_SLOW}, s{S_SLOW}, {2 * ZK}')
        a(f's_mov_b32 s{S_PFS}, s{S_SLOW}')
        a(f's_branch {L_loop}')
        a(f'{name}_ph3:')
        a('s_waitcnt vmcnt(0)')
        a(f'v_cmp_ne_u32 s[{S_T3}:{S_T3+1}], s{S_TAG}, v{V_PFD}')
        a(f'v_lshlrev_b32 v{V_PF}, 7, v0')
        a(f's_lshl_b32 s{S_PFS}, s{S_SPLIT}, 13')
        a(f's_add_u32 s{S_PFS}, s{S_PFS}, s{S_UCO}')
        a('s_nop 1')
        a(f's_cmp_eq_u64 s[{S_T3}:{S_T3+1}], 0')
        a(f's_cbranch_scc0 {name}_cfslow')
        a(f'{name}_cfok:')
        a(f's_branch {L_loop}')
        a(f'{name}_ph4:')
        a(f'v_lshlrev_b32 v{V_PF}, 6, v0')
        a(f's_and_b32 s{S_PFS}, s{S_TILE}, 7')
        a(f's_lshl_b32 s{S_PFS}, s{S_PFS}, 2')
        a(f's_add_u32 s{S_PFS}, s{S_PFS}, s{S_W}')
        a(f's_lshl_b32 s{S_PFS}, s{S_PFS}, 12')
        a(f's_add_u32 s{S_PFS}, s{S_PFS}, s{S_WCO}')
        a(f's_branch {L_loop}')
        a(f'{name}_ph5:')
    if tailpf == 2:
        a(f's_add_u32 s{S_PH}, s{S_PH}, 1')
        a(f's_mov_b32 s{S_CNT}, 1')
        a(f's_cmp_eq_u32 s{S_PH}, 5\n s_cbranch_scc1 {name}_ph5')
        a(f's_cmp_eq_u32 s{S_PH}, 4\n s_cbranch_scc1 {name}_ph4')
        a(f's_cmp_eq_u32 s{S_PH}, 3\n s_cbranch_scc1 {name}_ph3')
        a(f's_cmp_eq_u32 s{S_PH}, 2\n s_cbranch_scc1 {name}_ph2')
        a(f'v_and_b32 v{V_XO}, 7, v0')
        a(f'v_lshlrev_b32 v{V_XO}, 7, v{V_XO}')
        a(f's_add_u32 s{S_SLOW}, s{S_SLOW}, {2 * ZK}')
        a(f'buffer_load_dword v124, v{V_XO}, {SRD}, s{S_SLOW} offen sc1')
        if tlb:
            a(f'v_lshlrev_b32 v125, 10, v{V_FL}')
            a(f's_lshl_b32 s{S_T1}, s{S_GRP}, 19')
            a(f's_add_u32 s{S_T1}, s{S_T1}, {WS_PART + 28672}')
            a(f'buffer_load_dword v126, v125, {SRD}, s{S_T1} offen sc1')
            a(f's_lshl_b32 s{S_T1}, s{S_QB}, 15')
            a(f'v_mov_b32 v125, 0')
            a(f'buffer_load_dword v126, v125, {SRO}, s{S_T1} offen sc1')
        a(f's_branch {L_loop}')
        a(f'{name}_ph2:')
        a(f'v_mov_b32 v{V_PFD}, v124' if False else 's_nop 0')
        a(f'v_cmp_ne_u32 s[{S_T3}:{S_T3+1}], s{S_TAG}, v124')
        a(f'v_lshrrev_b32 v125, 1, v0')
        a(f'v_lshlrev_b32 v125, 10, v125')
        a(f'v_and_b32 v{V_T0}, 1, v0')
        a(f'v_lshl_add_u32 v125, v{V_T0}, 7, v125')
        a(f's_lshl_b32 s{S_T2}, s{S_QB}, 15')
        a(f's_lshl_b32 s{S_T1}, s{S_SPLIT}, 8')
        a(f's_add_u32 s{S_T1}, s{S_T1}, s{S_T2}')
        a(f'buffer_load_dword v126, v125, {SRX}, s{S_T1} offen')
        a(f's_cmp_eq_u64 s[{S_T3}:{S_T3+1}], 0')
        a(f's_cbranch_scc0 {name}_cfslow')
        a(f'{name}_cfok:')
        a(f's_branch {L_loop}')
        a(f'{name}_ph3:')
        a(f'v_lshlrev_b32 v125, 7, v0')
        a(f's_lshl_b32 s{S_T1}, s{S_SPLIT}, 13')
        a(f's_add_u32 s{S_T1}, s{S_T1}, s{S_UCO}')
        a(f'buffer_load_dword v126, v125, {SRD}, s{S_T1} offen sc1')
        a(f's_branch {L_loop}')
        a(f'{name}_ph4:')
        a(f'v_lshlrev_b32 v125, 6, v0')
        a(f's_and_b32 s{S_T1}, s{S_TILE}, 7')
        a(f's_lshl2_add_u32 s{S_T1}, s{S_T1}, s{S_W}')
        a(f's_lshl_b32 s{S_T1}, s{S_T1}, 12')
        a(f's_add_u32 s{S_T1}, s{S_T1}, s{S_WCO}')
        a(f'buffer_load_dword v126, v125, {SRD}, s{S_T1} offen sc1')
        a(f'v_bfrev_b32 v{V_PF}, 1')
        a(f's_branch {L_loop}')
        a(f'{name}_ph5:')
    st(3); st(9, True)
    if stamp: a('s_waitcnt lgkmcnt(0)')
    body(True)
    st(15)
    if stamp: a('s_waitcnt lgkmcnt(0)')
    def smf(i):
        it = stream[i]; out = []
        if chain and it[0] == 'yc' and it[1]:
            T, f = it[1], it[2]; ch = f >> 4; qh = (f & 1) ^ ((f >> 1) & 1)
            d = vr(YB + 8 * (2 * T + ch) + 4 * qh, 4)
            for k in range(2):
                s = (f & 14) + k
                out.append(f'v_mfma_f32_16x16x32_bf16 {d}, {vr(slot((i & ~1) + k),4)}, {ar((s*2+qh)*4,4)}, {d if s or (xinit if tail != 5 else T == 3) else 0}')
            return out
        for qh in ((1, 0) if (snake and (i & 1)) else (0, 1)):
            if it[0] == 'pv':
                out.append(f'v_mfma_f32_16x16x32_bf16 {Oreg(it[1],qh)}, {vr(slot(i),4)}, {vr(V_P+4*qh,4)}, {Oreg(it[1],qh)}')
            else:
                T, f = it[1], it[2]; s, ch = f >> 1, f & 1
                d = vr(YB + 8 * (2 * T + ch) + 4 * qh, 4)
                out.append(f'v_mfma_f32_16x16x32_bf16 {d}, {vr(slot(i),4)}, {ar((s*2+qh)*4,4)}, {d if s or (xinit and tail != 5) else 0}')
        return out
    a(f's_mov_b64 vcc, s[{S_SLOW}:{S_SLOW+1}]' if not force_slow else 's_mov_b64 vcc, -1')
    for o in cvt_ops: a(o)
    a(f's_lshl_b32 s{S_T0}, s{S_GRP}, 2')
    a(f'v_add_u32 v{WA[0]}, s{S_WB0}, v{V_L16}')
    pend = [(0, o, 1) for o in sum_ops]
    for i, sb in enumerate((S_WB1, S_WB2, S_WB3)): pend.append((0, f'v_add_u32 v{WA[i+1]}, s{sb}, v{V_L16}', 1))
    rot = 0
    for qd in range(1, 4):
        hdr = [f's_add_u32 s{S_PO}, s{S_PB}, {(qd-1)*8192}']
        for gm in range(4):
            for qh in range(2):
                b0 = 8 * qd + 2 * gm
                ready = 2 * (border.index(b0 + 1) + 1) + 6
                idx = gm * 2 + qh
                if idx == 0:
                    for h in hdr: pend.append((0, h, 1))
                if idx == 4: pend.append((ready, f's_add_u32 s{S_PO}, s{S_PO}, 4096', 1))
                tb = V_S + 8 * (rot % 2); pk = V_E + 4 * (rot % 4); rot += 1
                srcs = []
                for b in range(2):
                    for r in range(4):
                        o = Obase(b0 + b, qh) + r
                        if qd == 1: srcs.append(o)
                        else:
                            pend.append((ready, f'v_accvgpr_read_b32 v{tb+4*b+r}, a{o}', 1)); srcs.append(tb + 4 * b + r)
                for r in range(4): pend.append((ready, f'v_cvt_pk_bf16_f32 v{pk+r}, v{srcs[2*r]}, v{srcs[2*r+1]}', 1))
                pend.append((ready, Dual(f'buffer_store_dwordx4 {vr(pk,4)}, v{V_L16}, {SRD}, s{S_PO} offen offset:{(idx%4)*1024}', 'part', fast_st), 2))
    def stats_block():
        xreduce([V_L0, V_L1], 'v_add_f32', 124)
        a(f'v_mov_b32 v120, v{V_L0}')
        a(f'v_sub_f32 v121, 0, v{V_NEGM}')
        a(f'v_mov_b32 v122, v{V_L1}')
        a(f'v_sub_f32 v123, 0, v{V_NEGM+4}')
        a(f's_add_u32 s{S_T1}, s{S_PB}, {3*8192}')
        em(Dual(f'buffer_store_dwordx4 v[120:123], v{V_L16}, {SRD}, s{S_T1} offen', 'part', fast_st))
    XV = V_P
    def x_setup():
        a(f'v_lshrrev_b32 v{V_T0}, 4, v0')
        a(f'v_and_b32 v{V_T1}, 15, v0')
        a(f'v_xor_b32 v{V_T2}, v{V_T0}, v{V_T1}')
        a(f'v_lshlrev_b32 v{V_T2}, 4, v{V_T2}')
        a(f'v_lshl_add_u32 v{XV}, v{V_T0}, 10, v{V_T2}')
        for i in range(1, 4): a(f'v_xor_b32 v{XV+i}, {i*64}, v{XV}')
        a(f's_add_u32 s{S_KOFF}, s{S_KOFF}, s{S_W8K}')
        a(f'v_lshl_add_u32 v{XV+4}, v{V_T1}, 8, v{V_T2}')
        a(f'v_add_u32 v{XV+4}, s{S_KOFF}, v{XV+4}')
        for i in range(1, 4): a(f'v_xor_b32 v{XV+4+i}, {i*64}, v{XV+4}')
        a(f'v_add_u32 v{V_XO}, s{S_KOFF}, v{V_L16}')
        a(f's_lshl_b32 s{S_T4}, s{S_QB}, 15')
        a(f's_lshl_b32 s{S_T1}, s{S_SPLIT}, 8')
        a(f's_add_u32 s{S_T4}, s{S_T4}, s{S_T1}')
    def wc_dma(T):
        out = []
        first = [f's_add_u32 s{S_WCO}, s{S_WCO}, {TILE}', f's_add_u32 s{S_T2}, s{(S_WB0, S_WB1, S_WB2, S_WB3)[T]}, s{S_W8K}']
        for pre, op in dma_ops(V_DK0, V_DK1, S_WCO, S_T2):
            g = first; first = []
            if pre: g += [pre, 's_nop 0']
            out.append(g + [(op, ('wc', T))])
        return out
    if tail == 5:
        xinit = False
        def xdma():
            return [[f's_add_u32 m0, s{S_KOFF}, {k*1024}', f's_add_u32 s{S_T1}, s{S_T4}, {k*4096}',
                     (f'buffer_load_dwordx4 v{XV+(k&3)}, {SRX}, s{S_T1} offen lds', 'x')] for k in range(8)]
        dq = [ucload(f) for f in range(nuc[0], 32)] + wc_dma(1)
        n_q1 = max(i for i, p in enumerate(pend) if isinstance(p[1], str) and 'v_cvt_pk' in p[1] and int(p[1].split('v')[-1]) >= 192) + 2
        done = [0]
        def pop():
            _, op, c = pend.pop(0); em(op); done[0] += 1
            if isinstance(op, str) and op.startswith('ds_'): q.issue('xr')
            return c
        def run(i0, i1, every, bud, until_empty=False):
            for i in range(i0, i1):
                if until_empty and not pend and not dq and i % 2 == 0: return i
                it = stream[i]; w = []
                if it[0] == 'yc' and it[1] == 0 and it[2] % 2 == 0: w.append(f'vmcnt({min(63, vm.need(("uc", it[2] | 1)))})')
                if i % 2 == 0: w.append(f'lgkmcnt({min(15, q.need(("s", min(i + 1, NS - 1))))})')
                if w: a('s_waitcnt ' + ' '.join(w))
                mm = smf(i)
                for h in range(2):
                    pos = 2 * i + h
                    a(mm[h])
                    budget = bud
                    if h == 0 and i + LA < NS:
                        nx = stream[i + LA]
                        if nx[0] == 'yc' and nx[2] == 0 and nx[1] >= 1:
                            a(f's_waitcnt vmcnt({min(63, vm.need(("wc", nx[1])))})')
                            a('s_barrier')
                        a(srd_(i + LA)); q.issue(('s', i + LA)); budget -= 1
                    if dq and pos % every == 1:
                        for o in dq.pop(0): em(o)
                        budget -= 2
                    while pend and pend[0][0] <= pos and budget > 0: budget -= pop()
            return i1
        run(0, 32, t5[0], t5[1])
        while done[0] < n_q1: pop()
        while dq:
            for o in dq.pop(0): em(o)
        stats_block()
        a('s_barrier')
        x_setup()
        st(4)
        dq += wc_dma(2) + xdma() + wc_dma(3)
        poll = f'buffer_load_dword v{V_PFD}, v{V_FL}, {SRD}, s{S_FLO} offen offset:4 sc1'
        ie = run(32, NS, t5[2], t5[3], until_empty=True)
        print('tail5: stores and loads issued by item', ie)
        emit(poll, 'poll')
        def ycol(idx, i): return YB + 8 * (2 * (idx >> 1) + (i >> 1)) + 4 * (idx & 1) + 2 * (i & 1)
        i2 = ie + t5[4]
        run(ie, i2, 1000, 2)
        a(f's_lshl_b32 s{S_T3}, s{S_SPLIT}, 7')
        a(f's_add_u32 s{S_T3}, s{S_T3}, s{S_FLO}')
        a(f'v_mov_b32 v{V_T0}, 0\n v_mov_b32 v{V_T1}, s{S_TAG}')
        a(f's_lshl_b32 s{S_CNT}, 1, s{S_SPLIT}')
        a('s_mov_b64 exec, 1')
        a(f's_waitcnt vmcnt({min(vm.need("part"), vm.need("x"))})')
        em(Dual(f'buffer_store_dword v{V_T1}, v{V_T0}, {SRD}, s{S_T3} offen offset:4', None, ''))
        a('s_mov_b64 exec, -1')
        st(5)
        assert i2 + LA < 128
        for idx in (6, 7, 0, 1, 2, 3, 4, 5):
            a(f'ds_read_b128 {vr(V_S+4*idx,4)}, v{XV+4+(idx>>1)} offset:{(idx&1)*4096}'); q.issue('xr')
        STR = [56, 60, 124]
        def getmask(w):
            a(f's_waitcnt vmcnt({w})')
            a(f'v_cmp_eq_u32 vcc, s{S_TAG}, v{V_PFD}')
            a('s_nop 3')
            a(f's_and_b32 s{S_PFS}, vcc_lo, 15')
            a(f's_andn2_b32 s{S_PFS}, s{S_PFS}, s{S_CNT}')
            a(f's_or_b32 s{S_CNT}, s{S_CNT}, s{S_PFS}')
        def slot_hdr(k):
            return [f's_sub_u32 s{S_T1}, s{S_SPLIT}, {k+1}', f's_and_b32 s{S_T1}, s{S_T1}, 3', f's_bitcmp1_b32 s{S_PFS}, s{S_T1}']
        def slot_adr():
            return [f's_add_u32 s{S_T1}, s{S_T1}, s{S_T0}', f's_lshl_b32 s{S_T1}, s{S_T1}, 2', f's_add_u32 s{S_T1}, s{S_T1}, s{S_W}',
                    f's_lshl_b32 s{S_PO}, s{S_T1}, 15', f's_add_u32 s{S_T1}, s{S_PO}, {WS_PART + 3*8192}']
        def slot_loads(k, vo):
            out = [[f'buffer_load_dwordx4 {vr(STR[k],4)}, v{vo}, {SRD}, s{S_T1} offen sc1']]
            for h4 in range(2):
                for i in range(4):
                    pre = [f's_add_u32 s{S_T1}, s{S_PO}, {WS_PART + k*8192 + h4*4096}'] if i == 0 else []
                    out.append(pre + [f'buffer_load_dwordx4 {ar(128+(k*8+h4*4+i)*4,4)}, v{vo}, {SRD}, s{S_T1} offen offset:{i*1024} sc1'])
            return out
        def check():
            getmask(0)
            for k in range(3):
                lab = a.label(name + '_ck')
                for o in slot_hdr(k): a(o)
                a(f's_cbranch_scc0 {lab}')
                for o in slot_adr(): a(o)
                for g in slot_loads(k, V_L16):
                    for o in g: a(o)
                a(f'{lab}:')
        getmask(vm.need('poll'))
        for k in range(3):
            first = slot_hdr(k) + [f's_cselect_b32 s{S_PH}, 0, 0x80000000', f'v_or_b32 v{V_T2}, s{S_PH}, v{V_L16}'] + slot_adr()
            for g in slot_loads(k, V_T2):
                dq.append(first + g); first = []
        dq.append([poll])
        a('s_waitcnt lgkmcnt(0)')
        for idx in (6, 7):
            for i in range(4):
                a(f'v_lshlrev_b32 v{ycol(idx,i)}, 16, v{V_S+4*idx+i}')
                a(f'v_and_b32 v{ycol(idx,i)+1}, 0xffff0000, v{V_S+4*idx+i}')
        for idx in range(6):
            ready = 2 * (64 + 32 * (idx >> 1)) + 8
            for i in range(4):
                t = 40 + 2 * i
                pend.append((ready, f'v_lshlrev_b32 v{t}, 16, v{V_S+4*idx+i}', 1))
                pend.append((ready, f'v_and_b32 v{t+1}, 0xffff0000, v{V_S+4*idx+i}', 1))
            for i in range(4):
                for k in range(2): pend.append((ready, f'v_add_f32 v{ycol(idx,i)+k}, v{ycol(idx,i)+k}, v{40+2*i+k}', 1))
        st(20)
        run(i2, NS, t5[5], 2)
        while dq:
            for o in dq.pop(0): em(o)
        while pend: pop()
        st(21)
    else:
        dq = [ucload(f) for f in range(nuc[0], 32)]
        def xdma():
            return [[f's_add_u32 m0, s{S_KOFF}, {k*1024}', f's_add_u32 s{S_T1}, s{S_T4}, {k*4096}',
                     (f'buffer_load_dwordx4 v{XV+(k&3)}, {SRX}, s{S_T1} offen lds', 'x')] for k in range(8)]
        def pop():
            _, op, c = pend.pop(0); em(op)
            if isinstance(op, Dual):
                for _ in range(ld_per_st):
                    if dq:
                        for o in dq.pop(0): em(o)
            return c
        lim = [64]
        def run(i0, i1, every=0):
            for i in range(i0, i1):
                it = stream[i]; w = []
                if it[0] == 'yc' and it[1] == 0 and it[2] % 2 == 0: w.append(f'vmcnt({min(63, vm.need(("uc", it[2] | 1)))})')
                if i % 2 == 0: w.append(f'lgkmcnt({min(15, q.need(("s", min(i + 1, NS - 1))))})')
                if w: a('s_waitcnt ' + ' '.join(w))
                mm = smf(i)
                for h in range(2):
                    pos = 2 * i + h
                    a(mm[h])
                    budget = pv_budget
                    if h == 0 and i + LA < NS:
                        nx = stream[i + LA]
                        if nx[0] == 'yc' and nx[2] == 0 and nx[1] in (1, 2):
                            a(f's_waitcnt vmcnt({min(63, vm.need(("wc", 1 if nx[1] == 1 else 3)))})')
                            a('s_barrier')
                        a(srd_(i + LA)); q.issue(('s', i + LA)); budget -= 1
                    while pend and pend[0][0] <= pos and budget > 0: budget -= pop()
                    if every and dq and pos % every == 1:
                        for o in dq.pop(0): em(o)
        run(0, 32)
        a('s_barrier')
        x_setup()
        if xinit:
            for g in xdma():
                for o in g: em(o)
        while pend: pop()
        stats_block()
        dq += wc_dma(1) + wc_dma(2) + wc_dma(3)
        while len(dq) > 24 - flag_after:
            for o in dq.pop(0): em(o)
        st(4)
        a(f's_lshl_b32 s{S_T3}, s{S_SPLIT}, 7')
        a(f's_add_u32 s{S_T3}, s{S_T3}, s{S_FLO}')
        a(f'v_mov_b32 v{V_T0}, 0\n v_mov_b32 v{V_T1}, s{S_TAG}')
        a(f's_lshl_b32 s{S_CNT}, 1, s{S_SPLIT}')
        a('s_mov_b64 exec, 1')
        a(f's_waitcnt vmcnt({vm.need("part")})')
        em(Dual(f'buffer_store_dword v{V_T1}, v{V_T0}, {SRD}, s{S_T3} offen offset:4', None, ''))
        a('s_mov_b64 exec, -1')
        st(5)
        if stamp: a('s_waitcnt lgkmcnt(0)')
        if xinit:
            for _ in range(xi_pre):
                for o in dq.pop(0): em(o)
            for idx in range(8):
                gm, qh = idx >> 1, idx & 1
                a(f'ds_read_b128 {vr(V_S+4*idx,4)}, v{XV+4+gm} offset:{qh*4096}'); q.issue(('x', idx))
            for idx in range(8):
                gm, qh = idx >> 1, idx & 1
                a(f's_waitcnt lgkmcnt({q.need(("x", idx))})')
                for i in range(4):
                    y = YB + 8 * (2 * gm + (i >> 1)) + 4 * qh + 2 * (i & 1)
                    a(f'v_lshlrev_b32 v{y}, 16, v{V_S+4*idx+i}')
                    a(f'v_and_b32 v{y+1}, 0xffff0000, v{V_S+4*idx+i}')
            a('s_nop 1')
        poll = f'buffer_load_dword v{V_PFD}, v{V_FL}, {SRD}, s{S_FLO} offen offset:4 sc1'
        dq.insert(min(max(0, poll_after - (xi_pre if xinit else 0)), len(dq)), [(poll, 'poll')])
        STR = [56, 60, 124]
        def getmask(w):
            a(f's_waitcnt vmcnt({w})')
            a(f'v_cmp_eq_u32 vcc, s{S_TAG}, v{V_PFD}')
            a('s_nop 3')
            a(f's_and_b32 s{S_PFS}, vcc_lo, 15')
            a(f's_andn2_b32 s{S_PFS}, s{S_PFS}, s{S_CNT}')
            a(f's_or_b32 s{S_CNT}, s{S_CNT}, s{S_PFS}')
        def slot_hdr(k):
            return [f's_sub_u32 s{S_T1}, s{S_SPLIT}, {k+1}', f's_and_b32 s{S_T1}, s{S_T1}, 3', f's_bitcmp1_b32 s{S_PFS}, s{S_T1}']
        def slot_adr():
            return [f's_add_u32 s{S_T1}, s{S_T1}, s{S_T0}', f's_lshl_b32 s{S_T1}, s{S_T1}, 2', f's_add_u32 s{S_T1}, s{S_T1}, s{S_W}',
                    f's_lshl_b32 s{S_PO}, s{S_T1}, 15', f's_add_u32 s{S_T1}, s{S_PO}, {WS_PART + 3*8192}']
        def slot_loads(k, vo):
            out = [[f'buffer_load_dwordx4 {vr(STR[k],4)}, v{vo}, {SRD}, s{S_T1} offen sc1']]
            for h4 in range(2):
                for i in range(4):
                    pre = [f's_add_u32 s{S_T1}, s{S_PO}, {WS_PART + k*8192 + h4*4096}'] if i == 0 else []
                    dst = vr(V_S + (h4*4+i)*4, 4) if (xinit and k == 0) else ar(128+(k*8+h4*4+i)*4,4)
                    out.append(pre + [f'buffer_load_dwordx4 {dst}, v{vo}, {SRD}, s{S_T1} offen offset:{i*1024} sc1'])
            return out
        def check():
            getmask(0)
            for k in range(3):
                lab = a.label(name + '_ck')
                for o in slot_hdr(k): a(o)
                a(f's_cbranch_scc0 {lab}')
                for o in slot_adr(): a(o)
                for g in slot_loads(k, V_L16):
                    for o in g: a(o)
                a(f'{lab}:')
        run(32, chk_at, every=2)
        assert not dq
        st(20)
        if stamp: a('s_waitcnt lgkmcnt(0)')
        getmask(vm.need('poll'))
        for k in range(3):
            first = slot_hdr(k) + [f's_cselect_b32 s{S_PH}, 0, 0x80000000', f'v_or_b32 v{V_T2}, s{S_PH}, v{V_L16}'] + slot_adr()
            for g in slot_loads(k, V_T2):
                dq.append(first + g); first = []
        dq += ([] if xinit else xdma()) + [[poll]]
        run(chk_at, NS, every=r_pace)
        assert not dq, len(dq)
        st(21)
        if not xinit:
            a(f's_waitcnt vmcnt({vm.need("x")})')
            st(22)
            if stamp: a('s_waitcnt lgkmcnt(0)')
            for idx in range(8):
                gm, qh = idx >> 1, idx & 1
                a(f'ds_read_b128 {vr(V_S+4*idx,4)}, v{XV+4+gm} offset:{qh*4096}')
            a('s_nop 3')
            for idx in range(8):
                gm, qh = idx >> 1, idx & 1
                xb = V_S + 4 * idx
                a(f's_waitcnt lgkmcnt({7-idx})')
                for i in range(4):
                    a(f'v_lshlrev_b32 v{64+2*i}, 16, v{xb+i}')
                    a(f'v_and_b32 v{64+2*i+1}, 0xffff0000, v{xb+i}')
                for i in range(4):
                    y = YB + 8 * (2 * gm + (i >> 1)) + 4 * qh + 2 * (i & 1)
                    a(f'v_pk_add_f32 {vr(y,2)}, {vr(y,2)}, {vr(64+2*i,2)}')
    st(23)
    a(f'{name}_spin:')
    check()
    a(f's_cmp_eq_u32 s{S_CNT}, 15')
    a(f's_cbranch_scc1 {name}_got')
    a(poll)
    a(f's_branch {name}_spin')
    a(f'{name}_got:')
    st(6)
    a('s_waitcnt vmcnt(0)')
    st(24)
    allst = [120] + STR
    for qh in range(2):
        t = V_T0 + qh
        a(f'v_max3_f32 v{t}, v{allst[0]+2*qh+1}, v{allst[1]+2*qh+1}, v{allst[2]+2*qh+1}')
        a(f'v_max_f32 v{t}, v{t}, v{allst[3]+2*qh+1}')
    for qh in range(2):
        for b in allst: a(f'v_sub_f32 v{b+2*qh+1}, v{b+2*qh+1}, v{V_T0+qh}')
    for qh in range(2):
        for b in allst: a(f'v_exp_f32 v{b+2*qh+1}, v{b+2*qh+1}')
    for qh in range(2):
        a(f'v_mul_f32 v{V_T0+qh}, v{allst[0]+2*qh}, v{allst[0]+2*qh+1}')
    for b in allst[1:]:
        for qh in range(2): a(f'v_fmac_f32 v{V_T0+qh}, v{b+2*qh}, v{b+2*qh+1}')
    for qh in range(2): a(f'v_rcp_f32 v{V_T0+qh}, v{V_T0+qh}')
    a('s_nop 0')
    for qh in range(2):
        for b in allst: a(f'v_mul_f32 v{b+2*qh+1}, v{b+2*qh+1}, v{V_T0+qh}')
    for i in range(4): a(f'v_or_b32 v{XV+i}, s{S_VALID}, v{XV+i}')
    for qh in range(2):
        for gm in range(4):
            idx = gm * 2 + qh
            ys = [YB + 8 * (2 * gm + (i >> 1)) + 4 * qh + 2 * (i & 1) for i in range(4)]
            for i in range(4):
                a(f'v_pk_fma_f32 {vr(ys[i],2)}, {vr(ys[i]-64,2)}, {vr(120+2*qh,2)}, {vr(ys[i],2)} op_sel:[0,1,0] op_sel_hi:[1,1,1]')
            for k in range(3):
                ub = 64 + 12 * k
                src = ub + 8
                if xinit and k == 0: src = V_S + 4 * idx
                else:
                    for i in range(4): a(f'v_accvgpr_read_b32 v{ub+8+i}, a{128+(k*8+idx)*4+i}')
                for i in range(4):
                    a(f'v_lshlrev_b32 v{ub+2*i}, 16, v{src+i}')
                    a(f'v_and_b32 v{ub+2*i+1}, 0xffff0000, v{src+i}')
                for i in range(4):
                    a(f'v_pk_fma_f32 {vr(ys[i],2)}, {vr(ub+2*i,2)}, {vr(STR[k]+2*qh,2)}, {vr(ys[i],2)} op_sel:[0,1,0] op_sel_hi:[1,1,1]')
            ob = 100 + 4 * (gm & 1)
            for i in range(4): a(f'v_cvt_pk_bf16_f32 v{ob+i}, v{ys[i]}, v{ys[i]+1}')
            a(f'ds_write_b128 v{XV+4+gm}, {vr(ob,4)} offset:{qh*4096}')
            if qh == 1 and gm == 0:
                a('s_waitcnt lgkmcnt(1)')
                for i in range(4):
                    a(f's_add_u32 s{S_T1}, s{S_T4}, {i*4096}')
                    a(f'buffer_store_dwordx4 {vr(128+8*i,4)}, v{XV+i}, {SRO}, s{S_T1} offen {out_flags}')
        for i in range(4): a(f'ds_read_b128 {vr(128+8*i+4*qh,4)}, v{V_XO} offset:{(4*qh+i)*1024}')
    for i in range(4):
        a(f's_add_u32 s{S_T1}, s{S_T4}, {(4+i)*4096}')
        a(f's_waitcnt lgkmcnt({3-i})')
        a(f'buffer_store_dwordx4 {vr(128+8*i+4,4)}, v{XV+i}, {SRO}, s{S_T1} offen {out_flags}')
    if stamp:
        a('s_waitcnt vmcnt(0)')
        st(7)
        a('s_waitcnt lgkmcnt(0)')
        a(f's_cmp_lg_u32 s{S_W}, 0')
        a(f's_cbranch_scc1 {name}_end')
        a(f's_lshl_b32 s{S_T1}, s2, 7')
        a(f's_add_u32 s{S_T1}, s{S_T1}, {WS_STAMP}')
        for i in range(16): a(f'v_mov_b32 v{16+2*i}, s{80+i}\n v_mov_b32 v{17+2*i}, 0')
        a(f'v_mov_b32 v{V_T0}, 0')
        a('s_mov_b64 exec, 1')
        for i in range(8):
            a(f'buffer_store_dwordx4 {vr(16+4*i,4)}, v{V_T0}, {SRD}, s{S_T1} offen offset:{16*i}')
        if dbgout:
            a(f's_cmp_lg_u32 s2, 0\n s_cbranch_scc1 {name}_end')
            a('s_load_dwordx2 s[4:5], s[0:1], 80')
            a(f's_mov_b32 s{S_T1}, {WS_STAMP + 131072}')
            a(f'buffer_load_dwordx4 v[48:51], v{V_T0}, {SRD}, s{S_T1} offen sc1')
            a(f's_mov_b32 s{S_T1}, {WS_STAMP + 65536}')
            a(f'buffer_load_dwordx4 v[52:55], v{V_T0}, {SRD}, s{S_T1} offen sc1')
            a(f'buffer_load_dwordx4 v[56:59], v{V_T0}, {SRD}, s{S_T1} offen offset:16 sc1')
            a('s_waitcnt vmcnt(0) lgkmcnt(0)')
            a('s_sub_u32 s12, s4, 0\n s_subb_u32 s13, s5, 0\n s_mov_b32 s14, 256\n s_mov_b32 s15, 0x20000')
            src = [50, 52, 54, 56, 58, 16, 18, 20, 22, 30]
            for i, r in enumerate(src): a(f'v_sub_u32 v{64+i}, v{r}, v48')
            for i in range(3): a(f'buffer_store_dwordx4 {vr(64+4*i,4)}, v{V_T0}, s[12:15], 0 offen offset:{16*i}')
            if spin is not None:
                ra, rb = spin
                a(f'v_sub_u32 v80, v{rb}, v{ra}')
                a('v_add_u32 v80, 2000, v80')
                a('v_add_u32 v80, v30, v80')
                a('s_nop 1')
                a('v_readfirstlane_b32 s20, v80')
                a(f'{name}_sp:')
                a('s_memrealtime s[22:23]')
                a('s_waitcnt lgkmcnt(0)')
                a('s_sub_u32 s21, s20, s22')
                a('s_cmp_gt_i32 s21, 0')
                a(f's_cbranch_scc1 {name}_sp')
    a(f'{name}_end:')
    a('s_endpgm')
    p3slow()
    for lab, dst, vo, so in slows:
        a(f'{name}_{lab}s:')
        a(f's_sleep {slp}')
        a(f'buffer_load_dword v{dst}, v{vo}, {SRD}, s{so} offen sc1')
        a('s_waitcnt vmcnt(0)')
        a(f'v_cmp_ne_u32 vcc, s{S_TAG}, v{dst}')
        a(f's_cbranch_vccnz {name}_{lab}s')
        a(f's_branch {name}_{lab}k')
    for lab, op in stubs:
        a(f'{lab}:')
        a(f'{op} sc1')
        a(f's_branch {lab}b')
    a(f'{name}_cfslow:')
    a(f's_sleep {slp}')
    a(f'buffer_load_dword v{V_PFD}, v{V_XO}, {SRD}, s{S_SLOW} offen sc1')
    a('s_waitcnt vmcnt(0)')
    a(f'v_cmp_ne_u32 s[{S_T3}:{S_T3+1}], s{S_TAG}, v{V_PFD}')
    a('s_nop 3')
    a(f's_cmp_eq_u64 s[{S_T3}:{S_T3+1}], 0')
    a(f's_cbranch_scc0 {name}_cfslow')
    a(f's_branch {name}_cfok')
    for (L_r1, L_r1b, L_r2, L_r2b) in rare:
        a(f'{L_r1}:')
        rowmax2(V_T1, V_T2, 120)
        for qh, dst in ((0, V_T1), (1, V_T2)):
            a(f'v_max_f32 v{dst}, 0, v{dst}')
            fr = V_F1 if qh else V_F0
            a(f'v_sub_f32 v{fr}, 0, v{dst}')
            a(f'v_exp_f32 v{fr}, v{fr}')
            for kh in range(2):
                for i in range(4): a(f'v_sub_f32 v{Sreg(kh,qh)+i}, v{Sreg(kh,qh)+i}, v{dst}')
            for i in range(4): a(f'v_sub_f32 v{V_NEGM+4*qh+i}, v{V_NEGM+4*qh+i}, v{dst}')
            l = V_L1 if qh else V_L0
            a(f'v_mul_f32 v{l}, v{l}, v{fr}')
        if nobr2 and L_r1.endswith('M'): a(f's_mov_b32 s{S_LIM}, 1000')
        a(f's_branch {L_r1b}')
        a(f'{L_r2}:')
        a('s_nop 7')
        for beta in range(32):
            for qh in range(2):
                fr = V_F1 if qh else V_F0
                b = Obase(beta, qh)
                if beta < 16:
                    for r in range(4): a(f'v_mul_f32 v{b+r}, v{b+r}, v{fr}')
                else:
                    for r in range(4): a(f'v_accvgpr_read_b32 v{120+r}, a{b+r}')
                    for r in range(4): a(f'v_mul_f32 v{120+r}, v{120+r}, v{fr}')
                    for r in range(4): a(f'v_accvgpr_write_b32 a{b+r}, v{120+r}')
        a(f's_branch {L_r2b}')
    a('code_end:')
    a('s_endpgm')
    kernel_desc(a, name, 512, 102, 256)
```

```python
from asmlib import *
from layout import *
from attn2 import LdsQ
from k2 import f2h

P_X, P_WQ, P_WK, P_WV, P_AO, P_UP, P_DW, P_DN, P_MG, P_OUT, P_DBG, P_WS = [56 + 2 * i for i in range(12)]

def prep(a, name, K, st, mid1, flagA, pollA, late, gl=3, fa_at=9, apace=8, wsoff=0, upf=False):
    V_L16 = K.V_L16
    V_T0, V_T1, V_T2, V_T3, V_TR, V_DT, V_LR, V_LS = 13, 14, 15, 12, 5, 6, 8, 9
    V_SW, V_AR, V_BR = 16, 160, 164
    V_ACC, V_PK, V_RA, V_RB = 32, 48, 64, 96
    RAW, F, SUM, MEAN, RSTD = 64, 96, 168, 172, 174
    S_SA, S_SB = 44, 48
    S_TI, S_TJ, S_OO, S_ROLE, S_RB, S_CB, S_BLK = 52, 53, 54, 55, 42, 43, K.S_T4
    S_W, S_T0, S_T1, S_T2 = K.S_W, K.S_T0, K.S_T1, K.S_T2
    SW, SX = [f's[{b}:{b+3}]' for b in (K.S_SRD, K.S_SRX)]
    SA, SB = [f's[{b}:{b+3}]' for b in (S_SA, S_SB)]
    LA_, LB_ = 32768, 98304
    a(f's_lshr_b32 s{S_BLK}, s{K.S_TILE}, 1')
    a(f's_lshl_b32 s{S_BLK}, s{S_BLK}, 3')
    a(f's_bfe_u32 s{S_T0}, s2, 0x30003')
    a(f's_add_u32 s{S_BLK}, s{S_BLK}, s{S_T0}')
    a(f's_cmp_lt_u32 s{S_BLK}, 125')
    a(f's_cselect_b32 s{S_T2}, 0, 0x80000000')
    a(f's_min_u32 s{S_BLK}, s{S_BLK}, 124')
    a(f's_add_u32 s{S_BLK}, s{S_BLK}, s{K.S_B125}')
    a(f's_lshl_b32 s{S_BLK}, s{S_BLK}, 15')
    a('s_waitcnt lgkmcnt(0)')
    make_srd(a, K.S_SRX, P_X, 0, 8192000)
    for g in range(2):
        a(f's_add_u32 m0, s{K.S_W8K}, {g*4096}')
        a('s_nop 0')
        for i in range(4): a(f'buffer_load_dwordx4 v{K.V_DK1 if g else K.V_DK0}, {SX}, s{S_BLK} offen offset:{i*1024} lds')
    late()
    a(f'v_and_b32 v{V_T0}, 7, v0')
    a(f'v_lshrrev_b32 v{V_T1}, 3, v0')
    a(f'v_lshlrev_b32 v{V_LR}, 4, v{V_T1}')
    a(f'v_lshl_add_u32 v{V_LR}, v{V_T0}, 10, v{V_LR}')
    a(f'v_add_u32 v{V_LR}, s{K.S_W8K}, v{V_LR}')
    a(f'v_lshrrev_b32 v{V_T2}, 5, v0')
    a(f'v_lshlrev_b32 v{V_LS}, 11, v{V_T2}')
    a(f'v_and_b32 v{V_T2}, 3, v{V_T1}')
    a(f'v_lshl_add_u32 v{V_LS}, v{V_T2}, 8, v{V_LS}')
    a(f'v_lshl_add_u32 v{V_LS}, v{V_T0}, 4, v{V_LS}')
    a(f'v_or_b32 v{V_LS}, s{S_T2}, v{V_LS}')
    a(f's_and_b32 s{S_RB}, s{S_W}, 1')
    a(f's_lshr_b32 s{S_CB}, s{S_W}, 1')
    a(f's_lshl_b32 s{S_T1}, s{S_RB}, 7')
    a(f'v_xor_b32 v{V_SW}, s{S_T1}, v{V_L16}')
    for i in range(1, 8): a(f'v_xor_b32 v{V_SW+i}, {i*16}, v{V_SW}')
    a(f'v_bfe_u32 v{V_T2}, v0, 4, 1')
    a(f'v_lshlrev_b32 v{V_T2}, 2, v{V_T2}')
    a(f'v_xor_b32 v{V_T2}, v{V_T2}, v{V_T0}')
    a(f'v_lshlrev_b32 v{V_DT}, 4, v{V_T2}')
    a(f'v_lshl_add_u32 v{K.V_WD}, v{V_T1}, 11, v{V_DT}')
    a(f's_and_b32 s3, s2, 7')
    a(f's_lshl_b32 s3, s3, 5')
    a(f's_lshr_b32 s{S_T1}, s2, 3')
    a(f's_add_u32 s3, s3, s{S_T1}')
    a(f's_and_b32 s{S_T2}, s2, 1')
    a(f's_lshl1_add_u32 s{S_T1}, s{S_T1}, s{S_T2}')
    a(f's_add_u32 s{S_T1}, s{S_T1}, 192')
    a(f's_cmp_ge_u32 s3, 192')
    a(f's_cselect_b32 s3, s{S_T1}, s3')
    a(f's_lshr_b32 s{S_ROLE}, s3, 6')
    a(f's_and_b32 s{S_TI}, s3, 7')
    a(f's_bfe_u32 s{S_TJ}, s3, 0x30003')
    make_srd(a, 96, P_DBG, 0, 256)
    a(f's_cmp_lt_u32 s2, 248\n s_cbranch_scc1 {name}_notag')
    a('s_memrealtime s[100:101]')
    a('v_mov_b32 v25, 0')
    a('s_waitcnt lgkmcnt(0)')
    a('s_or_b32 s100, s100, 1')
    a('v_mov_b32 v24, s100')
    a(f'buffer_atomic_cmpswap v[24:25], v{K.V_FO}, s[96:99], 0 offen sc1')
    a(f'{name}_notag:')
    def rows_dma(srd, sbase, ldsbase):
        a(f's_lshl_b32 s{S_T2}, s{S_W}, 14')
        a(f's_add_u32 s{S_T1}, s{sbase}, s{S_T2}')
        for g in range(4):
            a(f's_add_u32 m0, s{S_T2}, {ldsbase + g*4096}')
            if g: a(f's_add_u32 s{S_T1}, s{S_T1}, 4096')
            else: a('s_nop 0')
            for i in range(4):
                a(f'buffer_load_dwordx4 v{V_SW + 4*(g>>1) + i}, {srd}, s{S_T1} offen offset:{i*1024} lds')
    def tr_dma(npiece, stride_log2, sbase):
        a(f'v_lshl_add_u32 v{V_T3}, v{V_T1}, {stride_log2}, v{V_DT}')
        a(f's_mul_i32 s{S_T1}, s{S_W}, {npiece * 8 << stride_log2}')
        a(f's_add_u32 s{S_T1}, s{S_T1}, s{sbase}')
        a(f's_mul_i32 s{S_T2}, s{S_W}, {npiece * 1024}')
        for i in range(npiece):
            a(f's_add_u32 m0, s{S_T2}, {LB_ + i*1024}')
            if i: a(f's_add_u32 s{S_T1}, s{S_T1}, {8 << stride_log2}')
            else: a('s_nop 0')
            a(f'buffer_load_dwordx4 v{V_T3}, {SB}, s{S_T1} offen lds')
    def wpf(n):
        a(f'buffer_load_dword v26, v27, s[76:79], 0 offen')
        a(f's_waitcnt vmcnt({n + 1})')
    if wsoff:
        a(f's_add_u32 s{P_WS}, s{P_WS}, {wsoff << 20}')
        a(f's_addc_u32 s{P_WS+1}, s{P_WS+1}, 0')
    make_srd(a, K.S_SRD, P_WS, 0, WS_SIZE)
    a(f's_mov_b32 s{K.S_X}, s{P_X}\n s_mov_b32 s{K.S_X+1}, s{P_X+1}')
    a(f's_mov_b32 s{K.S_WS}, s{P_WS}\n s_mov_b32 s{K.S_WS+1}, s{P_WS+1}')
    make_srd(a, K.S_SRO, P_OUT, 0, 8192000)
    make_srd(a, 76, P_UP, 0, 1024 * 1024)
    a(f's_lshr_b32 s{S_T1}, s2, 6')
    a(f's_lshl2_add_u32 s{S_T1}, s{S_T1}, s{S_W}')
    a(f's_lshl_b32 s{S_T1}, s{S_T1}, 16')
    a(f's_lshl_b32 s{S_T0}, s{S_T0}, 7')
    a(f's_add_u32 s{S_T1}, s{S_T1}, s{S_T0}')
    if upf:
        a(f'v_lshlrev_b32 v27, 10, v0')
    else:
        a(f's_add_u32 s{S_T1}, s{S_T1}, 1024')
        a(f'v_and_b32 v27, 31, v0')
        a(f'v_lshlrev_b32 v27, 11, v27')
    a(f'v_add_u32 v27, s{S_T1}, v27')
    a(f's_cmp_eq_u32 s{S_ROLE}, 3\n s_cbranch_scc1 {name}_i3')
    a(f's_cmp_eq_u32 s{S_ROLE}, 1\n s_cbranch_scc1 {name}_i1')
    a(f's_cmp_eq_u32 s{S_ROLE}, 0')
    a(f's_cselect_b32 s{S_SA}, s{P_AO}, s{P_DN}')
    a(f's_cselect_b32 s{S_SA+1}, s{P_AO+1}, s{P_DN+1}')
    a(f's_cselect_b32 s{S_T0}, 0, {512*1024}')
    a(f's_mov_b32 s{S_SA+2}, {512*1024}\n s_mov_b32 s{S_SA+3}, 0x20000')
    make_srd(a, S_SB, P_MG, 0, 1024 * 1024)
    a(f's_lshl_b32 s{S_T1}, s{S_TJ}, 7')
    a(f's_add_u32 s{S_T0}, s{S_T0}, s{S_T1}')
    tr_dma(16, 10, S_T0)
    wpf(16)
    a(f's_branch {name}_ln')
    a(f'{name}_i1:')
    make_srd(a, S_SA, P_WQ, 0, 512 * 1024)
    make_srd(a, S_SB, P_WK, 0, 512 * 1024)
    a(f's_lshl_b32 s{S_T0}, s{S_TJ}, 16')
    rows_dma(SB, S_T0, LB_)
    wpf(16)
    a(f's_branch {name}_ln')
    a(f'{name}_i3:')
    make_srd(a, S_SA, P_WV, 0, 512 * 1024)
    a(f's_cmp_ge_u32 s3, 208\n s_cbranch_scc1 {name}_i5')
    wpf(0)
    a(f's_branch {name}_ln')
    a(f'{name}_i5:')
    make_srd(a, S_SB, P_DW, 0, 31 * 1024)
    a(f's_mov_b32 s{S_SA+2}, 0')
    a(f's_sub_u32 s{S_OO}, s3, 208')
    a(f's_lshl2_add_u32 s{S_OO}, s{S_OO}, s{S_W}')
    a(f's_min_u32 s{S_OO}, s{S_OO}, 159')
    a(f'v_bfe_u32 v{V_T2}, v0, 4, 2')
    a(f'v_bfe_u32 v{V_T3}, v0, 2, 2')
    a(f'v_lshl_add_u32 v{V_T2}, v{V_T2}, 3, v{V_T3}')
    a(f'v_lshlrev_b32 v{V_T2}, 1, v{V_T2}')
    a(f'v_and_b32 v{V_T3}, 3, v0')
    a(f'v_add_u32 v{V_T3}, 1, v{V_T3}')
    a(f'v_lshlrev_b32 v{V_T3}, 10, v{V_T3}')
    a(f'v_sub_u32 v{V_T2}, v{V_T2}, v{V_T3}')
    a(f's_mul_i32 s{S_T1}, s{S_OO}, 52429')
    a(f's_lshr_b32 s{S_T1}, s{S_T1}, 18')
    a(f's_mul_i32 s{S_T2}, s{S_T1}, 5')
    a(f's_sub_u32 s{S_T0}, s{S_OO}, s{S_T2}')
    a(f's_lshl_b32 s{S_T0}, s{S_T0}, 13')
    a(f's_lshr_b32 s{S_T2}, s{S_T1}, 1')
    a(f's_lshl_b32 s{S_T2}, s{S_T2}, 6')
    a(f's_add_u32 s{S_T0}, s{S_T0}, s{S_T2}')
    a(f's_and_b32 s{S_T1}, s{S_T1}, 1')
    a(f's_lshl_b32 s{S_T1}, s{S_T1}, 3')
    a(f's_add_u32 s{S_T0}, s{S_T0}, s{S_T1}')
    a(f'v_add_u32 v{V_T3}, s{S_T0}, v{V_T2}')
    for e in range(8):
        a(f'buffer_load_ushort v{V_ACC+e}, v{V_T3}, {SB}, 0 offen')
        if e < 7: a(f'v_add_u32 v{V_T3}, 1024, v{V_T3}')
    wpf(8)
    a(f'{name}_ln:')
    st(40)
    aq = []
    for g in range(4):
        hd = [f's_add_u32 m0, s{S_T2}, {LA_ + g*4096}', f's_add_u32 s{S_T1}, s{S_T1}, 4096' if g else 's_nop 0']
        for i in range(4):
            aq.append(hd + [f'buffer_load_dwordx4 v{V_SW + 4*(g>>1) + i}, {SA}, s{S_T1} offen offset:{i*1024} lds']); hd = []
    a(f's_lshl_b32 s{S_T2}, s{S_W}, 14')
    a(f's_lshl_b32 s{S_T1}, s{S_TI}, 16')
    a(f's_add_u32 s{S_T1}, s{S_T1}, s{S_T2}')
    cn = [0]
    def c(o):
        a(o); cn[0] += 1
        if cn[0] % apace == 0 and aq:
            for x in aq.pop(0): a(x)
    for i in range(8): a(f'ds_read_b128 {vr(RAW+4*i,4)}, v{V_LR} offset:{i*128}')
    for i in range(4): a(f'v_mov_b32 v{SUM+i}, 0')
    for s in range(8):
        a(f's_waitcnt lgkmcnt({7-s})')
        for i in range(4):
            r = RAW + 4 * s + i; f = F + 8 * s + 2 * i
            c(f'v_lshlrev_b32 v{f}, 16, v{r}')
            c(f'v_and_b32 v{f+1}, 0xffff0000, v{r}')
        for i in range(4):
            f = F + 8 * s + 2 * i; acc = SUM + 2 * (i & 1)
            c(f'v_pk_add_f32 {vr(acc,2)}, {vr(acc,2)}, {vr(f,2)}')
    def reduce8(dst):
        a(f'v_pk_add_f32 {vr(SUM,2)}, {vr(SUM,2)}, {vr(SUM+2,2)}')
        a(f'v_add_f32 v{dst}, v{SUM}, v{SUM+1}')
        a('s_nop 1')
        a(f'v_add_f32_dpp v{dst}, v{dst}, v{dst} row_ror:8 row_mask:0xf bank_mask:0xf')
        for sw in ('v_permlane16_swap_b32', 'v_permlane32_swap_b32'):
            a(f'v_mov_b32 v{V_T2}, v{dst}')
            a('s_nop 1')
            a(f'{sw} v{V_T2}, v{dst}')
            a('s_nop 1')
            a(f'v_add_f32 v{dst}, v{dst}, v{V_T2}')
    reduce8(MEAN)
    a(f'v_mul_f32 v{MEAN}, {f2h(-1.0/512)}, v{MEAN}')
    for i in range(4): a(f'v_mov_b32 v{SUM+i}, 0')
    for k in range(32):
        f = F + 2 * k
        c(f'v_pk_add_f32 {vr(f,2)}, {vr(f,2)}, {vr(MEAN,2)} op_sel_hi:[1,0]')
        if k:
            g = f - 2; acc = SUM + 2 * (k & 1)
            c(f'v_pk_fma_f32 {vr(acc,2)}, {vr(g,2)}, {vr(g,2)}, {vr(acc,2)}')
    g = F + 62
    a(f'v_pk_fma_f32 {vr(SUM,2)}, {vr(g,2)}, {vr(g,2)}, {vr(SUM,2)}')
    reduce8(RSTD)
    a(f'v_mov_b32 v{V_T2}, {f2h(1e-5)}')
    a(f'v_fmac_f32 v{V_T2}, {f2h(1.0/512)}, v{RSTD}')
    a(f'v_rsq_f32 v{RSTD}, v{V_T2}')
    while aq:
        for x in aq.pop(0): a(x)
    a(f's_lshl_b32 s{S_T0}, s{S_CB}, 10')
    a(f's_lshl_b32 s{S_T1}, s{S_RB}, 7')
    a(f's_add_u32 s{S_T0}, s{S_T0}, s{S_T1}')
    a(f's_add_u32 s{S_T0}, s{S_T0}, s{S_BLK}')
    if WS_XA: a(f's_add_u32 s{S_T0}, s{S_T0}, {WS_XA}')
    for s in range(8):
        for i in range(4):
            f = F + 8 * s + 2 * i
            a(f'v_pk_mul_f32 {vr(f,2)}, {vr(f,2)}, {vr(RSTD,2)} op_sel_hi:[1,0]')
        for i in range(4):
            f = F + 8 * s + 2 * i
            a(f'v_cvt_pk_bf16_f32 v{RAW+4*s+i}, v{f}, v{f+1}')
        if s: a(f's_add_u32 s{S_T0}, s{S_T0}, 4096')
        a(f'buffer_store_dwordx4 {vr(RAW+4*s,4)}, v{V_LS}, {SW}, s{S_T0} offen sc1')
    a('v_mov_b32 v25, 0')
    a('buffer_load_dword v24, v25, s[96:99], 0 offen sc1')
    st(41)
    a(f'v_and_b32 v{V_T0}, 15, v0')
    a(f'v_lshrrev_b32 v{V_T1}, 4, v0')
    a(f'v_bfe_u32 v{V_T2}, v0, 2, 2')
    a(f'v_and_b32 v{V_T3}, 3, v0')
    a(f'v_lshl_add_u32 v{V_TR}, v{V_T2}, 3, v{V_T3}')
    a(f'v_lshlrev_b32 v{V_TR}, 10, v{V_TR}')
    a(f'v_xor_b32 v{V_T0}, v{V_T0}, v{V_T1}')
    a(f'v_lshl_add_u32 v{V_TR}, v{V_T0}, 4, v{V_TR}')
    a(f's_lshl_b32 s{S_T0}, s{S_RB}, 15')
    a(f's_add_u32 s{S_T0}, s{S_T0}, {LA_}')
    a(f's_lshl_b32 s{S_T1}, s{S_CB}, 15')
    a(f's_add_u32 s{S_T1}, s{S_T1}, {LB_}')
    for i in range(4):
        a(f'v_xor_b32 v{V_T0}, {i*64}, v{V_TR}')
        a(f'v_add_u32 v{V_AR+i}, s{S_T0}, v{V_T0}')
        a(f'v_add_u32 v{V_BR+i}, s{S_T1}, v{V_T0}')
    a(f'v_bfe_u32 v{V_T0}, v0, 3, 1')
    a(f'v_lshl_add_u32 v{V_T0}, v{V_T0}, 2, v{V_T3}')
    a(f'v_lshlrev_b32 v{K.V_WT0}, 4, v{V_T0}')
    a(f'v_lshl_add_u32 v{K.V_WT0}, v{V_T2}, 7, v{K.V_WT0}')
    a(f'v_lshl_add_u32 v{K.V_WT0}, v{V_T1}, 10, v{K.V_WT0}')
    a(f'v_xor_b32 v{K.V_WT1}, 64, v{K.V_WT0}')
    a(f's_lshl_b32 s{S_T0}, s{S_CB}, 6')
    a(f'v_xor_b32 v{V_TR}, s{S_T0}, v{K.V_WT0}')
    a(f'v_add_u32 v{V_TR}, {LB_}, v{V_TR}')
    a('s_waitcnt vmcnt(9)')
    a('s_barrier')
    st(42)
    mid1()
    tagl = []
    def publishA():
        lab = a.label(name + '_tag'); tagl.append(lab)
        a('s_waitcnt vmcnt(8)')
        a(f'{lab}w:')
        a(f'v_readfirstlane_b32 s{K.S_TAG}, v24')
        a('s_nop 3')
        a(f's_cmp_eq_u32 s{K.S_TAG}, 0')
        a(f's_cbranch_scc1 {lab}s')
        a('s_barrier')
        flagA()
    def rd_rows(base):
        return lambda s, h, dst: [f'ds_read_b128 {vr(dst,4)}, v{base + (s & 3)} offset:{h*4096 + (s >> 2)*256}']
    def rd_tr(s, h, dst):
        return [f'ds_read_b64_tr_b16 {vr(dst+2*jj,2)}, v{V_TR} offset:{s*4096 + jj*512 + h*8}' for jj in range(2)]
    def gemm(rdB):
        rdA = rd_rows(V_AR)
        q = LdsQ()
        def issue(s):
            for h in range(2):
                for o in rdA(s, h, V_RA + 8 * (s % 4) + 4 * h): a(o); q.issue(s)
            for h in range(2):
                for o in rdB(s, h, V_RB + 8 * (s % 4) + 4 * h): a(o); q.issue(s)
        for s in range(gl): issue(s)
        for s in range(16):
            a(f's_waitcnt lgkmcnt({min(15, q.need(s))})')
            for ch in range(2):
                for b in range(2):
                    d = vr(V_ACC + ch * 8 + b * 4, 4)
                    a(f'v_mfma_f32_16x16x32_bf16 {d}, {vr(V_RA+8*(s%4)+4*b,4)}, {vr(V_RB+8*(s%4)+4*ch,4)}, {d if s else 0}')
                if ch == 0 and s + gl < 16: issue(s + gl)
            if s == fa_at: publishA()
        pollA()
        a('s_nop 6')
    a(f's_cmp_eq_u32 s{S_ROLE}, 3\n s_cbranch_scc1 {name}_c3')
    a(f's_lshl1_add_u32 s{S_OO}, s{S_TJ}, s{S_CB}')
    a(f's_lshl_b32 s{S_OO}, s{S_OO}, 15')
    a(f's_lshl1_add_u32 s{S_T0}, s{S_TI}, s{S_RB}')
    a(f's_lshl_b32 s{S_T0}, s{S_T0}, 11')
    a(f's_add_u32 s{S_OO}, s{S_OO}, s{S_T0}')
    a(f's_cmp_eq_u32 s{S_ROLE}, 1\n s_cbranch_scc1 {name}_c1')
    a(f's_cmp_eq_u32 s{S_ROLE}, 0')
    a(f's_cselect_b32 s{S_T0}, {WS_T1 - WS_WC}, 0')
    a(f's_add_u32 s{S_OO}, s{S_OO}, s{S_T0}')
    a(f's_add_u32 s{S_OO}, s{S_OO}, {WS_WC}')
    gemm(rd_tr)
    a(f's_branch {name}_out')
    a(f'{name}_c1:')
    a(f's_add_u32 s{S_OO}, s{S_OO}, {WS_W}')
    gemm(rd_rows(V_BR))
    a(f's_mov_b32 s{S_T1}, {f2h(512 ** -0.5 * 1.4426950408889634)}')
    for i in range(16): a(f'v_mul_f32 v{V_ACC+i}, s{S_T1}, v{V_ACC+i}')
    a(f'{name}_out:')
    for i in range(8): a(f'v_cvt_pk_bf16_f32 v{V_PK+i}, v{V_ACC+2*i}, v{V_ACC+2*i+1}')
    for ch in range(2):
        a(f'buffer_store_dwordx4 {vr(V_PK+4*ch,4)}, v{V_L16}, {SW}, s{S_OO} offen offset:{ch*1024} sc1')
    a(f's_branch {name}_pfin')
    a(f'{name}_c3:')
    publishA()
    a(f's_cmp_ge_u32 s3, 208\n s_cbranch_scc1 {name}_c5')
    a(f's_lshl1_add_u32 s{S_T1}, s{S_TJ}, s{S_CB}')
    a(f's_lshl_b32 s{S_T0}, s{S_T1}, 8')
    for i in range(4): a(f'v_add_u32 v{V_AR+i}, s{S_T0}, v{V_AR+i}')
    for i in range(8):
        for o in rd_rows(V_AR)(i >> 1, i & 1, V_RA + 4 * i): a(o)
    a(f's_lshl1_add_u32 s{S_OO}, s{S_TI}, s{S_RB}')
    a(f's_lshl_b32 s{S_OO}, s{S_OO}, 15')
    a(f's_lshl_b32 s{S_T0}, s{S_T1}, 13')
    a(f's_add_u32 s{S_OO}, s{S_OO}, s{S_T0}')
    a(f's_add_u32 s{S_OO}, s{S_OO}, {WS_RL}')
    for i in range(8):
        if i % 4 == 0 and i: a(f's_add_u32 s{S_OO}, s{S_OO}, 4096')
        a(f's_waitcnt lgkmcnt({7 - i})')
        a(f'buffer_store_dwordx4 {vr(V_RA+4*i,4)}, v{V_L16}, {SW}, s{S_OO} offen offset:{(i%4)*1024} sc1')
    a(f's_branch {name}_c6')
    a(f'{name}_c5:')
    for i in range(4): a(f'v_lshl_or_b32 v{V_RA+i}, v{V_ACC+2*i+1}, 16, v{V_ACC+2*i}')
    a(f's_lshl_b32 s{S_T0}, s{S_OO}, 10')
    a(f's_add_u32 s{S_T0}, s{S_T0}, {WS_DWT}')
    a(f'buffer_store_dwordx4 {vr(V_RA,4)}, v{V_L16}, {SW}, s{S_T0} offen sc1')
    a(f'{name}_c6:')
    a('s_waitcnt vmcnt(0)')
    pollA()
    a('s_waitcnt vmcnt(0)')
    a(f'{name}_pfin:')
    def slow():
        for lab in tagl:
            a(f'{lab}s:')
            a('s_sleep 4')
            a('buffer_load_dword v24, v25, s[96:99], 0 offen sc1')
            a('s_waitcnt vmcnt(0)')
            a(f's_branch {lab}w')
    return slow
```

```python
from asmlib import *
from layout import *
from attn2 import LdsQ
from k2 import f2h, VmQ
import re
import pz

def regs_of(tok):
    m = re.match(r'-?v\[(\d+):(\d+)\]', tok)
    if m: return set(range(int(m.group(1)), int(m.group(2)) + 1))
    m = re.match(r'-?v(\d+)$', tok)
    if m: return {int(m.group(1))}
    m = re.match(r's(\d+)$', tok)
    if m: return {1000 + int(m.group(1))}
    return set()
def rw(op):
    name_, rest = op.split(' ', 1)
    toks = [t.strip().split(' ')[0] for t in rest.split(' quad_perm')[0].split(',')]
    if name_.startswith('buffer_store'): return set().union(*[regs_of(t) for t in toks]), set()
    w = regs_of(toks[0]); r = set().union(*[regs_of(t) for t in toks[1:]])
    if name_.startswith('v_fmac') or 'dpp' in name_: r |= w
    return r, w

def rg4(a, name, K, st, stamp, vm, hooks, slows, late, LA=5, wait_every=4, bar_back=8, over=1, over2=0, XPRE=16, st_flags='sc1', fdelay=20, fdelayq=14, defer=0, pp=(14, 34, 56), rp=(20, 100, 128, 156), fastx=78, o1={}):
    V_L16, V_DK0, V_DK1 = K.V_L16, K.V_DK0, K.V_DK1
    V_ST0, V_ST1, V_RA, V_C0, V_C1, V_FO, V_FL, V_T0, V_T1 = 3, 4, 5, 8, 9, 10, 11, 13, 14
    V_WT, V_WD, S_TAG = (K.V_WT0, K.V_WT1), K.V_WD, K.S_TAG
    V_Z, V_HV, V_SS, V_RING, V_GP, V_STG = 16, 24, 32, 64, 96, 112
    NR = 7
    S_W, S_W8K = K.S_W, K.S_W8K
    S_CG, S_WOFF, S_B0, S_B1, S_XO, S_M0, S_M1, S_U, S_FI, S_S0 = 64, 65, 66, 67, 68, 69, 70, 71, 72, 73
    S_RAW = K.S_FLO
    S_T0, S_T1, S_T2 = K.S_T0, K.S_T1, K.S_T2
    SRD = f's[{K.S_SRD}:{K.S_SRD+3}]'
    q = LdsQ()
    def emit(o, tag=None):
        a(o)
        if o.startswith('buffer_'): vm.issue(tag)
        if o.startswith('ds_'): q.issue(tag)
    seq = ['g', 'g', 'u', 'u', 'q', 'q', 'v', 'v']
    half = [0, 1, 0, 1, 0, 1, 0, 1]
    ACN = [128, 160, 192, 224, 128, 32, 128, 32]
    wbase = {'q': 0, 'v': 16, 'u': 32, 'g': 48}
    obase = {'q': WS_Q, 'v': WS_VT, 'u': WS_UC, 'g': WS_G}
    BUF = {4: 4, 5: 1, 6: 3, 7: 2}
    def dma(n):
        out = []
        for g in range(2):
            pre = [f's_add_u32 s{S_T1}, s{S_WOFF}, {(wbase[seq[n]] + half[n]) * TILE}'] if g == 0 else []
            pre += [f's_add_u32 m0, s{S_W8K}, {BUF[n] * TILE + g*4096}', 's_nop 0']
            for i in range(4):
                out.append(pre + [(f'buffer_load_dwordx4 v{V_DK1 if g else V_DK0}, {SRD}, s{S_T1} offen offset:{i*1024} sc1 lds', ('W', n))]); pre = []
        return out
    def rawdma(n, kh):
        out = []
        for i in range(8):
            pre = [f's_add_u32 m0, s{S_W8K}, {(n + kh) * TILE + i*1024}', f's_add_u32 s{S_T1}, s{S_RAW}, {(1024 if seq[n] == "g" else 0) + kh * (1 << 19) + i * 16384}']
            out.append(pre + [(f'buffer_load_dwordx4 v{V_WD}, s[76:79], s{S_T1} offen lds', ('W', n, kh))])
        return out
    def run(groups):
        for g in groups:
            for o in g:
                if isinstance(o, tuple): emit(*o)
                else: a(o)
    PA_, PB_, PC = 192, 224, 112
    def flag(kind):
        a(f's_lshl_b32 s{S_T2}, s{ {0: S_U, 6: 3}.get(kind, S_FI) }, 7')
        a(f's_add_u32 s{S_T2}, s{S_T2}, {ZF + ZK * kind}')
        a(f'v_mov_b32 v{V_T1}, s{S_TAG}')
        emit(f'buffer_store_dword v{V_T1}, v{V_FO}, {SRD}, s{S_T2} offen sc1')
    def mid1():
        a(f's_bfe_u32 s{S_CG}, s2, 0x30003')
        a(f's_lshl_b32 s{S_FI}, s{K.S_GRP}, 2')
        a(f's_and_b32 s{S_FI}, s{S_FI}, 0xf8')
        a(f's_lshl_b32 s{S_XO}, s{S_FI}, 7')
        a(f's_add_u32 s{S_FI}, s{S_FI}, s{S_CG}')
        a(f's_lshl_b32 s{S_RAW}, s{S_W}, 17')
        a(f's_lshl_b32 s{S_T1}, s{S_CG}, 7')
        a(f's_add_u32 s{S_RAW}, s{S_RAW}, s{S_T1}')
        run(rawdma(0, 0))
        a(f's_add_u32 s{S_XO}, s{S_XO}, {ZF + 5 * ZK}')
        a(f'v_and_b32 v{V_FL}, 7, v0')
        a(f'v_lshlrev_b32 v{V_FL}, 7, v{V_FL}')
    def pollA():
        a(f'buffer_load_dword v27, v{V_FL}, {SRD}, s{S_XO} offen sc1')
    tagslow = pz.prep(a, name, K, st, mid1, lambda: flag(5), pollA, late, **o1)
    vm.issue('role'); vm.issue('role')
    a(f's_lshr_b32 s{S_T0}, s{K.S_TILE}, 1')
    a(f's_lshl_b32 s{S_T0}, s{S_T0}, 3')
    a(f's_lshl1_add_u32 s{S_T0}, s{S_W}, s{S_T0}')
    for rb, (sb, vs) in enumerate(((S_B0, V_ST0), (S_B1, V_ST1))):
        a(f's_add_u32 s{sb}, s{S_T0}, {rb}')
        a(f's_cmp_lt_u32 s{sb}, 125')
        a(f's_cselect_b32 s{S_T1}, 0, 0x80000000')
        a(f'v_or_b32 v{vs}, s{S_T1}, v{V_L16}')
        a(f's_min_u32 s{sb}, s{sb}, 124')
        a(f's_add_u32 s{sb}, s{sb}, s{K.S_B125}')
        a(f's_lshl_b32 s{sb}, s{sb}, 15')
    def xload(i):
        rb, f = i >> 5, i & 31
        pre = []
        if f == 0: pre = [f's_add_u32 s{S_XO}, s{S_B1 if rb else S_B0}, {WS_XA}']
        elif f % 4 == 0: pre = [f's_add_u32 s{S_XO}, s{S_XO}, 4096']
        return pre + [(f'buffer_load_dwordx4 {ar(4*i,4)}, v{V_L16}, {SRD}, s{S_XO} offen offset:{(f%4)*1024} sc1', ('X', i))]
    a('s_waitcnt vmcnt(4)')
    a('s_barrier')
    run(rawdma(0, 1))
    a(f's_lshl_b32 s{S_WOFF}, s{S_CG}, 16')
    a(f's_add_u32 s{S_WOFF}, s{S_WOFF}, {WS_W}')
    a(f's_and_b32 s{S_T0}, s2, 3')
    a(f's_lshl_b32 s{S_M1}, s{S_T0}, 2')
    a(f's_lshr_b32 s{S_T2}, s2, 6')
    a(f's_add_u32 s{S_M1}, s{S_M1}, s{S_T2}')
    a(f's_and_b32 s{S_M0}, s2, 4')
    a(f's_lshl_b32 s{S_M0}, s{S_M0}, 1')
    a(f's_add_u32 s{S_M0}, s{S_M0}, s{S_CG}')
    a(f's_lshl_b32 s{S_U}, s{S_M1}, 4')
    a(f's_add_u32 s{S_U}, s{S_U}, s{S_M0}')
    a(f's_lshl_b32 s{S_M0}, s{S_M0}, 15')
    a(f's_add_u32 s{S_M0}, s{S_M0}, {WS_RL}')
    a(f's_lshl_b32 s{S_M1}, s{S_M1}, 15')
    a(f's_add_u32 s{S_M1}, s{S_M1}, {WS_T1}')
    c0 = -2.0 * 0.7978845608028654 * 1.4426950408889634
    a(f'v_mov_b32 v{V_C0}, {f2h(c0)}')
    a(f'v_mov_b32 v{V_C1}, {f2h(c0 * 0.044715)}')
    a(f'v_add_u32 v{V_RA}, {2*TILE}, v{V_L16}')
    for i in range(32): a(f'v_mov_b32 v{V_SS+i}, 0')
    a(f's_lshl_b32 s{S_T2}, s{S_CG}, 12')
    a(f's_add_u32 s46, s{S_B0}, s{S_T2}')
    a(f's_add_u32 s47, s{S_B1}, s{S_T2}')
    OS = {'g': 56, 'u': 58, 'q': 60, 'v': 52}
    for ty in 'guqv':
        for rb in range(2): a(f's_add_u32 s{OS[ty]+rb}, s{46+rb}, {obase[ty]}')
    a(f'v_lshrrev_b32 v{V_T0}, 3, v0')
    a(f'v_and_b32 v{V_T1}, 7, v0')
    a(f's_lshl_b32 s{S_T2}, s{S_CG}, 3')
    a(f's_add_u32 s{S_T2}, s{S_T2}, 64')
    a(f'v_add_u32 v113, s{S_T2}, v{V_T1}')
    a(f's_lshr_b32 s{S_T2}, s{S_U}, 5')
    a(f's_lshl_b32 s{S_T2}, s{S_T2}, 3')
    a(f'v_add_u32 v114, s{S_T2}, v{V_T1}')
    a(f'v_cmp_eq_u32 vcc, 1, v{V_T0}')
    a(f's_lshl_b32 s{S_T2}, s{K.S_SPLIT}, 4')
    a(f's_add_u32 s{S_T2}, s{S_T2}, {128 - 24}')
    a(f'v_cndmask_b32 v113, v113, v114, vcc')
    a(f'v_add_u32 v114, s{S_T2}, v0')
    a(f'v_subrev_u32 v115, 3, v{V_T0}')
    a(f'v_cmp_gt_u32 vcc, 2, v115')
    a(f's_mul_i32 s{S_T2}, s{S_CG}, 5')
    a(f's_add_u32 s{S_T2}, s{S_T2}, 206')
    a(f'v_cndmask_b32 v113, v113, v114, vcc')
    a(f'v_min_u32 v114, 6, v{V_T1}')
    a(f'v_add_u32 v114, s{S_T2}, v114')
    a(f'v_cmp_eq_u32 vcc, 2, v{V_T0}')
    a(f's_bfe_u32 s{S_T2}, s{S_U}, 0x30001')
    a(f's_add_u32 s{S_T2}, s{S_T2}, 192')
    a(f'v_cndmask_b32 v113, v113, v114, vcc')
    a(f'v_lshl_add_u32 v114, v{V_T1}, 3, s{S_T2}')
    a(f'v_subrev_u32 v115, 16, v0')
    a(f'v_cmp_gt_u32 vcc, 2, v115')
    a('s_nop 1')
    a(f'v_cndmask_b32 v113, v113, v114, vcc')
    a(f'v_lshlrev_b32 v113, 7, v113')
    PC = 92
    def p3dma():
        out = []
        for b, so in ((0, S_M0), (1, S_M1)):
            for h in range(2):
                pre = [f's_add_u32 m0, s{S_W8K}, {b * TILE + h*4096}', 's_nop 0']
                for i in range(4):
                    out.append(pre + [(f'buffer_load_dwordx4 v{V_DK1 if h else V_DK0}, {SRD}, s{so} offen offset:{i*1024} sc1 lds', 'p3')]); pre = []
        return out
    a(f's_and_b32 s{S_T2}, s{S_W}, 1')
    a(f's_lshl_b32 s{S_T2}, s{S_T2}, 10')
    a(f'v_add_u32 v30, s{S_T2}, v{V_L16}')
    a(f's_lshr_b32 s{S_T2}, s{S_W}, 1')
    a(f's_lshl_b32 s{S_T2}, s{S_T2}, 10')
    a(f'v_add_u32 v31, s{S_T2}, v{V_L16}')
    def p3step(j):
        b = V_STG + 8 * (j % 2)
        if 2 <= j < 18:
            a(f's_waitcnt lgkmcnt({min(15, q.need(("p3r", j - 2)))})')
            a(f'v_mfma_f32_16x16x32_bf16 {vr(PC,4)}, {vr(b,4)}, {vr(b+4,4)}, {vr(PC,4) if j > 2 else 0}')
        if j < 16:
            emit(f'ds_read_b128 {vr(b,4)}, v30 offset:{j*2048}', ('p3r', j))
            emit(f'ds_read_b128 {vr(b+4,4)}, v31 offset:{TILE + j*2048}', ('p3r', j))
        if j == 18:
            a(f's_lshl_b32 s{S_M0}, s{S_U}, 11')
            a(f's_lshl_b32 s{S_T2}, s{S_W}, 9')
            a(f's_add_u32 s{S_M0}, s{S_M0}, s{S_T2}')
            a(f's_add_u32 s{S_M0}, s{S_M0}, {WS_W + 16 * TILE}')
            a(f'v_lshlrev_b32 v30, 3, v0')
            a(f'v_add_u32 v{V_RA}, {2*TILE}, v30')
            a('s_nop 1')
            for i in range(2): a(f'v_cvt_pk_bf16_f32 v{PC+i}, v{PC+2*i}, v{PC+2*i+1}')
            emit(f'buffer_store_dwordx2 {vr(PC,2)}, v30, {SRD}, s{S_M0} offen sc1', 'p3s')

    stream = []
    for rb in range(2):
        for s in range(16):
            for n in range(2):
                for ch in range(2): stream.append((n, s, ch, rb))
    for n in range(2, 8):
        for f in range(32): stream.append((n, f & 15, f >> 4, None))
    NS = len(stream)
    def slot(G): return V_RING + 4 * (G % NR)
    def rd(G):
        n, s, ch, rb = stream[G]
        if seq[n] in 'gu':
            return [f'ds_read_b64_tr_b16 {vr(slot(G)+2*jj, 2)}, v{V_WT[half[n]]} offset:{s*4096 + jj*512 + ch*8}' for jj in range(2)]
        if seq[n] == 'v':
            o0 = (BUF[n] - 2) * 64 + (2 * s + ch) * 2
            return [f'ds_read2st64_b64 {vr(slot(G), 4)}, v{V_RA} offset0:{o0} offset1:{o0 + 1}']
        reg, off = {4: (V_WD, 0), 1: (V_L16, TILE), 3: (V_RA, TILE), 2: (V_RA, 0)}[BUF[n]]
        return [f'ds_read_b128 {vr(slot(G), 4)}, v{reg} offset:{off + (2 * s + ch) * 1024}']
    def mf(n, s, ch, rb, rh, G):
        x = ar(rb * 128 + (s * 2 + rh) * 4, 4); w = vr(slot(G), 4)
        if seq[n] in 'vg': d = vr(ACN[n] + 16 * rb + ch * 8 + rh * 4, 4); A, B = x, w
        else: d = vr(ACN[n] + 16 * rb + rh * 8 + ch * 4, 4); A, B = w, x
        return f'v_mfma_f32_16x16x32_bf16 {d}, {A}, {B}, {d if s else 0}'
    def mfmas(G):
        n, s, ch, rb = stream[G]
        if rb is not None: return [mf(n, s, ch, rb, rh, G) for rh in range(2)]
        R = [(0, 0), (0, 1), (1, 0), (1, 1)]
        if (s >> 1) & 1: R = R[::-1]
        out = []
        for (b, rh) in R[2 * (s & 1):2 * (s & 1) + 2]:
            for k in range(2): out.append(mf(n, (s & 14) + k, ch, b, rh, (G & ~1) + k))
        return out
    extra = [xload(i) for i in range(XPRE, 64)] + rawdma(2, 0) + rawdma(2, 1)
    pkrot = [0]; zrot = [0]
    def epilogue(n, rb):
        ty = seq[n]; ops = []
        for o in range(2):
            base = ACN[n] + 16 * rb + 8 * o
            if ty == 'u' and half[n] * 4 + rb * 2 + o >= 8 - defer: continue
            if ty in 'ug':
                def chain(e):
                    z = (V_Z + e if n > 1 else V_Z + 4 * n + e % 4); x = base + e
                    c = [(f'v_mul_f32 v{z}, v{x}, v{x}', 1), (f'v_fma_f32 v{z}, v{z}, v{V_C1}, v{V_C0}', 1), (f'v_mul_f32 v{z}, v{z}, v{x}', 1),
                         (f'v_exp_f32 v{z}, v{z}', 2), (f'v_add_f32 v{z}, 1.0, v{z}', 1), (f'v_rcp_f32 v{z}, v{z}', 2), (f'v_mul_f32 v{x}, v{x}, v{z}', 1)]
                    if ty == 'g':
                        c += [(f'v_add_f32 v{V_SS+16*rb+e}, v{V_SS+16*rb+e}, v{x}', 1), (f'v_fmac_f32 v{V_SS+16*rb+8+e}, v{x}, v{x}', 1)]
                    return c
                L = len(chain(0))
                for _, e, k in sorted(((2 if n > 1 else 4) * e + 2 * k, e, k) for e in range(8) for k in range(L)): ops.append(chain(e)[k] + (None,))
            if ty == 'u': continue
            pk = base if n else V_GP + 8 * rb + 4 * o
            so = OS[ty] + rb
            for i in range(4): ops.append((f'v_cvt_pk_bf16_f32 v{pk+i}, v{base+2*i}, v{base+2*i+1}', 1, None))
            vo = (V_HV + rb) if ty == 'g' else (V_ST1 if rb else V_ST0)
            if ty != 'u': ops.append((f'buffer_store_dwordx4 {vr(pk,4)}, v{vo}, {SRD}, s{so} offen offset:{half[n]*2048 + o*1024} {st_flags}', 2, ('st', ty)))
        return ops
    def stats_ops(rb):
        B = V_SS + 16 * rb; ops = []
        for i in range(8): ops.append((f'v_add_f32_dpp v{B+i}, v{B+i}, v{B+i} row_ror:8 row_mask:0xf bank_mask:0x3', 1, None))
        for i in range(8): ops.append((f'v_add_f32_dpp v{B+i}, v{B+8+i}, v{B+8+i} row_ror:8 row_mask:0xf bank_mask:0xc', 1, None))
        for i in range(4): ops.append((f'v_add_f32_dpp v{B+i}, v{B+i}, v{B+i} row_half_mirror row_mask:0xf bank_mask:0x5', 1, None))
        for i in range(4): ops.append((f'v_add_f32_dpp v{B+i}, v{B+4+i}, v{B+4+i} row_half_mirror row_mask:0xf bank_mask:0xa', 1, None))
        for pm in ('[2,3,0,1]', '[1,0,3,2]'):
            for i in range(4): ops.append((f'v_add_f32_dpp v{B+i}, v{B+i}, v{B+i} quad_perm:{pm} row_mask:0xf bank_mask:0xf', 1, None))
        ops.append((f'buffer_store_dwordx4 {vr(B,4)}, v{12 + 3*rb}, {SRD}, s{S_S0+rb} offen {st_flags}', 2, ('st', 'g')))
        return ops
    a(f'v_and_b32 v{V_T0}, 3, v0')
    a(f'v_cmp_eq_u32 vcc, 0, v{V_T0}')
    a(f'v_bfrev_b32 v{V_T1}, 1')
    a(f'v_and_b32 v{V_T0}, 12, v0')
    a(f'v_lshlrev_b32 v{V_T0}, 4, v{V_T0}')
    a(f'v_and_or_b32 v{V_T0}, v0, 48, v{V_T0}')
    for rb in range(2):
        a(f's_lshr_b32 s{S_S0+rb}, s{S_B1 if rb else S_B0}, 4')
        a(f's_lshl_b32 s{S_T2}, s{S_CG}, 8')
        a(f's_add_u32 s{S_S0+rb}, s{S_S0+rb}, s{S_T2}')
        a(f's_add_u32 s{S_S0+rb}, s{S_S0+rb}, {WS_ST}')
    a(f'v_cndmask_b32 v{V_T0}, v{V_T1}, v{V_T0}, vcc')
    for rb in range(2):
        a(f'v_and_b32 v{12+3*rb}, v{V_T1}, v{V_ST1 if rb else V_ST0}')
        a(f'v_or_b32 v{12+3*rb}, v{12+3*rb}, v{V_T0}')
    for rb, wv in ((0, 0), (1, 3)):
        a(f's_cmp_eq_u32 s{S_W}, {wv}')
        a(f's_cselect_b32 s{S_T2}, 0, 0x80000000')
        a(f'v_or_b32 v{V_HV+rb}, s{S_T2}, v{V_ST1 if rb else V_ST0}')
    a('s_waitcnt vmcnt(10)')
    a(f'v_cmp_ne_u32 vcc, s{S_TAG}, v27')
    a(f's_cbranch_vccnz {name}_fas')
    a(f'{name}_fak:')
    slows.append(('fa', 27, V_FL, S_XO))
    run([xload(i) for i in range(XPRE)])
    a(f'v_mov_b32 v{V_FL}, v113')
    st(43)
    for G in range(LA):
        for o in rd(G): emit(o, G)
    pend = []; lastw = {}; lasts = {}; forced = [0]
    pos = [0]
    def flush_one(op, tag):
        r, w = rw(op)
        prev = a.lines[-1].strip()
        if prev.startswith(('v_exp', 'v_rcp')) and (rw(prev)[1] & r): a('s_nop 0')
        for pv in a.lines[-2:]:
            pv = pv.strip()
            if pv.startswith('buffer_store') and (rw(pv)[0] & w): a('s_nop 1'); break
            if 'dpp' in op and pv.startswith('v_') and not pv.startswith('v_mfma') and (rw(pv)[1] & r): a('s_nop 1'); break
        emit(op, tag)
        for x in w: lastw[x] = pos[0]
        if op.startswith('buffer_store'):
            for x in r: lasts[x] = pos[0]
    def issue_ready(budget, window=28):
        i = 0; p = pos[0]
        while budget > 0 and i < min(window, len(pend)):
            rdy, op, c, tag, t = pend[i]
            r, w = rw(op)
            gap = 2 if 'dpp' in op else 1
            ok = rdy <= p and c <= budget and all(lastw.get(x, -9) + gap <= p for x in r) and all(lasts.get(x, -9) + 2 <= p for x in w)
            if ok:
                for j in range(i):
                    r2, w2 = rw(pend[j][1])
                    if (r & w2) or (w & r2) or (w & w2): ok = False; break
            if ok:
                pend.pop(i); flush_one(op, tag); budget -= c
            else: i += 1
    first_of = {n: min(i for i, it in enumerate(stream) if it[0] == n) for n in range(8)}
    last_of = {}
    for i, it in enumerate(stream):
        for rb in ((0, 1) if it[3] is None else (it[3],)): last_of[(it[0], rb)] = i
    done_at = {}; flagged = set()
    F3 = first_of[3]
    for G in range(NS):
        n, s, ch, rb = stream[G]
        if G in (0, 64): st(30 + G // 64)
        if G >= 128 and G % 32 == 0: st(30 + G // 32 - 2)
        if G == first_of[n]:
            while any((t is not None and ACN[t] == ACN[n]) or (ACN[n] == V_SS and (t is None or seq[t] == 'g')) for (_, _, _, _, t) in pend):
                _, op, _, tag, _ = pend.pop(0); flush_one(op, tag); forced[0] += 1
        w = []
        if n == 0 and ch == 0: w.append(f'vmcnt({min(63, vm.need(("X", 32 * rb + 2 * s + 1)))})')
        we = wait_every
        if G % we == 0: w.append(f'lgkmcnt({min(15, q.need(min(G + we - 1, NS - 1)))})')
        if w: a('s_waitcnt ' + ' '.join(w))
        mm = mfmas(G)
        for h, m in enumerate(mm):
            a(m)
            budget = 2
            ov = over if 'g' not in done_at else over2
            if ov and pos[0] % ov == 0: budget += 1
            if G + LA < NS and h < len(rd(G + LA)): emit(rd(G + LA)[h], G + LA); budget -= 1
            if h == len(mm) - 1 and (G + 1) % we == 0: budget -= 1
            if extra and h == len(mm) // 2 and (rb is None or G % 2 == 0 or G > fastx):
                run([extra.pop(0)]); budget = 0
            issue_ready(budget)
            pos[0] += 1
        for ty in 'gq':
            if ty not in done_at and G > last_of[(7 - seq[::-1].index(ty), 1)] and not any(p[3] == ('st', ty) for p in pend): done_at[ty] = G
        for ty, kind in (('g', 1), ('q', 2)):
            if ty in done_at and G == done_at[ty] + (fdelay if ty == 'g' else fdelayq):
                a(f's_waitcnt vmcnt({vm.need(("st", ty))})')
                a('s_barrier')
                flag(kind); flagged.add(kind); print('k2c flag', kind, 'at', G)
        def bar(tags):
            if tags: a(f's_waitcnt vmcnt({min(vm.need(t) for t in tags)})')
            a('s_barrier')
        if G == rp[0]:
            bar([('W', 0, 1)])
            flag(6)
        if G == rp[1]:
            a(f's_mov_b32 s46, {ZF + 6 * ZK}')
            emit(f'buffer_load_dword v27, v{V_FL}, {SRD}, s46 offen sc1', 'pollr')
        if G == first_of[2] - bar_back: bar([('W', 2, 1)])
        if G == first_of[2] - LA - 1:
            for r in V_WT: a(f'v_add_u32 v{r}, {2*TILE}, v{r}')
            a(f'v_add_u32 v{V_WD}, {4*TILE}, v{V_L16}')
        if G == rp[2]:
            assert G >= first_of[2]
            a(f's_waitcnt vmcnt({vm.need("pollr")})')
            a(f'v_cmp_ne_u32 vcc, s{S_TAG}, v27')
            a(f's_cbranch_vccnz {name}_frs')
            a(f'{name}_frk:')
            slows.append(('fr', 27, V_FL, 46))
            bar([])
            extra += p3dma() + dma(4)
        if G == rp[3]: bar(['p3'])
        if 0 <= G - rp[3] <= 18: p3step(G - rp[3])
        if G == first_of[4] - bar_back:
            assert G >= rp[3] + 17
            bar([('W', 4)])
            extra += dma(5)
        if G == rp[3] + 18 + pp[0]:
            bar(['p3s']); flag(0); flagged.add(0)
        if G == first_of[5] - bar_back: bar([('W', 5)])
        if G == rp[3] + 18 + pp[1]:
            a(f'v_and_b32 v{V_FL}, 31, v0')
            a(f'v_lshlrev_b32 v{V_FL}, 7, v{V_FL}')
            a(f's_lshl_b32 s{S_M1}, s{S_CG}, 12')
            a(f's_add_u32 s{S_M1}, s{S_M1}, {ZF}')
            emit(f'buffer_load_dword v27, v{V_FL}, {SRD}, s{S_M1} offen sc1', 'poll')
        if G == rp[3] + 18 + pp[2]:
            assert G > first_of[5] - bar_back
            a(f's_waitcnt vmcnt({vm.need("poll")})')
            a(f'v_cmp_ne_u32 vcc, s{S_TAG}, v27')
            a(f's_cbranch_vccnz {name}_p3slow')
            a(f'{name}_p3ok:')
            extra[:0] = dma(6) + dma(7)
        if G == first_of[6] - LA - 1: bar([('W', 6)])
        if G == first_of[7] - bar_back: bar([('W', 7)])
        if G - NS in hooks: extra += hooks[G - NS]() or []
        for (m, b), l in last_of.items():
            if l == G:
                ep = [(pos[0] + 7, op, c, tag, m) for op, c, tag in epilogue(m, b)]
                if seq[m] in 'qv':
                    pend[:0] = ep
                elif m == 0 and b == 1:
                    k = max([i for i, p in enumerate(pend) if p[4] == 0], default=-1) + 1
                    pend[k:k] = ep
                else:
                    pend += ep
                    if m == 1: pend += [(pos[0] + 7, op, c, tag, None) for op, c, tag in stats_ops(b)]
    print('k2m: forced', forced[0], 'tail', len(pend), 'done', done_at, 'extra left', len(extra))
    st(27); st(38)
    run(extra)
    a('s_nop 7')
    for _, op, _, tag, _ in pend: flush_one(op, tag)
    def slow():
        tagslow()
        a(f'{name}_p3slow:')
        a('s_sleep 2')
        a(f'buffer_load_dword v27, v{V_FL}, {SRD}, s{S_M1} offen sc1')
        a('s_waitcnt vmcnt(0)')
        a(f'v_cmp_ne_u32 vcc, s{S_TAG}, v27')
        a(f's_cbranch_vccnz {name}_p3slow')
        a(f's_branch {name}_p3ok')
    assert flagged == {0, 1, 2}
    return flag, slow
```

```python
from asmlib import *
from layout import *
from attn2 import LdsQ
from k2 import f2h, VmQ, code_prefetch

V_DK0, V_DK1, V_DV0, V_DV1, V_KA, V_VA, V_L16, V_L0, V_L1, V_MX, V_F0, V_F1, V_T0, V_T1, V_T2 = range(1, 16)
V_S, V_E, V_P, V_NEGM, V_RING = 16, 32, 48, 56, 64
V_PF, V_PFD, V_XO, V_FL = 116, 117, 118, 119
V_WT0, V_WT1, V_WD, V_FO = 6, 28, 29, 10
S_TAG = 75
S_X, S_OUTP, S_WS, S_SRD, S_SRX, S_SRO = 4, 6, 40, 8, 12, 16
(S_KOFF, S_VOFF, S_KDMA, S_VDMA, S_VRD, S_CNT, S_W, S_QB, S_SPLIT, S_T0, S_T1, S_VALID, S_GRP, S_W8K, S_PFOFF, S_T2) = range(20, 36)
S_TILE, S_B125, S_T3, S_T4 = 36, 37, 38, 39
S_WB0, S_WB1, S_WB2, S_WB3, S_UCO, S_WCO, S_FLO, S_PO = range(56, 64)
S_PFS, S_PFST, S_PH, S_XCC, S_SLOW, S_PB = 44, 45, 46, 47, 48, 54

def Obase(beta, qh): return 128 + 8 * (beta % 16) + 4 * qh
def Oreg(beta, qh): return vr(Obase(beta, qh), 4) if beta < 16 else ar(Obase(beta, qh), 4)

def gen_main(a, name, dma_gap=3, dma_cost=2, CAP=2, bar_pos=50, NR=13, LA=10, wait_every=4, THR=0x41800000,
             stamp=False, snake=True, prefetch=2, pf=True, pv_pace=4, pv_budget=6, out_flags='sc1', npf=0, fast_st='nt', flag_at=140, force_slow=True, tailst=False, pfill=False, st_pace=9, ld_pace=2, yc_budget=2, bg_pace=14, tailpf=1, tlb=True, pf_flags='sc1', uc_pace=4, chk_at=60, merged=True, gst=False, pst=False, prew2=True, nobr2=True, cmp_early=False, tail=4, t5=(3, 4, 4, 4, 16, 3), sizes4=(33, 32, 31, 29), pf_late=False, xinit=True, xi_pre=8, jit=0, slp=2, pf_wg=0, o2={}, hk=(-84, -62, -30, -15), qearly=14, vchk=16, dbg=(), dbgout=False, spin=None, brgap=3, chain=True, poll_after=8, r_pace=5, chk2_at=0, noyc=False, ld_per_st=0, flag_after=0, rounds=((56, 3), (112, 3))):
    SRD, SRX, SRO = [f's[{b}:{b+3}]' for b in (S_SRD, S_SRX, S_SRO)]
    def st(i, cyc=False):
        if jit and not cyc and i not in (0,):
            lab = a.label(name + '_jit')
            a(f's_mul_i32 s100, s2, {2654435761 * (i + jit) % (1 << 31)}')
            a(f's_mul_i32 s101, s{S_W}, {40503 * (i + 3) * jit}')
            a('s_add_u32 s100, s100, s101')
            a('s_lshr_b32 s100, s100, 26')
            a('s_cmp_lt_u32 s100, 44')
            a(f's_cbranch_scc1 {lab}')
            a(f'{lab}l:')
            a('s_sleep 16')
            a('s_sub_u32 s100, s100, 1')
            a('s_cmp_gt_u32 s100, 43')
            a(f's_cbranch_scc1 {lab}l')
            a(f'{lab}:')
        gs = [1, 2, 3, 4, 5, 6, 8, 9, 12, 13, 14, 15]
        if i >= 40:
            if i == 43: i = 10
            elif pst: i = [4, 5, 6][i - 40]
            else: return
        elif pst and i in (4, 5, 6): return
        if i >= 30:
            if not gst: return
            i = gs[i - 30]; cyc = True
        elif gst and i in gs: return
        if tailst and 10 <= i <= 14: return
        if 20 <= i < 26:
            if not tailst: return
            i -= 10
        if i >= 26: i -= 16
        if stamp:
            a(f'{"s_memtime" if cyc else "s_memrealtime"} s[100:101]')
            a('s_waitcnt lgkmcnt(0)')
            a(f's_mov_b32 s{80+i}, s100')
    kernel_begin(a, name)
    a(f's_cmp_ge_u32 s2, 256\n s_cbranch_scc1 {name}_end')
    a('s_load_dwordx16 s[56:71], s[0:1], 0')
    a('s_load_dwordx8 s[72:79], s[0:1], 64')
    st(0)
    def codepf():
        if not pf_late: return
        _codepf('v_lshl_add_u32 v251, s26, 6, v0')
    def _codepf(tid):
        a(tid)
        a(f's_getpc_b64 s[42:43]')
        a(f'{name}_pc:')
        a(f's_sub_u32 s42, s42, {name}_pc-{name}')
        a(f's_subb_u32 s43, s43, 0')
        a(f's_lshr_b32 s44, s2, 3')
        a(f's_mul_i32 s44, s44, 3072')
        a(f'v_subrev_u32 v13, 192, v251')
        a(f'v_cmp_gt_u32 vcc, 24, v13')
        a(f'v_lshlrev_b32 v13, 7, v13')
        a(f'v_add_u32 v13, s44, v13')
        a(f'v_min_u32 v13, {name}_end-{name}-4, v13')
        a(f's_and_saveexec_b64 s[44:45], vcc')
        a(f's_cbranch_execz {name}_nopf')
        a(f'global_load_dword v250, v13, s[42:43]')
        a(f'{name}_nopf:')
        a(f's_mov_b64 exec, s[44:45]')
    if not pf_late: _codepf('v_mov_b32 v251, v0')
    a(f'v_lshrrev_b32 v{V_T0}, 6, v0')
    a(f'v_cmp_gt_u32 vcc, 32, v0')
    a(f'v_bfrev_b32 v{V_T1}, 1')
    a(f'v_lshlrev_b32 v{V_T2}, 2, v0')
    a(f'v_and_b32 v0, 63, v0')
    a(f'v_readfirstlane_b32 s{S_W}, v{V_T0}')
    a(f'v_lshlrev_b32 v{V_L16}, 4, v0')
    a(f'v_cndmask_b32 v{V_FO}, v{V_T1}, v{V_T2}, vcc')
    a(f's_and_b32 s{S_T0}, s2, 7')
    a(f's_lshr_b32 s{S_T1}, s2, 3')
    a(f's_and_b32 s{S_SPLIT}, s{S_T1}, 3')
    a(f's_lshr_b32 s{S_T1}, s{S_T1}, 2')
    a(f's_lshl_b32 s{S_PFOFF}, s{S_T1}, 2')
    a(f's_and_b32 s{S_TILE}, s{S_T0}, 3')
    a(f's_lshl_b32 s{S_TILE}, s{S_TILE}, 3')
    a(f's_add_u32 s{S_TILE}, s{S_TILE}, s{S_T1}')
    a(f's_lshr_b32 s{S_T0}, s{S_T0}, 2')
    a(f's_lshl_b32 s{S_GRP}, s{S_T0}, 5')
    a(f's_add_u32 s{S_GRP}, s{S_GRP}, s{S_TILE}')
    a(f's_mul_i32 s{S_B125}, s{S_T0}, 125')
    ucst = []
    def late_setup():
        a(f's_lshl_b32 s{S_QB}, s{S_TILE}, 2')
        a(f's_add_u32 s{S_QB}, s{S_QB}, s{S_W}')
        a(f's_cmp_lt_u32 s{S_QB}, 125')
        a(f's_cselect_b32 s{S_VALID}, 0, 0x80000000')
        a(f's_min_u32 s{S_QB}, s{S_QB}, 124')
        a(f's_add_u32 s{S_QB}, s{S_QB}, s{S_B125}')
        assert sum(sizes4) == 125
        starts = [sum(sizes4[:i]) for i in range(4)]
        a(f's_lshl_b32 s{S_KOFF}, s{S_SPLIT}, 3')
        a(f's_lshr_b32 s{S_T1}, {hex(sum(v << (8*i) for i, v in enumerate(starts)))}, s{S_KOFF}')
        a(f's_and_b32 s{S_T1}, s{S_T1}, 255')
        a(f's_add_u32 s{S_T1}, s{S_T1}, s{S_B125}')
        a(f's_lshr_b32 s{S_CNT}, {hex(sum((v - 2) << (8*i) for i, v in enumerate(sizes4)))}, s{S_KOFF}')
        a(f's_and_b32 s{S_CNT}, s{S_CNT}, 255')
        a(f's_lshl_b32 s{S_KOFF}, s{S_T1}, 15')
        a(f's_add_u32 s{S_VOFF}, s{S_KOFF}, {WS_VT}')
        if WS_XA: a(f's_add_u32 s{S_KOFF}, s{S_KOFF}, {WS_XA}')
        codepf()
    vm = VmQ()
    def emit(o, tag=None):
        a(o)
        if o.startswith('buffer_'): vm.issue(tag)
    def dma_ops(v0, v1, soff, sbase):
        ops = []
        for g in range(2):
            for i in range(4):
                pre = None
                if i == 0:
                    pre = f's_mov_b32 m0, s{sbase}' if g == 0 else f's_add_u32 m0, s{sbase}, 4096'
                ops.append((pre, f'buffer_load_dwordx4 v{v0 if g == 0 else v1}, {SRD}, s{soff} offen offset:{i*1024} sc1 lds'))
        return ops
    def emit_dma_now(tag, *args):
        for pre, op in dma_ops(*args):
            if pre: a(pre); a('s_nop 0')
            emit(op, tag)
    def xreduce(regs, op, tmp):
        for sw in ('v_permlane16_swap_b32', 'v_permlane32_swap_b32'):
            for i, r in enumerate(regs): a(f'v_mov_b32 v{tmp+i}, v{r}')
            if len(regs) < 3: a('s_nop 1')
            else: a('s_nop 0')
            for i, r in enumerate(regs): a(f'{sw} v{tmp+i}, v{r}')
            a('s_nop 1')
            for i, r in enumerate(regs): a(f'{op} v{r}, v{r}, v{tmp+i}')

    import k2z, sys
    a(f's_lshl_b32 s{S_W8K}, s{S_W}, 13')
    a(f'v_add_u32 v{V_DK0}, s{S_W8K}, v{V_L16}')
    a(f'v_add_u32 v{V_DK1}, 4096, v{V_DK0}')
    GN = 3 * TILE; GS = 584; CV = GN + 64 * GS; CS = 144; TB = CV + 20480
    S_VF = [42, 43, 49]; S_B10 = [50, 51, 45]; S_BT, S_RT = 63, 55
    S_CG = 64
    V_PL, V_PQ, V_HD = 26, 27, 28
    STL = [[112, 116], [120, 124], [164, 172]]
    def poll_ops(first_expr, ngrp, kind, dst, tag):
        pass
    def slowpoll(lab, dst, vo, so):
        slows.append((lab, dst, vo, so))
    slows = []
    def h_poll1():
        a(f's_lshr_b32 s{S_BT}, s{S_TILE}, 1')
        a(f'v_lshrrev_b32 v13, 3, v0')
        a(f's_sub_u32 s{S_T3}, s{S_BT}, 1')
        a(f'v_add_u32 v11, s{S_T3}, v13')
        a(f'v_med3_i32 v11, v11, 0, 15')
        a(f's_lshr_b32 s{S_T3}, s{S_KOFF}, 15')
        a(f's_sub_u32 s{S_T3}, s{S_T3}, s{S_B125}')
        a(f'v_cmp_lt_u32 vcc, 2, v13')
        a(f'v_and_b32 v13, 1, v13')
        a(f'v_add_u32 v13, s{S_T3}, v13')
        a(f'v_lshrrev_b32 v13, 3, v13')
        a(f'v_cndmask_b32 v11, v11, v13, vcc')
        a(f'v_and_b32 v13, 7, v0')
        a(f'v_lshl_add_u32 v11, v11, 3, v13')
        a(f'v_lshlrev_b32 v11, 7, v11')
        a(f's_and_b32 s{S_T3}, s{S_GRP}, 32')
        a(f's_lshl_b32 s{S_T3}, s{S_T3}, 9')
        a(f's_add_u32 s{S_T3}, s{S_T3}, {ZF + ZK}')
        emit(f'buffer_load_dword v{V_PL}, v11, {SRD}, s{S_T3} offen sc1', 'poll1')
    def chk(lab, dst, vo, so, tag):
        a(f's_waitcnt vmcnt({vm.need(tag)})')
        a(f'v_cmp_ne_u32 vcc, s{S_TAG}, v{dst}')
        a(f's_cbranch_vccnz {name}_{lab}s')
        a(f'{name}_{lab}k:')
        slows.append((lab, dst, vo, so))
    def h_loads1():
        chk('f1', V_PL, 11, S_T3, 'poll1')
        out = []
        for rnd in range(3):
            pre = [f's_lshl_b32 s{S_T4}, s{S_BT}, 3']
            if rnd < 2: pre.append(f's_add_u32 s{S_B10[rnd]}, s{S_W}, {4*rnd}')
            else: pre += [f's_cmp_lt_u32 s{S_W}, 2', f's_cselect_b32 s{S_T3}, 8, 4', f's_add_u32 s{S_B10[2]}, s{S_W}, s{S_T3}']
            pre += [f's_add_u32 s{S_T3}, s{S_T4}, s{S_B10[rnd]}', f's_sub_u32 s{S_T3}, s{S_T3}, 1', f's_cmp_lt_u32 s{S_T3}, 125',
                    f's_cselect_b32 s{S_VF[rnd]}, 1.0, 0', f's_cselect_b32 s{S_T3}, s{S_T3}, s{S_T4}', f's_add_u32 s{S_T3}, s{S_T3}, s{S_B125}',
                    f's_lshl_b32 s{S_T3}, s{S_T3}, 11', f's_add_u32 s{S_T3}, s{S_T3}, {WS_ST}']
            for h in range(2):
                out.append(pre + [(f'buffer_load_dwordx4 {vr(STL[rnd][h],4)}, v{V_L16}, {SRD}, s{S_T3} offen offset:{h*1024} sc1', 'st')]); pre = []
        pre = [f's_and_b32 s{S_PH}, s{S_W}, 1', f's_mul_i32 s{S_T3}, s{S_PH}, 9', f's_add_u32 s{S_T3}, s{S_T3}, s{S_T4}', f's_sub_u32 s{S_T3}, s{S_T3}, 1',
               f's_cmp_lt_u32 s{S_T3}, 125', f's_cselect_b32 s{S_T3}, s{S_T3}, s{S_T4}', f's_add_u32 s{S_T3}, s{S_T3}, s{S_B125}', f's_lshl_b32 s{S_T3}, s{S_T3}, 15',
               f's_lshr_b32 s{S_XCC}, s{S_W}, 1', f's_lshl1_add_u32 s{S_XCC}, s{S_CG}, s{S_XCC}', f's_lshl_b32 s{S_XCC}, s{S_XCC}, 11', f's_add_u32 s{S_T3}, s{S_T3}, s{S_XCC}',
               f's_xor_b32 s{S_XCC}, s{S_PH}, 1', f's_lshl_b32 s{S_XCC}, s{S_XCC}, 3', f's_add_u32 s{S_T3}, s{S_T3}, s{S_XCC}', f's_add_u32 s{S_T3}, s{S_T3}, {WS_G}']
        for ch in range(2):
            out.append(pre + [(f'buffer_load_dwordx2 {vr(V_HD+2*ch,2)}, v{V_L16}, {SRD}, s{S_T3} offen offset:{ch*1024} sc1', 'st')]); pre = []
        return h_k0() + out
    def h_k0():
        out = []
        first = [f's_mov_b32 s{S_KDMA}, s{S_W8K}']
        for pre, op in dma_ops(V_DK0, V_DK1, S_KOFF, S_KDMA):
            out.append(first + ([pre, 's_nop 0'] if pre else []) + [(op, 'K0')]); first = []
        pre = [f's_mul_i32 s{S_T4}, s{S_CG}, 20480', f's_mul_i32 s{S_XCC}, s{S_W}, 5120', f's_add_u32 s{S_T4}, s{S_T4}, s{S_XCC}',
               f's_add_u32 s{S_T4}, s{S_T4}, {WS_DWT}', f's_add_u32 m0, s{S_XCC}, {CV}', 's_nop 0']
        for i in range(5):
            if i == 4: pre = [f's_add_u32 s{S_T4}, s{S_T4}, 4096', f's_add_u32 m0, s{S_XCC}, {CV + 4096}', 's_nop 0']
            out.append(pre + [(f'buffer_load_dwordx4 v{V_L16}, {SRD}, s{S_T4} offen offset:{(i%4)*1024} sc1 lds', 'K0')]); pre = []
        return out
    def h_pollq():
        a(f's_lshr_b32 s{S_BT}, s{S_TILE}, 1')
        a(f's_lshr_b32 s{S_RT}, s{S_GRP}, 1')
        a(f's_mov_b32 s{S_PFS}, {f2h(1/512)}')
        assert hk[2] > hk[1]
        a(f'v_and_b32 v11, 7, v0')
        a(f'v_lshlrev_b32 v11, 7, v11')
        a(f's_lshl_b32 s{S_SLOW}, s{S_RT}, 10')
        a(f's_add_u32 s{S_SLOW}, s{S_SLOW}, {ZF + 2 * ZK}')
        emit(f'buffer_load_dword v{V_PQ}, v11, {SRD}, s{S_SLOW} offen sc1', 'pollq')
    assert hk[1] > -68
    def h_k1():
        out = []
        first = [f's_add_u32 s{S_KOFF}, s{S_KOFF}, {TILE}', f's_add_u32 s{S_KDMA}, s{S_KDMA}, {TILE}']
        for pre, op in dma_ops(V_DK0, V_DK1, S_KOFF, S_KDMA):
            out.append(first + ([pre, 's_nop 0'] if pre else []) + [(op, 'K1')]); first = []
        out[-1].append(f's_add_u32 s{S_KOFF}, s{S_KOFF}, {TILE}')
        return out
    def qload(f):
        pre = []
        if f == 0: pre = [f's_lshl_b32 s{S_T4}, s{S_QB}, 15', f's_add_u32 s{S_T4}, s{S_T4}, {WS_Q}']
        elif f % 4 == 0: pre = [f's_add_u32 s{S_T4}, s{S_T4}, 4096']
        return pre + [(f'buffer_load_dwordx4 {ar(4*f,4)}, v{V_L16}, {SRD}, s{S_T4} offen offset:{(f%4)*1024} sc1', ('Q', f))]
    def h_q():
        chk('fq', V_PQ, 11, S_SLOW, 'pollq')
        return [qload(f) for f in range(qearly)]
    assert hk[3] >= -15 and qearly <= -hk[3] - 1
    hooks = {hk[0]: h_poll1, hk[1]: h_loads1, hk[2]: h_pollq, -39: h_k1, hk[3]: h_q}
    flagf, p3slow = k2z.rg4(a, name, sys.modules[__name__], st, stamp, vm, hooks, slows, late_setup, **o2)
    AT = [[64, 68, 72, 76, 80, 84, 88, 92, 16, 20], [128, 132, 136, 140, 144, 148, 152, 156, 180, 188]]
    UACC = [192, 224]
    def gfrag(T, rb, ch): return (96 + 8 * rb + 4 * ch) if T == 0 else (160 + 16 * rb + 8 * ch)
    bg = []
    for f in range(qearly, 32): bg += qload(f)
    def bg_dma(tag, *args, **kw):
        for pre, op in dma_ops(*args, **kw):
            if pre: bg.append(pre); bg.append('s_nop 0')
            bg.append((op, tag))
    bgc = [0]
    def bgone():
        while bg:
            o = bg.pop(0)
            if isinstance(o, tuple):
                emit(*o); return
            a(o)
    def c(o, every=bg_pace):
        a(o); bgc[0] += 1
        if bgc[0] % every == 0: bgone()
    for _ in range(4): bgone()
    defer = o2.get('defer', 0)
    for idx in range(8 - defer, 8):
        base = UACC[idx >> 2] + 8 * (idx & 3); Z = 64
        for i in range(4): c(f'v_pk_mul_f32 {vr(Z+2*i,2)}, {vr(base+2*i,2)}, {vr(base+2*i,2)}')
        for i in range(4): c(f'v_pk_fma_f32 {vr(Z+2*i,2)}, {vr(Z+2*i,2)}, v[8:9], v[8:9] op_sel:[0,1,0] op_sel_hi:[1,1,0]')
        for i in range(4): c(f'v_pk_mul_f32 {vr(Z+2*i,2)}, {vr(Z+2*i,2)}, {vr(base+2*i,2)}')
        for i in range(8): c(f'v_exp_f32 v{Z+i}, v{Z+i}')
        for i in range(4): c(f'v_pk_add_f32 {vr(Z+2*i,2)}, {vr(Z+2*i,2)}, 1.0 op_sel_hi:[1,0]')
        for i in range(8): c(f'v_rcp_f32 v{Z+i}, v{Z+i}')
        for i in range(4): c(f'v_pk_mul_f32 {vr(base+2*i,2)}, {vr(base+2*i,2)}, {vr(Z+2*i,2)}')
    SC = 56
    a(f's_waitcnt vmcnt({vm.need("st")})')
    X = [STL[r][0] for r in range(3)]; Yr = [STL[r][1] for r in range(3)]
    for r in range(3):
        for i in range(4): c(f'v_add_f32 v{X[r]+i}, v{X[r]+i}, v{Yr[r]+i}')
    a(f'v_lshrrev_b32 v{V_T0}, 5, v0')
    a(f'v_bfe_u32 v{V_T1}, v0, 4, 1')
    for r in range(3):
        for i in (0, 2): a(f'v_permlane32_swap_b32 v{X[r]+i}, v{X[r]+i+1}')
    for r in range(3):
        for i in (0, 2): a(f'v_add_f32 v{X[r]+i}, v{X[r]+i}, v{X[r]+i+1}')
    a(f'v_lshl_add_u32 v{V_T0}, v{V_T1}, 1, v{V_T0}')
    a(f'v_and_b32 v{V_T1}, 7, v0')
    for r in range(3): a(f'v_permlane16_swap_b32 v{X[r]}, v{X[r]+2}')
    for r in range(3): a(f'v_add_f32 v{X[r]}, v{X[r]}, v{X[r]+2}')
    a(f'v_lshlrev_b32 v{V_T0}, 2, v{V_T0}')
    a(f'v_lshl_add_u32 v{V_T0}, v{V_T1}, 4, v{V_T0}')
    for r in range(3): a(f'v_mov_b32_dpp v{X[r]+1}, v{X[r]} row_ror:8 row_mask:0xf bank_mask:0xf')
    for r in range(3): c(f'v_mul_f32 v{X[r]}, {f2h(1/512)}, v{X[r]}')
    for r in range(3): c(f'v_mul_f32 v{X[r]+2}, v{X[r]}, v{X[r]}')
    for r in range(3): c(f'v_fma_f32 v{X[r]+1}, v{X[r]+1}, s{S_PFS}, -v{X[r]+2}')
    for r in range(3): c(f'v_max_f32 v{X[r]+1}, 0, v{X[r]+1}')
    for r in range(3): c(f'v_add_f32 v{X[r]+1}, {f2h(1e-5)}, v{X[r]+1}')
    for r in range(3): c(f'v_rsq_f32 v{X[r]+1}, v{X[r]+1}')
    for r in range(3):
        a(f's_lshl_b32 s{S_T0}, s{S_B10[r]}, 8')
        a(f's_add_u32 s{S_T0}, s{S_T0}, {TB}')
        a(f'v_add_u32 v{X[r]+3}, s{S_T0}, v{V_T0}')
    for r in range(3): c(f'v_mul_f32 v{X[r]+1}, s{S_VF[r]}, v{X[r]+1}')
    for r in range(3): c(f'v_mul_f32 v{X[r]}, -v{X[r]}, v{X[r]+1}')
    a('s_mov_b32 exec_lo, 0x00ff00ff')
    a('s_mov_b32 exec_hi, 0x00ff00ff')
    for r in range(3):
        a(f'ds_write_b32 v{X[r]+3}, v{X[r]+1}')
        a(f'ds_write_b32 v{X[r]+3}, v{X[r]} offset:128')
    a('s_mov_b64 exec, -1')
    A_NW, A_TR, A_HW, A_HT, A_BR, A_CW, A_CR = 5, 6, 8, 9, 11, 12, 15
    a(f'v_and_b32 v{V_T0}, 15, v0')
    a(f'v_lshrrev_b32 v{V_T1}, 4, v0')
    a(f'v_mul_u32_u24 v{A_HW}, {GS}, v{V_T0}')
    a(f'v_lshl_add_u32 v{A_HW}, v{V_T1}, 3, v{A_HW}')
    a(f's_lshl_b32 s{S_T0}, s{S_W}, 7')
    a(f's_add_u32 s{S_T0}, s{S_T0}, {GN}')
    a(f'v_add_u32 v{A_NW}, s{S_T0}, v{A_HW}')
    a(f's_lshr_b32 s{S_T2}, s{S_W}, 1')
    a(f's_mul_i32 s{S_T2}, s{S_T2}, {32*GS}')
    a(f's_mul_i32 s{S_T3}, s{S_PH}, {68*8}')
    a(f's_add_u32 s{S_T2}, s{S_T2}, s{S_T3}')
    a(f's_add_u32 s{S_T2}, s{S_T2}, {GN}')
    a(f'v_add_u32 v{A_HW}, s{S_T2}, v{A_HW}')
    a(f'v_lshlrev_b32 v{A_HT}, 4, v{V_T1}')
    a(f's_lshl_b32 s{S_T2}, s{S_W}, 9')
    a(f's_add_u32 s{S_T2}, s{S_T2}, {TB + 256}')
    a(f'v_add_u32 v{A_TR}, s{S_T2}, v{A_HT}')
    a(f's_mul_i32 s{S_T2}, s{S_PH}, {9*256 - 64}')
    a(f's_add_u32 s{S_T2}, s{S_T2}, {TB + 64}')
    a(f'v_add_u32 v{A_HT}, s{S_T2}, v{A_HT}')
    a(f'v_lshrrev_b32 v{A_CW}, 2, v0')
    a(f'v_and_b32 v{V_T0}, 3, v0')
    a(f'v_mul_u32_u24 v{A_BR}, {GS}, v{A_CW}')
    a(f'v_lshl_add_u32 v{A_BR}, v{V_T0}, 5, v{A_BR}')
    a(f'v_add_u32 v{A_BR}, s{S_T0}, v{A_BR}')
    a(f'v_and_b32 v{A_CW}, 3, v{A_CW}')
    a(f'v_lshl_add_u32 v{A_CW}, v{V_T1}, 3, v{A_CW}')
    a(f'v_mul_u32_u24 v{A_CW}, {CS}, v{A_CW}')
    a(f's_mul_i32 s{S_T2}, s{S_W}, {32*CS}')
    a(f's_add_u32 s{S_T2}, s{S_T2}, {CV}')
    a(f'v_add_u32 v{A_CW}, s{S_T2}, v{A_CW}')
    a(f'v_lshl_add_u32 v{A_CR}, v{V_T0}, 3, v{A_CW}')
    a(f'v_lshl_add_u32 v{A_CW}, v{V_T0}, 5, v{A_CW}')
    a('s_waitcnt lgkmcnt(0)')
    a('s_barrier')
    st(12)
    lq = LdsQ()
    a(f'v_add_u32 v{V_T0}, {CV}, v{V_L16}')
    twr = [f'ds_read_b128 {vr(AT[i//10][i%10],4)}, v{V_T0} offset:{i*1024}' for i in range(20)]
    units = [('h',)] + [(rb, hf) for rb in range(2) for hf in range(2)]
    def tread(n):
        t = 112 + 8 * (n % 2); u = units[n]
        ad, off = (A_HT, 0) if u[0] == 'h' else (A_TR, u[0] * 256 + u[1] * 64)
        a(f'ds_read_b128 {vr(t,4)}, v{ad} offset:{off}'); lq.issue(('t', n))
        a(f'ds_read_b128 {vr(t+4,4)}, v{ad} offset:{off + 128}'); lq.issue(('t', n))
    tread(0)
    for n, u in enumerate(units):
        if n + 1 < len(units): tread(n + 1)
        t = 112 + 8 * (n % 2)
        a(f's_waitcnt lgkmcnt({lq.need(("t", n))})')
        for _ in range(4): a(twr.pop(0)); lq.issue('tw')
        for T in range(1 if u[0] == 'h' else 2):
            src = lambda ch: (V_HD + 2 * ch) if u[0] == 'h' else gfrag(T, u[0], ch) + 2 * u[1]
            for ch in range(2):
                for i in range(2):
                    c(f'v_lshlrev_b32 v{SC+4*ch+2*i}, 16, v{src(ch)+i}')
                    c(f'v_and_b32 v{SC+4*ch+2*i+1}, 0xffff0000, v{src(ch)+i}')
            for ch in range(2):
                for i in range(2): c(f'v_pk_fma_f32 {vr(SC+4*ch+2*i,2)}, {vr(SC+4*ch+2*i,2)}, {vr(t+2*i,2)}, {vr(t+4+2*i,2)}')
            for ch in range(2):
                for i in range(2): c(f'v_cvt_pk_bf16_f32 v{src(ch)+i}, v{SC+4*ch+2*i}, v{SC+4*ch+2*i+1}')
                if u[0] == 'h': a(f'ds_write_b64 v{A_HW}, {vr(src(ch),2)} offset:{ch*16*GS}')
                else: a(f'ds_write_b64 v{A_NW}, {vr(src(ch),2)} offset:{(32*T + 16*ch)*GS + (4 + 8*u[0] + 4*u[1])*8}')
                lq.issue('w')
    a(f's_waitcnt vmcnt({vm.need(("st", "v"))}) lgkmcnt(0)')
    a('s_barrier')
    flagf(3)
    st(13)
    BR = [32, 96]
    def acc(gi, aa): return [[56, 60, 120, 124], [24, 28, 176, 184]][gi & 1][aa]
    def breads(gi): return [(f'ds_read_b64 {vr(BR[gi&1]+2*e,2)}, v{A_BR} offset:{gi*16*GS + e*8}', ('b', gi, e)) for e in range(12)]
    for o, t in breads(0): a(o); lq.issue(t)
    CF = 160; PKc = 176
    def mult(T):
        for fr in range(4):
            rb, rh = fr >> 1, fr & 1
            cc = CF + 4 * fr; u = UACC[T] + 16 * rb + 8 * rh; ub = 64 + 8 * (fr & 1)
            a(f's_waitcnt lgkmcnt({min(15, lq.need(("tr", T, fr)))})')
            for i in range(4):
                c(f'v_lshlrev_b32 v{ub+2*i}, 16, v{cc+i}')
                c(f'v_and_b32 v{ub+2*i+1}, 0xffff0000, v{cc+i}')
            for i in range(4): c(f'v_pk_mul_f32 {vr(ub+2*i,2)}, {vr(ub+2*i,2)}, {vr(u+2*i,2)}')
            for i in range(4): c(f'v_cvt_pk_bf16_f32 v{u+i}, v{ub+2*i}, v{ub+2*i+1}')
            ucst.append(f'buffer_store_dwordx4 {vr(u,4)}, v{3+rb}, {SRD}, s{58+rb} offen offset:{T*2048 + rh*1024} sc1')
    def finish(gi):
        T, ch = gi >> 1, gi & 1; ops = []
        for p in range(2):
            pk = acc(gi, 2 * p); b1 = acc(gi, 2 * p + 1)
            ops += [(f'v_cvt_pk_bf16_f32 v{pk}, v{pk}, v{pk+1}', None), (f'v_cvt_pk_bf16_f32 v{pk+1}, v{pk+2}, v{pk+3}', None),
                    (f'v_cvt_pk_bf16_f32 v{pk+2}, v{b1}, v{b1+1}', None), (f'v_cvt_pk_bf16_f32 v{pk+3}, v{b1+2}, v{b1+3}', None),
                    (f'ds_write_b128 v{A_CW}, {vr(pk,4)} offset:{ch*4*CS + 16*p}', 'cw')]
        if ch == 1:
            for fr in range(4):
                for jj in range(2): ops.append((f'ds_read_b64_tr_b16 {vr(CF+4*fr+2*jj,2)}, v{A_CR} offset:{jj*4*CS + fr*32}', ('tr', T, fr)))
        return ops
    for gi in range(4):
        T, ch = gi >> 1, gi & 1
        side = (breads(gi + 1) if gi < 3 else []) + (finish(gi - 1) if gi else [])
        if gi == 3: side = [('s_nop 0', None)] * 3 + side
        for dl in range(9):
            if dl % 3 == 0: a(f's_waitcnt lgkmcnt({min(15, lq.need(("b", gi, dl + 5)))})')
            ar_ = AT[T][5 * ch + dl // 2] + 2 * (dl & 1)
            for aa in range(4):
                d = vr(acc(gi, aa), 4)
                c(f'v_mfma_f32_4x4x4_16b_bf16 {d}, {vr(ar_,2)}, {vr(BR[gi&1]+2*(aa+dl),2)}, {d if dl else 0}', bg_pace // 2)
                if side:
                    o, t = side.pop(0); a(o)
                    if o.startswith('ds_'): lq.issue(t)
        assert not side
    mult(0)
    for o, t in finish(3):
        a(o)
        if o.startswith('ds_'): lq.issue(t)
    while bg: bgone()
    a(f's_sub_u32 s{S_T0}, s{S_VOFF}, {WS_VT}')
    a(f's_lshr_b32 s{S_T0}, s{S_T0}, 15')
    a(f's_sub_u32 s{S_T0}, s{S_T0}, s{S_B125}')
    a(f's_add_u32 s{S_T2}, s{S_T0}, s{S_CNT}')
    a(f's_add_u32 s{S_T2}, s{S_T2}, 1')
    a(f's_lshr_b32 s{S_T0}, s{S_T0}, 3')
    a(f's_lshr_b32 s{S_T2}, s{S_T2}, 3')
    a(f'v_lshrrev_b32 v{A_NW}, 3, v0')
    a(f'v_add_u32 v{A_NW}, s{S_T0}, v{A_NW}')
    a(f'v_min_u32 v{A_NW}, s{S_T2}, v{A_NW}')
    a(f'v_and_b32 v{V_T0}, 7, v0')
    a(f'v_lshl_add_u32 v{A_NW}, v{A_NW}, 3, v{V_T0}')
    a(f'v_lshlrev_b32 v{V_XO}, 7, v{A_NW}')
    a(f's_and_b32 s{S_T3}, s{S_GRP}, 32')
    a(f's_lshl_b32 s{S_T3}, s{S_T3}, 9')
    a(f's_add_u32 s{S_T3}, s{S_T3}, {ZF + 3 * ZK}')
    mult(1)
    emit(f'buffer_load_dword v{V_PFD}, v{V_XO}, {SRD}, s{S_T3} offen sc1', 'pollv')
    for op in ucst: emit(op, 'ucs')
    a(f'v_mov_b32 v127, v10')
    a(f's_add_u32 s{S_T1}, s{S_W}, s{S_SPLIT}')
    a(f's_and_b32 s{S_T1}, s{S_T1}, 3')
    a(f's_lshl_b32 s{S_T1}, s{S_T1}, 13')
    a(f'v_add_u32 v{V_DV0}, s{S_T1}, v{V_L16}')
    a(f'v_add_u32 v{V_DV1}, 4096, v{V_DV0}')
    a(f's_mov_b32 s{S_KDMA}, s{S_W8K}')
    a(f's_mov_b32 s{S_VRD}, {2*TILE}')
    st(1)
    if prefetch:
        a(f's_add_u32 s{S_PFOFF}, s{S_PFOFF}, s{S_W}')
        a(f's_and_b32 s{S_T1}, s{S_PFOFF}, 15')
        a(f's_lshl_b32 s{S_T1}, s{S_T1}, 11')
        a(f's_cmp_ge_u32 s{S_PFOFF}, 16')
        a(f's_cselect_b32 s{S_PFOFF}, {WS_VT - WS_XA - TILE}, 0')
        a(f's_add_u32 s{S_T1}, s{S_T1}, s{S_PFOFF}')
        a(f's_add_u32 s{S_T1}, s{S_T1}, {prefetch * TILE}')
        a(f'v_lshlrev_b32 v{V_PF}, 5, v0')
        a(f'v_add_u32 v{V_PF}, s{S_T1}, v{V_PF}')
    a(f'v_mov_b32 v{V_KA}, v{V_L16}')
    a(f'v_add_u32 v{V_VA}, s{S_VRD}, v{V_L16}')
    a(f'v_mov_b32 v{V_L0}, 0')
    a(f'v_mov_b32 v{V_L1}, 0')
    nround = -(-64 // NR)
    sizes = [64 // nround + (1 if i < 64 % nround else 0) for i in range(nround)]
    slotmap = [i for sz in sizes for i in range(sz)]
    assert LA + 1 <= min(sizes) and max(sizes) <= NR and V_RING + 4 * NR <= V_PF
    def slot(f): return V_RING + 4 * slotmap[f % 64]
    def rd(f):
        if f < 32 and chain: return f'ds_read_b128 {vr(slot(f),4)}, v{V_KA} offset:{((f & 15)*2 + (f >> 4))*1024}'
        if f < 32: return f'ds_read_b128 {vr(slot(f),4)}, v{V_KA} offset:{f*1024}'
        return f'ds_read_b128 {vr(slot(f),4)}, v{V_VA} offset:{(f-32)*1024}'
    def Sreg(kh, qh): return V_S + (kh * 2 + qh) * 4
    def mfmas(f, zero_c=False, first=False):
        order = (1, 0) if (snake and (f & 1)) else (0, 1)
        out = []
        if chain and f < 32:
            kh = f >> 4; s0 = f & 14; qh = (f & 1) ^ ((f >> 1) & 1); fb = f & ~1
            for k in range(2):
                s = s0 + k
                c = vr(Sreg(kh, qh), 4) if s else ('0' if zero_c else vr(V_NEGM + 4 * qh, 4))
                out.append(f'v_mfma_f32_16x16x32_bf16 {vr(Sreg(kh,qh),4)}, {vr(slot(fb+k),4)}, {ar((s*2+qh)*4,4)}, {c}')
            return out
        for qh in order:
            if f < 32:
                s, kh = f >> 1, f & 1
                c = vr(Sreg(kh, qh), 4) if s else ('0' if zero_c else vr(V_NEGM + 4 * qh, 4))
                out.append(f'v_mfma_f32_16x16x32_bf16 {vr(Sreg(kh,qh),4)}, {vr(slot(f),4)}, {ar((s*2+qh)*4,4)}, {c}')
            else:
                b = f - 32
                out.append(f'v_mfma_f32_16x16x32_bf16 {Oreg(b,qh)}, {vr(slot(f),4)}, {vr(V_P+4*qh,4)}, {0 if first else Oreg(b,qh)}')
        return out
    q = LdsQ()
    zero = []
    for f in range(LA):
        a(rd(f)); q.issue(f)
    a(f's_waitcnt vmcnt({vm.need(("Q", 31))})')
    v0ops = []
    for f in range(32):
        a(f's_waitcnt lgkmcnt({q.need(f | 1)})')
        for m in mfmas(f, zero_c=True):
            a(m)
        if f + LA < 32:
            a(rd(f + LA)); q.issue(f + LA)
        if f == vchk:
            chk('fv', V_PFD, V_XO, S_T3, 'pollv')
            a(f's_add_u32 s{S_VDMA}, s{S_W8K}, {2*TILE}')
            v0ops = dma_ops(V_DV0, V_DV1, S_VOFF, S_VDMA)
        if v0ops:
            pre, op = v0ops.pop(0)
            if pre: a(pre); a('s_nop 0')
            emit(op, 'V0')
    for pre, op in v0ops:
        if pre: a(pre); a('s_nop 0')
        emit(op, 'V0')
    a(f's_add_u32 s{S_VOFF}, s{S_VOFF}, {TILE}')
    a(f's_add_u32 s{S_VDMA}, s{S_VDMA}, {TILE}')
    a('s_nop 5')
    def max_all():
        ops = [f'v_max3_f32 v{V_MX}, v{V_S}, v{V_S+1}, v{V_S+2}']
        for i in range(6): ops.append(f'v_max3_f32 v{V_MX}, v{V_MX}, v{V_S+3+2*i}, v{V_S+4+2*i}')
        ops.append(f'v_max_f32 v{V_MX}, v{V_MX}, v{V_S+15}')
        return ops
    def rowmax2(d0, d1, tmp):
        for qh, dst in ((0, d0), (1, d1)):
            r0, r1 = Sreg(0, qh), Sreg(1, qh)
            a(f'v_max3_f32 v{dst}, v{r0}, v{r0+1}, v{r0+2}')
            a(f'v_max3_f32 v{dst}, v{dst}, v{r0+3}, v{r1}')
            a(f'v_max3_f32 v{dst}, v{dst}, v{r1+1}, v{r1+2}')
            a(f'v_max_f32 v{dst}, v{dst}, v{r1+3}')
        xreduce([d0, d1], 'v_max_f32', tmp)
    exp_ops = [f'v_exp_f32 v{V_E+i}, v{V_S+i}' for i in range(16)]
    sum_ops = [f'v_add_f32 v{V_L1 if (i >> 2) & 1 else V_L0}, v{V_L1 if (i >> 2) & 1 else V_L0}, v{V_E+i}' for i in range(16)]
    cvt_ops = []
    for qh in range(2):
        for kh in range(2):
            e = V_E + (kh * 2 + qh) * 4
            for i in range(2):
                cvt_ops.append(f'v_cvt_pk_bf16_f32 v{V_P+4*qh+2*kh+i}, v{e+2*i}, v{e+2*i+1}')
    rowmax2(V_F0, V_F1, 120)
    for qh, dst in ((0, V_F0), (1, V_F1)):
        for kh in range(2):
            for i in range(4): a(f'v_sub_f32 v{Sreg(kh,qh)+i}, v{Sreg(kh,qh)+i}, v{dst}')
        for i in range(4): a(f'v_sub_f32 v{V_NEGM+4*qh+i}, 0, v{dst}')
    for o in exp_ops: a(o)
    for o in zero: a(o)
    a(f'v_xor_b32 v{V_KA}, 0x8000, v{V_KA}')
    a(f's_lshl2_add_u32 s{S_FLO}, s{S_GRP}, s{S_W}')
    a(f's_lshl_b32 s{S_FLO}, s{S_FLO}, 9')
    a(f's_add_u32 s{S_FLO}, s{S_FLO}, {ZF_PART}')
    a(f'v_and_b32 v{V_FL}, 3, v0')
    a(f'v_lshlrev_b32 v{V_FL}, 7, v{V_FL}')
    if prew2:
        a(f's_lshl_b32 s{S_T2}, s{S_SPLIT}, 7')
        a(f's_add_u32 s{S_T2}, s{S_T2}, s{S_FLO}')
        a(f'v_lshlrev_b32 v{V_T0}, 2, v0')
        a(f'v_mov_b32 v{V_T1}, 0')
        a('s_mov_b64 exec, 0xffffffff')
        emit(f'buffer_store_dword v{V_T1}, v{V_T0}, {SRD}, s{S_T2} offen sc1')
        a('s_mov_b64 exec, -1')
    a(f's_lshl_b32 s{S_T2}, s72, 7')
    a(f's_add_u32 s{S_T2}, s{S_T2}, {ZF + 4 * ZK}')
    a(f'v_mov_b32 v126, s{S_TAG}')
    a(f's_waitcnt vmcnt({min(63, vm.need("K1"))})')
    a('s_barrier')
    st(2); st(8, True)
    if stamp: a('s_waitcnt lgkmcnt(0)')
    q = LdsQ()
    for f in range(LA):
        a(rd(f)); q.issue(f)

    L_loop = f'{name}_loop'
    rare = []
    border = list(range(8, 32)) + list(range(8))
    YB = 192
    stream = [('pv', b) for b in border] + [('yc', T, f) for T in range(4) for f in range(32)]
    NS = len(stream)
    WA = [V_VA, V_DV0, V_DV1, V_PF]
    def srd_(i):
        it = stream[i]
        if it[0] == 'pv': return f'ds_read_b128 {vr(slot(i),4)}, v{V_KA} offset:{it[1]*1024}'
        if chain and it[1]: return f'ds_read_b128 {vr(slot(i),4)}, v{WA[it[1]]} offset:{((it[2] & 15)*2 + (it[2] >> 4))*1024}'
        return f'ds_read_b128 {vr(slot(i),4)}, v{WA[it[1]]} offset:{it[2]*1024}'
    def ucload(f):
        ops = []
        if f % 4 == 0 and f: ops.append(f's_add_u32 s{S_UCO}, s{S_UCO}, 4096')
        ops.append((f'buffer_load_dwordx4 {ar(4*f,4)}, v{V_L16}, {SRD}, s{S_UCO} offen offset:{(f%4)*1024} sc1', ('uc', f)))
        return ops
    stubs = []
    class Dual:
        def __init__(self, op, tag, fast): self.op, self.tag, self.fast = op, tag, fast
    def em(o):
        if isinstance(o, Dual) and force_slow:
            emit(f'{o.op} sc1', o.tag); return
        if isinstance(o, Dual):
            lab = a.label(name + '_ds')
            a(f's_cbranch_vccnz {lab}')
            emit(f'{o.op} {o.fast}', o.tag)
            a(f'{lab}b:')
            stubs.append((lab, o.op))
            return
        if callable(o): o = o()
        if noyc and isinstance(o, tuple) and ((o[1] == 'x' and 'x' in noyc) or (isinstance(o[1], tuple) and o[1][0] in ('uc', 'wc') and o[1][0] in noyc)):
            vm.last[o[1]] = vm.last.get('dL', 0); return
        if isinstance(o, tuple): emit(*o)
        else: emit(o)
    nuc = [0]
    def body(last, first=False):
        tag = 'L' if last else ('F' if first else 'M')
        L_r1, L_r1b, L_r2, L_r2b = [f'{name}_{x}{tag}' for x in ('r1', 'r1b', 'r2', 'r2b')]
        rare.append((L_r1, L_r1b, L_r2, L_r2b))
        fill = [[] for _ in range(128)]
        cap = [CAP - 1 if p % 2 == 0 else CAP for p in range(128)]
        for p in range(128):
            if p % 2 == 1 and ((p + 1) // 2) % wait_every == 0: cap[p] -= 1
        cap[127] -= 3
        if cmp_early and not (last or first): cap[126] -= 1
        def put(pos, ops, cost):
            if not isinstance(ops, list): ops = [ops]
            while cap[pos] < cost: pos += 1
            cap[pos] -= cost
            fill[pos] += ops
            return pos
        if not last: bw = f's_waitcnt vmcnt({1 if prefetch else 0})'
        else: bw = lambda: f's_waitcnt vmcnt({vm.need("dL")})'
        pb = put(2 * bar_pos + 1, [bw] + ([] if 'nobar' in dbg and not last else ['s_barrier']), 2)
        assert pb < 2 * (64 - LA)
        if first:
            pf_ = put(2 * (32 - LA) - 5, [lambda: f's_waitcnt vmcnt({vm.need("V0")})', 's_barrier',
                                          f'buffer_store_dword v126, v127, {SRD}, s{S_T2} offen sc1'], 2)
            assert pf_ < 2 * (32 - LA)
        dk, dv = dma_ops(V_DK0, V_DK1, S_WCO if last else S_KOFF, S_KDMA), dma_ops(V_DV0, V_DV1, S_VOFF, S_VDMA)
        dm = dv + dk if last else dk + dv
        p = 0
        if last and not tailpf:
            p = put(p, (f'buffer_load_dword v{V_PFD}, v{V_FL}, {SRD}, s{S_FLO} offen sc1', 'poll'), dma_cost) + 1
            for c in range(npf, 3 if pfill else 0):
                p = put(p, f'buffer_load_dword v{V_T0}, v{V_PF}, {SRD}, s{S_PFS} offen', dma_cost) + 1
                p = put(p, f's_add_u32 s{S_PFS}, s{S_PFS}, 8192', 1) + 1
            if pfill: p = put(p, f'buffer_load_dword v{V_T0}, v{V_L16}, {SRD}, s{S_PFS} offen', dma_cost) + 1
        for pre, op in dm:
            if pre: p = put(p, pre, 1) + 1
            p = put(p, (op, 'dL'), dma_cost) + dma_gap
        if prefetch and not last:
            p = put(p, f'buffer_load_dword v{V_PFD}, v{V_PF}, s[96:99], s{S_PFS} offen {pf_flags}', dma_cost) + 1
        pdma = p
        assert pdma <= pb
        if last and not tailpf:
            p = put(56, [lambda: f's_waitcnt vmcnt({vm.need("poll")})', f'v_cmp_ne_u32 s[{S_T3}:{S_T3+1}], s{S_TAG}, v{V_PFD}'], 2) + 2
            p = put(p, [f's_cmp_eq_u64 s[{S_T3}:{S_T3+1}], 0', f's_cbranch_scc0 {name}_cfslow', f'{name}_cfok:'], 2) + 1
            p = put(p, f'v_cmp_ne_u32 s[{S_SLOW}:{S_SLOW+1}], s{S_XCC}, v{V_PFD}', 1) + 1
            assert p <= pdma + 4
        p = 68
        for o in max_all(): p = put(p, o, 1)
        p = put(p, f'v_cmp_lt_f32 vcc, {hex(THR)}, v{V_MX}', 1) + 1
        p = put(p + brgap, ([] if 'nobr1' in dbg else [f's_cbranch_vccnz {L_r1}']) + [f'{L_r1b}:'], 1) + 1
        for i, o in enumerate(exp_ops):
            if 'noexp' not in dbg: p = put(p, o, 2)
        p = 0
        for o in cvt_ops: p = put(p, o, 1)
        for o in sum_ops: p = put(p, o, 1)
        assert p < 60
        upd = [f's_add_u32 s{S_KOFF}, s{S_KOFF}, {TILE}', f's_add_u32 s{S_PFS}, s{S_PFS}, s{S_PFST}',
               f's_add_u32 s{S_VOFF}, s{S_VOFF}, {TILE}',
               f's_xor_b32 s{S_KDMA}, s{S_KDMA}, {TILE}',
               f's_add_u32 s{S_VDMA}, s{S_VDMA}, {TILE}',
               f's_cmp_ge_u32 s{S_VDMA}, {5*TILE}', f's_cselect_b32 s{S_T1}, {3*TILE}, 0',
               f's_sub_u32 s{S_VDMA}, s{S_VDMA}, s{S_T1}',
               f's_add_u32 s{S_VRD}, s{S_VRD}, {TILE}',
               f's_cmp_ge_u32 s{S_VRD}, {5*TILE}', f's_cselect_b32 s{S_VRD}, {2*TILE}, s{S_VRD}',
               f's_sub_u32 s{S_CNT}, s{S_CNT}, 1']
        if not last:
            p = pdma
            for o in upd: p = put(p, o, 1)
            put(2 * (32 - LA) + 1, f'v_xor_b32 v{V_KA}, 0x8000, v{V_KA}', 1)
            put(max(p + 1, 2 * (64 - LA) + 1), f'v_add_u32 v{V_VA}, s{S_VRD}, v{V_L16}', 1)
        else:
            p = 2 * (32 - LA) + 1
            for o in [f's_sub_u32 s{S_KOFF}, s{S_VDMA}, s{S_W8K}', f'v_add_u32 v{V_KA}, s{S_KOFF}, v{V_L16}',
                      f's_sub_u32 s{S_WB0}, s{S_KDMA}, s{S_W8K}', f's_xor_b32 s{S_WB1}, s{S_WB0}, {TILE}', f's_mov_b32 s{S_WB3}, s{S_VRD}',
                      f's_add_u32 s{S_WB2}, s{S_WB3}, s{S_KOFF}', f's_sub_u32 s{S_WB2}, {9*TILE}, s{S_WB2}']:
                p = put(p, o, 1) + 1
            p = max(pdma, 66)
            while p < 127 and nuc[0] < 32:
                fill[p] += ucload(nuc[0]); nuc[0] += 1
                p += uc_pace
        for f in range(64):
            if f % wait_every == 0:
                a(f's_waitcnt lgkmcnt({q.need(min(f + wait_every - 1, 63))})')
            mm = mfmas(f, first=first)
            a(mm[0])
            nf = f + LA
            if nf < 64 or not last:
                a(rd(nf % 64)); q.issue(nf % 64)
            else:
                a(srd_(nf - 64)); q.issue(('s', nf - 64))
            for o in fill[2 * f]: em(o)
            a(mm[1])
            for o in fill[2 * f + 1]: em(o)
        if last or first or not nobr2:
            a(f's_cbranch_vccnz {L_r2}')
            a(f'{L_r2b}:')
    a(f's_lshl_b32 s{S_WCO}, s{S_SPLIT}, 17')
    a(f's_add_u32 s{S_WCO}, s{S_WCO}, {WS_WC}')
    a(f's_lshl_b32 s{S_UCO}, s{S_QB}, 15')
    a(f's_add_u32 s{S_UCO}, s{S_UCO}, {WS_UC}')
    a(f's_mov_b32 s{S_PFS}, s{S_KOFF}')
    a(f's_mov_b32 s{S_PFST}, {TILE}')
    a(f's_mov_b32 s{S_PH}, 0')
    NPH = 4 if tailpf else 0
    a(f's_sub_u32 s{S_CNT}, s{S_CNT}, {NPH}')
    make_srd(a, 96, S_WS, 0, WS_SIZE)
    a(f's_lshl_b32 s{S_PB}, s{S_GRP}, 2')
    a(f's_add_u32 s{S_PB}, s{S_PB}, s{S_SPLIT}')
    a(f's_lshl_b32 s{S_PB}, s{S_PB}, 2')
    a(f's_add_u32 s{S_PB}, s{S_PB}, s{S_W}')
    a(f's_lshl_b32 s{S_PB}, s{S_PB}, 15')
    a(f's_add_u32 s{S_PB}, s{S_PB}, {WS_PART}')
    S_LIM = 55
    a(f's_mov_b32 s{S_LIM}, 0')
    body(False, first=True)
    a('.p2align 6')
    a(f'{L_loop}:')
    body(False)
    if nobr2:
        a(f's_cmp_gt_u32 s{S_CNT}, s{S_LIM}')
        a(f's_cbranch_scc1 {L_loop}')
        a(f's_cbranch_vccnz {name}_r2M')
        a(f'{name}_r2bM:')
        a(f's_mov_b32 s{S_LIM}, 0')
    a(f's_cmp_lg_u32 s{S_CNT}, 0')
    a(f's_cbranch_scc1 {L_loop}')
    if tailpf == 1:
        a(f's_add_u32 s{S_PH}, s{S_PH}, 1')
        a(f's_mov_b32 s{S_CNT}, 1')
        a(f's_cmp_eq_u32 s{S_PH}, 5\n s_cbranch_scc1 {name}_ph5')
        a(f's_cmp_eq_u32 s{S_PH}, 4\n s_cbranch_scc1 {name}_ph4')
        a(f's_cmp_eq_u32 s{S_PH}, 3\n s_cbranch_scc1 {name}_ph3')
        a(f's_cmp_eq_u32 s{S_PH}, 2\n s_cbranch_scc1 {name}_ph2')
        a(f's_mov_b32 s96, s{S_X}\n s_mov_b32 s97, s{S_X+1}\n s_mov_b32 s98, 8192000')
        a(f'v_lshrrev_b32 v{V_PF}, 1, v0')
        a(f'v_lshlrev_b32 v{V_PF}, 10, v{V_PF}')
        a(f'v_and_b32 v{V_T0}, 1, v0')
        a(f'v_lshl_add_u32 v{V_PF}, v{V_T0}, 7, v{V_PF}')
        a(f's_lshl_b32 s{S_PFS}, s{S_QB}, 15')
        a(f's_lshl_b32 s{S_T1}, s{S_SPLIT}, 8')
        a(f's_add_u32 s{S_PFS}, s{S_PFS}, s{S_T1}')
        a(f's_branch {L_loop}')
        a(f'{name}_ph2:')
        a(f's_mov_b32 s96, s{S_WS}\n s_mov_b32 s97, s{S_WS+1}\n s_mov_b32 s98, {WS_SIZE}')
        a(f'v_and_b32 v{V_XO}, 7, v0')
        a(f'v_lshlrev_b32 v{V_XO}, 7, v{V_XO}')
        a(f'v_mov_b32 v{V_PF}, v{V_XO}')
        a(f's_add_u32 s{S_SLOW}, s{S_SLOW}, {2 * ZK}')
        a(f's_mov_b32 s{S_PFS}, s{S_SLOW}')
        a(f's_branch {L_loop}')
        a(f'{name}_ph3:')
        a('s_waitcnt vmcnt(0)')
        a(f'v_cmp_ne_u32 s[{S_T3}:{S_T3+1}], s{S_TAG}, v{V_PFD}')
        a(f'v_lshlrev_b32 v{V_PF}, 7, v0')
        a(f's_lshl_b32 s{S_PFS}, s{S_SPLIT}, 13')
        a(f's_add_u32 s{S_PFS}, s{S_PFS}, s{S_UCO}')
        a('s_nop 1')
        a(f's_cmp_eq_u64 s[{S_T3}:{S_T3+1}], 0')
        a(f's_cbranch_scc0 {name}_cfslow')
        a(f'{name}_cfok:')
        a(f's_branch {L_loop}')
        a(f'{name}_ph4:')
        a(f'v_lshlrev_b32 v{V_PF}, 6, v0')
        a(f's_and_b32 s{S_PFS}, s{S_TILE}, 7')
        a(f's_lshl_b32 s{S_PFS}, s{S_PFS}, 2')
        a(f's_add_u32 s{S_PFS}, s{S_PFS}, s{S_W}')
        a(f's_lshl_b32 s{S_PFS}, s{S_PFS}, 12')
        a(f's_add_u32 s{S_PFS}, s{S_PFS}, s{S_WCO}')
        a(f's_branch {L_loop}')
        a(f'{name}_ph5:')
    if tailpf == 2:
        a(f's_add_u32 s{S_PH}, s{S_PH}, 1')
        a(f's_mov_b32 s{S_CNT}, 1')
        a(f's_cmp_eq_u32 s{S_PH}, 5\n s_cbranch_scc1 {name}_ph5')
        a(f's_cmp_eq_u32 s{S_PH}, 4\n s_cbranch_scc1 {name}_ph4')
        a(f's_cmp_eq_u32 s{S_PH}, 3\n s_cbranch_scc1 {name}_ph3')
        a(f's_cmp_eq_u32 s{S_PH}, 2\n s_cbranch_scc1 {name}_ph2')
        a(f'v_and_b32 v{V_XO}, 7, v0')
        a(f'v_lshlrev_b32 v{V_XO}, 7, v{V_XO}')
        a(f's_add_u32 s{S_SLOW}, s{S_SLOW}, {2 * ZK}')
        a(f'buffer_load_dword v124, v{V_XO}, {SRD}, s{S_SLOW} offen sc1')
        if tlb:
            a(f'v_lshlrev_b32 v125, 10, v{V_FL}')
            a(f's_lshl_b32 s{S_T1}, s{S_GRP}, 19')
            a(f's_add_u32 s{S_T1}, s{S_T1}, {WS_PART + 28672}')
            a(f'buffer_load_dword v126, v125, {SRD}, s{S_T1} offen sc1')
            a(f's_lshl_b32 s{S_T1}, s{S_QB}, 15')
            a(f'v_mov_b32 v125, 0')
            a(f'buffer_load_dword v126, v125, {SRO}, s{S_T1} offen sc1')
        a(f's_branch {L_loop}')
        a(f'{name}_ph2:')
        a(f'v_mov_b32 v{V_PFD}, v124' if False else 's_nop 0')
        a(f'v_cmp_ne_u32 s[{S_T3}:{S_T3+1}], s{S_TAG}, v124')
        a(f'v_lshrrev_b32 v125, 1, v0')
        a(f'v_lshlrev_b32 v125, 10, v125')
        a(f'v_and_b32 v{V_T0}, 1, v0')
        a(f'v_lshl_add_u32 v125, v{V_T0}, 7, v125')
        a(f's_lshl_b32 s{S_T2}, s{S_QB}, 15')
        a(f's_lshl_b32 s{S_T1}, s{S_SPLIT}, 8')
        a(f's_add_u32 s{S_T1}, s{S_T1}, s{S_T2}')
        a(f'buffer_load_dword v126, v125, {SRX}, s{S_T1} offen')
        a(f's_cmp_eq_u64 s[{S_T3}:{S_T3+1}], 0')
        a(f's_cbranch_scc0 {name}_cfslow')
        a(f'{name}_cfok:')
        a(f's_branch {L_loop}')
        a(f'{name}_ph3:')
        a(f'v_lshlrev_b32 v125, 7, v0')
        a(f's_lshl_b32 s{S_T1}, s{S_SPLIT}, 13')
        a(f's_add_u32 s{S_T1}, s{S_T1}, s{S_UCO}')
        a(f'buffer_load_dword v126, v125, {SRD}, s{S_T1} offen sc1')
        a(f's_branch {L_loop}')
        a(f'{name}_ph4:')
        a(f'v_lshlrev_b32 v125, 6, v0')
        a(f's_and_b32 s{S_T1}, s{S_TILE}, 7')
        a(f's_lshl2_add_u32 s{S_T1}, s{S_T1}, s{S_W}')
        a(f's_lshl_b32 s{S_T1}, s{S_T1}, 12')
        a(f's_add_u32 s{S_T1}, s{S_T1}, s{S_WCO}')
        a(f'buffer_load_dword v126, v125, {SRD}, s{S_T1} offen sc1')
        a(f'v_bfrev_b32 v{V_PF}, 1')
        a(f's_branch {L_loop}')
        a(f'{name}_ph5:')
    st(3); st(9, True)
    if stamp: a('s_waitcnt lgkmcnt(0)')
    body(True)
    st(15)
    if stamp: a('s_waitcnt lgkmcnt(0)')
    def smf(i):
        it = stream[i]; out = []
        if chain and it[0] == 'yc' and it[1]:
            T, f = it[1], it[2]; ch = f >> 4; qh = (f & 1) ^ ((f >> 1) & 1)
            d = vr(YB + 8 * (2 * T + ch) + 4 * qh, 4)
            for k in range(2):
                s = (f & 14) + k
                out.append(f'v_mfma_f32_16x16x32_bf16 {d}, {vr(slot((i & ~1) + k),4)}, {ar((s*2+qh)*4,4)}, {d if s or (xinit if tail != 5 else T == 3) else 0}')
            return out
        for qh in ((1, 0) if (snake and (i & 1)) else (0, 1)):
            if it[0] == 'pv':
                out.append(f'v_mfma_f32_16x16x32_bf16 {Oreg(it[1],qh)}, {vr(slot(i),4)}, {vr(V_P+4*qh,4)}, {Oreg(it[1],qh)}')
            else:
                T, f = it[1], it[2]; s, ch = f >> 1, f & 1
                d = vr(YB + 8 * (2 * T + ch) + 4 * qh, 4)
                out.append(f'v_mfma_f32_16x16x32_bf16 {d}, {vr(slot(i),4)}, {ar((s*2+qh)*4,4)}, {d if s or (xinit and tail != 5) else 0}')
        return out
    a(f's_mov_b64 vcc, s[{S_SLOW}:{S_SLOW+1}]' if not force_slow else 's_mov_b64 vcc, -1')
    for o in cvt_ops: a(o)
    a(f's_lshl_b32 s{S_T0}, s{S_GRP}, 2')
    a(f'v_add_u32 v{WA[0]}, s{S_WB0}, v{V_L16}')
    pend = [(0, o, 1) for o in sum_ops]
    for i, sb in enumerate((S_WB1, S_WB2, S_WB3)): pend.append((0, f'v_add_u32 v{WA[i+1]}, s{sb}, v{V_L16}', 1))
    rot = 0
    for qd in range(1, 4):
        hdr = [f's_add_u32 s{S_PO}, s{S_PB}, {(qd-1)*8192}']
        for gm in range(4):
            for qh in range(2):
                b0 = 8 * qd + 2 * gm
                ready = 2 * (border.index(b0 + 1) + 1) + 6
                idx = gm * 2 + qh
                if idx == 0:
                    for h in hdr: pend.append((0, h, 1))
                if idx == 4: pend.append((ready, f's_add_u32 s{S_PO}, s{S_PO}, 4096', 1))
                tb = V_S + 8 * (rot % 2); pk = V_E + 4 * (rot % 4); rot += 1
                srcs = []
                for b in range(2):
                    for r in range(4):
                        o = Obase(b0 + b, qh) + r
                        if qd == 1: srcs.append(o)
                        else:
                            pend.append((ready, f'v_accvgpr_read_b32 v{tb+4*b+r}, a{o}', 1)); srcs.append(tb + 4 * b + r)
                for r in range(4): pend.append((ready, f'v_cvt_pk_bf16_f32 v{pk+r}, v{srcs[2*r]}, v{srcs[2*r+1]}', 1))
                pend.append((ready, Dual(f'buffer_store_dwordx4 {vr(pk,4)}, v{V_L16}, {SRD}, s{S_PO} offen offset:{(idx%4)*1024}', 'part', fast_st), 2))
    def stats_block():
        xreduce([V_L0, V_L1], 'v_add_f32', 124)
        a(f'v_mov_b32 v120, v{V_L0}')
        a(f'v_sub_f32 v121, 0, v{V_NEGM}')
        a(f'v_mov_b32 v122, v{V_L1}')
        a(f'v_sub_f32 v123, 0, v{V_NEGM+4}')
        a(f's_add_u32 s{S_T1}, s{S_PB}, {3*8192}')
        em(Dual(f'buffer_store_dwordx4 v[120:123], v{V_L16}, {SRD}, s{S_T1} offen', 'part', fast_st))
    XV = V_P
    def x_setup():
        a(f'v_lshrrev_b32 v{V_T0}, 4, v0')
        a(f'v_and_b32 v{V_T1}, 15, v0')
        a(f'v_xor_b32 v{V_T2}, v{V_T0}, v{V_T1}')
        a(f'v_lshlrev_b32 v{V_T2}, 4, v{V_T2}')
        a(f'v_lshl_add_u32 v{XV}, v{V_T0}, 10, v{V_T2}')
        for i in range(1, 4): a(f'v_xor_b32 v{XV+i}, {i*64}, v{XV}')
        a(f's_add_u32 s{S_KOFF}, s{S_KOFF}, s{S_W8K}')
        a(f'v_lshl_add_u32 v{XV+4}, v{V_T1}, 8, v{V_T2}')
        a(f'v_add_u32 v{XV+4}, s{S_KOFF}, v{XV+4}')
        for i in range(1, 4): a(f'v_xor_b32 v{XV+4+i}, {i*64}, v{XV+4}')
        a(f'v_add_u32 v{V_XO}, s{S_KOFF}, v{V_L16}')
        a(f's_lshl_b32 s{S_T4}, s{S_QB}, 15')
        a(f's_lshl_b32 s{S_T1}, s{S_SPLIT}, 8')
        a(f's_add_u32 s{S_T4}, s{S_T4}, s{S_T1}')
    def wc_dma(T):
        out = []
        first = [f's_add_u32 s{S_WCO}, s{S_WCO}, {TILE}', f's_add_u32 s{S_T2}, s{(S_WB0, S_WB1, S_WB2, S_WB3)[T]}, s{S_W8K}']
        for pre, op in dma_ops(V_DK0, V_DK1, S_WCO, S_T2):
            g = first; first = []
            if pre: g += [pre, 's_nop 0']
            out.append(g + [(op, ('wc', T))])
        return out
    if tail == 5:
        xinit = False
        def xdma():
            return [[f's_add_u32 m0, s{S_KOFF}, {k*1024}', f's_add_u32 s{S_T1}, s{S_T4}, {k*4096}',
                     (f'buffer_load_dwordx4 v{XV+(k&3)}, {SRX}, s{S_T1} offen lds', 'x')] for k in range(8)]
        dq = [ucload(f) for f in range(nuc[0], 32)] + wc_dma(1)
        n_q1 = max(i for i, p in enumerate(pend) if isinstance(p[1], str) and 'v_cvt_pk' in p[1] and int(p[1].split('v')[-1]) >= 192) + 2
        done = [0]
        def pop():
            _, op, c = pend.pop(0); em(op); done[0] += 1
            if isinstance(op, str) and op.startswith('ds_'): q.issue('xr')
            return c
        def run(i0, i1, every, bud, until_empty=False):
            for i in range(i0, i1):
                if until_empty and not pend and not dq and i % 2 == 0: return i
                it = stream[i]; w = []
                if it[0] == 'yc' and it[1] == 0 and it[2] % 2 == 0: w.append(f'vmcnt({min(63, vm.need(("uc", it[2] | 1)))})')
                if i % 2 == 0: w.append(f'lgkmcnt({min(15, q.need(("s", min(i + 1, NS - 1))))})')
                if w: a('s_waitcnt ' + ' '.join(w))
                mm = smf(i)
                for h in range(2):
                    pos = 2 * i + h
                    a(mm[h])
                    budget = bud
                    if h == 0 and i + LA < NS:
                        nx = stream[i + LA]
                        if nx[0] == 'yc' and nx[2] == 0 and nx[1] >= 1:
                            a(f's_waitcnt vmcnt({min(63, vm.need(("wc", nx[1])))})')
                            a('s_barrier')
                        a(srd_(i + LA)); q.issue(('s', i + LA)); budget -= 1
                    if dq and pos % every == 1:
                        for o in dq.pop(0): em(o)
                        budget -= 2
                    while pend and pend[0][0] <= pos and budget > 0: budget -= pop()
            return i1
        run(0, 32, t5[0], t5[1])
        while done[0] < n_q1: pop()
        while dq:
            for o in dq.pop(0): em(o)
        stats_block()
        a('s_barrier')
        x_setup()
        st(4)
        dq += wc_dma(2) + xdma() + wc_dma(3)
        poll = f'buffer_load_dword v{V_PFD}, v{V_FL}, {SRD}, s{S_FLO} offen offset:4 sc1'
        ie = run(32, NS, t5[2], t5[3], until_empty=True)
        print('tail5: stores and loads issued by item', ie)
        emit(poll, 'poll')
        def ycol(idx, i): return YB + 8 * (2 * (idx >> 1) + (i >> 1)) + 4 * (idx & 1) + 2 * (i & 1)
        i2 = ie + t5[4]
        run(ie, i2, 1000, 2)
        a(f's_lshl_b32 s{S_T3}, s{S_SPLIT}, 7')
        a(f's_add_u32 s{S_T3}, s{S_T3}, s{S_FLO}')
        a(f'v_lshlrev_b32 v{V_T0}, 2, v0\n v_mov_b32 v{V_T1}, s{S_TAG}')
        a(f's_lshl_b32 s{S_CNT}, 1, s{S_SPLIT}')
        a('s_mov_b64 exec, 0xffffffff')
        a(f's_waitcnt vmcnt({min(vm.need("part"), vm.need("x"))})')
        em(Dual(f'buffer_store_dword v{V_T1}, v{V_T0}, {SRD}, s{S_T3} offen', None, ''))
        a('s_mov_b64 exec, -1')
        st(5)
        assert i2 + LA < 128
        for idx in (6, 7, 0, 1, 2, 3, 4, 5):
            a(f'ds_read_b128 {vr(V_S+4*idx,4)}, v{XV+4+(idx>>1)} offset:{(idx&1)*4096}'); q.issue('xr')
        STR = [56, 60, 124]
        def getmask(w):
            a(f's_waitcnt vmcnt({w})')
            a(f'v_cmp_eq_u32 vcc, s{S_TAG}, v{V_PFD}')
            a('s_nop 3')
            a(f's_and_b32 s{S_PFS}, vcc_lo, 15')
            a(f's_andn2_b32 s{S_PFS}, s{S_PFS}, s{S_CNT}')
            a(f's_or_b32 s{S_CNT}, s{S_CNT}, s{S_PFS}')
        def slot_hdr(k):
            return [f's_sub_u32 s{S_T1}, s{S_SPLIT}, {k+1}', f's_and_b32 s{S_T1}, s{S_T1}, 3', f's_bitcmp1_b32 s{S_PFS}, s{S_T1}']
        def slot_adr():
            return [f's_add_u32 s{S_T1}, s{S_T1}, s{S_T0}', f's_lshl_b32 s{S_T1}, s{S_T1}, 2', f's_add_u32 s{S_T1}, s{S_T1}, s{S_W}',
                    f's_lshl_b32 s{S_PO}, s{S_T1}, 15', f's_add_u32 s{S_T1}, s{S_PO}, {WS_PART + 3*8192}']
        def slot_loads(k, vo):
            out = [[f'buffer_load_dwordx4 {vr(STR[k],4)}, v{vo}, {SRD}, s{S_T1} offen sc1']]
            for h4 in range(2):
                for i in range(4):
                    pre = [f's_add_u32 s{S_T1}, s{S_PO}, {WS_PART + k*8192 + h4*4096}'] if i == 0 else []
                    out.append(pre + [f'buffer_load_dwordx4 {ar(128+(k*8+h4*4+i)*4,4)}, v{vo}, {SRD}, s{S_T1} offen offset:{i*1024} sc1'])
            return out
        def check():
            getmask(0)
            for k in range(3):
                lab = a.label(name + '_ck')
                for o in slot_hdr(k): a(o)
                a(f's_cbranch_scc0 {lab}')
                for o in slot_adr(): a(o)
                for g in slot_loads(k, V_L16):
                    for o in g: a(o)
                a(f'{lab}:')
        getmask(vm.need('poll'))
        for k in range(3):
            first = slot_hdr(k) + [f's_cselect_b32 s{S_PH}, 0, 0x80000000', f'v_or_b32 v{V_T2}, s{S_PH}, v{V_L16}'] + slot_adr()
            for g in slot_loads(k, V_T2):
                dq.append(first + g); first = []
        dq.append([poll])
        a('s_waitcnt lgkmcnt(0)')
        for idx in (6, 7):
            for i in range(4):
                a(f'v_lshlrev_b32 v{ycol(idx,i)}, 16, v{V_S+4*idx+i}')
                a(f'v_and_b32 v{ycol(idx,i)+1}, 0xffff0000, v{V_S+4*idx+i}')
        for idx in range(6):
            ready = 2 * (64 + 32 * (idx >> 1)) + 8
            for i in range(4):
                t = 40 + 2 * i
                pend.append((ready, f'v_lshlrev_b32 v{t}, 16, v{V_S+4*idx+i}', 1))
                pend.append((ready, f'v_and_b32 v{t+1}, 0xffff0000, v{V_S+4*idx+i}', 1))
            for i in range(4):
                for k in range(2): pend.append((ready, f'v_add_f32 v{ycol(idx,i)+k}, v{ycol(idx,i)+k}, v{40+2*i+k}', 1))
        st(20)
        run(i2, NS, t5[5], 2)
        while dq:
            for o in dq.pop(0): em(o)
        while pend: pop()
        st(21)
    else:
        dq = [ucload(f) for f in range(nuc[0], 32)]
        def xdma():
            return [[f's_add_u32 m0, s{S_KOFF}, {k*1024}', f's_add_u32 s{S_T1}, s{S_T4}, {k*4096}',
                     (f'buffer_load_dwordx4 v{XV+(k&3)}, {SRX}, s{S_T1} offen lds', 'x')] for k in range(8)]
        def pop():
            _, op, c = pend.pop(0); em(op)
            if isinstance(op, Dual):
                for _ in range(ld_per_st):
                    if dq:
                        for o in dq.pop(0): em(o)
            return c
        lim = [64]
        def run(i0, i1, every=0):
            for i in range(i0, i1):
                it = stream[i]; w = []
                if it[0] == 'yc' and it[1] == 0 and it[2] % 2 == 0: w.append(f'vmcnt({min(63, vm.need(("uc", it[2] | 1)))})')
                if i % 2 == 0: w.append(f'lgkmcnt({min(15, q.need(("s", min(i + 1, NS - 1))))})')
                if w: a('s_waitcnt ' + ' '.join(w))
                mm = smf(i)
                for h in range(2):
                    pos = 2 * i + h
                    a(mm[h])
                    budget = pv_budget
                    if h == 0 and i + LA < NS:
                        nx = stream[i + LA]
                        if nx[0] == 'yc' and nx[2] == 0 and nx[1] in (1, 2):
                            a(f's_waitcnt vmcnt({min(63, vm.need(("wc", 1 if nx[1] == 1 else 3)))})')
                            a('s_barrier')
                        a(srd_(i + LA)); q.issue(('s', i + LA)); budget -= 1
                    while pend and pend[0][0] <= pos and budget > 0: budget -= pop()
                    if every and dq and pos % every == 1:
                        for o in dq.pop(0): em(o)
        run(0, 32)
        a('s_barrier')
        x_setup()
        if xinit:
            for g in xdma():
                for o in g: em(o)
        while pend: pop()
        stats_block()
        dq += wc_dma(1) + wc_dma(2) + wc_dma(3)
        while len(dq) > 24 - flag_after:
            for o in dq.pop(0): em(o)
        st(4)
        a(f's_lshl_b32 s{S_T3}, s{S_SPLIT}, 7')
        a(f's_add_u32 s{S_T3}, s{S_T3}, s{S_FLO}')
        a(f'v_lshlrev_b32 v{V_T0}, 2, v0\n v_mov_b32 v{V_T1}, s{S_TAG}')
        a(f's_lshl_b32 s{S_CNT}, 1, s{S_SPLIT}')
        a('s_mov_b64 exec, 0xffffffff')
        a(f's_waitcnt vmcnt({vm.need("part")})')
        em(Dual(f'buffer_store_dword v{V_T1}, v{V_T0}, {SRD}, s{S_T3} offen', None, ''))
        a('s_mov_b64 exec, -1')
        st(5)
        if stamp: a('s_waitcnt lgkmcnt(0)')
        if xinit:
            for _ in range(xi_pre):
                for o in dq.pop(0): em(o)
            for idx in range(8):
                gm, qh = idx >> 1, idx & 1
                a(f'ds_read_b128 {vr(V_S+4*idx,4)}, v{XV+4+gm} offset:{qh*4096}'); q.issue(('x', idx))
            for idx in range(8):
                gm, qh = idx >> 1, idx & 1
                a(f's_waitcnt lgkmcnt({q.need(("x", idx))})')
                for i in range(4):
                    y = YB + 8 * (2 * gm + (i >> 1)) + 4 * qh + 2 * (i & 1)
                    a(f'v_lshlrev_b32 v{y}, 16, v{V_S+4*idx+i}')
                    a(f'v_and_b32 v{y+1}, 0xffff0000, v{V_S+4*idx+i}')
            a('s_nop 1')
        poll = f'buffer_load_dword v{V_PFD}, v{V_FL}, {SRD}, s{S_FLO} offen offset:4 sc1'
        dq.insert(min(max(0, poll_after - (xi_pre if xinit else 0)), len(dq)), [(poll, 'poll')])
        STR = [56, 60, 124]
        def getmask(w):
            a(f's_waitcnt vmcnt({w})')
            a(f'v_cmp_eq_u32 vcc, s{S_TAG}, v{V_PFD}')
            a('s_nop 3')
            a(f's_and_b32 s{S_PFS}, vcc_lo, 15')
            a(f's_andn2_b32 s{S_PFS}, s{S_PFS}, s{S_CNT}')
            a(f's_or_b32 s{S_CNT}, s{S_CNT}, s{S_PFS}')
        def slot_hdr(k):
            return [f's_sub_u32 s{S_T1}, s{S_SPLIT}, {k+1}', f's_and_b32 s{S_T1}, s{S_T1}, 3', f's_bitcmp1_b32 s{S_PFS}, s{S_T1}']
        def slot_adr():
            return [f's_add_u32 s{S_T1}, s{S_T1}, s{S_T0}', f's_lshl_b32 s{S_T1}, s{S_T1}, 2', f's_add_u32 s{S_T1}, s{S_T1}, s{S_W}',
                    f's_lshl_b32 s{S_PO}, s{S_T1}, 15', f's_add_u32 s{S_T1}, s{S_PO}, {WS_PART + 3*8192}']
        def slot_loads(k, vo):
            out = [[f'buffer_load_dwordx4 {vr(STR[k],4)}, v{vo}, {SRD}, s{S_T1} offen sc1']]
            for h4 in range(2):
                for i in range(4):
                    pre = [f's_add_u32 s{S_T1}, s{S_PO}, {WS_PART + k*8192 + h4*4096}'] if i == 0 else []
                    dst = vr(V_S + (h4*4+i)*4, 4) if (xinit and k == 0) else ar(128+(k*8+h4*4+i)*4,4)
                    out.append(pre + [f'buffer_load_dwordx4 {dst}, v{vo}, {SRD}, s{S_T1} offen offset:{i*1024} sc1'])
            return out
        def check():
            getmask(0)
            for k in range(3):
                lab = a.label(name + '_ck')
                for o in slot_hdr(k): a(o)
                a(f's_cbranch_scc0 {lab}')
                for o in slot_adr(): a(o)
                for g in slot_loads(k, V_L16):
                    for o in g: a(o)
                a(f'{lab}:')
        run(32, chk_at, every=2)
        assert not dq
        st(20)
        if stamp: a('s_waitcnt lgkmcnt(0)')
        getmask(vm.need('poll'))
        for k in range(3):
            first = slot_hdr(k) + [f's_cselect_b32 s{S_PH}, 0, 0x80000000', f'v_or_b32 v{V_T2}, s{S_PH}, v{V_L16}'] + slot_adr()
            for g in slot_loads(k, V_T2):
                dq.append(first + g); first = []
        dq += ([] if xinit else xdma()) + [[poll]]
        run(chk_at, NS, every=r_pace)
        assert not dq, len(dq)
        st(21)
        if not xinit:
            a(f's_waitcnt vmcnt({vm.need("x")})')
            st(22)
            if stamp: a('s_waitcnt lgkmcnt(0)')
            for idx in range(8):
                gm, qh = idx >> 1, idx & 1
                a(f'ds_read_b128 {vr(V_S+4*idx,4)}, v{XV+4+gm} offset:{qh*4096}')
            a('s_nop 3')
            for idx in range(8):
                gm, qh = idx >> 1, idx & 1
                xb = V_S + 4 * idx
                a(f's_waitcnt lgkmcnt({7-idx})')
                for i in range(4):
                    a(f'v_lshlrev_b32 v{64+2*i}, 16, v{xb+i}')
                    a(f'v_and_b32 v{64+2*i+1}, 0xffff0000, v{xb+i}')
                for i in range(4):
                    y = YB + 8 * (2 * gm + (i >> 1)) + 4 * qh + 2 * (i & 1)
                    a(f'v_pk_add_f32 {vr(y,2)}, {vr(y,2)}, {vr(64+2*i,2)}')
    st(23)
    a(f'{name}_spin:')
    check()
    a(f's_cmp_eq_u32 s{S_CNT}, 15')
    a(f's_cbranch_scc1 {name}_got')
    a(poll)
    a(f's_branch {name}_spin')
    a(f'{name}_got:')
    st(6)
    a('s_waitcnt vmcnt(0)')
    st(24)
    allst = [120] + STR
    for qh in range(2):
        t = V_T0 + qh
        a(f'v_max3_f32 v{t}, v{allst[0]+2*qh+1}, v{allst[1]+2*qh+1}, v{allst[2]+2*qh+1}')
        a(f'v_max_f32 v{t}, v{t}, v{allst[3]+2*qh+1}')
    for qh in range(2):
        for b in allst: a(f'v_sub_f32 v{b+2*qh+1}, v{b+2*qh+1}, v{V_T0+qh}')
    for qh in range(2):
        for b in allst: a(f'v_exp_f32 v{b+2*qh+1}, v{b+2*qh+1}')
    for qh in range(2):
        a(f'v_mul_f32 v{V_T0+qh}, v{allst[0]+2*qh}, v{allst[0]+2*qh+1}')
    for b in allst[1:]:
        for qh in range(2): a(f'v_fmac_f32 v{V_T0+qh}, v{b+2*qh}, v{b+2*qh+1}')
    for qh in range(2): a(f'v_rcp_f32 v{V_T0+qh}, v{V_T0+qh}')
    a('s_nop 0')
    for qh in range(2):
        for b in allst: a(f'v_mul_f32 v{b+2*qh+1}, v{b+2*qh+1}, v{V_T0+qh}')
    for i in range(4): a(f'v_or_b32 v{XV+i}, s{S_VALID}, v{XV+i}')
    for qh in range(2):
        for gm in range(4):
            idx = gm * 2 + qh
            ys = [YB + 8 * (2 * gm + (i >> 1)) + 4 * qh + 2 * (i & 1) for i in range(4)]
            for i in range(4):
                a(f'v_pk_fma_f32 {vr(ys[i],2)}, {vr(ys[i]-64,2)}, {vr(120+2*qh,2)}, {vr(ys[i],2)} op_sel:[0,1,0] op_sel_hi:[1,1,1]')
            for k in range(3):
                ub = 64 + 12 * k
                src = ub + 8
                if xinit and k == 0: src = V_S + 4 * idx
                else:
                    for i in range(4): a(f'v_accvgpr_read_b32 v{ub+8+i}, a{128+(k*8+idx)*4+i}')
                for i in range(4):
                    a(f'v_lshlrev_b32 v{ub+2*i}, 16, v{src+i}')
                    a(f'v_and_b32 v{ub+2*i+1}, 0xffff0000, v{src+i}')
                for i in range(4):
                    a(f'v_pk_fma_f32 {vr(ys[i],2)}, {vr(ub+2*i,2)}, {vr(STR[k]+2*qh,2)}, {vr(ys[i],2)} op_sel:[0,1,0] op_sel_hi:[1,1,1]')
            ob = 100 + 4 * (gm & 1)
            for i in range(4): a(f'v_cvt_pk_bf16_f32 v{ob+i}, v{ys[i]}, v{ys[i]+1}')
            a(f'ds_write_b128 v{XV+4+gm}, {vr(ob,4)} offset:{qh*4096}')
            if qh == 1 and gm == 0:
                a('s_waitcnt lgkmcnt(1)')
                for i in range(4):
                    a(f's_add_u32 s{S_T1}, s{S_T4}, {i*4096}')
                    a(f'buffer_store_dwordx4 {vr(128+8*i,4)}, v{XV+i}, {SRO}, s{S_T1} offen {out_flags}')
        for i in range(4): a(f'ds_read_b128 {vr(128+8*i+4*qh,4)}, v{V_XO} offset:{(4*qh+i)*1024}')
    for i in range(4):
        a(f's_add_u32 s{S_T1}, s{S_T4}, {(4+i)*4096}')
        a(f's_waitcnt lgkmcnt({3-i})')
        a(f'buffer_store_dwordx4 {vr(128+8*i+4,4)}, v{XV+i}, {SRO}, s{S_T1} offen {out_flags}')
    if stamp:
        a('s_waitcnt vmcnt(0)')
        st(7)
        a('s_waitcnt lgkmcnt(0)')
        a(f's_cmp_lg_u32 s{S_W}, 0')
        a(f's_cbranch_scc1 {name}_end')
        a(f's_lshl_b32 s{S_T1}, s2, 7')
        a(f's_add_u32 s{S_T1}, s{S_T1}, {WS_STAMP}')
        for i in range(16): a(f'v_mov_b32 v{16+2*i}, s{80+i}\n v_mov_b32 v{17+2*i}, 0')
        a(f'v_mov_b32 v{V_T0}, 0')
        a('s_mov_b64 exec, 1')
        for i in range(8):
            a(f'buffer_store_dwordx4 {vr(16+4*i,4)}, v{V_T0}, {SRD}, s{S_T1} offen offset:{16*i}')
        if dbgout:
            a(f's_cmp_lg_u32 s2, 0\n s_cbranch_scc1 {name}_end')
            a('s_load_dwordx2 s[4:5], s[0:1], 80')
            a(f's_mov_b32 s{S_T1}, {WS_STAMP + 131072}')
            a(f'buffer_load_dwordx4 v[48:51], v{V_T0}, {SRD}, s{S_T1} offen sc1')
            a(f's_mov_b32 s{S_T1}, {WS_STAMP + 65536}')
            a(f'buffer_load_dwordx4 v[52:55], v{V_T0}, {SRD}, s{S_T1} offen sc1')
            a(f'buffer_load_dwordx4 v[56:59], v{V_T0}, {SRD}, s{S_T1} offen offset:16 sc1')
            a('s_waitcnt vmcnt(0) lgkmcnt(0)')
            a('s_sub_u32 s12, s4, 0\n s_subb_u32 s13, s5, 0\n s_mov_b32 s14, 256\n s_mov_b32 s15, 0x20000')
            src = [50, 52, 54, 56, 58, 16, 18, 20, 22, 30]
            for i, r in enumerate(src): a(f'v_sub_u32 v{64+i}, v{r}, v48')
            for i in range(3): a(f'buffer_store_dwordx4 {vr(64+4*i,4)}, v{V_T0}, s[12:15], 0 offen offset:{16*i}')
            if spin is not None:
                ra, rb = spin
                a(f'v_sub_u32 v80, v{rb}, v{ra}')
                a('v_add_u32 v80, 2000, v80')
                a('v_add_u32 v80, v30, v80')
                a('s_nop 1')
                a('v_readfirstlane_b32 s20, v80')
                a(f'{name}_sp:')
                a('s_memrealtime s[22:23]')
                a('s_waitcnt lgkmcnt(0)')
                a('s_sub_u32 s21, s20, s22')
                a('s_cmp_gt_i32 s21, 0')
                a(f's_cbranch_scc1 {name}_sp')
    a(f'{name}_end:')
    a('s_endpgm')
    p3slow()
    for lab, dst, vo, so in slows:
        a(f'{name}_{lab}s:')
        a(f's_sleep {slp}')
        a(f'buffer_load_dword v{dst}, v{vo}, {SRD}, s{so} offen sc1')
        a('s_waitcnt vmcnt(0)')
        a(f'v_cmp_ne_u32 vcc, s{S_TAG}, v{dst}')
        a(f's_cbranch_vccnz {name}_{lab}s')
        a(f's_branch {name}_{lab}k')
    for lab, op in stubs:
        a(f'{lab}:')
        a(f'{op} sc1')
        a(f's_branch {lab}b')
    a(f'{name}_cfslow:')
    a(f's_sleep {slp}')
    a(f'buffer_load_dword v{V_PFD}, v{V_XO}, {SRD}, s{S_SLOW} offen sc1')
    a('s_waitcnt vmcnt(0)')
    a(f'v_cmp_ne_u32 s[{S_T3}:{S_T3+1}], s{S_TAG}, v{V_PFD}')
    a('s_nop 3')
    a(f's_cmp_eq_u64 s[{S_T3}:{S_T3+1}], 0')
    a(f's_cbranch_scc0 {name}_cfslow')
    a(f's_branch {name}_cfok')
    for (L_r1, L_r1b, L_r2, L_r2b) in rare:
        a(f'{L_r1}:')
        rowmax2(V_T1, V_T2, 120)
        for qh, dst in ((0, V_T1), (1, V_T2)):
            a(f'v_max_f32 v{dst}, 0, v{dst}')
            fr = V_F1 if qh else V_F0
            a(f'v_sub_f32 v{fr}, 0, v{dst}')
            a(f'v_exp_f32 v{fr}, v{fr}')
            for kh in range(2):
                for i in range(4): a(f'v_sub_f32 v{Sreg(kh,qh)+i}, v{Sreg(kh,qh)+i}, v{dst}')
            for i in range(4): a(f'v_sub_f32 v{V_NEGM+4*qh+i}, v{V_NEGM+4*qh+i}, v{dst}')
            l = V_L1 if qh else V_L0
            a(f'v_mul_f32 v{l}, v{l}, v{fr}')
        if nobr2 and L_r1.endswith('M'): a(f's_mov_b32 s{S_LIM}, 1000')
        a(f's_branch {L_r1b}')
        a(f'{L_r2}:')
        a('s_nop 7')
        for beta in range(32):
            for qh in range(2):
                fr = V_F1 if qh else V_F0
                b = Obase(beta, qh)
                if beta < 16:
                    for r in range(4): a(f'v_mul_f32 v{b+r}, v{b+r}, v{fr}')
                else:
                    for r in range(4): a(f'v_accvgpr_read_b32 v{120+r}, a{b+r}')
                    for r in range(4): a(f'v_mul_f32 v{120+r}, v{120+r}, v{fr}')
                    for r in range(4): a(f'v_accvgpr_write_b32 a{b+r}, v{120+r}')
        a(f's_branch {L_r2b}')
    a('code_end:')
    a('s_endpgm')
    kernel_desc(a, name, 512, 102, 256)
```

```python
from asmlib import *
from layout import *
from attn2 import LdsQ
from k2 import f2h

P_X, P_WQ, P_WK, P_WV, P_AO, P_UP, P_DW, P_DN, P_MG, P_OUT, P_DBG, P_WS = [56 + 2 * i for i in range(12)]

def prep(a, name, K, st, mid1, flagA, pollA, late, gl=3, fa_at=6, apace=8, wsoff=0, upf=False, warm=False, prew=True):
    V_L16 = K.V_L16
    V_T0, V_T1, V_T2, V_T3, V_TR, V_DT, V_LR, V_LS = 13, 14, 15, 12, 5, 6, 8, 9
    V_SW, V_AR, V_BR = 16, 160, 164
    V_ACC, V_PK, V_RA, V_RB = 32, 48, 64, 96
    RAW, F, SUM, MEAN, RSTD = 64, 96, 168, 172, 174
    S_SA, S_SB = 44, 48
    S_TI, S_TJ, S_OO, S_ROLE, S_RB, S_CB, S_BLK = 52, 53, 54, 55, 42, 43, K.S_T4
    S_W, S_T0, S_T1, S_T2 = K.S_W, K.S_T0, K.S_T1, K.S_T2
    SW, SX = [f's[{b}:{b+3}]' for b in (K.S_SRD, K.S_SRX)]
    SA, SB = [f's[{b}:{b+3}]' for b in (S_SA, S_SB)]
    LA_, LB_ = 32768, 98304
    a(f's_lshr_b32 s{S_BLK}, s{K.S_TILE}, 1')
    a(f's_lshl_b32 s{S_BLK}, s{S_BLK}, 3')
    a(f's_bfe_u32 s{S_T0}, s2, 0x30003')
    a(f's_add_u32 s{S_BLK}, s{S_BLK}, s{S_T0}')
    a(f's_cmp_lt_u32 s{S_BLK}, 125')
    a(f's_cselect_b32 s{S_T2}, 0, 0x80000000')
    a(f's_min_u32 s{S_BLK}, s{S_BLK}, 124')
    a(f's_add_u32 s{S_BLK}, s{S_BLK}, s{K.S_B125}')
    a(f's_lshl_b32 s{S_BLK}, s{S_BLK}, 15')
    a('s_waitcnt lgkmcnt(0)')
    make_srd(a, K.S_SRX, P_X, 0, 8192000)
    for g in range(2):
        a(f's_add_u32 m0, s{K.S_W8K}, {g*4096}')
        a('s_nop 0')
        for i in range(4): a(f'buffer_load_dwordx4 v{K.V_DK1 if g else K.V_DK0}, {SX}, s{S_BLK} offen offset:{i*1024} lds')
    late()
    a(f'v_and_b32 v{V_T0}, 7, v0')
    a(f'v_lshrrev_b32 v{V_T1}, 3, v0')
    a(f'v_lshlrev_b32 v{V_LR}, 4, v{V_T1}')
    a(f'v_lshl_add_u32 v{V_LR}, v{V_T0}, 10, v{V_LR}')
    a(f'v_add_u32 v{V_LR}, s{K.S_W8K}, v{V_LR}')
    a(f'v_lshrrev_b32 v{V_T2}, 5, v0')
    a(f'v_lshlrev_b32 v{V_LS}, 11, v{V_T2}')
    a(f'v_and_b32 v{V_T2}, 3, v{V_T1}')
    a(f'v_lshl_add_u32 v{V_LS}, v{V_T2}, 8, v{V_LS}')
    a(f'v_lshl_add_u32 v{V_LS}, v{V_T0}, 4, v{V_LS}')
    a(f'v_or_b32 v{V_LS}, s{S_T2}, v{V_LS}')
    a(f's_and_b32 s{S_RB}, s{S_W}, 1')
    a(f's_lshr_b32 s{S_CB}, s{S_W}, 1')
    a(f's_lshl_b32 s{S_T1}, s{S_RB}, 7')
    a(f'v_xor_b32 v{V_SW}, s{S_T1}, v{V_L16}')
    for i in range(1, 8): a(f'v_xor_b32 v{V_SW+i}, {i*16}, v{V_SW}')
    a(f'v_bfe_u32 v{V_T2}, v0, 4, 1')
    a(f'v_lshlrev_b32 v{V_T2}, 2, v{V_T2}')
    a(f'v_xor_b32 v{V_T2}, v{V_T2}, v{V_T0}')
    a(f'v_lshlrev_b32 v{V_DT}, 4, v{V_T2}')
    a(f'v_lshl_add_u32 v{K.V_WD}, v{V_T1}, 11, v{V_DT}')
    a(f's_and_b32 s3, s2, 7')
    a(f's_lshl_b32 s3, s3, 5')
    a(f's_lshr_b32 s{S_T1}, s2, 3')
    a(f's_add_u32 s3, s3, s{S_T1}')
    a(f's_and_b32 s{S_T2}, s2, 1')
    a(f's_lshl1_add_u32 s{S_T1}, s{S_T1}, s{S_T2}')
    a(f's_add_u32 s{S_T1}, s{S_T1}, 192')
    a(f's_cmp_ge_u32 s3, 192')
    a(f's_cselect_b32 s3, s{S_T1}, s3')
    a(f's_lshr_b32 s{S_ROLE}, s3, 6')
    a(f's_and_b32 s{S_TI}, s3, 7')
    a(f's_bfe_u32 s{S_TJ}, s3, 0x30003')
    make_srd(a, 96, P_DBG, 0, 256)
    a(f's_cmp_lt_u32 s2, 248\n s_cbranch_scc1 {name}_notag')
    a('s_memrealtime s[100:101]')
    a('v_mov_b32 v25, 0')
    a('s_waitcnt lgkmcnt(0)')
    a('s_or_b32 s100, s100, 1')
    a('v_mov_b32 v24, s100')
    a('s_mov_b64 exec, 1')
    a(f'buffer_atomic_cmpswap v[24:25], v{K.V_FO}, s[96:99], 0 offen sc1')
    a('s_mov_b64 exec, -1')
    a(f'{name}_notag:')
    def rows_dma(srd, sbase, ldsbase):
        a(f's_lshl_b32 s{S_T2}, s{S_W}, 14')
        a(f's_add_u32 s{S_T1}, s{sbase}, s{S_T2}')
        for g in range(4):
            a(f's_add_u32 m0, s{S_T2}, {ldsbase + g*4096}')
            if g: a(f's_add_u32 s{S_T1}, s{S_T1}, 4096')
            else: a('s_nop 0')
            for i in range(4):
                a(f'buffer_load_dwordx4 v{V_SW + 4*(g>>1) + i}, {srd}, s{S_T1} offen offset:{i*1024} lds')
    def tr_dma(npiece, stride_log2, sbase):
        a(f'v_lshl_add_u32 v{V_T3}, v{V_T1}, {stride_log2}, v{V_DT}')
        a(f's_mul_i32 s{S_T1}, s{S_W}, {npiece * 8 << stride_log2}')
        a(f's_add_u32 s{S_T1}, s{S_T1}, s{sbase}')
        a(f's_mul_i32 s{S_T2}, s{S_W}, {npiece * 1024}')
        for i in range(npiece):
            a(f's_add_u32 m0, s{S_T2}, {LB_ + i*1024}')
            if i: a(f's_add_u32 s{S_T1}, s{S_T1}, {8 << stride_log2}')
            else: a('s_nop 0')
            a(f'buffer_load_dwordx4 v{V_T3}, {SB}, s{S_T1} offen lds')
    def wpf(n):
        a(f'buffer_load_dword v26, v27, s[76:79], 0 offen')
        if warm: a(f'buffer_load_dword v26, v30, {SW}, s{K.S_T3} offen')
        a(f's_waitcnt vmcnt({n + 1 + (1 if warm else 0)})')
    if wsoff:
        a(f's_add_u32 s{P_WS}, s{P_WS}, {wsoff << 20}')
        a(f's_addc_u32 s{P_WS+1}, s{P_WS+1}, 0')
    make_srd(a, K.S_SRD, P_WS, 0, WS_SIZE)
    a(f's_mov_b32 s{K.S_X}, s{P_X}\n s_mov_b32 s{K.S_X+1}, s{P_X+1}')
    a(f's_mov_b32 s{K.S_WS}, s{P_WS}\n s_mov_b32 s{K.S_WS+1}, s{P_WS+1}')
    make_srd(a, K.S_SRO, P_OUT, 0, 8192000)
    make_srd(a, 76, P_UP, 0, 1024 * 1024)
    a(f's_lshr_b32 s{S_T1}, s2, 6')
    a(f's_lshl2_add_u32 s{S_T1}, s{S_T1}, s{S_W}')
    a(f's_lshl_b32 s{S_T1}, s{S_T1}, 16')
    a(f's_lshl_b32 s{S_T0}, s{S_T0}, 7')
    a(f's_add_u32 s{S_T1}, s{S_T1}, s{S_T0}')
    if upf:
        a(f'v_lshlrev_b32 v27, 10, v0')
    else:
        a(f's_add_u32 s{S_T1}, s{S_T1}, 1024')
        a(f'v_and_b32 v27, 31, v0')
        a(f'v_lshlrev_b32 v27, 11, v27')
    a(f'v_add_u32 v27, s{S_T1}, v27')
    if prew:
        lab = f'{name}_pw'
        a(f's_cmp_lg_u32 s{S_W}, 0\n s_cbranch_scc1 {lab}')
        a(f's_bfe_u32 s{S_T0}, s2, 0x30003')
        a(f's_and_b32 s{S_T1}, s2, 3')
        a(f's_lshl_b32 s{S_T1}, s{S_T1}, 2')
        a(f's_lshr_b32 s{S_T2}, s2, 6')
        a(f's_add_u32 s{S_T1}, s{S_T1}, s{S_T2}')
        a(f's_lshl_b32 s{S_T1}, s{S_T1}, 4')
        a(f's_and_b32 s{S_T2}, s2, 4')
        a(f's_lshl1_add_u32 s{S_T1}, s{S_T2}, s{S_T1}')
        a(f's_add_u32 s{S_T1}, s{S_T1}, s{S_T0}')
        a(f's_lshl_b32 s{S_T2}, s{K.S_GRP}, 2')
        a(f's_and_b32 s{S_T2}, s{S_T2}, 0xf8')
        a(f's_add_u32 s{S_T2}, s{S_T2}, s{S_T0}')
        a(f'v_min_u32 v30, 6, v{V_T1}')
        a(f'v_mov_b32 v31, s{S_T2}')
        a(f'v_cmp_eq_u32 vcc, 0, v30')
        a(f'v_mov_b32 v252, s{S_T1}')
        a(f'v_mov_b32 v253, s3')
        a(f'v_cndmask_b32 v31, v31, v252, vcc')
        a(f'v_cmp_eq_u32 vcc, 6, v30')
        a(f'v_lshlrev_b32 v30, 15, v30')
        a(f'v_lshl_add_u32 v30, v{V_T0}, 4, v30')
        a(f'v_cndmask_b32 v31, v31, v253, vcc')
        a(f'v_lshl_add_u32 v30, v31, 7, v30')
        for i in range(4): a(f'v_mov_b32 v{252+i}, 0')
        a(f's_mov_b32 s{S_T1}, {ZF}')
        a(f'buffer_store_dwordx4 v[252:255], v30, {SW}, s{S_T1} offen sc1')
        a(f'{lab}:')
    if warm:
        T3 = K.S_T3
        a(f's_bfe_u32 s{S_T0}, s2, 0x30003')
        a(f's_and_b32 s{S_T1}, s2, 3')
        a(f's_lshl_b32 s{S_T1}, s{S_T1}, 2')
        a(f's_lshr_b32 s{S_T2}, s2, 6')
        a(f's_add_u32 s{S_T1}, s{S_T1}, s{S_T2}')
        a(f's_lshl_b32 s{S_T1}, s{S_T1}, 4')
        a(f's_and_b32 s{S_T2}, s2, 4')
        a(f's_lshl1_add_u32 s{S_T1}, s{S_T2}, s{S_T1}')
        a(f's_add_u32 s{S_OO}, s{S_T1}, s{S_T0}')
        lab = f'{name}_wm'
        a(f's_lshl_b32 s{T3}, s{K.S_GRP}, 2')
        a(f's_and_b32 s{T3}, s{T3}, 0xf8')
        a(f's_add_u32 s{T3}, s{T3}, s{S_T0}')
        a(f's_lshl_b32 s{T3}, s{T3}, 7')
        a(f's_add_u32 s{T3}, s{T3}, {ZF}')
        a(f's_mov_b32 s{S_T1}, {2*ZK}\n s_mov_b32 s{S_T2}, {ZK}')
        a(f's_cmp_eq_u32 s{S_W}, 0\n s_cbranch_scc1 {lab}')
        a(f's_lshl_b32 s{T3}, s{S_OO}, 11')
        a(f's_add_u32 s{T3}, s{T3}, {WS_W + 16 * TILE}')
        a(f's_mov_b32 s{S_T1}, 256\n s_mov_b32 s{S_T2}, 128')
        a(f's_cmp_eq_u32 s{S_W}, 1\n s_cbranch_scc1 {lab}')
        a(f's_lshr_b32 s{T3}, s{K.S_TILE}, 1')
        a(f's_lshl_b32 s{T3}, s{T3}, 3')
        a(f's_add_u32 s{T3}, s{T3}, s{K.S_B125}')
        a(f's_lshl_b32 s{T3}, s{T3}, 3')
        a(f's_add_u32 s{T3}, s{T3}, s{S_T0}')
        a(f's_lshl_b32 s{T3}, s{T3}, 8')
        a(f's_add_u32 s{T3}, s{T3}, {WS_ST}')
        a(f's_mov_b32 s{S_T1}, 2048')
        a(f's_cmp_eq_u32 s{S_W}, 2\n s_cbranch_scc1 {lab}')
        a(f's_lshl_b32 s{T3}, s{S_OO}, 7')
        a(f's_lshl_b32 s{S_T2}, s3, 7')
        a(f's_add_u32 s{S_T2}, s{S_T2}, {6*ZK}')
        a(f's_sub_u32 s{S_T2}, s{S_T2}, s{T3}')
        a(f's_add_u32 s{T3}, s{T3}, {ZF}')
        a(f's_mov_b32 s{S_T1}, 0')
        a(f'{lab}:')
        a(f'v_bfe_u32 v30, v0, 1, 3')
        a(f'v_mul_lo_u32 v30, v30, s{S_T1}')
        a(f'v_and_b32 v31, 1, v0')
        a(f'v_mul_lo_u32 v31, v31, s{S_T2}')
        a(f'v_add_u32 v30, v30, v31')
    a(f's_cmp_eq_u32 s{S_ROLE}, 3\n s_cbranch_scc1 {name}_i3')
    a(f's_cmp_eq_u32 s{S_ROLE}, 1\n s_cbranch_scc1 {name}_i1')
    a(f's_cmp_eq_u32 s{S_ROLE}, 0')
    a(f's_cselect_b32 s{S_SA}, s{P_AO}, s{P_DN}')
    a(f's_cselect_b32 s{S_SA+1}, s{P_AO+1}, s{P_DN+1}')
    a(f's_cselect_b32 s{S_T0}, 0, {512*1024}')
    a(f's_mov_b32 s{S_SA+2}, {512*1024}\n s_mov_b32 s{S_SA+3}, 0x20000')
    make_srd(a, S_SB, P_MG, 0, 1024 * 1024)
    a(f's_lshl_b32 s{S_T1}, s{S_TJ}, 7')
    a(f's_add_u32 s{S_T0}, s{S_T0}, s{S_T1}')
    tr_dma(16, 10, S_T0)
    wpf(16)
    a(f's_branch {name}_ln')
    a(f'{name}_i1:')
    make_srd(a, S_SA, P_WQ, 0, 512 * 1024)
    make_srd(a, S_SB, P_WK, 0, 512 * 1024)
    a(f's_lshl_b32 s{S_T0}, s{S_TJ}, 16')
    rows_dma(SB, S_T0, LB_)
    wpf(16)
    a(f's_branch {name}_ln')
    a(f'{name}_i3:')
    make_srd(a, S_SA, P_WV, 0, 512 * 1024)
    a(f's_cmp_ge_u32 s3, 208\n s_cbranch_scc1 {name}_i5')
    wpf(0)
    a(f's_branch {name}_ln')
    a(f'{name}_i5:')
    make_srd(a, S_SB, P_DW, 0, 31 * 1024)
    a(f's_mov_b32 s{S_SA+2}, 0')
    a(f's_sub_u32 s{S_OO}, s3, 208')
    a(f's_lshl2_add_u32 s{S_OO}, s{S_OO}, s{S_W}')
    a(f's_min_u32 s{S_OO}, s{S_OO}, 159')
    a(f'v_bfe_u32 v{V_T2}, v0, 4, 2')
    a(f'v_bfe_u32 v{V_T3}, v0, 2, 2')
    a(f'v_lshl_add_u32 v{V_T2}, v{V_T2}, 3, v{V_T3}')
    a(f'v_lshlrev_b32 v{V_T2}, 1, v{V_T2}')
    a(f'v_and_b32 v{V_T3}, 3, v0')
    a(f'v_add_u32 v{V_T3}, 1, v{V_T3}')
    a(f'v_lshlrev_b32 v{V_T3}, 10, v{V_T3}')
    a(f'v_sub_u32 v{V_T2}, v{V_T2}, v{V_T3}')
    a(f's_mul_i32 s{S_T1}, s{S_OO}, 52429')
    a(f's_lshr_b32 s{S_T1}, s{S_T1}, 18')
    a(f's_mul_i32 s{S_T2}, s{S_T1}, 5')
    a(f's_sub_u32 s{S_T0}, s{S_OO}, s{S_T2}')
    a(f's_lshl_b32 s{S_T0}, s{S_T0}, 13')
    a(f's_lshr_b32 s{S_T2}, s{S_T1}, 1')
    a(f's_lshl_b32 s{S_T2}, s{S_T2}, 6')
    a(f's_add_u32 s{S_T0}, s{S_T0}, s{S_T2}')
    a(f's_and_b32 s{S_T1}, s{S_T1}, 1')
    a(f's_lshl_b32 s{S_T1}, s{S_T1}, 3')
    a(f's_add_u32 s{S_T0}, s{S_T0}, s{S_T1}')
    a(f'v_add_u32 v{V_T3}, s{S_T0}, v{V_T2}')
    for e in range(8):
        a(f'buffer_load_ushort v{V_ACC+e}, v{V_T3}, {SB}, 0 offen')
        if e < 7: a(f'v_add_u32 v{V_T3}, 1024, v{V_T3}')
    wpf(8)
    a(f'{name}_ln:')
    st(40)
    aq = []
    for g in range(4):
        hd = [f's_add_u32 m0, s{S_T2}, {LA_ + g*4096}', f's_add_u32 s{S_T1}, s{S_T1}, 4096' if g else 's_nop 0']
        for i in range(4):
            aq.append(hd + [f'buffer_load_dwordx4 v{V_SW + 4*(g>>1) + i}, {SA}, s{S_T1} offen offset:{i*1024} lds']); hd = []
    a(f's_lshl_b32 s{S_T2}, s{S_W}, 14')
    a(f's_lshl_b32 s{S_T1}, s{S_TI}, 16')
    a(f's_add_u32 s{S_T1}, s{S_T1}, s{S_T2}')
    cn = [0]
    def c(o):
        a(o); cn[0] += 1
        if cn[0] % apace == 0 and aq:
            for x in aq.pop(0): a(x)
    for i in range(8): a(f'ds_read_b128 {vr(RAW+4*i,4)}, v{V_LR} offset:{i*128}')
    for i in range(4): a(f'v_mov_b32 v{SUM+i}, 0')
    for s in range(8):
        a(f's_waitcnt lgkmcnt({7-s})')
        for i in range(4):
            r = RAW + 4 * s + i; f = F + 8 * s + 2 * i
            c(f'v_lshlrev_b32 v{f}, 16, v{r}')
            c(f'v_and_b32 v{f+1}, 0xffff0000, v{r}')
        for i in range(4):
            f = F + 8 * s + 2 * i; acc = SUM + 2 * (i & 1)
            c(f'v_pk_add_f32 {vr(acc,2)}, {vr(acc,2)}, {vr(f,2)}')
    def reduce8(dst):
        a(f'v_pk_add_f32 {vr(SUM,2)}, {vr(SUM,2)}, {vr(SUM+2,2)}')
        a(f'v_add_f32 v{dst}, v{SUM}, v{SUM+1}')
        a('s_nop 1')
        a(f'v_add_f32_dpp v{dst}, v{dst}, v{dst} row_ror:8 row_mask:0xf bank_mask:0xf')
        for sw in ('v_permlane16_swap_b32', 'v_permlane32_swap_b32'):
            a(f'v_mov_b32 v{V_T2}, v{dst}')
            a('s_nop 1')
            a(f'{sw} v{V_T2}, v{dst}')
            a('s_nop 1')
            a(f'v_add_f32 v{dst}, v{dst}, v{V_T2}')
    reduce8(MEAN)
    a(f'v_mul_f32 v{MEAN}, {f2h(-1.0/512)}, v{MEAN}')
    for i in range(4): a(f'v_mov_b32 v{SUM+i}, 0')
    for k in range(32):
        f = F + 2 * k
        c(f'v_pk_add_f32 {vr(f,2)}, {vr(f,2)}, {vr(MEAN,2)} op_sel_hi:[1,0]')
        if k:
            g = f - 2; acc = SUM + 2 * (k & 1)
            c(f'v_pk_fma_f32 {vr(acc,2)}, {vr(g,2)}, {vr(g,2)}, {vr(acc,2)}')
    g = F + 62
    a(f'v_pk_fma_f32 {vr(SUM,2)}, {vr(g,2)}, {vr(g,2)}, {vr(SUM,2)}')
    reduce8(RSTD)
    a(f'v_mov_b32 v{V_T2}, {f2h(1e-5)}')
    a(f'v_fmac_f32 v{V_T2}, {f2h(1.0/512)}, v{RSTD}')
    a(f'v_rsq_f32 v{RSTD}, v{V_T2}')
    while aq:
        for x in aq.pop(0): a(x)
    a(f's_lshl_b32 s{S_T0}, s{S_CB}, 10')
    a(f's_lshl_b32 s{S_T1}, s{S_RB}, 7')
    a(f's_add_u32 s{S_T0}, s{S_T0}, s{S_T1}')
    a(f's_add_u32 s{S_T0}, s{S_T0}, s{S_BLK}')
    if WS_XA: a(f's_add_u32 s{S_T0}, s{S_T0}, {WS_XA}')
    for s in range(8):
        for i in range(4):
            f = F + 8 * s + 2 * i
            a(f'v_pk_mul_f32 {vr(f,2)}, {vr(f,2)}, {vr(RSTD,2)} op_sel_hi:[1,0]')
        for i in range(4):
            f = F + 8 * s + 2 * i
            a(f'v_cvt_pk_bf16_f32 v{RAW+4*s+i}, v{f}, v{f+1}')
        if s: a(f's_add_u32 s{S_T0}, s{S_T0}, 4096')
        a(f'buffer_store_dwordx4 {vr(RAW+4*s,4)}, v{V_LS}, {SW}, s{S_T0} offen sc1')
    a('v_mov_b32 v25, 0')
    a('buffer_load_dword v24, v25, s[96:99], 0 offen sc1')
    st(41)
    a(f'v_and_b32 v{V_T0}, 15, v0')
    a(f'v_lshrrev_b32 v{V_T1}, 4, v0')
    a(f'v_bfe_u32 v{V_T2}, v0, 2, 2')
    a(f'v_and_b32 v{V_T3}, 3, v0')
    a(f'v_lshl_add_u32 v{V_TR}, v{V_T2}, 3, v{V_T3}')
    a(f'v_lshlrev_b32 v{V_TR}, 10, v{V_TR}')
    a(f'v_xor_b32 v{V_T0}, v{V_T0}, v{V_T1}')
    a(f'v_lshl_add_u32 v{V_TR}, v{V_T0}, 4, v{V_TR}')
    a(f's_lshl_b32 s{S_T0}, s{S_RB}, 15')
    a(f's_add_u32 s{S_T0}, s{S_T0}, {LA_}')
    a(f's_lshl_b32 s{S_T1}, s{S_CB}, 15')
    a(f's_add_u32 s{S_T1}, s{S_T1}, {LB_}')
    for i in range(4):
        a(f'v_xor_b32 v{V_T0}, {i*64}, v{V_TR}')
        a(f'v_add_u32 v{V_AR+i}, s{S_T0}, v{V_T0}')
        a(f'v_add_u32 v{V_BR+i}, s{S_T1}, v{V_T0}')
    a(f'v_bfe_u32 v{V_T0}, v0, 3, 1')
    a(f'v_lshl_add_u32 v{V_T0}, v{V_T0}, 2, v{V_T3}')
    a(f'v_lshlrev_b32 v{K.V_WT0}, 4, v{V_T0}')
    a(f'v_lshl_add_u32 v{K.V_WT0}, v{V_T2}, 7, v{K.V_WT0}')
    a(f'v_lshl_add_u32 v{K.V_WT0}, v{V_T1}, 10, v{K.V_WT0}')
    a(f'v_xor_b32 v{K.V_WT1}, 64, v{K.V_WT0}')
    a(f's_lshl_b32 s{S_T0}, s{S_CB}, 6')
    a(f'v_xor_b32 v{V_TR}, s{S_T0}, v{K.V_WT0}')
    a(f'v_add_u32 v{V_TR}, {LB_}, v{V_TR}')
    a('s_waitcnt vmcnt(9)')
    a('s_barrier')
    st(42)
    mid1()
    tagl = []
    def publishA():
        lab = a.label(name + '_tag'); tagl.append(lab)
        a('s_waitcnt vmcnt(8)')
        a(f'{lab}w:')
        a(f'v_readfirstlane_b32 s{K.S_TAG}, v24')
        a('s_nop 3')
        a(f's_cmp_eq_u32 s{K.S_TAG}, 0')
        a(f's_cbranch_scc1 {lab}s')
        a('s_barrier')
        flagA()
    def rd_rows(base):
        return lambda s, h, dst: [f'ds_read_b128 {vr(dst,4)}, v{base + (s & 3)} offset:{h*4096 + (s >> 2)*256}']
    def rd_tr(s, h, dst):
        return [f'ds_read_b64_tr_b16 {vr(dst+2*jj,2)}, v{V_TR} offset:{s*4096 + jj*512 + h*8}' for jj in range(2)]
    def gemm(rdB):
        rdA = rd_rows(V_AR)
        q = LdsQ()
        def issue(s):
            for h in range(2):
                for o in rdA(s, h, V_RA + 8 * (s % 4) + 4 * h): a(o); q.issue(s)
            for h in range(2):
                for o in rdB(s, h, V_RB + 8 * (s % 4) + 4 * h): a(o); q.issue(s)
        for s in range(gl): issue(s)
        for s in range(16):
            a(f's_waitcnt lgkmcnt({min(15, q.need(s))})')
            for ch in range(2):
                for b in range(2):
                    d = vr(V_ACC + ch * 8 + b * 4, 4)
                    a(f'v_mfma_f32_16x16x32_bf16 {d}, {vr(V_RA+8*(s%4)+4*b,4)}, {vr(V_RB+8*(s%4)+4*ch,4)}, {d if s else 0}')
                if ch == 0 and s + gl < 16: issue(s + gl)
            if s == fa_at: publishA()
        pollA()
        a('s_nop 6')
    a(f's_cmp_eq_u32 s{S_ROLE}, 3\n s_cbranch_scc1 {name}_c3')
    a(f's_lshl1_add_u32 s{S_OO}, s{S_TJ}, s{S_CB}')
    a(f's_lshl_b32 s{S_OO}, s{S_OO}, 15')
    a(f's_lshl1_add_u32 s{S_T0}, s{S_TI}, s{S_RB}')
    a(f's_lshl_b32 s{S_T0}, s{S_T0}, 11')
    a(f's_add_u32 s{S_OO}, s{S_OO}, s{S_T0}')
    a(f's_cmp_eq_u32 s{S_ROLE}, 1\n s_cbranch_scc1 {name}_c1')
    a(f's_cmp_eq_u32 s{S_ROLE}, 0')
    a(f's_cselect_b32 s{S_T0}, {WS_T1 - WS_WC}, 0')
    a(f's_add_u32 s{S_OO}, s{S_OO}, s{S_T0}')
    a(f's_add_u32 s{S_OO}, s{S_OO}, {WS_WC}')
    gemm(rd_tr)
    a(f's_branch {name}_out')
    a(f'{name}_c1:')
    a(f's_add_u32 s{S_OO}, s{S_OO}, {WS_W}')
    gemm(rd_rows(V_BR))
    a(f's_mov_b32 s{S_T1}, {f2h(512 ** -0.5 * 1.4426950408889634)}')
    for i in range(16): a(f'v_mul_f32 v{V_ACC+i}, s{S_T1}, v{V_ACC+i}')
    a(f'{name}_out:')
    for i in range(8): a(f'v_cvt_pk_bf16_f32 v{V_PK+i}, v{V_ACC+2*i}, v{V_ACC+2*i+1}')
    for ch in range(2):
        a(f'buffer_store_dwordx4 {vr(V_PK+4*ch,4)}, v{V_L16}, {SW}, s{S_OO} offen offset:{ch*1024} sc1')
    a(f's_branch {name}_pfin')
    a(f'{name}_c3:')
    publishA()
    a(f's_cmp_ge_u32 s3, 208\n s_cbranch_scc1 {name}_c5')
    a(f's_lshl1_add_u32 s{S_T1}, s{S_TJ}, s{S_CB}')
    a(f's_lshl_b32 s{S_T0}, s{S_T1}, 8')
    for i in range(4): a(f'v_add_u32 v{V_AR+i}, s{S_T0}, v{V_AR+i}')
    for i in range(8):
        for o in rd_rows(V_AR)(i >> 1, i & 1, V_RA + 4 * i): a(o)
    a(f's_lshl1_add_u32 s{S_OO}, s{S_TI}, s{S_RB}')
    a(f's_lshl_b32 s{S_OO}, s{S_OO}, 15')
    a(f's_lshl_b32 s{S_T0}, s{S_T1}, 13')
    a(f's_add_u32 s{S_OO}, s{S_OO}, s{S_T0}')
    a(f's_add_u32 s{S_OO}, s{S_OO}, {WS_RL}')
    for i in range(8):
        if i % 4 == 0 and i: a(f's_add_u32 s{S_OO}, s{S_OO}, 4096')
        a(f's_waitcnt lgkmcnt({7 - i})')
        a(f'buffer_store_dwordx4 {vr(V_RA+4*i,4)}, v{V_L16}, {SW}, s{S_OO} offen offset:{(i%4)*1024} sc1')
    a(f's_branch {name}_c6')
    a(f'{name}_c5:')
    for i in range(4): a(f'v_lshl_or_b32 v{V_RA+i}, v{V_ACC+2*i+1}, 16, v{V_ACC+2*i}')
    a(f's_lshl_b32 s{S_T0}, s{S_OO}, 10')
    a(f's_add_u32 s{S_T0}, s{S_T0}, {WS_DWT}')
    a(f'buffer_store_dwordx4 {vr(V_RA,4)}, v{V_L16}, {SW}, s{S_T0} offen sc1')
    a(f'{name}_c6:')
    a('s_waitcnt vmcnt(0)')
    pollA()
    a('s_waitcnt vmcnt(0)')
    a(f'{name}_pfin:')
    def slow():
        for lab in tagl:
            a(f'{lab}s:')
            a('s_sleep 4')
            a('buffer_load_dword v24, v25, s[96:99], 0 offen sc1')
            a('s_waitcnt vmcnt(0)')
            a(f's_branch {lab}w')
    return slow
```

```python
from asmlib import *
from layout import *
from attn2 import LdsQ
from k2 import f2h, VmQ
import re
import pz

def regs_of(tok):
    m = re.match(r'-?v\[(\d+):(\d+)\]', tok)
    if m: return set(range(int(m.group(1)), int(m.group(2)) + 1))
    m = re.match(r'-?v(\d+)$', tok)
    if m: return {int(m.group(1))}
    m = re.match(r's(\d+)$', tok)
    if m: return {1000 + int(m.group(1))}
    return set()
def rw(op):
    name_, rest = op.split(' ', 1)
    toks = [t.strip().split(' ')[0] for t in rest.split(' quad_perm')[0].split(',')]
    if name_.startswith('buffer_store'): return set().union(*[regs_of(t) for t in toks]), set()
    w = regs_of(toks[0]); r = set().union(*[regs_of(t) for t in toks[1:]])
    if name_.startswith('v_fmac') or 'dpp' in name_: r |= w
    return r, w

def rg4(a, name, K, st, stamp, vm, hooks, slows, late, LA=5, wait_every=4, bar_back=8, over=1, over2=0, XPRE=16, st_flags='sc1', fdelay=20, fdelayq=14, defer=0, pp=(14, 34, 56), rp=(20, 100, 128, 156), fastx=78, zinv=True, o1={}):
    V_L16, V_DK0, V_DK1 = K.V_L16, K.V_DK0, K.V_DK1
    V_ST0, V_ST1, V_RA, V_C0, V_C1, V_FO, V_FL, V_T0, V_T1 = 3, 4, 5, 8, 9, 10, 11, 13, 14
    V_WT, V_WD, S_TAG = (K.V_WT0, K.V_WT1), K.V_WD, K.S_TAG
    V_Z, V_HV, V_SS, V_RING, V_GP, V_STG = 16, 24, 32, 64, 96, 112
    NR = 7
    S_W, S_W8K = K.S_W, K.S_W8K
    S_CG, S_WOFF, S_B0, S_B1, S_XO, S_M0, S_M1, S_U, S_FI, S_S0 = 64, 65, 66, 67, 68, 69, 70, 71, 72, 73
    S_RAW = K.S_FLO
    S_T0, S_T1, S_T2 = K.S_T0, K.S_T1, K.S_T2
    SRD = f's[{K.S_SRD}:{K.S_SRD+3}]'
    q = LdsQ()
    def emit(o, tag=None):
        a(o)
        if o.startswith('buffer_'): vm.issue(tag)
        if o.startswith('ds_'): q.issue(tag)
    seq = ['g', 'g', 'u', 'u', 'q', 'q', 'v', 'v']
    half = [0, 1, 0, 1, 0, 1, 0, 1]
    ACN = [128, 160, 192, 224, 128, 32, 128, 32]
    wbase = {'q': 0, 'v': 16, 'u': 32, 'g': 48}
    obase = {'q': WS_Q, 'v': WS_VT, 'u': WS_UC, 'g': WS_G}
    BUF = {4: 4, 5: 1, 6: 3, 7: 2}
    def dma(n):
        out = []
        for g in range(2):
            pre = [f's_add_u32 s{S_T1}, s{S_WOFF}, {(wbase[seq[n]] + half[n]) * TILE}'] if g == 0 else []
            pre += [f's_add_u32 m0, s{S_W8K}, {BUF[n] * TILE + g*4096}', 's_nop 0']
            for i in range(4):
                out.append(pre + [(f'buffer_load_dwordx4 v{V_DK1 if g else V_DK0}, {SRD}, s{S_T1} offen offset:{i*1024} sc1 lds', ('W', n))]); pre = []
        return out
    def rawdma(n, kh):
        out = []
        for i in range(8):
            pre = [f's_add_u32 m0, s{S_W8K}, {(n + kh) * TILE + i*1024}', f's_add_u32 s{S_T1}, s{S_RAW}, {(1024 if seq[n] == "g" else 0) + kh * (1 << 19) + i * 16384}']
            out.append(pre + [(f'buffer_load_dwordx4 v{V_WD}, s[76:79], s{S_T1} offen lds', ('W', n, kh))])
        return out
    def run(groups):
        for g in groups:
            for o in g:
                if isinstance(o, tuple): emit(*o)
                else: a(o)
    PA_, PB_, PC = 192, 224, 112
    def flag(kind):
        a(f's_lshl_b32 s{S_T2}, s{ {0: S_U, 6: 3}.get(kind, S_FI) }, 7')
        a(f's_add_u32 s{S_T2}, s{S_T2}, {ZF + ZK * kind}')
        a(f'v_mov_b32 v{V_T1}, s{S_TAG}')
        emit(f'buffer_store_dword v{V_T1}, v{V_FO}, {SRD}, s{S_T2} offen sc1')
    def mid1():
        a(f's_bfe_u32 s{S_CG}, s2, 0x30003')
        a(f's_lshl_b32 s{S_FI}, s{K.S_GGRP}, 2')
        a(f's_and_b32 s{S_FI}, s{S_FI}, 0xf8')
        a(f's_lshl_b32 s{S_XO}, s{S_FI}, 7')
        a(f's_add_u32 s{S_FI}, s{S_FI}, s{S_CG}')
        a(f's_lshl_b32 s{S_RAW}, s{S_W}, 17')
        a(f's_lshl_b32 s{S_T1}, s{S_CG}, 7')
        a(f's_add_u32 s{S_RAW}, s{S_RAW}, s{S_T1}')
        run(rawdma(0, 0))
        a(f's_add_u32 s{S_XO}, s{S_XO}, {ZF + 5 * ZK}')
        a(f'v_and_b32 v{V_FL}, 7, v0')
        a(f'v_lshlrev_b32 v{V_FL}, 7, v{V_FL}')
    def pollA():
        a(f'buffer_load_dword v27, v{V_FL}, {SRD}, s{S_XO} offen sc1')
    tagslow = pz.prep(a, name, K, st, mid1, lambda: flag(5), pollA, late, **o1)
    vm.issue('role'); vm.issue('role')
    a(f's_lshr_b32 s{S_T0}, s{K.S_GTILE}, 1')
    a(f's_lshl_b32 s{S_T0}, s{S_T0}, 3')
    a(f's_lshl1_add_u32 s{S_T0}, s{S_W}, s{S_T0}')
    for rb, (sb, vs) in enumerate(((S_B0, V_ST0), (S_B1, V_ST1))):
        a(f's_add_u32 s{sb}, s{S_T0}, {rb}')
        a(f's_cmp_lt_u32 s{sb}, 125')
        a(f's_cselect_b32 s{S_T1}, 0, 0x80000000')
        a(f'v_or_b32 v{vs}, s{S_T1}, v{V_L16}')
        a(f's_min_u32 s{sb}, s{sb}, 124')
        a(f's_add_u32 s{sb}, s{sb}, s{K.S_B125}')
        a(f's_lshl_b32 s{sb}, s{sb}, 15')
    def xload(i):
        rb, f = i >> 5, i & 31
        pre = []
        if f == 0: pre = [f's_add_u32 s{S_XO}, s{S_B1 if rb else S_B0}, {WS_XA}']
        elif f % 4 == 0: pre = [f's_add_u32 s{S_XO}, s{S_XO}, 4096']
        return pre + [(f'buffer_load_dwordx4 {ar(4*i,4)}, v{(V_ST1 if rb else V_ST0) if zinv else V_L16}, {SRD}, s{S_XO} offen offset:{(f%4)*1024} sc1', ('X', i))]
    a('s_waitcnt vmcnt(4)')
    a('s_barrier')
    run(rawdma(0, 1))
    a(f's_lshl_b32 s{S_WOFF}, s{S_CG}, 16')
    a(f's_add_u32 s{S_WOFF}, s{S_WOFF}, {WS_W}')
    a(f's_and_b32 s{S_T0}, s2, 3')
    a(f's_lshl_b32 s{S_M1}, s{S_T0}, 2')
    a(f's_lshr_b32 s{S_T2}, s2, 6')
    a(f's_add_u32 s{S_M1}, s{S_M1}, s{S_T2}')
    a(f's_and_b32 s{S_M0}, s2, 4')
    a(f's_lshl_b32 s{S_M0}, s{S_M0}, 1')
    a(f's_add_u32 s{S_M0}, s{S_M0}, s{S_CG}')
    a(f's_lshl_b32 s{S_U}, s{S_M1}, 4')
    a(f's_add_u32 s{S_U}, s{S_U}, s{S_M0}')
    a(f's_lshl_b32 s{S_M0}, s{S_M0}, 15')
    a(f's_add_u32 s{S_M0}, s{S_M0}, {WS_RL}')
    a(f's_lshl_b32 s{S_M1}, s{S_M1}, 15')
    a(f's_add_u32 s{S_M1}, s{S_M1}, {WS_T1}')
    c0 = -2.0 * 0.7978845608028654 * 1.4426950408889634
    a(f'v_mov_b32 v{V_C0}, {f2h(c0)}')
    a(f'v_mov_b32 v{V_C1}, {f2h(c0 * 0.044715)}')
    a(f'v_add_u32 v{V_RA}, {2*TILE}, v{V_L16}')
    for i in range(32): a(f'v_mov_b32 v{V_SS+i}, 0')
    a(f's_lshl_b32 s{S_T2}, s{S_CG}, 12')
    a(f's_add_u32 s46, s{S_B0}, s{S_T2}')
    a(f's_add_u32 s47, s{S_B1}, s{S_T2}')
    OS = {'g': 56, 'u': 58, 'q': 60, 'v': 52}
    for ty in 'guqv':
        for rb in range(2): a(f's_add_u32 s{OS[ty]+rb}, s{46+rb}, {obase[ty]}')
    a(f'v_lshrrev_b32 v{V_T0}, 3, v0')
    a(f'v_and_b32 v{V_T1}, 7, v0')
    a(f's_lshl_b32 s{S_T2}, s{S_CG}, 3')
    a(f's_add_u32 s{S_T2}, s{S_T2}, 64')
    a(f'v_add_u32 v113, s{S_T2}, v{V_T1}')
    a(f's_lshr_b32 s{S_T2}, s{S_U}, 5')
    a(f's_lshl_b32 s{S_T2}, s{S_T2}, 3')
    a(f'v_add_u32 v114, s{S_T2}, v{V_T1}')
    a(f'v_cmp_eq_u32 vcc, 1, v{V_T0}')
    a(f's_lshl_b32 s{S_T2}, s{K.S_SPLIT}, 4')
    a(f's_add_u32 s{S_T2}, s{S_T2}, {128 - 24}')
    a(f'v_cndmask_b32 v113, v113, v114, vcc')
    a(f'v_add_u32 v114, s{S_T2}, v0')
    a(f'v_subrev_u32 v115, 3, v{V_T0}')
    a(f'v_cmp_gt_u32 vcc, 2, v115')
    a(f's_mul_i32 s{S_T2}, s{S_CG}, 5')
    a(f's_add_u32 s{S_T2}, s{S_T2}, 206')
    a(f'v_cndmask_b32 v113, v113, v114, vcc')
    a(f'v_min_u32 v114, 6, v{V_T1}')
    a(f'v_add_u32 v114, s{S_T2}, v114')
    a(f'v_cmp_eq_u32 vcc, 2, v{V_T0}')
    a(f's_bfe_u32 s{S_T2}, s{S_U}, 0x30001')
    a(f's_add_u32 s{S_T2}, s{S_T2}, 192')
    a(f'v_cndmask_b32 v113, v113, v114, vcc')
    a(f'v_lshl_add_u32 v114, v{V_T1}, 3, s{S_T2}')
    a(f'v_subrev_u32 v115, 16, v0')
    a(f'v_cmp_gt_u32 vcc, 2, v115')
    a('s_nop 1')
    a(f'v_cndmask_b32 v113, v113, v114, vcc')
    a(f'v_lshlrev_b32 v113, 7, v113')
    PC = 92
    def p3dma():
        out = []
        for b, so in ((0, S_M0), (1, S_M1)):
            for h in range(2):
                pre = [f's_add_u32 m0, s{S_W8K}, {b * TILE + h*4096}', 's_nop 0']
                for i in range(4):
                    out.append(pre + [(f'buffer_load_dwordx4 v{V_DK1 if h else V_DK0}, {SRD}, s{so} offen offset:{i*1024} sc1 lds', 'p3')]); pre = []
        return out
    a(f's_and_b32 s{S_T2}, s{S_W}, 1')
    a(f's_lshl_b32 s{S_T2}, s{S_T2}, 10')
    a(f'v_add_u32 v30, s{S_T2}, v{V_L16}')
    a(f's_lshr_b32 s{S_T2}, s{S_W}, 1')
    a(f's_lshl_b32 s{S_T2}, s{S_T2}, 10')
    a(f'v_add_u32 v31, s{S_T2}, v{V_L16}')
    def p3step(j):
        b = V_STG + 8 * (j % 2)
        if 2 <= j < 18:
            a(f's_waitcnt lgkmcnt({min(15, q.need(("p3r", j - 2)))})')
            a(f'v_mfma_f32_16x16x32_bf16 {vr(PC,4)}, {vr(b,4)}, {vr(b+4,4)}, {vr(PC,4) if j > 2 else 0}')
        if j < 16:
            emit(f'ds_read_b128 {vr(b,4)}, v30 offset:{j*2048}', ('p3r', j))
            emit(f'ds_read_b128 {vr(b+4,4)}, v31 offset:{TILE + j*2048}', ('p3r', j))
        if j == 18:
            a(f's_lshl_b32 s{S_M0}, s{S_U}, 11')
            a(f's_lshl_b32 s{S_T2}, s{S_W}, 9')
            a(f's_add_u32 s{S_M0}, s{S_M0}, s{S_T2}')
            a(f's_add_u32 s{S_M0}, s{S_M0}, {WS_W + 16 * TILE}')
            a(f'v_lshlrev_b32 v30, 3, v0')
            a(f'v_add_u32 v{V_RA}, {2*TILE}, v30')
            a('s_nop 1')
            for i in range(2): a(f'v_cvt_pk_bf16_f32 v{PC+i}, v{PC+2*i}, v{PC+2*i+1}')
            emit(f'buffer_store_dwordx2 {vr(PC,2)}, v30, {SRD}, s{S_M0} offen sc1', 'p3s')

    stream = []
    for rb in range(2):
        for s in range(16):
            for n in range(2):
                for ch in range(2): stream.append((n, s, ch, rb))
    for n in range(2, 8):
        for f in range(32): stream.append((n, f & 15, f >> 4, None))
    NS = len(stream)
    def slot(G): return V_RING + 4 * (G % NR)
    def rd(G):
        n, s, ch, rb = stream[G]
        if seq[n] in 'gu':
            return [f'ds_read_b64_tr_b16 {vr(slot(G)+2*jj, 2)}, v{V_WT[half[n]]} offset:{s*4096 + jj*512 + ch*8}' for jj in range(2)]
        if seq[n] == 'v':
            o0 = (BUF[n] - 2) * 64 + (2 * s + ch) * 2
            return [f'ds_read2st64_b64 {vr(slot(G), 4)}, v{V_RA} offset0:{o0} offset1:{o0 + 1}']
        reg, off = {4: (V_WD, 0), 1: (V_L16, TILE), 3: (V_RA, TILE), 2: (V_RA, 0)}[BUF[n]]
        return [f'ds_read_b128 {vr(slot(G), 4)}, v{reg} offset:{off + (2 * s + ch) * 1024}']
    def mf(n, s, ch, rb, rh, G):
        x = ar(rb * 128 + (s * 2 + rh) * 4, 4); w = vr(slot(G), 4)
        if seq[n] in 'vg': d = vr(ACN[n] + 16 * rb + ch * 8 + rh * 4, 4); A, B = x, w
        else: d = vr(ACN[n] + 16 * rb + rh * 8 + ch * 4, 4); A, B = w, x
        return f'v_mfma_f32_16x16x32_bf16 {d}, {A}, {B}, {d if s else 0}'
    def mfmas(G):
        n, s, ch, rb = stream[G]
        if rb is not None: return [mf(n, s, ch, rb, rh, G) for rh in range(2)]
        R = [(0, 0), (0, 1), (1, 0), (1, 1)]
        if (s >> 1) & 1: R = R[::-1]
        out = []
        for (b, rh) in R[2 * (s & 1):2 * (s & 1) + 2]:
            for k in range(2): out.append(mf(n, (s & 14) + k, ch, b, rh, (G & ~1) + k))
        return out
    extra = [xload(i) for i in range(XPRE, 64)] + rawdma(2, 0) + rawdma(2, 1)
    pkrot = [0]; zrot = [0]
    def epilogue(n, rb):
        ty = seq[n]; ops = []
        for o in range(2):
            base = ACN[n] + 16 * rb + 8 * o
            if ty == 'u' and half[n] * 4 + rb * 2 + o >= 8 - defer: continue
            if ty in 'ug':
                def chain(e):
                    z = (V_Z + e if n > 1 else V_Z + 4 * n + e % 4); x = base + e
                    c = [(f'v_mul_f32 v{z}, v{x}, v{x}', 1), (f'v_fma_f32 v{z}, v{z}, v{V_C1}, v{V_C0}', 1), (f'v_mul_f32 v{z}, v{z}, v{x}', 1),
                         (f'v_exp_f32 v{z}, v{z}', 2), (f'v_add_f32 v{z}, 1.0, v{z}', 1), (f'v_rcp_f32 v{z}, v{z}', 2), (f'v_mul_f32 v{x}, v{x}, v{z}', 1)]
                    if ty == 'g':
                        c += [(f'v_add_f32 v{V_SS+16*rb+e}, v{V_SS+16*rb+e}, v{x}', 1), (f'v_fmac_f32 v{V_SS+16*rb+8+e}, v{x}, v{x}', 1)]
                    return c
                L = len(chain(0))
                for _, e, k in sorted(((2 if n > 1 else 4) * e + 2 * k, e, k) for e in range(8) for k in range(L)): ops.append(chain(e)[k] + (None,))
            if ty == 'u': continue
            pk = base if n else V_GP + 8 * rb + 4 * o
            so = OS[ty] + rb
            for i in range(4): ops.append((f'v_cvt_pk_bf16_f32 v{pk+i}, v{base+2*i}, v{base+2*i+1}', 1, None))
            vo = (V_HV + rb) if ty == 'g' else (V_ST1 if rb else V_ST0)
            if ty != 'u': ops.append((f'buffer_store_dwordx4 {vr(pk,4)}, v{vo}, {SRD}, s{so} offen offset:{half[n]*2048 + o*1024} {st_flags}', 2, ('st', ty)))
        return ops
    def stats_ops(rb):
        B = V_SS + 16 * rb; ops = []
        for i in range(8): ops.append((f'v_add_f32_dpp v{B+i}, v{B+i}, v{B+i} row_ror:8 row_mask:0xf bank_mask:0x3', 1, None))
        for i in range(8): ops.append((f'v_add_f32_dpp v{B+i}, v{B+8+i}, v{B+8+i} row_ror:8 row_mask:0xf bank_mask:0xc', 1, None))
        for i in range(4): ops.append((f'v_add_f32_dpp v{B+i}, v{B+i}, v{B+i} row_half_mirror row_mask:0xf bank_mask:0x5', 1, None))
        for i in range(4): ops.append((f'v_add_f32_dpp v{B+i}, v{B+4+i}, v{B+4+i} row_half_mirror row_mask:0xf bank_mask:0xa', 1, None))
        for pm in ('[2,3,0,1]', '[1,0,3,2]'):
            for i in range(4): ops.append((f'v_add_f32_dpp v{B+i}, v{B+i}, v{B+i} quad_perm:{pm} row_mask:0xf bank_mask:0xf', 1, None))
        ops.append((f'buffer_store_dwordx4 {vr(B,4)}, v{12 + 3*rb}, {SRD}, s{S_S0+rb} offen {st_flags}', 2, ('st', 'g')))
        return ops
    a(f'v_and_b32 v{V_T0}, 3, v0')
    a(f'v_cmp_eq_u32 vcc, 0, v{V_T0}')
    a(f'v_bfrev_b32 v{V_T1}, 1')
    a(f'v_and_b32 v{V_T0}, 12, v0')
    a(f'v_lshlrev_b32 v{V_T0}, 4, v{V_T0}')
    a(f'v_and_or_b32 v{V_T0}, v0, 48, v{V_T0}')
    for rb in range(2):
        a(f's_lshr_b32 s{S_S0+rb}, s{S_B1 if rb else S_B0}, 4')
        a(f's_lshl_b32 s{S_T2}, s{S_CG}, 8')
        a(f's_add_u32 s{S_S0+rb}, s{S_S0+rb}, s{S_T2}')
        a(f's_add_u32 s{S_S0+rb}, s{S_S0+rb}, {WS_ST}')
    a(f'v_cndmask_b32 v{V_T0}, v{V_T1}, v{V_T0}, vcc')
    for rb in range(2):
        a(f'v_and_b32 v{12+3*rb}, v{V_T1}, v{V_ST1 if rb else V_ST0}')
        a(f'v_or_b32 v{12+3*rb}, v{12+3*rb}, v{V_T0}')
    for rb, wv in ((0, 0), (1, 3)):
        a(f's_cmp_eq_u32 s{S_W}, {wv}')
        a(f's_cselect_b32 s{S_T2}, 0, 0x80000000')
        a(f'v_or_b32 v{V_HV+rb}, s{S_T2}, v{V_ST1 if rb else V_ST0}')
    a('s_waitcnt vmcnt(10)')
    a(f'v_cmp_ne_u32 vcc, s{S_TAG}, v27')
    a(f's_cbranch_vccnz {name}_fas')
    a(f'{name}_fak:')
    slows.append(('fa', 27, V_FL, S_XO))
    run([xload(i) for i in range(XPRE)])
    a(f'v_mov_b32 v{V_FL}, v113')
    st(43)
    for G in range(LA):
        for o in rd(G): emit(o, G)
    pend = []; lastw = {}; lasts = {}; forced = [0]
    pos = [0]
    def flush_one(op, tag):
        r, w = rw(op)
        prev = a.lines[-1].strip()
        if prev.startswith(('v_exp', 'v_rcp')) and (rw(prev)[1] & r): a('s_nop 0')
        for pv in a.lines[-2:]:
            pv = pv.strip()
            if pv.startswith('buffer_store') and (rw(pv)[0] & w): a('s_nop 1'); break
            if 'dpp' in op and pv.startswith('v_') and not pv.startswith('v_mfma') and (rw(pv)[1] & r): a('s_nop 1'); break
        emit(op, tag)
        for x in w: lastw[x] = pos[0]
        if op.startswith('buffer_store'):
            for x in r: lasts[x] = pos[0]
    def issue_ready(budget, window=28):
        i = 0; p = pos[0]
        while budget > 0 and i < min(window, len(pend)):
            rdy, op, c, tag, t = pend[i]
            r, w = rw(op)
            gap = 2 if 'dpp' in op else 1
            ok = rdy <= p and c <= budget and all(lastw.get(x, -9) + gap <= p for x in r) and all(lasts.get(x, -9) + 2 <= p for x in w)
            if ok:
                for j in range(i):
                    r2, w2 = rw(pend[j][1])
                    if (r & w2) or (w & r2) or (w & w2): ok = False; break
            if ok:
                pend.pop(i); flush_one(op, tag); budget -= c
            else: i += 1
    first_of = {n: min(i for i, it in enumerate(stream) if it[0] == n) for n in range(8)}
    last_of = {}
    for i, it in enumerate(stream):
        for rb in ((0, 1) if it[3] is None else (it[3],)): last_of[(it[0], rb)] = i
    done_at = {}; flagged = set()
    F3 = first_of[3]
    for G in range(NS):
        n, s, ch, rb = stream[G]
        if G in (0, 64): st(30 + G // 64)
        if G >= 128 and G % 32 == 0: st(30 + G // 32 - 2)
        if G == first_of[n]:
            while any((t is not None and ACN[t] == ACN[n]) or (ACN[n] == V_SS and (t is None or seq[t] == 'g')) for (_, _, _, _, t) in pend):
                _, op, _, tag, _ = pend.pop(0); flush_one(op, tag); forced[0] += 1
        w = []
        if n == 0 and ch == 0: w.append(f'vmcnt({min(63, vm.need(("X", 32 * rb + 2 * s + 1)))})')
        we = wait_every
        if G % we == 0: w.append(f'lgkmcnt({min(15, q.need(min(G + we - 1, NS - 1)))})')
        if w: a('s_waitcnt ' + ' '.join(w))
        mm = mfmas(G)
        for h, m in enumerate(mm):
            a(m)
            budget = 2
            ov = over if 'g' not in done_at else over2
            if ov and pos[0] % ov == 0: budget += 1
            if G + LA < NS and h < len(rd(G + LA)): emit(rd(G + LA)[h], G + LA); budget -= 1
            if h == len(mm) - 1 and (G + 1) % we == 0: budget -= 1
            if extra and h == len(mm) // 2 and (rb is None or G % 2 == 0 or G > fastx):
                run([extra.pop(0)]); budget = 0
            issue_ready(budget)
            pos[0] += 1
        for ty in 'gq':
            if ty not in done_at and G > last_of[(7 - seq[::-1].index(ty), 1)] and not any(p[3] == ('st', ty) for p in pend): done_at[ty] = G
        for ty, kind in (('g', 1), ('q', 2)):
            if ty in done_at and G == done_at[ty] + (fdelay if ty == 'g' else fdelayq):
                a(f's_waitcnt vmcnt({vm.need(("st", ty))})')
                a('s_barrier')
                flag(kind); flagged.add(kind); print('k2c flag', kind, 'at', G)
        def bar(tags):
            if tags: a(f's_waitcnt vmcnt({min(vm.need(t) for t in tags)})')
            a('s_barrier')
        if G == rp[0]:
            bar([('W', 0, 1)])
            flag(6)
        if G == rp[1]:
            a(f's_mov_b32 s46, {ZF + 6 * ZK}')
            emit(f'buffer_load_dword v27, v{V_FL}, {SRD}, s46 offen sc1', 'pollr')
        if G == first_of[2] - bar_back: bar([('W', 2, 1)])
        if G == first_of[2] - LA - 1:
            for r in V_WT: a(f'v_add_u32 v{r}, {2*TILE}, v{r}')
            a(f'v_add_u32 v{V_WD}, {4*TILE}, v{V_L16}')
        if G == rp[2]:
            assert G >= first_of[2]
            a(f's_waitcnt vmcnt({vm.need("pollr")})')
            a(f'v_cmp_ne_u32 vcc, s{S_TAG}, v27')
            a(f's_cbranch_vccnz {name}_frs')
            a(f'{name}_frk:')
            slows.append(('fr', 27, V_FL, 46))
            bar([])
            extra += p3dma() + dma(4)
        if G == rp[3]: bar(['p3'])
        if 0 <= G - rp[3] <= 18: p3step(G - rp[3])
        if G == first_of[4] - bar_back:
            assert G >= rp[3] + 17
            bar([('W', 4)])
            extra += dma(5)
        if G == rp[3] + 18 + pp[0]:
            bar(['p3s']); flag(0); flagged.add(0)
        if G == first_of[5] - bar_back: bar([('W', 5)])
        if G == rp[3] + 18 + pp[1]:
            a(f'v_and_b32 v{V_FL}, 31, v0')
            a(f'v_lshlrev_b32 v{V_FL}, 7, v{V_FL}')
            a(f's_lshl_b32 s{S_M1}, s{S_CG}, 12')
            a(f's_add_u32 s{S_M1}, s{S_M1}, {ZF}')
            emit(f'buffer_load_dword v27, v{V_FL}, {SRD}, s{S_M1} offen sc1', 'poll')
        if G == rp[3] + 18 + pp[2]:
            assert G > first_of[5] - bar_back
            a(f's_waitcnt vmcnt({vm.need("poll")})')
            a(f'v_cmp_ne_u32 vcc, s{S_TAG}, v27')
            a(f's_cbranch_vccnz {name}_p3slow')
            a(f'{name}_p3ok:')
            extra[:0] = dma(6) + dma(7)
        if G == first_of[6] - LA - 1: bar([('W', 6)])
        if G == first_of[7] - bar_back: bar([('W', 7)])
        if G - NS in hooks: extra += hooks[G - NS]() or []
        for (m, b), l in last_of.items():
            if l == G:
                ep = [(pos[0] + 7, op, c, tag, m) for op, c, tag in epilogue(m, b)]
                if seq[m] in 'qv':
                    pend[:0] = ep
                elif m == 0 and b == 1:
                    k = max([i for i, p in enumerate(pend) if p[4] == 0], default=-1) + 1
                    pend[k:k] = ep
                else:
                    pend += ep
                    if m == 1: pend += [(pos[0] + 7, op, c, tag, None) for op, c, tag in stats_ops(b)]
    print('k2m: forced', forced[0], 'tail', len(pend), 'done', done_at, 'extra left', len(extra))
    st(27); st(38)
    run(extra)
    a('s_nop 7')
    for _, op, _, tag, _ in pend: flush_one(op, tag)
    def slow():
        tagslow()
        a(f'{name}_p3slow:')
        a('s_sleep 2')
        a(f'buffer_load_dword v27, v{V_FL}, {SRD}, s{S_M1} offen sc1')
        a('s_waitcnt vmcnt(0)')
        a(f'v_cmp_ne_u32 vcc, s{S_TAG}, v27')
        a(f's_cbranch_vccnz {name}_p3slow')
        a(f's_branch {name}_p3ok')
    assert flagged == {0, 1, 2}
    return flag, slow
```

```python
from asmlib import *
from layout import *
from attn2 import LdsQ
from k2 import f2h, VmQ, code_prefetch

V_DK0, V_DK1, V_DV0, V_DV1, V_KA, V_VA, V_L16, V_L0, V_L1, V_MX, V_F0, V_F1, V_T0, V_T1, V_T2 = range(1, 16)
V_S, V_E, V_P, V_NEGM, V_RING = 16, 32, 48, 56, 64
V_PF, V_PFD, V_XO, V_FL = 116, 117, 118, 119
V_WT0, V_WT1, V_WD, V_FO = 6, 28, 29, 10
S_TAG = 75
S_GTILE, S_GGRP = 6, 7
S_TGT, S_UCM = 74, 73
S_X, S_OUTP, S_WS, S_SRD, S_SRX, S_SRO = 4, 6, 40, 8, 12, 16
(S_KOFF, S_VOFF, S_KDMA, S_VDMA, S_VRD, S_CNT, S_W, S_QB, S_SPLIT, S_T0, S_T1, S_VALID, S_GRP, S_W8K, S_PFOFF, S_T2) = range(20, 36)
S_TILE, S_B125, S_T3, S_T4 = 36, 37, 38, 39
S_WB0, S_WB1, S_WB2, S_WB3, S_UCO, S_WCO, S_FLO, S_PO = range(56, 64)
S_PFS, S_PFST, S_PH, S_XCC, S_SLOW, S_PB = 44, 45, 46, 47, 48, 54

def Obase(beta, qh): return 128 + 8 * (beta % 16) + 4 * qh
def Oreg(beta, qh): return vr(Obase(beta, qh), 4) if beta < 16 else ar(Obase(beta, qh), 4)

def gen_main(a, name, dma_gap=3, dma_cost=2, CAP=2, bar_pos=50, NR=13, LA=10, wait_every=4, THR=0x41800000,
             stamp=False, snake=True, prefetch=2, pf=True, pv_pace=4, pv_budget=6, out_flags='sc1', npf=0, fast_st='nt', flag_at=140, force_slow=True, tailst=False, pfill=False, st_pace=9, ld_pace=2, yc_budget=2, bg_pace=14, tailpf=1, tlb=True, pf_flags='sc1', uc_pace=4, chk_at=60, merged=True, gst=False, pst=False, pairmap=False, bcast=True, zinv=True, relief=False, prew2=True, nobr2=True, cmp_early=False, tail=4, t5=(3, 4, 4, 4, 16, 3), sizes4=(33, 32, 31, 29), pf_late=False, xinit=True, xi_pre=8, jit=0, slp=2, pf_wg=0, o2={}, hk=(-84, -62, -30, -15), qearly=14, vchk=16, dbg=(), dbgout=False, spin=None, brgap=3, chain=True, poll_after=8, r_pace=5, chk2_at=0, noyc=False, ld_per_st=0, flag_after=0, rounds=((56, 3), (112, 3))):
    SRD, SRX, SRO = [f's[{b}:{b+3}]' for b in (S_SRD, S_SRX, S_SRO)]
    def st(i, cyc=False):
        if jit and not cyc and i not in (0,):
            lab = a.label(name + '_jit')
            a(f's_mul_i32 s100, s2, {2654435761 * (i + jit) % (1 << 31)}')
            a(f's_mul_i32 s101, s{S_W}, {40503 * (i + 3) * jit}')
            a('s_add_u32 s100, s100, s101')
            a('s_lshr_b32 s100, s100, 26')
            a('s_cmp_lt_u32 s100, 44')
            a(f's_cbranch_scc1 {lab}')
            a(f'{lab}l:')
            a('s_sleep 16')
            a('s_sub_u32 s100, s100, 1')
            a('s_cmp_gt_u32 s100, 43')
            a(f's_cbranch_scc1 {lab}l')
            a(f'{lab}:')
        gs = [1, 2, 3, 4, 5, 6, 8, 9, 12, 13, 14, 15]
        if i >= 40:
            if i == 43: i = 10
            elif pst: i = [4, 5, 6][i - 40]
            else: return
        elif pst and i in (4, 5, 6): return
        if i >= 30:
            if not gst: return
            i = gs[i - 30]; cyc = True
        elif gst and i in gs: return
        if tailst and 10 <= i <= 14: return
        if 20 <= i < 26:
            if not tailst: return
            i -= 10
        if i >= 26: i -= 16
        if stamp:
            a(f'{"s_memtime" if cyc else "s_memrealtime"} s[100:101]')
            a('s_waitcnt lgkmcnt(0)')
            a(f's_mov_b32 s{80+i}, s100')
    kernel_begin(a, name)
    a(f's_cmp_ge_u32 s2, 256\n s_cbranch_scc1 {name}_end')
    a('s_load_dwordx16 s[56:71], s[0:1], 0')
    a('s_load_dwordx8 s[72:79], s[0:1], 64')
    st(0)
    def codepf():
        if not pf_late: return
        _codepf('v_lshl_add_u32 v251, s26, 6, v0')
    def _codepf(tid):
        a(tid)
        a(f's_getpc_b64 s[42:43]')
        a(f'{name}_pc:')
        a(f's_sub_u32 s42, s42, {name}_pc-{name}')
        a(f's_subb_u32 s43, s43, 0')
        a(f's_lshr_b32 s44, s2, 3')
        a(f's_mul_i32 s44, s44, 3072')
        a(f'v_subrev_u32 v13, 192, v251')
        a(f'v_cmp_gt_u32 vcc, 24, v13')
        a(f'v_lshlrev_b32 v13, 7, v13')
        a(f'v_add_u32 v13, s44, v13')
        a(f'v_min_u32 v13, {name}_end-{name}-4, v13')
        a(f's_and_saveexec_b64 s[44:45], vcc')
        a(f's_cbranch_execz {name}_nopf')
        a(f'global_load_dword v250, v13, s[42:43]')
        a(f'{name}_nopf:')
        a(f's_mov_b64 exec, s[44:45]')
    if not pf_late: _codepf('v_mov_b32 v251, v0')
    a(f'v_lshrrev_b32 v{V_T0}, 6, v0')
    a(f'v_cmp_gt_u32 vcc, 32, v0')
    a(f'v_bfrev_b32 v{V_T1}, 1')
    a(f'v_lshlrev_b32 v{V_T2}, 2, v0')
    a(f'v_and_b32 v0, 63, v0')
    a(f'v_readfirstlane_b32 s{S_W}, v{V_T0}')
    a(f'v_lshlrev_b32 v{V_L16}, 4, v0')
    a(f'v_cndmask_b32 v{V_FO}, v{V_T1}, v{V_T2}, vcc')
    a(f's_and_b32 s{S_T0}, s2, 7')
    a(f's_lshr_b32 s{S_T1}, s2, 3')
    a(f's_and_b32 s{S_SPLIT}, s{S_T1}, 3')
    a(f's_lshr_b32 s{S_T1}, s{S_T1}, 2')
    a(f's_lshl_b32 s{S_PFOFF}, s{S_T1}, 2')
    a(f's_and_b32 s{S_TILE}, s{S_T0}, 3')
    a(f's_lshl_b32 s{S_TILE}, s{S_TILE}, 3')
    a(f's_add_u32 s{S_TILE}, s{S_TILE}, s{S_T1}')
    a(f's_lshr_b32 s{S_T0}, s{S_T0}, 2')
    a(f's_lshl_b32 s{S_GRP}, s{S_T0}, 5')
    a(f's_add_u32 s{S_GRP}, s{S_GRP}, s{S_TILE}')
    a(f's_mov_b32 s{S_GTILE}, s{S_TILE}')
    a(f's_mov_b32 s{S_GGRP}, s{S_GRP}')
    a(f's_mul_i32 s{S_B125}, s{S_T0}, 125')
    ucst = []
    def late_setup():
        if pairmap:
            a(f's_lshr_b32 s{S_T1}, s2, 4')
            a(f's_lshl_b32 s{S_PFOFF}, s{S_T1}, 2')
            a(f's_and_b32 s{S_TILE}, s2, 2')
            a(f's_lshl_b32 s{S_TILE}, s{S_TILE}, 3')
            a(f's_add_u32 s{S_TILE}, s{S_TILE}, s{S_T1}')
            a(f's_and_b32 s{S_GRP}, s{S_GRP}, 32')
            a(f's_add_u32 s{S_GRP}, s{S_GRP}, s{S_TILE}')
            a(f's_bfe_u32 s{S_SPLIT}, s2, 0x10003')
            a(f's_and_b32 s{S_T1}, s2, 1')
            a(f's_lshl1_add_u32 s{S_SPLIT}, s{S_T1}, s{S_SPLIT}')
        a(f's_lshl_b32 s{S_QB}, s{S_TILE}, 2')
        a(f's_add_u32 s{S_QB}, s{S_QB}, s{S_W}')
        a(f's_cmp_lt_u32 s{S_QB}, 125')
        a(f's_cselect_b32 s{S_VALID}, 0, 0x80000000')
        a(f's_min_u32 s{S_QB}, s{S_QB}, 124')
        a(f's_add_u32 s{S_QB}, s{S_QB}, s{S_B125}')
        assert sum(sizes4) == 125
        starts = [sum(sizes4[:i]) for i in range(4)]
        a(f's_lshl_b32 s{S_KOFF}, s{S_SPLIT}, 3')
        a(f's_lshr_b32 s{S_T1}, {hex(sum(v << (8*i) for i, v in enumerate(starts)))}, s{S_KOFF}')
        a(f's_and_b32 s{S_T1}, s{S_T1}, 255')
        a(f's_add_u32 s{S_T1}, s{S_T1}, s{S_B125}')
        a(f's_lshr_b32 s{S_CNT}, {hex(sum((v - 2) << (8*i) for i, v in enumerate(sizes4)))}, s{S_KOFF}')
        a(f's_and_b32 s{S_CNT}, s{S_CNT}, 255')
        a(f's_lshl_b32 s{S_KOFF}, s{S_T1}, 15')
        a(f's_add_u32 s{S_VOFF}, s{S_KOFF}, {WS_VT}')
        if WS_XA: a(f's_add_u32 s{S_KOFF}, s{S_KOFF}, {WS_XA}')
        codepf()
    vm = VmQ()
    def emit(o, tag=None):
        a(o)
        if o.startswith('buffer_'): vm.issue(tag)
    def dma_ops(v0, v1, soff, sbase):
        ops = []
        for g in range(2):
            for i in range(4):
                pre = None
                if i == 0:
                    pre = f's_mov_b32 m0, s{sbase}' if g == 0 else f's_add_u32 m0, s{sbase}, 4096'
                ops.append((pre, f'buffer_load_dwordx4 v{v0 if g == 0 else v1}, {SRD}, s{soff} offen offset:{i*1024} sc1 lds'))
        return ops
    def emit_dma_now(tag, *args):
        for pre, op in dma_ops(*args):
            if pre: a(pre); a('s_nop 0')
            emit(op, tag)
    def xreduce(regs, op, tmp):
        for sw in ('v_permlane16_swap_b32', 'v_permlane32_swap_b32'):
            for i, r in enumerate(regs): a(f'v_mov_b32 v{tmp+i}, v{r}')
            if len(regs) < 3: a('s_nop 1')
            else: a('s_nop 0')
            for i, r in enumerate(regs): a(f'{sw} v{tmp+i}, v{r}')
            a('s_nop 1')
            for i, r in enumerate(regs): a(f'{op} v{r}, v{r}, v{tmp+i}')

    import k2z, sys
    a(f's_lshl_b32 s{S_W8K}, s{S_W}, 13')
    a(f'v_add_u32 v{V_DK0}, s{S_W8K}, v{V_L16}')
    a(f'v_add_u32 v{V_DK1}, 4096, v{V_DK0}')
    GN = 3 * TILE; GS = 584; CV = GN + 64 * GS; CS = 144; TB = CV + 20480
    S_VF = [42, 43, 49]; S_B10 = [50, 51, 45]; S_BT, S_RT = 63, 55
    S_CG = 64
    V_PL, V_PQ, V_HD = 26, 27, 28
    STL = [[112, 116], [120, 124], [164, 172]]
    def poll_ops(first_expr, ngrp, kind, dst, tag):
        pass
    def slowpoll(lab, dst, vo, so):
        slows.append((lab, dst, vo, so))
    slows = []
    def h_poll1():
        a(f's_lshr_b32 s{S_BT}, s{S_GTILE}, 1')
        a(f'v_lshrrev_b32 v13, 3, v0')
        a(f's_sub_u32 s{S_T3}, s{S_BT}, 1')
        a(f'v_add_u32 v11, s{S_T3}, v13')
        a(f'v_med3_i32 v11, v11, 0, 15')
        a(f's_lshr_b32 s{S_T3}, s{S_KOFF}, 15')
        a(f's_sub_u32 s{S_T3}, s{S_T3}, s{S_B125}')
        a(f'v_cmp_lt_u32 vcc, 2, v13')
        a(f'v_and_b32 v13, 1, v13')
        a(f'v_add_u32 v13, s{S_T3}, v13')
        a(f'v_lshrrev_b32 v13, 3, v13')
        a(f'v_cndmask_b32 v11, v11, v13, vcc')
        a(f'v_and_b32 v13, 7, v0')
        a(f'v_lshl_add_u32 v11, v11, 3, v13')
        a(f'v_lshlrev_b32 v11, 7, v11')
        a(f's_and_b32 s{S_T3}, s{S_GRP}, 32')
        a(f's_lshl_b32 s{S_T3}, s{S_T3}, 9')
        a(f's_add_u32 s{S_T3}, s{S_T3}, {ZF + ZK}')
        emit(f'buffer_load_dword v{V_PL}, v11, {SRD}, s{S_T3} offen sc1', 'poll1')
    def chk(lab, dst, vo, so, tag):
        a(f's_waitcnt vmcnt({vm.need(tag)})')
        a(f'v_cmp_ne_u32 vcc, s{S_TAG}, v{dst}')
        a(f's_cbranch_vccnz {name}_{lab}s')
        a(f'{name}_{lab}k:')
        slows.append((lab, dst, vo, so))
    def h_loads1():
        chk('f1', V_PL, 11, S_T3, 'poll1')
        out = []
        for rnd in range(3):
            pre = [f's_lshl_b32 s{S_T4}, s{S_BT}, 3']
            if rnd < 2: pre.append(f's_add_u32 s{S_B10[rnd]}, s{S_W}, {4*rnd}')
            else: pre += [f's_cmp_lt_u32 s{S_W}, 2', f's_cselect_b32 s{S_T3}, 8, 4', f's_add_u32 s{S_B10[2]}, s{S_W}, s{S_T3}']
            pre += [f's_add_u32 s{S_T3}, s{S_T4}, s{S_B10[rnd]}', f's_sub_u32 s{S_T3}, s{S_T3}, 1', f's_cmp_lt_u32 s{S_T3}, 125',
                    f's_cselect_b32 s{S_VF[rnd]}, 1.0, 0', f's_cselect_b32 s{S_T3}, s{S_T3}, s{S_T4}', f's_add_u32 s{S_T3}, s{S_T3}, s{S_B125}',
                    f's_lshl_b32 s{S_T3}, s{S_T3}, 11', f's_add_u32 s{S_T3}, s{S_T3}, {WS_ST}']
            for h in range(2):
                out.append(pre + [(f'buffer_load_dwordx4 {vr(STL[rnd][h],4)}, v{V_L16}, {SRD}, s{S_T3} offen offset:{h*1024} sc1', 'st')]); pre = []
        pre = [f's_and_b32 s{S_PH}, s{S_W}, 1', f's_mul_i32 s{S_T3}, s{S_PH}, 9', f's_add_u32 s{S_T3}, s{S_T3}, s{S_T4}', f's_sub_u32 s{S_T3}, s{S_T3}, 1',
               f's_cmp_lt_u32 s{S_T3}, 125', f's_cselect_b32 s{S_T3}, s{S_T3}, s{S_T4}', f's_add_u32 s{S_T3}, s{S_T3}, s{S_B125}', f's_lshl_b32 s{S_T3}, s{S_T3}, 15',
               f's_lshr_b32 s{S_XCC}, s{S_W}, 1', f's_lshl1_add_u32 s{S_XCC}, s{S_CG}, s{S_XCC}', f's_lshl_b32 s{S_XCC}, s{S_XCC}, 11', f's_add_u32 s{S_T3}, s{S_T3}, s{S_XCC}',
               f's_xor_b32 s{S_XCC}, s{S_PH}, 1', f's_lshl_b32 s{S_XCC}, s{S_XCC}, 3', f's_add_u32 s{S_T3}, s{S_T3}, s{S_XCC}', f's_add_u32 s{S_T3}, s{S_T3}, {WS_G}']
        for ch in range(2):
            out.append(pre + [(f'buffer_load_dwordx2 {vr(V_HD+2*ch,2)}, v{V_L16}, {SRD}, s{S_T3} offen offset:{ch*1024} sc1', 'st')]); pre = []
        return h_k0() + out
    def h_k0():
        out = []
        first = [f's_mov_b32 s{S_KDMA}, s{S_W8K}']
        for pre, op in dma_ops(V_DK0, V_DK1, S_KOFF, S_KDMA):
            out.append(first + ([pre, 's_nop 0'] if pre else []) + [(op, 'K0')]); first = []
        pre = [f's_mul_i32 s{S_T4}, s{S_CG}, 20480', f's_mul_i32 s{S_XCC}, s{S_W}, 5120', f's_add_u32 s{S_T4}, s{S_T4}, s{S_XCC}',
               f's_add_u32 s{S_T4}, s{S_T4}, {WS_DWT}', f's_add_u32 m0, s{S_XCC}, {CV}', 's_nop 0']
        for i in range(5):
            if i == 4: pre = [f's_add_u32 s{S_T4}, s{S_T4}, 4096', f's_add_u32 m0, s{S_XCC}, {CV + 4096}', 's_nop 0']
            out.append(pre + [(f'buffer_load_dwordx4 v{V_L16}, {SRD}, s{S_T4} offen offset:{(i%4)*1024} sc1 lds', 'K0')]); pre = []
        return out
    def h_pollq():
        a(f's_lshr_b32 s{S_BT}, s{S_GTILE}, 1')
        a(f's_lshr_b32 s{S_RT}, s{S_GRP}, 1')
        a(f's_mov_b32 s{S_PFS}, {f2h(1/512)}')
        assert hk[2] > hk[1]
        a(f'v_and_b32 v11, 7, v0')
        a(f'v_lshlrev_b32 v11, 7, v11')
        a(f's_lshl_b32 s{S_SLOW}, s{S_RT}, 10')
        a(f's_add_u32 s{S_SLOW}, s{S_SLOW}, {ZF + 2 * ZK}')
        emit(f'buffer_load_dword v{V_PQ}, v11, {SRD}, s{S_SLOW} offen sc1', 'pollq')
    assert hk[1] > -68
    def h_k1():
        out = []
        first = [f's_add_u32 s{S_KOFF}, s{S_KOFF}, {TILE}', f's_add_u32 s{S_KDMA}, s{S_KDMA}, {TILE}']
        for pre, op in dma_ops(V_DK0, V_DK1, S_KOFF, S_KDMA):
            out.append(first + ([pre, 's_nop 0'] if pre else []) + [(op, 'K1')]); first = []
        out[-1].append(f's_add_u32 s{S_KOFF}, s{S_KOFF}, {TILE}')
        return out
    VQ = 14
    def qload(f):
        pre = []
        if f == 0: pre = [f's_lshl_b32 s{S_T4}, s{S_QB}, 15', f's_add_u32 s{S_T4}, s{S_T4}, {WS_Q}']
        elif f % 4 == 0: pre = [f's_add_u32 s{S_T4}, s{S_T4}, 4096']
        return pre + [(f'buffer_load_dwordx4 {ar(4*f,4)}, v{V_L16}, {"s[76:79]" if zinv else SRD}, s{S_T4} offen offset:{(f%4)*1024} sc1', ('Q', f))]
    def h_q():
        chk('fq', V_PQ, 11, S_SLOW, 'pollq')
        a(f's_mov_b32 s76, s{S_WS}\n s_mov_b32 s77, s{S_WS+1}')
        a(f's_cmp_eq_u32 s{S_VALID}, 0')
        a(f's_cselect_b32 s78, {WS_SIZE}, 0')
        return [qload(f) for f in range(qearly)]
    assert hk[3] >= -15 and qearly <= -hk[3] - 1
    hooks = {hk[0]: h_poll1, hk[1]: h_loads1, hk[2]: h_pollq, -39: h_k1, hk[3]: h_q}
    flagf, p3slow = k2z.rg4(a, name, sys.modules[__name__], st, stamp, vm, hooks, slows, late_setup, **o2)
    AT = [[64, 68, 72, 76, 80, 84, 88, 92, 16, 20], [128, 132, 136, 140, 144, 148, 152, 156, 180, 188]]
    UACC = [192, 224]
    def gfrag(T, rb, ch): return (96 + 8 * rb + 4 * ch) if T == 0 else (160 + 16 * rb + 8 * ch)
    bg = []
    for f in range(qearly, 32): bg += qload(f)
    def bg_dma(tag, *args, **kw):
        for pre, op in dma_ops(*args, **kw):
            if pre: bg.append(pre); bg.append('s_nop 0')
            bg.append((op, tag))
    bgc = [0]
    def bgone():
        while bg:
            o = bg.pop(0)
            if isinstance(o, tuple):
                emit(*o); return
            a(o)
    def c(o, every=bg_pace):
        a(o); bgc[0] += 1
        if bgc[0] % every == 0: bgone()
    for _ in range(4): bgone()
    defer = o2.get('defer', 0)
    for idx in range(8 - defer, 8):
        base = UACC[idx >> 2] + 8 * (idx & 3); Z = 64
        for i in range(4): c(f'v_pk_mul_f32 {vr(Z+2*i,2)}, {vr(base+2*i,2)}, {vr(base+2*i,2)}')
        for i in range(4): c(f'v_pk_fma_f32 {vr(Z+2*i,2)}, {vr(Z+2*i,2)}, v[8:9], v[8:9] op_sel:[0,1,0] op_sel_hi:[1,1,0]')
        for i in range(4): c(f'v_pk_mul_f32 {vr(Z+2*i,2)}, {vr(Z+2*i,2)}, {vr(base+2*i,2)}')
        for i in range(8): c(f'v_exp_f32 v{Z+i}, v{Z+i}')
        for i in range(4): c(f'v_pk_add_f32 {vr(Z+2*i,2)}, {vr(Z+2*i,2)}, 1.0 op_sel_hi:[1,0]')
        for i in range(8): c(f'v_rcp_f32 v{Z+i}, v{Z+i}')
        for i in range(4): c(f'v_pk_mul_f32 {vr(base+2*i,2)}, {vr(base+2*i,2)}, {vr(Z+2*i,2)}')
    SC = 56
    a(f's_waitcnt vmcnt({vm.need("st")})')
    X = [STL[r][0] for r in range(3)]; Yr = [STL[r][1] for r in range(3)]
    for r in range(3):
        for i in range(4): c(f'v_add_f32 v{X[r]+i}, v{X[r]+i}, v{Yr[r]+i}')
    a(f'v_lshrrev_b32 v{V_T0}, 5, v0')
    a(f'v_bfe_u32 v{V_T1}, v0, 4, 1')
    for r in range(3):
        for i in (0, 2): a(f'v_permlane32_swap_b32 v{X[r]+i}, v{X[r]+i+1}')
    for r in range(3):
        for i in (0, 2): a(f'v_add_f32 v{X[r]+i}, v{X[r]+i}, v{X[r]+i+1}')
    a(f'v_lshl_add_u32 v{V_T0}, v{V_T1}, 1, v{V_T0}')
    a(f'v_and_b32 v{V_T1}, 7, v0')
    for r in range(3): a(f'v_permlane16_swap_b32 v{X[r]}, v{X[r]+2}')
    for r in range(3): a(f'v_add_f32 v{X[r]}, v{X[r]}, v{X[r]+2}')
    a(f'v_lshlrev_b32 v{V_T0}, 2, v{V_T0}')
    a(f'v_lshl_add_u32 v{V_T0}, v{V_T1}, 4, v{V_T0}')
    for r in range(3): a(f'v_mov_b32_dpp v{X[r]+1}, v{X[r]} row_ror:8 row_mask:0xf bank_mask:0xf')
    for r in range(3): c(f'v_mul_f32 v{X[r]}, {f2h(1/512)}, v{X[r]}')
    for r in range(3): c(f'v_mul_f32 v{X[r]+2}, v{X[r]}, v{X[r]}')
    for r in range(3): c(f'v_fma_f32 v{X[r]+1}, v{X[r]+1}, s{S_PFS}, -v{X[r]+2}')
    for r in range(3): c(f'v_max_f32 v{X[r]+1}, 0, v{X[r]+1}')
    for r in range(3): c(f'v_add_f32 v{X[r]+1}, {f2h(1e-5)}, v{X[r]+1}')
    for r in range(3): c(f'v_rsq_f32 v{X[r]+1}, v{X[r]+1}')
    for r in range(3):
        a(f's_lshl_b32 s{S_T0}, s{S_B10[r]}, 8')
        a(f's_add_u32 s{S_T0}, s{S_T0}, {TB}')
        a(f'v_add_u32 v{X[r]+3}, s{S_T0}, v{V_T0}')
    for r in range(3): c(f'v_mul_f32 v{X[r]+1}, s{S_VF[r]}, v{X[r]+1}')
    for r in range(3): c(f'v_mul_f32 v{X[r]}, -v{X[r]}, v{X[r]+1}')
    a('s_mov_b32 exec_lo, 0x00ff00ff')
    a('s_mov_b32 exec_hi, 0x00ff00ff')
    for r in range(3):
        a(f'ds_write_b32 v{X[r]+3}, v{X[r]+1}')
        a(f'ds_write_b32 v{X[r]+3}, v{X[r]} offset:128')
    a('s_mov_b64 exec, -1')
    A_NW, A_TR, A_HW, A_HT, A_BR, A_CW, A_CR = 5, 6, 8, 9, 11, 12, 15
    a(f'v_and_b32 v{V_T0}, 15, v0')
    a(f'v_lshrrev_b32 v{V_T1}, 4, v0')
    a(f'v_mul_u32_u24 v{A_HW}, {GS}, v{V_T0}')
    a(f'v_lshl_add_u32 v{A_HW}, v{V_T1}, 3, v{A_HW}')
    a(f's_lshl_b32 s{S_T0}, s{S_W}, 7')
    a(f's_add_u32 s{S_T0}, s{S_T0}, {GN}')
    a(f'v_add_u32 v{A_NW}, s{S_T0}, v{A_HW}')
    a(f's_lshr_b32 s{S_T2}, s{S_W}, 1')
    a(f's_mul_i32 s{S_T2}, s{S_T2}, {32*GS}')
    a(f's_mul_i32 s{S_T3}, s{S_PH}, {68*8}')
    a(f's_add_u32 s{S_T2}, s{S_T2}, s{S_T3}')
    a(f's_add_u32 s{S_T2}, s{S_T2}, {GN}')
    a(f'v_add_u32 v{A_HW}, s{S_T2}, v{A_HW}')
    a(f'v_lshlrev_b32 v{A_HT}, 4, v{V_T1}')
    a(f's_lshl_b32 s{S_T2}, s{S_W}, 9')
    a(f's_add_u32 s{S_T2}, s{S_T2}, {TB + 256}')
    a(f'v_add_u32 v{A_TR}, s{S_T2}, v{A_HT}')
    a(f's_mul_i32 s{S_T2}, s{S_PH}, {9*256 - 64}')
    a(f's_add_u32 s{S_T2}, s{S_T2}, {TB + 64}')
    a(f'v_add_u32 v{A_HT}, s{S_T2}, v{A_HT}')
    a(f'v_lshrrev_b32 v{A_CW}, 2, v0')
    a(f'v_and_b32 v{V_T0}, 3, v0')
    a(f'v_mul_u32_u24 v{A_BR}, {GS}, v{A_CW}')
    a(f'v_lshl_add_u32 v{A_BR}, v{V_T0}, 5, v{A_BR}')
    a(f'v_add_u32 v{A_BR}, s{S_T0}, v{A_BR}')
    a(f'v_and_b32 v{A_CW}, 3, v{A_CW}')
    a(f'v_lshl_add_u32 v{A_CW}, v{V_T1}, 3, v{A_CW}')
    a(f'v_mul_u32_u24 v{A_CW}, {CS}, v{A_CW}')
    a(f's_mul_i32 s{S_T2}, s{S_W}, {32*CS}')
    a(f's_add_u32 s{S_T2}, s{S_T2}, {CV}')
    a(f'v_add_u32 v{A_CW}, s{S_T2}, v{A_CW}')
    a(f'v_lshl_add_u32 v{A_CR}, v{V_T0}, 3, v{A_CW}')
    a(f'v_lshl_add_u32 v{A_CW}, v{V_T0}, 5, v{A_CW}')
    a('s_waitcnt lgkmcnt(0)')
    a('s_barrier')
    st(12)
    lq = LdsQ()
    a(f'v_add_u32 v{V_T0}, {CV}, v{V_L16}')
    twr = [f'ds_read_b128 {vr(AT[i//10][i%10],4)}, v{V_T0} offset:{i*1024}' for i in range(20)]
    units = [('h',)] + [(rb, hf) for rb in range(2) for hf in range(2)]
    def tread(n):
        t = 112 + 8 * (n % 2); u = units[n]
        ad, off = (A_HT, 0) if u[0] == 'h' else (A_TR, u[0] * 256 + u[1] * 64)
        a(f'ds_read_b128 {vr(t,4)}, v{ad} offset:{off}'); lq.issue(('t', n))
        a(f'ds_read_b128 {vr(t+4,4)}, v{ad} offset:{off + 128}'); lq.issue(('t', n))
    tread(0)
    for n, u in enumerate(units):
        if n + 1 < len(units): tread(n + 1)
        t = 112 + 8 * (n % 2)
        a(f's_waitcnt lgkmcnt({lq.need(("t", n))})')
        for _ in range(4): a(twr.pop(0)); lq.issue('tw')
        for T in range(1 if u[0] == 'h' else 2):
            src = lambda ch: (V_HD + 2 * ch) if u[0] == 'h' else gfrag(T, u[0], ch) + 2 * u[1]
            for ch in range(2):
                for i in range(2):
                    c(f'v_lshlrev_b32 v{SC+4*ch+2*i}, 16, v{src(ch)+i}')
                    c(f'v_and_b32 v{SC+4*ch+2*i+1}, 0xffff0000, v{src(ch)+i}')
            for ch in range(2):
                for i in range(2): c(f'v_pk_fma_f32 {vr(SC+4*ch+2*i,2)}, {vr(SC+4*ch+2*i,2)}, {vr(t+2*i,2)}, {vr(t+4+2*i,2)}')
            for ch in range(2):
                for i in range(2): c(f'v_cvt_pk_bf16_f32 v{src(ch)+i}, v{SC+4*ch+2*i}, v{SC+4*ch+2*i+1}')
                if u[0] == 'h': a(f'ds_write_b64 v{A_HW}, {vr(src(ch),2)} offset:{ch*16*GS}')
                else: a(f'ds_write_b64 v{A_NW}, {vr(src(ch),2)} offset:{(32*T + 16*ch)*GS + (4 + 8*u[0] + 4*u[1])*8}')
                lq.issue('w')
    a(f's_waitcnt vmcnt({vm.need(("st", "v"))}) lgkmcnt(0)')
    a('s_barrier')
    flagf(3)
    st(13)
    BR = [32, 96]
    def acc(gi, aa): return [[56, 60, 120, 124], [24, 28, 176, 184]][gi & 1][aa]
    def breads(gi): return [(f'ds_read_b64 {vr(BR[gi&1]+2*e,2)}, v{A_BR} offset:{gi*16*GS + e*8}', ('b', gi, e)) for e in range(12)]
    for o, t in breads(0): a(o); lq.issue(t)
    CF = 160; PKc = 176
    def mult(T):
        for fr in range(4):
            rb, rh = fr >> 1, fr & 1
            cc = CF + 4 * fr; u = UACC[T] + 16 * rb + 8 * rh; ub = 64 + 8 * (fr & 1)
            a(f's_waitcnt lgkmcnt({min(15, lq.need(("tr", T, fr)))})')
            for i in range(4):
                c(f'v_lshlrev_b32 v{ub+2*i}, 16, v{cc+i}')
                c(f'v_and_b32 v{ub+2*i+1}, 0xffff0000, v{cc+i}')
            for i in range(4): c(f'v_pk_mul_f32 {vr(ub+2*i,2)}, {vr(ub+2*i,2)}, {vr(u+2*i,2)}')
            for i in range(4): c(f'v_cvt_pk_bf16_f32 v{u+i}, v{ub+2*i}, v{ub+2*i+1}')
            ucst.append(f'buffer_store_dwordx4 {vr(u,4)}, v{3+rb}, {SRD}, s{58+rb} offen offset:{T*2048 + rh*1024} sc1')
    def finish(gi):
        T, ch = gi >> 1, gi & 1; ops = []
        for p in range(2):
            pk = acc(gi, 2 * p); b1 = acc(gi, 2 * p + 1)
            ops += [(f'v_cvt_pk_bf16_f32 v{pk}, v{pk}, v{pk+1}', None), (f'v_cvt_pk_bf16_f32 v{pk+1}, v{pk+2}, v{pk+3}', None),
                    (f'v_cvt_pk_bf16_f32 v{pk+2}, v{b1}, v{b1+1}', None), (f'v_cvt_pk_bf16_f32 v{pk+3}, v{b1+2}, v{b1+3}', None),
                    (f'ds_write_b128 v{A_CW}, {vr(pk,4)} offset:{ch*4*CS + 16*p}', 'cw')]
        if ch == 1:
            for fr in range(4):
                for jj in range(2): ops.append((f'ds_read_b64_tr_b16 {vr(CF+4*fr+2*jj,2)}, v{A_CR} offset:{jj*4*CS + fr*32}', ('tr', T, fr)))
        return ops
    for gi in range(4):
        T, ch = gi >> 1, gi & 1
        side = (breads(gi + 1) if gi < 3 else []) + (finish(gi - 1) if gi else [])
        if gi == 3: side = [('s_nop 0', None)] * 3 + side
        for dl in range(9):
            if dl % 3 == 0: a(f's_waitcnt lgkmcnt({min(15, lq.need(("b", gi, dl + 5)))})')
            ar_ = AT[T][5 * ch + dl // 2] + 2 * (dl & 1)
            for aa in range(4):
                d = vr(acc(gi, aa), 4)
                c(f'v_mfma_f32_4x4x4_16b_bf16 {d}, {vr(ar_,2)}, {vr(BR[gi&1]+2*(aa+dl),2)}, {d if dl else 0}', bg_pace // 2)
                if side:
                    o, t = side.pop(0); a(o)
                    if o.startswith('ds_'): lq.issue(t)
        assert not side
    mult(0)
    for o, t in finish(3):
        a(o)
        if o.startswith('ds_'): lq.issue(t)
    while bg: bgone()
    a(f's_sub_u32 s{S_T0}, s{S_VOFF}, {WS_VT}')
    a(f's_lshr_b32 s{S_T0}, s{S_T0}, 15')
    a(f's_sub_u32 s{S_T0}, s{S_T0}, s{S_B125}')
    a(f's_add_u32 s{S_T2}, s{S_T0}, s{S_CNT}')
    a(f's_add_u32 s{S_T2}, s{S_T2}, 1')
    a(f's_lshr_b32 s{S_T0}, s{S_T0}, 3')
    a(f's_lshr_b32 s{S_T2}, s{S_T2}, 3')
    a(f'v_lshrrev_b32 v{A_NW}, 3, v0')
    a(f'v_add_u32 v{A_NW}, s{S_T0}, v{A_NW}')
    a(f'v_min_u32 v{A_NW}, s{S_T2}, v{A_NW}')
    a(f'v_and_b32 v{V_T0}, 7, v0')
    a(f'v_lshl_add_u32 v{A_NW}, v{A_NW}, 3, v{V_T0}')
    a(f'v_lshlrev_b32 v{V_XO}, 7, v{A_NW}')
    a(f's_and_b32 s{S_T3}, s{S_GRP}, 32')
    a(f's_lshl_b32 s{S_T3}, s{S_T3}, 9')
    a(f's_add_u32 s{S_T3}, s{S_T3}, {ZF + 3 * ZK}')
    mult(1)
    emit(f'buffer_load_dword v{V_PFD}, v{V_XO}, {SRD}, s{S_T3} offen sc1', 'pollv')
    for op in ucst: emit(op, 'ucs')
    a(f'v_mov_b32 v127, v10')
    a(f's_add_u32 s{S_T1}, s{S_W}, s{S_SPLIT}')
    a(f's_and_b32 s{S_T1}, s{S_T1}, 3')
    a(f's_lshl_b32 s{S_T1}, s{S_T1}, 13')
    a(f'v_add_u32 v{V_DV0}, s{S_T1}, v{V_L16}')
    a(f'v_add_u32 v{V_DV1}, 4096, v{V_DV0}')
    a(f's_mov_b32 s{S_KDMA}, s{S_W8K}')
    a(f's_mov_b32 s{S_VRD}, {2*TILE}')
    st(1)
    if prefetch:
        a(f's_add_u32 s{S_PFOFF}, s{S_PFOFF}, s{S_W}')
        a(f's_and_b32 s{S_T1}, s{S_PFOFF}, {31 if pairmap else 15}')
        a(f's_lshl_b32 s{S_T1}, s{S_T1}, {10 if pairmap else 11}')
        a(f's_cmp_ge_u32 s{S_PFOFF}, {32 if pairmap else 16}')
        a(f's_cselect_b32 s{S_PFOFF}, {WS_VT - WS_XA - TILE}, 0')
        a(f's_add_u32 s{S_T1}, s{S_T1}, s{S_PFOFF}')
        a(f's_add_u32 s{S_T1}, s{S_T1}, {prefetch * TILE}')
        a(f'v_lshlrev_b32 v{V_PF}, {4 if pairmap else 5}, v0')
        a(f'v_add_u32 v{V_PF}, s{S_T1}, v{V_PF}')
    VLR = 124 if bcast else V_L16
    if bcast:
        a(f's_cmp_eq_u32 s{S_VALID}, 0')
        a(f's_cselect_b32 s{S_T1}, -1, 0')
        a(f'v_and_b32 v{VLR}, s{S_T1}, v{V_L16}')
    a(f'v_mov_b32 v{V_KA}, v{VLR}')
    a(f'v_add_u32 v{V_VA}, s{S_VRD}, v{VLR}')
    a(f'v_mov_b32 v{V_L0}, 0')
    a(f'v_mov_b32 v{V_L1}, 0')
    nround = -(-64 // NR)
    sizes = [64 // nround + (1 if i < 64 % nround else 0) for i in range(nround)]
    slotmap = [i for sz in sizes for i in range(sz)]
    assert LA + 1 <= min(sizes) and max(sizes) <= NR and V_RING + 4 * NR <= V_PF
    def slot(f): return V_RING + 4 * slotmap[f % 64]
    def rd(f):
        if f < 32 and chain: return f'ds_read_b128 {vr(slot(f),4)}, v{V_KA} offset:{((f & 15)*2 + (f >> 4))*1024}'
        if f < 32: return f'ds_read_b128 {vr(slot(f),4)}, v{V_KA} offset:{f*1024}'
        return f'ds_read_b128 {vr(slot(f),4)}, v{V_VA} offset:{(f-32)*1024}'
    def Sreg(kh, qh): return V_S + (kh * 2 + qh) * 4
    def mfmas(f, zero_c=False, first=False):
        order = (1, 0) if (snake and (f & 1)) else (0, 1)
        out = []
        if chain and f < 32:
            kh = f >> 4; s0 = f & 14; qh = (f & 1) ^ ((f >> 1) & 1); fb = f & ~1
            for k in range(2):
                s = s0 + k
                c = vr(Sreg(kh, qh), 4) if s else ('0' if zero_c else vr(V_NEGM + 4 * qh, 4))
                out.append(f'v_mfma_f32_16x16x32_bf16 {vr(Sreg(kh,qh),4)}, {vr(slot(fb+k),4)}, {ar((s*2+qh)*4,4)}, {c}')
            return out
        for qh in order:
            if f < 32:
                s, kh = f >> 1, f & 1
                c = vr(Sreg(kh, qh), 4) if s else ('0' if zero_c else vr(V_NEGM + 4 * qh, 4))
                out.append(f'v_mfma_f32_16x16x32_bf16 {vr(Sreg(kh,qh),4)}, {vr(slot(f),4)}, {ar((s*2+qh)*4,4)}, {c}')
            else:
                b = f - 32
                out.append(f'v_mfma_f32_16x16x32_bf16 {Oreg(b,qh)}, {vr(slot(f),4)}, {vr(V_P+4*qh,4)}, {0 if first else Oreg(b,qh)}')
        return out
    q = LdsQ()
    zero = []
    for f in range(LA):
        a(rd(f)); q.issue(f)
    a(f's_waitcnt vmcnt({vm.need(("Q", 31))})')
    v0ops = []
    for f in range(32):
        a(f's_waitcnt lgkmcnt({q.need(f | 1)})')
        for m in mfmas(f, zero_c=True):
            a(m)
        if f + LA < 32:
            a(rd(f + LA)); q.issue(f + LA)
        if f == vchk:
            chk('fv', V_PFD, V_XO, S_T3, 'pollv')
            a(f's_add_u32 s{S_VDMA}, s{S_W8K}, {2*TILE}')
            v0ops = dma_ops(V_DV0, V_DV1, S_VOFF, S_VDMA)
        if v0ops:
            pre, op = v0ops.pop(0)
            if pre: a(pre); a('s_nop 0')
            emit(op, 'V0')
    for pre, op in v0ops:
        if pre: a(pre); a('s_nop 0')
        emit(op, 'V0')
    a(f's_add_u32 s{S_VOFF}, s{S_VOFF}, {TILE}')
    a(f's_add_u32 s{S_VDMA}, s{S_VDMA}, {TILE}')
    a('s_nop 5')
    def max_all():
        ops = [f'v_max3_f32 v{V_MX}, v{V_S}, v{V_S+1}, v{V_S+2}']
        for i in range(6): ops.append(f'v_max3_f32 v{V_MX}, v{V_MX}, v{V_S+3+2*i}, v{V_S+4+2*i}')
        ops.append(f'v_max_f32 v{V_MX}, v{V_MX}, v{V_S+15}')
        return ops
    def rowmax2(d0, d1, tmp):
        for qh, dst in ((0, d0), (1, d1)):
            r0, r1 = Sreg(0, qh), Sreg(1, qh)
            a(f'v_max3_f32 v{dst}, v{r0}, v{r0+1}, v{r0+2}')
            a(f'v_max3_f32 v{dst}, v{dst}, v{r0+3}, v{r1}')
            a(f'v_max3_f32 v{dst}, v{dst}, v{r1+1}, v{r1+2}')
            a(f'v_max_f32 v{dst}, v{dst}, v{r1+3}')
        xreduce([d0, d1], 'v_max_f32', tmp)
    exp_ops = [f'v_exp_f32 v{V_E+i}, v{V_S+i}' for i in range(16)]
    sum_ops = [f'v_add_f32 v{V_L1 if (i >> 2) & 1 else V_L0}, v{V_L1 if (i >> 2) & 1 else V_L0}, v{V_E+i}' for i in range(16)]
    cvt_ops = []
    for qh in range(2):
        for kh in range(2):
            e = V_E + (kh * 2 + qh) * 4
            for i in range(2):
                cvt_ops.append(f'v_cvt_pk_bf16_f32 v{V_P+4*qh+2*kh+i}, v{e+2*i}, v{e+2*i+1}')
    rowmax2(V_F0, V_F1, 120)
    if zinv:
        a(f's_cmp_lg_u32 s{S_VALID}, 0')
        a(f's_cselect_b32 s{S_T1}, {f2h(1e30)}, 0')
        a(f'v_add_f32 v{V_F0}, s{S_T1}, v{V_F0}')
        a(f'v_add_f32 v{V_F1}, s{S_T1}, v{V_F1}')
    for qh, dst in ((0, V_F0), (1, V_F1)):
        for kh in range(2):
            for i in range(4): a(f'v_sub_f32 v{Sreg(kh,qh)+i}, v{Sreg(kh,qh)+i}, v{dst}')
        for i in range(4): a(f'v_sub_f32 v{V_NEGM+4*qh+i}, 0, v{dst}')
    for o in exp_ops: a(o)
    for o in zero: a(o)
    a(f'v_xor_b32 v{V_KA}, 0x8000, v{V_KA}')
    a(f's_lshl2_add_u32 s{S_FLO}, s{S_GRP}, s{S_W}')
    a(f's_lshl_b32 s{S_FLO}, s{S_FLO}, 9')
    a(f's_add_u32 s{S_FLO}, s{S_FLO}, {ZF_PART}')
    a(f'v_and_b32 v{V_FL}, 3, v0')
    a(f'v_lshlrev_b32 v{V_FL}, 7, v{V_FL}')
    if prew2:
        a(f's_lshl_b32 s{S_T2}, s{S_SPLIT}, 7')
        a(f's_add_u32 s{S_T2}, s{S_T2}, s{S_FLO}')
        a(f'v_lshlrev_b32 v{V_T0}, 2, v0')
        a(f'v_mov_b32 v{V_T1}, 0')
        a('s_mov_b64 exec, 0xffffffff')
        emit(f'buffer_store_dword v{V_T1}, v{V_T0}, {SRD}, s{S_T2} offen sc1')
        a('s_mov_b64 exec, -1')
    a(f's_lshl_b32 s{S_T2}, s72, 7')
    a(f's_add_u32 s{S_T2}, s{S_T2}, {ZF + 4 * ZK}')
    a(f'v_mov_b32 v126, s{S_TAG}')
    a(f's_waitcnt vmcnt({min(63, vm.need("K1"))})')
    a('s_barrier')
    st(2); st(8, True)
    if stamp: a('s_waitcnt lgkmcnt(0)')
    q = LdsQ()
    for f in range(LA):
        a(rd(f)); q.issue(f)

    L_loop = f'{name}_loop'
    rare = []
    border = list(range(8, 32)) + list(range(8))
    YB = 192
    stream = [('pv', b) for b in border] + [('yc', T, f) for T in range(4) for f in range(32)]
    NS = len(stream)
    WA = [V_VA, V_DV0, V_DV1, V_PF]
    def srd_(i):
        it = stream[i]
        if it[0] == 'pv': return f'ds_read_b128 {vr(slot(i),4)}, v{V_KA} offset:{it[1]*1024}'
        if chain and it[1]: return f'ds_read_b128 {vr(slot(i),4)}, v{WA[it[1]]} offset:{((it[2] & 15)*2 + (it[2] >> 4))*1024}'
        return f'ds_read_b128 {vr(slot(i),4)}, v{WA[it[1]]} offset:{it[2]*1024}'
    def ucload(f):
        ops = []
        if f % 4 == 0 and f: ops.append(f's_add_u32 s{S_UCO}, s{S_UCO}, 4096')
        ops.append((f'buffer_load_dwordx4 {ar(4*f,4)}, v{125 if relief else V_L16}, {"s[76:79]" if zinv else SRD}, s{S_UCO} offen offset:{(f%4)*1024} sc1', ('uc', f)))
        return ops
    stubs = []
    class Dual:
        def __init__(self, op, tag, fast): self.op, self.tag, self.fast = op, tag, fast
    def em(o):
        if isinstance(o, Dual) and force_slow:
            emit(f'{o.op} sc1', o.tag); return
        if isinstance(o, Dual):
            lab = a.label(name + '_ds')
            a(f's_cbranch_vccnz {lab}')
            emit(f'{o.op} {o.fast}', o.tag)
            a(f'{lab}b:')
            stubs.append((lab, o.op))
            return
        if callable(o): o = o()
        if noyc and isinstance(o, tuple) and ((o[1] == 'x' and 'x' in noyc) or (isinstance(o[1], tuple) and o[1][0] in ('uc', 'wc') and o[1][0] in noyc)):
            vm.last[o[1]] = vm.last.get('dL', 0); return
        if isinstance(o, tuple): emit(*o)
        else: emit(o)
    nuc = [0]
    def body(last, first=False):
        tag = 'L' if last else ('F' if first else 'M')
        L_r1, L_r1b, L_r2, L_r2b = [f'{name}_{x}{tag}' for x in ('r1', 'r1b', 'r2', 'r2b')]
        rare.append((L_r1, L_r1b, L_r2, L_r2b))
        fill = [[] for _ in range(128)]
        cap = [CAP - 1 if p % 2 == 0 else CAP for p in range(128)]
        for p in range(128):
            if p % 2 == 1 and ((p + 1) // 2) % wait_every == 0: cap[p] -= 1
        cap[127] -= 3
        if cmp_early and not (last or first): cap[126] -= 1
        def put(pos, ops, cost):
            if not isinstance(ops, list): ops = [ops]
            while cap[pos] < cost: pos += 1
            cap[pos] -= cost
            fill[pos] += ops
            return pos
        if not last: bw = f's_waitcnt vmcnt({1 if prefetch else 0})'
        else: bw = lambda: f's_waitcnt vmcnt({vm.need("dL")})'
        pb = put(2 * bar_pos + 1, [bw] + ([] if 'nobar' in dbg and not last else ['s_barrier']), 2)
        assert pb < 2 * (64 - LA)
        if first:
            pf_ = put(2 * (32 - LA) - 5, [lambda: f's_waitcnt vmcnt({vm.need("V0")})', 's_barrier',
                                          f'buffer_store_dword v126, v127, {SRD}, s{S_T2} offen sc1'], 2)
            assert pf_ < 2 * (32 - LA)
        dk, dv = dma_ops(V_DK0, V_DK1, S_WCO if last else S_KOFF, S_KDMA), dma_ops(V_DV0, V_DV1, S_VOFF, S_VDMA)
        dm = dv + dk if last else dk + dv
        p = 0
        if last and not tailpf:
            p = put(p, (f'buffer_load_dword v{V_PFD}, v{V_FL}, {SRD}, s{S_FLO} offen sc1', 'poll'), dma_cost) + 1
            for c in range(npf, 3 if pfill else 0):
                p = put(p, f'buffer_load_dword v{V_T0}, v{V_PF}, {SRD}, s{S_PFS} offen', dma_cost) + 1
                p = put(p, f's_add_u32 s{S_PFS}, s{S_PFS}, 8192', 1) + 1
            if pfill: p = put(p, f'buffer_load_dword v{V_T0}, v{V_L16}, {SRD}, s{S_PFS} offen', dma_cost) + 1
        for pre, op in dm:
            if pre: p = put(p, pre, 1) + 1
            p = put(p, (op, 'dL'), dma_cost) + dma_gap
        if prefetch and not last:
            p = put(p, f'buffer_load_dword v{V_PFD}, v{V_PF}, s[96:99], s{S_PFS} offen {pf_flags}', dma_cost) + 1
        pdma = p
        assert pdma <= pb
        if last and not tailpf:
            p = put(56, [lambda: f's_waitcnt vmcnt({vm.need("poll")})', f'v_cmp_ne_u32 s[{S_T3}:{S_T3+1}], s{S_TAG}, v{V_PFD}'], 2) + 2
            p = put(p, [f's_cmp_eq_u64 s[{S_T3}:{S_T3+1}], 0', f's_cbranch_scc0 {name}_cfslow', f'{name}_cfok:'], 2) + 1
            p = put(p, f'v_cmp_ne_u32 s[{S_SLOW}:{S_SLOW+1}], s{S_XCC}, v{V_PFD}', 1) + 1
            assert p <= pdma + 4
        p = 68
        for o in max_all(): p = put(p, o, 1)
        p = put(p, f'v_cmp_lt_f32 vcc, {hex(THR)}, v{V_MX}', 1) + 1
        p = put(p + brgap, ([] if 'nobr1' in dbg else [f's_cbranch_vccnz {L_r1}']) + [f'{L_r1b}:'], 1) + 1
        for i, o in enumerate(exp_ops):
            if 'noexp' not in dbg: p = put(p, o, 2)
        p = 0
        for o in cvt_ops: p = put(p, o, 1)
        for o in sum_ops: p = put(p, o, 1)
        assert p < 60
        upd = [f's_add_u32 s{S_KOFF}, s{S_KOFF}, {TILE}', f's_add_u32 s{S_PFS}, s{S_PFS}, s{S_PFST}',
               f's_add_u32 s{S_VOFF}, s{S_VOFF}, {TILE}',
               f's_xor_b32 s{S_KDMA}, s{S_KDMA}, {TILE}',
               f's_add_u32 s{S_VDMA}, s{S_VDMA}, {TILE}',
               f's_cmp_ge_u32 s{S_VDMA}, {5*TILE}', f's_cselect_b32 s{S_T1}, {3*TILE}, 0',
               f's_sub_u32 s{S_VDMA}, s{S_VDMA}, s{S_T1}',
               f's_add_u32 s{S_VRD}, s{S_VRD}, {TILE}',
               f's_cmp_ge_u32 s{S_VRD}, {5*TILE}', f's_cselect_b32 s{S_VRD}, {2*TILE}, s{S_VRD}',
               f's_sub_u32 s{S_CNT}, s{S_CNT}, 1']
        if not last:
            p = pdma
            for o in upd: p = put(p, o, 1)
            put(2 * (32 - LA) + 1, f'v_xor_b32 v{V_KA}, 0x8000, v{V_KA}', 1)
            put(max(p + 1, 2 * (64 - LA) + 1), f'v_add_u32 v{V_VA}, s{S_VRD}, v{VLR}', 1)
        else:
            p = 2 * (32 - LA) + 1
            for o in [f's_sub_u32 s{S_KOFF}, s{S_VDMA}, s{S_W8K}', f'v_add_u32 v{V_KA}, s{S_KOFF}, v{V_L16}',
                      f's_sub_u32 s{S_WB0}, s{S_KDMA}, s{S_W8K}', f's_xor_b32 s{S_WB1}, s{S_WB0}, {TILE}', f's_mov_b32 s{S_WB3}, s{S_VRD}',
                      f's_add_u32 s{S_WB2}, s{S_WB3}, s{S_KOFF}', f's_sub_u32 s{S_WB2}, {9*TILE}, s{S_WB2}']:
                p = put(p, o, 1) + 1
            p = max(pdma, 66)
            while p < 127 and nuc[0] < 32:
                fill[p] += ucload(nuc[0]); nuc[0] += 1
                p += uc_pace
        for f in range(64):
            if f % wait_every == 0:
                a(f's_waitcnt lgkmcnt({q.need(min(f + wait_every - 1, 63))})')
            mm = mfmas(f, first=first)
            a(mm[0])
            nf = f + LA
            if nf < 64 or not last:
                a(rd(nf % 64)); q.issue(nf % 64)
            else:
                a(srd_(nf - 64)); q.issue(('s', nf - 64))
            for o in fill[2 * f]: em(o)
            a(mm[1])
            for o in fill[2 * f + 1]: em(o)
        if last or first or not nobr2:
            a(f's_cbranch_vccnz {L_r2}')
            a(f'{L_r2b}:')
    if relief:
        a(f's_cmp_eq_u32 s{S_SPLIT}, 3')
        a(f's_cselect_b32 s{S_TGT}, 0, s{S_SPLIT}')
        a(f's_cmp_eq_u32 s{S_SPLIT}, 0')
        a(f's_cselect_b32 s{S_UCM}, 0x80000000, 0')
        a(f's_lshl2_add_u32 s{S_T1}, s{S_GRP}, s{S_W}')
        a(f's_mul_i32 s{S_T1}, s{S_T1}, {128 - 512}')
        a(f's_add_u32 s{S_T1}, s{S_T1}, {128 * 1024}')
        a(f's_cmp_eq_u32 s{S_SPLIT}, 0')
        a(f's_cselect_b32 s{S_T1}, s{S_T1}, 0')
        a(f'v_cmp_eq_u32 vcc, 0, v{V_FL}')
        a(f'v_mov_b32 v{V_T0}, s{S_T1}')
        a('s_nop 0')
        a(f'v_cndmask_b32 v{V_FL}, v{V_FL}, v{V_T0}, vcc')
        a('s_mov_b64 vcc, 0')
    else:
        a(f's_mov_b32 s{S_TGT}, s{S_SPLIT}')
    a(f's_lshl_b32 s{S_WCO}, s{S_TGT}, 17')
    a(f's_add_u32 s{S_WCO}, s{S_WCO}, {WS_WC}')
    a(f's_lshl_b32 s{S_UCO}, s{S_QB}, 15')
    a(f's_add_u32 s{S_UCO}, s{S_UCO}, {WS_UC}')
    a(f's_mov_b32 s{S_PFS}, s{S_KOFF}')
    a(f's_mov_b32 s{S_PFST}, {TILE}')
    a(f's_mov_b32 s{S_PH}, 0')
    NPH = 4 if tailpf else 0
    a(f's_sub_u32 s{S_CNT}, s{S_CNT}, {NPH}')
    make_srd(a, 96, S_WS, 0, WS_SIZE)
    a(f's_lshl_b32 s{S_PB}, s{S_GRP}, 2')
    a(f's_add_u32 s{S_PB}, s{S_PB}, s{S_SPLIT}')
    a(f's_lshl_b32 s{S_PB}, s{S_PB}, 2')
    a(f's_add_u32 s{S_PB}, s{S_PB}, s{S_W}')
    a(f's_lshl_b32 s{S_PB}, s{S_PB}, 15')
    a(f's_add_u32 s{S_PB}, s{S_PB}, {WS_PART}')
    S_LIM = 55
    a(f's_mov_b32 s{S_LIM}, 0')
    body(False, first=True)
    a('.p2align 6')
    a(f'{L_loop}:')
    body(False)
    if nobr2:
        a(f's_cmp_gt_u32 s{S_CNT}, s{S_LIM}')
        a(f's_cbranch_scc1 {L_loop}')
        a(f's_cbranch_vccnz {name}_r2M')
        a(f'{name}_r2bM:')
        a(f's_mov_b32 s{S_LIM}, 0')
    a(f's_cmp_lg_u32 s{S_CNT}, 0')
    a(f's_cbranch_scc1 {L_loop}')
    if tailpf == 1:
        a(f's_add_u32 s{S_PH}, s{S_PH}, 1')
        a(f's_mov_b32 s{S_CNT}, 1')
        a(f's_cmp_eq_u32 s{S_PH}, 5\n s_cbranch_scc1 {name}_ph5')
        a(f's_cmp_eq_u32 s{S_PH}, 4\n s_cbranch_scc1 {name}_ph4')
        a(f's_cmp_eq_u32 s{S_PH}, 3\n s_cbranch_scc1 {name}_ph3')
        a(f's_cmp_eq_u32 s{S_PH}, 2\n s_cbranch_scc1 {name}_ph2')
        a(f's_mov_b32 s96, s{S_X}\n s_mov_b32 s97, s{S_X+1}\n s_mov_b32 s98, 8192000')
        a(f'v_lshrrev_b32 v{V_PF}, 1, v0')
        a(f'v_lshlrev_b32 v{V_PF}, 10, v{V_PF}')
        a(f'v_and_b32 v{V_T0}, 1, v0')
        a(f'v_lshl_add_u32 v{V_PF}, v{V_T0}, 7, v{V_PF}')
        a(f's_lshl_b32 s{S_PFS}, s{S_QB}, 15')
        a(f's_lshl_b32 s{S_T1}, s{S_SPLIT}, 8')
        a(f's_add_u32 s{S_PFS}, s{S_PFS}, s{S_T1}')
        a(f's_branch {L_loop}')
        a(f'{name}_ph2:')
        a(f's_mov_b32 s96, s{S_WS}\n s_mov_b32 s97, s{S_WS+1}\n s_mov_b32 s98, {WS_SIZE}')
        a(f'v_and_b32 v{V_XO}, 7, v0')
        a(f'v_lshlrev_b32 v{V_XO}, 7, v{V_XO}')
        a(f'v_mov_b32 v{V_PF}, v{V_XO}')
        a(f's_add_u32 s{S_SLOW}, s{S_SLOW}, {2 * ZK}')
        a(f's_mov_b32 s{S_PFS}, s{S_SLOW}')
        a(f's_branch {L_loop}')
        a(f'{name}_ph3:')
        a('s_waitcnt vmcnt(0)')
        a(f'v_cmp_ne_u32 s[{S_T3}:{S_T3+1}], s{S_TAG}, v{V_PFD}')
        a(f'v_lshlrev_b32 v{V_PF}, 7, v0')
        if pairmap:
            a(f's_and_b32 s{S_PFS}, s{S_SPLIT}, 1')
            a(f's_lshl_b32 s{S_PFS}, s{S_PFS}, 14')
        else: a(f's_lshl_b32 s{S_PFS}, s{S_SPLIT}, 13')
        a(f's_add_u32 s{S_PFS}, s{S_PFS}, s{S_UCO}')
        a('s_nop 1')
        a(f's_cmp_eq_u64 s[{S_T3}:{S_T3+1}], 0')
        a(f's_cbranch_scc0 {name}_cfslow')
        a(f'{name}_cfok:')
        if pairmap:
            a(f'buffer_load_dword v126, v{V_PF}, {SRD}, s{S_PFS} offen sc1')
            a(f's_add_u32 s{S_PFS}, s{S_PFS}, 8192')
        a(f's_branch {L_loop}')
        a(f'{name}_ph4:')
        a(f'v_lshlrev_b32 v{V_PF}, {5 if pairmap else 6}, v0')
        a(f's_and_b32 s{S_PFS}, s{S_TILE}, {15 if pairmap else 7}')
        a(f's_lshl_b32 s{S_PFS}, s{S_PFS}, 2')
        a(f's_add_u32 s{S_PFS}, s{S_PFS}, s{S_W}')
        a(f's_lshl_b32 s{S_PFS}, s{S_PFS}, {11 if pairmap else 12}')
        a(f's_add_u32 s{S_PFS}, s{S_PFS}, s{S_WCO}')
        a(f's_branch {L_loop}')
        a(f'{name}_ph5:')
    if tailpf == 2:
        a(f's_add_u32 s{S_PH}, s{S_PH}, 1')
        a(f's_mov_b32 s{S_CNT}, 1')
        a(f's_cmp_eq_u32 s{S_PH}, 5\n s_cbranch_scc1 {name}_ph5')
        a(f's_cmp_eq_u32 s{S_PH}, 4\n s_cbranch_scc1 {name}_ph4')
        a(f's_cmp_eq_u32 s{S_PH}, 3\n s_cbranch_scc1 {name}_ph3')
        a(f's_cmp_eq_u32 s{S_PH}, 2\n s_cbranch_scc1 {name}_ph2')
        a(f'v_and_b32 v{V_XO}, 7, v0')
        a(f'v_lshlrev_b32 v{V_XO}, 7, v{V_XO}')
        a(f's_add_u32 s{S_SLOW}, s{S_SLOW}, {2 * ZK}')
        a(f'buffer_load_dword v124, v{V_XO}, {SRD}, s{S_SLOW} offen sc1')
        if tlb:
            a(f'v_lshlrev_b32 v125, 10, v{V_FL}')
            a(f's_lshl_b32 s{S_T1}, s{S_GRP}, 19')
            a(f's_add_u32 s{S_T1}, s{S_T1}, {WS_PART + 28672}')
            a(f'buffer_load_dword v126, v125, {SRD}, s{S_T1} offen sc1')
            a(f's_lshl_b32 s{S_T1}, s{S_QB}, 15')
            a(f'v_mov_b32 v125, 0')
            a(f'buffer_load_dword v126, v125, {SRO}, s{S_T1} offen sc1')
        a(f's_branch {L_loop}')
        a(f'{name}_ph2:')
        a(f'v_mov_b32 v{V_PFD}, v124' if False else 's_nop 0')
        a(f'v_cmp_ne_u32 s[{S_T3}:{S_T3+1}], s{S_TAG}, v124')
        a(f'v_lshrrev_b32 v125, 1, v0')
        a(f'v_lshlrev_b32 v125, 10, v125')
        a(f'v_and_b32 v{V_T0}, 1, v0')
        a(f'v_lshl_add_u32 v125, v{V_T0}, 7, v125')
        a(f's_lshl_b32 s{S_T2}, s{S_QB}, 15')
        a(f's_lshl_b32 s{S_T1}, s{S_SPLIT}, 8')
        a(f's_add_u32 s{S_T1}, s{S_T1}, s{S_T2}')
        a(f'buffer_load_dword v126, v125, {SRX}, s{S_T1} offen')
        a(f's_cmp_eq_u64 s[{S_T3}:{S_T3+1}], 0')
        a(f's_cbranch_scc0 {name}_cfslow')
        a(f'{name}_cfok:')
        a(f's_branch {L_loop}')
        a(f'{name}_ph3:')
        a(f'v_lshlrev_b32 v125, 7, v0')
        a(f's_lshl_b32 s{S_T1}, s{S_SPLIT}, 13')
        a(f's_add_u32 s{S_T1}, s{S_T1}, s{S_UCO}')
        a(f'buffer_load_dword v126, v125, {SRD}, s{S_T1} offen sc1')
        a(f's_branch {L_loop}')
        a(f'{name}_ph4:')
        a(f'v_lshlrev_b32 v125, 6, v0')
        a(f's_and_b32 s{S_T1}, s{S_TILE}, 7')
        a(f's_lshl2_add_u32 s{S_T1}, s{S_T1}, s{S_W}')
        a(f's_lshl_b32 s{S_T1}, s{S_T1}, 12')
        a(f's_add_u32 s{S_T1}, s{S_T1}, s{S_WCO}')
        a(f'buffer_load_dword v126, v125, {SRD}, s{S_T1} offen sc1')
        a(f'v_bfrev_b32 v{V_PF}, 1')
        a(f's_branch {L_loop}')
        a(f'{name}_ph5:')
    st(3); st(9, True)
    if stamp: a('s_waitcnt lgkmcnt(0)')
    if relief:
        a(f'v_or_b32 v125, s{S_UCM}, v{V_L16}')
        a(f'v_or_b32 v{V_DK0}, s{S_UCM}, v{V_DK0}')
        a(f'v_or_b32 v{V_DK1}, s{S_UCM}, v{V_DK1}')
    body(True)
    st(15)
    if stamp: a('s_waitcnt lgkmcnt(0)')
    def smf(i):
        it = stream[i]; out = []
        if chain and it[0] == 'yc' and it[1]:
            T, f = it[1], it[2]; ch = f >> 4; qh = (f & 1) ^ ((f >> 1) & 1)
            d = vr(YB + 8 * (2 * T + ch) + 4 * qh, 4)
            for k in range(2):
                s = (f & 14) + k
                out.append(f'v_mfma_f32_16x16x32_bf16 {d}, {vr(slot((i & ~1) + k),4)}, {ar((s*2+qh)*4,4)}, {d if s or (xinit if tail != 5 else T == 3) else 0}')
            return out
        for qh in ((1, 0) if (snake and (i & 1)) else (0, 1)):
            if it[0] == 'pv':
                out.append(f'v_mfma_f32_16x16x32_bf16 {Oreg(it[1],qh)}, {vr(slot(i),4)}, {vr(V_P+4*qh,4)}, {Oreg(it[1],qh)}')
            else:
                T, f = it[1], it[2]; s, ch = f >> 1, f & 1
                d = vr(YB + 8 * (2 * T + ch) + 4 * qh, 4)
                out.append(f'v_mfma_f32_16x16x32_bf16 {d}, {vr(slot(i),4)}, {ar((s*2+qh)*4,4)}, {d if s or (xinit and tail != 5) else 0}')
        return out
    a(f's_mov_b64 vcc, s[{S_SLOW}:{S_SLOW+1}]' if not force_slow else 's_mov_b64 vcc, -1')
    for o in cvt_ops: a(o)
    a(f's_lshl_b32 s{S_T0}, s{S_GRP}, 2')
    a(f'v_add_u32 v{WA[0]}, s{S_WB0}, v{V_L16}')
    pend = [(0, o, 1) for o in sum_ops]
    for i, sb in enumerate((S_WB1, S_WB2, S_WB3)): pend.append((0, f'v_add_u32 v{WA[i+1]}, s{sb}, v{V_L16}', 1))
    rot = 0
    for qd in range(1, 4):
        hdr = [f's_add_u32 s{S_PO}, s{S_PB}, {(qd-1)*8192}']
        for gm in range(4):
            for qh in range(2):
                b0 = 8 * qd + 2 * gm
                ready = 2 * (border.index(b0 + 1) + 1) + 6
                idx = gm * 2 + qh
                if idx == 0:
                    for h in hdr: pend.append((0, h, 1))
                if idx == 4: pend.append((ready, f's_add_u32 s{S_PO}, s{S_PO}, 4096', 1))
                tb = V_S + 8 * (rot % 2); pk = V_E + 4 * (rot % 4); rot += 1
                srcs = []
                for b in range(2):
                    for r in range(4):
                        o = Obase(b0 + b, qh) + r
                        if qd == 1: srcs.append(o)
                        else:
                            pend.append((ready, f'v_accvgpr_read_b32 v{tb+4*b+r}, a{o}', 1)); srcs.append(tb + 4 * b + r)
                for r in range(4): pend.append((ready, f'v_cvt_pk_bf16_f32 v{pk+r}, v{srcs[2*r]}, v{srcs[2*r+1]}', 1))
                pend.append((ready, Dual(f'buffer_store_dwordx4 {vr(pk,4)}, v{V_L16}, {SRD}, s{S_PO} offen offset:{(idx%4)*1024}', 'part', fast_st), 2))
    def stats_block():
        xreduce([V_L0, V_L1], 'v_add_f32', 126)
        a(f'v_mov_b32 v120, v{V_L0}')
        a(f'v_sub_f32 v121, 0, v{V_NEGM}')
        a(f'v_mov_b32 v122, v{V_L1}')
        a(f'v_sub_f32 v123, 0, v{V_NEGM+4}')
        a(f's_add_u32 s{S_T1}, s{S_PB}, {3*8192}')
        em(Dual(f'buffer_store_dwordx4 v[120:123], v{V_L16}, {SRD}, s{S_T1} offen', 'part', fast_st))
    XV = V_P
    def x_setup():
        a(f'v_lshrrev_b32 v{V_T0}, 4, v0')
        a(f'v_and_b32 v{V_T1}, 15, v0')
        a(f'v_xor_b32 v{V_T2}, v{V_T0}, v{V_T1}')
        a(f'v_lshlrev_b32 v{V_T2}, 4, v{V_T2}')
        a(f'v_lshl_add_u32 v{XV}, v{V_T0}, 10, v{V_T2}')
        for i in range(1, 4): a(f'v_xor_b32 v{XV+i}, {i*64}, v{XV}')
        a(f's_add_u32 s{S_KOFF}, s{S_KOFF}, s{S_W8K}')
        a(f'v_lshl_add_u32 v{XV+4}, v{V_T1}, 8, v{V_T2}')
        a(f'v_add_u32 v{XV+4}, s{S_KOFF}, v{XV+4}')
        for i in range(1, 4): a(f'v_xor_b32 v{XV+4+i}, {i*64}, v{XV+4}')
        a(f'v_add_u32 v{V_XO}, s{S_KOFF}, v{V_L16}')
        a(f's_lshl_b32 s{S_T4}, s{S_QB}, 15')
        a(f's_lshl_b32 s{S_T1}, s{S_TGT}, 8')
        a(f's_add_u32 s{S_T4}, s{S_T4}, s{S_T1}')
    def wc_dma(T):
        out = []
        first = [f's_add_u32 s{S_WCO}, s{S_WCO}, {TILE}', f's_add_u32 s{S_T2}, s{(S_WB0, S_WB1, S_WB2, S_WB3)[T]}, s{S_W8K}']
        for pre, op in dma_ops(V_DK0, V_DK1, S_WCO, S_T2):
            g = first; first = []
            if pre: g += [pre, 's_nop 0']
            out.append(g + [(op, ('wc', T))])
        return out
    if tail == 5:
        xinit = False
        def xdma():
            return [[f's_add_u32 m0, s{S_KOFF}, {k*1024}', f's_add_u32 s{S_T1}, s{S_T4}, {k*4096}',
                     (f'buffer_load_dwordx4 v{XV+(k&3)}, {SRX}, s{S_T1} offen lds', 'x')] for k in range(8)]
        dq = [ucload(f) for f in range(nuc[0], 32)] + wc_dma(1)
        n_q1 = max(i for i, p in enumerate(pend) if isinstance(p[1], str) and 'v_cvt_pk' in p[1] and int(p[1].split('v')[-1]) >= 192) + 2
        done = [0]
        def pop():
            _, op, c = pend.pop(0); em(op); done[0] += 1
            if isinstance(op, str) and op.startswith('ds_'): q.issue('xr')
            return c
        def run(i0, i1, every, bud, until_empty=False):
            for i in range(i0, i1):
                if until_empty and not pend and not dq and i % 2 == 0: return i
                it = stream[i]; w = []
                if it[0] == 'yc' and it[1] == 0 and it[2] % 2 == 0: w.append(f'vmcnt({min(63, vm.need(("uc", it[2] | 1)))})')
                if i % 2 == 0: w.append(f'lgkmcnt({min(15, q.need(("s", min(i + 1, NS - 1))))})')
                if w: a('s_waitcnt ' + ' '.join(w))
                mm = smf(i)
                for h in range(2):
                    pos = 2 * i + h
                    a(mm[h])
                    budget = bud
                    if h == 0 and i + LA < NS:
                        nx = stream[i + LA]
                        if nx[0] == 'yc' and nx[2] == 0 and nx[1] >= 1:
                            a(f's_waitcnt vmcnt({min(63, vm.need(("wc", nx[1])))})')
                            a('s_barrier')
                        a(srd_(i + LA)); q.issue(('s', i + LA)); budget -= 1
                    if dq and pos % every == 1:
                        for o in dq.pop(0): em(o)
                        budget -= 2
                    while pend and pend[0][0] <= pos and budget > 0: budget -= pop()
            return i1
        run(0, 32, t5[0], t5[1])
        while done[0] < n_q1: pop()
        while dq:
            for o in dq.pop(0): em(o)
        stats_block()
        a('s_barrier')
        x_setup()
        st(4)
        dq += wc_dma(2) + xdma() + wc_dma(3)
        poll = f'buffer_load_dword v{V_PFD}, v{V_FL}, {SRD}, s{S_FLO} offen offset:4 sc1'
        ie = run(32, NS, t5[2], t5[3], until_empty=True)
        print('tail5: stores and loads issued by item', ie)
        emit(poll, 'poll')
        def ycol(idx, i): return YB + 8 * (2 * (idx >> 1) + (i >> 1)) + 4 * (idx & 1) + 2 * (i & 1)
        i2 = ie + t5[4]
        run(ie, i2, 1000, 2)
        a(f's_lshl_b32 s{S_T3}, s{S_SPLIT}, 7')
        a(f's_add_u32 s{S_T3}, s{S_T3}, s{S_FLO}')
        a(f'v_lshlrev_b32 v{V_T0}, 2, v0\n v_mov_b32 v{V_T1}, s{S_TAG}')
        a(f's_lshl_b32 s{S_CNT}, 1, s{S_SPLIT}')
        a('s_mov_b64 exec, 0xffffffff')
        a(f's_waitcnt vmcnt({min(vm.need("part"), vm.need("x"))})')
        em(Dual(f'buffer_store_dword v{V_T1}, v{V_T0}, {SRD}, s{S_T3} offen', None, ''))
        a('s_mov_b64 exec, -1')
        st(5)
        assert i2 + LA < 128
        for idx in (6, 7, 0, 1, 2, 3, 4, 5):
            a(f'ds_read_b128 {vr(V_S+4*idx,4)}, v{XV+4+(idx>>1)} offset:{(idx&1)*4096}'); q.issue('xr')
        STR = [56, 60, 124]
        def getmask(w):
            a(f's_waitcnt vmcnt({w})')
            a(f'v_cmp_eq_u32 vcc, s{S_TAG}, v{V_PFD}')
            a('s_nop 3')
            a(f's_and_b32 s{S_PFS}, vcc_lo, 15')
            a(f's_andn2_b32 s{S_PFS}, s{S_PFS}, s{S_CNT}')
            a(f's_or_b32 s{S_CNT}, s{S_CNT}, s{S_PFS}')
        def slot_hdr(k):
            return [f's_sub_u32 s{S_T1}, s{S_SPLIT}, {k+1}', f's_and_b32 s{S_T1}, s{S_T1}, 3', f's_bitcmp1_b32 s{S_PFS}, s{S_T1}']
        def slot_adr():
            return [f's_add_u32 s{S_T1}, s{S_T1}, s{S_T0}', f's_lshl_b32 s{S_T1}, s{S_T1}, 2', f's_add_u32 s{S_T1}, s{S_T1}, s{S_W}',
                    f's_lshl_b32 s{S_PO}, s{S_T1}, 15', f's_add_u32 s{S_T1}, s{S_PO}, {WS_PART + 3*8192}']
        def slot_loads(k, vo):
            out = [[f'buffer_load_dwordx4 {vr(STR[k],4)}, v{vo}, {SRD}, s{S_T1} offen sc1']]
            for h4 in range(2):
                for i in range(4):
                    pre = [f's_add_u32 s{S_T1}, s{S_PO}, {WS_PART + k*8192 + h4*4096}'] if i == 0 else []
                    out.append(pre + [f'buffer_load_dwordx4 {ar(128+(k*8+h4*4+i)*4,4)}, v{vo}, {SRD}, s{S_T1} offen offset:{i*1024} sc1'])
            return out
        def check():
            getmask(0)
            for k in range(3):
                lab = a.label(name + '_ck')
                for o in slot_hdr(k): a(o)
                a(f's_cbranch_scc0 {lab}')
                for o in slot_adr(): a(o)
                for g in slot_loads(k, V_L16):
                    for o in g: a(o)
                a(f'{lab}:')
            if relief:
                lab = a.label(name + '_ck')
                a(f's_bitcmp1_b32 s{S_PFS}, s{S_SPLIT}')
                a(f's_cbranch_scc0 {lab}')
                a(f's_add_u32 s{S_T1}, s{S_T0}, s{S_W}')
                a(f's_lshl_b32 s{S_T1}, s{S_T1}, 13')
                a(f's_add_u32 s{S_T1}, s{S_T1}, {WS_U}')
                for i in range(8):
                    if i == 4: a(f's_add_u32 s{S_T1}, s{S_T1}, 4096')
                    a(f'buffer_load_dwordx4 {vr(68+4*i,4)}, v{V_L16}, {SRD}, s{S_T1} offen offset:{(i%4)*1024} sc1')
                a(f'{lab}:')
        getmask(vm.need('poll'))
        for k in range(3):
            first = slot_hdr(k) + [f's_cselect_b32 s{S_PH}, 0, 0x80000000', f'v_or_b32 v{V_T2}, s{S_PH}, v{V_L16}'] + slot_adr()
            for g in slot_loads(k, V_T2):
                dq.append(first + g); first = []
        dq.append([poll])
        a('s_waitcnt lgkmcnt(0)')
        for idx in (6, 7):
            for i in range(4):
                a(f'v_lshlrev_b32 v{ycol(idx,i)}, 16, v{V_S+4*idx+i}')
                a(f'v_and_b32 v{ycol(idx,i)+1}, 0xffff0000, v{V_S+4*idx+i}')
        for idx in range(6):
            ready = 2 * (64 + 32 * (idx >> 1)) + 8
            for i in range(4):
                t = 40 + 2 * i
                pend.append((ready, f'v_lshlrev_b32 v{t}, 16, v{V_S+4*idx+i}', 1))
                pend.append((ready, f'v_and_b32 v{t+1}, 0xffff0000, v{V_S+4*idx+i}', 1))
            for i in range(4):
                for k in range(2): pend.append((ready, f'v_add_f32 v{ycol(idx,i)+k}, v{ycol(idx,i)+k}, v{40+2*i+k}', 1))
        st(20)
        run(i2, NS, t5[5], 2)
        while dq:
            for o in dq.pop(0): em(o)
        while pend: pop()
        st(21)
    else:
        dq = [ucload(f) for f in range(nuc[0], 32)]
        def xdma():
            return [[f's_add_u32 m0, s{S_KOFF}, {k*1024}', f's_add_u32 s{S_T1}, s{S_T4}, {k*4096}',
                     (f'buffer_load_dwordx4 v{XV+(k&3)}, {SRX}, s{S_T1} offen lds', 'x')] for k in range(8)]
        def pop():
            _, op, c = pend.pop(0); em(op)
            if isinstance(op, Dual):
                for _ in range(ld_per_st):
                    if dq:
                        for o in dq.pop(0): em(o)
            return c
        lim = [64]
        def run(i0, i1, every=0):
            for i in range(i0, i1):
                it = stream[i]; w = []
                if it[0] == 'yc' and it[1] == 0 and it[2] % 2 == 0: w.append(f'vmcnt({min(63, vm.need(("uc", it[2] | 1)))})')
                if i % 2 == 0: w.append(f'lgkmcnt({min(15, q.need(("s", min(i + 1, NS - 1))))})')
                if w: a('s_waitcnt ' + ' '.join(w))
                mm = smf(i)
                for h in range(2):
                    pos = 2 * i + h
                    a(mm[h])
                    budget = pv_budget
                    if h == 0 and i + LA < NS:
                        nx = stream[i + LA]
                        if nx[0] == 'yc' and nx[2] == 0 and nx[1] in (1, 2):
                            a(f's_waitcnt vmcnt({min(63, vm.need(("wc", 1 if nx[1] == 1 else 3)))})')
                            a('s_barrier')
                        a(srd_(i + LA)); q.issue(('s', i + LA)); budget -= 1
                    while pend and pend[0][0] <= pos and budget > 0: budget -= pop()
                    if every and dq and pos % every == 1:
                        for o in dq.pop(0): em(o)
        run(0, 32)
        a('s_barrier')
        x_setup()
        if xinit:
            if relief: a(f's_cmp_eq_u32 s{S_SPLIT}, 0\n s_cbranch_scc1 {name}_nox')
            for g in xdma():
                for o in g: em(o)
            a(f'{name}_nox:')
        while pend: pop()
        stats_block()
        dq += wc_dma(1) + wc_dma(2) + wc_dma(3)
        if relief:
            a(f's_cmp_lg_u32 s{S_SPLIT}, 0\n s_cbranch_scc1 {name}_uc2')
            a('s_waitcnt vmcnt(0)')
            a(f's_branch {name}_uc3')
            a(f'{name}_uc2:')
        while len(dq) > 24 - flag_after:
            for o in dq.pop(0): em(o)
        a(f'{name}_uc3:')
        st(4)
        a(f's_lshl_b32 s{S_T3}, s{S_SPLIT}, 7')
        a(f's_add_u32 s{S_T3}, s{S_T3}, s{S_FLO}')
        a(f'v_lshlrev_b32 v{V_T0}, 2, v0\n v_mov_b32 v{V_T1}, s{S_TAG}')
        a(f's_lshl_b32 s{S_CNT}, 1, s{S_SPLIT}')
        a('s_mov_b64 exec, 0xffffffff')
        a(f's_waitcnt vmcnt({vm.need("part")})')
        em(Dual(f'buffer_store_dword v{V_T1}, v{V_T0}, {SRD}, s{S_T3} offen', None, ''))
        a('s_mov_b64 exec, -1')
        st(5)
        if stamp: a('s_waitcnt lgkmcnt(0)')
        if relief:
            a(f's_cmp_lg_u32 s{S_SPLIT}, 0\n s_cbranch_scc1 {name}_yc')
            a(f's_mov_b32 s{S_CNT}, 0')
            a(f'buffer_load_dword v{V_PFD}, v{V_FL}, {SRD}, s{S_FLO} offen offset:4 sc1')
            a('s_waitcnt lgkmcnt(0)')
            a(f's_branch {name}_spin')
            a(f'{name}_yc:')
        if xinit:
            for _ in range(xi_pre):
                for o in dq.pop(0): em(o)
            for idx in range(8):
                gm, qh = idx >> 1, idx & 1
                a(f'ds_read_b128 {vr(V_S+4*idx,4)}, v{XV+4+gm} offset:{qh*4096}'); q.issue(('x', idx))
            for idx in range(8):
                gm, qh = idx >> 1, idx & 1
                a(f's_waitcnt lgkmcnt({q.need(("x", idx))})')
                for i in range(4):
                    y = YB + 8 * (2 * gm + (i >> 1)) + 4 * qh + 2 * (i & 1)
                    a(f'v_lshlrev_b32 v{y}, 16, v{V_S+4*idx+i}')
                    a(f'v_and_b32 v{y+1}, 0xffff0000, v{V_S+4*idx+i}')
            a('s_nop 1')
        poll = f'buffer_load_dword v{V_PFD}, v{V_FL}, {SRD}, s{S_FLO} offen offset:4 sc1'
        dq.insert(min(max(0, poll_after - (xi_pre if xinit else 0)), len(dq)), [(poll, 'poll')])
        STR = [56, 60, 124]
        def getmask(w):
            a(f's_waitcnt vmcnt({w})')
            a(f'v_cmp_eq_u32 vcc, s{S_TAG}, v{V_PFD}')
            a('s_nop 3')
            a(f's_and_b32 s{S_PFS}, vcc_lo, 15')
            a(f's_andn2_b32 s{S_PFS}, s{S_PFS}, s{S_CNT}')
            a(f's_or_b32 s{S_CNT}, s{S_CNT}, s{S_PFS}')
        def slot_hdr(k):
            return [f's_sub_u32 s{S_T1}, s{S_SPLIT}, {k+1}', f's_and_b32 s{S_T1}, s{S_T1}, 3', f's_bitcmp1_b32 s{S_PFS}, s{S_T1}']
        def slot_adr():
            return [f's_add_u32 s{S_T1}, s{S_T1}, s{S_T0}', f's_lshl_b32 s{S_T1}, s{S_T1}, 2', f's_add_u32 s{S_T1}, s{S_T1}, s{S_W}',
                    f's_lshl_b32 s{S_PO}, s{S_T1}, 15', f's_add_u32 s{S_T1}, s{S_PO}, {WS_PART + 3*8192}']
        def slot_loads(k, vo):
            out = [[f'buffer_load_dwordx4 {vr(STR[k],4)}, v{vo}, {SRD}, s{S_T1} offen sc1']]
            for h4 in range(2):
                for i in range(4):
                    pre = [f's_add_u32 s{S_T1}, s{S_PO}, {WS_PART + k*8192 + h4*4096}'] if i == 0 else []
                    dst = vr(V_S + (h4*4+i)*4, 4) if (xinit and k == 0) else ar(128+(k*8+h4*4+i)*4,4)
                    out.append(pre + [f'buffer_load_dwordx4 {dst}, v{vo}, {SRD}, s{S_T1} offen offset:{i*1024} sc1'])
            return out
        def check():
            getmask(0)
            for k in range(3):
                lab = a.label(name + '_ck')
                for o in slot_hdr(k): a(o)
                a(f's_cbranch_scc0 {lab}')
                for o in slot_adr(): a(o)
                for g in slot_loads(k, V_L16):
                    for o in g: a(o)
                a(f'{lab}:')
            if relief:
                lab = a.label(name + '_ck')
                a(f's_bitcmp1_b32 s{S_PFS}, s{S_SPLIT}')
                a(f's_cbranch_scc0 {lab}')
                a(f's_add_u32 s{S_T1}, s{S_T0}, s{S_W}')
                a(f's_lshl_b32 s{S_T1}, s{S_T1}, 13')
                a(f's_add_u32 s{S_T1}, s{S_T1}, {WS_U}')
                for i in range(8):
                    if i == 4: a(f's_add_u32 s{S_T1}, s{S_T1}, 4096')
                    a(f'buffer_load_dwordx4 {vr(68+4*i,4)}, v{V_L16}, {SRD}, s{S_T1} offen offset:{(i%4)*1024} sc1')
                a(f'{lab}:')
        run(32, chk_at, every=2)
        assert not dq
        st(20)
        if stamp: a('s_waitcnt lgkmcnt(0)')
        getmask(vm.need('poll'))
        for k in range(3):
            first = slot_hdr(k) + [f's_cselect_b32 s{S_PH}, 0, 0x80000000', f'v_or_b32 v{V_T2}, s{S_PH}, v{V_L16}'] + slot_adr()
            for g in slot_loads(k, V_T2):
                dq.append(first + g); first = []
        dq += ([] if xinit else xdma()) + [[poll]]
        run(chk_at, NS, every=r_pace)
        assert not dq, len(dq)
        st(21)
        if not xinit:
            a(f's_waitcnt vmcnt({vm.need("x")})')
            st(22)
            if stamp: a('s_waitcnt lgkmcnt(0)')
            for idx in range(8):
                gm, qh = idx >> 1, idx & 1
                a(f'ds_read_b128 {vr(V_S+4*idx,4)}, v{XV+4+gm} offset:{qh*4096}')
            a('s_nop 3')
            for idx in range(8):
                gm, qh = idx >> 1, idx & 1
                xb = V_S + 4 * idx
                a(f's_waitcnt lgkmcnt({7-idx})')
                for i in range(4):
                    a(f'v_lshlrev_b32 v{64+2*i}, 16, v{xb+i}')
                    a(f'v_and_b32 v{64+2*i+1}, 0xffff0000, v{xb+i}')
                for i in range(4):
                    y = YB + 8 * (2 * gm + (i >> 1)) + 4 * qh + 2 * (i & 1)
                    a(f'v_pk_add_f32 {vr(y,2)}, {vr(y,2)}, {vr(64+2*i,2)}')
    if relief:
        a(f's_cmp_lg_u32 s{S_SPLIT}, 3\n s_cbranch_scc1 {name}_spin')
        a('s_barrier')
        a(f's_add_u32 s{S_WCO}, s{S_WCO}, {3 * (1 << 17) - 4 * TILE}')
        a(f's_add_u32 s{S_T4}, s{S_T4}, 768')
        for T in range(4):
            for g in wc_dma(T):
                for o in g: em(o)
        for g in xdma():
            for o in g: em(o)
        a(f's_add_u32 s{S_T1}, s{S_T0}, s{S_W}')
        a(f's_lshl_b32 s{S_T3}, s{S_T1}, 7')
        a(f's_lshl_b32 s{S_T1}, s{S_T1}, 13')
        a(f's_add_u32 s{S_T1}, s{S_T1}, {WS_U}')
        for idx in range(8):
            gm, qh = idx >> 1, idx & 1
            for i in range(4):
                y = YB + 8 * (2 * gm + (i >> 1)) + 4 * qh + 2 * (i & 1)
                a(f'v_cvt_pk_bf16_f32 v{68+4*idx+i}, v{y}, v{y+1}')
            if idx == 4: a(f's_add_u32 s{S_T1}, s{S_T1}, 4096')
            a(f'buffer_store_dwordx4 {vr(68+4*idx,4)}, v{V_L16}, {SRD}, s{S_T1} offen offset:{(idx%4)*1024} sc1')
        a(f's_add_u32 s{S_T3}, s{S_T3}, {ZF_PART + 128 * 1024}')
        a(f'v_lshlrev_b32 v{V_T0}, 2, v0\n v_mov_b32 v{V_T1}, s{S_TAG}')
        a('s_mov_b64 exec, 0xffffffff')
        a('s_waitcnt vmcnt(0)')
        a(f'buffer_store_dword v{V_T1}, v{V_T0}, {SRD}, s{S_T3} offen sc1')
        a('s_mov_b64 exec, -1')
        a('s_barrier')
        for idx in range(8): a(f'ds_read_b128 {vr(68+4*idx,4)}, v{XV+4+(idx>>1)} offset:{(idx&1)*4096}')
        for idx in range(8):
            gm, qh = idx >> 1, idx & 1
            a(f's_waitcnt lgkmcnt({7-idx})')
            for i in range(4):
                y = YB + 8 * (2 * gm + (i >> 1)) + 4 * qh + 2 * (i & 1)
                a(f'v_lshlrev_b32 v{y}, 16, v{68+4*idx+i}')
                a(f'v_and_b32 v{y+1}, 0xffff0000, v{68+4*idx+i}')
        q2 = LdsQ()
        for i in range(32, 32 + LA): a(srd_(i)); q2.issue(i)
        for i in range(32, NS):
            if i % 2 == 0: a(f's_waitcnt lgkmcnt({q2.need(i + 1)})')
            mm = smf(i)
            a(mm[0])
            if i + LA < NS: a(srd_(i + LA)); q2.issue(i + LA)
            a(mm[1])
            if i == 130: a(poll)
    st(23)
    a(f'{name}_spin:')
    check()
    a(f's_cmp_eq_u32 s{S_CNT}, 15')
    a(f's_cbranch_scc1 {name}_got')
    a(poll)
    a(f's_branch {name}_spin')
    a(f'{name}_got:')
    st(6)
    a('s_waitcnt vmcnt(0)')
    st(24)
    if relief:
        a(f's_cmp_lg_u32 s{S_SPLIT}, 0\n s_cbranch_scc1 {name}_hasy')
        for idx in range(8):
            gm, qh = idx >> 1, idx & 1
            for i in range(4):
                y = YB + 8 * (2 * gm + (i >> 1)) + 4 * qh + 2 * (i & 1)
                a(f'v_lshlrev_b32 v{y}, 16, v{68+4*idx+i}')
                a(f'v_and_b32 v{y+1}, 0xffff0000, v{68+4*idx+i}')
        a(f'{name}_hasy:')
    allst = [120] + STR
    for qh in range(2):
        t = V_T0 + qh
        a(f'v_max3_f32 v{t}, v{allst[0]+2*qh+1}, v{allst[1]+2*qh+1}, v{allst[2]+2*qh+1}')
        a(f'v_max_f32 v{t}, v{t}, v{allst[3]+2*qh+1}')
    for qh in range(2):
        for b in allst: a(f'v_sub_f32 v{b+2*qh+1}, v{b+2*qh+1}, v{V_T0+qh}')
    for qh in range(2):
        for b in allst: a(f'v_exp_f32 v{b+2*qh+1}, v{b+2*qh+1}')
    for qh in range(2):
        a(f'v_mul_f32 v{V_T0+qh}, v{allst[0]+2*qh}, v{allst[0]+2*qh+1}')
    for b in allst[1:]:
        for qh in range(2): a(f'v_fmac_f32 v{V_T0+qh}, v{b+2*qh}, v{b+2*qh+1}')
    for qh in range(2): a(f'v_rcp_f32 v{V_T0+qh}, v{V_T0+qh}')
    a('s_nop 0')
    for qh in range(2):
        for b in allst: a(f'v_mul_f32 v{b+2*qh+1}, v{b+2*qh+1}, v{V_T0+qh}')
    for i in range(4): a(f'v_or_b32 v{XV+i}, s{S_VALID}, v{XV+i}')
    for qh in range(2):
        for gm in range(4):
            idx = gm * 2 + qh
            ys = [YB + 8 * (2 * gm + (i >> 1)) + 4 * qh + 2 * (i & 1) for i in range(4)]
            for i in range(4):
                a(f'v_pk_fma_f32 {vr(ys[i],2)}, {vr(ys[i]-64,2)}, {vr(120+2*qh,2)}, {vr(ys[i],2)} op_sel:[0,1,0] op_sel_hi:[1,1,1]')
            for k in range(3):
                ub = 64 + 12 * k
                src = ub + 8
                if xinit and k == 0: src = V_S + 4 * idx
                else:
                    for i in range(4): a(f'v_accvgpr_read_b32 v{ub+8+i}, a{128+(k*8+idx)*4+i}')
                for i in range(4):
                    a(f'v_lshlrev_b32 v{ub+2*i}, 16, v{src+i}')
                    a(f'v_and_b32 v{ub+2*i+1}, 0xffff0000, v{src+i}')
                for i in range(4):
                    a(f'v_pk_fma_f32 {vr(ys[i],2)}, {vr(ub+2*i,2)}, {vr(STR[k]+2*qh,2)}, {vr(ys[i],2)} op_sel:[0,1,0] op_sel_hi:[1,1,1]')
            ob = 100 + 4 * (gm & 1)
            for i in range(4): a(f'v_cvt_pk_bf16_f32 v{ob+i}, v{ys[i]}, v{ys[i]+1}')
            a(f'ds_write_b128 v{XV+4+gm}, {vr(ob,4)} offset:{qh*4096}')
            if qh == 1 and gm == 0:
                a('s_waitcnt lgkmcnt(1)')
                for i in range(4):
                    a(f's_add_u32 s{S_T1}, s{S_T4}, {i*4096}')
                    a(f'buffer_store_dwordx4 {vr(128+8*i,4)}, v{XV+i}, {SRO}, s{S_T1} offen {out_flags}')
        for i in range(4): a(f'ds_read_b128 {vr(128+8*i+4*qh,4)}, v{V_XO} offset:{(4*qh+i)*1024}')
    for i in range(4):
        a(f's_add_u32 s{S_T1}, s{S_T4}, {(4+i)*4096}')
        a(f's_waitcnt lgkmcnt({3-i})')
        a(f'buffer_store_dwordx4 {vr(128+8*i+4,4)}, v{XV+i}, {SRO}, s{S_T1} offen {out_flags}')
    if stamp:
        a('s_waitcnt vmcnt(0)')
        st(7)
        a('s_waitcnt lgkmcnt(0)')
        a(f's_cmp_lg_u32 s{S_W}, 0')
        a(f's_cbranch_scc1 {name}_end')
        a(f's_lshl_b32 s{S_T1}, s2, 7')
        a(f's_add_u32 s{S_T1}, s{S_T1}, {WS_STAMP}')
        for i in range(16): a(f'v_mov_b32 v{16+2*i}, s{80+i}\n v_mov_b32 v{17+2*i}, 0')
        a(f'v_mov_b32 v{V_T0}, 0')
        a('s_mov_b64 exec, 1')
        for i in range(8):
            a(f'buffer_store_dwordx4 {vr(16+4*i,4)}, v{V_T0}, {SRD}, s{S_T1} offen offset:{16*i}')
        if dbgout:
            a(f's_cmp_lg_u32 s2, 0\n s_cbranch_scc1 {name}_end')
            a('s_load_dwordx2 s[4:5], s[0:1], 80')
            a(f's_mov_b32 s{S_T1}, {WS_STAMP + 131072}')
            a(f'buffer_load_dwordx4 v[48:51], v{V_T0}, {SRD}, s{S_T1} offen sc1')
            a(f's_mov_b32 s{S_T1}, {WS_STAMP + 65536}')
            a(f'buffer_load_dwordx4 v[52:55], v{V_T0}, {SRD}, s{S_T1} offen sc1')
            a(f'buffer_load_dwordx4 v[56:59], v{V_T0}, {SRD}, s{S_T1} offen offset:16 sc1')
            a('s_waitcnt vmcnt(0) lgkmcnt(0)')
            a('s_sub_u32 s12, s4, 0\n s_subb_u32 s13, s5, 0\n s_mov_b32 s14, 256\n s_mov_b32 s15, 0x20000')
            src = [50, 52, 54, 56, 58, 16, 18, 20, 22, 30]
            for i, r in enumerate(src): a(f'v_sub_u32 v{64+i}, v{r}, v48')
            for i in range(3): a(f'buffer_store_dwordx4 {vr(64+4*i,4)}, v{V_T0}, s[12:15], 0 offen offset:{16*i}')
            if spin is not None:
                ra, rb = spin
                a(f'v_sub_u32 v80, v{rb}, v{ra}')
                a('v_add_u32 v80, 2000, v80')
                a('v_add_u32 v80, v30, v80')
                a('s_nop 1')
                a('v_readfirstlane_b32 s20, v80')
                a(f'{name}_sp:')
                a('s_memrealtime s[22:23]')
                a('s_waitcnt lgkmcnt(0)')
                a('s_sub_u32 s21, s20, s22')
                a('s_cmp_gt_i32 s21, 0')
                a(f's_cbranch_scc1 {name}_sp')
    a(f'{name}_end:')
    a('s_endpgm')
    p3slow()
    for lab, dst, vo, so in slows:
        a(f'{name}_{lab}s:')
        a(f's_sleep {slp}')
        a(f'buffer_load_dword v{dst}, v{vo}, {SRD}, s{so} offen sc1')
        a('s_waitcnt vmcnt(0)')
        a(f'v_cmp_ne_u32 vcc, s{S_TAG}, v{dst}')
        a(f's_cbranch_vccnz {name}_{lab}s')
        a(f's_branch {name}_{lab}k')
    for lab, op in stubs:
        a(f'{lab}:')
        a(f'{op} sc1')
        a(f's_branch {lab}b')
    a(f'{name}_cfslow:')
    a(f's_sleep {slp}')
    a(f'buffer_load_dword v{V_PFD}, v{V_XO}, {SRD}, s{S_SLOW} offen sc1')
    a('s_waitcnt vmcnt(0)')
    a(f'v_cmp_ne_u32 s[{S_T3}:{S_T3+1}], s{S_TAG}, v{V_PFD}')
    a('s_nop 3')
    a(f's_cmp_eq_u64 s[{S_T3}:{S_T3+1}], 0')
    a(f's_cbranch_scc0 {name}_cfslow')
    a(f's_branch {name}_cfok')
    for (L_r1, L_r1b, L_r2, L_r2b) in rare:
        a(f'{L_r1}:')
        rowmax2(V_T1, V_T2, 120)
        for qh, dst in ((0, V_T1), (1, V_T2)):
            a(f'v_max_f32 v{dst}, 0, v{dst}')
            fr = V_F1 if qh else V_F0
            a(f'v_sub_f32 v{fr}, 0, v{dst}')
            a(f'v_exp_f32 v{fr}, v{fr}')
            for kh in range(2):
                for i in range(4): a(f'v_sub_f32 v{Sreg(kh,qh)+i}, v{Sreg(kh,qh)+i}, v{dst}')
            for i in range(4): a(f'v_sub_f32 v{V_NEGM+4*qh+i}, v{V_NEGM+4*qh+i}, v{dst}')
            l = V_L1 if qh else V_L0
            a(f'v_mul_f32 v{l}, v{l}, v{fr}')
        if nobr2 and L_r1.endswith('M'): a(f's_mov_b32 s{S_LIM}, 1000')
        a(f's_branch {L_r1b}')
        a(f'{L_r2}:')
        a('s_nop 7')
        for beta in range(32):
            for qh in range(2):
                fr = V_F1 if qh else V_F0
                b = Obase(beta, qh)
                if beta < 16:
                    for r in range(4): a(f'v_mul_f32 v{b+r}, v{b+r}, v{fr}')
                else:
                    for r in range(4): a(f'v_accvgpr_read_b32 v{120+r}, a{b+r}')
                    for r in range(4): a(f'v_mul_f32 v{120+r}, v{120+r}, v{fr}')
                    for r in range(4): a(f'v_accvgpr_write_b32 a{b+r}, v{120+r}')
        a(f's_branch {L_r2b}')
    a('code_end:')
    a('s_endpgm')
    kernel_desc(a, name, 512, 102, 256)
```

```python
from asmlib import *
from layout import *
from attn2 import LdsQ
from k2 import f2h

P_X, P_WQ, P_WK, P_WV, P_AO, P_UP, P_DW, P_DN, P_MG, P_OUT, P_DBG, P_WS = [56 + 2 * i for i in range(12)]

def prep(a, name, K, st, mid1, flagA, pollA, late, gl=3, fa_at=6, apace=8, wsoff=0, upf=False, warm=False, prew=True, swap45=False):
    V_L16 = K.V_L16
    V_T0, V_T1, V_T2, V_T3, V_TR, V_DT, V_LR, V_LS = 13, 14, 15, 12, 5, 6, 8, 9
    V_SW, V_AR, V_BR = 16, 160, 164
    V_ACC, V_PK, V_RA, V_RB = 32, 48, 64, 96
    RAW, F, SUM, MEAN, RSTD = 64, 96, 168, 172, 174
    S_SA, S_SB = 44, 48
    S_TI, S_TJ, S_OO, S_ROLE, S_RB, S_CB, S_BLK = 52, 53, 54, 55, 42, 43, K.S_T4
    S_W, S_T0, S_T1, S_T2 = K.S_W, K.S_T0, K.S_T1, K.S_T2
    SW, SX = [f's[{b}:{b+3}]' for b in (K.S_SRD, K.S_SRX)]
    SA, SB = [f's[{b}:{b+3}]' for b in (S_SA, S_SB)]
    LA_, LB_ = 32768, 98304
    a(f's_lshr_b32 s{S_BLK}, s{K.S_GTILE}, 1')
    a(f's_lshl_b32 s{S_BLK}, s{S_BLK}, 3')
    a(f's_bfe_u32 s{S_T0}, s2, 0x30003')
    a(f's_add_u32 s{S_BLK}, s{S_BLK}, s{S_T0}')
    a(f's_cmp_lt_u32 s{S_BLK}, 125')
    a(f's_cselect_b32 s{S_T2}, 0, 0x80000000')
    a(f's_min_u32 s{S_BLK}, s{S_BLK}, 124')
    a(f's_add_u32 s{S_BLK}, s{S_BLK}, s{K.S_B125}')
    a(f's_lshl_b32 s{S_BLK}, s{S_BLK}, 15')
    a('s_waitcnt lgkmcnt(0)')
    make_srd(a, K.S_SRX, P_X, 0, 8192000)
    for g in range(2):
        a(f's_add_u32 m0, s{K.S_W8K}, {g*4096}')
        a('s_nop 0')
        for i in range(4): a(f'buffer_load_dwordx4 v{K.V_DK1 if g else K.V_DK0}, {SX}, s{S_BLK} offen offset:{i*1024} lds')
    late()
    a(f'v_and_b32 v{V_T0}, 7, v0')
    a(f'v_lshrrev_b32 v{V_T1}, 3, v0')
    a(f'v_lshlrev_b32 v{V_LR}, 4, v{V_T1}')
    a(f'v_lshl_add_u32 v{V_LR}, v{V_T0}, 10, v{V_LR}')
    a(f'v_add_u32 v{V_LR}, s{K.S_W8K}, v{V_LR}')
    a(f'v_lshrrev_b32 v{V_T2}, 5, v0')
    a(f'v_lshlrev_b32 v{V_LS}, 11, v{V_T2}')
    a(f'v_and_b32 v{V_T2}, 3, v{V_T1}')
    a(f'v_lshl_add_u32 v{V_LS}, v{V_T2}, 8, v{V_LS}')
    a(f'v_lshl_add_u32 v{V_LS}, v{V_T0}, 4, v{V_LS}')
    a(f'v_or_b32 v{V_LS}, s{S_T2}, v{V_LS}')
    a(f's_and_b32 s{S_RB}, s{S_W}, 1')
    a(f's_lshr_b32 s{S_CB}, s{S_W}, 1')
    a(f's_lshl_b32 s{S_T1}, s{S_RB}, 7')
    a(f'v_xor_b32 v{V_SW}, s{S_T1}, v{V_L16}')
    for i in range(1, 8): a(f'v_xor_b32 v{V_SW+i}, {i*16}, v{V_SW}')
    a(f'v_bfe_u32 v{V_T2}, v0, 4, 1')
    a(f'v_lshlrev_b32 v{V_T2}, 2, v{V_T2}')
    a(f'v_xor_b32 v{V_T2}, v{V_T2}, v{V_T0}')
    a(f'v_lshlrev_b32 v{V_DT}, 4, v{V_T2}')
    a(f'v_lshl_add_u32 v{K.V_WD}, v{V_T1}, 11, v{V_DT}')
    a(f's_and_b32 s3, s2, 7')
    if swap45:
        a(f's_lshr_b32 s{S_T1}, s3, 1')
        a(f's_and_b32 s{S_T1}, s{S_T1}, 2')
        a(f's_xor_b32 s3, s3, s{S_T1}')
    a(f's_lshl_b32 s3, s3, 5')
    a(f's_lshr_b32 s{S_T1}, s2, 3')
    a(f's_add_u32 s3, s3, s{S_T1}')
    a(f's_and_b32 s{S_T2}, s2, 1')
    a(f's_lshl1_add_u32 s{S_T1}, s{S_T1}, s{S_T2}')
    a(f's_add_u32 s{S_T1}, s{S_T1}, 192')
    a(f's_cmp_ge_u32 s3, 192')
    a(f's_cselect_b32 s3, s{S_T1}, s3')
    a(f's_lshr_b32 s{S_ROLE}, s3, 6')
    a(f's_and_b32 s{S_TI}, s3, 7')
    a(f's_bfe_u32 s{S_TJ}, s3, 0x30003')
    make_srd(a, 96, P_DBG, 0, 256)
    a(f's_cmp_lt_u32 s2, 248\n s_cbranch_scc1 {name}_notag')
    a('s_memrealtime s[100:101]')
    a('v_mov_b32 v25, 0')
    a('s_waitcnt lgkmcnt(0)')
    a('s_or_b32 s100, s100, 1')
    a('v_mov_b32 v24, s100')
    a('s_mov_b64 exec, 1')
    a(f'buffer_atomic_cmpswap v[24:25], v{K.V_FO}, s[96:99], 0 offen sc1')
    a('s_mov_b64 exec, -1')
    a(f'{name}_notag:')
    def rows_dma(srd, sbase, ldsbase):
        a(f's_lshl_b32 s{S_T2}, s{S_W}, 14')
        a(f's_add_u32 s{S_T1}, s{sbase}, s{S_T2}')
        for g in range(4):
            a(f's_add_u32 m0, s{S_T2}, {ldsbase + g*4096}')
            if g: a(f's_add_u32 s{S_T1}, s{S_T1}, 4096')
            else: a('s_nop 0')
            for i in range(4):
                a(f'buffer_load_dwordx4 v{V_SW + 4*(g>>1) + i}, {srd}, s{S_T1} offen offset:{i*1024} lds')
    def tr_dma(npiece, stride_log2, sbase):
        a(f'v_lshl_add_u32 v{V_T3}, v{V_T1}, {stride_log2}, v{V_DT}')
        a(f's_mul_i32 s{S_T1}, s{S_W}, {npiece * 8 << stride_log2}')
        a(f's_add_u32 s{S_T1}, s{S_T1}, s{sbase}')
        a(f's_mul_i32 s{S_T2}, s{S_W}, {npiece * 1024}')
        for i in range(npiece):
            a(f's_add_u32 m0, s{S_T2}, {LB_ + i*1024}')
            if i: a(f's_add_u32 s{S_T1}, s{S_T1}, {8 << stride_log2}')
            else: a('s_nop 0')
            a(f'buffer_load_dwordx4 v{V_T3}, {SB}, s{S_T1} offen lds')
    def wpf(n):
        a(f'buffer_load_dword v26, v27, s[76:79], 0 offen')
        if warm: a(f'buffer_load_dword v26, v30, {SW}, s{K.S_T3} offen')
        a(f's_waitcnt vmcnt({n + 1 + (1 if warm else 0)})')
    if wsoff:
        a(f's_add_u32 s{P_WS}, s{P_WS}, {wsoff << 20}')
        a(f's_addc_u32 s{P_WS+1}, s{P_WS+1}, 0')
    make_srd(a, K.S_SRD, P_WS, 0, WS_SIZE)
    a(f's_mov_b32 s{K.S_X}, s{P_X}\n s_mov_b32 s{K.S_X+1}, s{P_X+1}')
    a(f's_mov_b32 s{K.S_WS}, s{P_WS}\n s_mov_b32 s{K.S_WS+1}, s{P_WS+1}')
    make_srd(a, K.S_SRO, P_OUT, 0, 8192000)
    make_srd(a, 76, P_UP, 0, 1024 * 1024)
    a(f's_lshr_b32 s{S_T1}, s2, 6')
    a(f's_lshl2_add_u32 s{S_T1}, s{S_T1}, s{S_W}')
    a(f's_lshl_b32 s{S_T1}, s{S_T1}, 16')
    a(f's_lshl_b32 s{S_T0}, s{S_T0}, 7')
    a(f's_add_u32 s{S_T1}, s{S_T1}, s{S_T0}')
    if upf:
        a(f'v_lshlrev_b32 v27, 10, v0')
    else:
        a(f's_add_u32 s{S_T1}, s{S_T1}, 1024')
        a(f'v_and_b32 v27, 31, v0')
        a(f'v_lshlrev_b32 v27, 11, v27')
    a(f'v_add_u32 v27, s{S_T1}, v27')
    if prew:
        lab = f'{name}_pw'
        a(f's_cmp_lg_u32 s{S_W}, 0\n s_cbranch_scc1 {lab}')
        a(f's_bfe_u32 s{S_T0}, s2, 0x30003')
        a(f's_and_b32 s{S_T1}, s2, 3')
        a(f's_lshl_b32 s{S_T1}, s{S_T1}, 2')
        a(f's_lshr_b32 s{S_T2}, s2, 6')
        a(f's_add_u32 s{S_T1}, s{S_T1}, s{S_T2}')
        a(f's_lshl_b32 s{S_T1}, s{S_T1}, 4')
        a(f's_and_b32 s{S_T2}, s2, 4')
        a(f's_lshl1_add_u32 s{S_T1}, s{S_T2}, s{S_T1}')
        a(f's_add_u32 s{S_T1}, s{S_T1}, s{S_T0}')
        a(f's_lshl_b32 s{S_T2}, s{K.S_GGRP}, 2')
        a(f's_and_b32 s{S_T2}, s{S_T2}, 0xf8')
        a(f's_add_u32 s{S_T2}, s{S_T2}, s{S_T0}')
        a(f'v_min_u32 v30, 6, v{V_T1}')
        a(f'v_mov_b32 v31, s{S_T2}')
        a(f'v_cmp_eq_u32 vcc, 0, v30')
        a(f'v_mov_b32 v252, s{S_T1}')
        a(f'v_mov_b32 v253, s3')
        a(f'v_cndmask_b32 v31, v31, v252, vcc')
        a(f'v_cmp_eq_u32 vcc, 6, v30')
        a(f'v_lshlrev_b32 v30, 15, v30')
        a(f'v_lshl_add_u32 v30, v{V_T0}, 4, v30')
        a(f'v_cndmask_b32 v31, v31, v253, vcc')
        a(f'v_lshl_add_u32 v30, v31, 7, v30')
        for i in range(4): a(f'v_mov_b32 v{252+i}, 0')
        a(f's_mov_b32 s{S_T1}, {ZF}')
        a(f'buffer_store_dwordx4 v[252:255], v30, {SW}, s{S_T1} offen sc1')
        a(f'{lab}:')
    if warm:
        T3 = K.S_T3
        a(f's_bfe_u32 s{S_T0}, s2, 0x30003')
        a(f's_and_b32 s{S_T1}, s2, 3')
        a(f's_lshl_b32 s{S_T1}, s{S_T1}, 2')
        a(f's_lshr_b32 s{S_T2}, s2, 6')
        a(f's_add_u32 s{S_T1}, s{S_T1}, s{S_T2}')
        a(f's_lshl_b32 s{S_T1}, s{S_T1}, 4')
        a(f's_and_b32 s{S_T2}, s2, 4')
        a(f's_lshl1_add_u32 s{S_T1}, s{S_T2}, s{S_T1}')
        a(f's_add_u32 s{S_OO}, s{S_T1}, s{S_T0}')
        lab = f'{name}_wm'
        a(f's_lshl_b32 s{T3}, s{K.S_GGRP}, 2')
        a(f's_and_b32 s{T3}, s{T3}, 0xf8')
        a(f's_add_u32 s{T3}, s{T3}, s{S_T0}')
        a(f's_lshl_b32 s{T3}, s{T3}, 7')
        a(f's_add_u32 s{T3}, s{T3}, {ZF}')
        a(f's_mov_b32 s{S_T1}, {2*ZK}\n s_mov_b32 s{S_T2}, {ZK}')
        a(f's_cmp_eq_u32 s{S_W}, 0\n s_cbranch_scc1 {lab}')
        a(f's_lshl_b32 s{T3}, s{S_OO}, 11')
        a(f's_add_u32 s{T3}, s{T3}, {WS_W + 16 * TILE}')
        a(f's_mov_b32 s{S_T1}, 256\n s_mov_b32 s{S_T2}, 128')
        a(f's_cmp_eq_u32 s{S_W}, 1\n s_cbranch_scc1 {lab}')
        a(f's_lshr_b32 s{T3}, s{K.S_GTILE}, 1')
        a(f's_lshl_b32 s{T3}, s{T3}, 3')
        a(f's_add_u32 s{T3}, s{T3}, s{K.S_B125}')
        a(f's_lshl_b32 s{T3}, s{T3}, 3')
        a(f's_add_u32 s{T3}, s{T3}, s{S_T0}')
        a(f's_lshl_b32 s{T3}, s{T3}, 8')
        a(f's_add_u32 s{T3}, s{T3}, {WS_ST}')
        a(f's_mov_b32 s{S_T1}, 2048')
        a(f's_cmp_eq_u32 s{S_W}, 2\n s_cbranch_scc1 {lab}')
        a(f's_lshl_b32 s{T3}, s{S_OO}, 7')
        a(f's_lshl_b32 s{S_T2}, s3, 7')
        a(f's_add_u32 s{S_T2}, s{S_T2}, {6*ZK}')
        a(f's_sub_u32 s{S_T2}, s{S_T2}, s{T3}')
        a(f's_add_u32 s{T3}, s{T3}, {ZF}')
        a(f's_mov_b32 s{S_T1}, 0')
        a(f'{lab}:')
        a(f'v_bfe_u32 v30, v0, 1, 3')
        a(f'v_mul_lo_u32 v30, v30, s{S_T1}')
        a(f'v_and_b32 v31, 1, v0')
        a(f'v_mul_lo_u32 v31, v31, s{S_T2}')
        a(f'v_add_u32 v30, v30, v31')
    a(f's_cmp_eq_u32 s{S_ROLE}, 3\n s_cbranch_scc1 {name}_i3')
    a(f's_cmp_eq_u32 s{S_ROLE}, 1\n s_cbranch_scc1 {name}_i1')
    a(f's_cmp_eq_u32 s{S_ROLE}, 0')
    a(f's_cselect_b32 s{S_SA}, s{P_AO}, s{P_DN}')
    a(f's_cselect_b32 s{S_SA+1}, s{P_AO+1}, s{P_DN+1}')
    a(f's_cselect_b32 s{S_T0}, 0, {512*1024}')
    a(f's_mov_b32 s{S_SA+2}, {512*1024}\n s_mov_b32 s{S_SA+3}, 0x20000')
    make_srd(a, S_SB, P_MG, 0, 1024 * 1024)
    a(f's_lshl_b32 s{S_T1}, s{S_TJ}, 7')
    a(f's_add_u32 s{S_T0}, s{S_T0}, s{S_T1}')
    tr_dma(16, 10, S_T0)
    wpf(16)
    a(f's_branch {name}_ln')
    a(f'{name}_i1:')
    make_srd(a, S_SA, P_WQ, 0, 512 * 1024)
    make_srd(a, S_SB, P_WK, 0, 512 * 1024)
    a(f's_lshl_b32 s{S_T0}, s{S_TJ}, 16')
    rows_dma(SB, S_T0, LB_)
    wpf(16)
    a(f's_branch {name}_ln')
    a(f'{name}_i3:')
    make_srd(a, S_SA, P_WV, 0, 512 * 1024)
    a(f's_cmp_ge_u32 s3, 208\n s_cbranch_scc1 {name}_i5')
    wpf(0)
    a(f's_branch {name}_ln')
    a(f'{name}_i5:')
    make_srd(a, S_SB, P_DW, 0, 31 * 1024)
    a(f's_mov_b32 s{S_SA+2}, 0')
    a(f's_sub_u32 s{S_OO}, s3, 208')
    a(f's_lshl2_add_u32 s{S_OO}, s{S_OO}, s{S_W}')
    a(f's_min_u32 s{S_OO}, s{S_OO}, 159')
    a(f'v_bfe_u32 v{V_T2}, v0, 4, 2')
    a(f'v_bfe_u32 v{V_T3}, v0, 2, 2')
    a(f'v_lshl_add_u32 v{V_T2}, v{V_T2}, 3, v{V_T3}')
    a(f'v_lshlrev_b32 v{V_T2}, 1, v{V_T2}')
    a(f'v_and_b32 v{V_T3}, 3, v0')
    a(f'v_add_u32 v{V_T3}, 1, v{V_T3}')
    a(f'v_lshlrev_b32 v{V_T3}, 10, v{V_T3}')
    a(f'v_sub_u32 v{V_T2}, v{V_T2}, v{V_T3}')
    a(f's_mul_i32 s{S_T1}, s{S_OO}, 52429')
    a(f's_lshr_b32 s{S_T1}, s{S_T1}, 18')
    a(f's_mul_i32 s{S_T2}, s{S_T1}, 5')
    a(f's_sub_u32 s{S_T0}, s{S_OO}, s{S_T2}')
    a(f's_lshl_b32 s{S_T0}, s{S_T0}, 13')
    a(f's_lshr_b32 s{S_T2}, s{S_T1}, 1')
    a(f's_lshl_b32 s{S_T2}, s{S_T2}, 6')
    a(f's_add_u32 s{S_T0}, s{S_T0}, s{S_T2}')
    a(f's_and_b32 s{S_T1}, s{S_T1}, 1')
    a(f's_lshl_b32 s{S_T1}, s{S_T1}, 3')
    a(f's_add_u32 s{S_T0}, s{S_T0}, s{S_T1}')
    a(f'v_add_u32 v{V_T3}, s{S_T0}, v{V_T2}')
    for e in range(8):
        a(f'buffer_load_ushort v{V_ACC+e}, v{V_T3}, {SB}, 0 offen')
        if e < 7: a(f'v_add_u32 v{V_T3}, 1024, v{V_T3}')
    wpf(8)
    a(f'{name}_ln:')
    st(40)
    aq = []
    for g in range(4):
        hd = [f's_add_u32 m0, s{S_T2}, {LA_ + g*4096}', f's_add_u32 s{S_T1}, s{S_T1}, 4096' if g else 's_nop 0']
        for i in range(4):
            aq.append(hd + [f'buffer_load_dwordx4 v{V_SW + 4*(g>>1) + i}, {SA}, s{S_T1} offen offset:{i*1024} lds']); hd = []
    a(f's_lshl_b32 s{S_T2}, s{S_W}, 14')
    a(f's_lshl_b32 s{S_T1}, s{S_TI}, 16')
    a(f's_add_u32 s{S_T1}, s{S_T1}, s{S_T2}')
    cn = [0]
    def c(o):
        a(o); cn[0] += 1
        if cn[0] % apace == 0 and aq:
            for x in aq.pop(0): a(x)
    for i in range(8): a(f'ds_read_b128 {vr(RAW+4*i,4)}, v{V_LR} offset:{i*128}')
    for i in range(4): a(f'v_mov_b32 v{SUM+i}, 0')
    for s in range(8):
        a(f's_waitcnt lgkmcnt({7-s})')
        for i in range(4):
            r = RAW + 4 * s + i; f = F + 8 * s + 2 * i
            c(f'v_lshlrev_b32 v{f}, 16, v{r}')
            c(f'v_and_b32 v{f+1}, 0xffff0000, v{r}')
        for i in range(4):
            f = F + 8 * s + 2 * i; acc = SUM + 2 * (i & 1)
            c(f'v_pk_add_f32 {vr(acc,2)}, {vr(acc,2)}, {vr(f,2)}')
    def reduce8(dst):
        a(f'v_pk_add_f32 {vr(SUM,2)}, {vr(SUM,2)}, {vr(SUM+2,2)}')
        a(f'v_add_f32 v{dst}, v{SUM}, v{SUM+1}')
        a('s_nop 1')
        a(f'v_add_f32_dpp v{dst}, v{dst}, v{dst} row_ror:8 row_mask:0xf bank_mask:0xf')
        for sw in ('v_permlane16_swap_b32', 'v_permlane32_swap_b32'):
            a(f'v_mov_b32 v{V_T2}, v{dst}')
            a('s_nop 1')
            a(f'{sw} v{V_T2}, v{dst}')
            a('s_nop 1')
            a(f'v_add_f32 v{dst}, v{dst}, v{V_T2}')
    reduce8(MEAN)
    a(f'v_mul_f32 v{MEAN}, {f2h(-1.0/512)}, v{MEAN}')
    for i in range(4): a(f'v_mov_b32 v{SUM+i}, 0')
    for k in range(32):
        f = F + 2 * k
        c(f'v_pk_add_f32 {vr(f,2)}, {vr(f,2)}, {vr(MEAN,2)} op_sel_hi:[1,0]')
        if k:
            g = f - 2; acc = SUM + 2 * (k & 1)
            c(f'v_pk_fma_f32 {vr(acc,2)}, {vr(g,2)}, {vr(g,2)}, {vr(acc,2)}')
    g = F + 62
    a(f'v_pk_fma_f32 {vr(SUM,2)}, {vr(g,2)}, {vr(g,2)}, {vr(SUM,2)}')
    reduce8(RSTD)
    a(f'v_mov_b32 v{V_T2}, {f2h(1e-5)}')
    a(f'v_fmac_f32 v{V_T2}, {f2h(1.0/512)}, v{RSTD}')
    a(f'v_rsq_f32 v{RSTD}, v{V_T2}')
    while aq:
        for x in aq.pop(0): a(x)
    a(f's_lshl_b32 s{S_T0}, s{S_CB}, 10')
    a(f's_lshl_b32 s{S_T1}, s{S_RB}, 7')
    a(f's_add_u32 s{S_T0}, s{S_T0}, s{S_T1}')
    a(f's_add_u32 s{S_T0}, s{S_T0}, s{S_BLK}')
    if WS_XA: a(f's_add_u32 s{S_T0}, s{S_T0}, {WS_XA}')
    for s in range(8):
        for i in range(4):
            f = F + 8 * s + 2 * i
            a(f'v_pk_mul_f32 {vr(f,2)}, {vr(f,2)}, {vr(RSTD,2)} op_sel_hi:[1,0]')
        for i in range(4):
            f = F + 8 * s + 2 * i
            a(f'v_cvt_pk_bf16_f32 v{RAW+4*s+i}, v{f}, v{f+1}')
        if s: a(f's_add_u32 s{S_T0}, s{S_T0}, 4096')
        a(f'buffer_store_dwordx4 {vr(RAW+4*s,4)}, v{V_LS}, {SW}, s{S_T0} offen sc1')
    a('v_mov_b32 v25, 0')
    a('buffer_load_dword v24, v25, s[96:99], 0 offen sc1')
    st(41)
    a(f'v_and_b32 v{V_T0}, 15, v0')
    a(f'v_lshrrev_b32 v{V_T1}, 4, v0')
    a(f'v_bfe_u32 v{V_T2}, v0, 2, 2')
    a(f'v_and_b32 v{V_T3}, 3, v0')
    a(f'v_lshl_add_u32 v{V_TR}, v{V_T2}, 3, v{V_T3}')
    a(f'v_lshlrev_b32 v{V_TR}, 10, v{V_TR}')
    a(f'v_xor_b32 v{V_T0}, v{V_T0}, v{V_T1}')
    a(f'v_lshl_add_u32 v{V_TR}, v{V_T0}, 4, v{V_TR}')
    a(f's_lshl_b32 s{S_T0}, s{S_RB}, 15')
    a(f's_add_u32 s{S_T0}, s{S_T0}, {LA_}')
    a(f's_lshl_b32 s{S_T1}, s{S_CB}, 15')
    a(f's_add_u32 s{S_T1}, s{S_T1}, {LB_}')
    for i in range(4):
        a(f'v_xor_b32 v{V_T0}, {i*64}, v{V_TR}')
        a(f'v_add_u32 v{V_AR+i}, s{S_T0}, v{V_T0}')
        a(f'v_add_u32 v{V_BR+i}, s{S_T1}, v{V_T0}')
    a(f'v_bfe_u32 v{V_T0}, v0, 3, 1')
    a(f'v_lshl_add_u32 v{V_T0}, v{V_T0}, 2, v{V_T3}')
    a(f'v_lshlrev_b32 v{K.V_WT0}, 4, v{V_T0}')
    a(f'v_lshl_add_u32 v{K.V_WT0}, v{V_T2}, 7, v{K.V_WT0}')
    a(f'v_lshl_add_u32 v{K.V_WT0}, v{V_T1}, 10, v{K.V_WT0}')
    a(f'v_xor_b32 v{K.V_WT1}, 64, v{K.V_WT0}')
    a(f's_lshl_b32 s{S_T0}, s{S_CB}, 6')
    a(f'v_xor_b32 v{V_TR}, s{S_T0}, v{K.V_WT0}')
    a(f'v_add_u32 v{V_TR}, {LB_}, v{V_TR}')
    a('s_waitcnt vmcnt(9)')
    a('s_barrier')
    st(42)
    mid1()
    tagl = []
    def publishA():
        lab = a.label(name + '_tag'); tagl.append(lab)
        a('s_waitcnt vmcnt(8)')
        a(f'{lab}w:')
        a(f'v_readfirstlane_b32 s{K.S_TAG}, v24')
        a('s_nop 3')
        a(f's_cmp_eq_u32 s{K.S_TAG}, 0')
        a(f's_cbranch_scc1 {lab}s')
        a('s_barrier')
        flagA()
    def rd_rows(base):
        return lambda s, h, dst: [f'ds_read_b128 {vr(dst,4)}, v{base + (s & 3)} offset:{h*4096 + (s >> 2)*256}']
    def rd_tr(s, h, dst):
        return [f'ds_read_b64_tr_b16 {vr(dst+2*jj,2)}, v{V_TR} offset:{s*4096 + jj*512 + h*8}' for jj in range(2)]
    def gemm(rdB):
        rdA = rd_rows(V_AR)
        q = LdsQ()
        def issue(s):
            for h in range(2):
                for o in rdA(s, h, V_RA + 8 * (s % 4) + 4 * h): a(o); q.issue(s)
            for h in range(2):
                for o in rdB(s, h, V_RB + 8 * (s % 4) + 4 * h): a(o); q.issue(s)
        for s in range(gl): issue(s)
        for s in range(16):
            a(f's_waitcnt lgkmcnt({min(15, q.need(s))})')
            for ch in range(2):
                for b in range(2):
                    d = vr(V_ACC + ch * 8 + b * 4, 4)
                    a(f'v_mfma_f32_16x16x32_bf16 {d}, {vr(V_RA+8*(s%4)+4*b,4)}, {vr(V_RB+8*(s%4)+4*ch,4)}, {d if s else 0}')
                if ch == 0 and s + gl < 16: issue(s + gl)
            if s == fa_at: publishA()
        pollA()
        a('s_nop 6')
    a(f's_cmp_eq_u32 s{S_ROLE}, 3\n s_cbranch_scc1 {name}_c3')
    a(f's_lshl1_add_u32 s{S_OO}, s{S_TJ}, s{S_CB}')
    a(f's_lshl_b32 s{S_OO}, s{S_OO}, 15')
    a(f's_lshl1_add_u32 s{S_T0}, s{S_TI}, s{S_RB}')
    a(f's_lshl_b32 s{S_T0}, s{S_T0}, 11')
    a(f's_add_u32 s{S_OO}, s{S_OO}, s{S_T0}')
    a(f's_cmp_eq_u32 s{S_ROLE}, 1\n s_cbranch_scc1 {name}_c1')
    a(f's_cmp_eq_u32 s{S_ROLE}, 0')
    a(f's_cselect_b32 s{S_T0}, {WS_T1 - WS_WC}, 0')
    a(f's_add_u32 s{S_OO}, s{S_OO}, s{S_T0}')
    a(f's_add_u32 s{S_OO}, s{S_OO}, {WS_WC}')
    gemm(rd_tr)
    a(f's_branch {name}_out')
    a(f'{name}_c1:')
    a(f's_add_u32 s{S_OO}, s{S_OO}, {WS_W}')
    gemm(rd_rows(V_BR))
    a(f's_mov_b32 s{S_T1}, {f2h(512 ** -0.5 * 1.4426950408889634)}')
    for i in range(16): a(f'v_mul_f32 v{V_ACC+i}, s{S_T1}, v{V_ACC+i}')
    a(f'{name}_out:')
    for i in range(8): a(f'v_cvt_pk_bf16_f32 v{V_PK+i}, v{V_ACC+2*i}, v{V_ACC+2*i+1}')
    for ch in range(2):
        a(f'buffer_store_dwordx4 {vr(V_PK+4*ch,4)}, v{V_L16}, {SW}, s{S_OO} offen offset:{ch*1024} sc1')
    a(f's_branch {name}_pfin')
    a(f'{name}_c3:')
    publishA()
    a(f's_cmp_ge_u32 s3, 208\n s_cbranch_scc1 {name}_c5')
    a(f's_lshl1_add_u32 s{S_T1}, s{S_TJ}, s{S_CB}')
    a(f's_lshl_b32 s{S_T0}, s{S_T1}, 8')
    for i in range(4): a(f'v_add_u32 v{V_AR+i}, s{S_T0}, v{V_AR+i}')
    for i in range(8):
        for o in rd_rows(V_AR)(i >> 1, i & 1, V_RA + 4 * i): a(o)
    a(f's_lshl1_add_u32 s{S_OO}, s{S_TI}, s{S_RB}')
    a(f's_lshl_b32 s{S_OO}, s{S_OO}, 15')
    a(f's_lshl_b32 s{S_T0}, s{S_T1}, 13')
    a(f's_add_u32 s{S_OO}, s{S_OO}, s{S_T0}')
    a(f's_add_u32 s{S_OO}, s{S_OO}, {WS_RL}')
    for i in range(8):
        if i % 4 == 0 and i: a(f's_add_u32 s{S_OO}, s{S_OO}, 4096')
        a(f's_waitcnt lgkmcnt({7 - i})')
        a(f'buffer_store_dwordx4 {vr(V_RA+4*i,4)}, v{V_L16}, {SW}, s{S_OO} offen offset:{(i%4)*1024} sc1')
    a(f's_branch {name}_c6')
    a(f'{name}_c5:')
    for i in range(4): a(f'v_lshl_or_b32 v{V_RA+i}, v{V_ACC+2*i+1}, 16, v{V_ACC+2*i}')
    a(f's_lshl_b32 s{S_T0}, s{S_OO}, 10')
    a(f's_add_u32 s{S_T0}, s{S_T0}, {WS_DWT}')
    a(f'buffer_store_dwordx4 {vr(V_RA,4)}, v{V_L16}, {SW}, s{S_T0} offen sc1')
    a(f'{name}_c6:')
    a('s_waitcnt vmcnt(0)')
    pollA()
    a('s_waitcnt vmcnt(0)')
    a(f'{name}_pfin:')
    def slow():
        for lab in tagl:
            a(f'{lab}s:')
            a('s_sleep 4')
            a('buffer_load_dword v24, v25, s[96:99], 0 offen sc1')
            a('s_waitcnt vmcnt(0)')
            a(f's_branch {lab}w')
    return slow
```

```python
from asmlib import *
from layout import *
from attn2 import LdsQ
from k2 import f2h, VmQ
import re
import pz

def regs_of(tok):
    m = re.match(r'-?v\[(\d+):(\d+)\]', tok)
    if m: return set(range(int(m.group(1)), int(m.group(2)) + 1))
    m = re.match(r'-?v(\d+)$', tok)
    if m: return {int(m.group(1))}
    m = re.match(r's(\d+)$', tok)
    if m: return {1000 + int(m.group(1))}
    return set()
def rw(op):
    name_, rest = op.split(' ', 1)
    toks = [t.strip().split(' ')[0] for t in rest.split(' quad_perm')[0].split(',')]
    if name_.startswith('buffer_store'): return set().union(*[regs_of(t) for t in toks]), set()
    w = regs_of(toks[0]); r = set().union(*[regs_of(t) for t in toks[1:]])
    if name_.startswith('v_fmac') or 'dpp' in name_: r |= w
    return r, w

def rg4(a, name, K, st, stamp, vm, hooks, slows, late, LA=5, wait_every=4, bar_back=8, over=1, over2=0, XPRE=16, st_flags='sc1', fdelay=20, fdelayq=14, defer=0, pp=(14, 34, 56), rp=(20, 100, 128, 156), fastx=78, zinv=True, wc0dep=False, uearly=0, o1={}):
    V_L16, V_DK0, V_DK1 = K.V_L16, K.V_DK0, K.V_DK1
    V_ST0, V_ST1, V_RA, V_C0, V_C1, V_FO, V_FL, V_T0, V_T1 = 3, 4, 5, 8, 9, 10, 11, 13, 14
    V_WT, V_WD, S_TAG = (K.V_WT0, K.V_WT1), K.V_WD, K.S_TAG
    V_Z, V_HV, V_SS, V_RING, V_GP, V_STG = 16, 24, 32, 64, 96, 112
    NR = 7
    S_W, S_W8K = K.S_W, K.S_W8K
    S_CG, S_WOFF, S_B0, S_B1, S_XO, S_M0, S_M1, S_U, S_FI, S_S0 = 64, 65, 66, 67, 68, 69, 70, 71, 72, 73
    S_RAW = K.S_FLO
    S_T0, S_T1, S_T2 = K.S_T0, K.S_T1, K.S_T2
    SRD = f's[{K.S_SRD}:{K.S_SRD+3}]'
    q = LdsQ()
    def emit(o, tag=None):
        a(o)
        if o.startswith('buffer_'): vm.issue(tag)
        if o.startswith('ds_'): q.issue(tag)
    seq = ['g', 'g', 'u', 'u', 'q', 'q', 'v', 'v']
    half = [0, 1, 0, 1, 0, 1, 0, 1]
    ACN = [128, 160, 192, 224, 128, 32, 128, 32]
    wbase = {'q': 0, 'v': 16, 'u': 32, 'g': 48}
    obase = {'q': WS_Q, 'v': WS_VT, 'u': WS_UC, 'g': WS_G}
    BUF = {4: 4, 5: 1, 6: 3, 7: 2}
    def dma(n):
        out = []
        for g in range(2):
            pre = [f's_add_u32 s{S_T1}, s{S_WOFF}, {(wbase[seq[n]] + half[n]) * TILE}'] if g == 0 else []
            pre += [f's_add_u32 m0, s{S_W8K}, {BUF[n] * TILE + g*4096}', 's_nop 0']
            for i in range(4):
                out.append(pre + [(f'buffer_load_dwordx4 v{V_DK1 if g else V_DK0}, {SRD}, s{S_T1} offen offset:{i*1024} sc1 lds', ('W', n))]); pre = []
        return out
    def rawdma(n, kh):
        out = []
        for i in range(8):
            pre = [f's_add_u32 m0, s{S_W8K}, {(n + kh) * TILE + i*1024}', f's_add_u32 s{S_T1}, s{S_RAW}, {(1024 if seq[n] == "g" else 0) + kh * (1 << 19) + i * 16384}']
            out.append(pre + [(f'buffer_load_dwordx4 v{V_WD}, s[76:79], s{S_T1} offen lds', ('W', n, kh))])
        return out
    def run(groups):
        for g in groups:
            for o in g:
                if isinstance(o, tuple): emit(*o)
                else: a(o)
    PA_, PB_, PC = 192, 224, 112
    def flag(kind):
        a(f's_lshl_b32 s{S_T2}, s{ {0: S_U, 6: 3}.get(kind, S_FI) }, 7')
        a(f's_add_u32 s{S_T2}, s{S_T2}, {ZF + ZK * kind}')
        a(f'v_mov_b32 v{V_T1}, s{S_TAG}')
        emit(f'buffer_store_dword v{V_T1}, v{V_FO}, {SRD}, s{S_T2} offen sc1')
    def mid1():
        a(f's_bfe_u32 s{S_CG}, s2, 0x30003')
        a(f's_lshl_b32 s{S_FI}, s{K.S_GGRP}, 2')
        a(f's_and_b32 s{S_FI}, s{S_FI}, 0xf8')
        a(f's_lshl_b32 s{S_XO}, s{S_FI}, 7')
        a(f's_add_u32 s{S_FI}, s{S_FI}, s{S_CG}')
        a(f's_lshl_b32 s{S_RAW}, s{S_W}, 17')
        a(f's_lshl_b32 s{S_T1}, s{S_CG}, 7')
        a(f's_add_u32 s{S_RAW}, s{S_RAW}, s{S_T1}')
        run(rawdma(0, 0))
        a(f's_add_u32 s{S_XO}, s{S_XO}, {ZF + 5 * ZK}')
        a(f'v_and_b32 v{V_FL}, 7, v0')
        a(f'v_lshlrev_b32 v{V_FL}, 7, v{V_FL}')
    def pollA():
        a(f'buffer_load_dword v27, v{V_FL}, {SRD}, s{S_XO} offen sc1')
    tagslow = pz.prep(a, name, K, st, mid1, lambda: flag(5), pollA, late, **o1)
    vm.issue('role'); vm.issue('role')
    a(f's_lshr_b32 s{S_T0}, s{K.S_GTILE}, 1')
    a(f's_lshl_b32 s{S_T0}, s{S_T0}, 3')
    a(f's_lshl1_add_u32 s{S_T0}, s{S_W}, s{S_T0}')
    for rb, (sb, vs) in enumerate(((S_B0, V_ST0), (S_B1, V_ST1))):
        a(f's_add_u32 s{sb}, s{S_T0}, {rb}')
        a(f's_cmp_lt_u32 s{sb}, 125')
        a(f's_cselect_b32 s{S_T1}, 0, 0x80000000')
        a(f'v_or_b32 v{vs}, s{S_T1}, v{V_L16}')
        a(f's_min_u32 s{sb}, s{sb}, 124')
        a(f's_add_u32 s{sb}, s{sb}, s{K.S_B125}')
        a(f's_lshl_b32 s{sb}, s{sb}, 15')
    def xload(i):
        rb, f = i >> 5, i & 31
        pre = []
        if f == 0: pre = [f's_add_u32 s{S_XO}, s{S_B1 if rb else S_B0}, {WS_XA}']
        elif f % 4 == 0: pre = [f's_add_u32 s{S_XO}, s{S_XO}, 4096']
        return pre + [(f'buffer_load_dwordx4 {ar(4*i,4)}, v{(V_ST1 if rb else V_ST0) if zinv else V_L16}, {SRD}, s{S_XO} offen offset:{(f%4)*1024} sc1', ('X', i))]
    a('s_waitcnt vmcnt(4)')
    a('s_barrier')
    run(rawdma(0, 1))
    ue = (rawdma(2, 0) + rawdma(2, 1))
    run(ue[:uearly])
    a(f's_lshl_b32 s{S_WOFF}, s{S_CG}, 16')
    a(f's_add_u32 s{S_WOFF}, s{S_WOFF}, {WS_W}')
    a(f's_and_b32 s{S_T0}, s2, 3')
    a(f's_lshl_b32 s{S_M1}, s{S_T0}, 2')
    a(f's_lshr_b32 s{S_T2}, s2, 6')
    a(f's_add_u32 s{S_M1}, s{S_M1}, s{S_T2}')
    a(f's_and_b32 s{S_M0}, s2, 4')
    a(f's_lshl_b32 s{S_M0}, s{S_M0}, 1')
    a(f's_add_u32 s{S_M0}, s{S_M0}, s{S_CG}')
    a(f's_lshl_b32 s{S_U}, s{S_M1}, 4')
    a(f's_add_u32 s{S_U}, s{S_U}, s{S_M0}')
    a(f's_lshl_b32 s{S_M0}, s{S_M0}, 15')
    a(f's_add_u32 s{S_M0}, s{S_M0}, {WS_RL}')
    a(f's_lshl_b32 s{S_M1}, s{S_M1}, 15')
    a(f's_add_u32 s{S_M1}, s{S_M1}, {WS_T1}')
    c0 = -2.0 * 0.7978845608028654 * 1.4426950408889634
    a(f'v_mov_b32 v{V_C0}, {f2h(c0)}')
    a(f'v_mov_b32 v{V_C1}, {f2h(c0 * 0.044715)}')
    a(f'v_add_u32 v{V_RA}, {2*TILE}, v{V_L16}')
    for i in range(32): a(f'v_mov_b32 v{V_SS+i}, 0')
    a(f's_lshl_b32 s{S_T2}, s{S_CG}, 12')
    a(f's_add_u32 s46, s{S_B0}, s{S_T2}')
    a(f's_add_u32 s47, s{S_B1}, s{S_T2}')
    OS = {'g': 56, 'u': 58, 'q': 60, 'v': 52}
    for ty in 'guqv':
        for rb in range(2): a(f's_add_u32 s{OS[ty]+rb}, s{46+rb}, {obase[ty]}')
    a(f'v_lshrrev_b32 v{V_T0}, 3, v0')
    a(f'v_and_b32 v{V_T1}, 7, v0')
    a(f's_lshl_b32 s{S_T2}, s{S_CG}, 3')
    a(f's_add_u32 s{S_T2}, s{S_T2}, 64')
    a(f'v_add_u32 v113, s{S_T2}, v{V_T1}')
    a(f's_lshr_b32 s{S_T2}, s{S_U}, 5')
    a(f's_lshl_b32 s{S_T2}, s{S_T2}, 3')
    a(f'v_add_u32 v114, s{S_T2}, v{V_T1}')
    a(f'v_cmp_eq_u32 vcc, 1, v{V_T0}')
    a(f's_lshl_b32 s{S_T2}, s{K.S_SPLIT}, 4')
    a(f's_add_u32 s{S_T2}, s{S_T2}, {128 - 24}')
    a(f'v_cndmask_b32 v113, v113, v114, vcc')
    a(f'v_add_u32 v114, s{S_T2}, v0')
    a(f'v_subrev_u32 v115, 3, v{V_T0}')
    a(f'v_cmp_gt_u32 vcc, 2, v115')
    a(f's_mul_i32 s{S_T2}, s{S_CG}, 5')
    a(f's_add_u32 s{S_T2}, s{S_T2}, 206')
    a(f'v_cndmask_b32 v113, v113, v114, vcc')
    if wc0dep:
        a(f'v_add_u32 v114, {128 - 40}, v0')
        a(f'v_subrev_u32 v115, 5, v{V_T0}')
        a(f'v_cmp_gt_u32 vcc, 2, v115')
        a('s_nop 1')
        a(f'v_cndmask_b32 v113, v113, v114, vcc')
    a(f'v_min_u32 v114, 6, v{V_T1}')
    a(f'v_add_u32 v114, s{S_T2}, v114')
    a(f'v_cmp_eq_u32 vcc, 2, v{V_T0}')
    a(f's_bfe_u32 s{S_T2}, s{S_U}, 0x30001')
    a(f's_add_u32 s{S_T2}, s{S_T2}, 192')
    a(f'v_cndmask_b32 v113, v113, v114, vcc')
    a(f'v_lshl_add_u32 v114, v{V_T1}, 3, s{S_T2}')
    a(f'v_subrev_u32 v115, 16, v0')
    a(f'v_cmp_gt_u32 vcc, 2, v115')
    a('s_nop 1')
    a(f'v_cndmask_b32 v113, v113, v114, vcc')
    a(f'v_lshlrev_b32 v113, 7, v113')
    PC = 92
    def p3dma():
        out = []
        for b, so in ((0, S_M0), (1, S_M1)):
            for h in range(2):
                pre = [f's_add_u32 m0, s{S_W8K}, {b * TILE + h*4096}', 's_nop 0']
                for i in range(4):
                    out.append(pre + [(f'buffer_load_dwordx4 v{V_DK1 if h else V_DK0}, {SRD}, s{so} offen offset:{i*1024} sc1 lds', 'p3')]); pre = []
        return out
    a(f's_and_b32 s{S_T2}, s{S_W}, 1')
    a(f's_lshl_b32 s{S_T2}, s{S_T2}, 10')
    a(f'v_add_u32 v30, s{S_T2}, v{V_L16}')
    a(f's_lshr_b32 s{S_T2}, s{S_W}, 1')
    a(f's_lshl_b32 s{S_T2}, s{S_T2}, 10')
    a(f'v_add_u32 v31, s{S_T2}, v{V_L16}')
    def p3step(j):
        b = V_STG + 8 * (j % 2)
        if 2 <= j < 18:
            a(f's_waitcnt lgkmcnt({min(15, q.need(("p3r", j - 2)))})')
            a(f'v_mfma_f32_16x16x32_bf16 {vr(PC,4)}, {vr(b,4)}, {vr(b+4,4)}, {vr(PC,4) if j > 2 else 0}')
        if j < 16:
            emit(f'ds_read_b128 {vr(b,4)}, v30 offset:{j*2048}', ('p3r', j))
            emit(f'ds_read_b128 {vr(b+4,4)}, v31 offset:{TILE + j*2048}', ('p3r', j))
        if j == 18:
            a(f's_lshl_b32 s{S_M0}, s{S_U}, 11')
            a(f's_lshl_b32 s{S_T2}, s{S_W}, 9')
            a(f's_add_u32 s{S_M0}, s{S_M0}, s{S_T2}')
            a(f's_add_u32 s{S_M0}, s{S_M0}, {WS_W + 16 * TILE}')
            a(f'v_lshlrev_b32 v30, 3, v0')
            a(f'v_add_u32 v{V_RA}, {2*TILE}, v30')
            a('s_nop 1')
            for i in range(2): a(f'v_cvt_pk_bf16_f32 v{PC+i}, v{PC+2*i}, v{PC+2*i+1}')
            emit(f'buffer_store_dwordx2 {vr(PC,2)}, v30, {SRD}, s{S_M0} offen sc1', 'p3s')

    stream = []
    for rb in range(2):
        for s in range(16):
            for n in range(2):
                for ch in range(2): stream.append((n, s, ch, rb))
    for n in range(2, 8):
        for f in range(32): stream.append((n, f & 15, f >> 4, None))
    NS = len(stream)
    def slot(G): return V_RING + 4 * (G % NR)
    def rd(G):
        n, s, ch, rb = stream[G]
        if seq[n] in 'gu':
            return [f'ds_read_b64_tr_b16 {vr(slot(G)+2*jj, 2)}, v{V_WT[half[n]]} offset:{s*4096 + jj*512 + ch*8}' for jj in range(2)]
        if seq[n] == 'v':
            o0 = (BUF[n] - 2) * 64 + (2 * s + ch) * 2
            return [f'ds_read2st64_b64 {vr(slot(G), 4)}, v{V_RA} offset0:{o0} offset1:{o0 + 1}']
        reg, off = {4: (V_WD, 0), 1: (V_L16, TILE), 3: (V_RA, TILE), 2: (V_RA, 0)}[BUF[n]]
        return [f'ds_read_b128 {vr(slot(G), 4)}, v{reg} offset:{off + (2 * s + ch) * 1024}']
    def mf(n, s, ch, rb, rh, G):
        x = ar(rb * 128 + (s * 2 + rh) * 4, 4); w = vr(slot(G), 4)
        if seq[n] in 'vg': d = vr(ACN[n] + 16 * rb + ch * 8 + rh * 4, 4); A, B = x, w
        else: d = vr(ACN[n] + 16 * rb + rh * 8 + ch * 4, 4); A, B = w, x
        return f'v_mfma_f32_16x16x32_bf16 {d}, {A}, {B}, {d if s else 0}'
    def mfmas(G):
        n, s, ch, rb = stream[G]
        if rb is not None: return [mf(n, s, ch, rb, rh, G) for rh in range(2)]
        R = [(0, 0), (0, 1), (1, 0), (1, 1)]
        if (s >> 1) & 1: R = R[::-1]
        out = []
        for (b, rh) in R[2 * (s & 1):2 * (s & 1) + 2]:
            for k in range(2): out.append(mf(n, (s & 14) + k, ch, b, rh, (G & ~1) + k))
        return out
    extra = [xload(i) for i in range(XPRE, 64)] + ue[uearly:]
    pkrot = [0]; zrot = [0]
    def epilogue(n, rb):
        ty = seq[n]; ops = []
        for o in range(2):
            base = ACN[n] + 16 * rb + 8 * o
            if ty == 'u' and half[n] * 4 + rb * 2 + o >= 8 - defer: continue
            if ty in 'ug':
                def chain(e):
                    z = (V_Z + e if n > 1 else V_Z + 4 * n + e % 4); x = base + e
                    c = [(f'v_mul_f32 v{z}, v{x}, v{x}', 1), (f'v_fma_f32 v{z}, v{z}, v{V_C1}, v{V_C0}', 1), (f'v_mul_f32 v{z}, v{z}, v{x}', 1),
                         (f'v_exp_f32 v{z}, v{z}', 2), (f'v_add_f32 v{z}, 1.0, v{z}', 1), (f'v_rcp_f32 v{z}, v{z}', 2), (f'v_mul_f32 v{x}, v{x}, v{z}', 1)]
                    if ty == 'g':
                        c += [(f'v_add_f32 v{V_SS+16*rb+e}, v{V_SS+16*rb+e}, v{x}', 1), (f'v_fmac_f32 v{V_SS+16*rb+8+e}, v{x}, v{x}', 1)]
                    return c
                L = len(chain(0))
                for _, e, k in sorted(((2 if n > 1 else 4) * e + 2 * k, e, k) for e in range(8) for k in range(L)): ops.append(chain(e)[k] + (None,))
            if ty == 'u': continue
            pk = base if n else V_GP + 8 * rb + 4 * o
            so = OS[ty] + rb
            for i in range(4): ops.append((f'v_cvt_pk_bf16_f32 v{pk+i}, v{base+2*i}, v{base+2*i+1}', 1, None))
            vo = (V_HV + rb) if ty == 'g' else (V_ST1 if rb else V_ST0)
            if ty != 'u': ops.append((f'buffer_store_dwordx4 {vr(pk,4)}, v{vo}, {SRD}, s{so} offen offset:{half[n]*2048 + o*1024} {st_flags}', 2, ('st', ty)))
        return ops
    def stats_ops(rb):
        B = V_SS + 16 * rb; ops = []
        for i in range(8): ops.append((f'v_add_f32_dpp v{B+i}, v{B+i}, v{B+i} row_ror:8 row_mask:0xf bank_mask:0x3', 1, None))
        for i in range(8): ops.append((f'v_add_f32_dpp v{B+i}, v{B+8+i}, v{B+8+i} row_ror:8 row_mask:0xf bank_mask:0xc', 1, None))
        for i in range(4): ops.append((f'v_add_f32_dpp v{B+i}, v{B+i}, v{B+i} row_half_mirror row_mask:0xf bank_mask:0x5', 1, None))
        for i in range(4): ops.append((f'v_add_f32_dpp v{B+i}, v{B+4+i}, v{B+4+i} row_half_mirror row_mask:0xf bank_mask:0xa', 1, None))
        for pm in ('[2,3,0,1]', '[1,0,3,2]'):
            for i in range(4): ops.append((f'v_add_f32_dpp v{B+i}, v{B+i}, v{B+i} quad_perm:{pm} row_mask:0xf bank_mask:0xf', 1, None))
        ops.append((f'buffer_store_dwordx4 {vr(B,4)}, v{12 + 3*rb}, {SRD}, s{S_S0+rb} offen {st_flags}', 2, ('st', 'g')))
        return ops
    a(f'v_and_b32 v{V_T0}, 3, v0')
    a(f'v_cmp_eq_u32 vcc, 0, v{V_T0}')
    a(f'v_bfrev_b32 v{V_T1}, 1')
    a(f'v_and_b32 v{V_T0}, 12, v0')
    a(f'v_lshlrev_b32 v{V_T0}, 4, v{V_T0}')
    a(f'v_and_or_b32 v{V_T0}, v0, 48, v{V_T0}')
    for rb in range(2):
        a(f's_lshr_b32 s{S_S0+rb}, s{S_B1 if rb else S_B0}, 4')
        a(f's_lshl_b32 s{S_T2}, s{S_CG}, 8')
        a(f's_add_u32 s{S_S0+rb}, s{S_S0+rb}, s{S_T2}')
        a(f's_add_u32 s{S_S0+rb}, s{S_S0+rb}, {WS_ST}')
    a(f'v_cndmask_b32 v{V_T0}, v{V_T1}, v{V_T0}, vcc')
    for rb in range(2):
        a(f'v_and_b32 v{12+3*rb}, v{V_T1}, v{V_ST1 if rb else V_ST0}')
        a(f'v_or_b32 v{12+3*rb}, v{12+3*rb}, v{V_T0}')
    for rb, wv in ((0, 0), (1, 3)):
        a(f's_cmp_eq_u32 s{S_W}, {wv}')
        a(f's_cselect_b32 s{S_T2}, 0, 0x80000000')
        a(f'v_or_b32 v{V_HV+rb}, s{S_T2}, v{V_ST1 if rb else V_ST0}')
    a(f's_waitcnt vmcnt({10 + uearly})')
    a(f'v_cmp_ne_u32 vcc, s{S_TAG}, v27')
    a(f's_cbranch_vccnz {name}_fas')
    a(f'{name}_fak:')
    slows.append(('fa', 27, V_FL, S_XO))
    run([xload(i) for i in range(XPRE)])
    a(f'v_mov_b32 v{V_FL}, v113')
    st(43)
    for G in range(LA):
        for o in rd(G): emit(o, G)
    pend = []; lastw = {}; lasts = {}; forced = [0]
    pos = [0]
    def flush_one(op, tag):
        r, w = rw(op)
        prev = a.lines[-1].strip()
        if prev.startswith(('v_exp', 'v_rcp')) and (rw(prev)[1] & r): a('s_nop 0')
        for pv in a.lines[-2:]:
            pv = pv.strip()
            if pv.startswith('buffer_store') and (rw(pv)[0] & w): a('s_nop 1'); break
            if 'dpp' in op and pv.startswith('v_') and not pv.startswith('v_mfma') and (rw(pv)[1] & r): a('s_nop 1'); break
        emit(op, tag)
        for x in w: lastw[x] = pos[0]
        if op.startswith('buffer_store'):
            for x in r: lasts[x] = pos[0]
    def issue_ready(budget, window=28):
        i = 0; p = pos[0]
        while budget > 0 and i < min(window, len(pend)):
            rdy, op, c, tag, t = pend[i]
            r, w = rw(op)
            gap = 2 if 'dpp' in op else 1
            ok = rdy <= p and c <= budget and all(lastw.get(x, -9) + gap <= p for x in r) and all(lasts.get(x, -9) + 2 <= p for x in w)
            if ok:
                for j in range(i):
                    r2, w2 = rw(pend[j][1])
                    if (r & w2) or (w & r2) or (w & w2): ok = False; break
            if ok:
                pend.pop(i); flush_one(op, tag); budget -= c
            else: i += 1
    first_of = {n: min(i for i, it in enumerate(stream) if it[0] == n) for n in range(8)}
    last_of = {}
    for i, it in enumerate(stream):
        for rb in ((0, 1) if it[3] is None else (it[3],)): last_of[(it[0], rb)] = i
    done_at = {}; flagged = set()
    F3 = first_of[3]
    for G in range(NS):
        n, s, ch, rb = stream[G]
        if G in (0, 64): st(30 + G // 64)
        if G >= 128 and G % 32 == 0: st(30 + G // 32 - 2)
        if G == first_of[n]:
            while any((t is not None and ACN[t] == ACN[n]) or (ACN[n] == V_SS and (t is None or seq[t] == 'g')) for (_, _, _, _, t) in pend):
                _, op, _, tag, _ = pend.pop(0); flush_one(op, tag); forced[0] += 1
        w = []
        if n == 0 and ch == 0: w.append(f'vmcnt({min(63, vm.need(("X", 32 * rb + 2 * s + 1)))})')
        we = wait_every
        if G % we == 0: w.append(f'lgkmcnt({min(15, q.need(min(G + we - 1, NS - 1)))})')
        if w: a('s_waitcnt ' + ' '.join(w))
        mm = mfmas(G)
        for h, m in enumerate(mm):
            a(m)
            budget = 2
            ov = over if 'g' not in done_at else over2
            if ov and pos[0] % ov == 0: budget += 1
            if G + LA < NS and h < len(rd(G + LA)): emit(rd(G + LA)[h], G + LA); budget -= 1
            if h == len(mm) - 1 and (G + 1) % we == 0: budget -= 1
            if extra and h == len(mm) // 2 and (rb is None or G % 2 == 0 or G > fastx):
                run([extra.pop(0)]); budget = 0
            issue_ready(budget)
            pos[0] += 1
        for ty in 'gq':
            if ty not in done_at and G > last_of[(7 - seq[::-1].index(ty), 1)] and not any(p[3] == ('st', ty) for p in pend): done_at[ty] = G
        for ty, kind in (('g', 1), ('q', 2)):
            if ty in done_at and G == done_at[ty] + (fdelay if ty == 'g' else fdelayq):
                a(f's_waitcnt vmcnt({vm.need(("st", ty))})')
                a('s_barrier')
                flag(kind); flagged.add(kind); print('k2c flag', kind, 'at', G)
        def bar(tags):
            if tags: a(f's_waitcnt vmcnt({min(63, min(vm.need(t) for t in tags))})')
            a('s_barrier')
        if G == rp[0]:
            bar([('W', 0, 1)])
            flag(6)
        if G == rp[1]:
            a(f's_mov_b32 s46, {ZF + 6 * ZK}')
            emit(f'buffer_load_dword v27, v{V_FL}, {SRD}, s46 offen sc1', 'pollr')
        if G == first_of[2] - bar_back: bar([('W', 2, 1)])
        if G == first_of[2] - LA - 1:
            for r in V_WT: a(f'v_add_u32 v{r}, {2*TILE}, v{r}')
            a(f'v_add_u32 v{V_WD}, {4*TILE}, v{V_L16}')
        if G == rp[2]:
            assert G >= first_of[2]
            a(f's_waitcnt vmcnt({vm.need("pollr")})')
            a(f'v_cmp_ne_u32 vcc, s{S_TAG}, v27')
            a(f's_cbranch_vccnz {name}_frs')
            a(f'{name}_frk:')
            slows.append(('fr', 27, V_FL, 46))
            bar([])
            extra += p3dma() + dma(4)
        if G == rp[3]: bar(['p3'])
        if 0 <= G - rp[3] <= 18: p3step(G - rp[3])
        if G == first_of[4] - bar_back:
            assert G >= rp[3] + 17
            bar([('W', 4)])
            extra += dma(5)
        if G == rp[3] + 18 + pp[0]:
            bar(['p3s']); flag(0); flagged.add(0)
        if G == first_of[5] - bar_back: bar([('W', 5)])
        if G == rp[3] + 18 + pp[1]:
            a(f'v_and_b32 v{V_FL}, 31, v0')
            a(f'v_lshlrev_b32 v{V_FL}, 7, v{V_FL}')
            a(f's_lshl_b32 s{S_M1}, s{S_CG}, 12')
            a(f's_add_u32 s{S_M1}, s{S_M1}, {ZF}')
            emit(f'buffer_load_dword v27, v{V_FL}, {SRD}, s{S_M1} offen sc1', 'poll')
        if G == rp[3] + 18 + pp[2]:
            assert G > first_of[5] - bar_back
            a(f's_waitcnt vmcnt({vm.need("poll")})')
            a(f'v_cmp_ne_u32 vcc, s{S_TAG}, v27')
            a(f's_cbranch_vccnz {name}_p3slow')
            a(f'{name}_p3ok:')
            extra[:0] = dma(6) + dma(7)
        if G == first_of[6] - LA - 1: bar([('W', 6)])
        if G == first_of[7] - bar_back: bar([('W', 7)])
        if G - NS in hooks: extra += hooks[G - NS]() or []
        for (m, b), l in last_of.items():
            if l == G:
                ep = [(pos[0] + 7, op, c, tag, m) for op, c, tag in epilogue(m, b)]
                if seq[m] in 'qv':
                    pend[:0] = ep
                elif m == 0 and b == 1:
                    k = max([i for i, p in enumerate(pend) if p[4] == 0], default=-1) + 1
                    pend[k:k] = ep
                else:
                    pend += ep
                    if m == 1: pend += [(pos[0] + 7, op, c, tag, None) for op, c, tag in stats_ops(b)]
    print('k2m: forced', forced[0], 'tail', len(pend), 'done', done_at, 'extra left', len(extra))
    st(27); st(38)
    run(extra)
    a('s_nop 7')
    for _, op, _, tag, _ in pend: flush_one(op, tag)
    def slow():
        tagslow()
        a(f'{name}_p3slow:')
        a('s_sleep 2')
        a(f'buffer_load_dword v27, v{V_FL}, {SRD}, s{S_M1} offen sc1')
        a('s_waitcnt vmcnt(0)')
        a(f'v_cmp_ne_u32 vcc, s{S_TAG}, v27')
        a(f's_cbranch_vccnz {name}_p3slow')
        a(f's_branch {name}_p3ok')
    assert flagged == {0, 1, 2}
    return flag, slow
```

```python
from asmlib import *
from layout import *
from attn2 import LdsQ
from k2 import f2h, VmQ, code_prefetch

V_DK0, V_DK1, V_DV0, V_DV1, V_KA, V_VA, V_L16, V_L0, V_L1, V_MX, V_F0, V_F1, V_T0, V_T1, V_T2 = range(1, 16)
V_S, V_E, V_P, V_NEGM, V_RING = 16, 32, 48, 56, 64
V_PF, V_PFD, V_XO, V_FL = 116, 117, 118, 119
V_WT0, V_WT1, V_WD, V_FO = 6, 28, 29, 10
S_TAG = 75
S_GTILE, S_GGRP = 6, 7
S_TGT, S_UCM = 74, 73
S_X, S_OUTP, S_WS, S_SRD, S_SRX, S_SRO = 4, 6, 40, 8, 12, 16
(S_KOFF, S_VOFF, S_KDMA, S_VDMA, S_VRD, S_CNT, S_W, S_QB, S_SPLIT, S_T0, S_T1, S_VALID, S_GRP, S_W8K, S_PFOFF, S_T2) = range(20, 36)
S_TILE, S_B125, S_T3, S_T4 = 36, 37, 38, 39
S_WB0, S_WB1, S_WB2, S_WB3, S_UCO, S_WCO, S_FLO, S_PO = range(56, 64)
S_PFS, S_PFST, S_PH, S_XCC, S_SLOW, S_PB = 44, 45, 46, 47, 48, 54

def Obase(beta, qh): return 128 + 8 * (beta % 16) + 4 * qh
def Oreg(beta, qh): return vr(Obase(beta, qh), 4) if beta < 16 else ar(Obase(beta, qh), 4)

def gen_main(a, name, dma_gap=3, dma_cost=2, CAP=2, bar_pos=50, NR=13, LA=10, wait_every=4, THR=0x41800000,
             stamp=False, snake=True, prefetch=2, pf=True, pv_pace=4, pv_budget=6, out_flags='sc1', npf=0, fast_st='nt', flag_at=140, force_slow=True, tailst=False, pfill=False, st_pace=9, ld_pace=2, yc_budget=2, bg_pace=14, tailpf=1, tlb=True, pf_flags='sc1', uc_pace=4, chk_at=60, merged=True, gst=False, pst=False, spsl=0, pad0=0, pairmap=False, bcast=True, zinv=True, relief=False, prew2=True, nobr2=True, cmp_early=False, tail=4, t5=(3, 4, 4, 4, 16, 3), sizes4=(33, 32, 31, 29), pf_late=False, xinit=True, xi_pre=8, jit=0, slp=2, pf_wg=0, o2={}, hk=(-84, -62, -30, -15), qearly=14, vchk=16, dbg=(), dbgout=False, spin=None, brgap=3, chain=True, poll_after=8, r_pace=5, chk2_at=0, noyc=False, ld_per_st=0, flag_after=0, rounds=((56, 3), (112, 3))):
    SRD, SRX, SRO = [f's[{b}:{b+3}]' for b in (S_SRD, S_SRX, S_SRO)]
    def st(i, cyc=False):
        if jit and not cyc and i not in (0,):
            lab = a.label(name + '_jit')
            a(f's_mul_i32 s100, s2, {2654435761 * (i + jit) % (1 << 31)}')
            a(f's_mul_i32 s101, s{S_W}, {40503 * (i + 3) * jit}')
            a('s_add_u32 s100, s100, s101')
            a('s_lshr_b32 s100, s100, 26')
            a('s_cmp_lt_u32 s100, 44')
            a(f's_cbranch_scc1 {lab}')
            a(f'{lab}l:')
            a('s_sleep 16')
            a('s_sub_u32 s100, s100, 1')
            a('s_cmp_gt_u32 s100, 43')
            a(f's_cbranch_scc1 {lab}l')
            a(f'{lab}:')
        gs = [1, 2, 3, 4, 5, 6, 8, 9, 12, 13, 14, 15]
        if i >= 40:
            if i == 43: i = 10
            elif pst: i = [4, 5, 6][i - 40]
            else: return
        elif pst and i in (4, 5, 6): return
        if i >= 30:
            if not gst: return
            i = gs[i - 30]; cyc = True
        elif gst and i in gs: return
        if tailst and 10 <= i <= 14: return
        if 20 <= i < 26:
            if not tailst: return
            i -= 10
        if i >= 26: i -= 16
        if stamp:
            a(f'{"s_memtime" if cyc else "s_memrealtime"} s[100:101]')
            a('s_waitcnt lgkmcnt(0)')
            a(f's_mov_b32 s{80+i}, s100')
    kernel_begin(a, name)
    a(f's_cmp_ge_u32 s2, 256\n s_cbranch_scc1 {name}_end')
    a('s_load_dwordx16 s[56:71], s[0:1], 0')
    a('s_load_dwordx8 s[72:79], s[0:1], 64')
    for _ in range(pad0): a('s_nop 0')
    st(0)
    def codepf():
        if not pf_late: return
        _codepf('v_lshl_add_u32 v251, s26, 6, v0')
    def _codepf(tid):
        a(tid)
        a(f's_getpc_b64 s[42:43]')
        a(f'{name}_pc:')
        a(f's_sub_u32 s42, s42, {name}_pc-{name}')
        a(f's_subb_u32 s43, s43, 0')
        a(f's_lshr_b32 s44, s2, 3')
        a(f's_mul_i32 s44, s44, 3072')
        a(f'v_subrev_u32 v13, 192, v251')
        a(f'v_cmp_gt_u32 vcc, 24, v13')
        a(f'v_lshlrev_b32 v13, 7, v13')
        a(f'v_add_u32 v13, s44, v13')
        a(f'v_min_u32 v13, {name}_end-{name}-4, v13')
        a(f's_and_saveexec_b64 s[44:45], vcc')
        a(f's_cbranch_execz {name}_nopf')
        a(f'global_load_dword v250, v13, s[42:43]')
        a(f'{name}_nopf:')
        a(f's_mov_b64 exec, s[44:45]')
    if not pf_late: _codepf('v_mov_b32 v251, v0')
    a(f'v_lshrrev_b32 v{V_T0}, 6, v0')
    a(f'v_cmp_gt_u32 vcc, 32, v0')
    a(f'v_bfrev_b32 v{V_T1}, 1')
    a(f'v_lshlrev_b32 v{V_T2}, 2, v0')
    a(f'v_and_b32 v0, 63, v0')
    a(f'v_readfirstlane_b32 s{S_W}, v{V_T0}')
    a(f'v_lshlrev_b32 v{V_L16}, 4, v0')
    a(f'v_cndmask_b32 v{V_FO}, v{V_T1}, v{V_T2}, vcc')
    a(f's_and_b32 s{S_T0}, s2, 7')
    a(f's_lshr_b32 s{S_T1}, s2, 3')
    a(f's_and_b32 s{S_SPLIT}, s{S_T1}, 3')
    a(f's_lshr_b32 s{S_T1}, s{S_T1}, 2')
    a(f's_lshl_b32 s{S_PFOFF}, s{S_T1}, 2')
    a(f's_and_b32 s{S_TILE}, s{S_T0}, 3')
    a(f's_lshl_b32 s{S_TILE}, s{S_TILE}, 3')
    a(f's_add_u32 s{S_TILE}, s{S_TILE}, s{S_T1}')
    a(f's_lshr_b32 s{S_T0}, s{S_T0}, 2')
    a(f's_lshl_b32 s{S_GRP}, s{S_T0}, 5')
    a(f's_add_u32 s{S_GRP}, s{S_GRP}, s{S_TILE}')
    a(f's_mov_b32 s{S_GTILE}, s{S_TILE}')
    a(f's_mov_b32 s{S_GGRP}, s{S_GRP}')
    a(f's_mul_i32 s{S_B125}, s{S_T0}, 125')
    ucst = []
    def late_setup():
        if pairmap:
            a(f's_lshr_b32 s{S_T1}, s2, 4')
            a(f's_lshl_b32 s{S_PFOFF}, s{S_T1}, 2')
            a(f's_and_b32 s{S_TILE}, s2, 2')
            a(f's_lshl_b32 s{S_TILE}, s{S_TILE}, 3')
            a(f's_add_u32 s{S_TILE}, s{S_TILE}, s{S_T1}')
            a(f's_and_b32 s{S_GRP}, s{S_GRP}, 32')
            a(f's_add_u32 s{S_GRP}, s{S_GRP}, s{S_TILE}')
            a(f's_bfe_u32 s{S_SPLIT}, s2, 0x10003')
            a(f's_and_b32 s{S_T1}, s2, 1')
            a(f's_lshl1_add_u32 s{S_SPLIT}, s{S_T1}, s{S_SPLIT}')
        a(f's_lshl_b32 s{S_QB}, s{S_TILE}, 2')
        a(f's_add_u32 s{S_QB}, s{S_QB}, s{S_W}')
        a(f's_cmp_lt_u32 s{S_QB}, 125')
        a(f's_cselect_b32 s{S_VALID}, 0, 0x80000000')
        a(f's_min_u32 s{S_QB}, s{S_QB}, 124')
        a(f's_add_u32 s{S_QB}, s{S_QB}, s{S_B125}')
        assert sum(sizes4) == 125
        starts = [sum(sizes4[:i]) for i in range(4)]
        a(f's_lshl_b32 s{S_KOFF}, s{S_SPLIT}, 3')
        a(f's_lshr_b32 s{S_T1}, {hex(sum(v << (8*i) for i, v in enumerate(starts)))}, s{S_KOFF}')
        a(f's_and_b32 s{S_T1}, s{S_T1}, 255')
        a(f's_add_u32 s{S_T1}, s{S_T1}, s{S_B125}')
        a(f's_lshr_b32 s{S_CNT}, {hex(sum((v - 2) << (8*i) for i, v in enumerate(sizes4)))}, s{S_KOFF}')
        a(f's_and_b32 s{S_CNT}, s{S_CNT}, 255')
        a(f's_lshl_b32 s{S_KOFF}, s{S_T1}, 15')
        a(f's_add_u32 s{S_VOFF}, s{S_KOFF}, {WS_VT}')
        if WS_XA: a(f's_add_u32 s{S_KOFF}, s{S_KOFF}, {WS_XA}')
        codepf()
    vm = VmQ()
    def emit(o, tag=None):
        a(o)
        if o.startswith('buffer_'): vm.issue(tag)
    def dma_ops(v0, v1, soff, sbase):
        ops = []
        for g in range(2):
            for i in range(4):
                pre = None
                if i == 0:
                    pre = f's_mov_b32 m0, s{sbase}' if g == 0 else f's_add_u32 m0, s{sbase}, 4096'
                ops.append((pre, f'buffer_load_dwordx4 v{v0 if g == 0 else v1}, {SRD}, s{soff} offen offset:{i*1024} sc1 lds'))
        return ops
    def emit_dma_now(tag, *args):
        for pre, op in dma_ops(*args):
            if pre: a(pre); a('s_nop 0')
            emit(op, tag)
    def xreduce(regs, op, tmp):
        for sw in ('v_permlane16_swap_b32', 'v_permlane32_swap_b32'):
            for i, r in enumerate(regs): a(f'v_mov_b32 v{tmp+i}, v{r}')
            if len(regs) < 3: a('s_nop 1')
            else: a('s_nop 0')
            for i, r in enumerate(regs): a(f'{sw} v{tmp+i}, v{r}')
            a('s_nop 1')
            for i, r in enumerate(regs): a(f'{op} v{r}, v{r}, v{tmp+i}')

    import k2z, sys
    a(f's_lshl_b32 s{S_W8K}, s{S_W}, 13')
    a(f'v_add_u32 v{V_DK0}, s{S_W8K}, v{V_L16}')
    a(f'v_add_u32 v{V_DK1}, 4096, v{V_DK0}')
    GN = 3 * TILE; GS = 584; CV = GN + 64 * GS; CS = 144; TB = CV + 20480
    S_VF = [42, 43, 49]; S_B10 = [50, 51, 45]; S_BT, S_RT = 63, 55
    S_CG = 64
    V_PL, V_PQ, V_HD = 26, 27, 28
    STL = [[112, 116], [120, 124], [164, 172]]
    def poll_ops(first_expr, ngrp, kind, dst, tag):
        pass
    def slowpoll(lab, dst, vo, so):
        slows.append((lab, dst, vo, so))
    slows = []
    def h_poll1():
        a(f's_lshr_b32 s{S_BT}, s{S_GTILE}, 1')
        a(f'v_lshrrev_b32 v13, 3, v0')
        a(f's_sub_u32 s{S_T3}, s{S_BT}, 1')
        a(f'v_add_u32 v11, s{S_T3}, v13')
        a(f'v_med3_i32 v11, v11, 0, 15')
        a(f's_lshr_b32 s{S_T3}, s{S_KOFF}, 15')
        a(f's_sub_u32 s{S_T3}, s{S_T3}, s{S_B125}')
        a(f'v_cmp_lt_u32 vcc, 2, v13')
        a(f'v_and_b32 v13, 1, v13')
        a(f'v_add_u32 v13, s{S_T3}, v13')
        a(f'v_lshrrev_b32 v13, 3, v13')
        a(f'v_cndmask_b32 v11, v11, v13, vcc')
        a(f'v_and_b32 v13, 7, v0')
        a(f'v_lshl_add_u32 v11, v11, 3, v13')
        a(f'v_lshlrev_b32 v11, 7, v11')
        a(f's_and_b32 s{S_T3}, s{S_GRP}, 32')
        a(f's_lshl_b32 s{S_T3}, s{S_T3}, 9')
        a(f's_add_u32 s{S_T3}, s{S_T3}, {ZF + ZK}')
        emit(f'buffer_load_dword v{V_PL}, v11, {SRD}, s{S_T3} offen sc1', 'poll1')
    def chk(lab, dst, vo, so, tag):
        a(f's_waitcnt vmcnt({vm.need(tag)})')
        a(f'v_cmp_ne_u32 vcc, s{S_TAG}, v{dst}')
        a(f's_cbranch_vccnz {name}_{lab}s')
        a(f'{name}_{lab}k:')
        slows.append((lab, dst, vo, so))
    def h_loads1():
        chk('f1', V_PL, 11, S_T3, 'poll1')
        out = []
        for rnd in range(3):
            pre = [f's_lshl_b32 s{S_T4}, s{S_BT}, 3']
            if rnd < 2: pre.append(f's_add_u32 s{S_B10[rnd]}, s{S_W}, {4*rnd}')
            else: pre += [f's_cmp_lt_u32 s{S_W}, 2', f's_cselect_b32 s{S_T3}, 8, 4', f's_add_u32 s{S_B10[2]}, s{S_W}, s{S_T3}']
            pre += [f's_add_u32 s{S_T3}, s{S_T4}, s{S_B10[rnd]}', f's_sub_u32 s{S_T3}, s{S_T3}, 1', f's_cmp_lt_u32 s{S_T3}, 125',
                    f's_cselect_b32 s{S_VF[rnd]}, 1.0, 0', f's_cselect_b32 s{S_T3}, s{S_T3}, s{S_T4}', f's_add_u32 s{S_T3}, s{S_T3}, s{S_B125}',
                    f's_lshl_b32 s{S_T3}, s{S_T3}, 11', f's_add_u32 s{S_T3}, s{S_T3}, {WS_ST}']
            for h in range(2):
                out.append(pre + [(f'buffer_load_dwordx4 {vr(STL[rnd][h],4)}, v{V_L16}, {SRD}, s{S_T3} offen offset:{h*1024} sc1', 'st')]); pre = []
        pre = [f's_and_b32 s{S_PH}, s{S_W}, 1', f's_mul_i32 s{S_T3}, s{S_PH}, 9', f's_add_u32 s{S_T3}, s{S_T3}, s{S_T4}', f's_sub_u32 s{S_T3}, s{S_T3}, 1',
               f's_cmp_lt_u32 s{S_T3}, 125', f's_cselect_b32 s{S_T3}, s{S_T3}, s{S_T4}', f's_add_u32 s{S_T3}, s{S_T3}, s{S_B125}', f's_lshl_b32 s{S_T3}, s{S_T3}, 15',
               f's_lshr_b32 s{S_XCC}, s{S_W}, 1', f's_lshl1_add_u32 s{S_XCC}, s{S_CG}, s{S_XCC}', f's_lshl_b32 s{S_XCC}, s{S_XCC}, 11', f's_add_u32 s{S_T3}, s{S_T3}, s{S_XCC}',
               f's_xor_b32 s{S_XCC}, s{S_PH}, 1', f's_lshl_b32 s{S_XCC}, s{S_XCC}, 3', f's_add_u32 s{S_T3}, s{S_T3}, s{S_XCC}', f's_add_u32 s{S_T3}, s{S_T3}, {WS_G}']
        for ch in range(2):
            out.append(pre + [(f'buffer_load_dwordx2 {vr(V_HD+2*ch,2)}, v{V_L16}, {SRD}, s{S_T3} offen offset:{ch*1024} sc1', 'st')]); pre = []
        return h_k0() + out
    def h_k0():
        out = []
        first = [f's_mov_b32 s{S_KDMA}, s{S_W8K}']
        for pre, op in dma_ops(V_DK0, V_DK1, S_KOFF, S_KDMA):
            out.append(first + ([pre, 's_nop 0'] if pre else []) + [(op, 'K0')]); first = []
        pre = [f's_mul_i32 s{S_T4}, s{S_CG}, 20480', f's_mul_i32 s{S_XCC}, s{S_W}, 5120', f's_add_u32 s{S_T4}, s{S_T4}, s{S_XCC}',
               f's_add_u32 s{S_T4}, s{S_T4}, {WS_DWT}', f's_add_u32 m0, s{S_XCC}, {CV}', 's_nop 0']
        for i in range(5):
            if i == 4: pre = [f's_add_u32 s{S_T4}, s{S_T4}, 4096', f's_add_u32 m0, s{S_XCC}, {CV + 4096}', 's_nop 0']
            out.append(pre + [(f'buffer_load_dwordx4 v{V_L16}, {SRD}, s{S_T4} offen offset:{(i%4)*1024} sc1 lds', 'K0')]); pre = []
        return out
    def h_pollq():
        a(f's_lshr_b32 s{S_BT}, s{S_GTILE}, 1')
        a(f's_lshr_b32 s{S_RT}, s{S_GRP}, 1')
        a(f's_mov_b32 s{S_PFS}, {f2h(1/512)}')
        assert hk[2] > hk[1]
        a(f'v_and_b32 v11, 7, v0')
        a(f'v_lshlrev_b32 v11, 7, v11')
        a(f's_lshl_b32 s{S_SLOW}, s{S_RT}, 10')
        a(f's_add_u32 s{S_SLOW}, s{S_SLOW}, {ZF + 2 * ZK}')
        emit(f'buffer_load_dword v{V_PQ}, v11, {SRD}, s{S_SLOW} offen sc1', 'pollq')
    assert hk[1] > -68
    def h_k1():
        out = []
        first = [f's_add_u32 s{S_KOFF}, s{S_KOFF}, {TILE}', f's_add_u32 s{S_KDMA}, s{S_KDMA}, {TILE}']
        for pre, op in dma_ops(V_DK0, V_DK1, S_KOFF, S_KDMA):
            out.append(first + ([pre, 's_nop 0'] if pre else []) + [(op, 'K1')]); first = []
        out[-1].append(f's_add_u32 s{S_KOFF}, s{S_KOFF}, {TILE}')
        return out
    VQ = 14
    def qload(f):
        pre = []
        if f == 0: pre = [f's_lshl_b32 s{S_T4}, s{S_QB}, 15', f's_add_u32 s{S_T4}, s{S_T4}, {WS_Q}']
        elif f % 4 == 0: pre = [f's_add_u32 s{S_T4}, s{S_T4}, 4096']
        return pre + [(f'buffer_load_dwordx4 {ar(4*f,4)}, v{V_L16}, {"s[76:79]" if zinv else SRD}, s{S_T4} offen offset:{(f%4)*1024} sc1', ('Q', f))]
    def h_q():
        chk('fq', V_PQ, 11, S_SLOW, 'pollq')
        a(f's_mov_b32 s76, s{S_WS}\n s_mov_b32 s77, s{S_WS+1}')
        a(f's_cmp_eq_u32 s{S_VALID}, 0')
        a(f's_cselect_b32 s78, {WS_SIZE}, 0')
        return [qload(f) for f in range(qearly)]
    assert hk[3] >= -15 and qearly <= -hk[3] - 1
    hooks = {hk[0]: h_poll1, hk[1]: h_loads1, hk[2]: h_pollq, -39: h_k1, hk[3]: h_q}
    flagf, p3slow = k2z.rg4(a, name, sys.modules[__name__], st, stamp, vm, hooks, slows, late_setup, **o2)
    AT = [[64, 68, 72, 76, 80, 84, 88, 92, 16, 20], [128, 132, 136, 140, 144, 148, 152, 156, 180, 188]]
    UACC = [192, 224]
    def gfrag(T, rb, ch): return (96 + 8 * rb + 4 * ch) if T == 0 else (160 + 16 * rb + 8 * ch)
    bg = []
    for f in range(qearly, 32): bg += qload(f)
    def bg_dma(tag, *args, **kw):
        for pre, op in dma_ops(*args, **kw):
            if pre: bg.append(pre); bg.append('s_nop 0')
            bg.append((op, tag))
    bgc = [0]
    def bgone():
        while bg:
            o = bg.pop(0)
            if isinstance(o, tuple):
                emit(*o); return
            a(o)
    def c(o, every=bg_pace):
        a(o); bgc[0] += 1
        if bgc[0] % every == 0: bgone()
    for _ in range(4): bgone()
    defer = o2.get('defer', 0)
    for idx in range(8 - defer, 8):
        base = UACC[idx >> 2] + 8 * (idx & 3); Z = 64
        for i in range(4): c(f'v_pk_mul_f32 {vr(Z+2*i,2)}, {vr(base+2*i,2)}, {vr(base+2*i,2)}')
        for i in range(4): c(f'v_pk_fma_f32 {vr(Z+2*i,2)}, {vr(Z+2*i,2)}, v[8:9], v[8:9] op_sel:[0,1,0] op_sel_hi:[1,1,0]')
        for i in range(4): c(f'v_pk_mul_f32 {vr(Z+2*i,2)}, {vr(Z+2*i,2)}, {vr(base+2*i,2)}')
        for i in range(8): c(f'v_exp_f32 v{Z+i}, v{Z+i}')
        for i in range(4): c(f'v_pk_add_f32 {vr(Z+2*i,2)}, {vr(Z+2*i,2)}, 1.0 op_sel_hi:[1,0]')
        for i in range(8): c(f'v_rcp_f32 v{Z+i}, v{Z+i}')
        for i in range(4): c(f'v_pk_mul_f32 {vr(base+2*i,2)}, {vr(base+2*i,2)}, {vr(Z+2*i,2)}')
    SC = 56
    a(f's_waitcnt vmcnt({vm.need("st")})')
    X = [STL[r][0] for r in range(3)]; Yr = [STL[r][1] for r in range(3)]
    for r in range(3):
        for i in range(4): c(f'v_add_f32 v{X[r]+i}, v{X[r]+i}, v{Yr[r]+i}')
    a(f'v_lshrrev_b32 v{V_T0}, 5, v0')
    a(f'v_bfe_u32 v{V_T1}, v0, 4, 1')
    for r in range(3):
        for i in (0, 2): a(f'v_permlane32_swap_b32 v{X[r]+i}, v{X[r]+i+1}')
    for r in range(3):
        for i in (0, 2): a(f'v_add_f32 v{X[r]+i}, v{X[r]+i}, v{X[r]+i+1}')
    a(f'v_lshl_add_u32 v{V_T0}, v{V_T1}, 1, v{V_T0}')
    a(f'v_and_b32 v{V_T1}, 7, v0')
    for r in range(3): a(f'v_permlane16_swap_b32 v{X[r]}, v{X[r]+2}')
    for r in range(3): a(f'v_add_f32 v{X[r]}, v{X[r]}, v{X[r]+2}')
    a(f'v_lshlrev_b32 v{V_T0}, 2, v{V_T0}')
    a(f'v_lshl_add_u32 v{V_T0}, v{V_T1}, 4, v{V_T0}')
    for r in range(3): a(f'v_mov_b32_dpp v{X[r]+1}, v{X[r]} row_ror:8 row_mask:0xf bank_mask:0xf')
    for r in range(3): c(f'v_mul_f32 v{X[r]}, {f2h(1/512)}, v{X[r]}')
    for r in range(3): c(f'v_mul_f32 v{X[r]+2}, v{X[r]}, v{X[r]}')
    for r in range(3): c(f'v_fma_f32 v{X[r]+1}, v{X[r]+1}, s{S_PFS}, -v{X[r]+2}')
    for r in range(3): c(f'v_max_f32 v{X[r]+1}, 0, v{X[r]+1}')
    for r in range(3): c(f'v_add_f32 v{X[r]+1}, {f2h(1e-5)}, v{X[r]+1}')
    for r in range(3): c(f'v_rsq_f32 v{X[r]+1}, v{X[r]+1}')
    for r in range(3):
        a(f's_lshl_b32 s{S_T0}, s{S_B10[r]}, 8')
        a(f's_add_u32 s{S_T0}, s{S_T0}, {TB}')
        a(f'v_add_u32 v{X[r]+3}, s{S_T0}, v{V_T0}')
    for r in range(3): c(f'v_mul_f32 v{X[r]+1}, s{S_VF[r]}, v{X[r]+1}')
    for r in range(3): c(f'v_mul_f32 v{X[r]}, -v{X[r]}, v{X[r]+1}')
    a('s_mov_b32 exec_lo, 0x00ff00ff')
    a('s_mov_b32 exec_hi, 0x00ff00ff')
    for r in range(3):
        a(f'ds_write_b32 v{X[r]+3}, v{X[r]+1}')
        a(f'ds_write_b32 v{X[r]+3}, v{X[r]} offset:128')
    a('s_mov_b64 exec, -1')
    A_NW, A_TR, A_HW, A_HT, A_BR, A_CW, A_CR = 5, 6, 8, 9, 11, 12, 15
    a(f'v_and_b32 v{V_T0}, 15, v0')
    a(f'v_lshrrev_b32 v{V_T1}, 4, v0')
    a(f'v_mul_u32_u24 v{A_HW}, {GS}, v{V_T0}')
    a(f'v_lshl_add_u32 v{A_HW}, v{V_T1}, 3, v{A_HW}')
    a(f's_lshl_b32 s{S_T0}, s{S_W}, 7')
    a(f's_add_u32 s{S_T0}, s{S_T0}, {GN}')
    a(f'v_add_u32 v{A_NW}, s{S_T0}, v{A_HW}')
    a(f's_lshr_b32 s{S_T2}, s{S_W}, 1')
    a(f's_mul_i32 s{S_T2}, s{S_T2}, {32*GS}')
    a(f's_mul_i32 s{S_T3}, s{S_PH}, {68*8}')
    a(f's_add_u32 s{S_T2}, s{S_T2}, s{S_T3}')
    a(f's_add_u32 s{S_T2}, s{S_T2}, {GN}')
    a(f'v_add_u32 v{A_HW}, s{S_T2}, v{A_HW}')
    a(f'v_lshlrev_b32 v{A_HT}, 4, v{V_T1}')
    a(f's_lshl_b32 s{S_T2}, s{S_W}, 9')
    a(f's_add_u32 s{S_T2}, s{S_T2}, {TB + 256}')
    a(f'v_add_u32 v{A_TR}, s{S_T2}, v{A_HT}')
    a(f's_mul_i32 s{S_T2}, s{S_PH}, {9*256 - 64}')
    a(f's_add_u32 s{S_T2}, s{S_T2}, {TB + 64}')
    a(f'v_add_u32 v{A_HT}, s{S_T2}, v{A_HT}')
    a(f'v_lshrrev_b32 v{A_CW}, 2, v0')
    a(f'v_and_b32 v{V_T0}, 3, v0')
    a(f'v_mul_u32_u24 v{A_BR}, {GS}, v{A_CW}')
    a(f'v_lshl_add_u32 v{A_BR}, v{V_T0}, 5, v{A_BR}')
    a(f'v_add_u32 v{A_BR}, s{S_T0}, v{A_BR}')
    a(f'v_and_b32 v{A_CW}, 3, v{A_CW}')
    a(f'v_lshl_add_u32 v{A_CW}, v{V_T1}, 3, v{A_CW}')
    a(f'v_mul_u32_u24 v{A_CW}, {CS}, v{A_CW}')
    a(f's_mul_i32 s{S_T2}, s{S_W}, {32*CS}')
    a(f's_add_u32 s{S_T2}, s{S_T2}, {CV}')
    a(f'v_add_u32 v{A_CW}, s{S_T2}, v{A_CW}')
    a(f'v_lshl_add_u32 v{A_CR}, v{V_T0}, 3, v{A_CW}')
    a(f'v_lshl_add_u32 v{A_CW}, v{V_T0}, 5, v{A_CW}')
    a('s_waitcnt lgkmcnt(0)')
    a('s_barrier')
    st(12)
    lq = LdsQ()
    a(f'v_add_u32 v{V_T0}, {CV}, v{V_L16}')
    twr = [f'ds_read_b128 {vr(AT[i//10][i%10],4)}, v{V_T0} offset:{i*1024}' for i in range(20)]
    units = [('h',)] + [(rb, hf) for rb in range(2) for hf in range(2)]
    def tread(n):
        t = 112 + 8 * (n % 2); u = units[n]
        ad, off = (A_HT, 0) if u[0] == 'h' else (A_TR, u[0] * 256 + u[1] * 64)
        a(f'ds_read_b128 {vr(t,4)}, v{ad} offset:{off}'); lq.issue(('t', n))
        a(f'ds_read_b128 {vr(t+4,4)}, v{ad} offset:{off + 128}'); lq.issue(('t', n))
    tread(0)
    for n, u in enumerate(units):
        if n + 1 < len(units): tread(n + 1)
        t = 112 + 8 * (n % 2)
        a(f's_waitcnt lgkmcnt({lq.need(("t", n))})')
        for _ in range(4): a(twr.pop(0)); lq.issue('tw')
        for T in range(1 if u[0] == 'h' else 2):
            src = lambda ch: (V_HD + 2 * ch) if u[0] == 'h' else gfrag(T, u[0], ch) + 2 * u[1]
            for ch in range(2):
                for i in range(2):
                    c(f'v_lshlrev_b32 v{SC+4*ch+2*i}, 16, v{src(ch)+i}')
                    c(f'v_and_b32 v{SC+4*ch+2*i+1}, 0xffff0000, v{src(ch)+i}')
            for ch in range(2):
                for i in range(2): c(f'v_pk_fma_f32 {vr(SC+4*ch+2*i,2)}, {vr(SC+4*ch+2*i,2)}, {vr(t+2*i,2)}, {vr(t+4+2*i,2)}')
            for ch in range(2):
                for i in range(2): c(f'v_cvt_pk_bf16_f32 v{src(ch)+i}, v{SC+4*ch+2*i}, v{SC+4*ch+2*i+1}')
                if u[0] == 'h': a(f'ds_write_b64 v{A_HW}, {vr(src(ch),2)} offset:{ch*16*GS}')
                else: a(f'ds_write_b64 v{A_NW}, {vr(src(ch),2)} offset:{(32*T + 16*ch)*GS + (4 + 8*u[0] + 4*u[1])*8}')
                lq.issue('w')
    a(f's_waitcnt vmcnt({vm.need(("st", "v"))}) lgkmcnt(0)')
    a('s_barrier')
    flagf(3)
    st(13)
    BR = [32, 96]
    def acc(gi, aa): return [[56, 60, 120, 124], [24, 28, 176, 184]][gi & 1][aa]
    def breads(gi): return [(f'ds_read_b64 {vr(BR[gi&1]+2*e,2)}, v{A_BR} offset:{gi*16*GS + e*8}', ('b', gi, e)) for e in range(12)]
    for o, t in breads(0): a(o); lq.issue(t)
    CF = 160; PKc = 176
    def mult(T):
        for fr in range(4):
            rb, rh = fr >> 1, fr & 1
            cc = CF + 4 * fr; u = UACC[T] + 16 * rb + 8 * rh; ub = 64 + 8 * (fr & 1)
            a(f's_waitcnt lgkmcnt({min(15, lq.need(("tr", T, fr)))})')
            for i in range(4):
                c(f'v_lshlrev_b32 v{ub+2*i}, 16, v{cc+i}')
                c(f'v_and_b32 v{ub+2*i+1}, 0xffff0000, v{cc+i}')
            for i in range(4): c(f'v_pk_mul_f32 {vr(ub+2*i,2)}, {vr(ub+2*i,2)}, {vr(u+2*i,2)}')
            for i in range(4): c(f'v_cvt_pk_bf16_f32 v{u+i}, v{ub+2*i}, v{ub+2*i+1}')
            ucst.append(f'buffer_store_dwordx4 {vr(u,4)}, v{3+rb}, {SRD}, s{58+rb} offen offset:{T*2048 + rh*1024} sc1')
    def finish(gi):
        T, ch = gi >> 1, gi & 1; ops = []
        for p in range(2):
            pk = acc(gi, 2 * p); b1 = acc(gi, 2 * p + 1)
            ops += [(f'v_cvt_pk_bf16_f32 v{pk}, v{pk}, v{pk+1}', None), (f'v_cvt_pk_bf16_f32 v{pk+1}, v{pk+2}, v{pk+3}', None),
                    (f'v_cvt_pk_bf16_f32 v{pk+2}, v{b1}, v{b1+1}', None), (f'v_cvt_pk_bf16_f32 v{pk+3}, v{b1+2}, v{b1+3}', None),
                    (f'ds_write_b128 v{A_CW}, {vr(pk,4)} offset:{ch*4*CS + 16*p}', 'cw')]
        if ch == 1:
            for fr in range(4):
                for jj in range(2): ops.append((f'ds_read_b64_tr_b16 {vr(CF+4*fr+2*jj,2)}, v{A_CR} offset:{jj*4*CS + fr*32}', ('tr', T, fr)))
        return ops
    for gi in range(4):
        T, ch = gi >> 1, gi & 1
        side = (breads(gi + 1) if gi < 3 else []) + (finish(gi - 1) if gi else [])
        if gi == 3: side = [('s_nop 0', None)] * 3 + side
        for dl in range(9):
            if dl % 3 == 0: a(f's_waitcnt lgkmcnt({min(15, lq.need(("b", gi, dl + 5)))})')
            ar_ = AT[T][5 * ch + dl // 2] + 2 * (dl & 1)
            for aa in range(4):
                d = vr(acc(gi, aa), 4)
                c(f'v_mfma_f32_4x4x4_16b_bf16 {d}, {vr(ar_,2)}, {vr(BR[gi&1]+2*(aa+dl),2)}, {d if dl else 0}', bg_pace // 2)
                if side:
                    o, t = side.pop(0); a(o)
                    if o.startswith('ds_'): lq.issue(t)
        assert not side
    mult(0)
    for o, t in finish(3):
        a(o)
        if o.startswith('ds_'): lq.issue(t)
    while bg: bgone()
    a(f's_sub_u32 s{S_T0}, s{S_VOFF}, {WS_VT}')
    a(f's_lshr_b32 s{S_T0}, s{S_T0}, 15')
    a(f's_sub_u32 s{S_T0}, s{S_T0}, s{S_B125}')
    a(f's_add_u32 s{S_T2}, s{S_T0}, s{S_CNT}')
    a(f's_add_u32 s{S_T2}, s{S_T2}, 1')
    a(f's_lshr_b32 s{S_T0}, s{S_T0}, 3')
    a(f's_lshr_b32 s{S_T2}, s{S_T2}, 3')
    a(f'v_lshrrev_b32 v{A_NW}, 3, v0')
    a(f'v_add_u32 v{A_NW}, s{S_T0}, v{A_NW}')
    a(f'v_min_u32 v{A_NW}, s{S_T2}, v{A_NW}')
    a(f'v_and_b32 v{V_T0}, 7, v0')
    a(f'v_lshl_add_u32 v{A_NW}, v{A_NW}, 3, v{V_T0}')
    a(f'v_lshlrev_b32 v{V_XO}, 7, v{A_NW}')
    a(f's_and_b32 s{S_T3}, s{S_GRP}, 32')
    a(f's_lshl_b32 s{S_T3}, s{S_T3}, 9')
    a(f's_add_u32 s{S_T3}, s{S_T3}, {ZF + 3 * ZK}')
    mult(1)
    emit(f'buffer_load_dword v{V_PFD}, v{V_XO}, {SRD}, s{S_T3} offen sc1', 'pollv')
    for op in ucst: emit(op, 'ucs')
    a(f'v_mov_b32 v127, v10')
    a(f's_add_u32 s{S_T1}, s{S_W}, s{S_SPLIT}')
    a(f's_and_b32 s{S_T1}, s{S_T1}, 3')
    a(f's_lshl_b32 s{S_T1}, s{S_T1}, 13')
    a(f'v_add_u32 v{V_DV0}, s{S_T1}, v{V_L16}')
    a(f'v_add_u32 v{V_DV1}, 4096, v{V_DV0}')
    a(f's_mov_b32 s{S_KDMA}, s{S_W8K}')
    a(f's_mov_b32 s{S_VRD}, {2*TILE}')
    st(1)
    if prefetch:
        a(f's_add_u32 s{S_PFOFF}, s{S_PFOFF}, s{S_W}')
        a(f's_and_b32 s{S_T1}, s{S_PFOFF}, {31 if pairmap else 15}')
        a(f's_lshl_b32 s{S_T1}, s{S_T1}, {10 if pairmap else 11}')
        a(f's_cmp_ge_u32 s{S_PFOFF}, {32 if pairmap else 16}')
        a(f's_cselect_b32 s{S_PFOFF}, {WS_VT - WS_XA - TILE}, 0')
        a(f's_add_u32 s{S_T1}, s{S_T1}, s{S_PFOFF}')
        a(f's_add_u32 s{S_T1}, s{S_T1}, {prefetch * TILE}')
        a(f'v_lshlrev_b32 v{V_PF}, {4 if pairmap else 5}, v0')
        a(f'v_add_u32 v{V_PF}, s{S_T1}, v{V_PF}')
    VLR = 124 if bcast else V_L16
    if bcast:
        a(f's_cmp_eq_u32 s{S_VALID}, 0')
        a(f's_cselect_b32 s{S_T1}, -1, 0')
        a(f'v_and_b32 v{VLR}, s{S_T1}, v{V_L16}')
    a(f'v_mov_b32 v{V_KA}, v{VLR}')
    a(f'v_add_u32 v{V_VA}, s{S_VRD}, v{VLR}')
    a(f'v_mov_b32 v{V_L0}, 0')
    a(f'v_mov_b32 v{V_L1}, 0')
    nround = -(-64 // NR)
    sizes = [64 // nround + (1 if i < 64 % nround else 0) for i in range(nround)]
    slotmap = [i for sz in sizes for i in range(sz)]
    assert LA + 1 <= min(sizes) and max(sizes) <= NR and V_RING + 4 * NR <= V_PF
    def slot(f): return V_RING + 4 * slotmap[f % 64]
    def rd(f):
        if f < 32 and chain: return f'ds_read_b128 {vr(slot(f),4)}, v{V_KA} offset:{((f & 15)*2 + (f >> 4))*1024}'
        if f < 32: return f'ds_read_b128 {vr(slot(f),4)}, v{V_KA} offset:{f*1024}'
        return f'ds_read_b128 {vr(slot(f),4)}, v{V_VA} offset:{(f-32)*1024}'
    def Sreg(kh, qh): return V_S + (kh * 2 + qh) * 4
    def mfmas(f, zero_c=False, first=False):
        order = (1, 0) if (snake and (f & 1)) else (0, 1)
        out = []
        if chain and f < 32:
            kh = f >> 4; s0 = f & 14; qh = (f & 1) ^ ((f >> 1) & 1); fb = f & ~1
            for k in range(2):
                s = s0 + k
                c = vr(Sreg(kh, qh), 4) if s else ('0' if zero_c else vr(V_NEGM + 4 * qh, 4))
                out.append(f'v_mfma_f32_16x16x32_bf16 {vr(Sreg(kh,qh),4)}, {vr(slot(fb+k),4)}, {ar((s*2+qh)*4,4)}, {c}')
            return out
        for qh in order:
            if f < 32:
                s, kh = f >> 1, f & 1
                c = vr(Sreg(kh, qh), 4) if s else ('0' if zero_c else vr(V_NEGM + 4 * qh, 4))
                out.append(f'v_mfma_f32_16x16x32_bf16 {vr(Sreg(kh,qh),4)}, {vr(slot(f),4)}, {ar((s*2+qh)*4,4)}, {c}')
            else:
                b = f - 32
                out.append(f'v_mfma_f32_16x16x32_bf16 {Oreg(b,qh)}, {vr(slot(f),4)}, {vr(V_P+4*qh,4)}, {0 if first else Oreg(b,qh)}')
        return out
    q = LdsQ()
    zero = []
    for f in range(LA):
        a(rd(f)); q.issue(f)
    a(f's_waitcnt vmcnt({vm.need(("Q", 31))})')
    v0ops = []
    for f in range(32):
        a(f's_waitcnt lgkmcnt({q.need(f | 1)})')
        for m in mfmas(f, zero_c=True):
            a(m)
        if f + LA < 32:
            a(rd(f + LA)); q.issue(f + LA)
        if f == vchk:
            chk('fv', V_PFD, V_XO, S_T3, 'pollv')
            a(f's_add_u32 s{S_VDMA}, s{S_W8K}, {2*TILE}')
            v0ops = dma_ops(V_DV0, V_DV1, S_VOFF, S_VDMA)
        if v0ops:
            pre, op = v0ops.pop(0)
            if pre: a(pre); a('s_nop 0')
            emit(op, 'V0')
    for pre, op in v0ops:
        if pre: a(pre); a('s_nop 0')
        emit(op, 'V0')
    a(f's_add_u32 s{S_VOFF}, s{S_VOFF}, {TILE}')
    a(f's_add_u32 s{S_VDMA}, s{S_VDMA}, {TILE}')
    a('s_nop 5')
    def max_all():
        ops = [f'v_max3_f32 v{V_MX}, v{V_S}, v{V_S+1}, v{V_S+2}']
        for i in range(6): ops.append(f'v_max3_f32 v{V_MX}, v{V_MX}, v{V_S+3+2*i}, v{V_S+4+2*i}')
        ops.append(f'v_max_f32 v{V_MX}, v{V_MX}, v{V_S+15}')
        return ops
    def rowmax2(d0, d1, tmp):
        for qh, dst in ((0, d0), (1, d1)):
            r0, r1 = Sreg(0, qh), Sreg(1, qh)
            a(f'v_max3_f32 v{dst}, v{r0}, v{r0+1}, v{r0+2}')
            a(f'v_max3_f32 v{dst}, v{dst}, v{r0+3}, v{r1}')
            a(f'v_max3_f32 v{dst}, v{dst}, v{r1+1}, v{r1+2}')
            a(f'v_max_f32 v{dst}, v{dst}, v{r1+3}')
        xreduce([d0, d1], 'v_max_f32', tmp)
    exp_ops = [f'v_exp_f32 v{V_E+i}, v{V_S+i}' for i in range(16)]
    sum_ops = [f'v_add_f32 v{V_L1 if (i >> 2) & 1 else V_L0}, v{V_L1 if (i >> 2) & 1 else V_L0}, v{V_E+i}' for i in range(16)]
    cvt_ops = []
    for qh in range(2):
        for kh in range(2):
            e = V_E + (kh * 2 + qh) * 4
            for i in range(2):
                cvt_ops.append(f'v_cvt_pk_bf16_f32 v{V_P+4*qh+2*kh+i}, v{e+2*i}, v{e+2*i+1}')
    rowmax2(V_F0, V_F1, 120)
    if zinv:
        a(f's_cmp_lg_u32 s{S_VALID}, 0')
        a(f's_cselect_b32 s{S_T1}, {f2h(1e30)}, 0')
        a(f'v_add_f32 v{V_F0}, s{S_T1}, v{V_F0}')
        a(f'v_add_f32 v{V_F1}, s{S_T1}, v{V_F1}')
    for qh, dst in ((0, V_F0), (1, V_F1)):
        for kh in range(2):
            for i in range(4): a(f'v_sub_f32 v{Sreg(kh,qh)+i}, v{Sreg(kh,qh)+i}, v{dst}')
        for i in range(4): a(f'v_sub_f32 v{V_NEGM+4*qh+i}, 0, v{dst}')
    for o in exp_ops: a(o)
    for o in zero: a(o)
    a(f'v_xor_b32 v{V_KA}, 0x8000, v{V_KA}')
    a(f's_lshl2_add_u32 s{S_FLO}, s{S_GRP}, s{S_W}')
    a(f's_lshl_b32 s{S_FLO}, s{S_FLO}, 9')
    a(f's_add_u32 s{S_FLO}, s{S_FLO}, {ZF_PART}')
    a(f'v_and_b32 v{V_FL}, 3, v0')
    a(f'v_lshlrev_b32 v{V_FL}, 7, v{V_FL}')
    if prew2:
        a(f's_lshl_b32 s{S_T2}, s{S_SPLIT}, 7')
        a(f's_add_u32 s{S_T2}, s{S_T2}, s{S_FLO}')
        a(f'v_lshlrev_b32 v{V_T0}, 2, v0')
        a(f'v_mov_b32 v{V_T1}, 0')
        a('s_mov_b64 exec, 0xffffffff')
        emit(f'buffer_store_dword v{V_T1}, v{V_T0}, {SRD}, s{S_T2} offen sc1')
        a('s_mov_b64 exec, -1')
    a(f's_lshl_b32 s{S_T2}, s72, 7')
    a(f's_add_u32 s{S_T2}, s{S_T2}, {ZF + 4 * ZK}')
    a(f'v_mov_b32 v126, s{S_TAG}')
    a(f's_waitcnt vmcnt({min(63, vm.need("K1"))})')
    a('s_barrier')
    st(2); st(8, True)
    if stamp: a('s_waitcnt lgkmcnt(0)')
    q = LdsQ()
    for f in range(LA):
        a(rd(f)); q.issue(f)

    L_loop = f'{name}_loop'
    rare = []
    border = list(range(8, 32)) + list(range(8))
    YB = 192
    stream = [('pv', b) for b in border] + [('yc', T, f) for T in range(4) for f in range(32)]
    NS = len(stream)
    WA = [V_VA, V_DV0, V_DV1, V_PF]
    def srd_(i):
        it = stream[i]
        if it[0] == 'pv': return f'ds_read_b128 {vr(slot(i),4)}, v{V_KA} offset:{it[1]*1024}'
        if chain and it[1]: return f'ds_read_b128 {vr(slot(i),4)}, v{WA[it[1]]} offset:{((it[2] & 15)*2 + (it[2] >> 4))*1024}'
        return f'ds_read_b128 {vr(slot(i),4)}, v{WA[it[1]]} offset:{it[2]*1024}'
    def ucload(f):
        ops = []
        if f % 4 == 0 and f: ops.append(f's_add_u32 s{S_UCO}, s{S_UCO}, 4096')
        ops.append((f'buffer_load_dwordx4 {ar(4*f,4)}, v{125 if relief else V_L16}, {"s[76:79]" if zinv else SRD}, s{S_UCO} offen offset:{(f%4)*1024} sc1', ('uc', f)))
        return ops
    stubs = []
    class Dual:
        def __init__(self, op, tag, fast): self.op, self.tag, self.fast = op, tag, fast
    def em(o):
        if isinstance(o, Dual) and force_slow:
            emit(f'{o.op} sc1', o.tag); return
        if isinstance(o, Dual):
            lab = a.label(name + '_ds')
            a(f's_cbranch_vccnz {lab}')
            emit(f'{o.op} {o.fast}', o.tag)
            a(f'{lab}b:')
            stubs.append((lab, o.op))
            return
        if callable(o): o = o()
        if noyc and isinstance(o, tuple) and ((o[1] == 'x' and 'x' in noyc) or (isinstance(o[1], tuple) and o[1][0] in ('uc', 'wc') and o[1][0] in noyc)):
            vm.last[o[1]] = vm.last.get('dL', 0); return
        if isinstance(o, tuple): emit(*o)
        else: emit(o)
    nuc = [0]
    def body(last, first=False):
        tag = 'L' if last else ('F' if first else 'M')
        L_r1, L_r1b, L_r2, L_r2b = [f'{name}_{x}{tag}' for x in ('r1', 'r1b', 'r2', 'r2b')]
        rare.append((L_r1, L_r1b, L_r2, L_r2b))
        fill = [[] for _ in range(128)]
        cap = [CAP - 1 if p % 2 == 0 else CAP for p in range(128)]
        for p in range(128):
            if p % 2 == 1 and ((p + 1) // 2) % wait_every == 0: cap[p] -= 1
        cap[127] -= 3
        if cmp_early and not (last or first): cap[126] -= 1
        def put(pos, ops, cost):
            if not isinstance(ops, list): ops = [ops]
            while cap[pos] < cost: pos += 1
            cap[pos] -= cost
            fill[pos] += ops
            return pos
        if not last: bw = f's_waitcnt vmcnt({1 if prefetch else 0})'
        else: bw = lambda: f's_waitcnt vmcnt({vm.need("dL")})'
        pb = put(2 * bar_pos + 1, [bw] + ([] if 'nobar' in dbg and not last else ['s_barrier']), 2)
        assert pb < 2 * (64 - LA)
        if first:
            pf_ = put(2 * (32 - LA) - 5, [lambda: f's_waitcnt vmcnt({vm.need("V0")})', 's_barrier',
                                          f'buffer_store_dword v126, v127, {SRD}, s{S_T2} offen sc1'], 2)
            assert pf_ < 2 * (32 - LA)
        dk, dv = dma_ops(V_DK0, V_DK1, S_WCO if last else S_KOFF, S_KDMA), dma_ops(V_DV0, V_DV1, S_VOFF, S_VDMA)
        dm = dv + dk if last else dk + dv
        if 'halfdma' in dbg and not last and not first: dm = dk
        p = 0
        if last and not tailpf:
            p = put(p, (f'buffer_load_dword v{V_PFD}, v{V_FL}, {SRD}, s{S_FLO} offen sc1', 'poll'), dma_cost) + 1
            for c in range(npf, 3 if pfill else 0):
                p = put(p, f'buffer_load_dword v{V_T0}, v{V_PF}, {SRD}, s{S_PFS} offen', dma_cost) + 1
                p = put(p, f's_add_u32 s{S_PFS}, s{S_PFS}, 8192', 1) + 1
            if pfill: p = put(p, f'buffer_load_dword v{V_T0}, v{V_L16}, {SRD}, s{S_PFS} offen', dma_cost) + 1
        for pre, op in dm:
            if pre: p = put(p, pre, 1) + 1
            p = put(p, (op, 'dL'), dma_cost) + dma_gap
        if prefetch and not last:
            p = put(p, f'buffer_load_dword v{V_PFD}, v{V_PF}, s[96:99], s{S_PFS} offen {pf_flags}', dma_cost) + 1
        pdma = p
        assert pdma <= pb
        if last and not tailpf:
            p = put(56, [lambda: f's_waitcnt vmcnt({vm.need("poll")})', f'v_cmp_ne_u32 s[{S_T3}:{S_T3+1}], s{S_TAG}, v{V_PFD}'], 2) + 2
            p = put(p, [f's_cmp_eq_u64 s[{S_T3}:{S_T3+1}], 0', f's_cbranch_scc0 {name}_cfslow', f'{name}_cfok:'], 2) + 1
            p = put(p, f'v_cmp_ne_u32 s[{S_SLOW}:{S_SLOW+1}], s{S_XCC}, v{V_PFD}', 1) + 1
            assert p <= pdma + 4
        p = 68
        for o in max_all(): p = put(p, o, 1)
        p = put(p, f'v_cmp_lt_f32 vcc, {hex(THR)}, v{V_MX}', 1) + 1
        p = put(p + brgap, ([] if 'nobr1' in dbg else [f's_cbranch_vccnz {L_r1}']) + [f'{L_r1b}:'], 1) + 1
        for i, o in enumerate(exp_ops):
            if 'noexp' not in dbg: p = put(p, o, 2)
        p = 0
        for o in cvt_ops: p = put(p, o, 1)
        for o in sum_ops: p = put(p, o, 1)
        assert p < 60
        upd = [f's_add_u32 s{S_KOFF}, s{S_KOFF}, {TILE}', f's_add_u32 s{S_PFS}, s{S_PFS}, s{S_PFST}',
               f's_add_u32 s{S_VOFF}, s{S_VOFF}, {TILE}',
               f's_xor_b32 s{S_KDMA}, s{S_KDMA}, {TILE}',
               f's_add_u32 s{S_VDMA}, s{S_VDMA}, {TILE}',
               f's_cmp_ge_u32 s{S_VDMA}, {5*TILE}', f's_cselect_b32 s{S_T1}, {3*TILE}, 0',
               f's_sub_u32 s{S_VDMA}, s{S_VDMA}, s{S_T1}',
               f's_add_u32 s{S_VRD}, s{S_VRD}, {TILE}',
               f's_cmp_ge_u32 s{S_VRD}, {5*TILE}', f's_cselect_b32 s{S_VRD}, {2*TILE}, s{S_VRD}',
               f's_sub_u32 s{S_CNT}, s{S_CNT}, 1']
        if not last:
            p = pdma
            for o in upd: p = put(p, o, 1)
            put(2 * (32 - LA) + 1, f'v_xor_b32 v{V_KA}, 0x8000, v{V_KA}', 1)
            put(max(p + 1, 2 * (64 - LA) + 1), f'v_add_u32 v{V_VA}, s{S_VRD}, v{VLR}', 1)
        else:
            p = 2 * (32 - LA) + 1
            for o in [f's_sub_u32 s{S_KOFF}, s{S_VDMA}, s{S_W8K}', f'v_add_u32 v{V_KA}, s{S_KOFF}, v{V_L16}',
                      f's_sub_u32 s{S_WB0}, s{S_KDMA}, s{S_W8K}', f's_xor_b32 s{S_WB1}, s{S_WB0}, {TILE}', f's_mov_b32 s{S_WB3}, s{S_VRD}',
                      f's_add_u32 s{S_WB2}, s{S_WB3}, s{S_KOFF}', f's_sub_u32 s{S_WB2}, {9*TILE}, s{S_WB2}']:
                p = put(p, o, 1) + 1
            p = max(pdma, 66)
            while p < 127 and nuc[0] < 32:
                fill[p] += ucload(nuc[0]); nuc[0] += 1
                p += uc_pace
        for f in range(64):
            if f % wait_every == 0:
                a(f's_waitcnt lgkmcnt({q.need(min(f + wait_every - 1, 63))})')
            mm = mfmas(f, first=first)
            a(mm[0])
            nf = f + LA
            if 'halfrd' in dbg and not last and not first and (nf % 64) >= 32 and (nf & 1):
                q.last[nf % 64] = q.issued
            elif nf < 64 or not last:
                a(rd(nf % 64)); q.issue(nf % 64)
            else:
                a(srd_(nf - 64)); q.issue(('s', nf - 64))
            for o in fill[2 * f]: em(o)
            a(mm[1])
            for o in fill[2 * f + 1]: em(o)
        if last or first or not nobr2:
            a(f's_cbranch_vccnz {L_r2}')
            a(f'{L_r2b}:')
    if relief:
        a(f's_cmp_eq_u32 s{S_SPLIT}, 3')
        a(f's_cselect_b32 s{S_TGT}, 0, s{S_SPLIT}')
        a(f's_cmp_eq_u32 s{S_SPLIT}, 0')
        a(f's_cselect_b32 s{S_UCM}, 0x80000000, 0')
        a(f's_lshl2_add_u32 s{S_T1}, s{S_GRP}, s{S_W}')
        a(f's_mul_i32 s{S_T1}, s{S_T1}, {128 - 512}')
        a(f's_add_u32 s{S_T1}, s{S_T1}, {128 * 1024}')
        a(f's_cmp_eq_u32 s{S_SPLIT}, 0')
        a(f's_cselect_b32 s{S_T1}, s{S_T1}, 0')
        a(f'v_cmp_eq_u32 vcc, 0, v{V_FL}')
        a(f'v_mov_b32 v{V_T0}, s{S_T1}')
        a('s_nop 0')
        a(f'v_cndmask_b32 v{V_FL}, v{V_FL}, v{V_T0}, vcc')
        a('s_mov_b64 vcc, 0')
    else:
        a(f's_mov_b32 s{S_TGT}, s{S_SPLIT}')
    a(f's_lshl_b32 s{S_WCO}, s{S_TGT}, 17')
    a(f's_add_u32 s{S_WCO}, s{S_WCO}, {WS_WC}')
    a(f's_lshl_b32 s{S_UCO}, s{S_QB}, 15')
    a(f's_add_u32 s{S_UCO}, s{S_UCO}, {WS_UC}')
    a(f's_mov_b32 s{S_PFS}, s{S_KOFF}')
    a(f's_mov_b32 s{S_PFST}, {TILE}')
    a(f's_mov_b32 s{S_PH}, 0')
    NPH = 4 if tailpf else 0
    a(f's_sub_u32 s{S_CNT}, s{S_CNT}, {NPH}')
    make_srd(a, 96, S_WS, 0, WS_SIZE)
    a(f's_lshl_b32 s{S_PB}, s{S_GRP}, 2')
    a(f's_add_u32 s{S_PB}, s{S_PB}, s{S_SPLIT}')
    a(f's_lshl_b32 s{S_PB}, s{S_PB}, 2')
    a(f's_add_u32 s{S_PB}, s{S_PB}, s{S_W}')
    a(f's_lshl_b32 s{S_PB}, s{S_PB}, 15')
    a(f's_add_u32 s{S_PB}, s{S_PB}, {WS_PART}')
    S_LIM = 55
    a(f's_mov_b32 s{S_LIM}, 0')
    body(False, first=True)
    a('.p2align 6')
    a(f'{L_loop}:')
    body(False)
    if nobr2:
        a(f's_cmp_gt_u32 s{S_CNT}, s{S_LIM}')
        a(f's_cbranch_scc1 {L_loop}')
        a(f's_cbranch_vccnz {name}_r2M')
        a(f'{name}_r2bM:')
        a(f's_mov_b32 s{S_LIM}, 0')
    a(f's_cmp_lg_u32 s{S_CNT}, 0')
    a(f's_cbranch_scc1 {L_loop}')
    if tailpf == 1:
        a(f's_add_u32 s{S_PH}, s{S_PH}, 1')
        a(f's_mov_b32 s{S_CNT}, 1')
        a(f's_cmp_eq_u32 s{S_PH}, 5\n s_cbranch_scc1 {name}_ph5')
        a(f's_cmp_eq_u32 s{S_PH}, 4\n s_cbranch_scc1 {name}_ph4')
        a(f's_cmp_eq_u32 s{S_PH}, 3\n s_cbranch_scc1 {name}_ph3')
        a(f's_cmp_eq_u32 s{S_PH}, 2\n s_cbranch_scc1 {name}_ph2')
        a(f's_mov_b32 s96, s{S_X}\n s_mov_b32 s97, s{S_X+1}\n s_mov_b32 s98, 8192000')
        a(f'v_lshrrev_b32 v{V_PF}, 1, v0')
        a(f'v_lshlrev_b32 v{V_PF}, 10, v{V_PF}')
        a(f'v_and_b32 v{V_T0}, 1, v0')
        a(f'v_lshl_add_u32 v{V_PF}, v{V_T0}, 7, v{V_PF}')
        a(f's_lshl_b32 s{S_PFS}, s{S_QB}, 15')
        a(f's_lshl_b32 s{S_T1}, s{S_SPLIT}, 8')
        a(f's_add_u32 s{S_PFS}, s{S_PFS}, s{S_T1}')
        a(f's_branch {L_loop}')
        a(f'{name}_ph2:')
        a(f's_mov_b32 s96, s{S_WS}\n s_mov_b32 s97, s{S_WS+1}\n s_mov_b32 s98, {WS_SIZE}')
        a(f'v_and_b32 v{V_XO}, 7, v0')
        a(f'v_lshlrev_b32 v{V_XO}, 7, v{V_XO}')
        a(f'v_mov_b32 v{V_PF}, v{V_XO}')
        a(f's_add_u32 s{S_SLOW}, s{S_SLOW}, {2 * ZK}')
        a(f's_mov_b32 s{S_PFS}, s{S_SLOW}')
        a(f's_branch {L_loop}')
        a(f'{name}_ph3:')
        a('s_waitcnt vmcnt(0)')
        a(f'v_cmp_ne_u32 s[{S_T3}:{S_T3+1}], s{S_TAG}, v{V_PFD}')
        a(f'v_lshlrev_b32 v{V_PF}, 7, v0')
        if pairmap:
            a(f's_and_b32 s{S_PFS}, s{S_SPLIT}, 1')
            a(f's_lshl_b32 s{S_PFS}, s{S_PFS}, 14')
        else: a(f's_lshl_b32 s{S_PFS}, s{S_SPLIT}, 13')
        a(f's_add_u32 s{S_PFS}, s{S_PFS}, s{S_UCO}')
        a('s_nop 1')
        a(f's_cmp_eq_u64 s[{S_T3}:{S_T3+1}], 0')
        a(f's_cbranch_scc0 {name}_cfslow')
        a(f'{name}_cfok:')
        if pairmap:
            a(f'buffer_load_dword v126, v{V_PF}, {SRD}, s{S_PFS} offen sc1')
            a(f's_add_u32 s{S_PFS}, s{S_PFS}, 8192')
        a(f's_branch {L_loop}')
        a(f'{name}_ph4:')
        a(f'v_lshlrev_b32 v{V_PF}, {5 if pairmap else 6}, v0')
        a(f's_and_b32 s{S_PFS}, s{S_TILE}, {15 if pairmap else 7}')
        a(f's_lshl_b32 s{S_PFS}, s{S_PFS}, 2')
        a(f's_add_u32 s{S_PFS}, s{S_PFS}, s{S_W}')
        a(f's_lshl_b32 s{S_PFS}, s{S_PFS}, {11 if pairmap else 12}')
        a(f's_add_u32 s{S_PFS}, s{S_PFS}, s{S_WCO}')
        a(f's_branch {L_loop}')
        a(f'{name}_ph5:')
    if tailpf == 2:
        a(f's_add_u32 s{S_PH}, s{S_PH}, 1')
        a(f's_mov_b32 s{S_CNT}, 1')
        a(f's_cmp_eq_u32 s{S_PH}, 5\n s_cbranch_scc1 {name}_ph5')
        a(f's_cmp_eq_u32 s{S_PH}, 4\n s_cbranch_scc1 {name}_ph4')
        a(f's_cmp_eq_u32 s{S_PH}, 3\n s_cbranch_scc1 {name}_ph3')
        a(f's_cmp_eq_u32 s{S_PH}, 2\n s_cbranch_scc1 {name}_ph2')
        a(f'v_and_b32 v{V_XO}, 7, v0')
        a(f'v_lshlrev_b32 v{V_XO}, 7, v{V_XO}')
        a(f's_add_u32 s{S_SLOW}, s{S_SLOW}, {2 * ZK}')
        a(f'buffer_load_dword v124, v{V_XO}, {SRD}, s{S_SLOW} offen sc1')
        if tlb:
            a(f'v_lshlrev_b32 v125, 10, v{V_FL}')
            a(f's_lshl_b32 s{S_T1}, s{S_GRP}, 19')
            a(f's_add_u32 s{S_T1}, s{S_T1}, {WS_PART + 28672}')
            a(f'buffer_load_dword v126, v125, {SRD}, s{S_T1} offen sc1')
            a(f's_lshl_b32 s{S_T1}, s{S_QB}, 15')
            a(f'v_mov_b32 v125, 0')
            a(f'buffer_load_dword v126, v125, {SRO}, s{S_T1} offen sc1')
        a(f's_branch {L_loop}')
        a(f'{name}_ph2:')
        a(f'v_mov_b32 v{V_PFD}, v124' if False else 's_nop 0')
        a(f'v_cmp_ne_u32 s[{S_T3}:{S_T3+1}], s{S_TAG}, v124')
        a(f'v_lshrrev_b32 v125, 1, v0')
        a(f'v_lshlrev_b32 v125, 10, v125')
        a(f'v_and_b32 v{V_T0}, 1, v0')
        a(f'v_lshl_add_u32 v125, v{V_T0}, 7, v125')
        a(f's_lshl_b32 s{S_T2}, s{S_QB}, 15')
        a(f's_lshl_b32 s{S_T1}, s{S_SPLIT}, 8')
        a(f's_add_u32 s{S_T1}, s{S_T1}, s{S_T2}')
        a(f'buffer_load_dword v126, v125, {SRX}, s{S_T1} offen')
        a(f's_cmp_eq_u64 s[{S_T3}:{S_T3+1}], 0')
        a(f's_cbranch_scc0 {name}_cfslow')
        a(f'{name}_cfok:')
        a(f's_branch {L_loop}')
        a(f'{name}_ph3:')
        a(f'v_lshlrev_b32 v125, 7, v0')
        a(f's_lshl_b32 s{S_T1}, s{S_SPLIT}, 13')
        a(f's_add_u32 s{S_T1}, s{S_T1}, s{S_UCO}')
        a(f'buffer_load_dword v126, v125, {SRD}, s{S_T1} offen sc1')
        a(f's_branch {L_loop}')
        a(f'{name}_ph4:')
        a(f'v_lshlrev_b32 v125, 6, v0')
        a(f's_and_b32 s{S_T1}, s{S_TILE}, 7')
        a(f's_lshl2_add_u32 s{S_T1}, s{S_T1}, s{S_W}')
        a(f's_lshl_b32 s{S_T1}, s{S_T1}, 12')
        a(f's_add_u32 s{S_T1}, s{S_T1}, s{S_WCO}')
        a(f'buffer_load_dword v126, v125, {SRD}, s{S_T1} offen sc1')
        a(f'v_bfrev_b32 v{V_PF}, 1')
        a(f's_branch {L_loop}')
        a(f'{name}_ph5:')
    st(3); st(9, True)
    if stamp: a('s_waitcnt lgkmcnt(0)')
    if relief:
        a(f'v_or_b32 v125, s{S_UCM}, v{V_L16}')
        a(f'v_or_b32 v{V_DK0}, s{S_UCM}, v{V_DK0}')
        a(f'v_or_b32 v{V_DK1}, s{S_UCM}, v{V_DK1}')
    body(True)
    st(15)
    if stamp: a('s_waitcnt lgkmcnt(0)')
    def smf(i):
        it = stream[i]; out = []
        if chain and it[0] == 'yc' and it[1]:
            T, f = it[1], it[2]; ch = f >> 4; qh = (f & 1) ^ ((f >> 1) & 1)
            d = vr(YB + 8 * (2 * T + ch) + 4 * qh, 4)
            for k in range(2):
                s = (f & 14) + k
                out.append(f'v_mfma_f32_16x16x32_bf16 {d}, {vr(slot((i & ~1) + k),4)}, {ar((s*2+qh)*4,4)}, {d if s or (xinit if tail != 5 else T == 3) else 0}')
            return out
        for qh in ((1, 0) if (snake and (i & 1)) else (0, 1)):
            if it[0] == 'pv':
                out.append(f'v_mfma_f32_16x16x32_bf16 {Oreg(it[1],qh)}, {vr(slot(i),4)}, {vr(V_P+4*qh,4)}, {Oreg(it[1],qh)}')
            else:
                T, f = it[1], it[2]; s, ch = f >> 1, f & 1
                d = vr(YB + 8 * (2 * T + ch) + 4 * qh, 4)
                out.append(f'v_mfma_f32_16x16x32_bf16 {d}, {vr(slot(i),4)}, {ar((s*2+qh)*4,4)}, {d if s or (xinit and tail != 5) else 0}')
        return out
    a(f's_mov_b64 vcc, s[{S_SLOW}:{S_SLOW+1}]' if not force_slow else 's_mov_b64 vcc, -1')
    for o in cvt_ops: a(o)
    a(f's_lshl_b32 s{S_T0}, s{S_GRP}, 2')
    a(f'v_add_u32 v{WA[0]}, s{S_WB0}, v{V_L16}')
    pend = [(0, o, 1) for o in sum_ops]
    for i, sb in enumerate((S_WB1, S_WB2, S_WB3)): pend.append((0, f'v_add_u32 v{WA[i+1]}, s{sb}, v{V_L16}', 1))
    rot = 0
    for qd in range(1, 4):
        hdr = [f's_add_u32 s{S_PO}, s{S_PB}, {(qd-1)*8192}']
        for gm in range(4):
            for qh in range(2):
                b0 = 8 * qd + 2 * gm
                ready = 2 * (border.index(b0 + 1) + 1) + 6
                idx = gm * 2 + qh
                if idx == 0:
                    for h in hdr: pend.append((0, h, 1))
                if idx == 4: pend.append((ready, f's_add_u32 s{S_PO}, s{S_PO}, 4096', 1))
                tb = V_S + 8 * (rot % 2); pk = V_E + 4 * (rot % 4); rot += 1
                srcs = []
                for b in range(2):
                    for r in range(4):
                        o = Obase(b0 + b, qh) + r
                        if qd == 1: srcs.append(o)
                        else:
                            pend.append((ready, f'v_accvgpr_read_b32 v{tb+4*b+r}, a{o}', 1)); srcs.append(tb + 4 * b + r)
                for r in range(4): pend.append((ready, f'v_cvt_pk_bf16_f32 v{pk+r}, v{srcs[2*r]}, v{srcs[2*r+1]}', 1))
                pend.append((ready, Dual(f'buffer_store_dwordx4 {vr(pk,4)}, v{V_L16}, {SRD}, s{S_PO} offen offset:{(idx%4)*1024}', 'part', fast_st), 2))
    def stats_block():
        xreduce([V_L0, V_L1], 'v_add_f32', 126)
        a(f'v_mov_b32 v120, v{V_L0}')
        a(f'v_sub_f32 v121, 0, v{V_NEGM}')
        a(f'v_mov_b32 v122, v{V_L1}')
        a(f'v_sub_f32 v123, 0, v{V_NEGM+4}')
        a(f's_add_u32 s{S_T1}, s{S_PB}, {3*8192}')
        em(Dual(f'buffer_store_dwordx4 v[120:123], v{V_L16}, {SRD}, s{S_T1} offen', 'part', fast_st))
    XV = V_P
    def x_setup():
        a(f'v_lshrrev_b32 v{V_T0}, 4, v0')
        a(f'v_and_b32 v{V_T1}, 15, v0')
        a(f'v_xor_b32 v{V_T2}, v{V_T0}, v{V_T1}')
        a(f'v_lshlrev_b32 v{V_T2}, 4, v{V_T2}')
        a(f'v_lshl_add_u32 v{XV}, v{V_T0}, 10, v{V_T2}')
        for i in range(1, 4): a(f'v_xor_b32 v{XV+i}, {i*64}, v{XV}')
        a(f's_add_u32 s{S_KOFF}, s{S_KOFF}, s{S_W8K}')
        a(f'v_lshl_add_u32 v{XV+4}, v{V_T1}, 8, v{V_T2}')
        a(f'v_add_u32 v{XV+4}, s{S_KOFF}, v{XV+4}')
        for i in range(1, 4): a(f'v_xor_b32 v{XV+4+i}, {i*64}, v{XV+4}')
        a(f'v_add_u32 v{V_XO}, s{S_KOFF}, v{V_L16}')
        a(f's_lshl_b32 s{S_T4}, s{S_QB}, 15')
        a(f's_lshl_b32 s{S_T1}, s{S_TGT}, 8')
        a(f's_add_u32 s{S_T4}, s{S_T4}, s{S_T1}')
    def wc_dma(T):
        out = []
        first = [f's_add_u32 s{S_WCO}, s{S_WCO}, {TILE}', f's_add_u32 s{S_T2}, s{(S_WB0, S_WB1, S_WB2, S_WB3)[T]}, s{S_W8K}']
        for pre, op in dma_ops(V_DK0, V_DK1, S_WCO, S_T2):
            g = first; first = []
            if pre: g += [pre, 's_nop 0']
            out.append(g + [(op, ('wc', T))])
        return out
    if tail == 5:
        xinit = False
        def xdma():
            return [[f's_add_u32 m0, s{S_KOFF}, {k*1024}', f's_add_u32 s{S_T1}, s{S_T4}, {k*4096}',
                     (f'buffer_load_dwordx4 v{XV+(k&3)}, {SRX}, s{S_T1} offen lds', 'x')] for k in range(8)]
        dq = [ucload(f) for f in range(nuc[0], 32)] + wc_dma(1)
        n_q1 = max(i for i, p in enumerate(pend) if isinstance(p[1], str) and 'v_cvt_pk' in p[1] and int(p[1].split('v')[-1]) >= 192) + 2
        done = [0]
        def pop():
            _, op, c = pend.pop(0); em(op); done[0] += 1
            if isinstance(op, str) and op.startswith('ds_'): q.issue('xr')
            return c
        def run(i0, i1, every, bud, until_empty=False):
            for i in range(i0, i1):
                if until_empty and not pend and not dq and i % 2 == 0: return i
                it = stream[i]; w = []
                if it[0] == 'yc' and it[1] == 0 and it[2] % 2 == 0: w.append(f'vmcnt({min(63, vm.need(("uc", it[2] | 1)))})')
                if i % 2 == 0: w.append(f'lgkmcnt({min(15, q.need(("s", min(i + 1, NS - 1))))})')
                if w: a('s_waitcnt ' + ' '.join(w))
                mm = smf(i)
                for h in range(2):
                    pos = 2 * i + h
                    a(mm[h])
                    budget = bud
                    if h == 0 and i + LA < NS:
                        nx = stream[i + LA]
                        if nx[0] == 'yc' and nx[2] == 0 and nx[1] >= 1:
                            a(f's_waitcnt vmcnt({min(63, vm.need(("wc", nx[1])))})')
                            a('s_barrier')
                        a(srd_(i + LA)); q.issue(('s', i + LA)); budget -= 1
                    if dq and pos % every == 1:
                        for o in dq.pop(0): em(o)
                        budget -= 2
                    while pend and pend[0][0] <= pos and budget > 0: budget -= pop()
            return i1
        run(0, 32, t5[0], t5[1])
        while done[0] < n_q1: pop()
        while dq:
            for o in dq.pop(0): em(o)
        stats_block()
        a('s_barrier')
        x_setup()
        st(4)
        dq += wc_dma(2) + xdma() + wc_dma(3)
        poll = f'buffer_load_dword v{V_PFD}, v{V_FL}, {SRD}, s{S_FLO} offen offset:4 sc1'
        ie = run(32, NS, t5[2], t5[3], until_empty=True)
        print('tail5: stores and loads issued by item', ie)
        emit(poll, 'poll')
        def ycol(idx, i): return YB + 8 * (2 * (idx >> 1) + (i >> 1)) + 4 * (idx & 1) + 2 * (i & 1)
        i2 = ie + t5[4]
        run(ie, i2, 1000, 2)
        a(f's_lshl_b32 s{S_T3}, s{S_SPLIT}, 7')
        a(f's_add_u32 s{S_T3}, s{S_T3}, s{S_FLO}')
        a(f'v_lshlrev_b32 v{V_T0}, 2, v0\n v_mov_b32 v{V_T1}, s{S_TAG}')
        a(f's_lshl_b32 s{S_CNT}, 1, s{S_SPLIT}')
        a('s_mov_b64 exec, 0xffffffff')
        a(f's_waitcnt vmcnt({min(vm.need("part"), vm.need("x"))})')
        em(Dual(f'buffer_store_dword v{V_T1}, v{V_T0}, {SRD}, s{S_T3} offen', None, ''))
        a('s_mov_b64 exec, -1')
        st(5)
        assert i2 + LA < 128
        for idx in (6, 7, 0, 1, 2, 3, 4, 5):
            a(f'ds_read_b128 {vr(V_S+4*idx,4)}, v{XV+4+(idx>>1)} offset:{(idx&1)*4096}'); q.issue('xr')
        STR = [56, 60, 124]
        def getmask(w):
            a(f's_waitcnt vmcnt({w})')
            a(f'v_cmp_eq_u32 vcc, s{S_TAG}, v{V_PFD}')
            a('s_nop 3')
            a(f's_and_b32 s{S_PFS}, vcc_lo, 15')
            a(f's_andn2_b32 s{S_PFS}, s{S_PFS}, s{S_CNT}')
            a(f's_or_b32 s{S_CNT}, s{S_CNT}, s{S_PFS}')
        def slot_hdr(k):
            return [f's_sub_u32 s{S_T1}, s{S_SPLIT}, {k+1}', f's_and_b32 s{S_T1}, s{S_T1}, 3', f's_bitcmp1_b32 s{S_PFS}, s{S_T1}']
        def slot_adr():
            return [f's_add_u32 s{S_T1}, s{S_T1}, s{S_T0}', f's_lshl_b32 s{S_T1}, s{S_T1}, 2', f's_add_u32 s{S_T1}, s{S_T1}, s{S_W}',
                    f's_lshl_b32 s{S_PO}, s{S_T1}, 15', f's_add_u32 s{S_T1}, s{S_PO}, {WS_PART + 3*8192}']
        def slot_loads(k, vo):
            out = [[f'buffer_load_dwordx4 {vr(STR[k],4)}, v{vo}, {SRD}, s{S_T1} offen sc1']]
            for h4 in range(2):
                for i in range(4):
                    pre = [f's_add_u32 s{S_T1}, s{S_PO}, {WS_PART + k*8192 + h4*4096}'] if i == 0 else []
                    out.append(pre + [f'buffer_load_dwordx4 {ar(128+(k*8+h4*4+i)*4,4)}, v{vo}, {SRD}, s{S_T1} offen offset:{i*1024} sc1'])
            return out
        def check():
            getmask(0)
            for k in range(3):
                lab = a.label(name + '_ck')
                for o in slot_hdr(k): a(o)
                a(f's_cbranch_scc0 {lab}')
                for o in slot_adr(): a(o)
                for g in slot_loads(k, V_L16):
                    for o in g: a(o)
                a(f'{lab}:')
            if relief:
                lab = a.label(name + '_ck')
                a(f's_bitcmp1_b32 s{S_PFS}, s{S_SPLIT}')
                a(f's_cbranch_scc0 {lab}')
                a(f's_add_u32 s{S_T1}, s{S_T0}, s{S_W}')
                a(f's_lshl_b32 s{S_T1}, s{S_T1}, 13')
                a(f's_add_u32 s{S_T1}, s{S_T1}, {WS_U}')
                for i in range(8):
                    if i == 4: a(f's_add_u32 s{S_T1}, s{S_T1}, 4096')
                    a(f'buffer_load_dwordx4 {vr(68+4*i,4)}, v{V_L16}, {SRD}, s{S_T1} offen offset:{(i%4)*1024} sc1')
                a(f'{lab}:')
        getmask(vm.need('poll'))
        for k in range(3):
            first = slot_hdr(k) + [f's_cselect_b32 s{S_PH}, 0, 0x80000000', f'v_or_b32 v{V_T2}, s{S_PH}, v{V_L16}'] + slot_adr()
            for g in slot_loads(k, V_T2):
                dq.append(first + g); first = []
        dq.append([poll])
        a('s_waitcnt lgkmcnt(0)')
        for idx in (6, 7):
            for i in range(4):
                a(f'v_lshlrev_b32 v{ycol(idx,i)}, 16, v{V_S+4*idx+i}')
                a(f'v_and_b32 v{ycol(idx,i)+1}, 0xffff0000, v{V_S+4*idx+i}')
        for idx in range(6):
            ready = 2 * (64 + 32 * (idx >> 1)) + 8
            for i in range(4):
                t = 40 + 2 * i
                pend.append((ready, f'v_lshlrev_b32 v{t}, 16, v{V_S+4*idx+i}', 1))
                pend.append((ready, f'v_and_b32 v{t+1}, 0xffff0000, v{V_S+4*idx+i}', 1))
            for i in range(4):
                for k in range(2): pend.append((ready, f'v_add_f32 v{ycol(idx,i)+k}, v{ycol(idx,i)+k}, v{40+2*i+k}', 1))
        st(20)
        run(i2, NS, t5[5], 2)
        while dq:
            for o in dq.pop(0): em(o)
        while pend: pop()
        st(21)
    else:
        dq = [ucload(f) for f in range(nuc[0], 32)]
        def xdma():
            return [[f's_add_u32 m0, s{S_KOFF}, {k*1024}', f's_add_u32 s{S_T1}, s{S_T4}, {k*4096}',
                     (f'buffer_load_dwordx4 v{XV+(k&3)}, {SRX}, s{S_T1} offen lds', 'x')] for k in range(8)]
        def pop():
            _, op, c = pend.pop(0); em(op)
            if isinstance(op, Dual):
                for _ in range(ld_per_st):
                    if dq:
                        for o in dq.pop(0): em(o)
            return c
        lim = [64]
        def run(i0, i1, every=0):
            for i in range(i0, i1):
                it = stream[i]; w = []
                if it[0] == 'yc' and it[1] == 0 and it[2] % 2 == 0: w.append(f'vmcnt({min(63, vm.need(("uc", it[2] | 1)))})')
                if i % 2 == 0: w.append(f'lgkmcnt({min(15, q.need(("s", min(i + 1, NS - 1))))})')
                if w: a('s_waitcnt ' + ' '.join(w))
                mm = smf(i)
                for h in range(2):
                    pos = 2 * i + h
                    a(mm[h])
                    budget = pv_budget
                    if h == 0 and i + LA < NS:
                        nx = stream[i + LA]
                        if nx[0] == 'yc' and nx[2] == 0 and nx[1] in (1, 2):
                            a(f's_waitcnt vmcnt({min(63, vm.need(("wc", 1 if nx[1] == 1 else 3)))})')
                            a('s_barrier')
                        a(srd_(i + LA)); q.issue(('s', i + LA)); budget -= 1
                    while pend and pend[0][0] <= pos and budget > 0: budget -= pop()
                    if every and dq and pos % every == 1:
                        for o in dq.pop(0): em(o)
        run(0, 32)
        a('s_barrier')
        x_setup()
        if xinit:
            if relief: a(f's_cmp_eq_u32 s{S_SPLIT}, 0\n s_cbranch_scc1 {name}_nox')
            for g in xdma():
                for o in g: em(o)
            a(f'{name}_nox:')
        while pend: pop()
        stats_block()
        dq += wc_dma(1) + wc_dma(2) + wc_dma(3)
        if relief:
            a(f's_cmp_lg_u32 s{S_SPLIT}, 0\n s_cbranch_scc1 {name}_uc2')
            a('s_waitcnt vmcnt(0)')
            a(f's_branch {name}_uc3')
            a(f'{name}_uc2:')
        while len(dq) > 24 - flag_after:
            for o in dq.pop(0): em(o)
        a(f'{name}_uc3:')
        st(4)
        a(f's_lshl_b32 s{S_T3}, s{S_SPLIT}, 7')
        a(f's_add_u32 s{S_T3}, s{S_T3}, s{S_FLO}')
        a(f'v_lshlrev_b32 v{V_T0}, 2, v0\n v_mov_b32 v{V_T1}, s{S_TAG}')
        a(f's_lshl_b32 s{S_CNT}, 1, s{S_SPLIT}')
        a('s_mov_b64 exec, 0xffffffff')
        a(f's_waitcnt vmcnt({vm.need("part")})')
        em(Dual(f'buffer_store_dword v{V_T1}, v{V_T0}, {SRD}, s{S_T3} offen', None, ''))
        a('s_mov_b64 exec, -1')
        st(5)
        if stamp: a('s_waitcnt lgkmcnt(0)')
        if relief:
            a(f's_cmp_lg_u32 s{S_SPLIT}, 0\n s_cbranch_scc1 {name}_yc')
            a(f's_mov_b32 s{S_CNT}, 0')
            a(f'buffer_load_dword v{V_PFD}, v{V_FL}, {SRD}, s{S_FLO} offen offset:4 sc1')
            a('s_waitcnt lgkmcnt(0)')
            a(f's_branch {name}_spin')
            a(f'{name}_yc:')
        if xinit:
            for _ in range(xi_pre):
                for o in dq.pop(0): em(o)
            for idx in range(8):
                gm, qh = idx >> 1, idx & 1
                a(f'ds_read_b128 {vr(V_S+4*idx,4)}, v{XV+4+gm} offset:{qh*4096}'); q.issue(('x', idx))
            for idx in range(8):
                gm, qh = idx >> 1, idx & 1
                a(f's_waitcnt lgkmcnt({q.need(("x", idx))})')
                for i in range(4):
                    y = YB + 8 * (2 * gm + (i >> 1)) + 4 * qh + 2 * (i & 1)
                    a(f'v_lshlrev_b32 v{y}, 16, v{V_S+4*idx+i}')
                    a(f'v_and_b32 v{y+1}, 0xffff0000, v{V_S+4*idx+i}')
            a('s_nop 1')
        poll = f'buffer_load_dword v{V_PFD}, v{V_FL}, {SRD}, s{S_FLO} offen offset:4 sc1'
        dq.insert(min(max(0, poll_after - (xi_pre if xinit else 0)), len(dq)), [(poll, 'poll')])
        STR = [56, 60, 124]
        def getmask(w):
            a(f's_waitcnt vmcnt({w})')
            a(f'v_cmp_eq_u32 vcc, s{S_TAG}, v{V_PFD}')
            a('s_nop 3')
            a(f's_and_b32 s{S_PFS}, vcc_lo, 15')
            a(f's_andn2_b32 s{S_PFS}, s{S_PFS}, s{S_CNT}')
            a(f's_or_b32 s{S_CNT}, s{S_CNT}, s{S_PFS}')
        def slot_hdr(k):
            return [f's_sub_u32 s{S_T1}, s{S_SPLIT}, {k+1}', f's_and_b32 s{S_T1}, s{S_T1}, 3', f's_bitcmp1_b32 s{S_PFS}, s{S_T1}']
        def slot_adr():
            return [f's_add_u32 s{S_T1}, s{S_T1}, s{S_T0}', f's_lshl_b32 s{S_T1}, s{S_T1}, 2', f's_add_u32 s{S_T1}, s{S_T1}, s{S_W}',
                    f's_lshl_b32 s{S_PO}, s{S_T1}, 15', f's_add_u32 s{S_T1}, s{S_PO}, {WS_PART + 3*8192}']
        def slot_loads(k, vo):
            out = [[f'buffer_load_dwordx4 {vr(STR[k],4)}, v{vo}, {SRD}, s{S_T1} offen sc1']]
            for h4 in range(2):
                for i in range(4):
                    pre = [f's_add_u32 s{S_T1}, s{S_PO}, {WS_PART + k*8192 + h4*4096}'] if i == 0 else []
                    dst = vr(V_S + (h4*4+i)*4, 4) if (xinit and k == 0) else ar(128+(k*8+h4*4+i)*4,4)
                    out.append(pre + [f'buffer_load_dwordx4 {dst}, v{vo}, {SRD}, s{S_T1} offen offset:{i*1024} sc1'])
            return out
        def check():
            getmask(0)
            for k in range(3):
                lab = a.label(name + '_ck')
                for o in slot_hdr(k): a(o)
                a(f's_cbranch_scc0 {lab}')
                for o in slot_adr(): a(o)
                for g in slot_loads(k, V_L16):
                    for o in g: a(o)
                a(f'{lab}:')
            if relief:
                lab = a.label(name + '_ck')
                a(f's_bitcmp1_b32 s{S_PFS}, s{S_SPLIT}')
                a(f's_cbranch_scc0 {lab}')
                a(f's_add_u32 s{S_T1}, s{S_T0}, s{S_W}')
                a(f's_lshl_b32 s{S_T1}, s{S_T1}, 13')
                a(f's_add_u32 s{S_T1}, s{S_T1}, {WS_U}')
                for i in range(8):
                    if i == 4: a(f's_add_u32 s{S_T1}, s{S_T1}, 4096')
                    a(f'buffer_load_dwordx4 {vr(68+4*i,4)}, v{V_L16}, {SRD}, s{S_T1} offen offset:{(i%4)*1024} sc1')
                a(f'{lab}:')
        run(32, chk_at, every=2)
        assert not dq
        st(20)
        if stamp: a('s_waitcnt lgkmcnt(0)')
        getmask(vm.need('poll'))
        for k in range(3):
            first = slot_hdr(k) + [f's_cselect_b32 s{S_PH}, 0, 0x80000000', f'v_or_b32 v{V_T2}, s{S_PH}, v{V_L16}'] + slot_adr()
            for g in slot_loads(k, V_T2):
                dq.append(first + g); first = []
        dq += ([] if xinit else xdma()) + [[poll]]
        run(chk_at, NS, every=r_pace)
        assert not dq, len(dq)
        st(21)
        if not xinit:
            a(f's_waitcnt vmcnt({vm.need("x")})')
            st(22)
            if stamp: a('s_waitcnt lgkmcnt(0)')
            for idx in range(8):
                gm, qh = idx >> 1, idx & 1
                a(f'ds_read_b128 {vr(V_S+4*idx,4)}, v{XV+4+gm} offset:{qh*4096}')
            a('s_nop 3')
            for idx in range(8):
                gm, qh = idx >> 1, idx & 1
                xb = V_S + 4 * idx
                a(f's_waitcnt lgkmcnt({7-idx})')
                for i in range(4):
                    a(f'v_lshlrev_b32 v{64+2*i}, 16, v{xb+i}')
                    a(f'v_and_b32 v{64+2*i+1}, 0xffff0000, v{xb+i}')
                for i in range(4):
                    y = YB + 8 * (2 * gm + (i >> 1)) + 4 * qh + 2 * (i & 1)
                    a(f'v_pk_add_f32 {vr(y,2)}, {vr(y,2)}, {vr(64+2*i,2)}')
    if relief:
        a(f's_cmp_lg_u32 s{S_SPLIT}, 3\n s_cbranch_scc1 {name}_spin')
        a(f's_add_u32 s{S_T1}, s{S_T0}, s{S_W}')
        a(f's_lshl_b32 s{S_T3}, s{S_T1}, 7')
        a(f's_lshl_b32 s{S_T1}, s{S_T1}, 13')
        a(f's_add_u32 s{S_T1}, s{S_T1}, {WS_U}')
        a('s_nop 3')
        for idx in range(8):
            gm, qh = idx >> 1, idx & 1
            for i in range(4):
                y = YB + 8 * (2 * gm + (i >> 1)) + 4 * qh + 2 * (i & 1)
                a(f'v_cvt_pk_bf16_f32 v{68+4*idx+i}, v{y}, v{y+1}')
            if idx == 4: a(f's_add_u32 s{S_T1}, s{S_T1}, 4096')
            emit(f'buffer_store_dwordx4 {vr(68+4*idx,4)}, v{V_L16}, {SRD}, s{S_T1} offen offset:{(idx%4)*1024} sc1', 'ypub')
        a('s_barrier')
        a(f's_add_u32 s{S_WCO}, s{S_WCO}, {3 * (1 << 17) - 4 * TILE}')
        a(f's_add_u32 s{S_T4}, s{S_T4}, 768')
        for g in xdma() + wc_dma(0) + wc_dma(1):
            for o in g: em(o)
        a(f's_add_u32 s{S_T3}, s{S_T3}, {ZF_PART + 128 * 1024}')
        a(f'v_lshlrev_b32 v{V_T0}, 2, v0\n v_mov_b32 v{V_T1}, s{S_TAG}')
        a('s_mov_b64 exec, 0xffffffff')
        a(f's_waitcnt vmcnt({vm.need("ypub")})')
        emit(f'buffer_store_dword v{V_T1}, v{V_T0}, {SRD}, s{S_T3} offen sc1')
        a('s_mov_b64 exec, -1')
        a(f's_waitcnt vmcnt({vm.need("x")})')
        for idx in range(8): a(f'ds_read_b128 {vr(68+4*idx,4)}, v{XV+4+(idx>>1)} offset:{(idx&1)*4096}')
        for idx in range(8):
            gm, qh = idx >> 1, idx & 1
            a(f's_waitcnt lgkmcnt({7-idx})')
            for i in range(4):
                y = YB + 8 * (2 * gm + (i >> 1)) + 4 * qh + 2 * (i & 1)
                a(f'v_lshlrev_b32 v{y}, 16, v{68+4*idx+i}')
                a(f'v_and_b32 v{y+1}, 0xffff0000, v{68+4*idx+i}')
        a(f's_waitcnt vmcnt({vm.need(("wc", 0))})')
        a('s_barrier')
        for i in range(32, 32 + LA): a(srd_(i)); q.issue(('s', i))
        dq += wc_dma(2) + wc_dma(3)
        run(32, 130, every=3)
        a(poll)
        run(130, NS)
    st(23)
    a(f'{name}_spin:')
    check()
    a(f's_cmp_eq_u32 s{S_CNT}, 15')
    a(f's_cbranch_scc1 {name}_got')
    if spsl: a(f's_sleep {spsl}')
    a(poll)
    a(f's_branch {name}_spin')
    a(f'{name}_got:')
    st(6)
    a('s_waitcnt vmcnt(0)')
    st(24)
    if relief:
        a(f's_cmp_lg_u32 s{S_SPLIT}, 0\n s_cbranch_scc1 {name}_hasy')
        for idx in range(8):
            gm, qh = idx >> 1, idx & 1
            for i in range(4):
                y = YB + 8 * (2 * gm + (i >> 1)) + 4 * qh + 2 * (i & 1)
                a(f'v_lshlrev_b32 v{y}, 16, v{68+4*idx+i}')
                a(f'v_and_b32 v{y+1}, 0xffff0000, v{68+4*idx+i}')
        a(f'{name}_hasy:')
    allst = [120] + STR
    for qh in range(2):
        t = V_T0 + qh
        a(f'v_max3_f32 v{t}, v{allst[0]+2*qh+1}, v{allst[1]+2*qh+1}, v{allst[2]+2*qh+1}')
        a(f'v_max_f32 v{t}, v{t}, v{allst[3]+2*qh+1}')
    for qh in range(2):
        for b in allst: a(f'v_sub_f32 v{b+2*qh+1}, v{b+2*qh+1}, v{V_T0+qh}')
    for qh in range(2):
        for b in allst: a(f'v_exp_f32 v{b+2*qh+1}, v{b+2*qh+1}')
    for qh in range(2):
        a(f'v_mul_f32 v{V_T0+qh}, v{allst[0]+2*qh}, v{allst[0]+2*qh+1}')
    for b in allst[1:]:
        for qh in range(2): a(f'v_fmac_f32 v{V_T0+qh}, v{b+2*qh}, v{b+2*qh+1}')
    for qh in range(2): a(f'v_rcp_f32 v{V_T0+qh}, v{V_T0+qh}')
    a('s_nop 0')
    for qh in range(2):
        for b in allst: a(f'v_mul_f32 v{b+2*qh+1}, v{b+2*qh+1}, v{V_T0+qh}')
    for i in range(4): a(f'v_or_b32 v{XV+i}, s{S_VALID}, v{XV+i}')
    for qh in range(2):
        for gm in range(4):
            idx = gm * 2 + qh
            ys = [YB + 8 * (2 * gm + (i >> 1)) + 4 * qh + 2 * (i & 1) for i in range(4)]
            for i in range(4):
                a(f'v_pk_fma_f32 {vr(ys[i],2)}, {vr(ys[i]-64,2)}, {vr(120+2*qh,2)}, {vr(ys[i],2)} op_sel:[0,1,0] op_sel_hi:[1,1,1]')
            for k in range(3):
                ub = 64 + 12 * k
                src = ub + 8
                if xinit and k == 0: src = V_S + 4 * idx
                else:
                    for i in range(4): a(f'v_accvgpr_read_b32 v{ub+8+i}, a{128+(k*8+idx)*4+i}')
                for i in range(4):
                    a(f'v_lshlrev_b32 v{ub+2*i}, 16, v{src+i}')
                    a(f'v_and_b32 v{ub+2*i+1}, 0xffff0000, v{src+i}')
                for i in range(4):
                    a(f'v_pk_fma_f32 {vr(ys[i],2)}, {vr(ub+2*i,2)}, {vr(STR[k]+2*qh,2)}, {vr(ys[i],2)} op_sel:[0,1,0] op_sel_hi:[1,1,1]')
            ob = 100 + 4 * (gm & 1)
            for i in range(4): a(f'v_cvt_pk_bf16_f32 v{ob+i}, v{ys[i]}, v{ys[i]+1}')
            a(f'ds_write_b128 v{XV+4+gm}, {vr(ob,4)} offset:{qh*4096}')
            if qh == 1 and gm == 0:
                a('s_waitcnt lgkmcnt(1)')
                for i in range(4):
                    a(f's_add_u32 s{S_T1}, s{S_T4}, {i*4096}')
                    a(f'buffer_store_dwordx4 {vr(128+8*i,4)}, v{XV+i}, {SRO}, s{S_T1} offen {out_flags}')
        for i in range(4): a(f'ds_read_b128 {vr(128+8*i+4*qh,4)}, v{V_XO} offset:{(4*qh+i)*1024}')
    for i in range(4):
        a(f's_add_u32 s{S_T1}, s{S_T4}, {(4+i)*4096}')
        a(f's_waitcnt lgkmcnt({3-i})')
        a(f'buffer_store_dwordx4 {vr(128+8*i+4,4)}, v{XV+i}, {SRO}, s{S_T1} offen {out_flags}')
    if stamp:
        a('s_waitcnt vmcnt(0)')
        st(7)
        a('s_waitcnt lgkmcnt(0)')
        a(f's_cmp_lg_u32 s{S_W}, 0')
        a(f's_cbranch_scc1 {name}_end')
        a(f's_lshl_b32 s{S_T1}, s2, 7')
        a(f's_add_u32 s{S_T1}, s{S_T1}, {WS_STAMP}')
        for i in range(16): a(f'v_mov_b32 v{16+2*i}, s{80+i}\n v_mov_b32 v{17+2*i}, 0')
        a(f'v_mov_b32 v{V_T0}, 0')
        a('s_mov_b64 exec, 1')
        for i in range(8):
            a(f'buffer_store_dwordx4 {vr(16+4*i,4)}, v{V_T0}, {SRD}, s{S_T1} offen offset:{16*i}')
        if dbgout:
            a(f's_cmp_lg_u32 s2, 0\n s_cbranch_scc1 {name}_end')
            a('s_load_dwordx2 s[4:5], s[0:1], 80')
            a(f's_mov_b32 s{S_T1}, {WS_STAMP + 131072}')
            a(f'buffer_load_dwordx4 v[48:51], v{V_T0}, {SRD}, s{S_T1} offen sc1')
            a(f's_mov_b32 s{S_T1}, {WS_STAMP + 65536}')
            a(f'buffer_load_dwordx4 v[52:55], v{V_T0}, {SRD}, s{S_T1} offen sc1')
            a(f'buffer_load_dwordx4 v[56:59], v{V_T0}, {SRD}, s{S_T1} offen offset:16 sc1')
            a('s_waitcnt vmcnt(0) lgkmcnt(0)')
            a('s_sub_u32 s12, s4, 0\n s_subb_u32 s13, s5, 0\n s_mov_b32 s14, 256\n s_mov_b32 s15, 0x20000')
            src = [50, 52, 54, 56, 58, 16, 18, 20, 22, 30]
            for i, r in enumerate(src): a(f'v_sub_u32 v{64+i}, v{r}, v48')
            for i in range(3): a(f'buffer_store_dwordx4 {vr(64+4*i,4)}, v{V_T0}, s[12:15], 0 offen offset:{16*i}')
            if spin is not None:
                ra, rb = spin
                a(f'v_sub_u32 v80, v{rb}, v{ra}')
                a('v_add_u32 v80, 2000, v80')
                a('v_add_u32 v80, v30, v80')
                a('s_nop 1')
                a('v_readfirstlane_b32 s20, v80')
                a(f'{name}_sp:')
                a('s_memrealtime s[22:23]')
                a('s_waitcnt lgkmcnt(0)')
                a('s_sub_u32 s21, s20, s22')
                a('s_cmp_gt_i32 s21, 0')
                a(f's_cbranch_scc1 {name}_sp')
    a(f'{name}_end:')
    a('s_endpgm')
    p3slow()
    for lab, dst, vo, so in slows:
        a(f'{name}_{lab}s:')
        a(f's_sleep {slp}')
        a(f'buffer_load_dword v{dst}, v{vo}, {SRD}, s{so} offen sc1')
        a('s_waitcnt vmcnt(0)')
        a(f'v_cmp_ne_u32 vcc, s{S_TAG}, v{dst}')
        a(f's_cbranch_vccnz {name}_{lab}s')
        a(f's_branch {name}_{lab}k')
    for lab, op in stubs:
        a(f'{lab}:')
        a(f'{op} sc1')
        a(f's_branch {lab}b')
    a(f'{name}_cfslow:')
    a(f's_sleep {slp}')
    a(f'buffer_load_dword v{V_PFD}, v{V_XO}, {SRD}, s{S_SLOW} offen sc1')
    a('s_waitcnt vmcnt(0)')
    a(f'v_cmp_ne_u32 s[{S_T3}:{S_T3+1}], s{S_TAG}, v{V_PFD}')
    a('s_nop 3')
    a(f's_cmp_eq_u64 s[{S_T3}:{S_T3+1}], 0')
    a(f's_cbranch_scc0 {name}_cfslow')
    a(f's_branch {name}_cfok')
    for (L_r1, L_r1b, L_r2, L_r2b) in rare:
        a(f'{L_r1}:')
        rowmax2(V_T1, V_T2, 120)
        for qh, dst in ((0, V_T1), (1, V_T2)):
            a(f'v_max_f32 v{dst}, 0, v{dst}')
            fr = V_F1 if qh else V_F0
            a(f'v_sub_f32 v{fr}, 0, v{dst}')
            a(f'v_exp_f32 v{fr}, v{fr}')
            for kh in range(2):
                for i in range(4): a(f'v_sub_f32 v{Sreg(kh,qh)+i}, v{Sreg(kh,qh)+i}, v{dst}')
            for i in range(4): a(f'v_sub_f32 v{V_NEGM+4*qh+i}, v{V_NEGM+4*qh+i}, v{dst}')
            l = V_L1 if qh else V_L0
            a(f'v_mul_f32 v{l}, v{l}, v{fr}')
        if nobr2 and L_r1.endswith('M'): a(f's_mov_b32 s{S_LIM}, 1000')
        a(f's_branch {L_r1b}')
        a(f'{L_r2}:')
        a('s_nop 7')
        for beta in range(32):
            for qh in range(2):
                fr = V_F1 if qh else V_F0
                b = Obase(beta, qh)
                if beta < 16:
                    for r in range(4): a(f'v_mul_f32 v{b+r}, v{b+r}, v{fr}')
                else:
                    for r in range(4): a(f'v_accvgpr_read_b32 v{120+r}, a{b+r}')
                    for r in range(4): a(f'v_mul_f32 v{120+r}, v{120+r}, v{fr}')
                    for r in range(4): a(f'v_accvgpr_write_b32 a{b+r}, v{120+r}')
        a(f's_branch {L_r2b}')
    a('code_end:')
    a('s_endpgm')
    kernel_desc(a, name, 512, 102, 256)
```

```python
from asmlib import *
from layout import *
from attn2 import LdsQ
from k2 import f2h

P_X, P_WQ, P_WK, P_WV, P_AO, P_UP, P_DW, P_DN, P_MG, P_OUT, P_DBG, P_WS = [56 + 2 * i for i in range(12)]

def prep(a, name, K, st, mid1, flagA, pollA, late, gl=3, fa_at=6, apace=8, wsoff=0, upf=False, warm=False, prew=True, swap45=False, tlbw=False):
    V_L16 = K.V_L16
    V_T0, V_T1, V_T2, V_T3, V_TR, V_DT, V_LR, V_LS = 13, 14, 15, 12, 5, 6, 8, 9
    V_SW, V_AR, V_BR = 16, 160, 164
    V_ACC, V_PK, V_RA, V_RB = 32, 48, 64, 96
    RAW, F, SUM, MEAN, RSTD = 64, 96, 168, 172, 174
    S_SA, S_SB = 44, 48
    S_TI, S_TJ, S_OO, S_ROLE, S_RB, S_CB, S_BLK = 52, 53, 54, 55, 42, 43, K.S_T4
    S_W, S_T0, S_T1, S_T2 = K.S_W, K.S_T0, K.S_T1, K.S_T2
    SW, SX = [f's[{b}:{b+3}]' for b in (K.S_SRD, K.S_SRX)]
    SA, SB = [f's[{b}:{b+3}]' for b in (S_SA, S_SB)]
    LA_, LB_ = 32768, 98304
    a(f's_lshr_b32 s{S_BLK}, s{K.S_GTILE}, 1')
    a(f's_lshl_b32 s{S_BLK}, s{S_BLK}, 3')
    a(f's_bfe_u32 s{S_T0}, s2, 0x30003')
    a(f's_add_u32 s{S_BLK}, s{S_BLK}, s{S_T0}')
    a(f's_cmp_lt_u32 s{S_BLK}, 125')
    a(f's_cselect_b32 s{S_T2}, 0, 0x80000000')
    a(f's_min_u32 s{S_BLK}, s{S_BLK}, 124')
    a(f's_add_u32 s{S_BLK}, s{S_BLK}, s{K.S_B125}')
    a(f's_lshl_b32 s{S_BLK}, s{S_BLK}, 15')
    a('s_waitcnt lgkmcnt(0)')
    make_srd(a, K.S_SRX, P_X, 0, 8192000)
    for g in range(2):
        a(f's_add_u32 m0, s{K.S_W8K}, {g*4096}')
        a('s_nop 0')
        for i in range(4): a(f'buffer_load_dwordx4 v{K.V_DK1 if g else K.V_DK0}, {SX}, s{S_BLK} offen offset:{i*1024} lds')
    late()
    a(f'v_and_b32 v{V_T0}, 7, v0')
    a(f'v_lshrrev_b32 v{V_T1}, 3, v0')
    a(f'v_lshlrev_b32 v{V_LR}, 4, v{V_T1}')
    a(f'v_lshl_add_u32 v{V_LR}, v{V_T0}, 10, v{V_LR}')
    a(f'v_add_u32 v{V_LR}, s{K.S_W8K}, v{V_LR}')
    a(f'v_lshrrev_b32 v{V_T2}, 5, v0')
    a(f'v_lshlrev_b32 v{V_LS}, 11, v{V_T2}')
    a(f'v_and_b32 v{V_T2}, 3, v{V_T1}')
    a(f'v_lshl_add_u32 v{V_LS}, v{V_T2}, 8, v{V_LS}')
    a(f'v_lshl_add_u32 v{V_LS}, v{V_T0}, 4, v{V_LS}')
    a(f'v_or_b32 v{V_LS}, s{S_T2}, v{V_LS}')
    a(f's_and_b32 s{S_RB}, s{S_W}, 1')
    a(f's_lshr_b32 s{S_CB}, s{S_W}, 1')
    a(f's_lshl_b32 s{S_T1}, s{S_RB}, 7')
    a(f'v_xor_b32 v{V_SW}, s{S_T1}, v{V_L16}')
    for i in range(1, 8): a(f'v_xor_b32 v{V_SW+i}, {i*16}, v{V_SW}')
    a(f'v_bfe_u32 v{V_T2}, v0, 4, 1')
    a(f'v_lshlrev_b32 v{V_T2}, 2, v{V_T2}')
    a(f'v_xor_b32 v{V_T2}, v{V_T2}, v{V_T0}')
    a(f'v_lshlrev_b32 v{V_DT}, 4, v{V_T2}')
    a(f'v_lshl_add_u32 v{K.V_WD}, v{V_T1}, 11, v{V_DT}')
    a(f's_and_b32 s3, s2, 7')
    if swap45:
        a(f's_lshr_b32 s{S_T1}, s3, 1')
        a(f's_and_b32 s{S_T1}, s{S_T1}, 2')
        a(f's_xor_b32 s3, s3, s{S_T1}')
    a(f's_lshl_b32 s3, s3, 5')
    a(f's_lshr_b32 s{S_T1}, s2, 3')
    a(f's_add_u32 s3, s3, s{S_T1}')
    a(f's_and_b32 s{S_T2}, s2, 1')
    a(f's_lshl1_add_u32 s{S_T1}, s{S_T1}, s{S_T2}')
    a(f's_add_u32 s{S_T1}, s{S_T1}, 192')
    a(f's_cmp_ge_u32 s3, 192')
    a(f's_cselect_b32 s3, s{S_T1}, s3')
    a(f's_lshr_b32 s{S_ROLE}, s3, 6')
    a(f's_and_b32 s{S_TI}, s3, 7')
    a(f's_bfe_u32 s{S_TJ}, s3, 0x30003')
    make_srd(a, 96, P_DBG, 0, 256)
    a(f's_cmp_lt_u32 s2, 248\n s_cbranch_scc1 {name}_notag')
    a('s_memrealtime s[100:101]')
    a('v_mov_b32 v25, 0')
    a('s_waitcnt lgkmcnt(0)')
    a('s_or_b32 s100, s100, 1')
    a('v_mov_b32 v24, s100')
    a('s_mov_b64 exec, 1')
    a(f'buffer_atomic_cmpswap v[24:25], v{K.V_FO}, s[96:99], 0 offen sc1')
    a('s_mov_b64 exec, -1')
    a(f'{name}_notag:')
    def rows_dma(srd, sbase, ldsbase):
        a(f's_lshl_b32 s{S_T2}, s{S_W}, 14')
        a(f's_add_u32 s{S_T1}, s{sbase}, s{S_T2}')
        for g in range(4):
            a(f's_add_u32 m0, s{S_T2}, {ldsbase + g*4096}')
            if g: a(f's_add_u32 s{S_T1}, s{S_T1}, 4096')
            else: a('s_nop 0')
            for i in range(4):
                a(f'buffer_load_dwordx4 v{V_SW + 4*(g>>1) + i}, {srd}, s{S_T1} offen offset:{i*1024} lds')
    def tr_dma(npiece, stride_log2, sbase):
        a(f'v_lshl_add_u32 v{V_T3}, v{V_T1}, {stride_log2}, v{V_DT}')
        a(f's_mul_i32 s{S_T1}, s{S_W}, {npiece * 8 << stride_log2}')
        a(f's_add_u32 s{S_T1}, s{S_T1}, s{sbase}')
        a(f's_mul_i32 s{S_T2}, s{S_W}, {npiece * 1024}')
        for i in range(npiece):
            a(f's_add_u32 m0, s{S_T2}, {LB_ + i*1024}')
            if i: a(f's_add_u32 s{S_T1}, s{S_T1}, {8 << stride_log2}')
            else: a('s_nop 0')
            a(f'buffer_load_dwordx4 v{V_T3}, {SB}, s{S_T1} offen lds')
    def wpf(n):
        a(f'buffer_load_dword v26, v27, s[76:79], 0 offen')
        if warm: a(f'buffer_load_dword v26, v30, {SW}, s{K.S_T3} offen')
        a(f's_waitcnt vmcnt({n + 1 + (1 if warm else 0) + (1 if tlbw else 0)})')
    if wsoff:
        a(f's_add_u32 s{P_WS}, s{P_WS}, {wsoff << 20}')
        a(f's_addc_u32 s{P_WS+1}, s{P_WS+1}, 0')
    make_srd(a, K.S_SRD, P_WS, 0, WS_SIZE)
    a(f's_mov_b32 s{K.S_X}, s{P_X}\n s_mov_b32 s{K.S_X+1}, s{P_X+1}')
    a(f's_mov_b32 s{K.S_WS}, s{P_WS}\n s_mov_b32 s{K.S_WS+1}, s{P_WS+1}')
    make_srd(a, K.S_SRO, P_OUT, 0, 8192000)
    make_srd(a, 76, P_UP, 0, 1024 * 1024)
    a(f's_lshr_b32 s{S_T1}, s2, 6')
    a(f's_lshl2_add_u32 s{S_T1}, s{S_T1}, s{S_W}')
    a(f's_lshl_b32 s{S_T1}, s{S_T1}, 16')
    a(f's_lshl_b32 s{S_T0}, s{S_T0}, 7')
    a(f's_add_u32 s{S_T1}, s{S_T1}, s{S_T0}')
    if upf:
        a(f'v_lshlrev_b32 v27, 10, v0')
    else:
        a(f's_add_u32 s{S_T1}, s{S_T1}, 1024')
        a(f'v_and_b32 v27, 31, v0')
        a(f'v_lshlrev_b32 v27, 11, v27')
    a(f'v_add_u32 v27, s{S_T1}, v27')
    if tlbw:
        a(f's_lshl_b32 s{S_T1}, s{S_CB}, 10')
        a(f's_lshl_b32 s{S_T2}, s{S_RB}, 7')
        a(f's_add_u32 s{S_T1}, s{S_T1}, s{S_T2}')
        a(f's_add_u32 s{S_T1}, s{S_T1}, s{S_BLK}')
        a('s_mov_b64 exec, 0xff')
        a(f'buffer_store_dwordx4 v[16:19], v{V_LS}, {SW}, s{S_T1} offen sc1')
        a('s_mov_b64 exec, -1')
    if prew:
        lab = f'{name}_pw'
        a(f's_cmp_lg_u32 s{S_W}, 0\n s_cbranch_scc1 {lab}')
        a(f's_bfe_u32 s{S_T0}, s2, 0x30003')
        a(f's_and_b32 s{S_T1}, s2, 3')
        a(f's_lshl_b32 s{S_T1}, s{S_T1}, 2')
        a(f's_lshr_b32 s{S_T2}, s2, 6')
        a(f's_add_u32 s{S_T1}, s{S_T1}, s{S_T2}')
        a(f's_lshl_b32 s{S_T1}, s{S_T1}, 4')
        a(f's_and_b32 s{S_T2}, s2, 4')
        a(f's_lshl1_add_u32 s{S_T1}, s{S_T2}, s{S_T1}')
        a(f's_add_u32 s{S_T1}, s{S_T1}, s{S_T0}')
        a(f's_lshl_b32 s{S_T2}, s{K.S_GGRP}, 2')
        a(f's_and_b32 s{S_T2}, s{S_T2}, 0xf8')
        a(f's_add_u32 s{S_T2}, s{S_T2}, s{S_T0}')
        a(f'v_min_u32 v30, 6, v{V_T1}')
        a(f'v_mov_b32 v31, s{S_T2}')
        a(f'v_cmp_eq_u32 vcc, 0, v30')
        a(f'v_mov_b32 v252, s{S_T1}')
        a(f'v_mov_b32 v253, s3')
        a(f'v_cndmask_b32 v31, v31, v252, vcc')
        a(f'v_cmp_eq_u32 vcc, 6, v30')
        a(f'v_lshlrev_b32 v30, 15, v30')
        a(f'v_lshl_add_u32 v30, v{V_T0}, 4, v30')
        a(f'v_cndmask_b32 v31, v31, v253, vcc')
        a(f'v_lshl_add_u32 v30, v31, 7, v30')
        for i in range(4): a(f'v_mov_b32 v{252+i}, 0')
        a(f's_mov_b32 s{S_T1}, {ZF}')
        a(f'buffer_store_dwordx4 v[252:255], v30, {SW}, s{S_T1} offen sc1')
        a(f'{lab}:')
    if warm:
        T3 = K.S_T3
        a(f's_bfe_u32 s{S_T0}, s2, 0x30003')
        a(f's_and_b32 s{S_T1}, s2, 3')
        a(f's_lshl_b32 s{S_T1}, s{S_T1}, 2')
        a(f's_lshr_b32 s{S_T2}, s2, 6')
        a(f's_add_u32 s{S_T1}, s{S_T1}, s{S_T2}')
        a(f's_lshl_b32 s{S_T1}, s{S_T1}, 4')
        a(f's_and_b32 s{S_T2}, s2, 4')
        a(f's_lshl1_add_u32 s{S_T1}, s{S_T2}, s{S_T1}')
        a(f's_add_u32 s{S_OO}, s{S_T1}, s{S_T0}')
        lab = f'{name}_wm'
        a(f's_lshl_b32 s{T3}, s{K.S_GGRP}, 2')
        a(f's_and_b32 s{T3}, s{T3}, 0xf8')
        a(f's_add_u32 s{T3}, s{T3}, s{S_T0}')
        a(f's_lshl_b32 s{T3}, s{T3}, 7')
        a(f's_add_u32 s{T3}, s{T3}, {ZF}')
        a(f's_mov_b32 s{S_T1}, {2*ZK}\n s_mov_b32 s{S_T2}, {ZK}')
        a(f's_cmp_eq_u32 s{S_W}, 0\n s_cbranch_scc1 {lab}')
        a(f's_lshl_b32 s{T3}, s{S_OO}, 11')
        a(f's_add_u32 s{T3}, s{T3}, {WS_W + 16 * TILE}')
        a(f's_mov_b32 s{S_T1}, 256\n s_mov_b32 s{S_T2}, 128')
        a(f's_cmp_eq_u32 s{S_W}, 1\n s_cbranch_scc1 {lab}')
        a(f's_lshr_b32 s{T3}, s{K.S_GTILE}, 1')
        a(f's_lshl_b32 s{T3}, s{T3}, 3')
        a(f's_add_u32 s{T3}, s{T3}, s{K.S_B125}')
        a(f's_lshl_b32 s{T3}, s{T3}, 3')
        a(f's_add_u32 s{T3}, s{T3}, s{S_T0}')
        a(f's_lshl_b32 s{T3}, s{T3}, 8')
        a(f's_add_u32 s{T3}, s{T3}, {WS_ST}')
        a(f's_mov_b32 s{S_T1}, 2048')
        a(f's_cmp_eq_u32 s{S_W}, 2\n s_cbranch_scc1 {lab}')
        a(f's_lshl_b32 s{T3}, s{S_OO}, 7')
        a(f's_lshl_b32 s{S_T2}, s3, 7')
        a(f's_add_u32 s{S_T2}, s{S_T2}, {6*ZK}')
        a(f's_sub_u32 s{S_T2}, s{S_T2}, s{T3}')
        a(f's_add_u32 s{T3}, s{T3}, {ZF}')
        a(f's_mov_b32 s{S_T1}, 0')
        a(f'{lab}:')
        a(f'v_bfe_u32 v30, v0, 1, 3')
        a(f'v_mul_lo_u32 v30, v30, s{S_T1}')
        a(f'v_and_b32 v31, 1, v0')
        a(f'v_mul_lo_u32 v31, v31, s{S_T2}')
        a(f'v_add_u32 v30, v30, v31')
    a(f's_cmp_eq_u32 s{S_ROLE}, 3\n s_cbranch_scc1 {name}_i3')
    a(f's_cmp_eq_u32 s{S_ROLE}, 1\n s_cbranch_scc1 {name}_i1')
    a(f's_cmp_eq_u32 s{S_ROLE}, 0')
    a(f's_cselect_b32 s{S_SA}, s{P_AO}, s{P_DN}')
    a(f's_cselect_b32 s{S_SA+1}, s{P_AO+1}, s{P_DN+1}')
    a(f's_cselect_b32 s{S_T0}, 0, {512*1024}')
    a(f's_mov_b32 s{S_SA+2}, {512*1024}\n s_mov_b32 s{S_SA+3}, 0x20000')
    make_srd(a, S_SB, P_MG, 0, 1024 * 1024)
    a(f's_lshl_b32 s{S_T1}, s{S_TJ}, 7')
    a(f's_add_u32 s{S_T0}, s{S_T0}, s{S_T1}')
    tr_dma(16, 10, S_T0)
    wpf(16)
    a(f's_branch {name}_ln')
    a(f'{name}_i1:')
    make_srd(a, S_SA, P_WQ, 0, 512 * 1024)
    make_srd(a, S_SB, P_WK, 0, 512 * 1024)
    a(f's_lshl_b32 s{S_T0}, s{S_TJ}, 16')
    rows_dma(SB, S_T0, LB_)
    wpf(16)
    a(f's_branch {name}_ln')
    a(f'{name}_i3:')
    make_srd(a, S_SA, P_WV, 0, 512 * 1024)
    a(f's_cmp_ge_u32 s3, 208\n s_cbranch_scc1 {name}_i5')
    wpf(0)
    a(f's_branch {name}_ln')
    a(f'{name}_i5:')
    make_srd(a, S_SB, P_DW, 0, 31 * 1024)
    a(f's_mov_b32 s{S_SA+2}, 0')
    a(f's_sub_u32 s{S_OO}, s3, 208')
    a(f's_lshl2_add_u32 s{S_OO}, s{S_OO}, s{S_W}')
    a(f's_min_u32 s{S_OO}, s{S_OO}, 159')
    a(f'v_bfe_u32 v{V_T2}, v0, 4, 2')
    a(f'v_bfe_u32 v{V_T3}, v0, 2, 2')
    a(f'v_lshl_add_u32 v{V_T2}, v{V_T2}, 3, v{V_T3}')
    a(f'v_lshlrev_b32 v{V_T2}, 1, v{V_T2}')
    a(f'v_and_b32 v{V_T3}, 3, v0')
    a(f'v_add_u32 v{V_T3}, 1, v{V_T3}')
    a(f'v_lshlrev_b32 v{V_T3}, 10, v{V_T3}')
    a(f'v_sub_u32 v{V_T2}, v{V_T2}, v{V_T3}')
    a(f's_mul_i32 s{S_T1}, s{S_OO}, 52429')
    a(f's_lshr_b32 s{S_T1}, s{S_T1}, 18')
    a(f's_mul_i32 s{S_T2}, s{S_T1}, 5')
    a(f's_sub_u32 s{S_T0}, s{S_OO}, s{S_T2}')
    a(f's_lshl_b32 s{S_T0}, s{S_T0}, 13')
    a(f's_lshr_b32 s{S_T2}, s{S_T1}, 1')
    a(f's_lshl_b32 s{S_T2}, s{S_T2}, 6')
    a(f's_add_u32 s{S_T0}, s{S_T0}, s{S_T2}')
    a(f's_and_b32 s{S_T1}, s{S_T1}, 1')
    a(f's_lshl_b32 s{S_T1}, s{S_T1}, 3')
    a(f's_add_u32 s{S_T0}, s{S_T0}, s{S_T1}')
    a(f'v_add_u32 v{V_T3}, s{S_T0}, v{V_T2}')
    for e in range(8):
        a(f'buffer_load_ushort v{V_ACC+e}, v{V_T3}, {SB}, 0 offen')
        if e < 7: a(f'v_add_u32 v{V_T3}, 1024, v{V_T3}')
    wpf(8)
    a(f'{name}_ln:')
    st(40)
    aq = []
    for g in range(4):
        hd = [f's_add_u32 m0, s{S_T2}, {LA_ + g*4096}', f's_add_u32 s{S_T1}, s{S_T1}, 4096' if g else 's_nop 0']
        for i in range(4):
            aq.append(hd + [f'buffer_load_dwordx4 v{V_SW + 4*(g>>1) + i}, {SA}, s{S_T1} offen offset:{i*1024} lds']); hd = []
    a(f's_lshl_b32 s{S_T2}, s{S_W}, 14')
    a(f's_lshl_b32 s{S_T1}, s{S_TI}, 16')
    a(f's_add_u32 s{S_T1}, s{S_T1}, s{S_T2}')
    cn = [0]
    def c(o):
        a(o); cn[0] += 1
        if cn[0] % apace == 0 and aq:
            for x in aq.pop(0): a(x)
    for i in range(8): a(f'ds_read_b128 {vr(RAW+4*i,4)}, v{V_LR} offset:{i*128}')
    for i in range(4): a(f'v_mov_b32 v{SUM+i}, 0')
    for s in range(8):
        a(f's_waitcnt lgkmcnt({7-s})')
        for i in range(4):
            r = RAW + 4 * s + i; f = F + 8 * s + 2 * i
            c(f'v_lshlrev_b32 v{f}, 16, v{r}')
            c(f'v_and_b32 v{f+1}, 0xffff0000, v{r}')
        for i in range(4):
            f = F + 8 * s + 2 * i; acc = SUM + 2 * (i & 1)
            c(f'v_pk_add_f32 {vr(acc,2)}, {vr(acc,2)}, {vr(f,2)}')
    def reduce8(dst):
        a(f'v_pk_add_f32 {vr(SUM,2)}, {vr(SUM,2)}, {vr(SUM+2,2)}')
        a(f'v_add_f32 v{dst}, v{SUM}, v{SUM+1}')
        a('s_nop 1')
        a(f'v_add_f32_dpp v{dst}, v{dst}, v{dst} row_ror:8 row_mask:0xf bank_mask:0xf')
        for sw in ('v_permlane16_swap_b32', 'v_permlane32_swap_b32'):
            a(f'v_mov_b32 v{V_T2}, v{dst}')
            a('s_nop 1')
            a(f'{sw} v{V_T2}, v{dst}')
            a('s_nop 1')
            a(f'v_add_f32 v{dst}, v{dst}, v{V_T2}')
    reduce8(MEAN)
    a(f'v_mul_f32 v{MEAN}, {f2h(-1.0/512)}, v{MEAN}')
    for i in range(4): a(f'v_mov_b32 v{SUM+i}, 0')
    for k in range(32):
        f = F + 2 * k
        c(f'v_pk_add_f32 {vr(f,2)}, {vr(f,2)}, {vr(MEAN,2)} op_sel_hi:[1,0]')
        if k:
            g = f - 2; acc = SUM + 2 * (k & 1)
            c(f'v_pk_fma_f32 {vr(acc,2)}, {vr(g,2)}, {vr(g,2)}, {vr(acc,2)}')
    g = F + 62
    a(f'v_pk_fma_f32 {vr(SUM,2)}, {vr(g,2)}, {vr(g,2)}, {vr(SUM,2)}')
    reduce8(RSTD)
    a(f'v_mov_b32 v{V_T2}, {f2h(1e-5)}')
    a(f'v_fmac_f32 v{V_T2}, {f2h(1.0/512)}, v{RSTD}')
    a(f'v_rsq_f32 v{RSTD}, v{V_T2}')
    while aq:
        for x in aq.pop(0): a(x)
    a(f's_lshl_b32 s{S_T0}, s{S_CB}, 10')
    a(f's_lshl_b32 s{S_T1}, s{S_RB}, 7')
    a(f's_add_u32 s{S_T0}, s{S_T0}, s{S_T1}')
    a(f's_add_u32 s{S_T0}, s{S_T0}, s{S_BLK}')
    if WS_XA: a(f's_add_u32 s{S_T0}, s{S_T0}, {WS_XA}')
    for s in range(8):
        for i in range(4):
            f = F + 8 * s + 2 * i
            a(f'v_pk_mul_f32 {vr(f,2)}, {vr(f,2)}, {vr(RSTD,2)} op_sel_hi:[1,0]')
        for i in range(4):
            f = F + 8 * s + 2 * i
            a(f'v_cvt_pk_bf16_f32 v{RAW+4*s+i}, v{f}, v{f+1}')
        if s: a(f's_add_u32 s{S_T0}, s{S_T0}, 4096')
        a(f'buffer_store_dwordx4 {vr(RAW+4*s,4)}, v{V_LS}, {SW}, s{S_T0} offen sc1')
    a('v_mov_b32 v25, 0')
    a('buffer_load_dword v24, v25, s[96:99], 0 offen sc1')
    st(41)
    a(f'v_and_b32 v{V_T0}, 15, v0')
    a(f'v_lshrrev_b32 v{V_T1}, 4, v0')
    a(f'v_bfe_u32 v{V_T2}, v0, 2, 2')
    a(f'v_and_b32 v{V_T3}, 3, v0')
    a(f'v_lshl_add_u32 v{V_TR}, v{V_T2}, 3, v{V_T3}')
    a(f'v_lshlrev_b32 v{V_TR}, 10, v{V_TR}')
    a(f'v_xor_b32 v{V_T0}, v{V_T0}, v{V_T1}')
    a(f'v_lshl_add_u32 v{V_TR}, v{V_T0}, 4, v{V_TR}')
    a(f's_lshl_b32 s{S_T0}, s{S_RB}, 15')
    a(f's_add_u32 s{S_T0}, s{S_T0}, {LA_}')
    a(f's_lshl_b32 s{S_T1}, s{S_CB}, 15')
    a(f's_add_u32 s{S_T1}, s{S_T1}, {LB_}')
    for i in range(4):
        a(f'v_xor_b32 v{V_T0}, {i*64}, v{V_TR}')
        a(f'v_add_u32 v{V_AR+i}, s{S_T0}, v{V_T0}')
        a(f'v_add_u32 v{V_BR+i}, s{S_T1}, v{V_T0}')
    a(f'v_bfe_u32 v{V_T0}, v0, 3, 1')
    a(f'v_lshl_add_u32 v{V_T0}, v{V_T0}, 2, v{V_T3}')
    a(f'v_lshlrev_b32 v{K.V_WT0}, 4, v{V_T0}')
    a(f'v_lshl_add_u32 v{K.V_WT0}, v{V_T2}, 7, v{K.V_WT0}')
    a(f'v_lshl_add_u32 v{K.V_WT0}, v{V_T1}, 10, v{K.V_WT0}')
    a(f'v_xor_b32 v{K.V_WT1}, 64, v{K.V_WT0}')
    a(f's_lshl_b32 s{S_T0}, s{S_CB}, 6')
    a(f'v_xor_b32 v{V_TR}, s{S_T0}, v{K.V_WT0}')
    a(f'v_add_u32 v{V_TR}, {LB_}, v{V_TR}')
    a('s_waitcnt vmcnt(9)')
    a('s_barrier')
    st(42)
    mid1()
    tagl = []
    def publishA():
        lab = a.label(name + '_tag'); tagl.append(lab)
        a('s_waitcnt vmcnt(8)')
        a(f'{lab}w:')
        a(f'v_readfirstlane_b32 s{K.S_TAG}, v24')
        a('s_nop 3')
        a(f's_cmp_eq_u32 s{K.S_TAG}, 0')
        a(f's_cbranch_scc1 {lab}s')
        a('s_barrier')
        flagA()
    def rd_rows(base):
        return lambda s, h, dst: [f'ds_read_b128 {vr(dst,4)}, v{base + (s & 3)} offset:{h*4096 + (s >> 2)*256}']
    def rd_tr(s, h, dst):
        return [f'ds_read_b64_tr_b16 {vr(dst+2*jj,2)}, v{V_TR} offset:{s*4096 + jj*512 + h*8}' for jj in range(2)]
    def gemm(rdB):
        rdA = rd_rows(V_AR)
        q = LdsQ()
        def issue(s):
            for h in range(2):
                for o in rdA(s, h, V_RA + 8 * (s % 4) + 4 * h): a(o); q.issue(s)
            for h in range(2):
                for o in rdB(s, h, V_RB + 8 * (s % 4) + 4 * h): a(o); q.issue(s)
        for s in range(gl): issue(s)
        for s in range(16):
            a(f's_waitcnt lgkmcnt({min(15, q.need(s))})')
            for ch in range(2):
                for b in range(2):
                    d = vr(V_ACC + ch * 8 + b * 4, 4)
                    a(f'v_mfma_f32_16x16x32_bf16 {d}, {vr(V_RA+8*(s%4)+4*b,4)}, {vr(V_RB+8*(s%4)+4*ch,4)}, {d if s else 0}')
                if ch == 0 and s + gl < 16: issue(s + gl)
            if s == fa_at: publishA()
        pollA()
        a('s_nop 6')
    a(f's_cmp_eq_u32 s{S_ROLE}, 3\n s_cbranch_scc1 {name}_c3')
    a(f's_lshl1_add_u32 s{S_OO}, s{S_TJ}, s{S_CB}')
    a(f's_lshl_b32 s{S_OO}, s{S_OO}, 15')
    a(f's_lshl1_add_u32 s{S_T0}, s{S_TI}, s{S_RB}')
    a(f's_lshl_b32 s{S_T0}, s{S_T0}, 11')
    a(f's_add_u32 s{S_OO}, s{S_OO}, s{S_T0}')
    a(f's_cmp_eq_u32 s{S_ROLE}, 1\n s_cbranch_scc1 {name}_c1')
    a(f's_cmp_eq_u32 s{S_ROLE}, 0')
    a(f's_cselect_b32 s{S_T0}, {WS_T1 - WS_WC}, 0')
    a(f's_add_u32 s{S_OO}, s{S_OO}, s{S_T0}')
    a(f's_add_u32 s{S_OO}, s{S_OO}, {WS_WC}')
    gemm(rd_tr)
    a(f's_branch {name}_out')
    a(f'{name}_c1:')
    a(f's_add_u32 s{S_OO}, s{S_OO}, {WS_W}')
    gemm(rd_rows(V_BR))
    a(f's_mov_b32 s{S_T1}, {f2h(512 ** -0.5 * 1.4426950408889634)}')
    for i in range(16): a(f'v_mul_f32 v{V_ACC+i}, s{S_T1}, v{V_ACC+i}')
    a(f'{name}_out:')
    for i in range(8): a(f'v_cvt_pk_bf16_f32 v{V_PK+i}, v{V_ACC+2*i}, v{V_ACC+2*i+1}')
    for ch in range(2):
        a(f'buffer_store_dwordx4 {vr(V_PK+4*ch,4)}, v{V_L16}, {SW}, s{S_OO} offen offset:{ch*1024} sc1')
    a(f's_branch {name}_pfin')
    a(f'{name}_c3:')
    publishA()
    a(f's_cmp_ge_u32 s3, 208\n s_cbranch_scc1 {name}_c5')
    a(f's_lshl1_add_u32 s{S_T1}, s{S_TJ}, s{S_CB}')
    a(f's_lshl_b32 s{S_T0}, s{S_T1}, 8')
    for i in range(4): a(f'v_add_u32 v{V_AR+i}, s{S_T0}, v{V_AR+i}')
    for i in range(8):
        for o in rd_rows(V_AR)(i >> 1, i & 1, V_RA + 4 * i): a(o)
    a(f's_lshl1_add_u32 s{S_OO}, s{S_TI}, s{S_RB}')
    a(f's_lshl_b32 s{S_OO}, s{S_OO}, 15')
    a(f's_lshl_b32 s{S_T0}, s{S_T1}, 13')
    a(f's_add_u32 s{S_OO}, s{S_OO}, s{S_T0}')
    a(f's_add_u32 s{S_OO}, s{S_OO}, {WS_RL}')
    for i in range(8):
        if i % 4 == 0 and i: a(f's_add_u32 s{S_OO}, s{S_OO}, 4096')
        a(f's_waitcnt lgkmcnt({7 - i})')
        a(f'buffer_store_dwordx4 {vr(V_RA+4*i,4)}, v{V_L16}, {SW}, s{S_OO} offen offset:{(i%4)*1024} sc1')
    a(f's_branch {name}_c6')
    a(f'{name}_c5:')
    for i in range(4): a(f'v_lshl_or_b32 v{V_RA+i}, v{V_ACC+2*i+1}, 16, v{V_ACC+2*i}')
    a(f's_lshl_b32 s{S_T0}, s{S_OO}, 10')
    a(f's_add_u32 s{S_T0}, s{S_T0}, {WS_DWT}')
    a(f'buffer_store_dwordx4 {vr(V_RA,4)}, v{V_L16}, {SW}, s{S_T0} offen sc1')
    a(f'{name}_c6:')
    a('s_waitcnt vmcnt(0)')
    pollA()
    a('s_waitcnt vmcnt(0)')
    a(f'{name}_pfin:')
    def slow():
        for lab in tagl:
            a(f'{lab}s:')
            a('s_sleep 4')
            a('buffer_load_dword v24, v25, s[96:99], 0 offen sc1')
            a('s_waitcnt vmcnt(0)')
            a(f's_branch {lab}w')
    return slow
```
